```python
import torch

def _softmax(x, axis=-1):
    return torch.softmax(x, dim=axis)
def _gelu(x):
    return torch.nn.functional.gelu(x, approximate="tanh")
def _silu(x):
    return torch.nn.functional.silu(x)
def _sigmoid(x):
    return torch.sigmoid(x)
def _layernorm(x, axis=-1, eps=1e-5):
    m = x.mean(dim=axis, keepdim=True)
    v = x.var(dim=axis, keepdim=True, unbiased=False)
    return (x - m) / torch.sqrt(v + eps)
def _scatter_add(tgt, idx, src, axis=0):
    return tgt.clone().index_add_(axis, idx, src)
def _segment_sum(src, seg, n):
    out = torch.zeros((n,) + src.shape[1:], dtype=src.dtype)
    return out.index_add_(0, seg, src)
def _pad(x, pw):
    flat = tuple(v for pair in reversed(pw) for v in pair)
    return torch.nn.functional.pad(x, flat)

kernel_name = 'standalone__mha_softmax__near_ridge'

def setup_inputs():

    _w = (lambda a: (lambda t: t.to(torch.bfloat16) if t.is_floating_point() else t)(torch.as_tensor(a)))
    B, H, Sq, Sk, D = 8, 32, 1312, 512, 128
    return {
        "q": _w((lambda *s: torch.randn(*s, dtype=torch.bfloat16) * 0.8)(B, H, Sq, D)),
        "k": _w((lambda *s: torch.randn(*s, dtype=torch.bfloat16) * 0.8)(B, H, Sk, D)),
        "v": _w((lambda *s: torch.randn(*s, dtype=torch.bfloat16) * 0.05)(B, H, Sk, D)),
    }

def reference(q, k, v):
    scale = q.shape[-1] ** -0.5
    scores = torch.einsum("bhqd,bhkd->bhqk", q, k) * scale
    p = _softmax(scores, axis=-1)
    return torch.einsum("bhqk,bhkd->bhqd", p, v)
```

```python
import re

def V(n, c=1): return [('v', n+i) for i in range(c)]
def A(n, c=1): return [('a', n+i) for i in range(c)]
def S(n, c=1): return [('s', n+i) for i in range(c)]
def rs(kind, n, c):
    return f"{kind}{n}" if c == 1 else f"{kind}[{n}:{n+c-1}]"

class I:
    __slots__ = ("text","kind","rd","wr","cost","tag","cin","N","meta","name")
    def __init__(s, text, kind, rd=(), wr=(), cost=4, tag=None, cin=(), name=None, meta=None):
        s.text=text; s.kind=kind; s.rd=set(rd); s.wr=set(wr); s.cost=cost; s.tag=tag
        s.cin=set(cin); s.N=None; s.meta=meta or {}; s.name=name
    def __repr__(s): return f"<{s.kind}:{s.text}>"

VALU_KINDS=("valu","trans","perm")
def mfma(d, a, b, c=None, afile='a', bfile='v', dfile='v', name=None):
    ct = "0" if c is None else rs(dfile,c,4)
    t=f"v_mfma_f32_16x16x32_bf16 {rs(dfile,d,4)}, {rs(afile,a,4)}, {rs(bfile,b,4)}, {ct}"
    rd=[(afile,a+i) for i in range(4)]+[(bfile,b+i) for i in range(4)]
    cin=[] if c is None else [(dfile,c+i) for i in range(4)]
    return I(t,"mfma",rd+cin,[(dfile,d+i) for i in range(4)],cost=8,cin=cin,name=name)
def valu(text, rd, wr, kind="valu", cost=None, name=None):
    return I(text,kind,rd,wr,cost=cost or (8 if kind=="trans" else 4),name=name)
def salu(text, rd=(), wr=(), name=None):
    return I(text,"salu",rd,wr,cost=4,name=name)
def waitslot(lg=True, vm=False):
    i=I("","wslot"); i.meta={"lg":None,"vm":None}; return i
def nop(n): return I(f"s_nop {n-1}","nop",cost=4*n,meta={"states":n})
def raw(text): return I(text,"raw")

def states(i):
    if i.kind=="nop": return i.meta["states"]
    if i.kind in("label","comment"): return 0
    if i.kind=="wslot": return 1 if (i.meta["lg"] is not None or i.meta["vm"] is not None) else 0
    return 1

def required_gap(p, c):
    n=0
    if p.kind=="mfma":
        D=p.wr
        if c.kind=="mfma":
            ab=c.rd-c.cin
            if D & ab: n=max(n,8)
            if D & c.cin:
                if c.cin!=D: n=max(n,6)
            if (D & c.wr) and not (c.cin==D and c.wr==D): n=max(n,6)
        elif c.kind in VALU_KINDS:
            if D & (c.rd|c.wr): n=max(n,8)
            if p.cin & c.wr: n=max(n,3)
        elif c.kind in("dsr","dsw","vld","dma","vst"):
            if D & (c.rd|c.wr): n=max(n,8)
    elif p.kind in VALU_KINDS:
        vw={r for r in p.wr if r[0] in 'va'}
        sw={r for r in p.wr if r[0]=='s' or r[0]=='vcc'}
        if c.kind=="mfma" and (vw & c.rd): n=max(n,2)
        if p.kind=="trans" and c.kind in("valu","perm") and (vw & c.rd): n=max(n,1)
        if p.kind=="trans" and c.kind in("dsw","vst") and (vw & c.rd): n=max(n,1)
        if (c.kind=="perm" or c.meta.get("dpp")) and (vw & c.rd): n=max(n,2)
        if c.meta.get("rfl") and (vw & c.rd): n=max(n,1)
        if sw:
            if c.kind in("vld","dma","vst") and (sw & c.rd): n=max(n,5)
            if c.kind in VALU_KINDS and (sw & c.rd): n=max(n,2)
            if c.kind in("salu","branch") and (sw & c.rd): n=max(n,2)
    elif p.kind=="vst":
        data=set(p.meta.get("data",()))
        if data & c.wr: n=max(n,2)
    elif p.kind=="salu":
        if ('m0',0) in p.wr and c.kind=="dma": n=max(n,1)
    return n

def check_hazards(dyn, fix=None, window=24):
    bad=[]
    real=[x for x in dyn if states(x)>0 or x.kind=="wslot"]
    for j,c in enumerate(real):
        if c.kind in("wslot","nop","label","comment","raw","bar"): continue
        dist=0
        for k in range(j-1,max(-1,j-window),-1):
            p=real[k]
            need=required_gap(p,c)
            if need>dist: bad.append((j,need,dist,p,c))
            dist+=states(p)
            if dist>=8: break
    return bad

LG=("dsr","dsw"); VM=("vld","dma","vst")
def resolve_waits(dyn):
    for it in range(30):
        changed=False
        q={"lg":[], "vm":[]}; cnt={"lg":0,"vm":0}; ndma=0
        slot=None
        def retire(cls,N,at):
            q[cls][:]=[e for e in q[cls] if e["seq"]>=at-N]
        for pos,cur in enumerate(dyn):
            k=cur.kind
            if k in("wslot","wait"):
                for cls in("lg","vm"):
                    if cur.meta.get(cls) is not None: retire(cls,cur.meta[cls],cnt[cls])
                if k=="wslot": slot=(cur,dict(cnt),pos)
                continue
            touch=cur.rd|cur.wr
            needs=[]
            for e in q["lg"]:
                p=e["i"]
                if p.kind=="dsr" and (p.wr & touch): needs.append(("lg",e))
                elif k=="bar" and "need" in cur.meta:
                    if id(p) in cur.meta["need"]: needs.append(("lg",e))
                elif k=="bar" and (p.kind=="dsw" or cur.meta.get("all_ds")): needs.append(("lg",e))
            for e in q["vm"]:
                p=e["i"]
                if p.kind=="vld" and (p.wr & touch): needs.append(("vm",e))
                elif k=="bar" and p.kind=="dma" and cur.meta.get("keep_dma") is not None and e["dma"]<ndma-cur.meta["keep_dma"]: needs.append(("vm",e))
                elif p.kind=="dma" and p.tag in cur.meta.get("tags",()): needs.append(("vm",e))
            for cls,e in needs:
                if slot is None or slot[2]<e["pos"]:
                    raise Exception(f"no wait slot between producer {e['i']} and consumer {cur}")
                sl,at,_=slot
                N=min(at[cls]-e["seq"]-1, 14 if cls=="lg" else 62)
                if sl.meta[cls] is None or N<sl.meta[cls]:
                    sl.meta[cls]=N; changed=True
            if needs:
                for cls in("lg","vm"):
                    if slot[0].meta[cls] is not None: retire(cls,slot[0].meta[cls],slot[1][cls])
            if k in LG:
                q["lg"].append({"i":cur,"seq":cnt["lg"],"pos":pos}); cnt["lg"]+=1
            if k in VM:
                q["vm"].append({"i":cur,"seq":cnt["vm"],"pos":pos,"dma":ndma}); cnt["vm"]+=1
                if k=="dma": ndma+=1
        if not changed: return
    raise Exception("wait resolution did not converge")

def max_outstanding(dyn):
    q={"lg":0,"vm":0}; mx={"lg":0,"vm":0}
    for cur in dyn:
        if cur.kind in("wslot","wait"):
            for c in q:
                if cur.meta.get(c) is not None: q[c]=min(q[c],cur.meta[c])
        if cur.kind in LG: q["lg"]+=1
        if cur.kind in VM: q["vm"]+=1
        for c in q: mx[c]=max(mx[c],q[c])
    return mx

def emit(static):
    out=[]
    for i in static:
        if i.kind=="wslot":
            p=[]
            if i.meta["vm"] is not None: p.append(f"vmcnt({i.meta['vm']})")
            if i.meta["lg"] is not None: p.append(f"lgkmcnt({i.meta['lg']})")
            if p: out.append("    s_waitcnt "+" ".join(p))
        elif i.kind=="label": out.append(i.text+":")
        elif i.kind=="comment": out.append("    ; "+i.text)
        else: out.append("    "+i.text)
    return "\n".join(out)+"\n"

def wait(lg=None, vm=None):
    p=[]
    if vm is not None: p.append(f"vmcnt({vm})")
    if lg is not None: p.append(f"lgkmcnt({lg})")
    return I("s_waitcnt "+" ".join(p),"wait",meta={"lg":lg,"vm":vm})

def estimate(seq):
    t=0; pipe_free=0; valu_ok=0; last_valu_end=-100
    for i in seq:
        k=i.kind
        if states(i)==0: continue
        if k=="mfma":
            t=max(t,pipe_free); pipe_free=t+16; valu_ok=t+8; t+=4
        elif k in VALU_KINDS:
            t=max(t,valu_ok); t+=i.cost; last_valu_end=t
        elif k in("dsr","dsw","vld","dma","vst"):
            t=max(t,valu_ok, last_valu_end+8); t+=i.cost
        else:
            t+=i.cost
    return max(t,pipe_free)
```

```python
from core import *

class Op:
    def __init__(s, ins, prio, deps=(), earliest=0, name=None):
        s.ins=ins; s.prio=prio; s.deps=list(deps); s.earliest=earliest; s.name=name; s.done=False; s.gap=None
    @property
    def cost(s): return s.ins.cost
    @property
    def mem(s): return s.ins.kind in("dsr","dsw","vld","dma","vst")

def hazard_ok(out, ins):
    dist=0
    for p in reversed(out[-24:]):
        if required_gap(p,ins)>dist: return False
        dist+=states(p)
        if dist>=8: break
    return True
def hazard_need(out, ins):
    dist=0; need=0
    for p in reversed(out[-24:]):
        need=max(need,required_gap(p,ins)-dist)
        dist+=states(p)
        if dist>=8: break
    return need

def schedule(backbone, ops, sops, mdeps, prefix, slot_gaps, tail=(), log=None):
    out=list(prefix); n0=len(out)
    emitted=set()
    def isdone(d): return (d.done if isinstance(d,Op) else id(d) in emitted)
    def ready(o,g):
        if o.done or o.earliest>g or not all(isdone(d) for d in o.deps): return False
        if o.ins.kind=="bar" and any(d.gap>g-2 for d in o.deps): return False
        return True
    def put(o,g,force=False):
        if force: out.append(waitslot())
        k=hazard_need(out,o.ins)
        if k>0: out.append(nop(k))
        out.append(o.ins); o.done=True; o.gap=g
    def force(o,g):
        if o.done: return
        for d in o.deps:
            if isinstance(d,Op): force(d,g)
            else: assert id(d) in emitted, f"forced op {o.name} depends on unemitted mfma {d}"
        put(o,g,True)
    n=len(backbone)
    for g,m in enumerate(backbone):
        pend=[o for o in mdeps.get(g,[]) if not o.done]
        for o in pend: force(o,g-1)
        if pend:
            out.append(waitslot())
            if log is not None: log.append("    FORCED "+" ".join(o.name for o in pend))
        k=hazard_need(out,m)
        if k>0: out.append(nop(k))
        out.append(m); emitted.add(id(m))
        desc=[]
        if g in slot_gaps: out.append(waitslot()); desc.append("w")
        else:
            c=sorted([o for o in sops if ready(o,g)],key=lambda o:o.prio)
            if c: put(c[0],g); desc.append("s:"+(c[0].name or ""))
        cap=8; had_valu=False
        while cap>0:
            c=[o for o in ops if ready(o,g) and hazard_ok(out,o.ins) and not (o.mem and had_valu)]
            if cap<8: c=[o for o in c if o.cost<=cap]
            if not c: break
            c.sort(key=lambda o:o.prio)
            o=c[0]
            if cap==8 and o.cost==4:
                small=[x for x in c if x.cost==4]
                big=[x for x in c if x.cost>=8]
                if len(small)>=2:
                    a,b=small[0],small[1]
                    if b.mem and not a.mem: o=b
                elif big and o.prio>g: o=big[0]
            put(o,g); desc.append(o.name or "?")
            cap-=o.cost
            if not o.mem: had_valu=True
        if log is not None: log.append(f"{g:3d} {m.name:14s} "+" ".join(desc))
    rest=sorted([o for o in list(sops)+list(ops) if not o.done],key=lambda o:o.prio)
    for o in rest:
        force(o,n)
        if log is not None: log.append(f"END {o.name}")
    for t in tail: out.append(t)
    return out[n0:]
```

```python
import sys, struct, math
from core import *
from sched import *

NAME="standalone__mha_softmax__near_ridge_kernel"
NT=41
QBYTES=335872; KBYTES=131072
OPT=dict(D=4, st="nt", ld="nt", stamp=0, wsplit=0)
for a in sys.argv[2:]:
    k,v=a.split("="); OPT[k]=int(v) if v.lstrip("-").isdigit() else v
D=OPT["D"]; NQ=6
STF=(" "+OPT["st"].replace("+"," ")) if OPT["st"]!="none" else ""
LDF=(" "+OPT["ld"].replace("+"," ")) if OPT["ld"]!="none" else ""
QSLOT=8320; QBASE=131072-3*QSLOT; QEND=QBASE+NQ*QSLOT; LBASE=QEND; MBASE=LBASE+1024; LDS_BYTES=MBASE+2048
vQrd,vQrd0,vPw,vPr,vQdma,vOst,vLw,vLr=1,2,3,[None,4,5,6],7,8,9,10
vLmax,vLmin,vR0,vR1,vT=11,12,13,14,15
vLrd,vLacc,vSEL=16,20,[24,28]
vQ=lambda qb,ds:32+qb*16+ds*4
vS=lambda n:64+(n%8)*4
vP=lambda f:96+f*4
vRing=lambda s,k:128+(s%2)*16+k*4
vO=lambda st,qb,db:160+st*16+qb*8+db*4
vOut=lambda qb:192+qb*4
aK=lambda kb,ds:(kb*4+ds)*4
aV=lambda j,kp,db:128+((j*4+kp)*2+db)*4
sQ,sK,sV,sO=4,8,12,16
sW,sLoop,sQso,sQm0,sQrs,sO0,sO1,sT,sC=20,21,22,23,24,25,26,27,28
sWoff=30; sDbg=32
M0=('m0',0); VCC=('vcc',0); SCC=('scc',0)
CSCALE=struct.unpack("<I",struct.pack("<f",math.log2(math.e)/math.sqrt(128.0)))[0]
HI=(127+50)<<23; LO=(127-24)<<23

def dsr128(dst,addr,off,file='v',name=None): return I(f"ds_read_b128 {rs(file,dst,4)}, v{addr} offset:{off}","dsr",V(addr),[(file,dst+i) for i in range(4)],name=name)
def dsw128(addr,src,off): return I(f"ds_write_b128 v{addr}, {rs('v',src,4)} offset:{off}","dsw",V(addr)+V(src,4),[],cost=20)
def dsw64(addr,src,off): return I(f"ds_write_b64 v{addr}, {rs('v',src,2)} offset:{off}","dsw",V(addr)+V(src,2),[],cost=12)
def dsw32(addr,src,off): return I(f"ds_write_b32 v{addr}, v{src} offset:{off}","dsw",V(addr)+V(src),[],cost=8)
def dma(voff,srd,soff,off,flag=LDF): return I(f"buffer_load_dwordx4 v{voff}, s[{srd}:{srd+3}], s{soff} offen offset:{off}{flag} lds","dma",V(voff)+S(srd,4)+S(soff)+[M0],[])
def vld(dst,voff,srd,soff,off,flag=LDF): return I(f"buffer_load_dwordx4 {rs('v',dst,4)}, v{voff}, s[{srd}:{srd+3}], s{soff} offen offset:{off}{flag}","vld",V(voff)+S(srd,4)+S(soff),V(dst,4))
def vst(src,voff,srd,soff,flag=STF): return I(f"buffer_store_dwordx4 {rs('v',src,4)}, v{voff}, s[{srd}:{srd+3}], s{soff} offen{flag}","vst",V(src,4)+V(voff)+S(srd,4)+S(soff),[],meta={"data":V(src,4)})
def vexp(r): return valu(f"v_exp_f32 v{r}, v{r}",V(r),V(r),"trans")
def vcvt(d,a,b): return valu(f"v_cvt_pk_bf16_f32 v{d}, v{a}, v{b}",V(a)+V(b),V(d))
def v2(op,d,a,b): return valu(f"{op} v{d}, v{a}, v{b}",V(a)+V(b),V(d))
def bar(**m): return I("s_barrier","bar",meta=m)
def label(t): return I(t,"label")
def comment(t): return I(t,"comment")

def chain_info(n):
    f=(n//2+1)%8; h=n%2
    return f,h,2*(f//2)+h,f%2
def s_block(f,h):
    return (2*((f-1)%8)+h)

def iteration(i, par, cur, nxt, pv, ep, dodma, prefix, last_bar=True, loopctl=None, log=None):
    groups=[]
    def qk(n):
        f,h,kb,qb=chain_info(n)
        return [mfma(vS(n),aK(kb,ds),vQ(qb,ds),None if ds==0 else vS(n),name=f"QK{n}.{ds}") for ds in range(4)]
    so=1-par
    def pvo(qb,db): return [mfma(vO(so,qb,db),aV(0,kp,db),vP(2*kp+qb),None if kp==0 else vO(so,qb,db),name=f"PVo{qb}{db}.{kp}") for kp in range(4)]
    def one(qb): return [mfma(vLacc,vSEL[qb],vP(2*kp+qb),None if (kp==0 and qb==0) else vLacc,afile='v',name=f"ONE{qb}.{kp}") for kp in range(4)]
    sets=[(1,0),(1,1),(2,0),(2,1),(3,0),(3,1)]
    def pvx(s,db):
        j,qb=sets[s]
        return [mfma(vO(so,qb,db),aV(j,kp,db),vRing(s,kp),vO(so,qb,db),name=f"PVx{s}{db}.{kp}") for kp in range(4)]
    N=[("pvo",0,0),("pvo",0,1),("one",0),("pvo",1,0),("pvo",1,1),("one",1)]+[("pvx",s,db) for s in range(6) for db in range(2)]
    order=[N[0],N[1]]
    for n in range(16): order+=[("qk",n),N[n+2]]
    G={}; bb=[]; pos={}
    for key in order:
        if key[0]=="qk":
            n=key[1]
            if not (nxt if n>=14 else cur): continue
            g=qk(n)
        else:
            if not pv: continue
            g={"pvo":pvo,"one":one,"pvx":pvx}[key[0]](*key[1:])
        G[key]=g; pos[key]=len(bb); bb+=g
    nb=len(bb)
    nom={}; p=0
    for key in order: nom[key]=p; p+=4
    scale=(nb/136.0) if nb else 0
    ops=[]; sops=[]; mdeps={}
    def add(ins,prio,deps=(),earliest=0,name=None):
        o=Op(ins,prio*scale,deps,int(earliest*scale) if nb<136 else earliest,name); ops.append(o); return o
    def adds(ins,prio,deps=(),name=None,earliest=0):
        o=Op(ins,prio*scale,deps,int(earliest*scale),name); sops.append(o); return o
    def need(key,k,o): mdeps.setdefault(max(pos[key]+k,0),[]).append(o)
    must_bar=[]
    E={}
    for n in list(range(16))+[-1]:
        if n==15: continue
        if n==-1:
            if not cur: continue
            blk=vS(15); dep=[]; t0=0
        else:
            if ("qk",n) not in G: continue
            blk=vS(n); dep=[G[("qk",n)][3]]; t0=nom[("qk",n)]+6
        for r in range(4): E[(n,r)]=add(vexp(blk+r),t0+2*r,dep,name=f"E{n}.{r}")
    if cur:
        for f in range(8):
            qb=f%2; kp=f//2
            war=[G[k][kp] for k in (("pvo",qb,0),("pvo",qb,1),("one",qb)) if k in G]
            C=[]
            for h in range(2):
                n=s_block(f,h)
                en = -1 if n==15 else n
                for p2 in range(2):
                    deps=list(war)
                    if f==0 and h==0: t=1+p2
                    else:
                        deps+=[E[(en,2*p2)],E[(en,2*p2+1)]]; t=E[(en,2*p2+1)].prio/scale+1
                    c=add(vcvt(vP(f)+2*h+p2,vS(n)+2*p2,vS(n)+2*p2+1),t,deps,name=f"C{f}.{2*h+p2}")
                    C.append(c)
                    nn=(n+8)%16
                    if ("qk",nn) in G and (n>=14 or n<8): need(("qk",nn),0,c)
            off=par*32768+f*1024
            tW=C[3].prio/scale+1
            if f<OPT["wsplit"]:
                for k in range(2):
                    w=add(dsw64(vPw,vP(f)+2*k,off+8*k),C[2*k+1].prio/scale+1,C[2*k:2*k+2],name=f"W{f}.{k}"); must_bar.append(w)
            else:
                w=add(dsw128(vPw,vP(f),off),tW,C,name=f"W{f}"); must_bar.append(w)
    if pv:
        for s,(j,qb) in enumerate(sets):
            for k in range(4):
                deps=[G[("pvx",s-2,1)][k]] if s>=2 else []
                t=nom[("pvx",s,0)]-14+k if s>=2 else s*4+k
                o=add(dsr128(vRing(s,k),vPr[j],so*32768+(2*k+qb)*1024),t,deps,name=f"R{s}.{k}")
                need(("pvx",s,0),-1,o)
        lw=add(dsw32(vLw,vLacc,so*512),nom[("one",1)]+8,[G[("one",1)][3]],name="LW"); must_bar.append(lw)
    if nxt:
        adv=[]
        if i>=0:
            a1=adds(salu(f"s_add_u32 s{sQrs}, s{sQrs}, {QSLOT}",S(sQrs),S(sQrs)+[SCC]),40,name="qr+")
            a2=adds(salu(f"s_cmp_eq_u32 s{sQrs}, {QEND}",S(sQrs),[SCC]),41,[a1],name="qr?")
            a3=adds(salu(f"s_cselect_b32 s{sQrs}, {QBASE}, s{sQrs}",S(sQrs)+[SCC],S(sQrs)),42,[a2],name="qr=")
            adv=[a3]
        upd=add(valu(f"v_add_u32 v{vQrd}, s{sQrs}, v{vQrd0}",S(sQrs)+V(vQrd0),V(vQrd)),80,adv,name="qupd")
        for qb in range(2):
            lastn=11 if qb==0 else 13
            for ds in range(4):
                deps=[upd]+([G[("qk",lastn)][ds]] if ("qk",lastn) in G else [])
                o=add(dsr128(vQ(qb,ds),vQrd,qb*4160+ds*256),nom[("qk",lastn)]+1+ds,deps,name=f"RQ{qb}.{ds}")
                if qb==0: need(("qk",14),-1,o)
    if dodma:
        m=adds(salu(f"s_mov_b32 m0, s{sQm0}",S(sQm0),[M0]),48,name="m0")
        d0=add(dma(vQdma,sQ,sQso,0),50,[m],name="DMA0"); d1=add(dma(vQdma,sQ,sQso,1024),54,[d0],name="DMA1")
        b1=adds(salu(f"s_add_u32 s{sQm0}, s{sQm0}, {QSLOT}",S(sQm0),S(sQm0)+[SCC]),60,[m],name="qm+")
        b2=adds(salu(f"s_cmp_eq_u32 s{sQm0}, s{sT}",S(sQm0)+S(sT),[SCC]),61,[b1],name="qm?")
        b3=adds(salu(f"s_cselect_b32 s{sQm0}, s{sWoff}, s{sQm0}",S(sQm0)+S(sWoff)+[SCC],S(sQm0)),62,[b2],name="qm=")
        b4=adds(salu(f"s_add_u32 s{sQso}, s{sQso}, 8192",S(sQso),S(sQso)+[SCC]),64,[d1,b3],name="qso+")
        if nxt and i>=0: b1.deps.append(a3)
    if ep:
        lr=add(dsr128(vLrd,vLr,par*512),-1,name="LR")
        a=add(v2("v_add_f32",vLrd,vLrd,vLrd+1),10,[lr],earliest=8,name="La")
        b=add(v2("v_add_f32",vLrd+2,vLrd+2,vLrd+3),10.5,[lr],earliest=8,name="Lb")
        c=add(v2("v_add_f32",vLrd,vLrd,vLrd+2),11,[a,b],name="Lc")
        rc=add(valu(f"v_rcp_f32 v{vR0}, v{vLrd}",V(vLrd),V(vR0),"trans"),12,[c],name="RCP")
        add(v2("v_max_u32",vLmax,vLmax,vLrd),30,[c],name="cmax"); add(v2("v_min_u32",vLmin,vLmin,vLrd),31,[c],name="cmin")
        mv=add(valu(f"v_mov_b32 v{vR1}, v{vR0}",V(vR0),V(vR1)),13,[rc],name="MOV")
        sw=add(valu(f"v_permlane32_swap_b32 v{vR0}, v{vR1}",V(vR0)+V(vR1),V(vR0)+V(vR1),"perm"),14,[mv],name="SWP")
        t=OPT.get("ept",24); dt=OPT.get("epdt",3.2)
        sts=[]
        for qb in range(2):
            cv=[]
            for db in range(2):
                for p2 in range(2):
                    r=vO(par,qb,db)+2*p2; R=vR0 if qb==0 else vR1
                    m0_=add(v2("v_mul_f32",r,r,R),t,[sw],name=f"M{qb}{db}{2*p2}"); t+=dt
                    m1_=add(v2("v_mul_f32",r+1,r+1,R),t,[sw],name=f"M{qb}{db}{2*p2+1}"); t+=dt
                    cv.append(add(vcvt(vOut(qb)+2*db+p2,r,r+1),t,[m0_,m1_],name=f"OC{qb}{db}{p2}")); t+=dt
            sts.append(add(vst(vOut(qb),vOst,sO,sO0 if qb==0 else sO1),t,cv,name=f"ST{qb}"))
        e1=adds(salu(f"s_add_u32 s{sO0}, s{sO0}, 8192",S(sO0),S(sO0)+[SCC]),120,[sts[0]]+([b4] if dodma else []),name="o0+")
        e2=adds(salu(f"s_add_u32 s{sO1}, s{sO1}, 8192",S(sO1),S(sO1)+[SCC]),121,[sts[1],e1],name="o1+")
    tail=[]
    scc_last=[o for o in sops if SCC in o.ins.wr]
    if loopctl:
        c1=adds(salu(f"s_sub_u32 s{sLoop}, s{sLoop}, 1",S(sLoop),S(sLoop)+[SCC]),128,scc_last,name="lp-",earliest=128)
        c2=adds(salu(f"s_cmp_lg_u32 s{sLoop}, 0",S(sLoop),[SCC]),129,[c1],name="lp?",earliest=129)
        tail=[I(f"s_cbranch_scc1 {loopctl}","branch",[SCC])]
    if last_bar:
        adds(bar(keep_dma=2*(D-2)),999,must_bar,name="BAR",earliest=135).earliest=max(nb-1,0)
    slot_gaps={g for g in range(3,nb-1,4)}|{nb-2}
    return schedule(bb,ops,sops,mdeps,prefix,slot_gaps,tail,log)

class Seq:
    def __init__(s,prefix=()): s.o=list(prefix); s.n0=len(s.o)
    def __call__(s,*ins,slot=True):
        for i in ins:
            if slot and i.kind not in("label","comment","salu","wait","branch","raw","nop"): s.o.append(waitslot())
            k=hazard_need(s.o,i)
            if k>0: s.o.append(nop(k))
            s.o.append(i)
    def out(s): return s.o[s.n0:]

def vop(t,rd,wr): return valu(t,rd,wr)
def prologue():
    q=Seq()
    q(salu("s_cmp_ge_u32 s2, 256",S(2),[SCC]), I("s_cbranch_scc1 L_end","branch",[SCC]))
    if OPT["stamp"]: q(raw("s_memtime s[60:61]"),raw("s_memrealtime s[62:63]"),raw(f"s_load_dwordx2 s[{sDbg}:{sDbg+1}], s[0:1], 32"))
    q(raw("s_load_dwordx4 s[36:39], s[0:1], 0"), raw("s_load_dwordx4 s[40:43], s[0:1], 16"))
    L,Q_,G_,T1,T2,T3=200,201,202,203,204,205
    q(vop(f"v_and_b32 v{L}, 63, v0",V(0),V(L)), vop(f"v_lshrrev_b32 v{T1}, 6, v0",V(0),V(T1)))
    q(I(f"v_readfirstlane_b32 s{sW}, v{T1}","valu",V(T1),S(sW),meta={"rfl":1}))
    q(vop(f"v_and_b32 v{Q_}, 15, v{L}",V(L),V(Q_)), vop(f"v_lshrrev_b32 v{G_}, 4, v{L}",V(L),V(G_)))
    q(raw("s_waitcnt lgkmcnt(0)"))
    q(salu(f"s_mul_i32 s3, s2, {QBYTES}",S(2),S(3)), salu("s_lshl_b32 s31, s2, 17",S(2),S(31)))
    for srd,src,off,nb in((sQ,36,3,QBYTES),(sK,38,31,KBYTES),(sV,40,31,KBYTES),(sO,42,3,QBYTES)):
        q(salu(f"s_add_u32 s{srd}, s{src}, s{off}",S(src)+S(off),S(srd)), salu(f"s_addc_u32 s{srd+1}, s{src+1}, 0",S(src+1),S(srd+1)),
          salu(f"s_and_b32 s{srd+1}, s{srd+1}, 0xffff",S(srd+1),S(srd+1)),
          salu(f"s_mov_b32 s{srd+2}, {nb}",[],S(srd+2)), salu(f"s_mov_b32 s{srd+3}, 0x20000",[],S(srd+3)))
    KA,VA=206,207
    q(salu(f"s_lshl_b32 s44, s{sW}, 15",S(sW),S(44)))
    q(vop(f"v_lshlrev_b32 v{KA}, 8, v{Q_}",V(Q_),V(KA)), vop(f"v_lshl_add_u32 v{KA}, v{G_}, 4, v{KA}",V(G_)+V(KA),V(KA)))
    kt=lambda kb,ds:64+(kb*4+ds)*4
    for kb in range(8):
        q(salu(f"s_add_u32 s45, s44, {kb*4096}",S(44),S(45)))
        for ds in range(4): q(vld(kt(kb,ds),KA,sK,45,ds*64),slot=False)
    R_,C_=208,209
    q(vop(f"v_bfe_u32 v{R_}, v{L}, 2, 2",V(L),V(R_)), vop(f"v_and_b32 v{C_}, 3, v{L}",V(L),V(C_)))
    q(salu(f"s_lshl_b32 s46, s{sW}, 11",S(sW),S(46)))
    q(vop(f"v_lshlrev_b32 v{vQdma}, 8, v{R_}",V(R_),V(vQdma)), vop(f"v_lshl_add_u32 v{vQdma}, v{G_}, 6, v{vQdma}",V(G_)+V(vQdma),V(vQdma)),
      vop(f"v_lshl_add_u32 v{vQdma}, v{C_}, 4, v{vQdma}",V(C_)+V(vQdma),V(vQdma)), vop(f"v_add_u32 v{vQdma}, s46, v{vQdma}",S(46)+V(vQdma),V(vQdma)))
    q(salu(f"s_mul_i32 s47, s{sW}, 2080",S(sW),S(47)), salu(f"s_add_u32 s{sWoff}, s47, {QBASE}",S(47),S(sWoff)),
      salu(f"s_add_u32 s{sT}, s47, {QEND}",S(47),S(sT)), salu(f"s_add_u32 s{sQm0}, s{sWoff}, {3*QSLOT}",S(sWoff),S(sQm0)), salu(f"s_mov_b32 s{sQso}, 0",[],S(sQso)))
    def qdma():
        q(salu(f"s_mov_b32 m0, s{sQm0}",S(sQm0),[M0])); q(dma(vQdma,sQ,sQso,0),dma(vQdma,sQ,sQso,1024),slot=False)
        q(salu(f"s_add_u32 s{sQm0}, s{sQm0}, {QSLOT}",S(sQm0),S(sQm0)), salu(f"s_cmp_eq_u32 s{sQm0}, s{sT}",S(sQm0),[SCC]),
          salu(f"s_cselect_b32 s{sQm0}, s{sWoff}, s{sQm0}",S(sQm0),S(sQm0)), salu(f"s_add_u32 s{sQso}, s{sQso}, 8192",S(sQso),S(sQso)))
    qdma(); qdma()
    q(vop(f"v_lshlrev_b32 v{T1}, 2, v{G_}",V(G_),V(T1)), vop(f"v_xor_b32 v{T1}, v{T1}, v{Q_}",V(T1)+V(Q_),V(T1)),
      vop(f"v_lshlrev_b32 v{T1}, 4, v{T1}",V(T1),V(T1)), vop(f"v_lshl_add_u32 v{VA}, v{G_}, 8, v{T1}",V(G_)+V(T1),V(VA)))
    vn=[0]
    def vdma():
        n=vn[0]; vn[0]+=1
        if n>=32: return
        if n%4==0: q(salu(f"s_add_u32 s48, s44, {n*1024}",S(44),S(48)), salu("s_mov_b32 m0, s48",S(48),[M0]))
        q(dma(VA,sV,48,(n%4)*1024),slot=False)
    for _ in range(OPT.get("vpre",8)): vdma()
    q(vop(f"v_lshrrev_b32 v{T1}, 2, v{Q_}",V(Q_),V(T1)), vop(f"v_lshlrev_b32 v{vQrd0}, 10, v{T1}",V(T1),V(vQrd0)),
      vop(f"v_lshrrev_b32 v{T1}, 3, v{Q_}",V(Q_),V(T1)), vop(f"v_lshl_add_u32 v{vQrd0}, v{T1}, 5, v{vQrd0}",V(T1)+V(vQrd0),V(vQrd0)),
      vop(f"v_lshl_add_u32 v{vQrd0}, v{C_}, 6, v{vQrd0}",V(C_)+V(vQrd0),V(vQrd0)), vop(f"v_lshl_add_u32 v{vQrd0}, v{G_}, 4, v{vQrd0}",V(G_)+V(vQrd0),V(vQrd0)))
    q(salu(f"s_mov_b32 s{sQrs}, {QBASE+3*QSLOT}",[],S(sQrs)))
    for j in range(4):
        q(salu(f"s_add_u32 s49, s{sW}, {j}",S(sW),S(49)), salu("s_and_b32 s49, s49, 3",S(49),S(49)), salu(f"s_lshl_b32 s{50+j}, s49, 13",S(49),S(50+j)))
        r=vPw if j==0 else vPr[j]
        q(vop(f"v_lshl_add_u32 v{r}, v{L}, 4, s{50+j}",V(L)+S(50+j),V(r)))
    q(salu(f"s_lshl_b32 s49, s{sW}, 6",S(sW),S(49)))
    q(vop(f"v_lshlrev_b32 v{vOst}, 8, v{Q_}",V(Q_),V(vOst)), vop(f"v_lshl_add_u32 v{vOst}, v{G_}, 4, v{vOst}",V(G_)+V(vOst),V(vOst)), vop(f"v_add_u32 v{vOst}, s49, v{vOst}",S(49)+V(vOst),V(vOst)))
    q(vop(f"v_lshrrev_b32 v{T1}, 1, v{G_}",V(G_),V(T1)), vop(f"v_lshl_add_u32 v{T1}, v{T1}, 4, v{Q_}",V(T1)+V(Q_),V(T1)),
      vop(f"v_lshlrev_b32 v{T1}, 4, v{T1}",V(T1),V(T1)), vop(f"v_add_u32 v{vLr}, {LBASE}, v{T1}",V(T1),V(vLr)))
    q(salu(f"s_lshl_b32 s49, s{sW}, 2",S(sW),S(49))); q(vop(f"v_add_u32 v{vLw}, s49, v{vLr}",S(49)+V(vLr),V(vLw)))
    q(vop(f"v_mov_b32 v{vLmax}, 0",[],V(vLmax)), vop(f"v_mov_b32 v{vLmin}, -1",[],V(vLmin)))
    q(vop(f"v_mov_b32 v{T1}, 0x3f803f80",[],V(T1)), valu(f"v_cmp_gt_u32 vcc, 8, v{Q_}",V(Q_),[VCC]))
    for r in range(4):
        q(valu(f"v_cndmask_b32 v{vSEL[0]+r}, 0, v{T1}, vcc",V(T1)+[VCC],V(vSEL[0]+r)))
        q(vop(f"v_xor_b32 v{vSEL[1]+r}, v{T1}, v{vSEL[0]+r}",V(T1)+V(vSEL[0]+r),V(vSEL[1]+r)))
    q(salu(f"s_mov_b32 s{sO0}, 0",[],S(sO0)), salu(f"s_mov_b32 s{sO1}, 4096",[],S(sO1)), salu(f"s_mov_b32 s{sC}, {CSCALE:#x}",[],S(sC)), salu(f"s_mov_b32 s{sC+1}, {CSCALE:#x}",[],S(sC+1)))
    VB=210
    q(vop(f"v_lshlrev_b32 v{T1}, 2, v{R_}",V(R_),V(T1)), vop(f"v_add_u32 v{T2}, s49, v{C_}",S(49)+V(C_),V(T2)), vop(f"v_xor_b32 v{T2}, v{T2}, v{T1}",V(T1)+V(T2),V(T2)),
      vop(f"v_lshl_add_u32 v{T3}, v{G_}, 2, v{R_}",V(G_)+V(R_),V(T3)), vop(f"v_lshlrev_b32 v{T3}, 8, v{T3}",V(T3),V(T3)), vop(f"v_lshl_add_u32 v{T3}, v{T2}, 4, v{T3}",V(T2)+V(T3),V(T3)))
    for j in range(4):
        q(salu(f"s_lshl_b32 s49, s{50+j}, 2",S(50+j),S(49))); q(vop(f"v_add_u32 v{VB+j}, s49, v{T3}",S(49)+V(T3),V(VB+j)))
    TP=216
    for kb in range(8):
        for ds in range(4):
            b=kt(kb,ds)
            for r in range(4):
                t=TP+2*r
                q(vop(f"v_lshlrev_b32 v{t}, 16, v{b+r}",V(b+r),V(t)),slot=(r==0))
                q(vop(f"v_and_b32 v{t+1}, 0xffff0000, v{b+r}",V(b+r),V(t+1)),slot=False)
            for r in range(4):
                t=TP+2*r
                q(vop(f"v_pk_mul_f32 v[{t}:{t+1}], v[{t}:{t+1}], s[{sC}:{sC+1}]",V(t,2)+S(sC,2),V(t,2)),slot=False)
            for r in range(4): q(vcvt(TP+2*r,TP+2*r,TP+2*r+1),slot=False)
            for r in range(4): q(vop(f"v_accvgpr_write_b32 a{aK(kb,ds)+r}, v{TP+2*r}",V(TP+2*r),A(aK(kb,ds)+r)),slot=False)
            vdma()
    while vn[0]<32: vdma()
    qdma()
    q(bar(keep_dma=34))
    pre=iteration(-1,1,False,True,False,False,False,q.o,last_bar=False)
    q.o+=pre
    q(bar(keep_dma=2))
    for j in range(4):
        for kp in range(4):
            for db in range(2):
                for hf in range(2):
                    a=aV(j,kp,db)+2*hf
                    q(I(f"ds_read_b64_tr_b16 a[{a}:{a+1}], v{VB+j} offset:{(2*kp+hf)*4096+8*db}","dsr",V(VB+j),A(a,2)),slot=False)
            if kp%2==1: q(wait(lg=6))
    q(bar(all_ds=1))
    for _ in range(D-3): qdma()
    return q.out()

def fallback():
    q=Seq()
    q(label("L_fallback"), wait(vm=0,lg=0), bar())
    q(salu(f"s_mov_b32 s{sQso}, 0",[],S(sQso)), salu(f"s_mov_b32 s{sO0}, 0",[],S(sO0)), salu(f"s_mov_b32 s{sO1}, 4096",[],S(sO1)), salu(f"s_mov_b32 s{sLoop}, {NT}",[],S(sLoop)))
    q(vop(f"v_add_u32 v{vQrd}, {QBASE}, v{vQrd0}",V(vQrd0),V(vQrd)))
    MW,MR,T=216,217,218
    q(vop(f"v_mbcnt_lo_u32_b32 v{T}, -1, 0",[],V(T)), vop(f"v_mbcnt_hi_u32_b32 v{T}, -1, v{T}",V(T),V(T)),
      vop(f"v_and_b32 v{MR}, 15, v{T}",V(T),V(MR)), vop(f"v_lshlrev_b32 v{MR}, 6, v{MR}",V(MR),V(MR)), vop(f"v_add_u32 v{MR}, {MBASE}, v{MR}",V(MR),V(MR)),
      vop(f"v_lshrrev_b32 v{T}, 4, v{T}",V(T),V(T)), vop(f"v_lshl_add_u32 v{MW}, v{T}, 2, v{MR}",V(T)+V(MR),V(MW)))
    q(salu(f"s_lshl_b32 s49, s{sW}, 4",S(sW),S(49))); q(vop(f"v_add_u32 v{MW}, s49, v{MW}",S(49)+V(MW),V(MW)))
    q(label("L_fb_loop"))
    q(salu(f"s_mov_b32 m0, s{sWoff}",S(sWoff),[M0])); q(dma(vQdma,sQ,sQso,0),dma(vQdma,sQ,sQso,1024)); q(wait(vm=0),bar())
    for qb in range(2):
        for ds in range(4): q(dsr128(vQ(qb,ds),vQrd,qb*4160+ds*256))
    Sb=lambda kb,qb:64+(kb*2+qb)*4
    Pf=lambda f:128+f*4
    for kb in range(8):
        for qb in range(2):
            for ds in range(4): q(mfma(Sb(kb,qb),aK(kb,ds),vQ(qb,ds),None if ds==0 else Sb(kb,qb)))
    Mx=[220,221]; RD=224
    for qb in range(2):
        q(v2("v_max_f32",Mx[qb],Sb(0,qb),Sb(0,qb)+1))
        regs=[Sb(kb,qb)+r for kb in range(8) for r in range(4)][2:]
        for x in range(0,30,2): q(vop(f"v_max3_f32 v{Mx[qb]}, v{Mx[qb]}, v{regs[x]}, v{regs[x+1]}",V(Mx[qb])+V(regs[x])+V(regs[x+1]),V(Mx[qb])))
        q(dsw32(MW,Mx[qb],qb*1024))
    q(bar())
    for qb in range(2):
        for x in range(4): q(dsr128(RD+4*x,MR,qb*1024+16*x))
        q(v2("v_max_f32",Mx[qb],RD,RD+1))
        for x in range(2,16,2): q(vop(f"v_max3_f32 v{Mx[qb]}, v{Mx[qb]}, v{RD+x}, v{RD+x+1}",V(Mx[qb])+V(RD+x)+V(RD+x+1),V(Mx[qb])))
    for kb in range(8):
        for qb in range(2):
            for r in range(4): q(v2("v_sub_f32",Sb(kb,qb)+r,Sb(kb,qb)+r,Mx[qb]),slot=False)
            for r in range(4): q(vexp(Sb(kb,qb)+r),slot=False)
            for p2 in range(2): q(vcvt(Pf(2*(kb//2)+qb)+2*(kb%2)+p2,Sb(kb,qb)+2*p2,Sb(kb,qb)+2*p2+1),slot=False)
    for f in range(8): q(dsw128(vPw,Pf(f),f*1024))
    for qb in range(2):
        for kp in range(4): q(mfma(vLacc,vSEL[qb],Pf(2*kp+qb),None if (kp==0 and qb==0) else vLacc,afile='v'))
    q(dsw32(vLw,vLacc,0)); q(bar())
    for qb in range(2):
        for db in range(2):
            for kp in range(4): q(mfma(vO(0,qb,db),aV(0,kp,db),Pf(2*kp+qb),None if kp==0 else vO(0,qb,db)))
    for j in range(1,4):
        for qb in range(2):
            for k in range(4): q(dsr128(RD+4*k,vPr[j],(2*k+qb)*1024))
            for db in range(2):
                for kp in range(4): q(mfma(vO(0,qb,db),aV(j,kp,db),RD+4*kp,vO(0,qb,db)))
    q(dsr128(vLrd,vLr,0)); q(v2("v_add_f32",vLrd,vLrd,vLrd+1),v2("v_add_f32",vLrd+2,vLrd+2,vLrd+3),v2("v_add_f32",vLrd,vLrd,vLrd+2))
    q(valu(f"v_rcp_f32 v{vR0}, v{vLrd}",V(vLrd),V(vR0),"trans"), vop(f"v_mov_b32 v{vR1}, v{vR0}",V(vR0),V(vR1)),
      valu(f"v_permlane32_swap_b32 v{vR0}, v{vR1}",V(vR0)+V(vR1),V(vR0)+V(vR1),"perm"))
    for qb in range(2):
        for db in range(2):
            for p2 in range(2):
                r=vO(0,qb,db)+2*p2; R=vR0 if qb==0 else vR1
                q(v2("v_mul_f32",r,r,R),v2("v_mul_f32",r+1,r+1,R),vcvt(vOut(qb)+2*db+p2,r,r+1))
        q(vst(vOut(qb),vOst,sO,sO0 if qb==0 else sO1))
    q(salu(f"s_add_u32 s{sO0}, s{sO0}, 8192",S(sO0),S(sO0)), salu(f"s_add_u32 s{sO1}, s{sO1}, 8192",S(sO1),S(sO1)), salu(f"s_add_u32 s{sQso}, s{sQso}, 8192",S(sQso),S(sQso)))
    q(wait(vm=0,lg=0),bar())
    q(salu(f"s_sub_u32 s{sLoop}, s{sLoop}, 1",S(sLoop),S(sLoop)), salu(f"s_cmp_lg_u32 s{sLoop}, 0",S(sLoop),[SCC]), I("s_cbranch_scc1 L_fb_loop","branch",[SCC]))
    return q.out()

def stamp(n):
    return [raw(f"s_memtime s[{64+4*n}:{65+4*n}]"),raw(f"s_memrealtime s[{66+4*n}:{67+4*n}]")] if OPT["stamp"] else []

def build():
    logs={}
    pro=prologue()+stamp(0)
    def it(i,par,cur,nxt,pv,ep,prefix,**kw):
        lg=[]; r=iteration(i,par,cur,nxt,pv,ep,(i+D<NT) or kw.get("force_dma"),prefix,log=lg,**{k:v for k,v in kw.items() if k!="force_dma"}); logs[i]=lg; return [comment(f"---- iteration {i}")]+r
    i0=it(0,0,1,1,0,0,pro)
    i1=it(1,1,1,1,1,0,i0)+[salu(f"s_mov_b32 s{sLoop}, 19",[],S(sLoop))]+stamp(1)
    head=[raw(".p2align 6") ,label("L_loop")]
    ia=it(2,0,1,1,1,1,i1,force_dma=True)
    ib=it(3,1,1,1,1,1,ia,force_dma=True,loopctl="L_loop")
    i40=stamp(2)+it(40,0,1,0,1,1,ib)
    i41=it(41,1,0,0,1,1,i40)
    i42=it(42,0,0,0,0,1,i41,last_bar=False)
    fin=Seq(i42)
    fin(salu(f"s_mov_b32 s49, {HI:#x}",[],S(49)), salu(f"s_mov_b32 s50, {LO:#x}",[],S(50)))
    fin(valu(f"v_cmp_lt_u32 vcc, s49, v{vLmax}",S(49)+V(vLmax),[VCC]), valu(f"v_cmp_gt_u32 s[52:53], s50, v{vLmin}",S(50)+V(vLmin),S(52,2)))
    fin(nop(4), salu("s_or_b64 vcc, vcc, s[52:53]",[VCC]+S(52,2),[VCC]), nop(4), I("s_cbranch_vccnz L_fallback","branch",[VCC]))
    if OPT["stamp"]:
        fin(*stamp(3)); fin(raw("s_waitcnt vmcnt(0)")); fin(*stamp(4)); fin(raw("s_waitcnt lgkmcnt(0)"))
        fin(raw("s_and_b32 s3, s2, 31"),raw("s_cmp_lg_u32 s3, 0"),raw("s_cbranch_scc1 L_end"),raw(f"s_cmp_lg_u32 s{sW}, 0"),raw("s_cbranch_scc1 L_end"))
        fin(raw(f"s_and_b32 s{sDbg+1}, s{sDbg+1}, 0xffff"),raw(f"s_mov_b32 s{sDbg+2}, 256"),raw(f"s_mov_b32 s{sDbg+3}, 0x20000"))
        for n in range(4): fin(raw(f"s_sub_u32 s3, s{64+4*(n+1 if n==3 else n)}, s60"),raw(f"v_mov_b32 v{200+2*n}, s3"),raw(f"s_sub_u32 s3, s{66+4*(n+1 if n==3 else n)}, s62"),raw(f"v_mov_b32 v{201+2*n}, s3"))
        fin(raw("s_lshr_b32 s3, s2, 5"),raw("s_lshl_b32 s3, s3, 5"),raw("v_mov_b32 v208, s3"),raw("s_mov_b64 exec, 1"),
            raw(f"buffer_store_dwordx4 v[200:203], v208, s[{sDbg}:{sDbg+3}], 0 offen"),raw(f"buffer_store_dwordx4 v[204:207], v208, s[{sDbg}:{sDbg+3}], 0 offen offset:16"))
    fin(raw("s_endpgm"))
    fb=fallback()
    static=pro+i0+i1+head+ia+ib+i40+i41+i42+fin.out()+fb+[label("L_end"),raw("s_endpgm")]
    dyn=pro+i0+i1+ia+ib+ia+ib+ia+ib+i40+i41+i42+fin.out()
    resolve_waits(dyn)
    k=[x for x,y in enumerate(fb) if y.text=="L_fb_loop"][0]
    dynf=fb+fb[k:]
    resolve_waits(dynf)
    for name,d in(("main",dyn),("fallback",dynf)):
        bad=check_hazards(d)
        for b in bad: print("HAZARD",name,b,file=sys.stderr)
        assert not bad
        print(name,"max outstanding",max_outstanding(d),file=sys.stderr)
    for nm,sq in(("i0",i0),("i1",i1),("ia",ia),("ib",ib),("i40",i40),("i41",i41),("i42",i42)):
        print(nm,"est cycles",estimate(sq),"nops",sum(1 for x in sq if x.kind=="nop"),"instrs",sum(1 for x in sq if states(x)),file=sys.stderr)
    if OPT.get("log"): print("\n".join(logs[OPT["log"]]),file=sys.stderr)
    hdr=open("standalone__mha_softmax__near_ridge.s.ref").read().split("; Override launch")[0]
    txt=hdr+f"""; One workgroup (4 waves) per head.  K (pre-scaled by log2(e)/sqrt(D)) and V^T stay in AGPRs: wave w owns keys
; 128w..128w+127 for S=K.Q^T and output columns 32w..32w+31 for O=V^T.P^T; P and the row sums are exchanged through LDS.
; exp2 uses a zero shift; every row sum is range-checked and the head is redone with the true row max if any leaves the safe range.
; @launch grid=(256,1,1) block=(256,1,1) lds={LDS_BYTES}
.amdgcn_target "amdgcn-amd-amdhsa--gfx950"
.text
.globl {NAME}
.p2align 8
.type {NAME},@function
{NAME}:
"""+emit(static)+f""".section .rodata,"a"
.p2align 6
.amdhsa_kernel {NAME}
  .amdhsa_next_free_vgpr 512
  .amdhsa_next_free_sgpr 102
  .amdhsa_accum_offset 256
  .amdhsa_group_segment_fixed_size 0
  .amdhsa_kernarg_size 48
  .amdhsa_user_sgpr_count 2
  .amdhsa_user_sgpr_kernarg_segment_ptr 1
  .amdhsa_system_sgpr_workgroup_id_x 1
.end_amdhsa_kernel
"""
    return txt

if __name__=="__main__":
    open(sys.argv[1],"w").write(build())
```

```python
import sys, struct, math
from core import *
from sched import *

NAME="standalone__mha_softmax__near_ridge_kernel"
NT=41
QBYTES=335872; KBYTES=131072
OPT=dict(D=4, st="nt", ld="nt", stamp=0, wsplit=0)
for a in sys.argv[2:]:
    k,v=a.split("="); OPT[k]=int(v) if v.lstrip("-").isdigit() else v
D=OPT["D"]; NQ=6
STF=(" "+OPT["st"].replace("+"," ")) if OPT["st"]!="none" else ""
LDF=(" "+OPT["ld"].replace("+"," ")) if OPT["ld"]!="none" else ""
QSLOT=8320; QBASE=131072-3*QSLOT; QEND=QBASE+NQ*QSLOT; LBASE=QEND; MBASE=LBASE+1024; LDS_BYTES=MBASE+2048
vQrd,vQrd0,vPw,vPr,vQdma,vOst,vLw,vLr=1,2,3,[None,4,5,6],7,8,9,10
vLmax,vLmin,vR0,vR1,vT=11,12,13,14,15
vLrd,vLacc,vSEL=16,20,[24,28]
vQ=lambda qb,ds:32+qb*16+ds*4
vS=lambda n:64+(n%8)*4
vP=lambda f:96+f*4
vRing=lambda s,k:128+(s%2)*16+k*4
vO=lambda st,qb,db:160+st*16+qb*8+db*4
vOut=lambda qb:192+qb*4
aK=lambda kb,ds:(kb*4+ds)*4
aV=lambda j,kp,db:128+((j*4+kp)*2+db)*4
sQ,sK,sV,sO=4,8,12,16
sW,sLoop,sQso,sQm0,sQrs,sO0,sO1,sT,sC=20,21,22,23,24,25,26,27,28
sWoff=30; sDbg=32
M0=('m0',0); VCC=('vcc',0); SCC=('scc',0)
CSCALE=struct.unpack("<I",struct.pack("<f",math.log2(math.e)/math.sqrt(128.0)))[0]
HI=(127+50)<<23; LO=(127-24)<<23

def dsr128(dst,addr,off,file='v',name=None): return I(f"ds_read_b128 {rs(file,dst,4)}, v{addr} offset:{off}","dsr",V(addr),[(file,dst+i) for i in range(4)],name=name)
def dsw128(addr,src,off): return I(f"ds_write_b128 v{addr}, {rs('v',src,4)} offset:{off}","dsw",V(addr)+V(src,4),[],cost=20)
def dsw64(addr,src,off): return I(f"ds_write_b64 v{addr}, {rs('v',src,2)} offset:{off}","dsw",V(addr)+V(src,2),[],cost=12)
def dsw32(addr,src,off): return I(f"ds_write_b32 v{addr}, v{src} offset:{off}","dsw",V(addr)+V(src),[],cost=8)
def dma(voff,srd,soff,off,flag=LDF): return I(f"buffer_load_dwordx4 v{voff}, s[{srd}:{srd+3}], s{soff} offen offset:{off}{flag} lds","dma",V(voff)+S(srd,4)+S(soff)+[M0],[])
def vld(dst,voff,srd,soff,off,flag=LDF): return I(f"buffer_load_dwordx4 {rs('v',dst,4)}, v{voff}, s[{srd}:{srd+3}], s{soff} offen offset:{off}{flag}","vld",V(voff)+S(srd,4)+S(soff),V(dst,4))
def vst(src,voff,srd,soff,flag=STF): return I(f"buffer_store_dwordx4 {rs('v',src,4)}, v{voff}, s[{srd}:{srd+3}], s{soff} offen{flag}","vst",V(src,4)+V(voff)+S(srd,4)+S(soff),[],meta={"data":V(src,4)})
def vexp(r): return valu(f"v_exp_f32 v{r}, v{r}",V(r),V(r),"trans")
def vcvt(d,a,b): return valu(f"v_cvt_pk_bf16_f32 v{d}, v{a}, v{b}",V(a)+V(b),V(d))
def v2(op,d,a,b): return valu(f"{op} v{d}, v{a}, v{b}",V(a)+V(b),V(d))
def bar(**m): return I("s_barrier","bar",meta=m)
def label(t): return I(t,"label")
def comment(t): return I(t,"comment")

def chain_info(n):
    f=(n//2+1)%8; h=n%2
    return f,h,2*(f//2)+h,f%2
def s_block(f,h):
    return (2*((f-1)%8)+h)

def iteration(i, par, cur, nxt, pv, ep, dodma, prefix, last_bar=True, loopctl=None, log=None):
    groups=[]
    def qk(n):
        f,h,kb,qb=chain_info(n)
        return [mfma(vS(n),aK(kb,ds),vQ(qb,ds),None if ds==0 else vS(n),name=f"QK{n}.{ds}") for ds in range(4)]
    so=1-par
    def pvo(qb,db): return [mfma(vO(so,qb,db),aV(0,kp,db),vP(2*kp+qb),None if kp==0 else vO(so,qb,db),name=f"PVo{qb}{db}.{kp}") for kp in range(4)]
    def one(qb): return [mfma(vLacc,vSEL[qb],vP(2*kp+qb),None if (kp==0 and qb==0) else vLacc,afile='v',name=f"ONE{qb}.{kp}") for kp in range(4)]
    sets=[(1,0),(1,1),(2,0),(2,1),(3,0),(3,1)]
    def pvx(s,db):
        j,qb=sets[s]
        return [mfma(vO(so,qb,db),aV(j,kp,db),vRing(s,kp),vO(so,qb,db),name=f"PVx{s}{db}.{kp}") for kp in range(4)]
    N=[("pvo",0,0),("pvo",0,1),("one",0),("pvo",1,0),("pvo",1,1),("one",1)]+[("pvx",s,db) for s in range(6) for db in range(2)]
    order=[N[0],N[1]]
    for n in range(16): order+=[("qk",n),N[n+2]]
    G={}; bb=[]; pos={}
    for key in order:
        if key[0]=="qk":
            n=key[1]
            if not (nxt if n>=14 else cur): continue
            g=qk(n)
        else:
            if not pv: continue
            g={"pvo":pvo,"one":one,"pvx":pvx}[key[0]](*key[1:])
        G[key]=g; pos[key]=len(bb); bb+=g
    nb=len(bb)
    nom={}; p=0
    for key in order: nom[key]=p; p+=4
    scale=(nb/136.0) if nb else 0
    ops=[]; sops=[]; mdeps={}
    def add(ins,prio,deps=(),earliest=0,name=None):
        o=Op(ins,prio*scale,deps,int(earliest*scale) if nb<136 else earliest,name); ops.append(o); return o
    def adds(ins,prio,deps=(),name=None,earliest=0):
        o=Op(ins,prio*scale,deps,int(earliest*scale),name); sops.append(o); return o
    def need(key,k,o): mdeps.setdefault(max(pos[key]+k,0),[]).append(o)
    must_bar=[]
    E={}
    for n in list(range(16))+[-1]:
        if n==15: continue
        if n==-1:
            if not cur: continue
            blk=vS(15); dep=[]; t0=0
        else:
            if ("qk",n) not in G: continue
            blk=vS(n); dep=[G[("qk",n)][3]]; t0=nom[("qk",n)]+6
        for r in range(4): E[(n,r)]=add(vexp(blk+r),t0+2*r,dep,name=f"E{n}.{r}")
    if cur:
        for f in range(8):
            qb=f%2; kp=f//2
            war=[G[k][kp] for k in (("pvo",qb,0),("pvo",qb,1),("one",qb)) if k in G]
            C=[]
            for h in range(2):
                n=s_block(f,h)
                en = -1 if n==15 else n
                for p2 in range(2):
                    deps=list(war)
                    if f==0 and h==0: t=1+p2
                    else:
                        deps+=[E[(en,2*p2)],E[(en,2*p2+1)]]; t=E[(en,2*p2+1)].prio/scale+1
                    c=add(vcvt(vP(f)+2*h+p2,vS(n)+2*p2,vS(n)+2*p2+1),t,deps,name=f"C{f}.{2*h+p2}")
                    C.append(c)
                    nn=(n+8)%16
                    if ("qk",nn) in G and (n>=14 or n<8): need(("qk",nn),0,c)
            off=par*32768+f*1024
            tW=C[3].prio/scale+1
            if f<OPT["wsplit"]:
                for k in range(2):
                    w=add(dsw64(vPw,vP(f)+2*k,off+8*k),C[2*k+1].prio/scale+1,C[2*k:2*k+2],name=f"W{f}.{k}"); must_bar.append(w)
            else:
                w=add(dsw128(vPw,vP(f),off),tW,C,name=f"W{f}"); must_bar.append(w)
    if pv:
        for s,(j,qb) in enumerate(sets):
            for k in range(4):
                deps=[G[("pvx",s-2,1)][k]] if s>=2 else []
                t=nom[("pvx",s,0)]-14+k if s>=2 else s*4+k
                o=add(dsr128(vRing(s,k),vPr[j],so*32768+(2*k+qb)*1024),t,deps,name=f"R{s}.{k}")
                need(("pvx",s,0),-1,o)
        lw=add(dsw32(vLw,vLacc,so*512),nom[("one",1)]+8,[G[("one",1)][3]],name="LW"); must_bar.append(lw)
    if nxt:
        adv=[]
        if i>=0:
            a1=adds(salu(f"s_add_u32 s{sQrs}, s{sQrs}, {QSLOT}",S(sQrs),S(sQrs)+[SCC]),40,name="qr+")
            a2=adds(salu(f"s_cmp_eq_u32 s{sQrs}, {QEND}",S(sQrs),[SCC]),41,[a1],name="qr?")
            a3=adds(salu(f"s_cselect_b32 s{sQrs}, {QBASE}, s{sQrs}",S(sQrs)+[SCC],S(sQrs)),42,[a2],name="qr=")
            adv=[a3]
        upd=add(valu(f"v_add_u32 v{vQrd}, s{sQrs}, v{vQrd0}",S(sQrs)+V(vQrd0),V(vQrd)),80,adv,name="qupd")
        for qb in range(2):
            lastn=11 if qb==0 else 13
            for ds in range(4):
                deps=[upd]+([G[("qk",lastn)][ds]] if ("qk",lastn) in G else [])
                o=add(dsr128(vQ(qb,ds),vQrd,qb*4160+ds*256),nom[("qk",lastn)]+1+ds,deps,name=f"RQ{qb}.{ds}")
                if qb==0: need(("qk",14),-1,o)
    if dodma:
        m=adds(salu(f"s_mov_b32 m0, s{sQm0}",S(sQm0),[M0]),48,name="m0")
        d0=add(dma(vQdma,sQ,sQso,0),50,[m],name="DMA0"); d1=add(dma(vQdma,sQ,sQso,1024),54,[d0],name="DMA1")
        b1=adds(salu(f"s_add_u32 s{sQm0}, s{sQm0}, {QSLOT}",S(sQm0),S(sQm0)+[SCC]),60,[m],name="qm+")
        b2=adds(salu(f"s_cmp_eq_u32 s{sQm0}, s{sT}",S(sQm0)+S(sT),[SCC]),61,[b1],name="qm?")
        b3=adds(salu(f"s_cselect_b32 s{sQm0}, s{sWoff}, s{sQm0}",S(sQm0)+S(sWoff)+[SCC],S(sQm0)),62,[b2],name="qm=")
        b4=adds(salu(f"s_add_u32 s{sQso}, s{sQso}, 8192",S(sQso),S(sQso)+[SCC]),64,[d1,b3],name="qso+")
        if nxt and i>=0: b1.deps.append(a3)
    if ep:
        lr=add(dsr128(vLrd,vLr,par*512),-1,name="LR")
        a=add(v2("v_add_f32",vLrd,vLrd,vLrd+1),10,[lr],earliest=8,name="La")
        b=add(v2("v_add_f32",vLrd+2,vLrd+2,vLrd+3),10.5,[lr],earliest=8,name="Lb")
        c=add(v2("v_add_f32",vLrd,vLrd,vLrd+2),11,[a,b],name="Lc")
        rc=add(valu(f"v_rcp_f32 v{vR0}, v{vLrd}",V(vLrd),V(vR0),"trans"),12,[c],name="RCP")
        add(v2("v_max_u32",vLmax,vLmax,vLrd),30,[c],name="cmax"); add(v2("v_min_u32",vLmin,vLmin,vLrd),31,[c],name="cmin")
        mv=add(valu(f"v_mov_b32 v{vR1}, v{vR0}",V(vR0),V(vR1)),13,[rc],name="MOV")
        sw=add(valu(f"v_permlane32_swap_b32 v{vR0}, v{vR1}",V(vR0)+V(vR1),V(vR0)+V(vR1),"perm"),14,[mv],name="SWP")
        t=OPT.get("ept",24); dt=OPT.get("epdt",3.2)
        sts=[]
        for qb in range(2):
            cv=[]
            for db in range(2):
                for p2 in range(2):
                    r=vO(par,qb,db)+2*p2; R=vR0 if qb==0 else vR1
                    m0_=add(v2("v_mul_f32",r,r,R),t,[sw],name=f"M{qb}{db}{2*p2}"); t+=dt
                    m1_=add(v2("v_mul_f32",r+1,r+1,R),t,[sw],name=f"M{qb}{db}{2*p2+1}"); t+=dt
                    cv.append(add(vcvt(vOut(qb)+2*db+p2,r,r+1),t,[m0_,m1_],name=f"OC{qb}{db}{p2}")); t+=dt
            sts.append(add(vst(vOut(qb),vOst,sO,sO0 if qb==0 else sO1),t,cv,name=f"ST{qb}"))
        e1=adds(salu(f"s_add_u32 s{sO0}, s{sO0}, 8192",S(sO0),S(sO0)+[SCC]),120,[sts[0]]+([b4] if dodma else []),name="o0+")
        e2=adds(salu(f"s_add_u32 s{sO1}, s{sO1}, 8192",S(sO1),S(sO1)+[SCC]),121,[sts[1],e1],name="o1+")
    tail=[]
    scc_last=[o for o in sops if SCC in o.ins.wr]
    if loopctl:
        c1=adds(salu(f"s_sub_u32 s{sLoop}, s{sLoop}, 1",S(sLoop),S(sLoop)+[SCC]),128,scc_last,name="lp-",earliest=128)
        c2=adds(salu(f"s_cmp_lg_u32 s{sLoop}, 0",S(sLoop),[SCC]),129,[c1],name="lp?",earliest=129)
        tail=[I(f"s_cbranch_scc1 {loopctl}","branch",[SCC])]
    if last_bar:
        adds(bar(keep_dma=2*(D-2)),999,must_bar,name="BAR",earliest=135).earliest=max(nb-1,0)
    slot_gaps={g for g in range(3,nb-1,4)}|{nb-2}
    return schedule(bb,ops,sops,mdeps,prefix,slot_gaps,tail,log)

class Seq:
    def __init__(s,prefix=()): s.o=list(prefix); s.n0=len(s.o)
    def __call__(s,*ins,slot=True):
        for i in ins:
            if slot and i.kind not in("label","comment","salu","wait","branch","raw","nop"): s.o.append(waitslot())
            k=hazard_need(s.o,i)
            if k>0: s.o.append(nop(k))
            s.o.append(i)
    def out(s): return s.o[s.n0:]

def vop(t,rd,wr): return valu(t,rd,wr)
def prologue():
    q=Seq()
    q(salu("s_cmp_ge_u32 s2, 256",S(2),[SCC]), I("s_cbranch_scc1 L_end","branch",[SCC]))
    if OPT["stamp"]: q(raw("s_memtime s[60:61]"),raw("s_memrealtime s[62:63]"),raw(f"s_load_dwordx2 s[{sDbg}:{sDbg+1}], s[0:1], 32"))
    q(raw("s_load_dwordx4 s[36:39], s[0:1], 0"), raw("s_load_dwordx4 s[40:43], s[0:1], 16"))
    L,Q_,G_,T1,T2,T3=200,201,202,203,204,205
    q(vop(f"v_and_b32 v{L}, 63, v0",V(0),V(L)), vop(f"v_lshrrev_b32 v{T1}, 6, v0",V(0),V(T1)))
    q(I(f"v_readfirstlane_b32 s{sW}, v{T1}","valu",V(T1),S(sW),meta={"rfl":1}))
    q(vop(f"v_and_b32 v{Q_}, 15, v{L}",V(L),V(Q_)), vop(f"v_lshrrev_b32 v{G_}, 4, v{L}",V(L),V(G_)))
    q(raw("s_waitcnt lgkmcnt(0)"))
    q(salu(f"s_mul_i32 s3, s2, {QBYTES}",S(2),S(3)), salu("s_lshl_b32 s31, s2, 17",S(2),S(31)))
    for srd,src,off,nb in((sQ,36,3,QBYTES),(sK,38,31,KBYTES),(sV,40,31,KBYTES),(sO,42,3,QBYTES)):
        q(salu(f"s_add_u32 s{srd}, s{src}, s{off}",S(src)+S(off),S(srd)), salu(f"s_addc_u32 s{srd+1}, s{src+1}, 0",S(src+1),S(srd+1)),
          salu(f"s_and_b32 s{srd+1}, s{srd+1}, 0xffff",S(srd+1),S(srd+1)),
          salu(f"s_mov_b32 s{srd+2}, {nb}",[],S(srd+2)), salu(f"s_mov_b32 s{srd+3}, 0x20000",[],S(srd+3)))
    KA,VA=206,207
    q(salu(f"s_lshl_b32 s44, s{sW}, 15",S(sW),S(44)))
    q(vop(f"v_lshlrev_b32 v{KA}, 8, v{Q_}",V(Q_),V(KA)), vop(f"v_lshl_add_u32 v{KA}, v{G_}, 4, v{KA}",V(G_)+V(KA),V(KA)))
    kt=lambda kb,ds:64+(kb*4+ds)*4
    for kb in range(8):
        q(salu(f"s_add_u32 s45, s44, {kb*4096}",S(44),S(45)))
        for ds in range(4): q(vld(kt(kb,ds),KA,sK,45,ds*64),slot=False)
    R_,C_=208,209
    q(vop(f"v_bfe_u32 v{R_}, v{L}, 2, 2",V(L),V(R_)), vop(f"v_and_b32 v{C_}, 3, v{L}",V(L),V(C_)))
    q(salu(f"s_lshl_b32 s46, s{sW}, 11",S(sW),S(46)))
    q(vop(f"v_lshlrev_b32 v{vQdma}, 8, v{R_}",V(R_),V(vQdma)), vop(f"v_lshl_add_u32 v{vQdma}, v{G_}, 6, v{vQdma}",V(G_)+V(vQdma),V(vQdma)),
      vop(f"v_lshl_add_u32 v{vQdma}, v{C_}, 4, v{vQdma}",V(C_)+V(vQdma),V(vQdma)), vop(f"v_add_u32 v{vQdma}, s46, v{vQdma}",S(46)+V(vQdma),V(vQdma)))
    q(salu(f"s_mul_i32 s47, s{sW}, 2080",S(sW),S(47)), salu(f"s_add_u32 s{sWoff}, s47, {QBASE}",S(47),S(sWoff)),
      salu(f"s_add_u32 s{sT}, s47, {QEND}",S(47),S(sT)), salu(f"s_add_u32 s{sQm0}, s{sWoff}, {3*QSLOT}",S(sWoff),S(sQm0)), salu(f"s_mov_b32 s{sQso}, 0",[],S(sQso)))
    def qdma():
        q(salu(f"s_mov_b32 m0, s{sQm0}",S(sQm0),[M0])); q(dma(vQdma,sQ,sQso,0),dma(vQdma,sQ,sQso,1024),slot=False)
        q(salu(f"s_add_u32 s{sQm0}, s{sQm0}, {QSLOT}",S(sQm0),S(sQm0)), salu(f"s_cmp_eq_u32 s{sQm0}, s{sT}",S(sQm0),[SCC]),
          salu(f"s_cselect_b32 s{sQm0}, s{sWoff}, s{sQm0}",S(sQm0),S(sQm0)), salu(f"s_add_u32 s{sQso}, s{sQso}, 8192",S(sQso),S(sQso)))
    qdma(); qdma()
    q(vop(f"v_lshlrev_b32 v{T1}, 2, v{G_}",V(G_),V(T1)), vop(f"v_xor_b32 v{T1}, v{T1}, v{Q_}",V(T1)+V(Q_),V(T1)),
      vop(f"v_lshlrev_b32 v{T1}, 4, v{T1}",V(T1),V(T1)), vop(f"v_lshl_add_u32 v{VA}, v{G_}, 8, v{T1}",V(G_)+V(T1),V(VA)))
    vn=[0]
    def vdma():
        n=vn[0]; vn[0]+=1
        if n>=32: return
        if n%4==0: q(salu(f"s_add_u32 s48, s44, {n*1024}",S(44),S(48)), salu("s_mov_b32 m0, s48",S(48),[M0]))
        q(dma(VA,sV,48,(n%4)*1024),slot=False)
    for _ in range(OPT.get("vpre",8)): vdma()
    q(vop(f"v_lshrrev_b32 v{T1}, 2, v{Q_}",V(Q_),V(T1)), vop(f"v_lshlrev_b32 v{vQrd0}, 10, v{T1}",V(T1),V(vQrd0)),
      vop(f"v_lshrrev_b32 v{T1}, 3, v{Q_}",V(Q_),V(T1)), vop(f"v_lshl_add_u32 v{vQrd0}, v{T1}, 5, v{vQrd0}",V(T1)+V(vQrd0),V(vQrd0)),
      vop(f"v_lshl_add_u32 v{vQrd0}, v{C_}, 6, v{vQrd0}",V(C_)+V(vQrd0),V(vQrd0)), vop(f"v_lshl_add_u32 v{vQrd0}, v{G_}, 4, v{vQrd0}",V(G_)+V(vQrd0),V(vQrd0)))
    q(salu(f"s_mov_b32 s{sQrs}, {QBASE+3*QSLOT}",[],S(sQrs)))
    for j in range(4):
        q(salu(f"s_add_u32 s49, s{sW}, {j}",S(sW),S(49)), salu("s_and_b32 s49, s49, 3",S(49),S(49)), salu(f"s_lshl_b32 s{50+j}, s49, 13",S(49),S(50+j)))
        r=vPw if j==0 else vPr[j]
        q(vop(f"v_lshl_add_u32 v{r}, v{L}, 4, s{50+j}",V(L)+S(50+j),V(r)))
    q(salu(f"s_lshl_b32 s49, s{sW}, 6",S(sW),S(49)))
    q(vop(f"v_lshlrev_b32 v{vOst}, 8, v{Q_}",V(Q_),V(vOst)), vop(f"v_lshl_add_u32 v{vOst}, v{G_}, 4, v{vOst}",V(G_)+V(vOst),V(vOst)), vop(f"v_add_u32 v{vOst}, s49, v{vOst}",S(49)+V(vOst),V(vOst)))
    q(vop(f"v_lshrrev_b32 v{T1}, 1, v{G_}",V(G_),V(T1)), vop(f"v_lshl_add_u32 v{T1}, v{T1}, 4, v{Q_}",V(T1)+V(Q_),V(T1)),
      vop(f"v_lshlrev_b32 v{T1}, 4, v{T1}",V(T1),V(T1)), vop(f"v_add_u32 v{vLr}, {LBASE}, v{T1}",V(T1),V(vLr)))
    q(salu(f"s_lshl_b32 s49, s{sW}, 2",S(sW),S(49))); q(vop(f"v_add_u32 v{vLw}, s49, v{vLr}",S(49)+V(vLr),V(vLw)))
    q(vop(f"v_mov_b32 v{vLmax}, 0",[],V(vLmax)), vop(f"v_mov_b32 v{vLmin}, -1",[],V(vLmin)))
    q(vop(f"v_mov_b32 v{T1}, 0x3f803f80",[],V(T1)), valu(f"v_cmp_gt_u32 vcc, 8, v{Q_}",V(Q_),[VCC]))
    for r in range(4):
        q(valu(f"v_cndmask_b32 v{vSEL[0]+r}, 0, v{T1}, vcc",V(T1)+[VCC],V(vSEL[0]+r)))
        q(vop(f"v_xor_b32 v{vSEL[1]+r}, v{T1}, v{vSEL[0]+r}",V(T1)+V(vSEL[0]+r),V(vSEL[1]+r)))
    q(salu(f"s_mov_b32 s{sO0}, 0",[],S(sO0)), salu(f"s_mov_b32 s{sO1}, 4096",[],S(sO1)), salu(f"s_mov_b32 s{sC}, {CSCALE:#x}",[],S(sC)), salu(f"s_mov_b32 s{sC+1}, {CSCALE:#x}",[],S(sC+1)))
    VB=210
    q(vop(f"v_lshlrev_b32 v{T1}, 2, v{R_}",V(R_),V(T1)), vop(f"v_add_u32 v{T2}, s49, v{C_}",S(49)+V(C_),V(T2)), vop(f"v_xor_b32 v{T2}, v{T2}, v{T1}",V(T1)+V(T2),V(T2)),
      vop(f"v_lshl_add_u32 v{T3}, v{G_}, 2, v{R_}",V(G_)+V(R_),V(T3)), vop(f"v_lshlrev_b32 v{T3}, 8, v{T3}",V(T3),V(T3)), vop(f"v_lshl_add_u32 v{T3}, v{T2}, 4, v{T3}",V(T2)+V(T3),V(T3)))
    for j in range(4):
        q(salu(f"s_lshl_b32 s49, s{50+j}, 2",S(50+j),S(49))); q(vop(f"v_add_u32 v{VB+j}, s49, v{T3}",S(49)+V(T3),V(VB+j)))
    TP=216
    for kb in range(8):
        for ds in range(4):
            b=kt(kb,ds)
            for r in range(4):
                t=TP+2*r
                q(vop(f"v_lshlrev_b32 v{t}, 16, v{b+r}",V(b+r),V(t)),slot=(r==0))
                q(vop(f"v_and_b32 v{t+1}, 0xffff0000, v{b+r}",V(b+r),V(t+1)),slot=False)
            for r in range(4):
                t=TP+2*r
                q(vop(f"v_pk_mul_f32 v[{t}:{t+1}], v[{t}:{t+1}], s[{sC}:{sC+1}]",V(t,2)+S(sC,2),V(t,2)),slot=False)
            for r in range(4): q(vcvt(TP+2*r,TP+2*r,TP+2*r+1),slot=False)
            for r in range(4): q(vop(f"v_accvgpr_write_b32 a{aK(kb,ds)+r}, v{TP+2*r}",V(TP+2*r),A(aK(kb,ds)+r)),slot=False)
            vdma()
    while vn[0]<32: vdma()
    qdma()
    q(bar(keep_dma=34))
    pre=iteration(-1,1,False,True,False,False,False,q.o,last_bar=False)
    q.o+=pre
    q(bar(keep_dma=2))
    for j in range(4):
        for kp in range(4):
            for db in range(2):
                for hf in range(2):
                    a=aV(j,kp,db)+2*hf
                    q(I(f"ds_read_b64_tr_b16 a[{a}:{a+1}], v{VB+j} offset:{(2*kp+hf)*4096+8*db}","dsr",V(VB+j),A(a,2)),slot=False)
            if kp%2==1: q(wait(lg=6))
    q(bar(all_ds=1))
    for _ in range(D-3): qdma()
    return q.out()

def fallback():
    q=Seq()
    q(label("L_fallback"), wait(vm=0,lg=0), bar())
    q(salu(f"s_mov_b32 s{sQso}, 0",[],S(sQso)), salu(f"s_mov_b32 s{sO0}, 0",[],S(sO0)), salu(f"s_mov_b32 s{sO1}, 4096",[],S(sO1)), salu(f"s_mov_b32 s{sLoop}, {NT}",[],S(sLoop)))
    q(vop(f"v_add_u32 v{vQrd}, {QBASE}, v{vQrd0}",V(vQrd0),V(vQrd)))
    MW,MR,T=216,217,218
    q(vop(f"v_mbcnt_lo_u32_b32 v{T}, -1, 0",[],V(T)), vop(f"v_mbcnt_hi_u32_b32 v{T}, -1, v{T}",V(T),V(T)),
      vop(f"v_and_b32 v{MR}, 15, v{T}",V(T),V(MR)), vop(f"v_lshlrev_b32 v{MR}, 6, v{MR}",V(MR),V(MR)), vop(f"v_add_u32 v{MR}, {MBASE}, v{MR}",V(MR),V(MR)),
      vop(f"v_lshrrev_b32 v{T}, 4, v{T}",V(T),V(T)), vop(f"v_lshl_add_u32 v{MW}, v{T}, 2, v{MR}",V(T)+V(MR),V(MW)))
    q(salu(f"s_lshl_b32 s49, s{sW}, 4",S(sW),S(49))); q(vop(f"v_add_u32 v{MW}, s49, v{MW}",S(49)+V(MW),V(MW)))
    q(label("L_fb_loop"))
    q(salu(f"s_mov_b32 m0, s{sWoff}",S(sWoff),[M0])); q(dma(vQdma,sQ,sQso,0),dma(vQdma,sQ,sQso,1024)); q(wait(vm=0),bar())
    for qb in range(2):
        for ds in range(4): q(dsr128(vQ(qb,ds),vQrd,qb*4160+ds*256))
    Sb=lambda kb,qb:64+(kb*2+qb)*4
    Pf=lambda f:128+f*4
    for kb in range(8):
        for qb in range(2):
            for ds in range(4): q(mfma(Sb(kb,qb),aK(kb,ds),vQ(qb,ds),None if ds==0 else Sb(kb,qb)))
    Mx=[220,221]; RD=224
    for qb in range(2):
        q(v2("v_max_f32",Mx[qb],Sb(0,qb),Sb(0,qb)+1))
        regs=[Sb(kb,qb)+r for kb in range(8) for r in range(4)][2:]
        for x in range(0,30,2): q(vop(f"v_max3_f32 v{Mx[qb]}, v{Mx[qb]}, v{regs[x]}, v{regs[x+1]}",V(Mx[qb])+V(regs[x])+V(regs[x+1]),V(Mx[qb])))
        q(dsw32(MW,Mx[qb],qb*1024))
    q(bar())
    for qb in range(2):
        for x in range(4): q(dsr128(RD+4*x,MR,qb*1024+16*x))
        q(v2("v_max_f32",Mx[qb],RD,RD+1))
        for x in range(2,16,2): q(vop(f"v_max3_f32 v{Mx[qb]}, v{Mx[qb]}, v{RD+x}, v{RD+x+1}",V(Mx[qb])+V(RD+x)+V(RD+x+1),V(Mx[qb])))
    for kb in range(8):
        for qb in range(2):
            for r in range(4): q(v2("v_sub_f32",Sb(kb,qb)+r,Sb(kb,qb)+r,Mx[qb]),slot=False)
            for r in range(4): q(vexp(Sb(kb,qb)+r),slot=False)
            for p2 in range(2): q(vcvt(Pf(2*(kb//2)+qb)+2*(kb%2)+p2,Sb(kb,qb)+2*p2,Sb(kb,qb)+2*p2+1),slot=False)
    for f in range(8): q(dsw128(vPw,Pf(f),f*1024))
    for qb in range(2):
        for kp in range(4): q(mfma(vLacc,vSEL[qb],Pf(2*kp+qb),None if (kp==0 and qb==0) else vLacc,afile='v'))
    q(dsw32(vLw,vLacc,0)); q(bar())
    for qb in range(2):
        for db in range(2):
            for kp in range(4): q(mfma(vO(0,qb,db),aV(0,kp,db),Pf(2*kp+qb),None if kp==0 else vO(0,qb,db)))
    for j in range(1,4):
        for qb in range(2):
            for k in range(4): q(dsr128(RD+4*k,vPr[j],(2*k+qb)*1024))
            for db in range(2):
                for kp in range(4): q(mfma(vO(0,qb,db),aV(j,kp,db),RD+4*kp,vO(0,qb,db)))
    q(dsr128(vLrd,vLr,0)); q(v2("v_add_f32",vLrd,vLrd,vLrd+1),v2("v_add_f32",vLrd+2,vLrd+2,vLrd+3),v2("v_add_f32",vLrd,vLrd,vLrd+2))
    q(valu(f"v_rcp_f32 v{vR0}, v{vLrd}",V(vLrd),V(vR0),"trans"), vop(f"v_mov_b32 v{vR1}, v{vR0}",V(vR0),V(vR1)),
      valu(f"v_permlane32_swap_b32 v{vR0}, v{vR1}",V(vR0)+V(vR1),V(vR0)+V(vR1),"perm"))
    for qb in range(2):
        for db in range(2):
            for p2 in range(2):
                r=vO(0,qb,db)+2*p2; R=vR0 if qb==0 else vR1
                q(v2("v_mul_f32",r,r,R),v2("v_mul_f32",r+1,r+1,R),vcvt(vOut(qb)+2*db+p2,r,r+1))
        q(vst(vOut(qb),vOst,sO,sO0 if qb==0 else sO1))
    q(salu(f"s_add_u32 s{sO0}, s{sO0}, 8192",S(sO0),S(sO0)), salu(f"s_add_u32 s{sO1}, s{sO1}, 8192",S(sO1),S(sO1)), salu(f"s_add_u32 s{sQso}, s{sQso}, 8192",S(sQso),S(sQso)))
    q(wait(vm=0,lg=0),bar())
    q(salu(f"s_sub_u32 s{sLoop}, s{sLoop}, 1",S(sLoop),S(sLoop)), salu(f"s_cmp_lg_u32 s{sLoop}, 0",S(sLoop),[SCC]), I("s_cbranch_scc1 L_fb_loop","branch",[SCC]))
    return q.out()

def stamp(n):
    return [raw(f"s_memtime s[{64+4*n}:{65+4*n}]"),raw(f"s_memrealtime s[{66+4*n}:{67+4*n}]")] if OPT["stamp"] else []

def build():
    logs={}
    pro=prologue()+stamp(0)
    def it(i,par,cur,nxt,pv,ep,prefix,**kw):
        lg=[]; r=iteration(i,par,cur,nxt,pv,ep,(i+D<NT) or kw.get("force_dma"),prefix,log=lg,**{k:v for k,v in kw.items() if k!="force_dma"}); logs[i]=lg; return [comment(f"---- iteration {i}")]+r
    i0=it(0,0,1,1,0,0,pro)
    i1=it(1,1,1,1,1,0,i0)+[salu(f"s_mov_b32 s{sLoop}, 19",[],S(sLoop))]+stamp(1)
    head=[raw(".p2align 6") ,label("L_loop")]
    ia=it(2,0,1,1,1,1,i1,force_dma=True)
    ib=it(3,1,1,1,1,1,ia,force_dma=True,loopctl="L_loop")
    i40=stamp(2)+it(40,0,1,0,1,1,ib)
    i41=it(41,1,0,0,1,1,i40)
    i42=it(42,0,0,0,0,1,i41,last_bar=False)
    fin=Seq(i42)
    fin(salu(f"s_mov_b32 s49, {HI:#x}",[],S(49)), salu(f"s_mov_b32 s50, {LO:#x}",[],S(50)))
    fin(valu(f"v_cmp_lt_u32 vcc, s49, v{vLmax}",S(49)+V(vLmax),[VCC]), valu(f"v_cmp_gt_u32 s[52:53], s50, v{vLmin}",S(50)+V(vLmin),S(52,2)))
    fin(nop(4), salu("s_or_b64 vcc, vcc, s[52:53]",[VCC]+S(52,2),[VCC]), nop(4), I("s_cbranch_vccnz L_fallback","branch",[VCC]))
    if OPT["stamp"]:
        fin(*stamp(3)); fin(raw("s_waitcnt vmcnt(0)")); fin(*stamp(4)); fin(raw("s_waitcnt lgkmcnt(0)"))
        sp=OPT.get("spin")
        if sp is not None:
            ex={0:["s_mov_b32 s3, 0"],1:["s_sub_u32 s3, s66, s62","s_lshl_b32 s3, s3, 2"],2:["s_sub_u32 s3, s74, s70"],3:["s_sub_u32 s3, s82, s62"],
                4:["s_sub_u32 s3, s72, s68","s_lshr_b32 s3, s3, 4"],5:["s_sub_u32 s3, s64, s60","s_lshr_b32 s3, s3, 2"]}[sp]
            for e in ex: fin(raw(e))
            fin(raw("s_add_u32 s3, s3, 15000"),label("L_spin"),raw("s_memrealtime s[90:91]"),raw("s_waitcnt lgkmcnt(0)"),raw("s_sub_u32 s90, s90, s62"),raw("s_cmp_lt_u32 s90, s3"),raw("s_cbranch_scc1 L_spin"))
        fin(raw("s_and_b32 s3, s2, 31"),raw("s_cmp_lg_u32 s3, 0"),raw("s_cbranch_scc1 L_end"),raw(f"s_cmp_lg_u32 s{sW}, 0"),raw("s_cbranch_scc1 L_end"))
        fin(raw(f"s_and_b32 s{sDbg+1}, s{sDbg+1}, 0xffff"),raw(f"s_mov_b32 s{sDbg+2}, 256"),raw(f"s_mov_b32 s{sDbg+3}, 0x20000"))
        for n in range(4): fin(raw(f"s_sub_u32 s3, s{64+4*(n+1 if n==3 else n)}, s60"),raw(f"v_mov_b32 v{200+2*n}, s3"),raw(f"s_sub_u32 s3, s{66+4*(n+1 if n==3 else n)}, s62"),raw(f"v_mov_b32 v{201+2*n}, s3"))
        fin(raw("s_lshr_b32 s3, s2, 5"),raw("s_lshl_b32 s3, s3, 5"),raw("v_mov_b32 v208, s3"),raw("s_mov_b64 exec, 1"),
            raw(f"buffer_store_dwordx4 v[200:203], v208, s[{sDbg}:{sDbg+3}], 0 offen"),raw(f"buffer_store_dwordx4 v[204:207], v208, s[{sDbg}:{sDbg+3}], 0 offen offset:16"))
    fin(raw("s_endpgm"))
    fb=fallback()
    static=pro+i0+i1+head+ia+ib+i40+i41+i42+fin.out()+fb+[label("L_end"),raw("s_endpgm")]
    dyn=pro+i0+i1+ia+ib+ia+ib+ia+ib+i40+i41+i42+fin.out()
    resolve_waits(dyn)
    k=[x for x,y in enumerate(fb) if y.text=="L_fb_loop"][0]
    dynf=fb+fb[k:]
    resolve_waits(dynf)
    for name,d in(("main",dyn),("fallback",dynf)):
        bad=check_hazards(d)
        for b in bad: print("HAZARD",name,b,file=sys.stderr)
        assert not bad
        print(name,"max outstanding",max_outstanding(d),file=sys.stderr)
    for nm,sq in(("i0",i0),("i1",i1),("ia",ia),("ib",ib),("i40",i40),("i41",i41),("i42",i42)):
        print(nm,"est cycles",estimate(sq),"nops",sum(1 for x in sq if x.kind=="nop"),"instrs",sum(1 for x in sq if states(x)),file=sys.stderr)
    if OPT.get("log"): print("\n".join(logs[OPT["log"]]),file=sys.stderr)
    hdr=open("standalone__mha_softmax__near_ridge.s.ref").read().split("; Override launch")[0]
    txt=hdr+f"""; One workgroup (4 waves) per head.  K (pre-scaled by log2(e)/sqrt(D)) and V^T stay in AGPRs: wave w owns keys
; 128w..128w+127 for S=K.Q^T and output columns 32w..32w+31 for O=V^T.P^T; P and the row sums are exchanged through LDS.
; exp2 uses a zero shift; every row sum is range-checked and the head is redone with the true row max if any leaves the safe range.
; @launch grid=(256,1,1) block=(256,1,1) lds={LDS_BYTES}
.amdgcn_target "amdgcn-amd-amdhsa--gfx950"
.text
.globl {NAME}
.p2align 8
.type {NAME},@function
{NAME}:
"""+emit(static)+f""".section .rodata,"a"
.p2align 6
.amdhsa_kernel {NAME}
  .amdhsa_next_free_vgpr 512
  .amdhsa_next_free_sgpr 102
  .amdhsa_accum_offset 256
  .amdhsa_group_segment_fixed_size 0
  .amdhsa_kernarg_size 48
  .amdhsa_user_sgpr_count 2
  .amdhsa_user_sgpr_kernarg_segment_ptr 1
  .amdhsa_system_sgpr_workgroup_id_x 1
.end_amdhsa_kernel
"""
    return txt

if __name__=="__main__":
    open(sys.argv[1],"w").write(build())
```

```python
from core import *
INF=10**9
class Op:
    def __init__(s, ins, prio, deps=(), earliest=0, name=None):
        s.ins=ins; s.prio=prio; s.deps=list(deps); s.earliest=earliest; s.name=name; s.done=False; s.gap=None
        s.block=isinstance(ins,list)
        if s.block: s.earliest=INF
    @property
    def cost(s): return s.ins.cost
    @property
    def mem(s): return s.ins.kind in("dsr","dsw","vld","dma","vst")

def hazard_need(out, ins):
    dist=0; need=0
    for p in reversed(out[-40:]):
        need=max(need,required_gap(p,ins)-dist)
        dist+=states(p)
        if dist>=8: break
    return need
def hazard_ok(out, ins): return hazard_need(out,ins)<=0

def schedule(backbone, ops, sops, mdeps, prefix, slot_gaps, tail=(), log=None, overdue=None, ldlat=6, fill=0):
    out=list(prefix); n0=len(out)
    emitted=set()
    def isdone(d): return (d.done if isinstance(d,Op) else id(d) in emitted)
    def ready(o,g):
        if o.done or o.earliest>g or not all(isdone(d) for d in o.deps): return False
        if o.ins.kind=="bar" and any(isinstance(d,Op) and d.gap>g-2 for d in o.deps): return False
        for d in o.deps:
            if isinstance(d,Op) and not d.block and d.ins.kind in("dsr","vld") and (d.ins.wr & (o.ins.rd|o.ins.wr)):
                if g<d.gap+ldlat or not any(sg in slot_gaps for sg in range(d.gap+1,g+1)): return False
        return True
    def put1(i):
        k=hazard_need(out,i)
        if k>0: out.append(nop(k))
        out.append(i)
    def put(o,g,force=False):
        if o.block:
            for i in o.ins: put1(i)
        else:
            if force or (o.ins.kind=='bar' and (g-1) not in slot_gaps): out.append(waitslot())
            put1(o.ins)
        o.done=True; o.gap=g
    def force(o,g,names):
        if o.done: return
        for d in o.deps:
            if isinstance(d,Op): force(d,g,names)
            else: assert id(d) in emitted, f"forced op {o.name} depends on unemitted mfma {d.name}"
        put(o,g,True); names.append(o.name)
    n=len(backbone)
    pend_ops=list(ops); pend_s=list(sops)
    for g,m in enumerate(backbone):
        pend=[o for o in mdeps.get(g,[]) if not o.done]
        names=[]
        for o in pend: force(o,g-1,names)
        if pend:
            out.append(waitslot())
            if log is not None: log.append("    FORCED "+" ".join(names))
        put1(m); emitted.add(id(m))
        desc=[]
        pend_ops=[o for o in pend_ops if not o.done]; pend_s=[o for o in pend_s if not o.done]
        if g in slot_gaps: out.append(waitslot()); desc.append("w")
        else:
            c=sorted([o for o in pend_s if ready(o,g)],key=lambda o:o.prio)
            if c: put(c[0],g); desc.append("s:"+(c[0].name or ""))
        cap=8; had_valu=False
        if overdue is not None:
            while True:
                c=[o for o in pend_ops if o.prio<g-overdue and not o.block and o.mem and ready(o,g) and hazard_ok(out,o.ins)]
                c+=[o for o in pend_s if o.prio<g-overdue and o.ins.kind=="salu" and ready(o,g)]
                if not c: break
                o=min(c,key=lambda o:o.prio); put(o,g); desc.append(o.name+"!"); cap-=o.cost
        while True:
            c=[o for o in pend_ops if ready(o,g) and hazard_ok(out,o.ins) and not (o.mem and had_valu)]
            if cap<8: c=[o for o in c if o.cost<=cap or (overdue is not None and o.prio<g-overdue)]
            if not c: break
            c.sort(key=lambda o:o.prio)
            o=c[0]
            if cap==8 and o.cost==4:
                small=[x for x in c if x.cost==4]
                big=[x for x in c if x.cost>=8]
                if len(small)>=2:
                    a,b=small[0],small[1]
                    if b.mem and not a.mem: o=b
                elif big and o.prio>g: o=big[0]
            put(o,g); desc.append(o.name or "?")
            cap-=o.cost
            if not o.mem: had_valu=True
        if fill and cap>=4 and any(not o.done and not o.block and o.earliest<=g+3 and all(isdone(d) for d in o.deps) and not hazard_ok(out,o.ins) for o in pend_ops):
            out.append(nop(cap//4)); desc.append("nop")
        if log is not None: log.append(f"{g:3d} {m.name:14s} "+" ".join(desc))
    rest=sorted([o for o in list(sops)+list(ops) if not o.done],key=lambda o:o.prio)
    for o in rest:
        names=[]; force(o,n,names)
        if log is not None and names: log.append("END "+" ".join(names))
    for t in tail: out.append(t)
    return out[n0:]
```

```python
import sys, struct, math
from core import *
from sched import *

NAME="standalone__mha_softmax__near_ridge_kernel"
NT=41
QBYTES=335872; KBYTES=131072
OPT=dict(D=4, st="sc0+sc1", ld="nt", stamp=0, wsplit=0, stag=3, ncopy=2)
for a in sys.argv[2:]:
    k,v=a.split("="); OPT[k]=int(v) if v.lstrip("-").isdigit() else v
D=OPT["D"]; NQ=7; T=OPT.get('T',7); LAG=4; LAG0=OPT.get('lag0',3)
STF=(" "+OPT["st"].replace("+"," ")) if OPT["st"]!="none" else ""
LDF=(" "+OPT["ld"].replace("+"," ")) if OPT["ld"]!="none" else ""
QSLOT=8320; KBASE=32768; QBASE=65536+512; QEND=QBASE+NQ*QSLOT; VBASE=QEND; LBASE=VBASE+32768; MBASE=LBASE+1024; LDS_BYTES=LBASE+4096
vQrd,vQrd0,vPw,vPr,vQdma,vOst,vLw,vLr=1,2,3,[None,4,5,6],7,8,9,10
vLmax,vLmin,vR0,vR1,vT=11,12,13,14,15
vLrd,vLacc,vSEL=16,20,[24,28]
vQ=lambda qb,ds:32+qb*16+ds*4
vS=lambda n:64+(n%8)*4
vP=lambda f:96+f*4
vRing=lambda s,k:128+(s%2)*16+k*4
vO=lambda st,qb,db:160+st*16+qb*8+db*4
vOut=lambda qb:192+qb*4
aK=lambda kb,ds:(kb*4+ds)*4
aV=lambda j,kp,db:128+((j*4+kp)*2+db)*4
sQ,sK,sV,sO=4,8,12,16
sW,sLoop,sQso,sQm0,sQrs,sO0,sO1,sT,sC=20,21,22,23,24,25,26,27,28
sWoff=30; sDbg=32
M0=('m0',0); VCC=('vcc',0); SCC=('scc',0)
CSCALE=struct.unpack("<I",struct.pack("<f",math.log2(math.e)/math.sqrt(128.0)))[0]
HI=(127+50)<<23; LO=(127-24)<<23

def dsr128(dst,addr,off,file='v',name=None): return I(f"ds_read_b128 {rs(file,dst,4)}, v{addr} offset:{off}","dsr",V(addr),[(file,dst+i) for i in range(4)],name=name)
def dsw128(addr,src,off): return I(f"ds_write_b128 v{addr}, {rs('v',src,4)} offset:{off}","dsw",V(addr)+V(src,4),[],cost=20)
def dsw64(addr,src,off): return I(f"ds_write_b64 v{addr}, {rs('v',src,2)} offset:{off}","dsw",V(addr)+V(src,2),[],cost=12)
def dsw32(addr,src,off): return I(f"ds_write_b32 v{addr}, v{src} offset:{off}","dsw",V(addr)+V(src),[],cost=8)
def dma(voff,srd,soff,off,flag=LDF): return I(f"buffer_load_dwordx4 v{voff}, s[{srd}:{srd+3}], s{soff} offen offset:{off}{flag} lds","dma",V(voff)+S(srd,4)+S(soff)+[M0],[])
def vld(dst,voff,srd,soff,off,flag=LDF): return I(f"buffer_load_dwordx4 {rs('v',dst,4)}, v{voff}, s[{srd}:{srd+3}], s{soff} offen offset:{off}{flag}","vld",V(voff)+S(srd,4)+S(soff),V(dst,4))
def vst(src,voff,srd,soff,flag=STF): return I(f"buffer_store_dwordx4 {rs('v',src,4)}, v{voff}, s[{srd}:{srd+3}], s{soff} offen{flag}","vst",V(src,4)+V(voff)+S(srd,4)+S(soff),[],meta={"data":V(src,4)})
def vexp(r): return valu(f"v_exp_f32 v{r}, v{r}",V(r),V(r),"trans")
def vcvt(d,a,b): return valu(f"v_cvt_pk_bf16_f32 v{d}, v{a}, v{b}",V(a)+V(b),V(d))
def v2(op,d,a,b): return valu(f"{op} v{d}, v{a}, v{b}",V(a)+V(b),V(d))
def bar(**m): return I("s_barrier","bar",meta=m)
def label(t): return I(t,"label")
def comment(t): return I(t,"comment")

def chain_info(n):
    f=(n//2+1)%8; h=n%2
    return f,h,2*(f//2)+h,f%2
def s_block(f,h):
    return (2*((f-1)%8)+h)

class Bld:
    def __init__(s): s.bb=[]; s.ops=[]; s.sops=[]; s.mdeps={}; s.slots=set(); s.tail=[]
    def group(s,g):
        p=len(s.bb); s.bb+=g; s.slots.add(len(s.bb)-1); return p
    def add(s,ins,prio,deps=(),earliest=0,name=None):
        o=Op(ins,prio,deps,earliest,name); s.ops.append(o); return o
    def adds(s,ins,prio,deps=(),name=None,earliest=0):
        o=Op(ins,prio,deps,earliest,name); s.sops.append(o); return o
    def need(s,idx,o): s.mdeps.setdefault(max(idx,0),[]).append(o)
    def barrier(s,gap,deps,**meta):
        o=s.adds(bar(**meta),-1,deps,name="BAR",earliest=max(gap,0)); s.slots.discard(gap); s.slots.add(gap-1); return o
    def run(s,prefix,log=None,overdue=None): return schedule(s.bb,s.ops,s.sops,s.mdeps,prefix,s.slots,s.tail,log,overdue)

def qdma_ops(b,t0,deps,tag=None,scc=()):
    m=b.adds(salu(f"s_mov_b32 m0, s{sQm0}",S(sQm0),[M0]),t0-2,deps,name="m0")
    d0=b.add(dma(vQdma,sQ,sQso,0),t0,[m],name="DMA0"); d1=b.add(dma(vQdma,sQ,sQso,1024),t0+4,[d0],name="DMA1")
    d0.ins.cost=d1.ins.cost=OPT.get("dmac",8); d0.ins.tag=d1.ins.tag=tag
    b1=b.adds(salu(f"s_add_u32 s{sQm0}, s{sQm0}, {QSLOT}",S(sQm0),S(sQm0)+[SCC]),t0+10,[m]+list(scc),name="qm+")
    b2=b.adds(salu(f"s_cmp_eq_u32 s{sQm0}, s{sT}",S(sQm0)+S(sT),[SCC]),t0+11,[b1],name="qm?")
    b3=b.adds(salu(f"s_cselect_b32 s{sQm0}, s{sWoff}, s{sQm0}",S(sQm0)+S(sWoff)+[SCC],S(sQm0)),t0+12,[b2],name="qm=")
    b4=b.adds(salu(f"s_add_u32 s{sQso}, s{sQso}, 8192",S(sQso),S(sQso)+[SCC]),t0+14,[d1,b3],name="qso+")
    return d1,b4

def epilogue_ops(b,Ob,loff,t0,tm,dt,ldeps,odeps,prev,scc,sc=1.0,tg=""):
    lr=b.add(dsr128(vLrd,vLr,loff),t0,list(ldeps)+prev.get("L",[]),name="LR"+tg)
    a=b.add(v2("v_add_f32",vLrd,vLrd,vLrd+1),t0+11*sc,[lr],name="La")
    bb_=b.add(v2("v_add_f32",vLrd+2,vLrd+2,vLrd+3),t0+11.5*sc,[lr],name="Lb")
    c=b.add(v2("v_add_f32",vLrd,vLrd,vLrd+2),t0+12*sc,[a,bb_],name="Lc")
    rc=b.add(valu(f"v_rcp_f32 v{vR0}, v{vLrd}",V(vLrd),V(vR0),"trans"),t0+13*sc,[c]+prev.get("M",[]),name="RCP")
    x1=b.add(v2("v_max_u32",vLmax,vLmax,vLrd),t0+31*sc,[c],name="cmax"); x2=b.add(v2("v_min_u32",vLmin,vLmin,vLrd),t0+32*sc,[c],name="cmin")
    mv=b.add(valu(f"v_mov_b32 v{vR1}, v{vR0}",V(vR0),V(vR1)),t0+14*sc,[rc],name="MOV")
    sw=b.add(valu(f"v_permlane32_swap_b32 v{vR0}, v{vR1}",V(vR0)+V(vR1),V(vR0)+V(vR1),"perm"),t0+15*sc,[mv],name="SWP")
    t=tm; sts=[]; muls=[]
    for qb in range(2):
        cv=[]
        for db in range(2):
            od=[odeps[(qb,db)]] if odeps else []
            for p2 in range(2):
                r=Ob(qb,db)+2*p2; R=vR0 if qb==0 else vR1
                m0_=b.add(v2("v_mul_f32",r,r,R),t,[sw]+od,name=f"M{qb}{db}{2*p2}"); t+=dt
                m1_=b.add(v2("v_mul_f32",r+1,r+1,R),t,[sw]+od,name=f"M{qb}{db}{2*p2+1}"); t+=dt
                muls+=[m0_,m1_]
                cv.append(b.add(vcvt(vOut(qb)+2*db+p2,r,r+1),t,[m0_,m1_]+prev.get("S",[]),name=f"OC{qb}{db}{p2}")); t+=dt
        sts.append(b.add(vst(vOut(qb),vOst,sO,sO0 if qb==0 else sO1),t,cv+prev.get("A",[]),name=f"ST{qb}"+tg)); sts[-1].ins.cost=OPT.get("stc",8)
    e1=b.adds(salu(f"s_add_u32 s{sO0}, s{sO0}, 8192",S(sO0),S(sO0)+[SCC]),t+1,[sts[0]]+list(scc),name="o0+")
    e2=b.adds(salu(f"s_add_u32 s{sO1}, s{sO1}, 8192",S(sO1),S(sO1)+[SCC]),t+2,[sts[1],e1],name="o1+")
    return {"L":[rc,x1,x2],"M":muls,"S":sts,"A":[e2],"cv_last":cv}

def iter_parts(b, i, par, cur, nxt, pv, ep, dodma, last_bar=True, loopctl=None, baroff=0, Ncustom=None, ctx=None):
    ctx=ctx or {}
    base=len(b.bb)
    def qk(n):
        f,h,kb,qb=chain_info(n)
        return [mfma(vS(n),aK(kb,ds),vQ(qb,ds),None if ds==0 else vS(n),name=f"QK{n}.{ds}") for ds in range(4)]
    so=1-par
    def pvo(qb,db): return [mfma(vO(so,qb,db),aV(0,kp,db),vP(2*kp+qb),None if kp==0 else vO(so,qb,db),name=f"PVo{qb}{db}.{kp}") for kp in range(4)]
    def one(qb): return [mfma(vLacc,vSEL[qb],vP(2*kp+qb),None if (kp==0 and qb==0) else vLacc,afile='v',name=f"ONE{qb}.{kp}") for kp in range(4)]
    sets=[(1,0),(1,1),(2,0),(2,1),(3,0),(3,1)]
    def pvx(s,db):
        j,qb=sets[s]
        return [mfma(vO(so,qb,db),aV(j,kp,db),vRing(s,kp),vO(so,qb,db),name=f"PVx{s}{db}.{kp}") for kp in range(4)]
    N=[("pvo",0,0),("pvo",0,1),("one",0),("pvo",1,0),("pvo",1,1),("one",1)]+[("pvx",s,db) for s in range(6) for db in range(2)]
    if Ncustom: N=[("cus",x) for x in range(18)]
    order=[N[0],N[1]]
    for n in range(16): order+=[("qk",n),N[n+2]]
    G={}; pos={}
    for key in order:
        if key[0]=="qk":
            n=key[1]
            if not (nxt if n>=14 else cur): continue
            g=qk(n)
        elif key[0]=="cus":
            g=Ncustom(key[1])
            if not g: continue
        else:
            if not pv: continue
            g={"pvo":pvo,"one":one,"pvx":pvx}[key[0]](*key[1:])
        G[key]=g; pos[key]=b.group(g)
        if key[0]=="cus": ctx["placed"](key[1],pos[key])
    nb=len(b.bb)-base
    nom={}; p=0
    for key in order: nom[key]=p; p+=4
    scale=(nb/136.0) if nb else 0
    P=lambda t:base+t*scale
    def add(ins,prio,deps=(),earliest=0,name=None): return b.add(ins,P(prio),deps,base+int(earliest*scale),name)
    def adds(ins,prio,deps=(),name=None,earliest=0): return b.adds(ins,P(prio),deps,name,base+int(earliest*scale))
    def need(key,k,o): b.need(pos[key]+k,o)
    rel=lambda o:(o.prio-base)/scale
    must_bar=list(ctx.get("must_bar",[]))
    scc=list(ctx.get("scc",[]))
    E={}
    for n in list(range(16))+[-1]:
        if n==15: continue
        if n==-1:
            if not cur: continue
            blk=vS(15); dep=ctx.get("c15",[]); t0=0
        else:
            if ("qk",n) not in G: continue
            blk=vS(n); dep=[G[("qk",n)][3]]; t0=nom[("qk",n)]+6
        for r in range(4): E[(n,r)]=add(vexp(blk+r),t0+2*r,dep,name=f"E{n}.{r}")
    if cur:
        for f in range(8):
            qb=f%2; kp=f//2
            war=[G[k][kp] for k in (("pvo",qb,0),("pvo",qb,1),("one",qb)) if k in G]+ctx.get("pwar",{}).get(f,[])
            C=[]
            for h in range(2):
                n=s_block(f,h)
                en = -1 if n==15 else n
                for p2 in range(2):
                    deps=list(war)
                    if f==0 and h==0: t=1+p2; deps+=ctx.get("e14",[])
                    else:
                        deps+=[E[(en,2*p2)],E[(en,2*p2+1)]]; t=rel(E[(en,2*p2+1)])+1
                    c=add(vcvt(vP(f)+2*h+p2,vS(n)+2*p2,vS(n)+2*p2+1),t,deps,name=f"C{f}.{2*h+p2}")
                    C.append(c)
                    nn=(n+8)%16
                    if ("qk",nn) in G and (n>=14 or n<8): need(("qk",nn),0,c)
            off=par*32768+f*1024
            w=add(dsw128(vPw,vP(f),off),rel(C[3])+1,C+ctx.get("wdep",[]),name=f"W{f}"); must_bar.append(w)
        for n,ds_ in ctx.get("swar",{}).items():
            for o in ds_: need(("qk",n),0,o)
    if pv:
        for s,(j,qb) in enumerate(sets):
            for k in range(4):
                deps=[G[("pvx",s-2,1)][k]] if s>=2 else []
                t=nom[("pvx",s,0)]-14+k if s>=2 else s*4+k
                o=add(dsr128(vRing(s,k),vPr[j],so*32768+(2*k+qb)*1024),t,deps,name=f"R{s}.{k}")
                need(("pvx",s,0),-1,o); must_bar.append(o)
        lw=add(dsw32(vLw,vLacc,so*512),nom[("one",1)]+8,[G[("one",1)][3]],name="LW"); must_bar.append(lw)
    if nxt:
        a1=adds(salu(f"s_add_u32 s{sQrs}, s{sQrs}, {QSLOT}",S(sQrs),S(sQrs)+[SCC]),40,scc,name="qr+")
        a2=adds(salu(f"s_cmp_eq_u32 s{sQrs}, {QEND}",S(sQrs),[SCC]),41,[a1],name="qr?")
        a3=adds(salu(f"s_cselect_b32 s{sQrs}, {QBASE}, s{sQrs}",S(sQrs)+[SCC],S(sQrs)),42,[a2],name="qr=")
        scc=[a3]
        upd=add(valu(f"v_add_u32 v{vQrd}, s{sQrs}, v{vQrd0}",S(sQrs)+V(vQrd0),V(vQrd)),80,[a3]+ctx.get("rqprev",[]),name="qupd")
        for qb in range(2):
            lastn=11 if qb==0 else 13
            for ds in range(4):
                deps=[upd]+([G[("qk",lastn)][ds]] if ("qk",lastn) in G else [])+ctx.get("rqdep",[])
                o=add(dsr128(vQ(qb,ds),vQrd,qb*4160+ds*256),nom[("qk",lastn)]+1+ds,deps,name=f"RQ{qb}.{ds}")
                if qb==0: need(("qk",14),-1,o)
    if dodma:
        d1,b4=qdma_ops(b,P(ctx.get("dmaprio",50)),ctx.get("dmadep",[]),scc=scc); scc=[b4]
    if ep:
        e=epilogue_ops(b,lambda qb,db:vO(par,qb,db),par*512,P(-1),P(OPT.get("ept",24)),OPT.get("epdt",3.2)*scale,[],None,{},scc,sc=scale); scc=e["A"]
    if "late" in ctx: scc=ctx["late"](scc,must_bar)
    if loopctl:
        c1=adds(salu(f"s_sub_u32 s{sLoop}, s{sLoop}, 1",S(sLoop),S(sLoop)+[SCC]),128,scc,name="lp-",earliest=128)
        c2=adds(salu(f"s_cmp_lg_u32 s{sLoop}, 0",S(sLoop),[SCC]),129,[c1],name="lp?",earliest=129)
        b.tail=[I(f"s_cbranch_scc1 {loopctl}","branch",[SCC])]
    b.slots.discard(base+nb-1)
    if last_bar: b.barrier(base+nb-1-baroff,must_bar,keep_dma=2*(D-2),all_ds=1)

def iteration(i, par, cur, nxt, pv, ep, dodma, prefix, log=None, **kw):
    b=Bld(); iter_parts(b,i,par,cur,nxt,pv,ep,dodma,**kw); return b.run(prefix,log)

vOs=[80,112][:T-5]+[176,200,216,232,160]
vLs=lambda t:248+t
sKo=64
sVm=72
vKA,vVA,vTB,vTD=255,0,192,15
def kdma_units(c):
    u=[]
    for pr in range(4):
        for n in range(2):
            d=dma(vQdma,sK,45,n*1024); d.tag=f"K{c}"
            u.append(([salu(f"s_add_u32 m0, s54, {(pr//2)*4160+(pr%2)*2080}",S(54),[M0,SCC]), salu(f"s_add_u32 s45, s44, {c*8192+pr*2048}",S(44),S(45)+[SCC])] if n==0 else [])+[d])
    return u
def qdma_units(t):
    d0=dma(vQdma,sQ,46,0); d1=dma(vQdma,sQ,46,1024); d0.tag=d1.tag=f"Q{t}"
    return [[salu(f"s_add_u32 m0, s{sWoff}, {(t%NQ)*QSLOT}",S(sWoff),[M0,SCC]),salu(f"s_mov_b32 s46, {t*8192}",[],S(46)),d0],[d1]]
def vdma_units(c):
    u=[]
    for hf in range(2):
        for n in range(4):
            d=dma(vVA,sV,sKo+2*c+hf,n*1024); d.tag=f"V{c}"
            u.append(([salu(f"s_mov_b32 m0, s{sVm+hf}",S(sVm+hf),[M0])] if n==0 else [])+[d])
    return u
flat=lambda u:[x for y in u for x in y]
STREAM=kdma_units(0)+qdma_units(0)+qdma_units(1)+qdma_units(2)+vdma_units(0)+flat([qdma_units(t) for t in range(3,T)])+kdma_units(1)
NPRO=OPT.get("npro",20)
def kread(c):
    o=[dsr128(aK(2*c+h,ds),vKA,h*4160+ds*256,file='a') for h in range(2) for ds in range(4)]
    for x in o: x.meta["tags"]={f"K{c}"}
    return o
def kscale(c,extra=None):
    o=[]
    for fi,(kb,ds) in enumerate([(kb,ds) for kb in(2*c,2*c+1) for ds in range(4)]):
        a=aK(kb,ds); o.append(waitslot())
        for r in range(4): o.append(vop(f"v_accvgpr_read_b32 v{vLrd+r}, a{a+r}",A(a+r),V(vLrd+r)))
        for r in range(4):
            t=192+2*r
            o+=[vop(f"v_lshlrev_b32 v{t}, 16, v{vLrd+r}",V(vLrd+r),V(t)), vop(f"v_and_b32 v{t+1}, 0xffff0000, v{vLrd+r}",V(vLrd+r),V(t+1))]
        for r in range(4): t=192+2*r; o.append(vop(f"v_pk_mul_f32 v[{t}:{t+1}], v[{t}:{t+1}], s[{sC}:{sC+1}]",V(t,2)+S(sC,2),V(t,2)))
        for r in range(4): o.append(vcvt(192+2*r,192+2*r,193+2*r))
        for r in range(4): o.append(vop(f"v_accvgpr_write_b32 a{a+r}, v{192+2*r}",V(192+2*r),A(a+r)))
        if extra: o+=extra(fi)
    return o
def startup(prefix,log):
    b=Bld(); NS=4*T
    Sb=lambda n:64+(n%4)*4
    Pw=lambda k,qb:96+((k%2)*2+qb)*4
    ent=lambda k,qb:(32768 if 3*T<=k<NS-LAG else 0)+((k%4)*2+qb)*1024
    assert all(k%4 for k in range(3*T,NS-LAG))
    pvstep=lambda k:k+(LAG0 if k<3*T else LAG)
    pvof={pvstep(k):k for k in range(NS)}
    QK={}; PV={}; ONE={}; start={}; end={}; posQ={}; posP={}; posO={}
    def pvg(k,qb,db):
        c,t=divmod(k,T); d=vOs[t]+qb*8+db*4
        return [mfma(d,aV(j,c,db),vRing(2*k+qb,j),None if (c==0 and j==0) else d,name=f"PV{k}.{qb}{db}.{j}") for j in range(4)]
    def oneg(k): return [mfma(vLacc,vSEL[0],Pw(k,0),None,afile='v',name=f"ONE{k}.0"),mfma(vLacc,vSEL[1],Pw(k,1),vLacc,afile='v',name=f"ONE{k}.1")]
    for k in range(NS):
        c,t=divmod(k,T); start[k]=len(b.bb)
        for ch in range(4):
            kb=2*c+ch%2; qb=ch//2; n=4*k+ch
            QK[(k,ch)]=[mfma(Sb(n),aK(kb,ds),vQ(qb,ds),None if ds==0 else Sb(n),name=f"QK{k}.{ch}.{ds}") for ds in range(4)]
            posQ[(k,ch)]=b.group(QK[(k,ch)])
            if k in pvof:
                key=(pvof[k],ch//2,ch%2); PV[key]=pvg(*key); posP[key]=b.group(PV[key])
            if ch==2 and k>=1: ONE[k-1]=oneg(k-1); posO[k-1]=b.group(ONE[k-1])
        if k==NS-1:
            for n in(14,15):
                f,h,kb,qb=chain_info(n)
                QK[("pre",n)]=[mfma(vS(n),aK(kb,ds),vQ(qb,ds),None if ds==0 else vS(n),name=f"QKp{n}.{ds}") for ds in range(4)]
                posQ[("pre",n)]=b.group(QK[("pre",n)])
        end[k]=len(b.bb)-1
    cus={}
    x=0
    for k in range(NS-LAG,NS):
        for qb in range(2):
            for db in range(2):
                PV[(k,qb,db)]=pvg(k,qb,db); cus[x]=("pv",(k,qb,db)); x+=1
                if x==3: ONE[NS-1]=oneg(NS-1); cus[x]=("one",NS-1); x+=1
    def Ncustom(x):
        if x not in cus: return None
        return PV[cus[x][1]] if cus[x][0]=="pv" else ONE[cus[x][1]]
    def placed(x,p):
        (posP if cus[x][0]=="pv" else posO)[cus[x][1]]=p
    BAR={}; W={}; C={}; LA={}; LW={}; RQ={}; TR={}; E={}
    bdeps={k:[] for k in range(NS)}; btags={k:set() for k in range(NS)}; bneed={k:[] for k in range(NS)}
    for k in range(NS): BAR[k]=b.barrier(end[k],[],tags=btags[k],need=set())
    def bneeds(k,o): BAR[k].deps.append(o); BAR[k].ins.meta["need"].add(id(o.ins))
    for k in range(1,NS): BAR[k].deps.append(BAR[k-1])
    state={"scc":[],"dma":[],"ep":{}}
    def softmax(k):
        c,t=divmod(k,T)
        for ch in range(4):
            n=4*k+ch; qb=ch//2; h=ch%2
            for r in range(4): E[(k,ch,r)]=b.add(vexp(Sb(n)+r),posQ[(k,ch)]+6+2*r,[QK[(k,ch)][3]],name=f"E{k}.{ch}.{r}")
            for p2 in range(2):
                deps=[E[(k,ch,2*p2)],E[(k,ch,2*p2+1)]]
                if k>=2: deps+=[ONE[k-2][qb],W[(k-2,qb)]]
                o=b.add(vcvt(Pw(k,qb)+2*h+p2,Sb(n)+2*p2,Sb(n)+2*p2+1),E[(k,ch,2*p2+1)].prio+1,deps,name=f"C{k}.{ch}.{p2}")
                C[(k,ch,p2)]=o
                if k+1<NS: b.need(posQ[(k+1,ch)],o)
            if h==1:
                W[(k,qb)]=b.add(dsw128(vPw,Pw(k,qb),ent(k,qb)),C[(k,ch,1)].prio+1,[C[(k,cc,pp)] for cc in(ch-1,ch) for pp in range(2)]+([BAR[pvstep(k-4)]] if (k>=4 and pvstep(k-4)<k and ent(k,0)==ent(k-4,0)) else [])+([BAR[k-3]] if k>NS-LAG else []),name=f"W{k}.{qb}")
                if k+1<NS: bneeds(k+1,W[(k,qb)])
    for k in range(NS): softmax(k)
    def one_ops(k):
        c,t=divmod(k,T)
        for cc in range(4):
            for pp in range(2): b.need(posO[k],C[(k,cc,pp)])
        if k>=1: b.need(posO[k],LA[k-1])
        ins=valu(f"v_mov_b32 v{vLs(t)}, v{vLacc}",V(vLacc),V(vLs(t))) if c==0 else v2("v_add_f32",vLs(t),vLs(t),vLacc)
        LA[k]=b.add(ins,posO[k]+6,[ONE[k][1]],name=f"LA{k}")
        if c==3:
            LW[t]=b.add(dsw32(vLw,vLs(t),0 if t==T-1 else 1024+t*512),posO[k]+8,[LA[k]],name=f"LW{t}")
            if k+1<NS: bneeds(k+1,LW[t])
    for k in range(NS-1): one_ops(k)
    def preads(k):
        for qb in range(2):
            for j in range(4):
                deps=[BAR[k+1]]+([PV[(k-1,qb,1)][j]] if k>=1 else [])
                o=b.add(dsr128(vRing(2*k+qb,j),vPw if j==0 else vPr[j],ent(k,qb)),posP[(k,qb,0)]-12+j,deps,name=f"R{k}.{qb}.{j}")
                b.need(posP[(k,qb,0)]-1,o); state.setdefault("R",[]).append(o)
    for k in range(NS-LAG): preads(k)
    for k in range(NS+1):
        t=k%T if k<NS else 0
        for qb in range(2):
            for ds in range(4):
                deps=[QK[(k-1,2*qb+1)][ds]] if k>=1 else []
                if 2<=k<T: deps.append(BAR[k-2]); btags[k-2].add(f"Q{k}")
                if k==NS: deps.append(BAR[NS-2]); btags[NS-2].add(f"Q{T}")
                pr=(posQ[(k-1,2*qb+1)]+1+ds) if k>=1 else -10+4*qb+ds
                o=b.add(dsr128(vQ(qb,ds),vQrd,t*QSLOT+qb*4160+ds*256),pr,deps,name=f"RQ{k}.{qb}.{ds}"); RQ[(k,qb,ds)]=o
                if k<NS: b.need(posQ[(k,2*qb)]-1,o)
                elif qb==0: b.need(posQ[("pre",14)]-1,o)
    btags[NS-1].add(f"Q{T+1}")
    state["chain"]=[]; hard={0,1}
    def issue(units,where,deps,nm):
        for u,(k,fr) in zip(units,where):
            tt=int(start[k]+fr*(end[k]-start[k])); prev=list(deps)+state["chain"]+state["scc"]
            nd=[x.kind for x in u].index("dma")
            for x,ins in enumerate(u):
                if ins.kind=="salu": o=b.adds(ins,tt+x-nd-3,prev,name="s"+nm,earliest=tt+x-nd-3 if x<nd else 0)
                else: o=b.add(ins,tt,prev,earliest=tt,name=nm); ins.cost=OPT.get("sdmac",4)
                prev=[o]
            state["chain"]=prev; state["scc"]=prev
            if k in hard: BAR[k].deps.append(prev[0])
    def spread(n,k0,per):
        w=[]; k=k0
        while len(w)<n:
            m=min(per,n-len(w)); w+=[(k,(x+0.5)/per) for x in range(m)]; k+=1
        return w
    rest=STREAM[NPRO:]
    n0=OPT.get("n0",4); n1=OPT.get("n1",10)
    w=[(0,(x+0.5)/n0) for x in range(n0)]+[(1,OPT.get('f1',30)/100+0.5*x/n1) for x in range(n1)]
    w=w[:len(rest)]; w+=spread(len(rest)-len(w),2,2)
    issue(rest,w,[],"D")
    lastk=w[-1][0]
    for c in range(4):
        s1=pvstep(c*T)-1
        btags[s1-1].add(f"V{c}")
        if c>=1:
            kr=[b.add(ins,start[c*T]-14+x,chain0,earliest=start[c*T]-16,name=f"KR{c}") for x,ins in enumerate(kread(c))]
            ks=b.add(kscale(c),start[c*T],kr+state["TR"],name=f"KS{c}"); b.need(posQ[(c*T,0)],ks); state["KS"]=[ks]
            if c<3: issue(kdma_units(c+1),spread(8,c*T,OPT.get("kper",3)),[ks],f"KD{c+1}")
        chain0=state["chain"]
        state["TR"]=[]
        for j in range(4):
            r=vPw if j==0 else vPr[j]
            tb=b.add(v2("v_add_u32",vTB+j,vTD,r),start[s1-1]+j,state.get("KS",[]),earliest=start[s1-1],name="TB")
            for db in range(2):
                for hf in range(2):
                    a=aV(j,c,db)+2*hf
                    o=b.add(I(f"ds_read_b64_tr_b16 a[{a}:{a+1}], v{vTB+j} offset:{hf*4096+8*db}","dsr",V(vTB+j),A(a,2)),start[s1]+j*4+db*2+hf,[BAR[s1-1],tb],name=f"TR{c}")
                    b.need(posP[(c*T,0,0)]-1,o); bneeds(s1,o); state["TR"].append(o)
        if c<3: issue(vdma_units(c+1),spread(8,max(s1+1,lastk if c==0 else 0),OPT.get("vper",3)),[BAR[s1]],f"VD{c+1}")
    state["ep"]={"L":state["KS"],"S":state["TR"]}
    for x in range(D):
        t=T+x; k=min(max(3*T+1+t-NQ,3*T-1+x),NS-1)
        issue(qdma_units(t),[(k,0.25),(k,0.6)],[BAR[3*T+t-NQ]] if t>=NQ else [],"QD")
    chain=state["chain"]
    def ep(t,t0,tm,dt,scc):
        k=3*T+t
        od={(qb,db):PV[(k,qb,db)][3] for qb in range(2) for db in range(2)}
        e=epilogue_ops(b,lambda qb,db:vOs[t]+qb*8+db*4,1024+t*512,t0,tm,dt,[BAR[k+1]],od,state["ep"],scc,sc=0.5,tg=f"t{t}")
        state["ep"]=e; return e
    eps={}; BARX=[]
    for t in range(T-LAG-1+0):
        k=3*T+t+LAG
        eps[t]=ep(t,start[k]+8,start[k]+20,1.3,state["scc"]); state["scc"]=eps[t]["A"]
    if T>=6:
        for o in eps[0]["M"]+eps[0]["S"]: b.need(posQ[("pre",14)],o)
    e14=[b.add(vexp(vS(14)+r),posQ[("pre",14)]+6+2*r,[QK[("pre",14)][3]],name=f"Ep{r}") for r in range(4)]
    def late(scc,must_bar):
        BAR[NS]=b.barrier(end[NS-1]+1+OPT.get("barx",23),[BAR[NS-1]],need=set())
        for qb in range(2): bneeds(NS,W[(NS-1,qb)])
        BARX.append(BAR[NS])
        for k in range(NS-LAG,NS): preads(k)
        must_bar+=state["R"][-8*LAG:]
        one_ops(NS-1); must_bar.append(LW[T-1])
        for t in range(T-LAG-1,T-1):
            k=3*T+t
            p=posP[(k,0,0)] if k>=NS-LAG else end[NS-1]-8
            eps[t]=ep(t,p-6,p+10,1.2,scc); scc=eps[t]["A"]
        return scc
    last=NS-1
    ctx=dict(dmaprio=5,placed=placed,late=late,scc=state["scc"],c15=[QK[("pre",15)][3]],e14=e14,dmadep=chain+[BAR[last]],
             must_bar=[W[(last,0)],W[(last,1)]],wdep=[BAR[last]],rqdep=[BAR[last]],rqprev=[RQ[(NS,qb,ds)] for qb in range(2) for ds in range(4)],
             pwar={0:[ONE[last-1][0],W[(last-1,0)]],1:[ONE[last-1][1],W[(last-1,1)]],2:[ONE[last][0],W[(last,0)]],3:[ONE[last][1],W[(last,1)]],
                   **({f:eps[1]["M"]+eps[1]["S"] for f in range(4,8)} if T>=7 else {})},
             swar={n:[C[(last,n,pp)] for pp in range(2)] for n in range(4)})
    iter_parts(b,T,T%2,1,1,0,0,1,Ncustom=Ncustom,ctx=ctx)
    b.sops[-1].deps.append(BAR[NS])
    for ds in range(4): b.need(end[last]+1+8-1,RQ[(NS,1,ds)])
    res=b.run(prefix,log,overdue=OPT.get("od",3))
    if OPT["stamp"]==2 and not OPT.get("ps"):
        p0=OPT.get('p0'); pts=[2,3,6,9,13,16,20,23,27] if p0 is None else list(range(p0,p0+9)); o=[]
        for x in res:
            o.append(x)
            for n,k in enumerate(pts):
                if x is BAR[k].ins: o.append(raw(f"{'s_memtime' if OPT.get('cyc') else 's_memrealtime'} s[{78+2*n}:{79+2*n}]"))
        res=o
    if OPT.get("seg"):
        idx=[n for n,x in enumerate(res) if x.kind=="bar"]
        print("step est:",[estimate(res[a:z]) for a,z in zip(idx,idx[1:])],file=sys.stderr)
    return res

class Seq:
    def __init__(s,prefix=()): s.o=list(prefix); s.n0=len(s.o)
    def __call__(s,*ins,slot=True):
        for i in ins:
            if slot and i.kind not in("label","comment","salu","wait","branch","raw","nop"): s.o.append(waitslot())
            k=hazard_need(s.o,i)
            if k>0: s.o.append(nop(k))
            s.o.append(i)
    def out(s): return s.o[s.n0:]

def vop(t,rd,wr): return valu(t,rd,wr)
def prologue():
    q=Seq()
    q(salu("s_cmp_ge_u32 s2, 256",S(2),[SCC]), I("s_cbranch_scc1 L_end","branch",[SCC]))
    if OPT["stamp"]: q(raw("s_memtime s[60:61]"),raw("s_memrealtime s[62:63]"),raw(f"s_load_dwordx2 s[{sDbg}:{sDbg+1}], s[0:1], 32"))
    q(raw("s_load_dwordx4 s[36:39], s[0:1], 0"), raw("s_load_dwordx4 s[40:43], s[0:1], 16"))
    L,Q_,G_,T1,T2,T3=200,201,202,203,204,205
    if OPT.get("warm",2):
        q(raw("s_getpc_b64 s[56:57]"), label("L_pc"), raw("s_and_b32 s57, s57, 0xffff"), raw("s_mov_b32 s58, L_end-L_pc"), raw("s_mov_b32 s59, 0x20000"))
        q(vop(f"v_lshlrev_b32 v{T2}, 7, v0",V(0),V(T2)))
        for k in range(OPT.get("warm",2)):
            q(raw(f"s_mov_b32 s55, {k*32768}"))
            q(I(f"buffer_load_dword v{240+k}, v{T2}, s[56:59], s55 offen","vld",V(T2),V(240+k)),slot=False)
    q(vop(f"v_and_b32 v{L}, 63, v0",V(0),V(L)), vop(f"v_lshrrev_b32 v{T1}, 6, v0",V(0),V(T1)))
    q(I(f"v_readfirstlane_b32 s{sW}, v{T1}","valu",V(T1),S(sW),meta={"rfl":1}))
    q(vop(f"v_and_b32 v{Q_}, 15, v{L}",V(L),V(Q_)), vop(f"v_lshrrev_b32 v{G_}, 4, v{L}",V(L),V(G_)))
    q(raw("s_waitcnt lgkmcnt(0)"))
    q(salu(f"s_mul_i32 s3, s2, {QBYTES}",S(2),S(3)), salu("s_lshl_b32 s31, s2, 17",S(2),S(31)))
    for srd,src,off,nb in((sQ,36,3,QBYTES),(sK,38,31,KBYTES),(sV,40,31,KBYTES),(sO,42,3,QBYTES)):
        q(salu(f"s_add_u32 s{srd}, s{src}, s{off}",S(src)+S(off),S(srd)), salu(f"s_addc_u32 s{srd+1}, s{src+1}, 0",S(src+1),S(srd+1)),
          salu(f"s_and_b32 s{srd+1}, s{srd+1}, 0xffff",S(srd+1),S(srd+1)),
          salu(f"s_mov_b32 s{srd+2}, {nb}",[],S(srd+2)), salu(f"s_mov_b32 s{srd+3}, 0x20000",[],S(srd+3)))
    q(salu(f"s_lshl_b32 s44, s{sW}, 15",S(sW),S(44)))
    for n in range(8): q(salu(f"s_add_u32 s{sKo+n}, s44, {n*4096}",S(44),S(sKo+n)))
    R_,C_=208,209
    q(vop(f"v_bfe_u32 v{R_}, v{L}, 2, 2",V(L),V(R_)), vop(f"v_and_b32 v{C_}, 3, v{L}",V(L),V(C_)))
    q(salu(f"s_lshl_b32 s46, s{sW}, 11",S(sW),S(46)))
    q(vop(f"v_lshlrev_b32 v{vQdma}, 8, v{R_}",V(R_),V(vQdma)), vop(f"v_lshl_add_u32 v{vQdma}, v{G_}, 6, v{vQdma}",V(G_)+V(vQdma),V(vQdma)),
      vop(f"v_lshl_add_u32 v{vQdma}, v{C_}, 4, v{vQdma}",V(C_)+V(vQdma),V(vQdma)), vop(f"v_add_u32 v{vQdma}, s46, v{vQdma}",S(46)+V(vQdma),V(vQdma)))
    q(salu(f"s_mul_i32 s47, s{sW}, 2080",S(sW),S(47)), salu(f"s_add_u32 s{sWoff}, s47, {QBASE}",S(47),S(sWoff)),
      salu(f"s_add_u32 s{sT}, s47, {QEND}",S(47),S(sT)), salu(f"s_add_u32 s{sQm0}, s{sWoff}, {((T+D)%NQ)*QSLOT}",S(sWoff),S(sQm0)), salu(f"s_mov_b32 s{sQso}, {(T+D)*8192}",[],S(sQso)))
    q(salu("s_sub_u32 s44, s44, s46",S(44)+S(46),S(44)), salu(f"s_mul_i32 s54, s{sW}, {QSLOT}",S(sW),S(54)), salu(f"s_add_u32 s54, s54, {KBASE}",S(54),S(54)))
    ps=lambda n:[raw(f"s_memrealtime s[{78+2*n}:{79+2*n}]")] if OPT.get("ps") else []
    q(*ps(0),*flat(STREAM[:8]),*ps(1),*flat(STREAM[8:12]),slot=False)
    q(vop(f"v_lshlrev_b32 v{T1}, 2, v{G_}",V(G_),V(T1)), vop(f"v_xor_b32 v{T1}, v{T1}, v{Q_}",V(T1)+V(Q_),V(T1)),
      vop(f"v_lshlrev_b32 v{T1}, 4, v{T1}",V(T1),V(T1)), vop(f"v_lshl_add_u32 v{vVA}, v{G_}, 8, v{T1}",V(G_)+V(T1),V(vVA)))
    q(salu(f"s_lshl_b32 s48, s{sW}, 13",S(sW),S(48)), salu(f"s_add_u32 s{sVm}, s48, {VBASE}",S(48),S(sVm)), salu(f"s_add_u32 s{sVm+1}, s48, {VBASE+4096}",S(48),S(sVm+1)))
    q(*ps(2))
    q(vop(f"v_lshrrev_b32 v{T1}, 2, v{Q_}",V(Q_),V(T1)), vop(f"v_lshlrev_b32 v{vQrd0}, 10, v{T1}",V(T1),V(vQrd0)),
      vop(f"v_lshrrev_b32 v{T1}, 3, v{Q_}",V(Q_),V(T1)), vop(f"v_lshl_add_u32 v{vQrd0}, v{T1}, 5, v{vQrd0}",V(T1)+V(vQrd0),V(vQrd0)),
      vop(f"v_lshl_add_u32 v{vQrd0}, v{C_}, 6, v{vQrd0}",V(C_)+V(vQrd0),V(vQrd0)), vop(f"v_lshl_add_u32 v{vQrd0}, v{G_}, 4, v{vQrd0}",V(G_)+V(vQrd0),V(vQrd0)))
    q(salu(f"s_mov_b32 s{sQrs}, {QBASE}",[],S(sQrs))); q(vop(f"v_add_u32 v{vQrd}, {QBASE}, v{vQrd0}",V(vQrd0),V(vQrd)))
    for j in range(4):
        q(salu(f"s_add_u32 s49, s{sW}, {j}",S(sW),S(49)), salu("s_and_b32 s49, s49, 3",S(49),S(49)), salu(f"s_lshl_b32 s{50+j}, s49, 13",S(49),S(50+j)))
        r=vPw if j==0 else vPr[j]
        q(vop(f"v_lshl_add_u32 v{r}, v{L}, 4, s{50+j}",V(L)+S(50+j),V(r)))
    q(salu(f"s_lshl_b32 s49, s{sW}, 6",S(sW),S(49)))
    q(vop(f"v_lshlrev_b32 v{vOst}, 8, v{Q_}",V(Q_),V(vOst)), vop(f"v_lshl_add_u32 v{vOst}, v{G_}, 4, v{vOst}",V(G_)+V(vOst),V(vOst)), vop(f"v_add_u32 v{vOst}, s49, v{vOst}",S(49)+V(vOst),V(vOst)))
    q(vop(f"v_lshrrev_b32 v{T1}, 1, v{G_}",V(G_),V(T1)), vop(f"v_lshl_add_u32 v{T1}, v{T1}, 4, v{Q_}",V(T1)+V(Q_),V(T1)),
      vop(f"v_lshlrev_b32 v{T1}, 4, v{T1}",V(T1),V(T1)), vop(f"v_add_u32 v{vLr}, {LBASE}, v{T1}",V(T1),V(vLr)))
    q(salu(f"s_lshl_b32 s49, s{sW}, 2",S(sW),S(49))); q(vop(f"v_add_u32 v{vLw}, s49, v{vLr}",S(49)+V(vLr),V(vLw)))
    q(vop(f"v_mov_b32 v{vLmax}, 0",[],V(vLmax)), vop(f"v_mov_b32 v{vLmin}, -1",[],V(vLmin)))
    q(vop(f"v_mov_b32 v{T1}, 0x3f803f80",[],V(T1)), valu(f"v_cmp_gt_u32 vcc, 8, v{Q_}",V(Q_),[VCC]))
    for r in range(4):
        q(valu(f"v_cndmask_b32 v{vSEL[0]+r}, 0, v{T1}, vcc",V(T1)+[VCC],V(vSEL[0]+r)))
        q(vop(f"v_xor_b32 v{vSEL[1]+r}, v{T1}, v{vSEL[0]+r}",V(T1)+V(vSEL[0]+r),V(vSEL[1]+r)))
    q(salu(f"s_mov_b32 s{sO0}, 0",[],S(sO0)), salu(f"s_mov_b32 s{sO1}, 4096",[],S(sO1)), salu(f"s_mov_b32 s{sC}, {CSCALE:#x}",[],S(sC)), salu(f"s_mov_b32 s{sC+1}, {CSCALE:#x}",[],S(sC+1)))
    q(vop(f"v_lshlrev_b32 v{T1}, 2, v{R_}",V(R_),V(T1)), vop(f"v_add_u32 v{T2}, s49, v{C_}",S(49)+V(C_),V(T2)), vop(f"v_xor_b32 v{T2}, v{T2}, v{T1}",V(T1)+V(T2),V(T2)),
      vop(f"v_lshl_add_u32 v{T3}, v{G_}, 2, v{R_}",V(G_)+V(R_),V(T3)), vop(f"v_lshlrev_b32 v{T3}, 8, v{T3}",V(T3),V(T3)), vop(f"v_lshl_add_u32 v{T3}, v{T2}, 4, v{T3}",V(T2)+V(T3),V(T3)),
      vop(f"v_lshlrev_b32 v{T1}, 4, v{L}",V(L),V(T1)), v2("v_sub_u32",T3,T3,T1), vop(f"v_add_u32 v{vTD}, {VBASE}, v{T3}",V(T3),V(vTD)))
    q(vop(f"v_add_u32 v{vKA}, s54, v{vQrd0}",S(54)+V(vQrd0),V(vKA)))
    q(*ps(3)); q(*kread(0)); q(*ps(4))
    def extra(fi):
        a=12+(NPRO-12)*fi//8; z=12+(NPRO-12)*(fi+1)//8
        return flat(STREAM[a:z])
    q(*kscale(0,extra),slot=False)
    q(*ps(5)); q(bar(tags={"Q0","Q1"}))
    return q.out()

def fallback():
    q=Seq()
    q(label("L_fallback"), wait(vm=0,lg=0), bar())
    q(salu(f"s_mov_b32 s{sQso}, 0",[],S(sQso)), salu(f"s_mov_b32 s{sO0}, 0",[],S(sO0)), salu(f"s_mov_b32 s{sO1}, 4096",[],S(sO1)), salu(f"s_mov_b32 s{sLoop}, {NT}",[],S(sLoop)))
    q(vop(f"v_add_u32 v{vQrd}, {QBASE}, v{vQrd0}",V(vQrd0),V(vQrd)))
    MW,MR,T=216,217,218
    q(vop(f"v_mbcnt_lo_u32_b32 v{T}, -1, 0",[],V(T)), vop(f"v_mbcnt_hi_u32_b32 v{T}, -1, v{T}",V(T),V(T)),
      vop(f"v_and_b32 v{MR}, 15, v{T}",V(T),V(MR)), vop(f"v_lshlrev_b32 v{MR}, 6, v{MR}",V(MR),V(MR)), vop(f"v_add_u32 v{MR}, {MBASE}, v{MR}",V(MR),V(MR)),
      vop(f"v_lshrrev_b32 v{T}, 4, v{T}",V(T),V(T)), vop(f"v_lshl_add_u32 v{MW}, v{T}, 2, v{MR}",V(T)+V(MR),V(MW)))
    q(salu(f"s_lshl_b32 s49, s{sW}, 4",S(sW),S(49))); q(vop(f"v_add_u32 v{MW}, s49, v{MW}",S(49)+V(MW),V(MW)))
    q(label("L_fb_loop"))
    q(salu(f"s_mov_b32 m0, s{sWoff}",S(sWoff),[M0])); q(dma(vQdma,sQ,sQso,0),dma(vQdma,sQ,sQso,1024)); q(wait(vm=0),bar())
    for qb in range(2):
        for ds in range(4): q(dsr128(vQ(qb,ds),vQrd,qb*4160+ds*256))
    Sb=lambda kb,qb:64+(kb*2+qb)*4
    Pf=lambda f:128+f*4
    for kb in range(8):
        for qb in range(2):
            for ds in range(4): q(mfma(Sb(kb,qb),aK(kb,ds),vQ(qb,ds),None if ds==0 else Sb(kb,qb)))
    Mx=[220,221]; RD=224
    for qb in range(2):
        q(v2("v_max_f32",Mx[qb],Sb(0,qb),Sb(0,qb)+1))
        regs=[Sb(kb,qb)+r for kb in range(8) for r in range(4)][2:]
        for x in range(0,30,2): q(vop(f"v_max3_f32 v{Mx[qb]}, v{Mx[qb]}, v{regs[x]}, v{regs[x+1]}",V(Mx[qb])+V(regs[x])+V(regs[x+1]),V(Mx[qb])))
        q(dsw32(MW,Mx[qb],qb*1024))
    q(bar())
    for qb in range(2):
        for x in range(4): q(dsr128(RD+4*x,MR,qb*1024+16*x))
        q(v2("v_max_f32",Mx[qb],RD,RD+1))
        for x in range(2,16,2): q(vop(f"v_max3_f32 v{Mx[qb]}, v{Mx[qb]}, v{RD+x}, v{RD+x+1}",V(Mx[qb])+V(RD+x)+V(RD+x+1),V(Mx[qb])))
    for kb in range(8):
        for qb in range(2):
            for r in range(4): q(v2("v_sub_f32",Sb(kb,qb)+r,Sb(kb,qb)+r,Mx[qb]),slot=False)
            for r in range(4): q(vexp(Sb(kb,qb)+r),slot=False)
            for p2 in range(2): q(vcvt(Pf(2*(kb//2)+qb)+2*(kb%2)+p2,Sb(kb,qb)+2*p2,Sb(kb,qb)+2*p2+1),slot=False)
    for f in range(8): q(dsw128(vPw,Pf(f),f*1024))
    for qb in range(2):
        for kp in range(4): q(mfma(vLacc,vSEL[qb],Pf(2*kp+qb),None if (kp==0 and qb==0) else vLacc,afile='v'))
    q(dsw32(vLw,vLacc,0)); q(bar())
    for qb in range(2):
        for db in range(2):
            for kp in range(4): q(mfma(vO(0,qb,db),aV(0,kp,db),Pf(2*kp+qb),None if kp==0 else vO(0,qb,db)))
    for j in range(1,4):
        for qb in range(2):
            for k in range(4): q(dsr128(RD+4*k,vPr[j],(2*k+qb)*1024))
            for db in range(2):
                for kp in range(4): q(mfma(vO(0,qb,db),aV(j,kp,db),RD+4*kp,vO(0,qb,db)))
    q(dsr128(vLrd,vLr,0)); q(v2("v_add_f32",vLrd,vLrd,vLrd+1),v2("v_add_f32",vLrd+2,vLrd+2,vLrd+3),v2("v_add_f32",vLrd,vLrd,vLrd+2))
    q(valu(f"v_rcp_f32 v{vR0}, v{vLrd}",V(vLrd),V(vR0),"trans"), vop(f"v_mov_b32 v{vR1}, v{vR0}",V(vR0),V(vR1)),
      valu(f"v_permlane32_swap_b32 v{vR0}, v{vR1}",V(vR0)+V(vR1),V(vR0)+V(vR1),"perm"))
    for qb in range(2):
        for db in range(2):
            for p2 in range(2):
                r=vO(0,qb,db)+2*p2; R=vR0 if qb==0 else vR1
                q(v2("v_mul_f32",r,r,R),v2("v_mul_f32",r+1,r+1,R),vcvt(vOut(qb)+2*db+p2,r,r+1))
        q(vst(vOut(qb),vOst,sO,sO0 if qb==0 else sO1))
    q(salu(f"s_add_u32 s{sO0}, s{sO0}, 8192",S(sO0),S(sO0)), salu(f"s_add_u32 s{sO1}, s{sO1}, 8192",S(sO1),S(sO1)), salu(f"s_add_u32 s{sQso}, s{sQso}, 8192",S(sQso),S(sQso)))
    q(wait(vm=0,lg=0),bar())
    q(salu(f"s_sub_u32 s{sLoop}, s{sLoop}, 1",S(sLoop),S(sLoop)), salu(f"s_cmp_lg_u32 s{sLoop}, 0",S(sLoop),[SCC]), I("s_cbranch_scc1 L_fb_loop","branch",[SCC]))
    return q.out()

def stamp(n):
    if OPT["stamp"]==2: return [raw(f"s_memrealtime s[{76+2*n}:{77+2*n}]")] if n in(0,) else ([raw("s_memrealtime s[98:99]")] if n==1 else [])
    return [raw(f"s_memtime s[{76+4*n}:{77+4*n}]"),raw(f"s_memrealtime s[{78+4*n}:{79+4*n}]")] if OPT["stamp"] else []

def build():
    logs={}
    pro=prologue()+stamp(0)
    def it(i,par,cur,nxt,pv,ep,prefix,**kw):
        lg=[]; r=iteration(i,par,cur,nxt,pv,ep,(i+D<NT) or kw.get("force_dma"),prefix,log=lg,**{k:v for k,v in kw.items() if k!="force_dma"}); logs[i]=lg; return [comment(f"---- iteration {i}")]+r
    U=OPT.get("U",2); nst=40-(T+1); trips=nst//U; rem=nst-trips*U
    lg=[]; i0=[comment("---- start-up steps + iteration 7")]+startup(pro,lg); logs[0]=lg
    i1=[salu(f"s_mov_b32 s{sLoop}, {trips}",[],S(sLoop))]+stamp(1)
    stag=OPT.get("stag",0); ncopy=OPT.get("ncopy",4) if stag else 1
    bodies=[]; head=[]
    for cp in range(ncopy):
        body=[]; prev=i0+i1
        for u in range(U):
            x=it(T+1+u,u%2,1,1,1,1,prev,force_dma=True,loopctl=f"L_loop{cp}" if (u==U-1 and trips>1) else None,baroff=stag*cp); body+=x; prev=x
            if u==0: ia=x
            if u==1: ib=x
        bodies.append(body)
    for cp in range(1,ncopy):
        t=cp*(4//ncopy)
        i1+=[salu(f"s_cmp_ge_u32 s{sW}, {4-t}",S(sW),[SCC]), I(f"s_cbranch_scc1 L_loop{ncopy-cp}","branch",[SCC])]
    allb=[]
    for cp in range(ncopy):
        allb+=([raw(".p2align 6"),label(f"L_loop{cp}")] if trips>1 else [])+bodies[cp]
        if cp<ncopy-1: allb+=[I("s_branch L_after","branch")]
    allb+=[label("L_after")]
    for u in range(rem):
        x=it(40-rem+u,u%2,1,1,1,1,prev,force_dma=True); prev=x; body_rem=(body_rem if u else [])+x
    if not rem: body_rem=[]
    i40=stamp(2)+it(40,0,1,0,1,1,prev)
    i41=it(41,1,0,0,1,1,i40)
    i42=it(42,0,0,0,0,1,i41,last_bar=False)
    fin=Seq(i42)
    fin(salu(f"s_mov_b32 s49, {HI:#x}",[],S(49)), salu(f"s_mov_b32 s50, {LO:#x}",[],S(50)))
    fin(valu(f"v_cmp_lt_u32 vcc, s49, v{vLmax}",S(49)+V(vLmax),[VCC]), valu(f"v_cmp_gt_u32 s[52:53], s50, v{vLmin}",S(50)+V(vLmin),S(52,2)))
    fin(nop(4), salu("s_or_b64 vcc, vcc, s[52:53]",[VCC]+S(52,2),[VCC]), nop(4), I("s_cbranch_vccnz L_fallback","branch",[VCC]))
    if OPT["stamp"]==2:
        fin(raw("s_waitcnt vmcnt(0)"),raw("s_memrealtime s[100:101]"),raw("s_waitcnt lgkmcnt(0)"))
        fin(raw("s_and_b32 s3, s2, 63"),raw("s_cmp_lg_u32 s3, 0"),raw("s_cbranch_scc1 L_end"),raw(f"s_cmp_lg_u32 s{sW}, 0"),raw("s_cbranch_scc1 L_end"))
        fin(raw(f"s_and_b32 s{sDbg+1}, s{sDbg+1}, 0xffff"),raw(f"s_mov_b32 s{sDbg+2}, 256"),raw(f"s_mov_b32 s{sDbg+3}, 0x20000"))
        for n in range(13): fin(raw(f"s_sub_u32 s3, s{76+2*n}, s62"),raw(f"v_mov_b32 v{200+n}, s3"))
        fin(raw("s_lshr_b32 s3, s2, 6"),raw("s_lshl_b32 s3, s3, 6"),raw("v_mov_b32 v220, s3"),raw("s_mov_b64 exec, 1"))
        for n in range(4): fin(raw(f"buffer_store_dwordx4 v[{200+4*n}:{203+4*n}], v220, s[{sDbg}:{sDbg+3}], 0 offen offset:{16*n}"))
    elif OPT["stamp"]:
        fin(*stamp(3)); fin(raw("s_waitcnt vmcnt(0)")); fin(*stamp(4)); fin(raw("s_waitcnt lgkmcnt(0)"))
        sp=OPT.get("spin")
        if sp is not None:
            ex={0:["s_mov_b32 s3, 0"],1:["s_sub_u32 s3, s78, s62","s_lshl_b32 s3, s3, 2"],2:["s_sub_u32 s3, s86, s82"],3:["s_sub_u32 s3, s94, s62"],
                4:["s_sub_u32 s3, s84, s80","s_lshr_b32 s3, s3, 4"],5:["s_sub_u32 s3, s82, s62","s_lshl_b32 s3, s3, 2"]}[sp]
            for e in ex: fin(raw(e))
            fin(raw("s_add_u32 s3, s3, 15000"),label("L_spin"),raw("s_memrealtime s[98:99]"),raw("s_waitcnt lgkmcnt(0)"),raw("s_sub_u32 s98, s98, s62"),raw("s_cmp_lt_u32 s98, s3"),raw("s_cbranch_scc1 L_spin"))
        fin(raw("s_and_b32 s3, s2, 31"),raw("s_cmp_lg_u32 s3, 0"),raw("s_cbranch_scc1 L_end"),raw(f"s_cmp_lg_u32 s{sW}, 0"),raw("s_cbranch_scc1 L_end"))
        fin(raw(f"s_and_b32 s{sDbg+1}, s{sDbg+1}, 0xffff"),raw(f"s_mov_b32 s{sDbg+2}, 256"),raw(f"s_mov_b32 s{sDbg+3}, 0x20000"))
        for n in range(4): fin(raw(f"s_sub_u32 s3, s{76+4*(n+1 if n==3 else n)}, s60"),raw(f"v_mov_b32 v{200+2*n}, s3"),raw(f"s_sub_u32 s3, s{78+4*(n+1 if n==3 else n)}, s62"),raw(f"v_mov_b32 v{201+2*n}, s3"))
        fin(raw("s_lshr_b32 s3, s2, 5"),raw("s_lshl_b32 s3, s3, 5"),raw("v_mov_b32 v208, s3"),raw("s_mov_b64 exec, 1"),
            raw(f"buffer_store_dwordx4 v[200:203], v208, s[{sDbg}:{sDbg+3}], 0 offen"),raw(f"buffer_store_dwordx4 v[204:207], v208, s[{sDbg}:{sDbg+3}], 0 offen offset:16"))
    fin(raw("s_endpgm"))
    fb=fallback()
    static=pro+i0+i1+allb+body_rem+i40+i41+i42+fin.out()+fb+[label("L_end"),raw("s_endpgm")]
    dyns=[pro+i0+i1+b*min(trips,3)+body_rem+i40+i41+i42+fin.out() for b in bodies]
    for rep in range(2):
        for dyn in dyns: resolve_waits(dyn)
    k=[x for x,y in enumerate(fb) if y.text=="L_fb_loop"][0]
    dynf=fb+fb[k:]
    resolve_waits(dynf)
    for name,d in [("main",d) for d in dyns]+[("fallback",dynf)]:
        bad=check_hazards(d)
        for b in bad: print("HAZARD",name,b,file=sys.stderr)
        assert not bad
        print(name,"max outstanding",max_outstanding(d),file=sys.stderr)
    for nm,sq in(("i0",i0),("i1",i1),("ia",ia),("ib",ib),("i40",i40),("i41",i41),("i42",i42)):
        print(nm,"est cycles",estimate(sq),"nops",sum(1 for x in sq if x.kind=="nop"),"instrs",sum(1 for x in sq if states(x)),file=sys.stderr)
    if "log" in OPT: print("\n".join(logs[OPT["log"]]),file=sys.stderr)
    abl=str(OPT.get("abl","")).split("+")
    if abl!=[""]:
        loop=set(map(id,allb+body_rem))
        def drop(x):
            if id(x) not in loop: return False
            t=x.text
            return (("st" in abl and x.kind=="vst") or ("dma" in abl and x.kind=="dma") or ("pr" in abl and x.kind=="dsr" and 128<=min(r[1] for r in x.wr)<160)
              or ("qr" in abl and x.kind=="dsr" and 32<=min(r[1] for r in x.wr)<64) or ("pw" in abl and x.kind=="dsw") or ("exp" in abl and t.startswith("v_exp"))
              or ("cvt" in abl and t.startswith("v_cvt")) or ("one" in abl and x.kind=="mfma" and x.name.startswith("ONE")) or ("bar" in abl and x.kind=="bar")
              or ("mul" in abl and t.startswith("v_mul")) or ("valu" in abl and x.kind in VALU_KINDS) or ("qk" in abl and x.kind=="mfma" and x.name.startswith("QK"))
              or ("pv" in abl and x.kind=="mfma" and x.name.startswith("PV")) or ("wait" in abl and x.kind=="wslot"))
        static=[x for x in static if not drop(x)]
        static=[x for x in static if x.text!="s_cbranch_vccnz L_fallback"]
    hdr=open("standalone__mha_softmax__near_ridge.s.ref").read().split("; Override launch")[0]
    txt=hdr+f"""; One workgroup (4 waves) per head.  K (pre-scaled by log2(e)/sqrt(D)) and V^T stay in AGPRs: wave w owns keys
; 128w..128w+127 for S=K.Q^T and output columns 32w..32w+31 for O=V^T.P^T; P and the row sums are exchanged through LDS.
; exp2 uses a zero shift; every row sum is range-checked and the head is redone with the true row max if any leaves the safe range.
; @launch grid=(256,1,1) block=(256,1,1) lds={LDS_BYTES}
.amdgcn_target "amdgcn-amd-amdhsa--gfx950"
.text
.globl {NAME}
.p2align 8
.type {NAME},@function
{NAME}:
"""+emit(static)+f""".section .rodata,"a"
.p2align 6
.amdhsa_kernel {NAME}
  .amdhsa_next_free_vgpr 512
  .amdhsa_next_free_sgpr 102
  .amdhsa_accum_offset 256
  .amdhsa_group_segment_fixed_size 0
  .amdhsa_kernarg_size 48
  .amdhsa_user_sgpr_count 2
  .amdhsa_user_sgpr_kernarg_segment_ptr 1
  .amdhsa_system_sgpr_workgroup_id_x 1
.end_amdhsa_kernel
"""
    return txt

if __name__=="__main__":
    open(sys.argv[1],"w").write(build())
```

```python
import sys, struct, math
from core import *
from sched import *

NAME="standalone__mha_softmax__near_ridge_kernel"
NT=41
QBYTES=335872; KBYTES=131072
OPT=dict(D=4, st="sc0+sc1", ld="nt", stamp=0, wsplit=0, stag=3, ncopy=2)
for a in sys.argv[2:]:
    k,v=a.split("="); OPT[k]=int(v) if v.lstrip("-").isdigit() else v
D=OPT["D"]; NQ=7; T=OPT.get("T",6); LAG=4; LAG0=OPT.get('lag0',3)
STF=(" "+OPT["st"].replace("+"," ")) if OPT["st"]!="none" else ""
LDF=(" "+OPT["ld"].replace("+"," ")) if OPT["ld"]!="none" else ""
QSLOT=8320; PB=[0,33280]; KBASE=PB[T%2]; QBASE=2*33280; QEND=QBASE+NQ*QSLOT; VBASE=QEND; LBASE=VBASE+32768; MBASE=LBASE+1024; LDS_BYTES=LBASE+4096
vQrd,vQrd0,vPw,vPr,vQdma,vOst,vLw,vLr=1,2,3,[None,4,5,6],7,8,9,10
vLmax,vLmin,vR0,vR1,vT=11,12,13,14,15
vLrd,vLacc,vSEL=16,20,[24,28]
vQ=lambda qb,ds:32+qb*16+ds*4
vS=lambda n:64+(n%8)*4
vP=lambda f:96+f*4
vRing=lambda s,k:128+(s%2)*16+k*4
vO=lambda st,qb,db:160+st*16+qb*8+db*4
vOut=lambda qb:192+qb*4
aK=lambda kb,ds:(kb*4+ds)*4
aV=lambda j,kp,db:128+((j*4+kp)*2+db)*4
sQ,sK,sV,sO=4,8,12,16
sW,sLoop,sQso,sQm0,sQrs,sO0,sO1,sT,sC=20,21,22,23,24,25,26,27,28
sWoff=30; sDbg=32
M0=('m0',0); VCC=('vcc',0); SCC=('scc',0)
CSCALE=struct.unpack("<I",struct.pack("<f",math.log2(math.e)/math.sqrt(128.0)))[0]
def bf16(x):
    u=struct.unpack("<I",struct.pack("<f",x))[0]; return (u+0x7fff+((u>>16)&1))>>16
CF=math.log2(math.e)/math.sqrt(128.0); CHI=bf16(CF); CLO=bf16(CF-struct.unpack("<f",struct.pack("<I",CHI<<16))[0])
HI=(127+50)<<23; LO=(127-24)<<23

def dsr128(dst,addr,off,file='v',name=None): return I(f"ds_read_b128 {rs(file,dst,4)}, v{addr} offset:{off}","dsr",V(addr),[(file,dst+i) for i in range(4)],name=name)
def dsw128(addr,src,off): return I(f"ds_write_b128 v{addr}, {rs('v',src,4)} offset:{off}","dsw",V(addr)+V(src,4),[],cost=20)
def dsw64(addr,src,off): return I(f"ds_write_b64 v{addr}, {rs('v',src,2)} offset:{off}","dsw",V(addr)+V(src,2),[],cost=12)
def dsw32(addr,src,off): return I(f"ds_write_b32 v{addr}, v{src} offset:{off}","dsw",V(addr)+V(src),[],cost=8)
def dma(voff,srd,soff,off,flag=LDF): return I(f"buffer_load_dwordx4 v{voff}, s[{srd}:{srd+3}], s{soff} offen offset:{off}{flag} lds","dma",V(voff)+S(srd,4)+S(soff)+[M0],[])
def vld(dst,voff,srd,soff,off,flag=LDF): return I(f"buffer_load_dwordx4 {rs('v',dst,4)}, v{voff}, s[{srd}:{srd+3}], s{soff} offen offset:{off}{flag}","vld",V(voff)+S(srd,4)+S(soff),V(dst,4))
def vst(src,voff,srd,soff,flag=STF): return I(f"buffer_store_dwordx4 {rs('v',src,4)}, v{voff}, s[{srd}:{srd+3}], s{soff} offen{flag}","vst",V(src,4)+V(voff)+S(srd,4)+S(soff),[],meta={"data":V(src,4)})
def vexp(r): return valu(f"v_exp_f32 v{r}, v{r}",V(r),V(r),"trans")
def vcvt(d,a,b): return valu(f"v_cvt_pk_bf16_f32 v{d}, v{a}, v{b}",V(a)+V(b),V(d))
def vcvtp(d,a,b):
    if OPT.get("trunc"): return valu(f"v_perm_b32 v{d}, v{b}, v{a}, s74",V(a)+V(b)+S(74),V(d))
    return vcvt(d,a,b)
def v2(op,d,a,b): return valu(f"{op} v{d}, v{a}, v{b}",V(a)+V(b),V(d))
def bar(**m): return I("s_barrier","bar",meta=m)
def label(t): return I(t,"label")
def comment(t): return I(t,"comment")

def chain_info(n):
    f=(n//2+1)%8; h=n%2
    return f,h,2*(f//2)+h,f%2
def s_block(f,h):
    return (2*((f-1)%8)+h)

class Bld:
    def __init__(s): s.bb=[]; s.ops=[]; s.sops=[]; s.mdeps={}; s.slots=set(); s.tail=[]
    def group(s,g):
        p=len(s.bb); s.bb+=g; s.slots.add(len(s.bb)-1); return p
    def add(s,ins,prio,deps=(),earliest=0,name=None):
        o=Op(ins,prio,deps,earliest,name); s.ops.append(o); return o
    def adds(s,ins,prio,deps=(),name=None,earliest=0):
        o=Op(ins,prio,deps,earliest,name); s.sops.append(o); return o
    def need(s,idx,o): s.mdeps.setdefault(max(idx,0),[]).append(o)
    def barrier(s,gap,deps,**meta):
        o=s.adds(bar(**meta),-1,deps,name="BAR",earliest=max(gap,0)); s.slots.discard(gap); s.slots.add(gap-1); return o
    def run(s,prefix,log=None,overdue=None): return schedule(s.bb,s.ops,s.sops,s.mdeps,prefix,s.slots,s.tail,log,overdue,fill=OPT.get('fill',1))

def qdma_ops(b,t0,deps,tag=None,scc=()):
    m=b.adds(salu(f"s_mov_b32 m0, s{sQm0}",S(sQm0),[M0]),t0-2,deps,name="m0")
    QF=(" "+OPT["lq"].replace("+"," ") if OPT["lq"]!="none" else "") if "lq" in OPT else LDF
    d0=b.add(dma(vQdma,sQ,sQso,0,QF),t0,[m],name="DMA0"); d1=b.add(dma(vQdma,sQ,sQso,1024,QF),t0+4,[d0],name="DMA1")
    d0.ins.cost=d1.ins.cost=OPT.get("dmac",8); d0.ins.tag=d1.ins.tag=tag
    b1=b.adds(salu(f"s_add_u32 s{sQm0}, s{sQm0}, {QSLOT}",S(sQm0),S(sQm0)+[SCC]),t0+10,[m]+list(scc),name="qm+")
    b2=b.adds(salu(f"s_cmp_eq_u32 s{sQm0}, s{sT}",S(sQm0)+S(sT),[SCC]),t0+11,[b1],name="qm?")
    b3=b.adds(salu(f"s_cselect_b32 s{sQm0}, s{sWoff}, s{sQm0}",S(sQm0)+S(sWoff)+[SCC],S(sQm0)),t0+12,[b2],name="qm=")
    b4=b.adds(salu(f"s_add_u32 s{sQso}, s{sQso}, 8192",S(sQso),S(sQso)+[SCC]),t0+14,[d1,b3],name="qso+")
    return d1,b4

def epilogue_ops(b,Ob,loff,t0,tm,dt,ldeps,odeps,prev,scc,sc=1.0,tg=""):
    lr=b.add(dsr128(vLrd,vLr,loff),t0,list(ldeps)+prev.get("L",[]),name="LR"+tg)
    a=b.add(v2("v_add_f32",vLrd,vLrd,vLrd+1),t0+11*sc,[lr],name="La")
    bb_=b.add(v2("v_add_f32",vLrd+2,vLrd+2,vLrd+3),t0+11.5*sc,[lr],name="Lb")
    c=b.add(v2("v_add_f32",vLrd,vLrd,vLrd+2),t0+12*sc,[a,bb_],name="Lc")
    rc=b.add(valu(f"v_rcp_f32 v{vR0}, v{vLrd}",V(vLrd),V(vR0),"trans"),t0+13*sc,[c]+prev.get("M",[]),name="RCP")
    x1=b.add(v2("v_max_u32",vLmax,vLmax,vLrd),t0+31*sc,[c],name="cmax"); x2=b.add(v2("v_min_u32",vLmin,vLmin,vLrd),t0+32*sc,[c],name="cmin")
    mv=b.add(valu(f"v_mov_b32 v{vR1}, v{vR0}",V(vR0),V(vR1)),t0+14*sc,[rc],name="MOV")
    sw=b.add(valu(f"v_permlane32_swap_b32 v{vR0}, v{vR1}",V(vR0)+V(vR1),V(vR0)+V(vR1),"perm"),t0+15*sc,[mv],name="SWP")
    t=tm; sts=[]; muls=[]
    for qb in range(2):
        cv=[]
        for db in range(2):
            od=[odeps[(qb,db)]] if odeps else []
            for p2 in range(2):
                r=Ob(qb,db)+2*p2; R=vR0 if qb==0 else vR1
                m0_=b.add(v2("v_mul_f32",r,r,R),t,[sw]+od,name=f"M{qb}{db}{2*p2}"); t+=dt
                m1_=b.add(v2("v_mul_f32",r+1,r+1,R),t,[sw]+od,name=f"M{qb}{db}{2*p2+1}"); t+=dt
                muls+=[m0_,m1_]
                cv.append(b.add(vcvt(vOut(qb)+2*db+p2,r,r+1),t,[m0_,m1_]+prev.get("S",[]),name=f"OC{qb}{db}{p2}")); t+=dt
        sts.append(b.add(vst(vOut(qb),vOst,sO,sO0 if qb==0 else sO1),t,cv+prev.get("A",[]),name=f"ST{qb}"+tg)); sts[-1].ins.cost=OPT.get("stc",8)
    e1=b.adds(salu(f"s_add_u32 s{sO0}, s{sO0}, 8192",S(sO0),S(sO0)+[SCC]),t+1,[sts[0]]+list(scc),name="o0+")
    e2=b.adds(salu(f"s_add_u32 s{sO1}, s{sO1}, 8192",S(sO1),S(sO1)+[SCC]),t+2,[sts[1],e1],name="o1+")
    return {"L":[rc,x1,x2],"M":muls,"S":sts,"A":[e2],"cv_last":cv}

def iter_parts(b, i, par, cur, nxt, pv, ep, dodma, last_bar=True, loopctl=None, baroff=0, Ncustom=None, ctx=None):
    ctx=ctx or {}
    base=len(b.bb)
    def qk(n):
        f,h,kb,qb=chain_info(n)
        return [mfma(vS(n),aK(kb,ds),vQ(qb,ds),None if ds==0 else vS(n),name=f"QK{n}.{ds}") for ds in range(4)]
    so=1-par
    def pvo(qb,db): return [mfma(vO(so,qb,db),aV(0,kp,db),vP(2*kp+qb),None if kp==0 else vO(so,qb,db),name=f"PVo{qb}{db}.{kp}") for kp in range(4)]
    def one(qb): return [mfma(vLacc,vSEL[qb],vP(2*kp+qb),None if (kp==0 and qb==0) else vLacc,afile='v',name=f"ONE{qb}.{kp}") for kp in range(4)]
    sets=[(1,0),(1,1),(2,0),(2,1),(3,0),(3,1)]
    def pvx(s,db):
        j,qb=sets[s]
        return [mfma(vO(so,qb,db),aV(j,kp,db),vRing(s,kp),vO(so,qb,db),name=f"PVx{s}{db}.{kp}") for kp in range(4)]
    N=[("pvo",0,0),("pvo",0,1),("one",0),("pvo",1,0),("pvo",1,1),("one",1)]+[("pvx",s,db) for s in range(6) for db in range(2)]
    if Ncustom: N=[("cus",x) for x in range(18)]
    order=[N[0],N[1]]
    for n in range(16): order+=[("qk",n),N[n+2]]
    if ctx.get("eager"): order[-3],order[-2]=order[-2],order[-3]
    G={}; pos={}
    for key in order:
        if key[0]=="qk":
            n=key[1]
            if n>=14 and not nxt and cur and ctx.get("eager"):
                key=("eone",n-14); g=[mfma(vLacc,vSEL[n-14],vP(2*kp+n-14),None if (kp==0 and n==14) else vLacc,afile='v',name=f"eONE{n-14}.{kp}") for kp in range(4)]
            elif not (nxt if n>=14 else cur): continue
            else: g=qk(n)
        elif key[0]=="cus":
            g=Ncustom(key[1])
            if not g: continue
        else:
            if not pv: continue
            g={"pvo":pvo,"one":one,"pvx":pvx}[key[0]](*key[1:])
        G[key]=g; pos[key]=b.group(g)
        if key[0]=="cus": ctx["placed"](key[1],pos[key])
    nb=len(b.bb)-base
    nom={}; p=0
    for key in order: nom[key]=p; p+=4
    scale=(nb/136.0) if nb else 0
    P=lambda t:base+t*scale
    def add(ins,prio,deps=(),earliest=0,name=None): return b.add(ins,P(prio),deps,base+int(earliest*scale),name)
    def adds(ins,prio,deps=(),name=None,earliest=0): return b.adds(ins,P(prio),deps,name,base+int(earliest*scale))
    def need(key,k,o): b.need(pos[key]+k,o)
    rel=lambda o:(o.prio-base)/scale
    must_bar=list(ctx.get("must_bar",[]))
    scc=list(ctx.get("scc",[]))
    E={}
    for n in list(range(16))+[-1]:
        if n==15: continue
        if n==-1:
            if not cur: continue
            blk=vS(15); dep=ctx.get("c15",[]); t0=0
        else:
            if ("qk",n) not in G: continue
            blk=vS(n); dep=[G[("qk",n)][3]]; t0=nom[("qk",n)]+6
        for r in range(4): E[(n,r)]=add(vexp(blk+r),t0+2*r,dep,name=f"E{n}.{r}")
    if cur:
        for f in range(8):
            qb=f%2; kp=f//2
            war=[G[k][kp] for k in (("pvo",qb,0),("pvo",qb,1),("one",qb)) if k in G]+ctx.get("pwar",{}).get(f,[])
            C=[]
            for h in range(2):
                n=s_block(f,h)
                en = -1 if n==15 else n
                for p2 in range(2):
                    deps=list(war)
                    if f==0 and h==0: t=1+p2; deps+=ctx.get("e14",[])
                    else:
                        deps+=[E[(en,2*p2)],E[(en,2*p2+1)]]; t=rel(E[(en,2*p2+1)])+1
                    c=add(vcvtp(vP(f)+2*h+p2,vS(n)+2*p2,vS(n)+2*p2+1),t,deps,name=f"C{f}.{2*h+p2}")
                    C.append(c)
                    if ("eone",qb) in G: need(("eone",qb),kp,c)
                    nn=(n+8)%16
                    if ("qk",nn) in G and (n>=14 or n<8): need(("qk",nn),0,c)
            off=PB[par]+f*1024
            if str(f) in str(OPT.get("w32","")).replace("f",""):
                for x in range(4):
                    w=add(dsw32(vPw,vP(f)+x,off+4*x),rel(C[x])+1,[C[x]]+ctx.get("wdep",[]),name=f"W{f}.{x}"); must_bar.append(w)
            elif str(f) in str(OPT.get("w64","")).replace("f",""):
                for x in range(2):
                    w=add(dsw64(vPw,vP(f)+2*x,off+8*x),rel(C[2*x+1])+1,C[2*x:2*x+2]+ctx.get("wdep",[]),name=f"W{f}.{x}"); must_bar.append(w)
            else:
                w=add(dsw128(vPw,vP(f),off),rel(C[3])+1,C+ctx.get("wdep",[]),name=f"W{f}"); must_bar.append(w)
        for n,ds_ in ctx.get("swar",{}).items():
            for o in ds_: need(("qk",n),0,o)
    if pv:
        for s,(j,qb) in enumerate(sets):
            for k in range(4):
                deps=[G[("pvx",s-2,1)][k]] if s>=2 else []
                t=nom[("pvx",s,0)]-14+k if s>=2 else s*4+k
                o=add(dsr128(vRing(s,k),vPr[j],PB[so]+(2*k+qb)*1024),t,deps,name=f"R{s}.{k}")
                need(("pvx",s,0),-1,o); must_bar.append(o)
        lw=add(dsw32(vLw,vLacc,so*512),nom[("one",1)]+8,[G[("one",1)][3]],name="LW"); must_bar.append(lw)
        if ("eone",0) in G:
            need(("eone",0),0,lw)
            must_bar.append(add(dsw32(vLw,vLacc,par*512),0,[G[("eone",1)][3]],name="eLW"))
    if nxt:
        a1=adds(salu(f"s_add_u32 s{sQrs}, s{sQrs}, {QSLOT}",S(sQrs),S(sQrs)+[SCC]),40,scc,name="qr+")
        a2=adds(salu(f"s_cmp_eq_u32 s{sQrs}, {QEND}",S(sQrs),[SCC]),41,[a1],name="qr?")
        a3=adds(salu(f"s_cselect_b32 s{sQrs}, {QBASE}, s{sQrs}",S(sQrs)+[SCC],S(sQrs)),42,[a2],name="qr=")
        scc=[a3]
        upd=add(valu(f"v_add_u32 v{vQrd}, s{sQrs}, v{vQrd0}",S(sQrs)+V(vQrd0),V(vQrd)),80,[a3]+ctx.get("rqprev",[]),name="qupd")
        for qb in range(2):
            lastn=11 if qb==0 else 13
            for ds in range(4):
                deps=[upd]+([G[("qk",lastn)][ds]] if ("qk",lastn) in G else [])+ctx.get("rqdep",[])
                o=add(dsr128(vQ(qb,ds),vQrd,qb*4160+ds*256),nom[("qk",lastn)]+1+ds,deps,name=f"RQ{qb}.{ds}")
                if qb==0: need(("qk",14),-1,o)
    if dodma:
        d1,b4=qdma_ops(b,P(ctx.get("dmaprio",50)),ctx.get("dmadep",[]),scc=scc); scc=[b4]
    if ep:
        e=epilogue_ops(b,lambda qb,db:vO(par,qb,db),par*512,P(-1),P(OPT.get("ept",24)),OPT.get("epdt",3.2)*scale,[],None,{},scc,sc=scale); scc=e["A"]
    if "late" in ctx: scc=ctx["late"](scc,must_bar)
    if loopctl:
        c1=adds(salu(f"s_sub_u32 s{sLoop}, s{sLoop}, 1",S(sLoop),S(sLoop)+[SCC]),128,scc,name="lp-",earliest=128)
        c2=adds(salu(f"s_cmp_lg_u32 s{sLoop}, 0",S(sLoop),[SCC]),129,[c1],name="lp?",earliest=129)
        b.tail=[I(f"s_cbranch_scc1 {loopctl}","branch",[SCC])]
    b.slots.discard(base+nb-1)
    if last_bar: b.barrier(base+nb-1-baroff,must_bar,keep_dma=2*(D-2),all_ds=1)

def iteration(i, par, cur, nxt, pv, ep, dodma, prefix, log=None, **kw):
    b=Bld(); iter_parts(b,i,par,cur,nxt,pv,ep,dodma,**kw); return b.run(prefix,log)

def drain(i,prefix,log):
    b=Bld(); so=(i-1)%2; par=i%2
    ring=[128,144,64,80,32,48]; last={}
    for qb in range(2):
        for j in range(4):
            s_=qb*3+j-1
            for db in range(2):
                d=vO(so,qb,db)
                g=[mfma(d,aV(j,kp,db),vP(2*kp+qb) if j==0 else ring[s_]+4*kp,None if (j==0 and kp==0) else d,name=f"PV{qb}{j}{db}.{kp}") for kp in range(4)]
                p=b.group(g); last[(qb,db)]=g[3]
                if j and db==0:
                    for k in range(4): b.need(p-1,b.add(dsr128(ring[s_]+4*k,vPr[j],PB[so]+(2*k+qb)*1024),s_*2+k/2,name=f"R{s_}.{k}"))
    e=epilogue_ops(b,lambda qb,db:vO(par,qb,db),par*512,-1,10,0.7,[],None,{},[],sc=0.5)
    epilogue_ops(b,lambda qb,db:vO(so,qb,db),so*512,20,34,0.7,[],last,e,e["A"],sc=0.3,tg="z")
    return b.run(prefix,log)

vOs=[80,112][:T-5]+[vO(T%2,0,0),200,216,232,vO(1-T%2,0,0)]
vLs=lambda t:248+t
sKo=64
sVm=72
vKA,vVA,vTB,vTD=255,0,192,15
def kdma_units(c):
    u=[]
    for pr in range(4):
        for n in range(2):
            d=dma(vQdma,sK,45,n*1024); d.tag=f"K{c}"
            u.append(([salu(f"s_add_u32 m0, s54, {(pr//2)*4160+(pr%2)*2080}",S(54),[M0,SCC]), salu(f"s_add_u32 s45, s44, {c*8192+pr*2048}",S(44),S(45)+[SCC])] if n==0 else [])+[d])
    return u
def qdma_units(t):
    d0=dma(vQdma,sQ,46,0); d1=dma(vQdma,sQ,46,1024); d0.tag=d1.tag=f"Q{t}"
    return [[salu(f"s_add_u32 m0, s{sWoff}, {(t%NQ)*QSLOT}",S(sWoff),[M0,SCC]),salu(f"s_mov_b32 s46, {t*8192}",[],S(46)),d0],[d1]]
def vdma_units(c):
    u=[]
    for hf in range(2):
        for n in range(4):
            d=dma(vVA,sV,sKo+2*c+hf,n*1024); d.tag=f"V{c}"
            u.append(([salu(f"s_mov_b32 m0, s{sVm+hf}",S(sVm+hf),[M0])] if n==0 else [])+[d])
    return u
flat=lambda u:[x for y in u for x in y]
STREAM=kdma_units(0)+qdma_units(0)+qdma_units(1)+qdma_units(2)+vdma_units(0)+flat([qdma_units(t) for t in range(3,T)])+kdma_units(1)
NPRO=OPT.get("npro",20)
def kread(c):
    o=[dsr128(aK(2*c+h,ds),vKA,h*4160+ds*256,file='a') for h in range(2) for ds in range(4)]
    for x in o: x.meta["tags"]={f"K{c}"}
    return o
aSC=lambda lo,half:aV(lo,3,half)
vKT=[192,196,vLrd]
def ksops(c,j):
    a=aK(2*c+j//8,(j//2)%4)+2*(j%2); d=vKT[j%3]
    return [vcvt(d,d,d+1),vcvt(d+1,d+2,d+3)]+[vop(f"v_accvgpr_write_b32 a{a+x}, v{d+x}",V(d+x),A(a+x)) for x in range(2)]
def kscale(c,extra=None):
    o=[]
    for j in range(16):
        a=aK(2*c+j//8,(j//2)%4); d=vKT[j%3]; x=ksops(c,j-2) if j>=2 else [nop(2),None,nop(2),None]
        if j%2==0: o.append(waitslot())
        o+=[mfma(d,aSC(0,j%2),a,None,bfile='a',name="KSh")]+(extra(j) if extra else [])+x[:2]+[mfma(d,aSC(1,j%2),a,d,bfile='a',name="KSl")]+x[2:]
    return [i for i in o if i is not None]
def startup(prefix,log):
    b=Bld(); NS=4*T
    Sb=lambda n:64+(n%4)*4
    Pw=lambda k,qb:96+((k%2)*2+qb)*4
    ent=lambda k,qb:PB[T%2 if 3*T<=k<NS-LAG else 1-T%2]+((k%4)*2+qb)*1024
    assert all(k%4 for k in range(3*T,NS-LAG))
    pvstep=lambda k:k+(LAG0 if k<3*T else LAG)
    pvof={pvstep(k):k for k in range(NS)}
    QK={}; PV={}; ONE={}; start={}; end={}; posQ={}; posP={}; posO={}
    def pvg(k,qb,db):
        c,t=divmod(k,T); d=vOs[t]+qb*8+db*4
        return [mfma(d,aV(j,c,db),vRing(2*k+qb,j),None if (c==0 and j==0) else d,name=f"PV{k}.{qb}{db}.{j}") for j in range(4)]
    def oneg(k): return [mfma(vLacc,vSEL[0],Pw(k,0),None,afile='v',name=f"ONE{k}.0"),mfma(vLacc,vSEL[1],Pw(k,1),vLacc,afile='v',name=f"ONE{k}.1")]
    for k in range(NS):
        c,t=divmod(k,T)
        start[k]=len(b.bb)
        for ch in range(4):
            kb=2*c+ch%2; qb=ch//2; n=4*k+ch
            QK[(k,ch)]=[mfma(Sb(n),aK(kb,ds),vQ(qb,ds),None if ds==0 else Sb(n),name=f"QK{k}.{ch}.{ds}") for ds in range(4)]
            posQ[(k,ch)]=b.group(QK[(k,ch)])
            if k in pvof:
                key=(pvof[k],ch//2,ch%2); PV[key]=pvg(*key); posP[key]=b.group(PV[key])
            if ch==2 and k>=1: ONE[k-1]=oneg(k-1); posO[k-1]=b.group(ONE[k-1])
        if k==NS-1:
            for n in(14,15):
                f,h,kb,qb=chain_info(n)
                QK[("pre",n)]=[mfma(vS(n),aK(kb,ds),vQ(qb,ds),None if ds==0 else vS(n),name=f"QKp{n}.{ds}") for ds in range(4)]
                posQ[("pre",n)]=b.group(QK[("pre",n)])
        end[k]=len(b.bb)-1
    cus={}
    x=0
    for k in range(NS-LAG,NS):
        for qb in range(2):
            for db in range(2):
                PV[(k,qb,db)]=pvg(k,qb,db); cus[x]=("pv",(k,qb,db)); x+=1
                if x==3: ONE[NS-1]=oneg(NS-1); cus[x]=("one",NS-1); x+=1
    def Ncustom(x):
        if x not in cus: return None
        return PV[cus[x][1]] if cus[x][0]=="pv" else ONE[cus[x][1]]
    def placed(x,p):
        (posP if cus[x][0]=="pv" else posO)[cus[x][1]]=p
    BAR={}; W={}; C={}; LA={}; LW={}; RQ={}; TR={}; E={}
    bdeps={k:[] for k in range(NS)}; btags={k:set() for k in range(NS)}; bneed={k:[] for k in range(NS)}
    for k in range(NS): BAR[k]=b.barrier(end[k],[],tags=btags[k],need=set())
    def bneeds(k,o): BAR[k].deps.append(o); BAR[k].ins.meta["need"].add(id(o.ins))
    for k in range(1,NS): BAR[k].deps.append(BAR[k-1])
    state={"scc":[],"dma":[],"ep":{}}
    def softmax(k):
        c,t=divmod(k,T)
        for ch in range(4):
            n=4*k+ch; qb=ch//2; h=ch%2
            for r in range(4): E[(k,ch,r)]=b.add(vexp(Sb(n)+r),posQ[(k,ch)]+6+2*r,[QK[(k,ch)][3]],name=f"E{k}.{ch}.{r}")
            for p2 in range(2):
                deps=[E[(k,ch,2*p2)],E[(k,ch,2*p2+1)]]
                if k>=2: deps+=[ONE[k-2][qb],W[(k-2,qb)]]
                o=b.add(vcvtp(Pw(k,qb)+2*h+p2,Sb(n)+2*p2,Sb(n)+2*p2+1),E[(k,ch,2*p2+1)].prio+1,deps,name=f"C{k}.{ch}.{p2}")
                C[(k,ch,p2)]=o
                if k+1<NS: b.need(posQ[(k+1,ch)],o)
            if h==1:
                W[(k,qb)]=b.add(dsw128(vPw,Pw(k,qb),ent(k,qb)),C[(k,ch,1)].prio+1,[C[(k,cc,pp)] for cc in(ch-1,ch) for pp in range(2)]+([BAR[pvstep(k-4)]] if (k>=4 and pvstep(k-4)<k and ent(k,0)==ent(k-4,0)) else [])+([BAR[k-3]] if k>NS-LAG else []),name=f"W{k}.{qb}")
                if k+1<NS: bneeds(k+1,W[(k,qb)])
    for k in range(NS): softmax(k)
    def one_ops(k):
        c,t=divmod(k,T)
        for cc in range(4):
            for pp in range(2): b.need(posO[k],C[(k,cc,pp)])
        if k>=1: b.need(posO[k],LA[k-1])
        ins=valu(f"v_mov_b32 v{vLs(t)}, v{vLacc}",V(vLacc),V(vLs(t))) if c==0 else v2("v_add_f32",vLs(t),vLs(t),vLacc)
        LA[k]=b.add(ins,posO[k]+6,[ONE[k][1]],name=f"LA{k}")
        if c==3:
            LW[t]=b.add(dsw32(vLw,vLs(t),((T-1)%2)*512 if t==T-1 else 1024+t*512),posO[k]+8,[LA[k]],name=f"LW{t}")
            if k+1<NS: bneeds(k+1,LW[t])
    for k in range(NS-1): one_ops(k)
    def preads(k):
        for qb in range(2):
            for j in range(4):
                deps=[BAR[k+1]]+([PV[(k-1,qb,1)][j]] if k>=1 else [])
                o=b.add(dsr128(vRing(2*k+qb,j),vPw if j==0 else vPr[j],ent(k,qb)),posP[(k,qb,0)]-12+j,deps,name=f"R{k}.{qb}.{j}")
                b.need(posP[(k,qb,0)]-1,o); state.setdefault("R",[]).append(o)
    for k in range(NS-LAG): preads(k)
    for k in range(NS+1):
        t=k%T if k<NS else T%NQ
        for qb in range(2):
            for ds in range(4):
                deps=[QK[(k-1,2*qb+1)][ds]] if k>=1 else []
                if 2<=k<T: deps.append(BAR[k-2]); btags[k-2].add(f"Q{k}")
                if k==NS: deps.append(BAR[NS-2]); btags[NS-2].add(f"Q{T}")
                pr=(posQ[(k-1,2*qb+1)]+1+ds) if k>=1 else 14+4*qb+ds
                o=b.add(dsr128(vQ(qb,ds),vQrd,t*QSLOT+qb*4160+ds*256),pr,deps,name=f"RQ{k}.{qb}.{ds}"); RQ[(k,qb,ds)]=o
                if k<NS: b.need(posQ[(k,2*qb)]-1,o)
                elif qb==0: b.need(posQ[("pre",14)]-1,o)
    btags[NS-1].add(f"Q{T+1}")
    state["chain"]=[]; hard={0,1}
    def issue(units,where,deps,nm):
        for u,(k,fr) in zip(units,where):
            tt=int(start[k]+fr*(end[k]-start[k])); prev=list(deps)+state["chain"]+state["scc"]
            nd=[x.kind for x in u].index("dma")
            for x,ins in enumerate(u):
                if ins.kind=="salu": o=b.adds(ins,tt+x-nd-3,prev,name="s"+nm,earliest=tt+x-nd-3 if x<nd else 0)
                else: o=b.add(ins,tt,prev,earliest=tt,name=nm); ins.cost=OPT.get("sdmac",4)
                prev=[o]
            state["chain"]=prev; state["scc"]=prev
            if k in hard: BAR[k].deps.append(prev[0])
    def spread(n,k0,per):
        w=[]; k=k0
        while len(w)<n:
            m=min(per,n-len(w)); w+=[(k,(x+0.5)/per) for x in range(m)]; k+=1
        return w
    kchain=[]
    def extra(j):
        o=flat(STREAM[12+(NPRO-12)*j//16:12+(NPRO-12)*(j+1)//16])
        if j==9: o+=[waitslot(),bar(tags={"Q0","Q1"},need=set())]
        if 10<=j<14: o+=[RQ[(0,(j-10)//2,2*(j%2)+x)].ins for x in range(2)]
        return o
    for qb in range(2):
        for ds in range(4): o=RQ[(0,qb,ds)]; b.ops.remove(o); o.done=True; o.gap=-1
    ks0=b.add([waitslot()]+kread(0)+kscale(0,extra)+[waitslot()],0,[],name="KS0"); b.need(0,ks0)
    rest=STREAM[NPRO:]
    n0=OPT.get("n0",4); n1=OPT.get("n1",10)
    w=[(0,(x+0.5)/n0) for x in range(n0)]+[(1,OPT.get('f1',30)/100+0.5*x/n1) for x in range(n1)]
    w=w[:len(rest)]; w+=spread(len(rest)-len(w),2,2)
    issue(rest,w,[ks0],"D")
    lastk=w[-1][0]
    for c in range(4):
        s1=pvstep(c*T)-1
        btags[s1-1].add(f"V{c}")
        p0=start[c*T]
        if c==0: ks=ks0
        else:
            kr=[b.add(ins,p0-14+x,kchain,earliest=p0-16,name=f"KR{c}") for x,ins in enumerate(kread(c))]
            ks=b.add(kscale(c),p0,kr+state["TR"],name=f"KS{c}"); b.need(p0,ks)
        aw=[]
        for j in(14,15):
            x=ksops(c,j); prev=[ks]
            for n,ins in enumerate(x): o=b.add(ins,p0-8+j-14+n*0.1,prev,name="Kx"); prev=[o]; aw.append(o); b.need(posQ[(c*T,1)],o)
        state["KS"]=aw
        if 1<=c<3: issue(kdma_units(c+1),spread(8,c*T,OPT.get("kper",6)),[ks],f"KD{c+1}")
        kchain=state["chain"]
        state["TR"]=[]
        for j in range(4):
            r=vPw if j==0 else vPr[j]
            tb=b.add(v2("v_add_u32",vTB+j,vTD,r),start[s1-1]+j,state.get("KS",[]),earliest=start[s1-1],name="TB")
            for db in range(2):
                for hf in range(2):
                    a=aV(j,c,db)+2*hf
                    o=b.add(I(f"ds_read_b64_tr_b16 a[{a}:{a+1}], v{vTB+j} offset:{hf*4096+8*db}","dsr",V(vTB+j),A(a,2)),start[s1]+j*4+db*2+hf,[BAR[s1-1],tb],name=f"TR{c}")
                    b.need(posP[(c*T,0,0)]-1,o); bneeds(s1,o); state["TR"].append(o)
        if c<3: issue(vdma_units(c+1),(spread(8,max(s1+1,lastk,OPT.get("v1",0)),OPT.get("v1per",6)) if c==0 else spread(8,s1+1,OPT.get("vper",6))),[BAR[s1]],f"VD{c+1}")
    state["ep"]={"L":state["KS"],"S":state["TR"]}
    for x in range(D):
        t=T+x; k=min(max(3*T+1+t-NQ,3*T-1+x),NS-1)
        issue(qdma_units(t),[(k,0.25),(k,0.6)],[BAR[3*T+t-NQ]] if t>=NQ else [],"QD")
    chain=state["chain"]
    def ep(t,t0,tm,dt,scc):
        k=3*T+t
        od={(qb,db):PV[(k,qb,db)][3] for qb in range(2) for db in range(2)}
        e=epilogue_ops(b,lambda qb,db:vOs[t]+qb*8+db*4,1024+t*512,t0,tm,dt,[BAR[k+1]],od,state["ep"],scc,sc=0.5,tg=f"t{t}")
        state["ep"]=e; return e
    eps={}; BARX=[]
    for t in range(T-LAG-1+0):
        k=3*T+t+LAG
        eps[t]=ep(t,start[k]+8,start[k]+20,1.3,state["scc"]); state["scc"]=eps[t]["A"]
    if T>=6:
        for o in eps[0]["M"]+eps[0]["S"]: b.need(posQ[("pre",14)],o)
    e14=[b.add(vexp(vS(14)+r),posQ[("pre",14)]+6+2*r,[QK[("pre",14)][3]],name=f"Ep{r}") for r in range(4)]
    def late(scc,must_bar):
        BAR[NS]=b.barrier(end[NS-1]+1+OPT.get("barx",23),[BAR[NS-1]],need=set())
        for qb in range(2): bneeds(NS,W[(NS-1,qb)])
        BARX.append(BAR[NS])
        for k in range(NS-LAG,NS): preads(k)
        must_bar+=state["R"][-8*LAG:]
        one_ops(NS-1); must_bar.append(LW[T-1])
        for t in range(T-LAG-1,T-1):
            k=3*T+t
            p=posP[(k,0,0)] if k>=NS-LAG else end[NS-1]-8
            eps[t]=ep(t,p-6,p+10,1.2,scc); scc=eps[t]["A"]
        return scc
    last=NS-1
    ctx=dict(dmaprio=5,placed=placed,late=late,scc=state["scc"],c15=[QK[("pre",15)][3]],e14=e14,dmadep=chain+[BAR[last]],
             must_bar=[W[(last,0)],W[(last,1)]],wdep=[BAR[last]],rqdep=[BAR[last]],rqprev=[RQ[(NS,qb,ds)] for qb in range(2) for ds in range(4)],
             pwar={0:[ONE[last-1][0],W[(last-1,0)]],1:[ONE[last-1][1],W[(last-1,1)]],2:[ONE[last][0],W[(last,0)]],3:[ONE[last][1],W[(last,1)]],
                   **({f:eps[1]["M"]+eps[1]["S"] for f in range(4,8)} if T>=7 else {})},
             swar={n:[C[(last,n,pp)] for pp in range(2)] for n in range(4)})
    iter_parts(b,T,T%2,1,1,0,0,1,Ncustom=Ncustom,ctx=ctx)
    b.sops[-1].deps.append(BAR[NS])
    for ds in range(4): b.need(end[last]+1+8-1,RQ[(NS,1,ds)])
    res=b.run(prefix,log,overdue=OPT.get("od",3))
    if OPT["stamp"]==2 and not OPT.get("ps"):
        p0=OPT.get('p0'); pts=[2,3,6,9,13,16,20,23,27] if p0 is None else list(range(p0,p0+9)); o=[]
        for x in res:
            o.append(x)
            for n,k in enumerate(pts):
                if x is BAR[k].ins: o.append(raw(f"{'s_memtime' if OPT.get('cyc') else 's_memrealtime'} s[{78+2*n}:{79+2*n}]"))
        res=o
    if OPT.get("seg"):
        idx=[n for n,x in enumerate(res) if x.kind=="bar"]
        print("step est:",[estimate(res[a:z]) for a,z in zip(idx,idx[1:])],file=sys.stderr)
    return res

class Seq:
    def __init__(s,prefix=()): s.o=list(prefix); s.n0=len(s.o)
    def __call__(s,*ins,slot=True):
        for i in ins:
            if slot and i.kind not in("label","comment","salu","wait","branch","raw","nop"): s.o.append(waitslot())
            k=hazard_need(s.o,i)
            if k>0: s.o.append(nop(k))
            s.o.append(i)
    def out(s): return s.o[s.n0:]

def vop(t,rd,wr): return valu(t,rd,wr)
def prologue():
    q=Seq()
    q(salu("s_cmp_ge_u32 s2, 256",S(2),[SCC]), I("s_cbranch_scc1 L_end","branch",[SCC]))
    if OPT["stamp"]: q(raw("s_memtime s[60:61]"),raw("s_memrealtime s[62:63]"),raw(f"s_load_dwordx2 s[{sDbg}:{sDbg+1}], s[0:1], 32"))
    q(raw("s_load_dwordx4 s[36:39], s[0:1], 0"), raw("s_load_dwordx4 s[40:43], s[0:1], 16"))
    L,Q_,G_,T1,T2,T3=200,201,202,203,204,205
    if OPT.get("warm",2):
        q(raw("s_getpc_b64 s[56:57]"), label("L_pc"), raw("s_and_b32 s57, s57, 0xffff"), raw("s_mov_b32 s58, L_end-L_pc"), raw("s_mov_b32 s59, 0x20000"))
        q(vop(f"v_lshlrev_b32 v{T2}, 7, v0",V(0),V(T2)))
        for k in range(OPT.get("warm",2)):
            q(raw(f"s_mov_b32 s55, {k*32768}"))
            q(I(f"buffer_load_dword v{240+k}, v{T2}, s[56:59], s55 offen","vld",V(T2),V(240+k)),slot=False)
    q(vop(f"v_and_b32 v{L}, 63, v0",V(0),V(L)), vop(f"v_lshrrev_b32 v{T1}, 6, v0",V(0),V(T1)))
    q(I(f"v_readfirstlane_b32 s{sW}, v{T1}","valu",V(T1),S(sW),meta={"rfl":1}))
    q(vop(f"v_and_b32 v{Q_}, 15, v{L}",V(L),V(Q_)), vop(f"v_lshrrev_b32 v{G_}, 4, v{L}",V(L),V(G_)))
    R_,C_=208,209
    q(vop(f"v_bfe_u32 v{R_}, v{L}, 2, 2",V(L),V(R_)), vop(f"v_and_b32 v{C_}, 3, v{L}",V(L),V(C_)))
    q(salu(f"s_mul_i32 s3, s2, {QBYTES}",S(2),S(3)), salu("s_lshl_b32 s31, s2, 17",S(2),S(31)))
    q(salu(f"s_lshl_b32 s46, s{sW}, 11",S(sW),S(46)), salu(f"s_lshl_b32 s{sKo}, s{sW}, 15",S(sW),S(sKo)))
    q(vop(f"v_lshlrev_b32 v{vQdma}, 8, v{R_}",V(R_),V(vQdma)), vop(f"v_lshl_add_u32 v{vQdma}, v{G_}, 6, v{vQdma}",V(G_)+V(vQdma),V(vQdma)),
      vop(f"v_lshl_add_u32 v{vQdma}, v{C_}, 4, v{vQdma}",V(C_)+V(vQdma),V(vQdma)), vop(f"v_add_u32 v{vQdma}, s46, v{vQdma}",S(46)+V(vQdma),V(vQdma)))
    q(salu(f"s_mul_i32 s47, s{sW}, 2080",S(sW),S(47)), salu(f"s_add_u32 s{sWoff}, s47, {QBASE}",S(47),S(sWoff)))
    q(salu(f"s_sub_u32 s44, s{sKo}, s46",S(sKo)+S(46),S(44)), salu(f"s_mul_i32 s54, s{sW}, {QSLOT}",S(sW),S(54)), salu(f"s_add_u32 s54, s54, {KBASE}",S(54),S(54)))
    for srd,nb in((sQ,QBYTES),(sK,KBYTES),(sV,KBYTES),(sO,QBYTES)):
        q(salu(f"s_mov_b32 s{srd+2}, {nb}",[],S(srd+2)), salu(f"s_mov_b32 s{srd+3}, 0x20000",[],S(srd+3)))
    q(raw("s_waitcnt lgkmcnt(0)"))
    def base(srd,src,off):
        q(salu(f"s_add_u32 s{srd}, s{src}, s{off}",S(src)+S(off),S(srd)), salu(f"s_addc_u32 s{srd+1}, s{src+1}, 0",S(src+1),S(srd+1)),
          salu(f"s_and_b32 s{srd+1}, s{srd+1}, 0xffff",S(srd+1),S(srd+1)))
    ps=lambda n:[raw(f"s_memrealtime s[{78+2*n}:{79+2*n}]")] if OPT.get("ps") else []
    base(sK,38,31); q(*ps(0),*flat(STREAM[:8]),*ps(1),slot=False)
    base(sQ,36,3); q(*flat(STREAM[8:12]),slot=False)
    base(sV,40,31); base(sO,42,3)
    for n in range(1,8): q(salu(f"s_add_u32 s{sKo+n}, s{sKo}, {n*4096}",S(sKo),S(sKo+n)))
    q(salu(f"s_add_u32 s{sT}, s47, {QEND}",S(47),S(sT)), salu(f"s_add_u32 s{sQm0}, s{sWoff}, {((T+D)%NQ)*QSLOT}",S(sWoff),S(sQm0)), salu(f"s_mov_b32 s{sQso}, {(T+D)*8192}",[],S(sQso)))
    q(vop(f"v_lshlrev_b32 v{T1}, 2, v{G_}",V(G_),V(T1)), vop(f"v_xor_b32 v{T1}, v{T1}, v{Q_}",V(T1)+V(Q_),V(T1)),
      vop(f"v_lshlrev_b32 v{T1}, 4, v{T1}",V(T1),V(T1)), vop(f"v_lshl_add_u32 v{vVA}, v{G_}, 8, v{T1}",V(G_)+V(T1),V(vVA)))
    q(salu(f"s_lshl_b32 s48, s{sW}, 13",S(sW),S(48)), salu(f"s_add_u32 s{sVm}, s48, {VBASE}",S(48),S(sVm)), salu(f"s_add_u32 s{sVm+1}, s48, {VBASE+4096}",S(48),S(sVm+1)))
    q(*ps(2))
    q(vop(f"v_lshrrev_b32 v{T1}, 2, v{Q_}",V(Q_),V(T1)), vop(f"v_lshlrev_b32 v{vQrd0}, 10, v{T1}",V(T1),V(vQrd0)),
      vop(f"v_lshrrev_b32 v{T1}, 3, v{Q_}",V(Q_),V(T1)), vop(f"v_lshl_add_u32 v{vQrd0}, v{T1}, 5, v{vQrd0}",V(T1)+V(vQrd0),V(vQrd0)),
      vop(f"v_lshl_add_u32 v{vQrd0}, v{C_}, 6, v{vQrd0}",V(C_)+V(vQrd0),V(vQrd0)), vop(f"v_lshl_add_u32 v{vQrd0}, v{G_}, 4, v{vQrd0}",V(G_)+V(vQrd0),V(vQrd0)))
    q(salu(f"s_mov_b32 s{sQrs}, {QBASE+(T%NQ)*QSLOT}",[],S(sQrs))); q(vop(f"v_add_u32 v{vQrd}, {QBASE}, v{vQrd0}",V(vQrd0),V(vQrd)))
    for j in range(4):
        q(salu(f"s_add_u32 s49, s{sW}, {j}",S(sW),S(49)), salu("s_and_b32 s49, s49, 3",S(49),S(49)), salu(f"s_lshl_b32 s{50+j}, s49, 13",S(49),S(50+j)))
        r=vPw if j==0 else vPr[j]
        q(vop(f"v_lshl_add_u32 v{r}, v{L}, 4, s{50+j}",V(L)+S(50+j),V(r)))
    q(salu(f"s_lshl_b32 s49, s{sW}, 6",S(sW),S(49)))
    q(vop(f"v_lshlrev_b32 v{vOst}, 8, v{Q_}",V(Q_),V(vOst)), vop(f"v_lshl_add_u32 v{vOst}, v{G_}, 4, v{vOst}",V(G_)+V(vOst),V(vOst)), vop(f"v_add_u32 v{vOst}, s49, v{vOst}",S(49)+V(vOst),V(vOst)))
    q(vop(f"v_lshrrev_b32 v{T1}, 1, v{G_}",V(G_),V(T1)), vop(f"v_lshl_add_u32 v{T1}, v{T1}, 4, v{Q_}",V(T1)+V(Q_),V(T1)),
      vop(f"v_lshlrev_b32 v{T1}, 4, v{T1}",V(T1),V(T1)), vop(f"v_add_u32 v{vLr}, {LBASE}, v{T1}",V(T1),V(vLr)))
    q(salu(f"s_lshl_b32 s49, s{sW}, 2",S(sW),S(49))); q(vop(f"v_add_u32 v{vLw}, s49, v{vLr}",S(49)+V(vLr),V(vLw)))
    q(vop(f"v_mov_b32 v{vLmax}, 0",[],V(vLmax)), vop(f"v_mov_b32 v{vLmin}, -1",[],V(vLmin)))
    q(vop(f"v_mov_b32 v{T1}, 0x3f803f80",[],V(T1)), valu(f"v_cmp_gt_u32 vcc, 8, v{Q_}",V(Q_),[VCC]))
    for r in range(4):
        q(valu(f"v_cndmask_b32 v{vSEL[0]+r}, 0, v{T1}, vcc",V(T1)+[VCC],V(vSEL[0]+r)))
        q(vop(f"v_xor_b32 v{vSEL[1]+r}, v{T1}, v{vSEL[0]+r}",V(T1)+V(vSEL[0]+r),V(vSEL[1]+r)))
    if OPT.get("trunc"): q(salu("s_mov_b32 s74, 0x07060302",[],S(74)))
    q(salu(f"s_mov_b32 s{sO0}, 0",[],S(sO0)), salu(f"s_mov_b32 s{sO1}, 4096",[],S(sO1)))
    q(vop(f"v_lshlrev_b32 v{T1}, 2, v{R_}",V(R_),V(T1)), vop(f"v_add_u32 v{T2}, s49, v{C_}",S(49)+V(C_),V(T2)), vop(f"v_xor_b32 v{T2}, v{T2}, v{T1}",V(T1)+V(T2),V(T2)),
      vop(f"v_lshl_add_u32 v{T3}, v{G_}, 2, v{R_}",V(G_)+V(R_),V(T3)), vop(f"v_lshlrev_b32 v{T3}, 8, v{T3}",V(T3),V(T3)), vop(f"v_lshl_add_u32 v{T3}, v{T2}, 4, v{T3}",V(T2)+V(T3),V(T3)),
      vop(f"v_lshlrev_b32 v{T1}, 4, v{L}",V(L),V(T1)), v2("v_sub_u32",T3,T3,T1), vop(f"v_add_u32 v{vTD}, {VBASE}, v{T3}",V(T3),V(vTD)))
    q(vop(f"v_add_u32 v{vKA}, s54, v{vQrd0}",S(54)+V(vQrd0),V(vKA)))
    q(vop(f"v_lshrrev_b32 v{T1}, 2, v{Q_}",V(Q_),V(T1)), valu(f"v_cmp_eq_u32 vcc, v{T1}, v{G_}",V(T1)+V(G_),[VCC]),
      vop(f"v_and_b32 v{T1}, 1, v{L}",V(L),V(T1)), vop(f"v_lshlrev_b32 v{T1}, 4, v{T1}",V(T1),V(T1)),
      vop(f"v_and_b32 v{T2}, 2, v{L}",V(L),V(T2)), valu(f"v_cmp_eq_u32 s[50:51], 0, v{T2}",V(T2),S(50,2)))
    for lo,cb in enumerate((CHI,CLO)):
        q(vop(f"v_mov_b32 v{T2}, {cb:#x}",[],V(T2)), v2("v_lshlrev_b32",T2,T1,T2), valu(f"v_cndmask_b32 v{T2}, 0, v{T2}, vcc",V(T2)+[VCC],V(T2)),
          valu(f"v_cndmask_b32 v{T3}, 0, v{T2}, s[50:51]",V(T2)+S(50,2),V(T3)), v2("v_xor_b32",T2,T2,T3))
        for half in range(2):
            a=aSC(lo,half)
            q(vop(f"v_accvgpr_write_b32 a{a+2*half}, v{T3}",V(T3),A(a+2*half)), vop(f"v_accvgpr_write_b32 a{a+2*half+1}, v{T2}",V(T2),A(a+2*half+1)),
              vop(f"v_accvgpr_write_b32 a{a+2-2*half}, 0",[],A(a+2-2*half)), vop(f"v_accvgpr_write_b32 a{a+3-2*half}, 0",[],A(a+3-2*half)))
    q(*ps(3))
    return q.out()

def fallback():
    q=Seq()
    q(label("L_fallback"), wait(vm=0,lg=0), bar())
    q(salu(f"s_mov_b32 s{sQso}, 0",[],S(sQso)), salu(f"s_mov_b32 s{sO0}, 0",[],S(sO0)), salu(f"s_mov_b32 s{sO1}, 4096",[],S(sO1)), salu(f"s_mov_b32 s{sLoop}, {NT}",[],S(sLoop)))
    q(vop(f"v_add_u32 v{vQrd}, {QBASE}, v{vQrd0}",V(vQrd0),V(vQrd)))
    MW,MR,T=216,217,218
    q(vop(f"v_mbcnt_lo_u32_b32 v{T}, -1, 0",[],V(T)), vop(f"v_mbcnt_hi_u32_b32 v{T}, -1, v{T}",V(T),V(T)),
      vop(f"v_and_b32 v{MR}, 15, v{T}",V(T),V(MR)), vop(f"v_lshlrev_b32 v{MR}, 6, v{MR}",V(MR),V(MR)), vop(f"v_add_u32 v{MR}, {MBASE}, v{MR}",V(MR),V(MR)),
      vop(f"v_lshrrev_b32 v{T}, 4, v{T}",V(T),V(T)), vop(f"v_lshl_add_u32 v{MW}, v{T}, 2, v{MR}",V(T)+V(MR),V(MW)))
    q(salu(f"s_lshl_b32 s49, s{sW}, 4",S(sW),S(49))); q(vop(f"v_add_u32 v{MW}, s49, v{MW}",S(49)+V(MW),V(MW)))
    q(label("L_fb_loop"))
    q(salu(f"s_mov_b32 m0, s{sWoff}",S(sWoff),[M0])); q(dma(vQdma,sQ,sQso,0),dma(vQdma,sQ,sQso,1024)); q(wait(vm=0),bar())
    for qb in range(2):
        for ds in range(4): q(dsr128(vQ(qb,ds),vQrd,qb*4160+ds*256))
    Sb=lambda kb,qb:64+(kb*2+qb)*4
    Pf=lambda f:128+f*4
    for kb in range(8):
        for qb in range(2):
            for ds in range(4): q(mfma(Sb(kb,qb),aK(kb,ds),vQ(qb,ds),None if ds==0 else Sb(kb,qb)))
    Mx=[220,221]; RD=224
    for qb in range(2):
        q(v2("v_max_f32",Mx[qb],Sb(0,qb),Sb(0,qb)+1))
        regs=[Sb(kb,qb)+r for kb in range(8) for r in range(4)][2:]
        for x in range(0,30,2): q(vop(f"v_max3_f32 v{Mx[qb]}, v{Mx[qb]}, v{regs[x]}, v{regs[x+1]}",V(Mx[qb])+V(regs[x])+V(regs[x+1]),V(Mx[qb])))
        q(dsw32(MW,Mx[qb],qb*1024))
    q(bar())
    for qb in range(2):
        for x in range(4): q(dsr128(RD+4*x,MR,qb*1024+16*x))
        q(v2("v_max_f32",Mx[qb],RD,RD+1))
        for x in range(2,16,2): q(vop(f"v_max3_f32 v{Mx[qb]}, v{Mx[qb]}, v{RD+x}, v{RD+x+1}",V(Mx[qb])+V(RD+x)+V(RD+x+1),V(Mx[qb])))
    for kb in range(8):
        for qb in range(2):
            for r in range(4): q(v2("v_sub_f32",Sb(kb,qb)+r,Sb(kb,qb)+r,Mx[qb]),slot=False)
            for r in range(4): q(vexp(Sb(kb,qb)+r),slot=False)
            for p2 in range(2): q(vcvt(Pf(2*(kb//2)+qb)+2*(kb%2)+p2,Sb(kb,qb)+2*p2,Sb(kb,qb)+2*p2+1),slot=False)
    for f in range(8): q(dsw128(vPw,Pf(f),f*1024))
    for qb in range(2):
        for kp in range(4): q(mfma(vLacc,vSEL[qb],Pf(2*kp+qb),None if (kp==0 and qb==0) else vLacc,afile='v'))
    q(dsw32(vLw,vLacc,0)); q(bar())
    for qb in range(2):
        for db in range(2):
            for kp in range(4): q(mfma(vO(0,qb,db),aV(0,kp,db),Pf(2*kp+qb),None if kp==0 else vO(0,qb,db)))
    for j in range(1,4):
        for qb in range(2):
            for k in range(4): q(dsr128(RD+4*k,vPr[j],(2*k+qb)*1024))
            for db in range(2):
                for kp in range(4): q(mfma(vO(0,qb,db),aV(j,kp,db),RD+4*kp,vO(0,qb,db)))
    q(dsr128(vLrd,vLr,0)); q(v2("v_add_f32",vLrd,vLrd,vLrd+1),v2("v_add_f32",vLrd+2,vLrd+2,vLrd+3),v2("v_add_f32",vLrd,vLrd,vLrd+2))
    q(valu(f"v_rcp_f32 v{vR0}, v{vLrd}",V(vLrd),V(vR0),"trans"), vop(f"v_mov_b32 v{vR1}, v{vR0}",V(vR0),V(vR1)),
      valu(f"v_permlane32_swap_b32 v{vR0}, v{vR1}",V(vR0)+V(vR1),V(vR0)+V(vR1),"perm"))
    for qb in range(2):
        for db in range(2):
            for p2 in range(2):
                r=vO(0,qb,db)+2*p2; R=vR0 if qb==0 else vR1
                q(v2("v_mul_f32",r,r,R),v2("v_mul_f32",r+1,r+1,R),vcvt(vOut(qb)+2*db+p2,r,r+1))
        q(vst(vOut(qb),vOst,sO,sO0 if qb==0 else sO1))
    q(salu(f"s_add_u32 s{sO0}, s{sO0}, 8192",S(sO0),S(sO0)), salu(f"s_add_u32 s{sO1}, s{sO1}, 8192",S(sO1),S(sO1)), salu(f"s_add_u32 s{sQso}, s{sQso}, 8192",S(sQso),S(sQso)))
    q(wait(vm=0,lg=0),bar())
    q(salu(f"s_sub_u32 s{sLoop}, s{sLoop}, 1",S(sLoop),S(sLoop)), salu(f"s_cmp_lg_u32 s{sLoop}, 0",S(sLoop),[SCC]), I("s_cbranch_scc1 L_fb_loop","branch",[SCC]))
    return q.out()

def stamp(n):
    if OPT["stamp"]==2: return [raw(f"s_memrealtime s[{76+2*n}:{77+2*n}]")] if n in(0,) else ([raw("s_memrealtime s[98:99]")] if n==1 else [])
    return [raw(f"s_memtime s[{76+4*n}:{77+4*n}]"),raw(f"s_memrealtime s[{78+4*n}:{79+4*n}]")] if OPT["stamp"] else []

def build():
    logs={}
    pro=prologue()+stamp(0)
    def it(i,par,cur,nxt,pv,ep,prefix,**kw):
        lg=[]; r=iteration(i,par,cur,nxt,pv,ep,(i+D<NT) or kw.get("force_dma"),prefix,log=lg,**{k:v for k,v in kw.items() if k!="force_dma"}); logs[i]=lg; return [comment(f"---- iteration {i}")]+r
    U=OPT.get("U",2); nst=40-(T+1); trips=nst//U; rem=nst-trips*U
    lg=[]; i0=[comment("---- start-up steps + iteration 7")]+startup(pro,lg); logs[0]=lg
    i1=[salu(f"s_mov_b32 s{sLoop}, {trips}",[],S(sLoop))]+stamp(1)
    stag=OPT.get("stag",0); ncopy=OPT.get("ncopy",4) if stag else 1
    bodies=[]; head=[]
    for cp in range(ncopy):
        body=[]; prev=i0+i1
        for u in range(U):
            x=it(T+1+u,(T+1+u)%2,1,1,1,1,prev,force_dma=True,loopctl=f"L_loop{cp}" if (u==U-1 and trips>1) else None,baroff=stag*cp); body+=x; prev=x
            if u==0: ia=x
            if u==1: ib=x
        bodies.append(body)
    for cp in range(1,ncopy):
        t=cp*(4//ncopy)
        i1+=[salu(f"s_cmp_ge_u32 s{sW}, {4-t}",S(sW),[SCC]), I(f"s_cbranch_scc1 L_loop{ncopy-cp}","branch",[SCC])]
    allb=[]
    for cp in range(ncopy):
        allb+=([raw(f".p2align {OPT.get('al',6)}")]+[raw("s_nop 0")]*OPT.get("pad",0)+[label(f"L_loop{cp}")] if trips>1 else [])+bodies[cp]
        if cp<ncopy-1: allb+=[I("s_branch L_after","branch")]
    allb+=[label("L_after")]
    for u in range(rem):
        x=it(40-rem+u,(40-rem+u)%2,1,1,1,1,prev,force_dma=True); prev=x; body_rem=(body_rem if u else [])+x
    if not rem: body_rem=[]
    if OPT.get("tail",1):
        i40=stamp(2)+it(40,0,1,0,1,1,prev,ctx={"eager":1})
        lg=[]; i41=[comment("---- drain")]+drain(41,i40,lg); logs[41]=lg; i42=[]
    else:
        i40=stamp(2)+it(40,0,1,0,1,1,prev)
        i41=it(41,1,0,0,1,1,i40)
        i42=it(42,0,0,0,0,1,i41,last_bar=False)
    fin=Seq(i41+i42)
    fin(salu(f"s_mov_b32 s49, {HI:#x}",[],S(49)), salu(f"s_mov_b32 s50, {LO:#x}",[],S(50)))
    fin(valu(f"v_cmp_lt_u32 vcc, s49, v{vLmax}",S(49)+V(vLmax),[VCC]), valu(f"v_cmp_gt_u32 s[52:53], s50, v{vLmin}",S(50)+V(vLmin),S(52,2)))
    fin(nop(4), salu("s_or_b64 vcc, vcc, s[52:53]",[VCC]+S(52,2),[VCC]), nop(4), I("s_cbranch_vccnz L_fallback","branch",[VCC]))
    if OPT["stamp"]==2 and OPT.get("all"):
        fin(raw("s_waitcnt vmcnt(0)"),raw("s_memrealtime s[100:101]"),raw("s_waitcnt lgkmcnt(0)"),raw(f"s_cmp_lg_u32 s{sW}, 0"),raw("s_cbranch_scc1 L_end"))
        fin(raw(f"s_and_b32 s{sDbg+1}, s{sDbg+1}, 0xffff"),raw(f"s_mov_b32 s{sDbg+2}, 4096"),raw(f"s_mov_b32 s{sDbg+3}, 0x20000"))
        fin(raw("s_getreg_b32 s3, hwreg(HW_REG_XCC_ID)"),raw("s_and_b32 s3, s3, 7"),raw("s_and_b32 s55, s62, 0xffffff"),raw("s_lshl_b32 s3, s3, 24"),raw("s_or_b32 s3, s3, s55"),raw("v_mov_b32 v200, s3"))
        for n,r in enumerate((82,98,100)): fin(raw(f"s_sub_u32 s3, s{r}, s62"),raw(f"v_mov_b32 v{201+n}, s3"))
        fin(raw("s_lshl_b32 s3, s2, 4"),raw("v_mov_b32 v220, s3"),raw("s_mov_b64 exec, 1"),raw(f"buffer_store_dwordx4 v[200:203], v220, s[{sDbg}:{sDbg+3}], 0 offen"))
    elif OPT["stamp"]==2:
        fin(raw("s_waitcnt vmcnt(0)"),raw("s_memrealtime s[100:101]"),raw("s_waitcnt lgkmcnt(0)"))
        fin(raw("s_and_b32 s3, s2, 63"),raw("s_cmp_lg_u32 s3, 0"),raw("s_cbranch_scc1 L_end"),raw(f"s_cmp_lg_u32 s{sW}, 0"),raw("s_cbranch_scc1 L_end"))
        fin(raw(f"s_and_b32 s{sDbg+1}, s{sDbg+1}, 0xffff"),raw(f"s_mov_b32 s{sDbg+2}, 256"),raw(f"s_mov_b32 s{sDbg+3}, 0x20000"))
        for n in range(13): fin(raw(f"s_sub_u32 s3, s{76+2*n}, s62"),raw(f"v_mov_b32 v{200+n}, s3"))
        fin(raw("s_lshr_b32 s3, s2, 6"),raw("s_lshl_b32 s3, s3, 6"),raw("v_mov_b32 v220, s3"),raw("s_mov_b64 exec, 1"))
        for n in range(4): fin(raw(f"buffer_store_dwordx4 v[{200+4*n}:{203+4*n}], v220, s[{sDbg}:{sDbg+3}], 0 offen offset:{16*n}"))
    elif OPT["stamp"]:
        fin(*stamp(3)); fin(raw("s_waitcnt vmcnt(0)")); fin(*stamp(4)); fin(raw("s_waitcnt lgkmcnt(0)"))
        sp=OPT.get("spin")
        if sp is not None:
            ex={0:["s_mov_b32 s3, 0"],1:["s_sub_u32 s3, s78, s62","s_lshl_b32 s3, s3, 2"],2:["s_sub_u32 s3, s86, s82"],3:["s_sub_u32 s3, s94, s62"],
                4:["s_sub_u32 s3, s84, s80","s_lshr_b32 s3, s3, 4"],5:["s_sub_u32 s3, s82, s62","s_lshl_b32 s3, s3, 2"]}[sp]
            for e in ex: fin(raw(e))
            fin(raw("s_add_u32 s3, s3, 15000"),label("L_spin"),raw("s_memrealtime s[98:99]"),raw("s_waitcnt lgkmcnt(0)"),raw("s_sub_u32 s98, s98, s62"),raw("s_cmp_lt_u32 s98, s3"),raw("s_cbranch_scc1 L_spin"))
        fin(raw("s_and_b32 s3, s2, 31"),raw("s_cmp_lg_u32 s3, 0"),raw("s_cbranch_scc1 L_end"),raw(f"s_cmp_lg_u32 s{sW}, 0"),raw("s_cbranch_scc1 L_end"))
        fin(raw(f"s_and_b32 s{sDbg+1}, s{sDbg+1}, 0xffff"),raw(f"s_mov_b32 s{sDbg+2}, 256"),raw(f"s_mov_b32 s{sDbg+3}, 0x20000"))
        for n in range(4): fin(raw(f"s_sub_u32 s3, s{76+4*(n+1 if n==3 else n)}, s60"),raw(f"v_mov_b32 v{200+2*n}, s3"),raw(f"s_sub_u32 s3, s{78+4*(n+1 if n==3 else n)}, s62"),raw(f"v_mov_b32 v{201+2*n}, s3"))
        fin(raw("s_lshr_b32 s3, s2, 5"),raw("s_lshl_b32 s3, s3, 5"),raw("v_mov_b32 v208, s3"),raw("s_mov_b64 exec, 1"),
            raw(f"buffer_store_dwordx4 v[200:203], v208, s[{sDbg}:{sDbg+3}], 0 offen"),raw(f"buffer_store_dwordx4 v[204:207], v208, s[{sDbg}:{sDbg+3}], 0 offen offset:16"))
    fin(raw("s_endpgm"))
    fb=fallback()
    static=pro+i0+i1+allb+body_rem+i40+i41+i42+fin.out()+fb+[label("L_end"),raw("s_endpgm")]
    dyns=[pro+i0+i1+b*min(trips,3)+body_rem+i40+i41+i42+fin.out() for b in bodies]
    for rep in range(2):
        for dyn in dyns: resolve_waits(dyn)
    k=[x for x,y in enumerate(fb) if y.text=="L_fb_loop"][0]
    dynf=fb+fb[k:]
    resolve_waits(dynf)
    for name,d in [("main",d) for d in dyns]+[("fallback",dynf)]:
        bad=check_hazards(d)
        for b in bad: print("HAZARD",name,b,file=sys.stderr)
        assert not bad
        print(name,"max outstanding",max_outstanding(d),file=sys.stderr)
    for nm,sq in(("i0",i0),("i1",i1),("ia",ia),("ib",ib),("i40",i40),("i41",i41),("i42",i42)):
        print(nm,"est cycles",estimate(sq),"nops",sum(1 for x in sq if x.kind=="nop"),"instrs",sum(1 for x in sq if states(x)),file=sys.stderr)
    if "log" in OPT: print("\n".join(logs[OPT["log"]]),file=sys.stderr)
    abl=str(OPT.get("abl","")).split("+")
    if abl!=[""]:
        loop=set(map(id,allb+body_rem)) if not OPT.get('abs') else set(map(id,i0[len(i0)//4:]))
        def drop(x):
            if id(x) not in loop: return False
            t=x.text
            return (("st" in abl and x.kind=="vst") or ("dma" in abl and x.kind=="dma") or ("pr" in abl and x.kind=="dsr" and 128<=min(r[1] for r in x.wr)<160)
              or ("qr" in abl and x.kind=="dsr" and 32<=min(r[1] for r in x.wr)<64) or ("pw" in abl and x.kind=="dsw") or ("exp" in abl and t.startswith("v_exp"))
              or ("cvt" in abl and t.startswith("v_cvt")) or ("one" in abl and x.kind=="mfma" and x.name.startswith("ONE")) or ("bar" in abl and x.kind=="bar")
              or ("mul" in abl and t.startswith("v_mul")) or ("valu" in abl and x.kind in VALU_KINDS) or ("qk" in abl and x.kind=="mfma" and x.name.startswith("QK"))
              or ("pv" in abl and x.kind=="mfma" and x.name.startswith("PV")) or ("wait" in abl and x.kind=="wslot") or ("ks" in abl and (t.startswith("v_accvgpr") or t.startswith("v_pk_mul") or t.startswith("v_and") or t.startswith("v_lshlrev"))))
        static=[x for x in static if not drop(x)]
        static=[x for x in static if x.text!="s_cbranch_vccnz L_fallback"]
    if OPT.get("swap"):
        import re as _re
        for x in allb+body_rem:
            if x.kind=="mfma" and any(x.name.startswith(p) for p in OPT["swap"].split("+")):
                m=_re.match(r"(\S+ [^,]+), ([^,]+), ([^,]+), (.*)",x.text); x.text=f"{m[1]}, {m[3]}, {m[2]}, {m[4]}"
        static=[x for x in static if x.text!="s_cbranch_vccnz L_fallback"]
    hdr=open("standalone__mha_softmax__near_ridge.s.ref").read().split("; Override launch")[0]
    txt=hdr+f"""; One workgroup (4 waves) per head.  K (pre-scaled by log2(e)/sqrt(D)) and V^T stay in AGPRs: wave w owns keys
; 128w..128w+127 for S=K.Q^T and output columns 32w..32w+31 for O=V^T.P^T; P and the row sums are exchanged through LDS.
; exp2 uses a zero shift; every row sum is range-checked and the head is redone with the true row max if any leaves the safe range.
; @launch grid=(256,1,1) block=(256,1,1) lds={LDS_BYTES}
.amdgcn_target "amdgcn-amd-amdhsa--gfx950"
.text
.globl {NAME}
.p2align 8
.type {NAME},@function
{NAME}:
"""+emit(static)+f""".section .rodata,"a"
.p2align 6
.amdhsa_kernel {NAME}
  .amdhsa_next_free_vgpr 512
  .amdhsa_next_free_sgpr 102
  .amdhsa_accum_offset 256
  .amdhsa_group_segment_fixed_size 0
  .amdhsa_kernarg_size 48
  .amdhsa_user_sgpr_count 2
  .amdhsa_user_sgpr_kernarg_segment_ptr 1
  .amdhsa_system_sgpr_workgroup_id_x 1
.end_amdhsa_kernel
"""
    return txt

if __name__=="__main__":
    open(sys.argv[1],"w").write(build())
```

```python
import sys, struct, math
from core import *
from sched import *

NAME="standalone__mha_softmax__near_ridge_kernel"
NT=41
QBYTES=335872; KBYTES=131072
OPT=dict(D=4, st="sc0+sc1", ld="nt", stamp=0, wsplit=0, stag=3, ncopy=2)
for a in sys.argv[2:]:
    k,v=a.split("="); OPT[k]=int(v) if v.lstrip("-").isdigit() else v
D=OPT["D"]; NQ=7; T=OPT.get("T",6); LAG=4; LAG0=OPT.get('lag0',3)
STF=(" "+OPT["st"].replace("+"," ")) if OPT["st"]!="none" else ""
LDF=(" "+OPT["ld"].replace("+"," ")) if OPT["ld"]!="none" else ""
QSLOT=8320; PB=[0,33280]; KBASE=PB[T%2]; QBASE=2*33280; QEND=QBASE+NQ*QSLOT; VBASE=QEND; LBASE=VBASE+32768; MBASE=LBASE+1024; LDS_BYTES=LBASE+4096
vQrd,vQrd0,vPw,vPr,vQdma,vOst,vLw,vLr=1,2,3,[None,4,5,6],7,8,9,10
vLmax,vLmin,vR0,vR1,vT=11,12,13,14,15
vLrd,vLacc,vSEL=16,20,[24,28]
vQ=lambda qb,ds:32+qb*16+ds*4
vS=lambda n:64+(n%8)*4
vP=lambda f:96+f*4
vRing=lambda s,k:128+(s%2)*16+k*4
vO=lambda st,qb,db:160+st*16+qb*8+db*4
vOut=lambda qb:192+qb*4
aK=lambda kb,ds:(kb*4+ds)*4
aV=lambda j,kp,db:128+((j*4+kp)*2+db)*4
sQ,sK,sV,sO=4,8,12,16
sW,sLoop,sQso,sQm0,sQrs,sO0,sO1,sT,sC=20,21,22,23,24,25,26,27,28
sWoff=30; sDbg=32
M0=('m0',0); VCC=('vcc',0); SCC=('scc',0)
CSCALE=struct.unpack("<I",struct.pack("<f",math.log2(math.e)/math.sqrt(128.0)))[0]
def bf16(x):
    u=struct.unpack("<I",struct.pack("<f",x))[0]; return (u+0x7fff+((u>>16)&1))>>16
CF=math.log2(math.e)/math.sqrt(128.0); CHI=bf16(CF); CLO=bf16(CF-struct.unpack("<f",struct.pack("<I",CHI<<16))[0])
HI=(127+48)<<23

def dsr128(dst,addr,off,file='v',name=None): return I(f"ds_read_b128 {rs(file,dst,4)}, v{addr} offset:{off}","dsr",V(addr),[(file,dst+i) for i in range(4)],name=name)
def dsw128(addr,src,off): return I(f"ds_write_b128 v{addr}, {rs('v',src,4)} offset:{off}","dsw",V(addr)+V(src,4),[],cost=20)
def dsw64(addr,src,off): return I(f"ds_write_b64 v{addr}, {rs('v',src,2)} offset:{off}","dsw",V(addr)+V(src,2),[],cost=12)
def dsw32(addr,src,off): return I(f"ds_write_b32 v{addr}, v{src} offset:{off}","dsw",V(addr)+V(src),[],cost=8)
def dma(voff,srd,soff,off,flag=LDF): return I(f"buffer_load_dwordx4 v{voff}, s[{srd}:{srd+3}], s{soff} offen offset:{off}{flag} lds","dma",V(voff)+S(srd,4)+S(soff)+[M0],[])
def vld(dst,voff,srd,soff,off,flag=LDF): return I(f"buffer_load_dwordx4 {rs('v',dst,4)}, v{voff}, s[{srd}:{srd+3}], s{soff} offen offset:{off}{flag}","vld",V(voff)+S(srd,4)+S(soff),V(dst,4))
def vst(src,voff,srd,soff,flag=STF): return I(f"buffer_store_dwordx4 {rs('v',src,4)}, v{voff}, s[{srd}:{srd+3}], s{soff} offen{flag}","vst",V(src,4)+V(voff)+S(srd,4)+S(soff),[],meta={"data":V(src,4)})
def vexp(r): return valu(f"v_exp_f32 v{r}, v{r}",V(r),V(r),"trans")
def vcvt(d,a,b): return valu(f"v_cvt_pk_bf16_f32 v{d}, v{a}, v{b}",V(a)+V(b),V(d))
def vcvtp(d,a,b):
    if OPT.get("trunc"): return valu(f"v_perm_b32 v{d}, v{b}, v{a}, s74",V(a)+V(b)+S(74),V(d))
    return vcvt(d,a,b)
def v2(op,d,a,b): return valu(f"{op} v{d}, v{a}, v{b}",V(a)+V(b),V(d))
def bar(**m): return I("s_barrier","bar",meta=m)
def label(t): return I(t,"label")
def comment(t): return I(t,"comment")

def chain_info(n):
    f=(n//2+1)%8; h=n%2
    return f,h,2*(f//2)+h,f%2
def s_block(f,h):
    return (2*((f-1)%8)+h)

class Bld:
    def __init__(s): s.bb=[]; s.ops=[]; s.sops=[]; s.mdeps={}; s.slots=set(); s.tail=[]
    def group(s,g):
        p=len(s.bb); s.bb+=g; s.slots.add(len(s.bb)-1); return p
    def add(s,ins,prio,deps=(),earliest=0,name=None):
        o=Op(ins,prio,deps,earliest,name); s.ops.append(o); return o
    def adds(s,ins,prio,deps=(),name=None,earliest=0):
        o=Op(ins,prio,deps,earliest,name); s.sops.append(o); return o
    def need(s,idx,o): s.mdeps.setdefault(max(idx,0),[]).append(o)
    def barrier(s,gap,deps,**meta):
        o=s.adds(bar(**meta),-1,deps,name="BAR",earliest=max(gap,0)); s.slots.discard(gap); s.slots.add(gap-1); return o
    def run(s,prefix,log=None,overdue=None): return schedule(s.bb,s.ops,s.sops,s.mdeps,prefix,s.slots,s.tail,log,overdue,fill=OPT.get('fill',1))

def qdma_ops(b,t0,deps,tag=None,scc=()):
    m=b.adds(salu(f"s_mov_b32 m0, s{sQm0}",S(sQm0),[M0]),t0-2,deps,name="m0")
    QF=(" "+OPT["lq"].replace("+"," ") if OPT["lq"]!="none" else "") if "lq" in OPT else LDF
    d0=b.add(dma(vQdma,sQ,sQso,0,QF),t0,[m],name="DMA0"); d1=b.add(dma(vQdma,sQ,sQso,1024,QF),t0+4,[d0],name="DMA1")
    d0.ins.cost=d1.ins.cost=OPT.get("dmac",8); d0.ins.tag=d1.ins.tag=tag
    b1=b.adds(salu(f"s_add_u32 s{sQm0}, s{sQm0}, {QSLOT}",S(sQm0),S(sQm0)+[SCC]),t0+10,[m]+list(scc),name="qm+")
    b2=b.adds(salu(f"s_cmp_eq_u32 s{sQm0}, s{sT}",S(sQm0)+S(sT),[SCC]),t0+11,[b1],name="qm?")
    b3=b.adds(salu(f"s_cselect_b32 s{sQm0}, s{sWoff}, s{sQm0}",S(sQm0)+S(sWoff)+[SCC],S(sQm0)),t0+12,[b2],name="qm=")
    b4=b.adds(salu(f"s_add_u32 s{sQso}, s{sQso}, 8192",S(sQso),S(sQso)+[SCC]),t0+14,[d1,b3],name="qso+")
    return d1,b4

def epilogue_ops(b,Ob,loff,t0,tm,dt,ldeps,odeps,prev,scc,sc=1.0,tg=""):
    lr=b.add(dsr128(vLrd,vLr,loff),t0,list(ldeps)+prev.get("L",[]),name="LR"+tg)
    a=b.add(v2("v_add_f32",vLrd,vLrd,vLrd+1),t0+11*sc,[lr],name="La")
    bb_=b.add(v2("v_add_f32",vLrd+2,vLrd+2,vLrd+3),t0+11.5*sc,[lr],name="Lb")
    c=b.add(v2("v_add_f32",vLrd,vLrd,vLrd+2),t0+12*sc,[a,bb_],name="Lc")
    rc=b.add(valu(f"v_rcp_f32 v{vR0}, v{vLrd}",V(vLrd),V(vR0),"trans"),t0+13*sc,[c]+prev.get("M",[]),name="RCP")
    x1=x2=b.add(valu(f"v_max3_u32 v{vLmax}, v{vLmax}, v{vLrd}, v{vR0}",V(vLmax)+V(vLrd)+V(vR0),V(vLmax)),t0+14.5*sc,[rc],name="chk")
    mv=b.add(valu(f"v_mov_b32 v{vR1}, v{vR0}",V(vR0),V(vR1)),t0+14*sc,[rc],name="MOV")
    sw=b.add(valu(f"v_permlane32_swap_b32 v{vR0}, v{vR1}",V(vR0)+V(vR1),V(vR0)+V(vR1),"perm"),t0+15*sc,[mv,x1],name="SWP")
    t=tm; sts=[]; muls=[]
    if OPT.get("pa") and not tg and odeps is None:
        b.ops.remove(mv); b.ops.remove(sw)
        rw=b.add(dsw32(vLw,vR0,3072),t0+14*sc,[rc],name="RW")
        rr=[b.add(dsr128(248+4*(qb),vLr,3072+16*qb),t0+16*sc+qb,[rw],name="RR") for qb in range(2)]
        for qb in range(2):
            for r in range(4):
                m0_=b.add(v2("v_mul_f32",Ob(qb,0)+r,Ob(qb,0)+r,248+4*qb+r),t,[rr[qb]],name=f"M"); t+=dt
                m1_=b.add(v2("v_mul_f32",Ob(qb,1)+r,Ob(qb,1)+r,248+4*qb+r),t,[rr[qb]],name=f"M"); t+=dt
                cv=b.add(vcvt(vOut(qb)+r,Ob(qb,0)+r,Ob(qb,1)+r),t,[m0_,m1_],name="OC"); t+=dt
                st_=b.add(I(f"buffer_store_dword v{vOut(qb)+r}, v0, s[{sO}:{sO+3}], s{sO0 if qb==0 else sO1} offen offset:{r*256}{STF}","vst",V(vOut(qb)+r)+V(0)+S(sO,4)+S(sO0 if qb==0 else sO1),[],cost=8),t,[cv],name="ST")
                if r==3: sts.append(st_)
    for qb in range(2 if not sts else 0):
        cv=[]
        for db in range(2):
            od=[odeps[(qb,db)]] if odeps else []
            for p2 in range(2):
                r=Ob(qb,db)+2*p2; R=vR0 if qb==0 else vR1
                m0_=b.add(v2("v_mul_f32",r,r,R),t,[sw]+od,name=f"M{qb}{db}{2*p2}"); t+=dt
                m1_=b.add(v2("v_mul_f32",r+1,r+1,R),t,[sw]+od,name=f"M{qb}{db}{2*p2+1}"); t+=dt
                muls+=[m0_,m1_]
                cv.append(b.add(vcvt(vOut(qb)+2*db+p2,r,r+1),t,[m0_,m1_]+prev.get("S",[]),name=f"OC{qb}{db}{p2}")); t+=dt
        sts.append(b.add(vst(vOut(qb),vOst,sO,sO0 if qb==0 else sO1),t,cv+prev.get("A",[]),name=f"ST{qb}"+tg)); sts[-1].ins.cost=OPT.get("stc",8)
    e1=b.adds(salu(f"s_add_u32 s{sO0}, s{sO0}, 8192",S(sO0),S(sO0)+[SCC]),t+1,[sts[0]]+list(scc),name="o0+")
    e2=b.adds(salu(f"s_add_u32 s{sO1}, s{sO1}, 8192",S(sO1),S(sO1)+[SCC]),t+2,[sts[1],e1],name="o1+")
    return {"L":[rc,x1,x2],"M":muls,"S":sts,"A":[e2]}

def iter_parts(b, i, par, cur, nxt, pv, ep, dodma, last_bar=True, loopctl=None, baroff=0, Ncustom=None, ctx=None):
    ctx=ctx or {}
    base=len(b.bb)
    def qk(n):
        f,h,kb,qb=chain_info(n)
        return [mfma(vS(n),aK(kb,ds),vQ(qb,ds),None if ds==0 else vS(n),name=f"QK{n}.{ds}") for ds in range(4)]
    so=1-par
    def pvo(qb,db): return [mfma(vO(so,qb,db),aV(0,kp,db),vP(2*kp+qb),None if kp==0 else vO(so,qb,db),name=f"PVo{qb}{db}.{kp}") for kp in range(4)]
    def one(qb): return [mfma(vLacc,vSEL[qb],vP(2*kp+qb),None if (kp==0 and qb==0) else vLacc,afile='v',name=f"ONE{qb}.{kp}") for kp in range(4)]
    sets=[(1,0),(1,1),(2,0),(2,1),(3,0),(3,1)]
    def pvx(s,db):
        j,qb=sets[s]
        return [mfma(vO(so,qb,db),aV(j,kp,db),vRing(s,kp),vO(so,qb,db),name=f"PVx{s}{db}.{kp}") for kp in range(4)]
    N=[("pvo",0,0),("pvo",0,1),("one",0),("pvo",1,0),("pvo",1,1),("one",1)]+[("pvx",s,db) for s in range(6) for db in range(2)]
    if Ncustom: N=[("cus",x) for x in range(18)]
    order=[N[0],N[1]]
    for n in range(16): order+=[("qk",n),N[n+2]]
    if ctx.get("eager"): order[-3],order[-2]=order[-2],order[-3]
    fk=OPT.get("fake",0) if (cur and nxt and pv and ep and not Ncustom) else 0
    if fk:
        order=[]; n=0; x=0
        while x<18 or n<16:
            order+=N[x:x+fk]; x+=fk
            order+=[("qk",m) for m in range(n,min(n+fk,16))]; n+=fk
    G={}; pos={}
    for key in order:
        if key[0]=="qk":
            n=key[1]
            if n>=14 and not nxt and cur and ctx.get("eager"):
                key=("eone",n-14); g=[mfma(vLacc,vSEL[n-14],vP(2*kp+n-14),None if (kp==0 and n==14) else vLacc,afile='v',name=f"eONE{n-14}.{kp}") for kp in range(4)]
            elif not (nxt if n>=14 else cur): continue
            else: g=qk(n)
        elif key[0]=="cus":
            g=Ncustom(key[1])
            if not g: continue
        else:
            if not pv: continue
            g={"pvo":pvo,"one":one,"pvx":pvx}[key[0]](*key[1:])
        if fk and key[0]!="qk" and OPT.get("fakeacc",1):
            d=vO(so,0,0)+4*((N.index(key)//fk)%4)
            for m in g:
                t=m.text.split(", "); t[0]=t[0].split(" ")[0]+f" v[{d}:{d+3}]"; t[3]=f"v[{d}:{d+3}]"; m.text=", ".join(t)
        G[key]=g; pos[key]=b.group(g)
        if key[0]=="cus": ctx["placed"](key[1],pos[key])
    nb=len(b.bb)-base
    nom={}; p=0
    for key in order: nom[key]=p; p+=4
    scale=(nb/136.0) if nb else 0
    P=lambda t:base+t*scale
    def add(ins,prio,deps=(),earliest=0,name=None): return b.add(ins,P(prio),deps,base+int(earliest*scale),name)
    def adds(ins,prio,deps=(),name=None,earliest=0): return b.adds(ins,P(prio),deps,name,base+int(earliest*scale))
    def need(key,k,o): b.need(pos[key]+k,o)
    rel=lambda o:(o.prio-base)/scale
    must_bar=list(ctx.get("must_bar",[]))
    scc=list(ctx.get("scc",[]))
    E={}
    for n in list(range(16))+[-1]:
        if n==15: continue
        if n==-1:
            if not cur: continue
            blk=vS(15); dep=ctx.get("c15",[]); t0=0
        else:
            if ("qk",n) not in G: continue
            blk=vS(n); dep=[G[("qk",n)][3]]; t0=nom[("qk",n)]+6
        for r in range(4): E[(n,r)]=add(vexp(blk+r),t0+2*r,dep,name=f"E{n}.{r}")
    if cur:
        for f in range(8):
            qb=f%2; kp=f//2
            war=[G[k][kp] for k in (("pvo",qb,0),("pvo",qb,1),("one",qb)) if k in G]+ctx.get("pwar",{}).get(f,[])
            C=[]
            for h in range(2):
                n=s_block(f,h)
                en = -1 if n==15 else n
                for p2 in range(2):
                    deps=list(war)
                    if f==0 and h==0: t=1+p2; deps+=ctx.get("e14",[])
                    else:
                        deps+=[E[(en,2*p2)],E[(en,2*p2+1)]]; t=rel(E[(en,2*p2+1)])+1
                    c=add(vcvtp(vP(f)+2*h+p2,vS(n)+2*p2,vS(n)+2*p2+1),t,deps,name=f"C{f}.{2*h+p2}")
                    C.append(c)
                    if ("eone",qb) in G: need(("eone",qb),kp,c)
                    nn=(n+8)%16
                    if ("qk",nn) in G and (n>=14 or n<8): need(("qk",nn),0,c)
            off=PB[par]+f*1024
            if str(f) in str(OPT.get("w32","")).replace("f",""):
                for x in range(4):
                    w=add(dsw32(vPw,vP(f)+x,off+4*x),rel(C[x])+1,[C[x]]+ctx.get("wdep",[]),name=f"W{f}.{x}"); must_bar.append(w)
            elif str(f) in str(OPT.get("w64","")).replace("f",""):
                for x in range(2):
                    w=add(dsw64(vPw,vP(f)+2*x,off+8*x),rel(C[2*x+1])+1,C[2*x:2*x+2]+ctx.get("wdep",[]),name=f"W{f}.{x}"); must_bar.append(w)
            else:
                w=add(dsw128(vPw,vP(f),off),rel(C[3])+1,C+ctx.get("wdep",[]),name=f"W{f}"); must_bar.append(w)
        for n,ds_ in ctx.get("swar",{}).items():
            for o in ds_: need(("qk",n),0,o)
    if pv:
        for s,(j,qb) in enumerate(sets):
            for k in range(4):
                deps=[G[("pvx",s-2,1)][k]] if s>=2 else []
                t=nom[("pvx",s,0)]-14+k if s>=2 else s*4+k
                o=add(dsr128(vRing(s,k),vPr[j],PB[so]+(2*k+qb)*1024),t,deps,name=f"R{s}.{k}")
                need(("pvx",s,0),-1,o); must_bar.append(o)
        lw=add(dsw32(vLw,vLacc,so*512),nom[("one",1)]+8,[G[("one",1)][3]],name="LW"); must_bar.append(lw)
        if ("eone",0) in G:
            need(("eone",0),0,lw)
            must_bar.append(add(dsw32(vLw,vLacc,par*512),0,[G[("eone",1)][3]],name="eLW"))
    if nxt:
        a1=adds(salu(f"s_add_u32 s{sQrs}, s{sQrs}, {QSLOT}",S(sQrs),S(sQrs)+[SCC]),40,scc,name="qr+")
        a2=adds(salu(f"s_cmp_eq_u32 s{sQrs}, {QEND}",S(sQrs),[SCC]),41,[a1],name="qr?")
        a3=adds(salu(f"s_cselect_b32 s{sQrs}, {QBASE}, s{sQrs}",S(sQrs)+[SCC],S(sQrs)),42,[a2],name="qr=")
        scc=[a3]
        upd=add(valu(f"v_add_u32 v{vQrd}, s{sQrs}, v{vQrd0}",S(sQrs)+V(vQrd0),V(vQrd)),80,[a3]+ctx.get("rqprev",[]),name="qupd")
        for qb in range(2):
            lastn=11 if qb==0 else 13
            for ds in range(4):
                deps=[upd]+([G[("qk",lastn)][ds]] if ("qk",lastn) in G else [])+ctx.get("rqdep",[])
                o=add(dsr128(vQ(qb,ds),vQrd,qb*4160+ds*256),nom[("qk",lastn)]+1+ds,deps,name=f"RQ{qb}.{ds}")
                if qb==0: need(("qk",14),-1,o)
    if dodma:
        d1,b4=qdma_ops(b,P(ctx.get("dmaprio",50)),ctx.get("dmadep",[]),scc=scc); scc=[b4]
    if ep:
        e=epilogue_ops(b,lambda qb,db:vO(par,qb,db),par*512,P(-1),P(OPT.get("ept",24)),OPT.get("epdt",3.2)*scale,[],None,{},scc,sc=scale); scc=e["A"]
    if "late" in ctx: scc=ctx["late"](scc,must_bar)
    if loopctl:
        c1=adds(salu(f"s_sub_u32 s{sLoop}, s{sLoop}, 1",S(sLoop),S(sLoop)+[SCC]),128,scc,name="lp-",earliest=128)
        c2=adds(salu(f"s_cmp_lg_u32 s{sLoop}, 0",S(sLoop),[SCC]),129,[c1],name="lp?",earliest=129)
        b.tail=[I(f"s_cbranch_scc1 {loopctl}","branch",[SCC])]
    b.slots.discard(base+nb-1)
    if last_bar: b.barrier(base+nb-1-baroff,must_bar,keep_dma=2*(D-2),all_ds=1)

def iteration(i, par, cur, nxt, pv, ep, dodma, prefix, log=None, **kw):
    b=Bld(); iter_parts(b,i,par,cur,nxt,pv,ep,dodma,**kw); return b.run(prefix,log)

def drain(i,prefix,log):
    b=Bld(); so=(i-1)%2; par=i%2
    ring=[128,144,64,80,32,48]; last={}
    for qb in range(2):
        for j in range(4):
            s_=qb*3+j-1
            for db in range(2):
                d=vO(so,qb,db)
                g=[mfma(d,aV(j,kp,db),vP(2*kp+qb) if j==0 else ring[s_]+4*kp,None if (j==0 and kp==0) else d,name=f"PV{qb}{j}{db}.{kp}") for kp in range(4)]
                p=b.group(g); last[(qb,db)]=g[3]
                if j and db==0:
                    for k in range(4): b.need(p-1,b.add(dsr128(ring[s_]+4*k,vPr[j],PB[so]+(2*k+qb)*1024),s_*2+k/2,name=f"R{s_}.{k}"))
    e=epilogue_ops(b,lambda qb,db:vO(par,qb,db),par*512,-1,10,0.7,[],None,{},[],sc=0.5)
    epilogue_ops(b,lambda qb,db:vO(so,qb,db),so*512,20,34,0.7,[],last,e,e["A"],sc=0.3,tg="z")
    return b.run(prefix,log)

vOs=[80,112][:T-5]+[vO(T%2,0,0),200,216,232,vO(1-T%2,0,0)]
vLs=lambda t:248+t
sKo=64
sVm=72
vKA,vVA,vTB,vTD=255,0,192,15
def kdma_units(c):
    u=[]
    for pr in range(4):
        for n in range(2):
            d=dma(vQdma,sK,45,n*1024); d.tag=f"K{c}"
            u.append(([salu(f"s_add_u32 m0, s54, {(pr//2)*4160+(pr%2)*2080}",S(54),[M0,SCC]), salu(f"s_add_u32 s45, s44, {c*8192+pr*2048}",S(44),S(45)+[SCC])] if n==0 else [])+[d])
    return u
def qdma_units(t):
    d0=dma(vQdma,sQ,46,0); d1=dma(vQdma,sQ,46,1024); d0.tag=d1.tag=f"Q{t}"
    return [[salu(f"s_add_u32 m0, s{sWoff}, {(t%NQ)*QSLOT}",S(sWoff),[M0,SCC]),salu(f"s_mov_b32 s46, {t*8192}",[],S(46)),d0],[d1]]
def vdma_units(c):
    u=[]
    for hf in range(2):
        for n in range(4):
            d=dma(vVA,sV,sKo+2*c+hf,n*1024); d.tag=f"V{c}"
            u.append(([salu(f"s_mov_b32 m0, s{sVm+hf}",S(sVm+hf),[M0])] if n==0 else [])+[d])
    return u
flat=lambda u:[x for y in u for x in y]
STREAM=kdma_units(0)+qdma_units(0)+qdma_units(1)+qdma_units(2)+vdma_units(0)+flat([qdma_units(t) for t in range(3,T)])+kdma_units(1)
NPRO=OPT.get("npro",20)
def kread(c):
    o=[dsr128(aK(2*c+h,ds),vKA,h*4160+ds*256,file='a') for h in range(2) for ds in range(4)]
    for x in o: x.meta["tags"]={f"K{c}"}
    return o
aSC=lambda lo,half:aV(lo,3,half)
vKT=[192,196,vLrd]
def ksops(c,j):
    a=aK(2*c+j//8,(j//2)%4)+2*(j%2); d=vKT[j%3]
    return [vcvt(d,d,d+1),vcvt(d+1,d+2,d+3)]+[vop(f"v_accvgpr_write_b32 a{a+x}, v{d+x}",V(d+x),A(a+x)) for x in range(2)]
def kscale(c,extra=None):
    o=[]
    for j in range(16):
        a=aK(2*c+j//8,(j//2)%4); d=vKT[j%3]; x=ksops(c,j-2) if j>=2 else [nop(2),None,nop(2),None]
        if j%2==0: o.append(waitslot())
        o+=[mfma(d,aSC(0,j%2),a,None,bfile='a',name="KSh")]+(extra(j) if extra else [])+x[:2]+[mfma(d,aSC(1,j%2),a,d,bfile='a',name="KSl")]+x[2:]
    return [i for i in o if i is not None]
def startup(prefix,log,off=0):
    b=Bld(); NS=4*T
    Sb=lambda n:64+(n%4)*4
    OWN=OPT.get("own",1) and T<=6
    Pw=lambda k,qb:96+((k%(4 if OWN else 2))*2+qb)*4
    ent=lambda k,qb:PB[T%2 if 3*T<=k<NS-LAG else 1-T%2]+((k%4)*2+qb)*1024
    assert all(k%4 for k in range(3*T,NS-LAG))
    pvstep=lambda k:k+(LAG0 if k<3*T else LAG)
    pvof={pvstep(k):k for k in range(NS)}
    QK={}; PV={}; ONE={}; start={}; end={}; posQ={}; posP={}; posO={}
    def pvg(k,qb,db):
        c,t=divmod(k,T); d=vOs[t]+qb*8+db*4
        return [mfma(d,aV(j,c,db),Pw(k,qb) if (OWN and j==0) else vRing(2*k+qb,j),None if (c==0 and j==0) else d,name=f"PV{k}.{qb}{db}.{j}") for j in range(4)]
    def oneg(k): return [mfma(vLacc,vSEL[0],Pw(k,0),None,afile='v',name=f"ONE{k}.0"),mfma(vLacc,vSEL[1],Pw(k,1),vLacc,afile='v',name=f"ONE{k}.1")]
    for k in range(NS):
        c,t=divmod(k,T)
        start[k]=len(b.bb)
        for ch in range(4):
            kb=2*c+ch%2; qb=ch//2; n=4*k+ch
            QK[(k,ch)]=[mfma(Sb(n),aK(kb,ds),vQ(qb,ds),None if ds==0 else Sb(n),name=f"QK{k}.{ch}.{ds}") for ds in range(4)]
            posQ[(k,ch)]=b.group(QK[(k,ch)])
            if k in pvof:
                key=(pvof[k],ch//2,ch%2); PV[key]=pvg(*key); posP[key]=b.group(PV[key])
            if ch==2 and k>=1: ONE[k-1]=oneg(k-1); posO[k-1]=b.group(ONE[k-1])
        if k==NS-1:
            for n in(14,15):
                f,h,kb,qb=chain_info(n)
                QK[("pre",n)]=[mfma(vS(n),aK(kb,ds),vQ(qb,ds),None if ds==0 else vS(n),name=f"QKp{n}.{ds}") for ds in range(4)]
                posQ[("pre",n)]=b.group(QK[("pre",n)])
        end[k]=len(b.bb)-1
    cus={}
    x=0
    for k in range(NS-LAG,NS):
        for qb in range(2):
            for db in range(2):
                PV[(k,qb,db)]=pvg(k,qb,db); cus[x]=("pv",(k,qb,db)); x+=1
                if x==3: ONE[NS-1]=oneg(NS-1); cus[x]=("one",NS-1); x+=1
    def Ncustom(x):
        if x not in cus: return None
        return PV[cus[x][1]] if cus[x][0]=="pv" else ONE[cus[x][1]]
    def placed(x,p):
        (posP if cus[x][0]=="pv" else posO)[cus[x][1]]=p
    BAR={}; W={}; C={}; LA={}; LW={}; RQ={}; TR={}; E={}
    bdeps={k:[] for k in range(NS)}; btags={k:set() for k in range(NS)}; bneed={k:[] for k in range(NS)}
    for k in range(NS): BAR[k]=b.barrier(end[k]-off,[],tags=btags[k],need=set())
    def bneeds(k,o): BAR[k].deps.append(o); BAR[k].ins.meta["need"].add(id(o.ins))
    for k in range(1,NS): BAR[k].deps.append(BAR[k-1])
    state={"scc":[],"dma":[],"ep":{}}
    def softmax(k):
        c,t=divmod(k,T)
        for ch in range(4):
            n=4*k+ch; qb=ch//2; h=ch%2
            for r in range(4): E[(k,ch,r)]=b.add(vexp(Sb(n)+r),posQ[(k,ch)]+6+2*r,[QK[(k,ch)][3]],name=f"E{k}.{ch}.{r}")
            for p2 in range(2):
                deps=[E[(k,ch,2*p2)],E[(k,ch,2*p2+1)]]
                if OWN:
                    if k>=4: deps+=[ONE[k-4][qb],W[(k-4,qb)],PV[(k-4,qb,0)][0],PV[(k-4,qb,1)][0]]
                elif k>=2: deps+=[ONE[k-2][qb],W[(k-2,qb)]]
                o=b.add(vcvtp(Pw(k,qb)+2*h+p2,Sb(n)+2*p2,Sb(n)+2*p2+1),E[(k,ch,2*p2+1)].prio+1,deps,name=f"C{k}.{ch}.{p2}")
                C[(k,ch,p2)]=o
                if k+1<NS: b.need(posQ[(k+1,ch)],o)
            if h==1:
                W[(k,qb)]=b.add(dsw128(vPw,Pw(k,qb),ent(k,qb)),C[(k,ch,1)].prio+1,[C[(k,cc,pp)] for cc in(ch-1,ch) for pp in range(2)]+([BAR[pvstep(k-4)]] if (k>=4 and pvstep(k-4)<k and ent(k,0)==ent(k-4,0)) else [])+([BAR[k-3]] if k>NS-LAG else []),name=f"W{k}.{qb}")
                if k+1<NS: bneeds(k+1,W[(k,qb)])
    for k in range(NS): softmax(k)
    def one_ops(k):
        c,t=divmod(k,T)
        for cc in range(4):
            for pp in range(2): b.need(posO[k],C[(k,cc,pp)])
        if k>=1: b.need(posO[k],LA[k-1])
        ins=valu(f"v_mov_b32 v{vLs(t)}, v{vLacc}",V(vLacc),V(vLs(t))) if c==0 else v2("v_add_f32",vLs(t),vLs(t),vLacc)
        LA[k]=b.add(ins,posO[k]+6,[ONE[k][1]],name=f"LA{k}")
        if c==3:
            LW[t]=b.add(dsw32(vLw,vLs(t),((T-1)%2)*512 if t==T-1 else 1024+t*512),posO[k]+8,[LA[k]],name=f"LW{t}")
            if k+1<NS: bneeds(k+1,LW[t])
    for k in range(NS-1): one_ops(k)
    def preads(k):
        for qb in range(2):
            for j in range(1 if OWN else 0,4):
                deps=[BAR[k+1]]+([PV[(k-1,qb,1)][j]] if k>=1 else [])
                o=b.add(dsr128(vRing(2*k+qb,j),vPw if j==0 else vPr[j],ent(k,qb)),posP[(k,qb,0)]-OPT.get('rlead',12)+j,deps,name=f"R{k}.{qb}.{j}")
                b.need(posP[(k,qb,0)]-1,o); state.setdefault("R",[]).append(o)
    for k in range(NS-LAG): preads(k)
    for k in range(NS+1):
        t=k%T if k<NS else T%NQ
        for qb in range(2):
            for ds in range(4):
                deps=[QK[(k-1,2*qb+1)][ds]] if k>=1 else []
                if 2<=k<T: deps.append(BAR[k-2]); btags[k-2].add(f"Q{k}")
                if k==NS: deps.append(BAR[NS-2]); btags[NS-2].add(f"Q{T}")
                pr=(posQ[(k-1,2*qb+1)]+1+ds) if k>=1 else 14+4*qb+ds
                o=b.add(dsr128(vQ(qb,ds),vQrd,t*QSLOT+qb*4160+ds*256),pr,deps,name=f"RQ{k}.{qb}.{ds}"); RQ[(k,qb,ds)]=o
                if k<NS: b.need(posQ[(k,2*qb)]-1,o)
                elif qb==0: b.need(posQ[("pre",14)]-1,o)
    btags[NS-1].add(f"Q{T+1}")
    state["chain"]=[]; hard={0,1}
    def issue(units,where,deps,nm):
        for u,(k,fr) in zip(units,where):
            tt=int(start[k]+fr*(end[k]-start[k])); prev=list(deps)+state["chain"]+state["scc"]
            nd=[x.kind for x in u].index("dma")
            for x,ins in enumerate(u):
                if ins.kind=="salu": o=b.adds(ins,tt+x-nd-3,prev,name="s"+nm,earliest=tt+x-nd-3 if x<nd else 0)
                else: o=b.add(ins,tt,prev,earliest=tt,name=nm); ins.cost=OPT.get("sdmac",8)
                prev=[o]
            state["chain"]=prev; state["scc"]=prev
            if k in hard: BAR[k].deps.append(prev[0])
    def spread(n,k0,per):
        w=[]; k=k0
        while len(w)<n:
            m=min(per,n-len(w)); w+=[(k,(x+0.5)/per) for x in range(m)]; k+=1
        return w
    kchain=[]
    def extra(j):
        o=flat(STREAM[12+(NPRO-12)*j//16:12+(NPRO-12)*(j+1)//16])
        if j==9: o+=[waitslot(),bar(tags={"Q0","Q1"},need=set())]
        if 10<=j<14: o+=[RQ[(0,(j-10)//2,2*(j%2)+x)].ins for x in range(2)]
        return o
    for qb in range(2):
        for ds in range(4): o=RQ[(0,qb,ds)]; b.ops.remove(o); o.done=True; o.gap=-1
    ks0=b.add([waitslot()]+kread(0)+kscale(0,extra)+[waitslot()],0,[],name="KS0"); b.need(0,ks0)
    rest=STREAM[NPRO:]
    n0=OPT.get("n0",4); n1=OPT.get("n1",10)
    w=[(0,(x+0.5)/n0) for x in range(n0)]+[(1,OPT.get('f1',30)/100+0.5*x/n1) for x in range(n1)]
    w=w[:len(rest)]; w+=spread(len(rest)-len(w),2,2)
    issue(rest,w,[ks0],"D")
    lastk=w[-1][0]
    for c in range(4):
        s1=pvstep(c*T)-1
        btags[s1-1].add(f"V{c}")
        p0=start[c*T]
        if c==0: ks=ks0
        else:
            kr=[b.add(ins,p0-14+x,kchain,earliest=p0-16,name=f"KR{c}") for x,ins in enumerate(kread(c))]
            ks=b.add(kscale(c),p0,kr+state["TR"],name=f"KS{c}"); b.need(p0,ks)
        aw=[]
        for j in(14,15):
            x=ksops(c,j); prev=[ks]
            for n,ins in enumerate(x): o=b.add(ins,p0-8+j-14+n*0.1,prev,name="Kx"); prev=[o]; aw.append(o); b.need(posQ[(c*T,1)],o)
        state["KS"]=aw
        if 1<=c<3: issue(kdma_units(c+1),spread(8,c*T,OPT.get("kper",6)),[ks],f"KD{c+1}")
        kchain=state["chain"]
        state["TR"]=[]
        for j in range(4):
            r=vPw if j==0 else vPr[j]
            tb=b.add(v2("v_add_u32",vTB+j,vTD,r),start[s1-1]+j,state.get("KS",[]),earliest=start[s1-1],name="TB")
            for db in range(2):
                for hf in range(2):
                    a=aV(j,c,db)+2*hf
                    o=b.add(I(f"ds_read_b64_tr_b16 a[{a}:{a+1}], v{vTB+j} offset:{hf*4096+8*db}","dsr",V(vTB+j),A(a,2)),start[s1]+j*4+db*2+hf,[BAR[s1-1],tb],name=f"TR{c}")
                    b.need(posP[(c*T,0,0)]-1,o); bneeds(s1,o); state["TR"].append(o)
        if c<3: issue(vdma_units(c+1),(spread(8,max(s1+1,lastk,OPT.get("v1",0)),OPT.get("v1per",6)) if c==0 else spread(8,s1+1,OPT.get("vper",6))),[BAR[s1]],f"VD{c+1}")
    state["ep"]={"L":state["KS"],"S":state["TR"]}
    for x in range(D):
        t=T+x; k=min(max(3*T+1+t-NQ,3*T-1+x),NS-1)
        issue(qdma_units(t),[(k,0.25),(k,0.6)],[BAR[3*T+t-NQ]] if t>=NQ else [],"QD")
    chain=state["chain"]
    def ep(t,t0,tm,dt,scc):
        k=3*T+t
        od={(qb,db):PV[(k,qb,db)][3] for qb in range(2) for db in range(2)}
        e=epilogue_ops(b,lambda qb,db:vOs[t]+qb*8+db*4,1024+t*512,t0,tm,dt,[BAR[k+1]],od,state["ep"],scc,sc=0.5,tg=f"t{t}")
        state["ep"]=e; return e
    eps={}; BARX=[]
    for t in range(T-LAG-1+0):
        k=3*T+t+LAG
        eps[t]=ep(t,start[k]+8,start[k]+20,1.3,state["scc"]); state["scc"]=eps[t]["A"]
    if T>=6:
        for o in eps[0]["M"]+eps[0]["S"]: b.need(posQ[("pre",14)],o)
    e14=[b.add(vexp(vS(14)+r),posQ[("pre",14)]+6+2*r,[QK[("pre",14)][3]],name=f"Ep{r}") for r in range(4)]
    def late(scc,must_bar):
        BAR[NS]=b.barrier(end[NS-1]+1+OPT.get("barx",23)+3-off,[BAR[NS-1]],need=set())
        for qb in range(2): bneeds(NS,W[(NS-1,qb)])
        BARX.append(BAR[NS])
        for k in range(NS-LAG,NS): preads(k)
        must_bar+=state["R"][-(6 if OWN else 8)*LAG:]
        one_ops(NS-1); must_bar.append(LW[T-1])
        for t in range(T-LAG-1,T-1):
            k=3*T+t
            p=posP[(k,0,0)] if k>=NS-LAG else end[NS-1]-8
            eps[t]=ep(t,p-6,p+10,1.2,scc); scc=eps[t]["A"]
        return scc
    last=NS-1
    ctx=dict(dmaprio=5,placed=placed,late=late,scc=state["scc"],c15=[QK[("pre",15)][3]],e14=e14,dmadep=chain+[BAR[last]],
             must_bar=[W[(last,0)],W[(last,1)]],wdep=[BAR[last]],rqdep=[BAR[last]],rqprev=[RQ[(NS,qb,ds)] for qb in range(2) for ds in range(4)],
             pwar={f:[ONE[NS-4+f//2][f%2],W[(NS-4+f//2,f%2)],PV[(NS-4+f//2,f%2,0)][0],PV[(NS-4+f//2,f%2,1)][0]] for f in range(8)} if OWN else
                  {0:[ONE[last-1][0],W[(last-1,0)]],1:[ONE[last-1][1],W[(last-1,1)]],2:[ONE[last][0],W[(last,0)]],3:[ONE[last][1],W[(last,1)]],
                   **({f:eps[1]["M"]+eps[1]["S"] for f in range(4,8)} if T>=7 else {})},
             swar={n:[C[(last,n,pp)] for pp in range(2)] for n in range(4)})
    iter_parts(b,T,T%2,1,1,0,0,1,Ncustom=Ncustom,ctx=ctx,baroff=off)
    b.sops[-1].deps.append(BAR[NS])
    for ds in range(4): b.need(end[last]+1+8-1,RQ[(NS,1,ds)])
    res=b.run(prefix,log,overdue=OPT.get("od",3))
    if OPT["stamp"]==2 and not OPT.get("ps"):
        p0=OPT.get('p0'); pts=[2,3,6,9,13,16,20,23,27] if p0 is None else list(range(p0,p0+9)); o=[]
        for x in res:
            o.append(x)
            for n,k in enumerate(pts):
                if x is BAR[k].ins: o.append(raw(f"{'s_memtime' if OPT.get('cyc') else 's_memrealtime'} s[{78+2*n}:{79+2*n}]"))
        res=o
    if OPT.get("seg"):
        idx=[n for n,x in enumerate(res) if x.kind=="bar"]
        print("step est:",[estimate(res[a:z]) for a,z in zip(idx,idx[1:])],file=sys.stderr)
    return res

class Seq:
    def __init__(s,prefix=()): s.o=list(prefix); s.n0=len(s.o)
    def __call__(s,*ins,slot=True):
        for i in ins:
            if slot and i.kind not in("label","comment","salu","wait","branch","raw","nop"): s.o.append(waitslot())
            k=hazard_need(s.o,i)
            if k>0: s.o.append(nop(k))
            s.o.append(i)
    def out(s): return s.o[s.n0:]

def vop(t,rd,wr): return valu(t,rd,wr)
def prologue():
    q=Seq()
    q(salu("s_cmp_ge_u32 s2, 256",S(2),[SCC]), I("s_cbranch_scc1 L_end","branch",[SCC]))
    if OPT["stamp"]: q(raw("s_memtime s[60:61]"),raw("s_memrealtime s[62:63]"),raw(f"s_load_dwordx2 s[{sDbg}:{sDbg+1}], s[0:1], 32"))
    q(raw("s_load_dwordx4 s[36:39], s[0:1], 0"), raw("s_load_dwordx4 s[40:43], s[0:1], 16"))
    L,Q_,G_,T1,T2,T3=200,201,202,203,204,205
    if OPT.get("warm",2):
        q(raw("s_getpc_b64 s[56:57]"), label("L_pc"), raw("s_and_b32 s57, s57, 0xffff"), raw("s_mov_b32 s58, L_end-L_pc"), raw("s_mov_b32 s59, 0x20000"))
        q(vop(f"v_lshlrev_b32 v{T2}, 7, v0",V(0),V(T2)))
    def warm(ks):
        for k in ks:
            q(raw(f"s_mov_b32 s55, {k*32768}"))
            q(I(f"buffer_load_dword v{240+k}, v{T2}, s[56:59], s55 offen","vld",V(T2),V(240+k)),slot=False)
    nw=OPT.get("warm",2); we=OPT.get("wearly",1)
    warm(range(min(we,nw)))
    q(vop(f"v_and_b32 v{L}, 63, v0",V(0),V(L)), vop(f"v_lshrrev_b32 v{T1}, 6, v0",V(0),V(T1)))
    q(I(f"v_readfirstlane_b32 s{sW}, v{T1}","valu",V(T1),S(sW),meta={"rfl":1}))
    q(vop(f"v_and_b32 v{Q_}, 15, v{L}",V(L),V(Q_)), vop(f"v_lshrrev_b32 v{G_}, 4, v{L}",V(L),V(G_)))
    R_,C_=208,209
    q(vop(f"v_bfe_u32 v{R_}, v{L}, 2, 2",V(L),V(R_)), vop(f"v_and_b32 v{C_}, 3, v{L}",V(L),V(C_)))
    q(salu(f"s_mul_i32 s3, s2, {QBYTES}",S(2),S(3)), salu("s_lshl_b32 s31, s2, 17",S(2),S(31)))
    q(salu(f"s_lshl_b32 s46, s{sW}, 11",S(sW),S(46)), salu(f"s_lshl_b32 s{sKo}, s{sW}, 15",S(sW),S(sKo)))
    q(vop(f"v_lshlrev_b32 v{vQdma}, 8, v{R_}",V(R_),V(vQdma)), vop(f"v_lshl_add_u32 v{vQdma}, v{G_}, 6, v{vQdma}",V(G_)+V(vQdma),V(vQdma)),
      vop(f"v_lshl_add_u32 v{vQdma}, v{C_}, 4, v{vQdma}",V(C_)+V(vQdma),V(vQdma)), vop(f"v_add_u32 v{vQdma}, s46, v{vQdma}",S(46)+V(vQdma),V(vQdma)))
    q(salu(f"s_mul_i32 s47, s{sW}, 2080",S(sW),S(47)), salu(f"s_add_u32 s{sWoff}, s47, {QBASE}",S(47),S(sWoff)))
    q(salu(f"s_sub_u32 s44, s{sKo}, s46",S(sKo)+S(46),S(44)), salu(f"s_mul_i32 s54, s{sW}, {QSLOT}",S(sW),S(54)), salu(f"s_add_u32 s54, s54, {KBASE}",S(54),S(54)))
    for srd,nb in((sQ,QBYTES),(sK,KBYTES),(sV,KBYTES),(sO,QBYTES)):
        q(salu(f"s_mov_b32 s{srd+2}, {nb}",[],S(srd+2)), salu(f"s_mov_b32 s{srd+3}, 0x20000",[],S(srd+3)))
    q(raw("s_waitcnt lgkmcnt(0)"))
    def base(srd,src,off):
        q(salu(f"s_add_u32 s{srd}, s{src}, s{off}",S(src)+S(off),S(srd)), salu(f"s_addc_u32 s{srd+1}, s{src+1}, 0",S(src+1),S(srd+1)),
          salu(f"s_and_b32 s{srd+1}, s{srd+1}, 0xffff",S(srd+1),S(srd+1)))
    ps=lambda n:[raw(f"s_memrealtime s[{78+2*n}:{79+2*n}]")] if OPT.get("ps") else []
    base(sK,38,31); q(*ps(0),*flat(STREAM[:8]),*ps(1),slot=False)
    base(sQ,36,3); q(*flat(STREAM[8:12]),slot=False)
    warm(range(min(we,nw),nw))
    base(sV,40,31); base(sO,42,3)
    for n in range(1,8): q(salu(f"s_add_u32 s{sKo+n}, s{sKo}, {n*4096}",S(sKo),S(sKo+n)))
    q(salu(f"s_add_u32 s{sT}, s47, {QEND}",S(47),S(sT)), salu(f"s_add_u32 s{sQm0}, s{sWoff}, {((T+D)%NQ)*QSLOT}",S(sWoff),S(sQm0)), salu(f"s_mov_b32 s{sQso}, {(T+D)*8192}",[],S(sQso)))
    q(vop(f"v_lshlrev_b32 v{T1}, 2, v{G_}",V(G_),V(T1)), vop(f"v_xor_b32 v{T1}, v{T1}, v{Q_}",V(T1)+V(Q_),V(T1)),
      vop(f"v_lshlrev_b32 v{T1}, 4, v{T1}",V(T1),V(T1)), vop(f"v_lshl_add_u32 v{vVA}, v{G_}, 8, v{T1}",V(G_)+V(T1),V(vVA)))
    q(salu(f"s_lshl_b32 s48, s{sW}, 13",S(sW),S(48)), salu(f"s_add_u32 s{sVm}, s48, {VBASE}",S(48),S(sVm)), salu(f"s_add_u32 s{sVm+1}, s48, {VBASE+4096}",S(48),S(sVm+1)))
    q(*ps(2))
    q(vop(f"v_lshrrev_b32 v{T1}, 2, v{Q_}",V(Q_),V(T1)), vop(f"v_lshlrev_b32 v{vQrd0}, 10, v{T1}",V(T1),V(vQrd0)),
      vop(f"v_lshrrev_b32 v{T1}, 3, v{Q_}",V(Q_),V(T1)), vop(f"v_lshl_add_u32 v{vQrd0}, v{T1}, 5, v{vQrd0}",V(T1)+V(vQrd0),V(vQrd0)),
      vop(f"v_lshl_add_u32 v{vQrd0}, v{C_}, 6, v{vQrd0}",V(C_)+V(vQrd0),V(vQrd0)), vop(f"v_lshl_add_u32 v{vQrd0}, v{G_}, 4, v{vQrd0}",V(G_)+V(vQrd0),V(vQrd0)))
    q(salu(f"s_mov_b32 s{sQrs}, {QBASE+(T%NQ)*QSLOT}",[],S(sQrs))); q(vop(f"v_add_u32 v{vQrd}, {QBASE}, v{vQrd0}",V(vQrd0),V(vQrd)))
    for j in range(4):
        q(salu(f"s_add_u32 s49, s{sW}, {j}",S(sW),S(49)), salu("s_and_b32 s49, s49, 3",S(49),S(49)), salu(f"s_lshl_b32 s{50+j}, s49, 13",S(49),S(50+j)))
        r=vPw if j==0 else vPr[j]
        q(vop(f"v_lshl_add_u32 v{r}, v{L}, 4, s{50+j}",V(L)+S(50+j),V(r)))
    q(salu(f"s_lshl_b32 s49, s{sW}, 6",S(sW),S(49)))
    q(vop(f"v_lshlrev_b32 v{vOst}, 8, v{Q_}",V(Q_),V(vOst)), vop(f"v_lshl_add_u32 v{vOst}, v{G_}, 4, v{vOst}",V(G_)+V(vOst),V(vOst)), vop(f"v_add_u32 v{vOst}, s49, v{vOst}",S(49)+V(vOst),V(vOst)))
    q(vop(f"v_lshrrev_b32 v{T1}, 1, v{G_}",V(G_),V(T1)), vop(f"v_lshl_add_u32 v{T1}, v{T1}, 4, v{Q_}",V(T1)+V(Q_),V(T1)),
      vop(f"v_lshlrev_b32 v{T1}, 4, v{T1}",V(T1),V(T1)), vop(f"v_add_u32 v{vLr}, {LBASE}, v{T1}",V(T1),V(vLr)))
    q(salu(f"s_lshl_b32 s49, s{sW}, 2",S(sW),S(49))); q(vop(f"v_add_u32 v{vLw}, s49, v{vLr}",S(49)+V(vLr),V(vLw)))
    q(vop(f"v_mov_b32 v{vLmax}, 0",[],V(vLmax)))
    q(vop(f"v_mov_b32 v{T1}, 0x3f803f80",[],V(T1)), valu(f"v_cmp_gt_u32 vcc, 8, v{Q_}",V(Q_),[VCC]))
    for r in range(4):
        q(valu(f"v_cndmask_b32 v{vSEL[0]+r}, 0, v{T1}, vcc",V(T1)+[VCC],V(vSEL[0]+r)))
        q(vop(f"v_xor_b32 v{vSEL[1]+r}, v{T1}, v{vSEL[0]+r}",V(T1)+V(vSEL[0]+r),V(vSEL[1]+r)))
    if OPT.get("trunc"): q(salu("s_mov_b32 s74, 0x07060302",[],S(74)))
    q(salu(f"s_mov_b32 s{sO0}, 0",[],S(sO0)), salu(f"s_mov_b32 s{sO1}, 4096",[],S(sO1)))
    q(vop(f"v_lshlrev_b32 v{T1}, 2, v{R_}",V(R_),V(T1)), vop(f"v_add_u32 v{T2}, s49, v{C_}",S(49)+V(C_),V(T2)), vop(f"v_xor_b32 v{T2}, v{T2}, v{T1}",V(T1)+V(T2),V(T2)),
      vop(f"v_lshl_add_u32 v{T3}, v{G_}, 2, v{R_}",V(G_)+V(R_),V(T3)), vop(f"v_lshlrev_b32 v{T3}, 8, v{T3}",V(T3),V(T3)), vop(f"v_lshl_add_u32 v{T3}, v{T2}, 4, v{T3}",V(T2)+V(T3),V(T3)),
      vop(f"v_lshlrev_b32 v{T1}, 4, v{L}",V(L),V(T1)), v2("v_sub_u32",T3,T3,T1), vop(f"v_add_u32 v{vTD}, {VBASE}, v{T3}",V(T3),V(vTD)))
    q(vop(f"v_add_u32 v{vKA}, s54, v{vQrd0}",S(54)+V(vQrd0),V(vKA)))
    q(vop(f"v_lshrrev_b32 v{T1}, 2, v{Q_}",V(Q_),V(T1)), valu(f"v_cmp_eq_u32 vcc, v{T1}, v{G_}",V(T1)+V(G_),[VCC]),
      vop(f"v_and_b32 v{T1}, 1, v{L}",V(L),V(T1)), vop(f"v_lshlrev_b32 v{T1}, 4, v{T1}",V(T1),V(T1)),
      vop(f"v_and_b32 v{T2}, 2, v{L}",V(L),V(T2)), valu(f"v_cmp_eq_u32 s[50:51], 0, v{T2}",V(T2),S(50,2)))
    for lo,cb in enumerate((CHI,CLO)):
        q(vop(f"v_mov_b32 v{T2}, {cb:#x}",[],V(T2)), v2("v_lshlrev_b32",T2,T1,T2), valu(f"v_cndmask_b32 v{T2}, 0, v{T2}, vcc",V(T2)+[VCC],V(T2)),
          valu(f"v_cndmask_b32 v{T3}, 0, v{T2}, s[50:51]",V(T2)+S(50,2),V(T3)), v2("v_xor_b32",T2,T2,T3))
        for half in range(2):
            a=aSC(lo,half)
            q(vop(f"v_accvgpr_write_b32 a{a+2*half}, v{T3}",V(T3),A(a+2*half)), vop(f"v_accvgpr_write_b32 a{a+2*half+1}, v{T2}",V(T2),A(a+2*half+1)),
              vop(f"v_accvgpr_write_b32 a{a+2-2*half}, 0",[],A(a+2-2*half)), vop(f"v_accvgpr_write_b32 a{a+3-2*half}, 0",[],A(a+3-2*half)))
    q(*ps(3))
    return q.out()

def fallback():
    q=Seq()
    q(label("L_fallback"), wait(vm=0,lg=0), bar())
    q(salu(f"s_mov_b32 s{sQso}, 0",[],S(sQso)), salu(f"s_mov_b32 s{sO0}, 0",[],S(sO0)), salu(f"s_mov_b32 s{sO1}, 4096",[],S(sO1)), salu(f"s_mov_b32 s{sLoop}, {NT}",[],S(sLoop)))
    q(vop(f"v_add_u32 v{vQrd}, {QBASE}, v{vQrd0}",V(vQrd0),V(vQrd)))
    MW,MR,T=216,217,218
    q(vop(f"v_mbcnt_lo_u32_b32 v{T}, -1, 0",[],V(T)), vop(f"v_mbcnt_hi_u32_b32 v{T}, -1, v{T}",V(T),V(T)),
      vop(f"v_and_b32 v{MR}, 15, v{T}",V(T),V(MR)), vop(f"v_lshlrev_b32 v{MR}, 6, v{MR}",V(MR),V(MR)), vop(f"v_add_u32 v{MR}, {MBASE}, v{MR}",V(MR),V(MR)),
      vop(f"v_lshrrev_b32 v{T}, 4, v{T}",V(T),V(T)), vop(f"v_lshl_add_u32 v{MW}, v{T}, 2, v{MR}",V(T)+V(MR),V(MW)))
    q(salu(f"s_lshl_b32 s49, s{sW}, 4",S(sW),S(49))); q(vop(f"v_add_u32 v{MW}, s49, v{MW}",S(49)+V(MW),V(MW)))
    q(label("L_fb_loop"))
    q(salu(f"s_mov_b32 m0, s{sWoff}",S(sWoff),[M0])); q(dma(vQdma,sQ,sQso,0),dma(vQdma,sQ,sQso,1024)); q(wait(vm=0),bar())
    for qb in range(2):
        for ds in range(4): q(dsr128(vQ(qb,ds),vQrd,qb*4160+ds*256))
    Sb=lambda kb,qb:64+(kb*2+qb)*4
    Pf=lambda f:128+f*4
    for kb in range(8):
        for qb in range(2):
            for ds in range(4): q(mfma(Sb(kb,qb),aK(kb,ds),vQ(qb,ds),None if ds==0 else Sb(kb,qb)))
    Mx=[220,221]; RD=224
    for qb in range(2):
        q(v2("v_max_f32",Mx[qb],Sb(0,qb),Sb(0,qb)+1))
        regs=[Sb(kb,qb)+r for kb in range(8) for r in range(4)][2:]
        for x in range(0,30,2): q(vop(f"v_max3_f32 v{Mx[qb]}, v{Mx[qb]}, v{regs[x]}, v{regs[x+1]}",V(Mx[qb])+V(regs[x])+V(regs[x+1]),V(Mx[qb])))
        q(dsw32(MW,Mx[qb],qb*1024))
    q(bar())
    for qb in range(2):
        for x in range(4): q(dsr128(RD+4*x,MR,qb*1024+16*x))
        q(v2("v_max_f32",Mx[qb],RD,RD+1))
        for x in range(2,16,2): q(vop(f"v_max3_f32 v{Mx[qb]}, v{Mx[qb]}, v{RD+x}, v{RD+x+1}",V(Mx[qb])+V(RD+x)+V(RD+x+1),V(Mx[qb])))
    for kb in range(8):
        for qb in range(2):
            for r in range(4): q(v2("v_sub_f32",Sb(kb,qb)+r,Sb(kb,qb)+r,Mx[qb]),slot=False)
            for r in range(4): q(vexp(Sb(kb,qb)+r),slot=False)
            for p2 in range(2): q(vcvt(Pf(2*(kb//2)+qb)+2*(kb%2)+p2,Sb(kb,qb)+2*p2,Sb(kb,qb)+2*p2+1),slot=False)
    for f in range(8): q(dsw128(vPw,Pf(f),f*1024))
    for qb in range(2):
        for kp in range(4): q(mfma(vLacc,vSEL[qb],Pf(2*kp+qb),None if (kp==0 and qb==0) else vLacc,afile='v'))
    q(dsw32(vLw,vLacc,0)); q(bar())
    for qb in range(2):
        for db in range(2):
            for kp in range(4): q(mfma(vO(0,qb,db),aV(0,kp,db),Pf(2*kp+qb),None if kp==0 else vO(0,qb,db)))
    for j in range(1,4):
        for qb in range(2):
            for k in range(4): q(dsr128(RD+4*k,vPr[j],(2*k+qb)*1024))
            for db in range(2):
                for kp in range(4): q(mfma(vO(0,qb,db),aV(j,kp,db),RD+4*kp,vO(0,qb,db)))
    q(dsr128(vLrd,vLr,0)); q(v2("v_add_f32",vLrd,vLrd,vLrd+1),v2("v_add_f32",vLrd+2,vLrd+2,vLrd+3),v2("v_add_f32",vLrd,vLrd,vLrd+2))
    q(valu(f"v_rcp_f32 v{vR0}, v{vLrd}",V(vLrd),V(vR0),"trans"), vop(f"v_mov_b32 v{vR1}, v{vR0}",V(vR0),V(vR1)),
      valu(f"v_permlane32_swap_b32 v{vR0}, v{vR1}",V(vR0)+V(vR1),V(vR0)+V(vR1),"perm"))
    for qb in range(2):
        for db in range(2):
            for p2 in range(2):
                r=vO(0,qb,db)+2*p2; R=vR0 if qb==0 else vR1
                q(v2("v_mul_f32",r,r,R),v2("v_mul_f32",r+1,r+1,R),vcvt(vOut(qb)+2*db+p2,r,r+1))
        q(vst(vOut(qb),vOst,sO,sO0 if qb==0 else sO1))
    q(salu(f"s_add_u32 s{sO0}, s{sO0}, 8192",S(sO0),S(sO0)), salu(f"s_add_u32 s{sO1}, s{sO1}, 8192",S(sO1),S(sO1)), salu(f"s_add_u32 s{sQso}, s{sQso}, 8192",S(sQso),S(sQso)))
    q(wait(vm=0,lg=0),bar())
    q(salu(f"s_sub_u32 s{sLoop}, s{sLoop}, 1",S(sLoop),S(sLoop)), salu(f"s_cmp_lg_u32 s{sLoop}, 0",S(sLoop),[SCC]), I("s_cbranch_scc1 L_fb_loop","branch",[SCC]))
    return q.out()

def stamp(n):
    if OPT["stamp"]==2: return [raw(f"s_memrealtime s[{76+2*n}:{77+2*n}]")] if n in(0,) else ([raw("s_memrealtime s[98:99]")] if n==1 else [])
    return [raw(f"s_memtime s[{76+4*n}:{77+4*n}]"),raw(f"s_memrealtime s[{78+4*n}:{79+4*n}]")] if OPT["stamp"] else []

def build():
    logs={}
    pro=prologue()+stamp(0)
    def it(i,par,cur,nxt,pv,ep,prefix,**kw):
        lg=[]; r=iteration(i,par,cur,nxt,pv,ep,(i+D<NT) or kw.get("force_dma"),prefix,log=lg,**{k:v for k,v in kw.items() if k!="force_dma"}); logs[i]=lg; return [comment(f"---- iteration {i}")]+r
    U=OPT.get("U",2); nst=40-(T+1); trips=nst//U; rem=nst-trips*U
    stag=OPT.get("stag",0); ncopy=OPT.get("ncopy",4) if stag else 1
    sst=OPT.get("sstag",0)
    disp=[]
    for cp in range(ncopy-1,0,-1):
        disp+=[salu(f"s_cmp_ge_u32 s{sW}, {cp*(4//ncopy)}",S(sW),[SCC]), I(f"s_cbranch_scc1 L_copy{cp}","branch",[SCC])]
    def mk0(off):
        lg=[]; r=[comment("---- start-up steps + merged iteration")]+startup(pro,lg,off); logs[0]=lg
        return r+[salu(f"s_mov_b32 s{sLoop}, {trips}",[],S(sLoop))]+stamp(1)
    def mkend(prev,off):
        r=[]
        for u in range(rem):
            x=it(40-rem+u,(40-rem+u)%2,1,1,1,1,prev,force_dma=True,baroff=off); prev=x; r+=x
        x=stamp(2)+it(40,0,1,0,1,1,prev,ctx={"eager":1},baroff=off)
        return r,x
    if not sst: i0=mk0(0)
    allb=[]; paths=[]; body_rem=[]
    for cp in range(ncopy):
        if sst: i0=mk0(stag*cp)
        body=[]; prev=i0
        for u in range(U):
            x=it(T+1+u,(T+1+u)%2,1,1,1,1,prev,force_dma=True,loopctl=f"L_loop{cp}" if (u==U-1 and trips>1) else None,baroff=stag*cp); body+=x; prev=x
            if u==0: ia=x
            if u==1: ib=x
        if sst or cp==0: br,i40=mkend(prev,stag*cp if sst else 0)
        paths.append(i0+body*min(trips,3)+br+i40)
        allb+=[label(f"L_copy{cp}")]+(i0 if sst else [])+[raw(f".p2align {OPT.get('al',6)}"),label(f"L_loop{cp}")]+body+(br+i40 if sst else [])
        body_rem+=body+br
        if cp<ncopy-1: allb+=[I("s_branch L_after","branch")]
    allb+=[label("L_after")]
    lg=[]; i41=[comment("---- drain")]+drain(41,i40,lg); logs[41]=lg; i42=[]; i1=[]
    main=pro+(disp if sst else i0+disp)+allb+([] if sst else br+i40)+i41
    fin=Seq(i41+i42)
    fin(salu(f"s_mov_b32 s49, {HI:#x}",[],S(49)))
    fin(valu(f"v_cmp_lt_u32 vcc, s49, v{vLmax}",S(49)+V(vLmax),[VCC]))
    fin(nop(5), I("s_cbranch_vccnz L_fallback","branch",[VCC]))
    if OPT["stamp"]==2 and OPT.get("all"):
        fin(raw("s_waitcnt vmcnt(0)"),raw("s_memrealtime s[100:101]"),raw("s_waitcnt lgkmcnt(0)"),raw(f"s_cmp_lg_u32 s{sW}, 0"),raw("s_cbranch_scc1 L_end"))
        fin(raw(f"s_and_b32 s{sDbg+1}, s{sDbg+1}, 0xffff"),raw(f"s_mov_b32 s{sDbg+2}, 4096"),raw(f"s_mov_b32 s{sDbg+3}, 0x20000"))
        fin(raw("s_getreg_b32 s3, hwreg(HW_REG_XCC_ID)"),raw("s_and_b32 s3, s3, 7"),raw("s_and_b32 s55, s62, 0xffffff"),raw("s_lshl_b32 s3, s3, 24"),raw("s_or_b32 s3, s3, s55"),raw("v_mov_b32 v200, s3"))
        for n,r in enumerate((82,98,100)): fin(raw(f"s_sub_u32 s3, s{r}, s62"),raw(f"v_mov_b32 v{201+n}, s3"))
        fin(raw("s_lshl_b32 s3, s2, 4"),raw("v_mov_b32 v220, s3"),raw("s_mov_b64 exec, 1"),raw(f"buffer_store_dwordx4 v[200:203], v220, s[{sDbg}:{sDbg+3}], 0 offen"))
    elif OPT["stamp"]==2:
        fin(raw("s_waitcnt vmcnt(0)"),raw("s_memrealtime s[100:101]"),raw("s_waitcnt lgkmcnt(0)"))
        fin(raw("s_and_b32 s3, s2, 63"),raw("s_cmp_lg_u32 s3, 0"),raw("s_cbranch_scc1 L_end"),raw(f"s_cmp_lg_u32 s{sW}, 0"),raw("s_cbranch_scc1 L_end"))
        fin(raw(f"s_and_b32 s{sDbg+1}, s{sDbg+1}, 0xffff"),raw(f"s_mov_b32 s{sDbg+2}, 256"),raw(f"s_mov_b32 s{sDbg+3}, 0x20000"))
        for n in range(13): fin(raw(f"s_sub_u32 s3, s{76+2*n}, s62"),raw(f"v_mov_b32 v{200+n}, s3"))
        fin(raw("s_lshr_b32 s3, s2, 6"),raw("s_lshl_b32 s3, s3, 6"),raw("v_mov_b32 v220, s3"),raw("s_mov_b64 exec, 1"))
        for n in range(4): fin(raw(f"buffer_store_dwordx4 v[{200+4*n}:{203+4*n}], v220, s[{sDbg}:{sDbg+3}], 0 offen offset:{16*n}"))
    elif OPT["stamp"]:
        fin(*stamp(3)); fin(raw("s_waitcnt vmcnt(0)")); fin(*stamp(4)); fin(raw("s_waitcnt lgkmcnt(0)"))
        sp=OPT.get("spin")
        if sp is not None:
            ex={0:["s_mov_b32 s3, 0"],1:["s_sub_u32 s3, s78, s62","s_lshl_b32 s3, s3, 2"],2:["s_sub_u32 s3, s86, s82"],3:["s_sub_u32 s3, s94, s62"],
                4:["s_sub_u32 s3, s84, s80","s_lshr_b32 s3, s3, 4"],5:["s_sub_u32 s3, s82, s62","s_lshl_b32 s3, s3, 2"]}[sp]
            for e in ex: fin(raw(e))
            fin(raw("s_add_u32 s3, s3, 15000"),label("L_spin"),raw("s_memrealtime s[98:99]"),raw("s_waitcnt lgkmcnt(0)"),raw("s_sub_u32 s98, s98, s62"),raw("s_cmp_lt_u32 s98, s3"),raw("s_cbranch_scc1 L_spin"))
        fin(raw("s_and_b32 s3, s2, 31"),raw("s_cmp_lg_u32 s3, 0"),raw("s_cbranch_scc1 L_end"),raw(f"s_cmp_lg_u32 s{sW}, 0"),raw("s_cbranch_scc1 L_end"))
        fin(raw(f"s_and_b32 s{sDbg+1}, s{sDbg+1}, 0xffff"),raw(f"s_mov_b32 s{sDbg+2}, 256"),raw(f"s_mov_b32 s{sDbg+3}, 0x20000"))
        for n in range(4): fin(raw(f"s_sub_u32 s3, s{76+4*(n+1 if n==3 else n)}, s60"),raw(f"v_mov_b32 v{200+2*n}, s3"),raw(f"s_sub_u32 s3, s{78+4*(n+1 if n==3 else n)}, s62"),raw(f"v_mov_b32 v{201+2*n}, s3"))
        fin(raw("s_lshr_b32 s3, s2, 5"),raw("s_lshl_b32 s3, s3, 5"),raw("v_mov_b32 v208, s3"),raw("s_mov_b64 exec, 1"),
            raw(f"buffer_store_dwordx4 v[200:203], v208, s[{sDbg}:{sDbg+3}], 0 offen"),raw(f"buffer_store_dwordx4 v[204:207], v208, s[{sDbg}:{sDbg+3}], 0 offen offset:16"))
    fin(raw("s_endpgm"))
    fb=fallback()
    static=main+fin.out()+fb+[label("L_end"),raw("s_endpgm")]
    dyns=[pro+p+i41+fin.out() for p in paths]
    for rep in range(2):
        for dyn in dyns: resolve_waits(dyn)
    k=[x for x,y in enumerate(fb) if y.text=="L_fb_loop"][0]
    dynf=fb+fb[k:]
    resolve_waits(dynf)
    for name,d in [("main",d) for d in dyns]+[("fallback",dynf)]:
        bad=check_hazards(d)
        for b in bad: print("HAZARD",name,b,file=sys.stderr)
        assert not bad
        print(name,"max outstanding",max_outstanding(d),file=sys.stderr)
    for nm,sq in(("i0",i0),("i1",i1),("ia",ia),("ib",ib),("i40",i40),("i41",i41),("i42",i42)):
        print(nm,"est cycles",estimate(sq),"nops",sum(1 for x in sq if x.kind=="nop"),"instrs",sum(1 for x in sq if states(x)),file=sys.stderr)
    if "log" in OPT: print("\n".join(logs[OPT["log"]]),file=sys.stderr)
    abl=str(OPT.get("abl","")).split("+")
    if abl!=[""]:
        loop=set(map(id,body_rem)) if not OPT.get('abs') else set(map(id,i0[len(i0)//4:]))
        def drop(x):
            if id(x) not in loop: return False
            t=x.text
            return (("st" in abl and x.kind=="vst") or ("dma" in abl and x.kind=="dma") or ("pr" in abl and x.kind=="dsr" and 128<=min(r[1] for r in x.wr)<160)
              or ("qr" in abl and x.kind=="dsr" and 32<=min(r[1] for r in x.wr)<64) or ("pw" in abl and x.kind=="dsw") or ("exp" in abl and t.startswith("v_exp"))
              or ("cvt" in abl and t.startswith("v_cvt")) or ("one" in abl and x.kind=="mfma" and x.name.startswith("ONE")) or ("bar" in abl and x.kind=="bar")
              or ("mul" in abl and t.startswith("v_mul")) or ("valu" in abl and x.kind in VALU_KINDS) or ("qk" in abl and x.kind=="mfma" and x.name.startswith("QK"))
              or ("pv" in abl and x.kind=="mfma" and x.name.startswith("PV")) or ("wait" in abl and x.kind=="wslot") or ("ks" in abl and (t.startswith("v_accvgpr") or t.startswith("v_pk_mul") or t.startswith("v_and") or t.startswith("v_lshlrev"))))
        static=[x for x in static if not drop(x)]
        static=[x for x in static if x.text!="s_cbranch_vccnz L_fallback"]
    if OPT.get("fake"): static=[x for x in static if x.text!="s_cbranch_vccnz L_fallback"]
    if OPT.get("swap"):
        import re as _re
        for x in body_rem:
            if x.kind=="mfma" and any(x.name.startswith(p) for p in OPT["swap"].split("+")):
                m=_re.match(r"(\S+ [^,]+), ([^,]+), ([^,]+), (.*)",x.text); x.text=f"{m[1]}, {m[3]}, {m[2]}, {m[4]}"
        static=[x for x in static if x.text!="s_cbranch_vccnz L_fallback"]
    hdr=open("standalone__mha_softmax__near_ridge.s.ref").read().split("; Override launch")[0]
    txt=hdr+f"""; One workgroup (4 waves) per head.  K (pre-scaled by log2(e)/sqrt(D)) and V^T stay in AGPRs: wave w owns keys
; 128w..128w+127 for S=K.Q^T and output columns 32w..32w+31 for O=V^T.P^T; P and the row sums are exchanged through LDS.
; exp2 uses a zero shift; every row sum is range-checked and the head is redone with the true row max if any leaves the safe range.
; @launch grid=(256,1,1) block=(256,1,1) lds={LDS_BYTES}
.amdgcn_target "amdgcn-amd-amdhsa--gfx950"
.text
.globl {NAME}
.p2align 8
.type {NAME},@function
{NAME}:
"""+emit(static)+f""".section .rodata,"a"
.p2align 6
.amdhsa_kernel {NAME}
  .amdhsa_next_free_vgpr 512
  .amdhsa_next_free_sgpr 102
  .amdhsa_accum_offset 256
  .amdhsa_group_segment_fixed_size 0
  .amdhsa_kernarg_size 48
  .amdhsa_user_sgpr_count 2
  .amdhsa_user_sgpr_kernarg_segment_ptr 1
  .amdhsa_system_sgpr_workgroup_id_x 1
.end_amdhsa_kernel
"""
    return txt

if __name__=="__main__":
    open(sys.argv[1],"w").write(build())
```

```python
import sys, struct, math
from core import *
from sched import *

NAME="standalone__mha_softmax__near_ridge_kernel"
NT=41
QBYTES=335872; KBYTES=131072
OPT=dict(D=4, st="sc0+sc1", ld="nt", stamp=0, wsplit=0, stag=3, ncopy=2)
for a in sys.argv[2:]:
    k,v=a.split("="); OPT[k]=int(v) if v.lstrip("-").isdigit() else v
D=OPT["D"]; NQ=7; T=OPT.get("T",5); LAG=OPT.get("lag",3); LAG0=OPT.get('lag0',3)
STF=(" "+OPT["st"].replace("+"," ")) if OPT["st"]!="none" else ""
LDF=(" "+OPT["ld"].replace("+"," ")) if OPT["ld"]!="none" else ""
QSLOT=8320; PB=[0,33280]; KBASE=PB[T%2]; QBASE=2*33280; QEND=QBASE+NQ*QSLOT; VBASE=QEND; LBASE=VBASE+32768; MBASE=LBASE+1024; LDS_BYTES=LBASE+4096
vQrd,vQrd0,vPw,vPr,vQdma,vOst,vLw,vLr=1,2,3,[None,4,5,6],7,8,9,10
vLmax,vLmin,vR0,vR1,vT=11,12,13,14,15
vLrd,vLacc,vSEL=16,20,[24,28]
vQ=lambda qb,ds:32+qb*16+ds*4
vS=lambda n:64+(n%8)*4
vP=lambda f:96+f*4
vRing=lambda s,k:128+(s%2)*16+k*4
vO=lambda st,qb,db:160+st*16+qb*8+db*4
vOut=lambda qb:192+qb*4
aK=lambda kb,ds:(kb*4+ds)*4
aV=lambda j,kp,db:128+((j*4+kp)*2+db)*4
sQ,sK,sV,sO=4,8,12,16
sW,sLoop,sQso,sQm0,sQrs,sO0,sO1,sT,sC=20,21,22,23,24,25,26,27,28
sWoff=30; sDbg=32
M0=('m0',0); VCC=('vcc',0); SCC=('scc',0)
CSCALE=struct.unpack("<I",struct.pack("<f",math.log2(math.e)/math.sqrt(128.0)))[0]
def bf16(x):
    u=struct.unpack("<I",struct.pack("<f",x))[0]; return (u+0x7fff+((u>>16)&1))>>16
CF=math.log2(math.e)/math.sqrt(128.0); CHI=bf16(CF); CLO=bf16(CF-struct.unpack("<f",struct.pack("<I",CHI<<16))[0])
HI=(127+48)<<23

def dsr128(dst,addr,off,file='v',name=None): return I(f"ds_read_b128 {rs(file,dst,4)}, v{addr} offset:{off}","dsr",V(addr),[(file,dst+i) for i in range(4)],name=name)
def dsw128(addr,src,off): return I(f"ds_write_b128 v{addr}, {rs('v',src,4)} offset:{off}","dsw",V(addr)+V(src,4),[],cost=20)
def dsw64(addr,src,off): return I(f"ds_write_b64 v{addr}, {rs('v',src,2)} offset:{off}","dsw",V(addr)+V(src,2),[],cost=12)
def dsw32(addr,src,off): return I(f"ds_write_b32 v{addr}, v{src} offset:{off}","dsw",V(addr)+V(src),[],cost=8)
def dma(voff,srd,soff,off,flag=LDF): return I(f"buffer_load_dwordx4 v{voff}, s[{srd}:{srd+3}], s{soff} offen offset:{off}{flag} lds","dma",V(voff)+S(srd,4)+S(soff)+[M0],[])
def vld(dst,voff,srd,soff,off,flag=LDF): return I(f"buffer_load_dwordx4 {rs('v',dst,4)}, v{voff}, s[{srd}:{srd+3}], s{soff} offen offset:{off}{flag}","vld",V(voff)+S(srd,4)+S(soff),V(dst,4))
def vst(src,voff,srd,soff,flag=STF): return I(f"buffer_store_dwordx4 {rs('v',src,4)}, v{voff}, s[{srd}:{srd+3}], s{soff} offen{flag}","vst",V(src,4)+V(voff)+S(srd,4)+S(soff),[],meta={"data":V(src,4)})
def vexp(r): return valu(f"v_exp_f32 v{r}, v{r}",V(r),V(r),"trans")
def vcvt(d,a,b): return valu(f"v_cvt_pk_bf16_f32 v{d}, v{a}, v{b}",V(a)+V(b),V(d))
def vcvtp(d,a,b):
    if OPT.get("trunc"): return valu(f"v_perm_b32 v{d}, v{b}, v{a}, s74",V(a)+V(b)+S(74),V(d))
    return vcvt(d,a,b)
def v2(op,d,a,b): return valu(f"{op} v{d}, v{a}, v{b}",V(a)+V(b),V(d))
def bar(**m): return I("s_barrier","bar",meta=m)
def label(t): return I(t,"label")
def comment(t): return I(t,"comment")

def chain_info(n):
    f=(n//2+1)%8; h=n%2
    return f,h,2*(f//2)+h,f%2
def s_block(f,h):
    return (2*((f-1)%8)+h)

class Bld:
    def __init__(s): s.bb=[]; s.ops=[]; s.sops=[]; s.mdeps={}; s.slots=set(); s.tail=[]
    def group(s,g):
        p=len(s.bb); s.bb+=g; s.slots.add(len(s.bb)-1); return p
    def add(s,ins,prio,deps=(),earliest=0,name=None):
        o=Op(ins,prio,deps,earliest,name); s.ops.append(o); return o
    def adds(s,ins,prio,deps=(),name=None,earliest=0):
        o=Op(ins,prio,deps,earliest,name); s.sops.append(o); return o
    def need(s,idx,o): s.mdeps.setdefault(max(idx,0),[]).append(o)
    def barrier(s,gap,deps,**meta):
        o=s.adds(bar(**meta),-1,deps,name="BAR",earliest=max(gap,0)); s.slots.discard(gap); s.slots.add(gap-1); return o
    def run(s,prefix,log=None,overdue=None): return schedule(s.bb,s.ops,s.sops,s.mdeps,prefix,s.slots,s.tail,log,overdue,fill=OPT.get('fill',1))

def qdma_ops(b,t0,deps,tag=None,scc=()):
    m=b.adds(salu(f"s_mov_b32 m0, s{sQm0}",S(sQm0),[M0]),t0-2,deps,name="m0")
    QF=(" "+OPT["lq"].replace("+"," ") if OPT["lq"]!="none" else "") if "lq" in OPT else LDF
    d0=b.add(dma(vQdma,sQ,sQso,0,QF),t0,[m],name="DMA0"); d1=b.add(dma(vQdma,sQ,sQso,1024,QF),t0+4,[d0],name="DMA1")
    d0.ins.cost=d1.ins.cost=OPT.get("dmac",8); d0.ins.tag=d1.ins.tag=tag
    b1=b.adds(salu(f"s_add_u32 s{sQm0}, s{sQm0}, {QSLOT}",S(sQm0),S(sQm0)+[SCC]),t0+10,[m]+list(scc),name="qm+")
    b2=b.adds(salu(f"s_cmp_eq_u32 s{sQm0}, s{sT}",S(sQm0)+S(sT),[SCC]),t0+11,[b1],name="qm?")
    b3=b.adds(salu(f"s_cselect_b32 s{sQm0}, s{sWoff}, s{sQm0}",S(sQm0)+S(sWoff)+[SCC],S(sQm0)),t0+12,[b2],name="qm=")
    b4=b.adds(salu(f"s_add_u32 s{sQso}, s{sQso}, 8192",S(sQso),S(sQso)+[SCC]),t0+14,[d1,b3],name="qso+")
    return d1,b4

def epilogue_ops(b,Ob,loff,t0,tm,dt,ldeps,odeps,prev,scc,sc=1.0,tg=""):
    lr=b.add(dsr128(vLrd,vLr,loff),t0,list(ldeps)+prev.get("L",[]),name="LR"+tg)
    a=b.add(v2("v_add_f32",vLrd,vLrd,vLrd+1),t0+11*sc,[lr],name="La")
    bb_=b.add(v2("v_add_f32",vLrd+2,vLrd+2,vLrd+3),t0+11.5*sc,[lr],name="Lb")
    c=b.add(v2("v_add_f32",vLrd,vLrd,vLrd+2),t0+12*sc,[a,bb_],name="Lc")
    rc=b.add(valu(f"v_rcp_f32 v{vR0}, v{vLrd}",V(vLrd),V(vR0),"trans"),t0+13*sc,[c]+prev.get("M",[]),name="RCP")
    x1=x2=b.add(valu(f"v_max3_u32 v{vLmax}, v{vLmax}, v{vLrd}, v{vR0}",V(vLmax)+V(vLrd)+V(vR0),V(vLmax)),t0+14.5*sc,[rc],name="chk")
    mv=b.add(valu(f"v_mov_b32 v{vR1}, v{vR0}",V(vR0),V(vR1)),t0+14*sc,[rc],name="MOV")
    sw=b.add(valu(f"v_permlane32_swap_b32 v{vR0}, v{vR1}",V(vR0)+V(vR1),V(vR0)+V(vR1),"perm"),t0+15*sc,[mv,x1],name="SWP")
    t=tm; sts=[]; muls=[]
    if OPT.get("pa") and not tg and odeps is None:
        b.ops.remove(mv); b.ops.remove(sw)
        rw=b.add(dsw32(vLw,vR0,3072),t0+14*sc,[rc],name="RW")
        rr=[b.add(dsr128(248+4*(qb),vLr,3072+16*qb),t0+16*sc+qb,[rw],name="RR") for qb in range(2)]
        for qb in range(2):
            for r in range(4):
                m0_=b.add(v2("v_mul_f32",Ob(qb,0)+r,Ob(qb,0)+r,248+4*qb+r),t,[rr[qb]],name=f"M"); t+=dt
                m1_=b.add(v2("v_mul_f32",Ob(qb,1)+r,Ob(qb,1)+r,248+4*qb+r),t,[rr[qb]],name=f"M"); t+=dt
                cv=b.add(vcvt(vOut(qb)+r,Ob(qb,0)+r,Ob(qb,1)+r),t,[m0_,m1_],name="OC"); t+=dt
                st_=b.add(I(f"buffer_store_dword v{vOut(qb)+r}, v0, s[{sO}:{sO+3}], s{sO0 if qb==0 else sO1} offen offset:{r*256}{STF}","vst",V(vOut(qb)+r)+V(0)+S(sO,4)+S(sO0 if qb==0 else sO1),[],cost=8),t,[cv],name="ST")
                if r==3: sts.append(st_)
    for qb in range(2 if not sts else 0):
        cv=[]
        for db in range(2):
            od=[odeps[(qb,db)]] if odeps else []
            for p2 in range(2):
                r=Ob(qb,db)+2*p2; R=vR0 if qb==0 else vR1
                m0_=b.add(v2("v_mul_f32",r,r,R),t,[sw]+od,name=f"M{qb}{db}{2*p2}"); t+=dt
                m1_=b.add(v2("v_mul_f32",r+1,r+1,R),t,[sw]+od,name=f"M{qb}{db}{2*p2+1}"); t+=dt
                muls+=[m0_,m1_]
                cv.append(b.add(vcvt(vOut(qb)+2*db+p2,r,r+1),t,[m0_,m1_]+prev.get("S",[]),name=f"OC{qb}{db}{p2}")); t+=dt
        sts.append(b.add(vst(vOut(qb),vOst,sO,sO0 if qb==0 else sO1),t,cv+prev.get("A",[]),name=f"ST{qb}"+tg)); sts[-1].ins.cost=OPT.get("stc",8)
    e1=b.adds(salu(f"s_add_u32 s{sO0}, s{sO0}, 8192",S(sO0),S(sO0)+[SCC]),t+1,[sts[0]]+list(scc),name="o0+")
    e2=b.adds(salu(f"s_add_u32 s{sO1}, s{sO1}, 8192",S(sO1),S(sO1)+[SCC]),t+2,[sts[1],e1],name="o1+")
    return {"L":[rc,x1,x2],"M":muls,"S":sts,"A":[e2]}

def iter_parts(b, i, par, cur, nxt, pv, ep, dodma, last_bar=True, loopctl=None, baroff=0, Ncustom=None, ctx=None):
    ctx=ctx or {}
    base=len(b.bb)
    def qk(n):
        f,h,kb,qb=chain_info(n)
        return [mfma(vS(n),aK(kb,ds),vQ(qb,ds),None if ds==0 else vS(n),name=f"QK{n}.{ds}") for ds in range(4)]
    so=1-par
    def pvo(qb,db): return [mfma(vO(so,qb,db),aV(0,kp,db),vP(2*kp+qb),None if kp==0 else vO(so,qb,db),name=f"PVo{qb}{db}.{kp}") for kp in range(4)]
    def one(qb): return [mfma(vLacc,vSEL[qb],vP(2*kp+qb),None if (kp==0 and qb==0) else vLacc,afile='v',name=f"ONE{qb}.{kp}") for kp in range(4)]
    sets=[(1,0),(1,1),(2,0),(2,1),(3,0),(3,1)]
    def pvx(s,db):
        j,qb=sets[s]
        return [mfma(vO(so,qb,db),aV(j,kp,db),vRing(s,kp),vO(so,qb,db),name=f"PVx{s}{db}.{kp}") for kp in range(4)]
    N=[("pvo",0,0),("pvo",0,1),("one",0),("pvo",1,0),("pvo",1,1),("one",1)]+[("pvx",s,db) for s in range(6) for db in range(2)]
    if Ncustom: N=[("cus",x) for x in range(18)]
    order=[N[0],N[1]]
    for n in range(16): order+=[("qk",n),N[n+2]]
    if ctx.get("eager"): order[-3],order[-2]=order[-2],order[-3]
    fk=OPT.get("fake",0) if (cur and nxt and pv and ep and not Ncustom) else 0
    if fk:
        order=[]; n=0; x=0
        while x<18 or n<16:
            order+=N[x:x+fk]; x+=fk
            order+=[("qk",m) for m in range(n,min(n+fk,16))]; n+=fk
    G={}; pos={}
    for key in order:
        if key[0]=="qk":
            n=key[1]
            if n>=14 and not nxt and cur and ctx.get("eager"):
                key=("eone",n-14); g=[mfma(vLacc,vSEL[n-14],vP(2*kp+n-14),None if (kp==0 and n==14) else vLacc,afile='v',name=f"eONE{n-14}.{kp}") for kp in range(4)]
            elif not (nxt if n>=14 else cur): continue
            else: g=qk(n)
        elif key[0]=="cus":
            g=Ncustom(key[1])
            if not g: continue
        else:
            if not pv: continue
            g={"pvo":pvo,"one":one,"pvx":pvx}[key[0]](*key[1:])
        if fk and key[0]!="qk" and OPT.get("fakeacc",1):
            d=vO(so,0,0)+4*((N.index(key)//fk)%4)
            for m in g:
                t=m.text.split(", "); t[0]=t[0].split(" ")[0]+f" v[{d}:{d+3}]"; t[3]=f"v[{d}:{d+3}]"; m.text=", ".join(t)
        G[key]=g; pos[key]=b.group(g)
        if key[0]=="cus": ctx["placed"](key[1],pos[key])
    nb=len(b.bb)-base
    nom={}; p=0
    for key in order: nom[key]=p; p+=4
    scale=(nb/136.0) if nb else 0
    P=lambda t:base+t*scale
    def add(ins,prio,deps=(),earliest=0,name=None): return b.add(ins,P(prio),deps,base+int(earliest*scale),name)
    def adds(ins,prio,deps=(),name=None,earliest=0): return b.adds(ins,P(prio),deps,name,base+int(earliest*scale))
    def need(key,k,o): b.need(pos[key]+k,o)
    rel=lambda o:(o.prio-base)/scale
    must_bar=list(ctx.get("must_bar",[]))
    scc=list(ctx.get("scc",[]))
    E={}
    for n in list(range(16))+[-1]:
        if n==15: continue
        if n==-1:
            if not cur: continue
            blk=vS(15); dep=ctx.get("c15",[]); t0=0
        else:
            if ("qk",n) not in G: continue
            blk=vS(n); dep=[G[("qk",n)][3]]; t0=nom[("qk",n)]+6
        for r in range(4): E[(n,r)]=add(vexp(blk+r),t0+2*r,dep,name=f"E{n}.{r}")
    if cur:
        for f in range(8):
            qb=f%2; kp=f//2
            war=[G[k][kp] for k in (("pvo",qb,0),("pvo",qb,1),("one",qb)) if k in G]+ctx.get("pwar",{}).get(f,[])
            C=[]
            for h in range(2):
                n=s_block(f,h)
                en = -1 if n==15 else n
                for p2 in range(2):
                    deps=list(war)
                    if f==0 and h==0: t=1+p2; deps+=ctx.get("e14",[])
                    else:
                        deps+=[E[(en,2*p2)],E[(en,2*p2+1)]]; t=rel(E[(en,2*p2+1)])+1
                    c=add(vcvtp(vP(f)+2*h+p2,vS(n)+2*p2,vS(n)+2*p2+1),t,deps,name=f"C{f}.{2*h+p2}")
                    C.append(c)
                    if ("eone",qb) in G: need(("eone",qb),kp,c)
                    nn=(n+8)%16
                    if ("qk",nn) in G and (n>=14 or n<8): need(("qk",nn),0,c)
            off=PB[par]+f*1024
            if str(f) in str(OPT.get("w32","")).replace("f",""):
                for x in range(4):
                    w=add(dsw32(vPw,vP(f)+x,off+4*x),rel(C[x])+1,[C[x]]+ctx.get("wdep",[]),name=f"W{f}.{x}"); must_bar.append(w)
            elif str(f) in str(OPT.get("w64","")).replace("f",""):
                for x in range(2):
                    w=add(dsw64(vPw,vP(f)+2*x,off+8*x),rel(C[2*x+1])+1,C[2*x:2*x+2]+ctx.get("wdep",[]),name=f"W{f}.{x}"); must_bar.append(w)
            else:
                w=add(dsw128(vPw,vP(f),off),rel(C[3])+1,C+ctx.get("wdep",[]),name=f"W{f}"); must_bar.append(w)
        for n,ds_ in ctx.get("swar",{}).items():
            for o in ds_: need(("qk",n),0,o)
    if pv:
        for s,(j,qb) in enumerate(sets):
            for k in range(4):
                deps=[G[("pvx",s-2,1)][k]] if s>=2 else []
                t=nom[("pvx",s,0)]-14+k if s>=2 else s*4+k
                o=add(dsr128(vRing(s,k),vPr[j],PB[so]+(2*k+qb)*1024),t,deps,name=f"R{s}.{k}")
                need(("pvx",s,0),-1,o); must_bar.append(o)
        lw=add(dsw32(vLw,vLacc,so*512),nom[("one",1)]+8,[G[("one",1)][3]],name="LW"); must_bar.append(lw)
        if ("eone",0) in G:
            need(("eone",0),0,lw)
            must_bar.append(add(dsw32(vLw,vLacc,par*512),0,[G[("eone",1)][3]],name="eLW"))
    if nxt:
        a1=adds(salu(f"s_add_u32 s{sQrs}, s{sQrs}, {QSLOT}",S(sQrs),S(sQrs)+[SCC]),40,scc,name="qr+")
        a2=adds(salu(f"s_cmp_eq_u32 s{sQrs}, {QEND}",S(sQrs),[SCC]),41,[a1],name="qr?")
        a3=adds(salu(f"s_cselect_b32 s{sQrs}, {QBASE}, s{sQrs}",S(sQrs)+[SCC],S(sQrs)),42,[a2],name="qr=")
        scc=[a3]
        upd=add(valu(f"v_add_u32 v{vQrd}, s{sQrs}, v{vQrd0}",S(sQrs)+V(vQrd0),V(vQrd)),80,[a3]+ctx.get("rqprev",[]),name="qupd")
        for qb in range(2):
            lastn=11 if qb==0 else 13
            for ds in range(4):
                deps=[upd]+([G[("qk",lastn)][ds]] if ("qk",lastn) in G else [])+ctx.get("rqdep",[])
                o=add(dsr128(vQ(qb,ds),vQrd,qb*4160+ds*256),nom[("qk",lastn)]+1+ds,deps,name=f"RQ{qb}.{ds}")
                if qb==0: need(("qk",14),-1,o)
    if dodma:
        d1,b4=qdma_ops(b,P(ctx.get("dmaprio",50)),ctx.get("dmadep",[]),scc=scc); scc=[b4]
    if ep:
        e=epilogue_ops(b,lambda qb,db:vO(par,qb,db),par*512,P(-1),P(OPT.get("ept",24)),OPT.get("epdt",3.2)*scale,[],None,{},scc,sc=scale); scc=e["A"]
    if "late" in ctx: scc=ctx["late"](scc,must_bar)
    if loopctl:
        c1=adds(salu(f"s_sub_u32 s{sLoop}, s{sLoop}, 1",S(sLoop),S(sLoop)+[SCC]),128,scc,name="lp-",earliest=128)
        c2=adds(salu(f"s_cmp_lg_u32 s{sLoop}, 0",S(sLoop),[SCC]),129,[c1],name="lp?",earliest=129)
        b.tail=[I(f"s_cbranch_scc1 {loopctl}","branch",[SCC])]
    b.slots.discard(base+nb-1)
    if last_bar: b.barrier(base+nb-1-baroff,must_bar,keep_dma=2*(D-2),all_ds=1)

def iteration(i, par, cur, nxt, pv, ep, dodma, prefix, log=None, **kw):
    b=Bld(); iter_parts(b,i,par,cur,nxt,pv,ep,dodma,**kw); return b.run(prefix,log)

def drain(i,prefix,log):
    b=Bld(); so=(i-1)%2; par=i%2
    ring=[128,144,64,80,32,48]; last={}
    for qb in range(2):
        for j in range(4):
            s_=qb*3+j-1
            for db in range(2):
                d=vO(so,qb,db)
                g=[mfma(d,aV(j,kp,db),vP(2*kp+qb) if j==0 else ring[s_]+4*kp,None if (j==0 and kp==0) else d,name=f"PV{qb}{j}{db}.{kp}") for kp in range(4)]
                p=b.group(g); last[(qb,db)]=g[3]
                if j and db==0:
                    for k in range(4): b.need(p-1,b.add(dsr128(ring[s_]+4*k,vPr[j],PB[so]+(2*k+qb)*1024),s_*2+k/2,name=f"R{s_}.{k}"))
    e=epilogue_ops(b,lambda qb,db:vO(par,qb,db),par*512,-1,10,0.7,[],None,{},[],sc=0.5)
    epilogue_ops(b,lambda qb,db:vO(so,qb,db),so*512,20,34,0.7,[],last,e,e["A"],sc=0.3,tg="z")
    return b.run(prefix,log)

vOs=[80,112][:T-LAG-1]+[vO(T%2,0,0)]+[200,216,232][:LAG-1]+[vO(1-T%2,0,0)]
vLs=lambda t:248+t
sKo=64
sVm=72
vKA,vVA,vTB,vTD=255,0,192,15
def kdma_units(c):
    u=[]
    for pr in range(4):
        for n in range(2):
            d=dma(vQdma,sK,45,n*1024); d.tag=f"K{c}"
            u.append(([salu(f"s_add_u32 m0, s54, {(pr//2)*4160+(pr%2)*2080}",S(54),[M0,SCC]), salu(f"s_add_u32 s45, s44, {c*8192+pr*2048}",S(44),S(45)+[SCC])] if n==0 else [])+[d])
    return u
def qdma_units(t):
    d0=dma(vQdma,sQ,46,0); d1=dma(vQdma,sQ,46,1024); d0.tag=d1.tag=f"Q{t}"
    return [[salu(f"s_add_u32 m0, s{sWoff}, {(t%NQ)*QSLOT}",S(sWoff),[M0,SCC]),salu(f"s_mov_b32 s46, {t*8192}",[],S(46)),d0],[d1]]
def vdma_units(c):
    u=[]
    for hf in range(2):
        for n in range(4):
            d=dma(vVA,sV,sKo+2*c+hf,n*1024); d.tag=f"V{c}"
            u.append(([salu(f"s_mov_b32 m0, s{sVm+hf}",S(sVm+hf),[M0])] if n==0 else [])+[d])
    return u
flat=lambda u:[x for y in u for x in y]
STREAM=kdma_units(0)+qdma_units(0)+qdma_units(1)+qdma_units(2)+vdma_units(0)+flat([qdma_units(t) for t in range(3,T)])+kdma_units(1)
NPRO=OPT.get("npro",20)
def kread(c):
    o=[dsr128(aK(2*c+h,ds),vKA,h*4160+ds*256,file='a') for h in range(2) for ds in range(4)]
    for x in o: x.meta["tags"]={f"K{c}"}
    return o
aSC=lambda lo,half:aV(lo,3,half)
vKT=[192,196,vLrd]
def ksops(c,j):
    a=aK(2*c+j//8,(j//2)%4)+2*(j%2); d=vKT[j%3]
    return [vcvt(d,d,d+1),vcvt(d+1,d+2,d+3)]+[vop(f"v_accvgpr_write_b32 a{a+x}, v{d+x}",V(d+x),A(a+x)) for x in range(2)]
def kscale(c,extra=None):
    o=[]
    for j in range(16):
        a=aK(2*c+j//8,(j//2)%4); d=vKT[j%3]; x=ksops(c,j-2) if j>=2 else [nop(2),None,nop(2),None]
        if j%2==0: o.append(waitslot())
        o+=[mfma(d,aSC(0,j%2),a,None,bfile='a',name="KSh")]+(extra(j) if extra else [])+x[:2]+[mfma(d,aSC(1,j%2),a,d,bfile='a',name="KSl")]+x[2:]
    return [i for i in o if i is not None]
def startup(prefix,log,off=0):
    b=Bld(); NS=4*T
    Sb=lambda n:64+(n%4)*4
    OWN=OPT.get("own",1) and T-LAG<=2
    Pw=lambda k,qb:96+((k%(4 if OWN else 2))*2+qb)*4
    ent=lambda k,qb:PB[T%2 if (LAG>3 and 3*T<=k<NS-LAG) else 1-T%2]+((k%4)*2+qb)*1024
    assert LAG<=3 or all(k%4 for k in range(3*T,NS-LAG))
    pvstep=lambda k:k+(LAG0 if k<3*T else LAG)
    pvof={pvstep(k):k for k in range(NS)}
    QK={}; PV={}; ONE={}; start={}; end={}; posQ={}; posP={}; posO={}
    def pvg(k,qb,db):
        c,t=divmod(k,T); d=vOs[t]+qb*8+db*4
        return [mfma(d,aV(j,c,db),Pw(k,qb) if (OWN and j==0) else vRing(2*k+qb,j),None if (c==0 and j==0) else d,name=f"PV{k}.{qb}{db}.{j}") for j in range(4)]
    def oneg(k): return [mfma(vLacc,vSEL[0],Pw(k,0),None,afile='v',name=f"ONE{k}.0"),mfma(vLacc,vSEL[1],Pw(k,1),vLacc,afile='v',name=f"ONE{k}.1")]
    for k in range(NS):
        c,t=divmod(k,T)
        start[k]=len(b.bb)
        for ch in range(4):
            kb=2*c+ch%2; qb=ch//2; n=4*k+ch
            QK[(k,ch)]=[mfma(Sb(n),aK(kb,ds),vQ(qb,ds),None if ds==0 else Sb(n),name=f"QK{k}.{ch}.{ds}") for ds in range(4)]
            posQ[(k,ch)]=b.group(QK[(k,ch)])
            if k in pvof:
                key=(pvof[k],ch//2,ch%2); PV[key]=pvg(*key); posP[key]=b.group(PV[key])
            if ch==2 and k>=1: ONE[k-1]=oneg(k-1); posO[k-1]=b.group(ONE[k-1])
        if k==NS-1:
            for n in(14,15):
                f,h,kb,qb=chain_info(n)
                QK[("pre",n)]=[mfma(vS(n),aK(kb,ds),vQ(qb,ds),None if ds==0 else vS(n),name=f"QKp{n}.{ds}") for ds in range(4)]
                posQ[("pre",n)]=b.group(QK[("pre",n)])
        end[k]=len(b.bb)-1
    cus={}
    x=0
    for k in range(NS-LAG,NS):
        for qb in range(2):
            for db in range(2):
                PV[(k,qb,db)]=pvg(k,qb,db); cus[x]=("pv",(k,qb,db)); x+=1
                if x==3: ONE[NS-1]=oneg(NS-1); cus[x]=("one",NS-1); x+=1
    def Ncustom(x):
        if x not in cus: return None
        return PV[cus[x][1]] if cus[x][0]=="pv" else ONE[cus[x][1]]
    def placed(x,p):
        (posP if cus[x][0]=="pv" else posO)[cus[x][1]]=p
    BAR={}; W={}; C={}; LA={}; LW={}; RQ={}; TR={}; E={}
    bdeps={k:[] for k in range(NS)}; btags={k:set() for k in range(NS)}; bneed={k:[] for k in range(NS)}
    for k in range(NS): BAR[k]=b.barrier(end[k]-off,[],tags=btags[k],need=set())
    def bneeds(k,o): BAR[k].deps.append(o); BAR[k].ins.meta["need"].add(id(o.ins))
    for k in range(1,NS): BAR[k].deps.append(BAR[k-1])
    state={"scc":[],"dma":[],"ep":{}}
    def softmax(k):
        c,t=divmod(k,T)
        for ch in range(4):
            n=4*k+ch; qb=ch//2; h=ch%2
            for r in range(4): E[(k,ch,r)]=b.add(vexp(Sb(n)+r),posQ[(k,ch)]+6+2*r,[QK[(k,ch)][3]],name=f"E{k}.{ch}.{r}")
            for p2 in range(2):
                deps=[E[(k,ch,2*p2)],E[(k,ch,2*p2+1)]]
                if OWN:
                    if k>=4: deps+=[ONE[k-4][qb],W[(k-4,qb)],PV[(k-4,qb,0)][0],PV[(k-4,qb,1)][0]]
                elif k>=2: deps+=[ONE[k-2][qb],W[(k-2,qb)]]
                o=b.add(vcvtp(Pw(k,qb)+2*h+p2,Sb(n)+2*p2,Sb(n)+2*p2+1),E[(k,ch,2*p2+1)].prio+1,deps,name=f"C{k}.{ch}.{p2}")
                C[(k,ch,p2)]=o
                if k+1<NS: b.need(posQ[(k+1,ch)],o)
            if h==1:
                W[(k,qb)]=b.add(dsw128(vPw,Pw(k,qb),ent(k,qb)),C[(k,ch,1)].prio+1,[C[(k,cc,pp)] for cc in(ch-1,ch) for pp in range(2)]+([BAR[pvstep(k-4)]] if (k>=4 and pvstep(k-4)<k and ent(k,0)==ent(k-4,0)) else [])+([BAR[k-3]] if k>NS-LAG else []),name=f"W{k}.{qb}")
                if k+1<NS: bneeds(k+1,W[(k,qb)])
    for k in range(NS): softmax(k)
    def one_ops(k):
        c,t=divmod(k,T)
        for cc in range(4):
            for pp in range(2): b.need(posO[k],C[(k,cc,pp)])
        if k>=1: b.need(posO[k],LA[k-1])
        ins=valu(f"v_mov_b32 v{vLs(t)}, v{vLacc}",V(vLacc),V(vLs(t))) if c==0 else v2("v_add_f32",vLs(t),vLs(t),vLacc)
        LA[k]=b.add(ins,posO[k]+6,[ONE[k][1]],name=f"LA{k}")
        if c==3:
            LW[t]=b.add(dsw32(vLw,vLs(t),((T-1)%2)*512 if t==T-1 else 1024+t*512),posO[k]+8,[LA[k]],name=f"LW{t}")
            if k+1<NS: bneeds(k+1,LW[t])
    for k in range(NS-1): one_ops(k)
    def preads(k):
        for qb in range(2):
            for j in range(1 if OWN else 0,4):
                deps=[BAR[k+1]]+([PV[(k-1,qb,1)][j]] if k>=1 else [])
                o=b.add(dsr128(vRing(2*k+qb,j),vPw if j==0 else vPr[j],ent(k,qb)),posP[(k,qb,0)]-OPT.get('rlead',12)+j,deps,name=f"R{k}.{qb}.{j}")
                b.need(posP[(k,qb,0)]-1,o); state.setdefault("R",[]).append(o)
    for k in range(NS-LAG): preads(k)
    for k in range(NS+1):
        t=k%T if k<NS else T%NQ
        for qb in range(2):
            for ds in range(4):
                deps=[QK[(k-1,2*qb+1)][ds]] if k>=1 else []
                if 2<=k<T: deps.append(BAR[k-2]); btags[k-2].add(f"Q{k}")
                if k==NS: deps.append(BAR[NS-2]); btags[NS-2].add(f"Q{T}")
                pr=(posQ[(k-1,2*qb+1)]+1+ds) if k>=1 else 14+4*qb+ds
                o=b.add(dsr128(vQ(qb,ds),vQrd,t*QSLOT+qb*4160+ds*256),pr,deps,name=f"RQ{k}.{qb}.{ds}"); RQ[(k,qb,ds)]=o
                if k<NS: b.need(posQ[(k,2*qb)]-1,o)
                elif qb==0: b.need(posQ[("pre",14)]-1,o)
    btags[NS-1].add(f"Q{T+1}")
    state["chain"]=[]; hard={0,1}
    def issue(units,where,deps,nm):
        for u,(k,fr) in zip(units,where):
            tt=int(start[k]+fr*(end[k]-start[k])); prev=list(deps)+state["chain"]+state["scc"]
            nd=[x.kind for x in u].index("dma")
            for x,ins in enumerate(u):
                if ins.kind=="salu": o=b.adds(ins,tt+x-nd-3,prev,name="s"+nm,earliest=tt+x-nd-3 if x<nd else 0)
                else: o=b.add(ins,tt,prev,earliest=tt,name=nm); ins.cost=OPT.get("sdmac",8)
                prev=[o]
            state["chain"]=prev; state["scc"]=prev
            if k in hard: BAR[k].deps.append(prev[0])
    def spread(n,k0,per):
        w=[]; k=k0
        while len(w)<n:
            m=min(per,n-len(w)); w+=[(k,(x+0.5)/per) for x in range(m)]; k+=1
        return w
    kchain=[]
    def extra(j):
        o=flat(STREAM[12+(NPRO-12)*j//16:12+(NPRO-12)*(j+1)//16])
        if j==9: o+=[waitslot(),bar(tags={"Q0","Q1"},need=set())]
        if 10<=j<14: o+=[RQ[(0,(j-10)//2,2*(j%2)+x)].ins for x in range(2)]
        return o
    for qb in range(2):
        for ds in range(4): o=RQ[(0,qb,ds)]; b.ops.remove(o); o.done=True; o.gap=-1
    ks0=b.add([waitslot()]+kread(0)+kscale(0,extra)+[waitslot()],0,[],name="KS0"); b.need(0,ks0)
    rest=STREAM[NPRO:]
    n0=OPT.get("n0",4); n1=OPT.get("n1",10)
    w=[(0,(x+0.5)/n0) for x in range(n0)]+[(1,OPT.get('f1',30)/100+0.5*x/n1) for x in range(n1)]
    w=w[:len(rest)]; w+=spread(len(rest)-len(w),2,2)
    issue(rest,w,[ks0],"D")
    lastk=w[-1][0]
    for c in range(4):
        s1=pvstep(c*T)-1
        btags[s1-1].add(f"V{c}")
        p0=start[c*T]
        if c==0: ks=ks0
        else:
            kr=[b.add(ins,p0-14+x,kchain,earliest=p0-16,name=f"KR{c}") for x,ins in enumerate(kread(c))]
            ks=b.add(kscale(c),p0,kr+state["TR"],name=f"KS{c}"); b.need(p0,ks)
        aw=[]
        for j in(14,15):
            x=ksops(c,j); prev=[ks]
            for n,ins in enumerate(x): o=b.add(ins,p0-8+j-14+n*0.1,prev,name="Kx"); prev=[o]; aw.append(o); b.need(posQ[(c*T,1)],o)
        state["KS"]=aw
        if 1<=c<3: issue(kdma_units(c+1),spread(8,c*T,OPT.get("kper",6)),[ks],f"KD{c+1}")
        kchain=state["chain"]
        state["TR"]=[]
        for j in range(4):
            r=vPw if j==0 else vPr[j]
            tb=b.add(v2("v_add_u32",vTB+j,vTD,r),start[s1-1]+j,state.get("KS",[]),earliest=start[s1-1],name="TB")
            for db in range(2):
                for hf in range(2):
                    a=aV(j,c,db)+2*hf
                    o=b.add(I(f"ds_read_b64_tr_b16 a[{a}:{a+1}], v{vTB+j} offset:{hf*4096+8*db}","dsr",V(vTB+j),A(a,2)),start[s1]+j*4+db*2+hf,[BAR[s1-1],tb],name=f"TR{c}")
                    b.need(posP[(c*T,0,0)]-1,o); bneeds(s1,o); state["TR"].append(o)
        if c<3: issue(vdma_units(c+1),(spread(8,max(s1+1,lastk,OPT.get("v1",0)),OPT.get("v1per",6)) if c==0 else spread(8,s1+1,OPT.get("vper",6))),[BAR[s1]],f"VD{c+1}")
    state["ep"]={"L":state["KS"],"S":state["TR"]}
    for x in range(D):
        t=T+x; k=min(max(3*T+1+t-NQ,3*T-1+x),NS-1)
        issue(qdma_units(t),[(k,0.25),(k,0.6)],[BAR[3*T+t-NQ]] if t>=NQ else [],"QD")
    chain=state["chain"]
    def ep(t,t0,tm,dt,scc):
        k=3*T+t
        od={(qb,db):PV[(k,qb,db)][3] for qb in range(2) for db in range(2)}
        e=epilogue_ops(b,lambda qb,db:vOs[t]+qb*8+db*4,1024+t*512,t0,tm,dt,[BAR[k+1]],od,state["ep"],scc,sc=0.5,tg=f"t{t}")
        state["ep"]=e; return e
    eps={}; BARX=[]
    for t in range(T-LAG-1+0):
        k=3*T+t+LAG
        eps[t]=ep(t,start[k]+8,start[k]+20,1.3,state["scc"]); state["scc"]=eps[t]["A"]
    if T-LAG>=2:
        for o in eps[0]["M"]+eps[0]["S"]: b.need(posQ[("pre",14)],o)
    e14=[b.add(vexp(vS(14)+r),posQ[("pre",14)]+6+2*r,[QK[("pre",14)][3]],name=f"Ep{r}") for r in range(4)]
    def late(scc,must_bar):
        BAR[NS]=b.barrier(end[NS-1]+1+OPT.get("barx",23)+3-off,[BAR[NS-1]],need=set())
        for qb in range(2): bneeds(NS,W[(NS-1,qb)])
        BARX.append(BAR[NS])
        for k in range(NS-LAG,NS): preads(k)
        must_bar+=state["R"][-(6 if OWN else 8)*LAG:]
        one_ops(NS-1); must_bar.append(LW[T-1])
        for t in range(T-LAG-1,T-1):
            k=3*T+t
            p=posP[(k,0,0)] if k>=NS-LAG else end[NS-1]-8
            eps[t]=ep(t,p-6,p+10,1.2,scc); scc=eps[t]["A"]
        return scc
    last=NS-1
    ctx=dict(dmaprio=5,placed=placed,late=late,scc=state["scc"],c15=[QK[("pre",15)][3]],e14=e14,dmadep=chain+[BAR[last]],
             must_bar=[W[(last,0)],W[(last,1)]],wdep=[BAR[last]],rqdep=[BAR[last]],rqprev=[RQ[(NS,qb,ds)] for qb in range(2) for ds in range(4)],
             pwar={f:[ONE[NS-4+f//2][f%2],W[(NS-4+f//2,f%2)],PV[(NS-4+f//2,f%2,0)][0],PV[(NS-4+f//2,f%2,1)][0]] for f in range(8)} if OWN else
                  {0:[ONE[last-1][0],W[(last-1,0)]],1:[ONE[last-1][1],W[(last-1,1)]],2:[ONE[last][0],W[(last,0)]],3:[ONE[last][1],W[(last,1)]],
                   **({f:eps[1]["M"]+eps[1]["S"] for f in range(4,8)} if T-LAG>=3 else {})},
             swar={n:[C[(last,n,pp)] for pp in range(2)] for n in range(4)})
    iter_parts(b,T,T%2,1,1,0,0,1,Ncustom=Ncustom,ctx=ctx,baroff=off)
    b.sops[-1].deps.append(BAR[NS])
    for ds in range(4): b.need(end[last]+1+8-1,RQ[(NS,1,ds)])
    res=b.run(prefix,log,overdue=OPT.get("od",3))
    if OPT["stamp"]==2 and not OPT.get("ps"):
        p0=OPT.get('p0'); pts=[2,3,6,9,13,16,20,23,27] if p0 is None else list(range(p0,p0+9)); o=[]
        for x in res:
            o.append(x)
            for n,k in enumerate(pts):
                if x is BAR[k].ins: o.append(raw(f"{'s_memtime' if OPT.get('cyc') else 's_memrealtime'} s[{78+2*n}:{79+2*n}]"))
        res=o
    if OPT.get("seg"):
        idx=[n for n,x in enumerate(res) if x.kind=="bar"]
        print("step est:",[estimate(res[a:z]) for a,z in zip(idx,idx[1:])],file=sys.stderr)
    return res

class Seq:
    def __init__(s,prefix=()): s.o=list(prefix); s.n0=len(s.o)
    def __call__(s,*ins,slot=True):
        for i in ins:
            if slot and i.kind not in("label","comment","salu","wait","branch","raw","nop"): s.o.append(waitslot())
            k=hazard_need(s.o,i)
            if k>0: s.o.append(nop(k))
            s.o.append(i)
    def out(s): return s.o[s.n0:]

def vop(t,rd,wr): return valu(t,rd,wr)
def prologue():
    q=Seq()
    q(salu("s_cmp_ge_u32 s2, 256",S(2),[SCC]), I("s_cbranch_scc1 L_end","branch",[SCC]))
    if OPT["stamp"]: q(raw("s_memtime s[60:61]"),raw("s_memrealtime s[62:63]"),raw(f"s_load_dwordx2 s[{sDbg}:{sDbg+1}], s[0:1], 32"))
    q(raw("s_load_dwordx4 s[36:39], s[0:1], 0"), raw("s_load_dwordx4 s[40:43], s[0:1], 16"))
    L,Q_,G_,T1,T2,T3=200,201,202,203,204,205
    if OPT.get("warm",2):
        q(raw("s_getpc_b64 s[56:57]"), label("L_pc"), raw("s_and_b32 s57, s57, 0xffff"), raw("s_mov_b32 s58, L_end-L_pc"), raw("s_mov_b32 s59, 0x20000"))
        q(vop(f"v_lshlrev_b32 v{T2}, 7, v0",V(0),V(T2)))
    def warm(ks):
        for k in ks:
            q(raw(f"s_mov_b32 s55, {k*32768}"))
            q(I(f"buffer_load_dword v{240+k}, v{T2}, s[56:59], s55 offen","vld",V(T2),V(240+k)),slot=False)
    nw=OPT.get("warm",2); we=OPT.get("wearly",1)
    warm(range(min(we,nw)))
    q(vop(f"v_and_b32 v{L}, 63, v0",V(0),V(L)), vop(f"v_lshrrev_b32 v{T1}, 6, v0",V(0),V(T1)))
    q(I(f"v_readfirstlane_b32 s{sW}, v{T1}","valu",V(T1),S(sW),meta={"rfl":1}))
    q(vop(f"v_and_b32 v{Q_}, 15, v{L}",V(L),V(Q_)), vop(f"v_lshrrev_b32 v{G_}, 4, v{L}",V(L),V(G_)))
    R_,C_=208,209
    q(vop(f"v_bfe_u32 v{R_}, v{L}, 2, 2",V(L),V(R_)), vop(f"v_and_b32 v{C_}, 3, v{L}",V(L),V(C_)))
    q(salu(f"s_mul_i32 s3, s2, {QBYTES}",S(2),S(3)), salu("s_lshl_b32 s31, s2, 17",S(2),S(31)))
    q(salu(f"s_lshl_b32 s46, s{sW}, 11",S(sW),S(46)), salu(f"s_lshl_b32 s{sKo}, s{sW}, 15",S(sW),S(sKo)))
    q(vop(f"v_lshlrev_b32 v{vQdma}, 8, v{R_}",V(R_),V(vQdma)), vop(f"v_lshl_add_u32 v{vQdma}, v{G_}, 6, v{vQdma}",V(G_)+V(vQdma),V(vQdma)),
      vop(f"v_lshl_add_u32 v{vQdma}, v{C_}, 4, v{vQdma}",V(C_)+V(vQdma),V(vQdma)), vop(f"v_add_u32 v{vQdma}, s46, v{vQdma}",S(46)+V(vQdma),V(vQdma)))
    q(salu(f"s_mul_i32 s47, s{sW}, 2080",S(sW),S(47)), salu(f"s_add_u32 s{sWoff}, s47, {QBASE}",S(47),S(sWoff)))
    q(salu(f"s_sub_u32 s44, s{sKo}, s46",S(sKo)+S(46),S(44)), salu(f"s_mul_i32 s54, s{sW}, {QSLOT}",S(sW),S(54)), salu(f"s_add_u32 s54, s54, {KBASE}",S(54),S(54)))
    for srd,nb in((sQ,QBYTES),(sK,KBYTES),(sV,KBYTES),(sO,QBYTES)):
        q(salu(f"s_mov_b32 s{srd+2}, {nb}",[],S(srd+2)), salu(f"s_mov_b32 s{srd+3}, 0x20000",[],S(srd+3)))
    q(raw("s_waitcnt lgkmcnt(0)"))
    def base(srd,src,off):
        q(salu(f"s_add_u32 s{srd}, s{src}, s{off}",S(src)+S(off),S(srd)), salu(f"s_addc_u32 s{srd+1}, s{src+1}, 0",S(src+1),S(srd+1)),
          salu(f"s_and_b32 s{srd+1}, s{srd+1}, 0xffff",S(srd+1),S(srd+1)))
    ps=lambda n:[raw(f"s_memrealtime s[{78+2*n}:{79+2*n}]")] if OPT.get("ps") else []
    base(sK,38,31); q(*ps(0),*flat(STREAM[:8]),*ps(1),slot=False)
    base(sQ,36,3); q(*flat(STREAM[8:12]),slot=False)
    warm(range(min(we,nw),nw))
    base(sV,40,31); base(sO,42,3)
    for n in range(1,8): q(salu(f"s_add_u32 s{sKo+n}, s{sKo}, {n*4096}",S(sKo),S(sKo+n)))
    q(salu(f"s_add_u32 s{sT}, s47, {QEND}",S(47),S(sT)), salu(f"s_add_u32 s{sQm0}, s{sWoff}, {((T+D)%NQ)*QSLOT}",S(sWoff),S(sQm0)), salu(f"s_mov_b32 s{sQso}, {(T+D)*8192}",[],S(sQso)))
    q(vop(f"v_lshlrev_b32 v{T1}, 2, v{G_}",V(G_),V(T1)), vop(f"v_xor_b32 v{T1}, v{T1}, v{Q_}",V(T1)+V(Q_),V(T1)),
      vop(f"v_lshlrev_b32 v{T1}, 4, v{T1}",V(T1),V(T1)), vop(f"v_lshl_add_u32 v{vVA}, v{G_}, 8, v{T1}",V(G_)+V(T1),V(vVA)))
    q(salu(f"s_lshl_b32 s48, s{sW}, 13",S(sW),S(48)), salu(f"s_add_u32 s{sVm}, s48, {VBASE}",S(48),S(sVm)), salu(f"s_add_u32 s{sVm+1}, s48, {VBASE+4096}",S(48),S(sVm+1)))
    q(*ps(2))
    q(vop(f"v_lshrrev_b32 v{T1}, 2, v{Q_}",V(Q_),V(T1)), vop(f"v_lshlrev_b32 v{vQrd0}, 10, v{T1}",V(T1),V(vQrd0)),
      vop(f"v_lshrrev_b32 v{T1}, 3, v{Q_}",V(Q_),V(T1)), vop(f"v_lshl_add_u32 v{vQrd0}, v{T1}, 5, v{vQrd0}",V(T1)+V(vQrd0),V(vQrd0)),
      vop(f"v_lshl_add_u32 v{vQrd0}, v{C_}, 6, v{vQrd0}",V(C_)+V(vQrd0),V(vQrd0)), vop(f"v_lshl_add_u32 v{vQrd0}, v{G_}, 4, v{vQrd0}",V(G_)+V(vQrd0),V(vQrd0)))
    q(salu(f"s_mov_b32 s{sQrs}, {QBASE+(T%NQ)*QSLOT}",[],S(sQrs))); q(vop(f"v_add_u32 v{vQrd}, {QBASE}, v{vQrd0}",V(vQrd0),V(vQrd)))
    for j in range(4):
        q(salu(f"s_add_u32 s49, s{sW}, {j}",S(sW),S(49)), salu("s_and_b32 s49, s49, 3",S(49),S(49)), salu(f"s_lshl_b32 s{50+j}, s49, 13",S(49),S(50+j)))
        r=vPw if j==0 else vPr[j]
        q(vop(f"v_lshl_add_u32 v{r}, v{L}, 4, s{50+j}",V(L)+S(50+j),V(r)))
    q(salu(f"s_lshl_b32 s49, s{sW}, 6",S(sW),S(49)))
    q(vop(f"v_lshlrev_b32 v{vOst}, 8, v{Q_}",V(Q_),V(vOst)), vop(f"v_lshl_add_u32 v{vOst}, v{G_}, 4, v{vOst}",V(G_)+V(vOst),V(vOst)), vop(f"v_add_u32 v{vOst}, s49, v{vOst}",S(49)+V(vOst),V(vOst)))
    q(vop(f"v_lshrrev_b32 v{T1}, 1, v{G_}",V(G_),V(T1)), vop(f"v_lshl_add_u32 v{T1}, v{T1}, 4, v{Q_}",V(T1)+V(Q_),V(T1)),
      vop(f"v_lshlrev_b32 v{T1}, 4, v{T1}",V(T1),V(T1)), vop(f"v_add_u32 v{vLr}, {LBASE}, v{T1}",V(T1),V(vLr)))
    q(salu(f"s_lshl_b32 s49, s{sW}, 2",S(sW),S(49))); q(vop(f"v_add_u32 v{vLw}, s49, v{vLr}",S(49)+V(vLr),V(vLw)))
    q(vop(f"v_mov_b32 v{vLmax}, 0",[],V(vLmax)))
    q(vop(f"v_mov_b32 v{T1}, 0x3f803f80",[],V(T1)), valu(f"v_cmp_gt_u32 vcc, 8, v{Q_}",V(Q_),[VCC]))
    for r in range(4):
        q(valu(f"v_cndmask_b32 v{vSEL[0]+r}, 0, v{T1}, vcc",V(T1)+[VCC],V(vSEL[0]+r)))
        q(vop(f"v_xor_b32 v{vSEL[1]+r}, v{T1}, v{vSEL[0]+r}",V(T1)+V(vSEL[0]+r),V(vSEL[1]+r)))
    if OPT.get("trunc"): q(salu("s_mov_b32 s74, 0x07060302",[],S(74)))
    q(salu(f"s_mov_b32 s{sO0}, 0",[],S(sO0)), salu(f"s_mov_b32 s{sO1}, 4096",[],S(sO1)))
    q(vop(f"v_lshlrev_b32 v{T1}, 2, v{R_}",V(R_),V(T1)), vop(f"v_add_u32 v{T2}, s49, v{C_}",S(49)+V(C_),V(T2)), vop(f"v_xor_b32 v{T2}, v{T2}, v{T1}",V(T1)+V(T2),V(T2)),
      vop(f"v_lshl_add_u32 v{T3}, v{G_}, 2, v{R_}",V(G_)+V(R_),V(T3)), vop(f"v_lshlrev_b32 v{T3}, 8, v{T3}",V(T3),V(T3)), vop(f"v_lshl_add_u32 v{T3}, v{T2}, 4, v{T3}",V(T2)+V(T3),V(T3)),
      vop(f"v_lshlrev_b32 v{T1}, 4, v{L}",V(L),V(T1)), v2("v_sub_u32",T3,T3,T1), vop(f"v_add_u32 v{vTD}, {VBASE}, v{T3}",V(T3),V(vTD)))
    q(vop(f"v_add_u32 v{vKA}, s54, v{vQrd0}",S(54)+V(vQrd0),V(vKA)))
    q(vop(f"v_lshrrev_b32 v{T1}, 2, v{Q_}",V(Q_),V(T1)), valu(f"v_cmp_eq_u32 vcc, v{T1}, v{G_}",V(T1)+V(G_),[VCC]),
      vop(f"v_and_b32 v{T1}, 1, v{L}",V(L),V(T1)), vop(f"v_lshlrev_b32 v{T1}, 4, v{T1}",V(T1),V(T1)),
      vop(f"v_and_b32 v{T2}, 2, v{L}",V(L),V(T2)), valu(f"v_cmp_eq_u32 s[50:51], 0, v{T2}",V(T2),S(50,2)))
    for lo,cb in enumerate((CHI,CLO)):
        q(vop(f"v_mov_b32 v{T2}, {cb:#x}",[],V(T2)), v2("v_lshlrev_b32",T2,T1,T2), valu(f"v_cndmask_b32 v{T2}, 0, v{T2}, vcc",V(T2)+[VCC],V(T2)),
          valu(f"v_cndmask_b32 v{T3}, 0, v{T2}, s[50:51]",V(T2)+S(50,2),V(T3)), v2("v_xor_b32",T2,T2,T3))
        for half in range(2):
            a=aSC(lo,half)
            q(vop(f"v_accvgpr_write_b32 a{a+2*half}, v{T3}",V(T3),A(a+2*half)), vop(f"v_accvgpr_write_b32 a{a+2*half+1}, v{T2}",V(T2),A(a+2*half+1)),
              vop(f"v_accvgpr_write_b32 a{a+2-2*half}, 0",[],A(a+2-2*half)), vop(f"v_accvgpr_write_b32 a{a+3-2*half}, 0",[],A(a+3-2*half)))
    q(*ps(3))
    return q.out()

def fallback():
    q=Seq()
    q(label("L_fallback"), wait(vm=0,lg=0), bar())
    q(salu(f"s_mov_b32 s{sQso}, 0",[],S(sQso)), salu(f"s_mov_b32 s{sO0}, 0",[],S(sO0)), salu(f"s_mov_b32 s{sO1}, 4096",[],S(sO1)), salu(f"s_mov_b32 s{sLoop}, {NT}",[],S(sLoop)))
    q(vop(f"v_add_u32 v{vQrd}, {QBASE}, v{vQrd0}",V(vQrd0),V(vQrd)))
    MW,MR,T=216,217,218
    q(vop(f"v_mbcnt_lo_u32_b32 v{T}, -1, 0",[],V(T)), vop(f"v_mbcnt_hi_u32_b32 v{T}, -1, v{T}",V(T),V(T)),
      vop(f"v_and_b32 v{MR}, 15, v{T}",V(T),V(MR)), vop(f"v_lshlrev_b32 v{MR}, 6, v{MR}",V(MR),V(MR)), vop(f"v_add_u32 v{MR}, {MBASE}, v{MR}",V(MR),V(MR)),
      vop(f"v_lshrrev_b32 v{T}, 4, v{T}",V(T),V(T)), vop(f"v_lshl_add_u32 v{MW}, v{T}, 2, v{MR}",V(T)+V(MR),V(MW)))
    q(salu(f"s_lshl_b32 s49, s{sW}, 4",S(sW),S(49))); q(vop(f"v_add_u32 v{MW}, s49, v{MW}",S(49)+V(MW),V(MW)))
    q(label("L_fb_loop"))
    q(salu(f"s_mov_b32 m0, s{sWoff}",S(sWoff),[M0])); q(dma(vQdma,sQ,sQso,0),dma(vQdma,sQ,sQso,1024)); q(wait(vm=0),bar())
    for qb in range(2):
        for ds in range(4): q(dsr128(vQ(qb,ds),vQrd,qb*4160+ds*256))
    Sb=lambda kb,qb:64+(kb*2+qb)*4
    Pf=lambda f:128+f*4
    for kb in range(8):
        for qb in range(2):
            for ds in range(4): q(mfma(Sb(kb,qb),aK(kb,ds),vQ(qb,ds),None if ds==0 else Sb(kb,qb)))
    Mx=[220,221]; RD=224
    for qb in range(2):
        q(v2("v_max_f32",Mx[qb],Sb(0,qb),Sb(0,qb)+1))
        regs=[Sb(kb,qb)+r for kb in range(8) for r in range(4)][2:]
        for x in range(0,30,2): q(vop(f"v_max3_f32 v{Mx[qb]}, v{Mx[qb]}, v{regs[x]}, v{regs[x+1]}",V(Mx[qb])+V(regs[x])+V(regs[x+1]),V(Mx[qb])))
        q(dsw32(MW,Mx[qb],qb*1024))
    q(bar())
    for qb in range(2):
        for x in range(4): q(dsr128(RD+4*x,MR,qb*1024+16*x))
        q(v2("v_max_f32",Mx[qb],RD,RD+1))
        for x in range(2,16,2): q(vop(f"v_max3_f32 v{Mx[qb]}, v{Mx[qb]}, v{RD+x}, v{RD+x+1}",V(Mx[qb])+V(RD+x)+V(RD+x+1),V(Mx[qb])))
    for kb in range(8):
        for qb in range(2):
            for r in range(4): q(v2("v_sub_f32",Sb(kb,qb)+r,Sb(kb,qb)+r,Mx[qb]),slot=False)
            for r in range(4): q(vexp(Sb(kb,qb)+r),slot=False)
            for p2 in range(2): q(vcvt(Pf(2*(kb//2)+qb)+2*(kb%2)+p2,Sb(kb,qb)+2*p2,Sb(kb,qb)+2*p2+1),slot=False)
    for f in range(8): q(dsw128(vPw,Pf(f),f*1024))
    for qb in range(2):
        for kp in range(4): q(mfma(vLacc,vSEL[qb],Pf(2*kp+qb),None if (kp==0 and qb==0) else vLacc,afile='v'))
    q(dsw32(vLw,vLacc,0)); q(bar())
    for qb in range(2):
        for db in range(2):
            for kp in range(4): q(mfma(vO(0,qb,db),aV(0,kp,db),Pf(2*kp+qb),None if kp==0 else vO(0,qb,db)))
    for j in range(1,4):
        for qb in range(2):
            for k in range(4): q(dsr128(RD+4*k,vPr[j],(2*k+qb)*1024))
            for db in range(2):
                for kp in range(4): q(mfma(vO(0,qb,db),aV(j,kp,db),RD+4*kp,vO(0,qb,db)))
    q(dsr128(vLrd,vLr,0)); q(v2("v_add_f32",vLrd,vLrd,vLrd+1),v2("v_add_f32",vLrd+2,vLrd+2,vLrd+3),v2("v_add_f32",vLrd,vLrd,vLrd+2))
    q(valu(f"v_rcp_f32 v{vR0}, v{vLrd}",V(vLrd),V(vR0),"trans"), vop(f"v_mov_b32 v{vR1}, v{vR0}",V(vR0),V(vR1)),
      valu(f"v_permlane32_swap_b32 v{vR0}, v{vR1}",V(vR0)+V(vR1),V(vR0)+V(vR1),"perm"))
    for qb in range(2):
        for db in range(2):
            for p2 in range(2):
                r=vO(0,qb,db)+2*p2; R=vR0 if qb==0 else vR1
                q(v2("v_mul_f32",r,r,R),v2("v_mul_f32",r+1,r+1,R),vcvt(vOut(qb)+2*db+p2,r,r+1))
        q(vst(vOut(qb),vOst,sO,sO0 if qb==0 else sO1))
    q(salu(f"s_add_u32 s{sO0}, s{sO0}, 8192",S(sO0),S(sO0)), salu(f"s_add_u32 s{sO1}, s{sO1}, 8192",S(sO1),S(sO1)), salu(f"s_add_u32 s{sQso}, s{sQso}, 8192",S(sQso),S(sQso)))
    q(wait(vm=0,lg=0),bar())
    q(salu(f"s_sub_u32 s{sLoop}, s{sLoop}, 1",S(sLoop),S(sLoop)), salu(f"s_cmp_lg_u32 s{sLoop}, 0",S(sLoop),[SCC]), I("s_cbranch_scc1 L_fb_loop","branch",[SCC]))
    return q.out()

def stamp(n):
    if OPT["stamp"]==2: return [raw(f"s_memrealtime s[{76+2*n}:{77+2*n}]")] if n in(0,) else ([raw("s_memrealtime s[98:99]")] if n==1 else [])
    return [raw(f"s_memtime s[{76+4*n}:{77+4*n}]"),raw(f"s_memrealtime s[{78+4*n}:{79+4*n}]")] if OPT["stamp"] else []

def build():
    logs={}
    pro=prologue()+stamp(0)
    def it(i,par,cur,nxt,pv,ep,prefix,**kw):
        lg=[]; r=iteration(i,par,cur,nxt,pv,ep,(i+D<NT) or kw.get("force_dma"),prefix,log=lg,**{k:v for k,v in kw.items() if k!="force_dma"}); logs[i]=lg; return [comment(f"---- iteration {i}")]+r
    U=OPT.get("U",2); nst=40-(T+1); trips=nst//U; rem=nst-trips*U
    stag=OPT.get("stag",0); ncopy=OPT.get("ncopy",4) if stag else 1
    sst=OPT.get("sstag",0)
    disp=[]
    for cp in range(ncopy-1,0,-1):
        disp+=[salu(f"s_cmp_ge_u32 s{sW}, {cp*(4//ncopy)}",S(sW),[SCC]), I(f"s_cbranch_scc1 L_copy{cp}","branch",[SCC])]
    def mk0(off):
        lg=[]; r=[comment("---- start-up steps + merged iteration")]+startup(pro,lg,off); logs[0]=lg
        return r+[salu(f"s_mov_b32 s{sLoop}, {trips}",[],S(sLoop))]+stamp(1)
    def mkend(prev,off):
        r=[]
        for u in range(rem):
            x=it(40-rem+u,(40-rem+u)%2,1,1,1,1,prev,force_dma=True,baroff=off); prev=x; r+=x
        x=stamp(2)+it(40,0,1,0,1,1,prev,ctx={"eager":1},baroff=off)
        return r,x
    if not sst: i0=mk0(0)
    allb=[]; paths=[]; body_rem=[]
    for cp in range(ncopy):
        if sst: i0=mk0(stag*cp)
        body=[]; prev=i0
        for u in range(U):
            x=it(T+1+u,(T+1+u)%2,1,1,1,1,prev,force_dma=True,loopctl=f"L_loop{cp}" if (u==U-1 and trips>1) else None,baroff=stag*cp); body+=x; prev=x
            if u==0: ia=x
            if u==1: ib=x
        if sst or cp==0: br,i40=mkend(prev,stag*cp if sst else 0)
        paths.append(i0+body*min(trips,3)+br+i40)
        allb+=[label(f"L_copy{cp}")]+(i0 if sst else [])+[raw(f".p2align {OPT.get('al',6)}"),label(f"L_loop{cp}")]+body+(br+i40 if sst else [])
        body_rem+=body+br
        if cp<ncopy-1: allb+=[I("s_branch L_after","branch")]
    allb+=[label("L_after")]
    lg=[]; i41=[comment("---- drain")]+drain(41,i40,lg); logs[41]=lg; i42=[]; i1=[]
    main=pro+(disp if sst else i0+disp)+allb+([] if sst else br+i40)+i41
    fin=Seq(i41+i42)
    fin(salu(f"s_mov_b32 s49, {HI:#x}",[],S(49)))
    fin(valu(f"v_cmp_lt_u32 vcc, s49, v{vLmax}",S(49)+V(vLmax),[VCC]))
    fin(nop(5), I("s_cbranch_vccnz L_fallback","branch",[VCC]))
    if OPT["stamp"]==2 and OPT.get("all"):
        fin(raw("s_waitcnt vmcnt(0)"),raw("s_memrealtime s[100:101]"),raw("s_waitcnt lgkmcnt(0)"),raw(f"s_cmp_lg_u32 s{sW}, 0"),raw("s_cbranch_scc1 L_end"))
        fin(raw(f"s_and_b32 s{sDbg+1}, s{sDbg+1}, 0xffff"),raw(f"s_mov_b32 s{sDbg+2}, 4096"),raw(f"s_mov_b32 s{sDbg+3}, 0x20000"))
        fin(raw("s_getreg_b32 s3, hwreg(HW_REG_XCC_ID)"),raw("s_and_b32 s3, s3, 7"),raw("s_and_b32 s55, s62, 0xffffff"),raw("s_lshl_b32 s3, s3, 24"),raw("s_or_b32 s3, s3, s55"),raw("v_mov_b32 v200, s3"))
        for n,r in enumerate((82,98,100)): fin(raw(f"s_sub_u32 s3, s{r}, s62"),raw(f"v_mov_b32 v{201+n}, s3"))
        fin(raw("s_lshl_b32 s3, s2, 4"),raw("v_mov_b32 v220, s3"),raw("s_mov_b64 exec, 1"),raw(f"buffer_store_dwordx4 v[200:203], v220, s[{sDbg}:{sDbg+3}], 0 offen"))
    elif OPT["stamp"]==2:
        fin(raw("s_waitcnt vmcnt(0)"),raw("s_memrealtime s[100:101]"),raw("s_waitcnt lgkmcnt(0)"))
        fin(raw("s_and_b32 s3, s2, 63"),raw("s_cmp_lg_u32 s3, 0"),raw("s_cbranch_scc1 L_end"),raw(f"s_cmp_lg_u32 s{sW}, 0"),raw("s_cbranch_scc1 L_end"))
        fin(raw(f"s_and_b32 s{sDbg+1}, s{sDbg+1}, 0xffff"),raw(f"s_mov_b32 s{sDbg+2}, 256"),raw(f"s_mov_b32 s{sDbg+3}, 0x20000"))
        for n in range(13): fin(raw(f"s_sub_u32 s3, s{76+2*n}, s62"),raw(f"v_mov_b32 v{200+n}, s3"))
        fin(raw("s_lshr_b32 s3, s2, 6"),raw("s_lshl_b32 s3, s3, 6"),raw("v_mov_b32 v220, s3"),raw("s_mov_b64 exec, 1"))
        for n in range(4): fin(raw(f"buffer_store_dwordx4 v[{200+4*n}:{203+4*n}], v220, s[{sDbg}:{sDbg+3}], 0 offen offset:{16*n}"))
    elif OPT["stamp"]:
        fin(*stamp(3)); fin(raw("s_waitcnt vmcnt(0)")); fin(*stamp(4)); fin(raw("s_waitcnt lgkmcnt(0)"))
        sp=OPT.get("spin")
        if sp is not None:
            ex={0:["s_mov_b32 s3, 0"],1:["s_sub_u32 s3, s78, s62","s_lshl_b32 s3, s3, 2"],2:["s_sub_u32 s3, s86, s82"],3:["s_sub_u32 s3, s94, s62"],
                4:["s_sub_u32 s3, s84, s80","s_lshr_b32 s3, s3, 4"],5:["s_sub_u32 s3, s82, s62","s_lshl_b32 s3, s3, 2"]}[sp]
            for e in ex: fin(raw(e))
            fin(raw("s_add_u32 s3, s3, 15000"),label("L_spin"),raw("s_memrealtime s[98:99]"),raw("s_waitcnt lgkmcnt(0)"),raw("s_sub_u32 s98, s98, s62"),raw("s_cmp_lt_u32 s98, s3"),raw("s_cbranch_scc1 L_spin"))
        fin(raw("s_and_b32 s3, s2, 31"),raw("s_cmp_lg_u32 s3, 0"),raw("s_cbranch_scc1 L_end"),raw(f"s_cmp_lg_u32 s{sW}, 0"),raw("s_cbranch_scc1 L_end"))
        fin(raw(f"s_and_b32 s{sDbg+1}, s{sDbg+1}, 0xffff"),raw(f"s_mov_b32 s{sDbg+2}, 256"),raw(f"s_mov_b32 s{sDbg+3}, 0x20000"))
        for n in range(4): fin(raw(f"s_sub_u32 s3, s{76+4*(n+1 if n==3 else n)}, s60"),raw(f"v_mov_b32 v{200+2*n}, s3"),raw(f"s_sub_u32 s3, s{78+4*(n+1 if n==3 else n)}, s62"),raw(f"v_mov_b32 v{201+2*n}, s3"))
        fin(raw("s_lshr_b32 s3, s2, 5"),raw("s_lshl_b32 s3, s3, 5"),raw("v_mov_b32 v208, s3"),raw("s_mov_b64 exec, 1"),
            raw(f"buffer_store_dwordx4 v[200:203], v208, s[{sDbg}:{sDbg+3}], 0 offen"),raw(f"buffer_store_dwordx4 v[204:207], v208, s[{sDbg}:{sDbg+3}], 0 offen offset:16"))
    fin(raw("s_endpgm"))
    fb=fallback()
    static=main+fin.out()+fb+[label("L_end"),raw("s_endpgm")]
    dyns=[pro+p+i41+fin.out() for p in paths]
    for rep in range(2):
        for dyn in dyns: resolve_waits(dyn)
    k=[x for x,y in enumerate(fb) if y.text=="L_fb_loop"][0]
    dynf=fb+fb[k:]
    resolve_waits(dynf)
    for name,d in [("main",d) for d in dyns]+[("fallback",dynf)]:
        bad=check_hazards(d)
        for b in bad: print("HAZARD",name,b,file=sys.stderr)
        assert not bad
        print(name,"max outstanding",max_outstanding(d),file=sys.stderr)
    for nm,sq in(("i0",i0),("i1",i1),("ia",ia),("ib",ib),("i40",i40),("i41",i41),("i42",i42)):
        print(nm,"est cycles",estimate(sq),"nops",sum(1 for x in sq if x.kind=="nop"),"instrs",sum(1 for x in sq if states(x)),file=sys.stderr)
    if "log" in OPT: print("\n".join(logs[OPT["log"]]),file=sys.stderr)
    abl=str(OPT.get("abl","")).split("+")
    if abl!=[""]:
        loop=set(map(id,body_rem)) if not OPT.get('abs') else set(map(id,i0[len(i0)//4:]))
        def drop(x):
            if id(x) not in loop: return False
            t=x.text
            return (("st" in abl and x.kind=="vst") or ("dma" in abl and x.kind=="dma") or ("pr" in abl and x.kind=="dsr" and 128<=min(r[1] for r in x.wr)<160)
              or ("qr" in abl and x.kind=="dsr" and 32<=min(r[1] for r in x.wr)<64) or ("pw" in abl and x.kind=="dsw") or ("exp" in abl and t.startswith("v_exp"))
              or ("cvt" in abl and t.startswith("v_cvt")) or ("one" in abl and x.kind=="mfma" and x.name.startswith("ONE")) or ("bar" in abl and x.kind=="bar")
              or ("mul" in abl and t.startswith("v_mul")) or ("valu" in abl and x.kind in VALU_KINDS) or ("qk" in abl and x.kind=="mfma" and x.name.startswith("QK"))
              or ("pv" in abl and x.kind=="mfma" and x.name.startswith("PV")) or ("wait" in abl and x.kind=="wslot") or ("ks" in abl and (t.startswith("v_accvgpr") or t.startswith("v_pk_mul") or t.startswith("v_and") or t.startswith("v_lshlrev"))))
        static=[x for x in static if not drop(x)]
        static=[x for x in static if x.text!="s_cbranch_vccnz L_fallback"]
    if OPT.get("fake"): static=[x for x in static if x.text!="s_cbranch_vccnz L_fallback"]
    if OPT.get("swap"):
        import re as _re
        for x in body_rem:
            if x.kind=="mfma" and any(x.name.startswith(p) for p in OPT["swap"].split("+")):
                m=_re.match(r"(\S+ [^,]+), ([^,]+), ([^,]+), (.*)",x.text); x.text=f"{m[1]}, {m[3]}, {m[2]}, {m[4]}"
        static=[x for x in static if x.text!="s_cbranch_vccnz L_fallback"]
    hdr=open("standalone__mha_softmax__near_ridge.s.ref").read().split("; Override launch")[0]
    txt=hdr+f"""; One workgroup (4 waves) per head.  K (scaled once by log2(e)/sqrt(D)) and V^T stay in AGPRs: wave w owns keys
; 128w..128w+127 for S^T = K.Q^T and output columns 32w..32w+31 for O^T = V^T.P^T (16x16x32 bf16 MFMA); P and the row sums
; are exchanged through LDS, one barrier per 32-row query tile.  The first tiles are processed key-chunk by key-chunk while
; K and V stream in.  Softmax shift: the fast path shifts by 0; every row sum l is checked at run time (2^-48 <= l <= 2^48,
; inf/NaN included) and if any row leaves that range the whole head is recomputed with the true row max (L_fallback).
; @launch grid=(256,1,1) block=(256,1,1) lds={LDS_BYTES}
.amdgcn_target "amdgcn-amd-amdhsa--gfx950"
.text
.globl {NAME}
.p2align 8
.type {NAME},@function
{NAME}:
"""+emit(static)+f""".section .rodata,"a"
.p2align 6
.amdhsa_kernel {NAME}
  .amdhsa_next_free_vgpr 512
  .amdhsa_next_free_sgpr 102
  .amdhsa_accum_offset 256
  .amdhsa_group_segment_fixed_size 0
  .amdhsa_kernarg_size 48
  .amdhsa_user_sgpr_count 2
  .amdhsa_user_sgpr_kernarg_segment_ptr 1
  .amdhsa_system_sgpr_workgroup_id_x 1
.end_amdhsa_kernel
"""
    return txt

if __name__=="__main__":
    open(sys.argv[1],"w").write(build())
```

```python
import sys, struct, math
from core import *
from sched import *

NAME="standalone__mha_softmax__near_ridge_kernel"
NT=41
QBYTES=335872; KBYTES=131072
OPT=dict(D=4, st="sc0+sc1", ld="nt", stamp=0, wsplit=0, stag=3, ncopy=2)
for a in sys.argv[2:]:
    k,v=a.split("="); OPT[k]=int(v) if v.lstrip("-").isdigit() else v
D=OPT["D"]; NQ=7; T=OPT.get("T",5); LAG=OPT.get("lag",4); LAG0=OPT.get('lag0',3)
STF=(" "+OPT["st"].replace("+"," ")) if OPT["st"]!="none" else ""
LDF=(" "+OPT["ld"].replace("+"," ")) if OPT["ld"]!="none" else ""
QSLOT=8320; PB=[0,33280]; KBASE=PB[T%2]; QBASE=2*33280; QEND=QBASE+NQ*QSLOT; VBASE=QEND; LBASE=VBASE+32768; MBASE=LBASE+1024; LDS_BYTES=LBASE+4096
vQrd,vQrd0,vPw,vPr,vQdma,vOst,vLw,vLr=1,2,3,[None,4,5,6],7,8,9,10
vLmax,vLmin,vR0,vR1,vT=11,12,13,14,15
vLrd,vLacc,vSEL=16,20,[24,28]
vQ=lambda qb,ds:32+qb*16+ds*4
vS=lambda n:64+(n%8)*4
vP=lambda f:96+f*4
vRing=lambda s,k:128+(s%2)*16+k*4
vO=lambda st,qb,db:160+st*16+qb*8+db*4
vOut=lambda qb:192+qb*4
aK=lambda kb,ds:(kb*4+ds)*4
aV=lambda j,kp,db:128+((j*4+kp)*2+db)*4
sQ,sK,sV,sO=4,8,12,16
sW,sLoop,sQso,sQm0,sQrs,sO0,sO1,sT,sC=20,21,22,23,24,25,26,27,28
sWoff=30; sDbg=32
M0=('m0',0); VCC=('vcc',0); SCC=('scc',0)
CSCALE=struct.unpack("<I",struct.pack("<f",math.log2(math.e)/math.sqrt(128.0)))[0]
def bf16(x):
    u=struct.unpack("<I",struct.pack("<f",x))[0]; return (u+0x7fff+((u>>16)&1))>>16
CF=math.log2(math.e)/math.sqrt(128.0); CHI=bf16(CF); CLO=bf16(CF-struct.unpack("<f",struct.pack("<I",CHI<<16))[0])
HI=(127+48)<<23

def dsr128(dst,addr,off,file='v',name=None): return I(f"ds_read_b128 {rs(file,dst,4)}, v{addr} offset:{off}","dsr",V(addr),[(file,dst+i) for i in range(4)],name=name)
def dsw128(addr,src,off): return I(f"ds_write_b128 v{addr}, {rs('v',src,4)} offset:{off}","dsw",V(addr)+V(src,4),[],cost=20)
def dsw64(addr,src,off): return I(f"ds_write_b64 v{addr}, {rs('v',src,2)} offset:{off}","dsw",V(addr)+V(src,2),[],cost=12)
def dsw32(addr,src,off): return I(f"ds_write_b32 v{addr}, v{src} offset:{off}","dsw",V(addr)+V(src),[],cost=8)
def dma(voff,srd,soff,off,flag=LDF): return I(f"buffer_load_dwordx4 v{voff}, s[{srd}:{srd+3}], s{soff} offen offset:{off}{flag} lds","dma",V(voff)+S(srd,4)+S(soff)+[M0],[])
def vld(dst,voff,srd,soff,off,flag=LDF): return I(f"buffer_load_dwordx4 {rs('v',dst,4)}, v{voff}, s[{srd}:{srd+3}], s{soff} offen offset:{off}{flag}","vld",V(voff)+S(srd,4)+S(soff),V(dst,4))
def vst(src,voff,srd,soff,flag=STF): return I(f"buffer_store_dwordx4 {rs('v',src,4)}, v{voff}, s[{srd}:{srd+3}], s{soff} offen{flag}","vst",V(src,4)+V(voff)+S(srd,4)+S(soff),[],meta={"data":V(src,4)})
def vexp(r): return valu(f"v_exp_f32 v{r}, v{r}",V(r),V(r),"trans")
def vcvt(d,a,b): return valu(f"v_cvt_pk_bf16_f32 v{d}, v{a}, v{b}",V(a)+V(b),V(d))
def vcvtp(d,a,b):
    if OPT.get("trunc"): return valu(f"v_perm_b32 v{d}, v{b}, v{a}, s74",V(a)+V(b)+S(74),V(d))
    return vcvt(d,a,b)
def v2(op,d,a,b): return valu(f"{op} v{d}, v{a}, v{b}",V(a)+V(b),V(d))
def bar(**m): return I("s_barrier","bar",meta=m)
def label(t): return I(t,"label")
def comment(t): return I(t,"comment")

def chain_info(n):
    f=(n//2+1)%8; h=n%2
    return f,h,2*(f//2)+h,f%2
def s_block(f,h):
    return (2*((f-1)%8)+h)

class Bld:
    def __init__(s): s.bb=[]; s.ops=[]; s.sops=[]; s.mdeps={}; s.slots=set(); s.tail=[]
    def group(s,g):
        p=len(s.bb); s.bb+=g; s.slots.add(len(s.bb)-1); return p
    def add(s,ins,prio,deps=(),earliest=0,name=None):
        o=Op(ins,prio,deps,earliest,name); s.ops.append(o); return o
    def adds(s,ins,prio,deps=(),name=None,earliest=0):
        o=Op(ins,prio,deps,earliest,name); s.sops.append(o); return o
    def need(s,idx,o): s.mdeps.setdefault(max(idx,0),[]).append(o)
    def barrier(s,gap,deps,keep=False,**meta):
        if keep and gap in s.slots: gap-=1; o=s.adds(bar(**meta),-1,deps,name="BAR",earliest=gap); s.slots.add(gap-1); return o
        o=s.adds(bar(**meta),-1,deps,name="BAR",earliest=max(gap,0)); s.slots.discard(gap); s.slots.add(gap-1); return o
    def run(s,prefix,log=None,overdue=None): return schedule(s.bb,s.ops,s.sops,s.mdeps,prefix,s.slots,s.tail,log,overdue,fill=OPT.get('fill',1))

def qdma_ops(b,t0,deps,tag=None,scc=()):
    m=b.adds(salu(f"s_mov_b32 m0, s{sQm0}",S(sQm0),[M0]),t0-2,deps,name="m0")
    QF=(" "+OPT["lq"].replace("+"," ") if OPT["lq"]!="none" else "") if "lq" in OPT else LDF
    d0=b.add(dma(vQdma,sQ,sQso,0,QF),t0,[m],name="DMA0"); d1=b.add(dma(vQdma,sQ,sQso,1024,QF),t0+4,[d0],name="DMA1")
    d0.ins.cost=d1.ins.cost=OPT.get("dmac",8); d0.ins.tag=d1.ins.tag=tag
    b1=b.adds(salu(f"s_add_u32 s{sQm0}, s{sQm0}, {QSLOT}",S(sQm0),S(sQm0)+[SCC]),t0+10,[m]+list(scc),name="qm+")
    b2=b.adds(salu(f"s_cmp_eq_u32 s{sQm0}, s{sT}",S(sQm0)+S(sT),[SCC]),t0+11,[b1],name="qm?")
    b3=b.adds(salu(f"s_cselect_b32 s{sQm0}, s{sWoff}, s{sQm0}",S(sQm0)+S(sWoff)+[SCC],S(sQm0)),t0+12,[b2],name="qm=")
    b4=b.adds(salu(f"s_add_u32 s{sQso}, s{sQso}, 8192",S(sQso),S(sQso)+[SCC]),t0+14,[d1,b3],name="qso+")
    return d1,b4

def epilogue_ops(b,Ob,loff,t0,tm,dt,ldeps,odeps,prev,scc,sc=1.0,tg=""):
    lr=b.add(dsr128(vLrd,vLr,loff),t0,list(ldeps)+prev.get("L",[]),name="LR"+tg)
    a=b.add(v2("v_add_f32",vLrd,vLrd,vLrd+1),t0+11*sc,[lr],name="La")
    bb_=b.add(v2("v_add_f32",vLrd+2,vLrd+2,vLrd+3),t0+11.5*sc,[lr],name="Lb")
    c=b.add(v2("v_add_f32",vLrd,vLrd,vLrd+2),t0+12*sc,[a,bb_],name="Lc")
    rc=b.add(valu(f"v_rcp_f32 v{vR0}, v{vLrd}",V(vLrd),V(vR0),"trans"),t0+13*sc,[c]+prev.get("M",[]),name="RCP")
    x1=x2=b.add(valu(f"v_max3_u32 v{vLmax}, v{vLmax}, v{vLrd}, v{vR0}",V(vLmax)+V(vLrd)+V(vR0),V(vLmax)),t0+14.5*sc,[rc],name="chk")
    mv=b.add(valu(f"v_mov_b32 v{vR1}, v{vR0}",V(vR0),V(vR1)),t0+14*sc,[rc],name="MOV")
    sw=b.add(valu(f"v_permlane32_swap_b32 v{vR0}, v{vR1}",V(vR0)+V(vR1),V(vR0)+V(vR1),"perm"),t0+15*sc,[mv,x1],name="SWP")
    t=tm; sts=[]; muls=[]
    if OPT.get("pa") and not tg and odeps is None:
        b.ops.remove(mv); b.ops.remove(sw)
        rw=b.add(dsw32(vLw,vR0,3072),t0+14*sc,[rc],name="RW")
        rr=[b.add(dsr128(248+4*(qb),vLr,3072+16*qb),t0+16*sc+qb,[rw],name="RR") for qb in range(2)]
        for qb in range(2):
            for r in range(4):
                m0_=b.add(v2("v_mul_f32",Ob(qb,0)+r,Ob(qb,0)+r,248+4*qb+r),t,[rr[qb]],name=f"M"); t+=dt
                m1_=b.add(v2("v_mul_f32",Ob(qb,1)+r,Ob(qb,1)+r,248+4*qb+r),t,[rr[qb]],name=f"M"); t+=dt
                cv=b.add(vcvt(vOut(qb)+r,Ob(qb,0)+r,Ob(qb,1)+r),t,[m0_,m1_],name="OC"); t+=dt
                st_=b.add(I(f"buffer_store_dword v{vOut(qb)+r}, v0, s[{sO}:{sO+3}], s{sO0 if qb==0 else sO1} offen offset:{r*256}{STF}","vst",V(vOut(qb)+r)+V(0)+S(sO,4)+S(sO0 if qb==0 else sO1),[],cost=8),t,[cv],name="ST")
                if r==3: sts.append(st_)
    for qb in range(2 if not sts else 0):
        cv=[]
        for db in range(2):
            od=[odeps[(qb,db)]] if odeps else []
            for p2 in range(2):
                r=Ob(qb,db)+2*p2; R=vR0 if qb==0 else vR1
                m0_=b.add(v2("v_mul_f32",r,r,R),t,[sw]+od,name=f"M{qb}{db}{2*p2}"); t+=dt
                m1_=b.add(v2("v_mul_f32",r+1,r+1,R),t,[sw]+od,name=f"M{qb}{db}{2*p2+1}"); t+=dt
                muls+=[m0_,m1_]
                cv.append(b.add(vcvt(vOut(qb)+2*db+p2,r,r+1),t,[m0_,m1_]+prev.get("S",[]),name=f"OC{qb}{db}{p2}")); t+=dt
        sts.append(b.add(vst(vOut(qb),vOst,sO,sO0 if qb==0 else sO1),t,cv+prev.get("A",[]),name=f"ST{qb}"+tg)); sts[-1].ins.cost=OPT.get("stc",8)
    e1=b.adds(salu(f"s_add_u32 s{sO0}, s{sO0}, 8192",S(sO0),S(sO0)+[SCC]),t+1,[sts[0]]+list(scc),name="o0+")
    e2=b.adds(salu(f"s_add_u32 s{sO1}, s{sO1}, 8192",S(sO1),S(sO1)+[SCC]),t+2,[sts[1],e1],name="o1+")
    return {"L":[rc,x1,x2],"M":muls,"S":sts,"A":[e2]}

def iter_parts(b, i, par, cur, nxt, pv, ep, dodma, last_bar=True, loopctl=None, baroff=0, Ncustom=None, ctx=None):
    ctx=ctx or {}
    base=len(b.bb)
    def qk(n):
        f,h,kb,qb=chain_info(n)
        return [mfma(vS(n),aK(kb,ds),vQ(qb,ds),None if ds==0 else vS(n),name=f"QK{n}.{ds}") for ds in range(4)]
    so=1-par
    def pvo(qb,db): return [mfma(vO(so,qb,db),aV(0,kp,db),vP(2*kp+qb),None if kp==0 else vO(so,qb,db),name=f"PVo{qb}{db}.{kp}") for kp in range(4)]
    def one(qb): return [mfma(vLacc,vSEL[qb],vP(2*kp+qb),None if (kp==0 and qb==0) else vLacc,afile='v',name=f"ONE{qb}.{kp}") for kp in range(4)]
    sets=[(1,0),(1,1),(2,0),(2,1),(3,0),(3,1)]
    def pvx(s,db):
        j,qb=sets[s]
        return [mfma(vO(so,qb,db),aV(j,kp,db),vRing(s,kp),vO(so,qb,db),name=f"PVx{s}{db}.{kp}") for kp in range(4)]
    N=[("pvo",0,0),("pvo",0,1),("one",0),("pvo",1,0),("pvo",1,1),("one",1)]+[("pvx",s,db) for s in range(6) for db in range(2)]
    if Ncustom: N=[("cus",x) for x in range(18)]
    order=[N[0],N[1]]
    for n in range(16): order+=[("qk",n),N[n+2]]
    if ctx.get("eager"): order[-3],order[-2]=order[-2],order[-3]
    fk=OPT.get("fake",0) if (cur and nxt and pv and ep and not Ncustom) else 0
    if fk:
        order=[]; n=0; x=0
        while x<18 or n<16:
            order+=N[x:x+fk]; x+=fk
            order+=[("qk",m) for m in range(n,min(n+fk,16))]; n+=fk
    G={}; pos={}
    for key in order:
        if key[0]=="qk":
            n=key[1]
            if n>=14 and not nxt and cur and ctx.get("eager"):
                key=("eone",n-14); g=[mfma(vLacc,vSEL[n-14],vP(2*kp+n-14),None if (kp==0 and n==14) else vLacc,afile='v',name=f"eONE{n-14}.{kp}") for kp in range(4)]
            elif not (nxt if n>=14 else cur): continue
            else: g=qk(n)
        elif key[0]=="cus":
            g=Ncustom(key[1])
            if not g: continue
        else:
            if not pv: continue
            g={"pvo":pvo,"one":one,"pvx":pvx}[key[0]](*key[1:])
        if fk and key[0]!="qk" and OPT.get("fakeacc",1):
            d=vO(so,0,0)+4*((N.index(key)//fk)%4)
            for m in g:
                t=m.text.split(", "); t[0]=t[0].split(" ")[0]+f" v[{d}:{d+3}]"; t[3]=f"v[{d}:{d+3}]"; m.text=", ".join(t)
        G[key]=g; pos[key]=b.group(g)
        if key[0]=="cus": ctx["placed"](key[1],pos[key])
    nb=len(b.bb)-base
    nom={}; p=0
    for key in order: nom[key]=p; p+=4
    scale=(nb/136.0) if nb else 0
    import bisect
    alias={("qk",14):("eone",0),("qk",15):("eone",1)}
    pts=sorted((nom[k],pos[k if k in pos else alias[k]]) for k in nom if (k in pos or alias.get(k) in pos))
    def P(t):
        j=max(bisect.bisect_right(pts,(t,1<<30))-1,0)
        n0,a0=pts[j]; a1=pts[j+1][1] if j+1<len(pts) else 1<<30
        return min(a0+(t-n0),a1+(t-n0)*1e-3) if t>=n0 else a0+(t-n0)
    def add(ins,prio,deps=(),earliest=0,name=None):
        o=b.add(ins,P(prio),deps,int(P(earliest)) if earliest else base,name); o.nomp=prio; return o
    def adds(ins,prio,deps=(),name=None,earliest=0): return b.adds(ins,P(prio),deps,name,int(P(earliest)) if earliest else base)
    def need(key,k,o): b.need(pos[key]+k,o)
    rel=lambda o:o.nomp
    must_bar=list(ctx.get("must_bar",[]))
    scc=list(ctx.get("scc",[]))
    E={}
    for n in list(range(16))+[-1]:
        if n==15: continue
        if n==-1:
            if not cur: continue
            blk=vS(15); dep=ctx.get("c15",[]); t0=0
        else:
            if ("qk",n) not in G: continue
            blk=vS(n); dep=[G[("qk",n)][3]]; t0=nom[("qk",n)]+6
        for r in range(4):
            E[(n,r)]=add(vexp(blk+r),t0+2*r,dep,name=f"E{n}.{r}")
            if n>=0: E[(n,r)].prio=pos[("qk",n)]+6+2*r
    if cur:
        for f in range(8):
            qb=f%2; kp=f//2
            war=[G[k][kp] for k in (("pvo",qb,0),("pvo",qb,1),("one",qb)) if k in G]+ctx.get("pwar",{}).get(f,[])
            C=[]
            for h in range(2):
                n=s_block(f,h)
                en = -1 if n==15 else n
                for p2 in range(2):
                    deps=list(war)
                    if f==0 and h==0: t=1+p2; deps+=ctx.get("e14",[])
                    else:
                        deps+=[E[(en,2*p2)],E[(en,2*p2+1)]]; t=rel(E[(en,2*p2+1)])+1
                    c=add(vcvtp(vP(f)+2*h+p2,vS(n)+2*p2,vS(n)+2*p2+1),t,deps,name=f"C{f}.{2*h+p2}")
                    if not (f==0 and h==0): c.prio=E[(en,2*p2+1)].prio+1
                    C.append(c)
                    if ("eone",qb) in G: need(("eone",qb),kp,c)
                    nn=(n+8)%16
                    if ("qk",nn) in G and (n>=14 or n<8): need(("qk",nn),0,c)
            off=PB[par]+f*1024
            if str(f) in str(OPT.get("w32","")).replace("f",""):
                for x in range(4):
                    w=add(dsw32(vPw,vP(f)+x,off+4*x),rel(C[x])+1,[C[x]]+ctx.get("wdep",[]),name=f"W{f}.{x}"); must_bar.append(w)
            elif str(f) in str(OPT.get("w64","")).replace("f",""):
                for x in range(2):
                    w=add(dsw64(vPw,vP(f)+2*x,off+8*x),rel(C[2*x+1])+1,C[2*x:2*x+2]+ctx.get("wdep",[]),name=f"W{f}.{x}"); must_bar.append(w)
            else:
                w=add(dsw128(vPw,vP(f),off),rel(C[3])+1,C+ctx.get("wdep",[]),name=f"W{f}"); must_bar.append(w); w.prio=C[3].prio+1
        for n,ds_ in ctx.get("swar",{}).items():
            for o in ds_: need(("qk",n),0,o)
    if pv:
        for s,(j,qb) in enumerate(sets):
            for k in range(4):
                deps=[G[("pvx",s-2,1)][k]] if s>=2 else []
                t=nom[("pvx",s,0)]-14+k if s>=2 else s*4+k
                o=add(dsr128(vRing(s,k),vPr[j],PB[so]+(2*k+qb)*1024),t,deps,name=f"R{s}.{k}")
                need(("pvx",s,0),-1,o); must_bar.append(o)
        lw=add(dsw32(vLw,vLacc,so*512),nom[("one",1)]+8,[G[("one",1)][3]],name="LW"); must_bar.append(lw)
        if ("eone",0) in G:
            need(("eone",0),0,lw)
            must_bar.append(add(dsw32(vLw,vLacc,par*512),0,[G[("eone",1)][3]],name="eLW"))
    if nxt:
        a1=adds(salu(f"s_add_u32 s{sQrs}, s{sQrs}, {QSLOT}",S(sQrs),S(sQrs)+[SCC]),40,scc,name="qr+")
        a2=adds(salu(f"s_cmp_eq_u32 s{sQrs}, {QEND}",S(sQrs),[SCC]),41,[a1],name="qr?")
        a3=adds(salu(f"s_cselect_b32 s{sQrs}, {QBASE}, s{sQrs}",S(sQrs)+[SCC],S(sQrs)),42,[a2],name="qr=")
        scc=[a3]
        upd=add(valu(f"v_add_u32 v{vQrd}, s{sQrs}, v{vQrd0}",S(sQrs)+V(vQrd0),V(vQrd)),80,[a3]+ctx.get("rqprev",[]),name="qupd")
        for qb in range(2):
            lastn=11 if qb==0 else 13
            for ds in range(4):
                deps=[upd]+([G[("qk",lastn)][ds]] if ("qk",lastn) in G else [])+ctx.get("rqdep",[])
                o=add(dsr128(vQ(qb,ds),vQrd,qb*4160+ds*256),nom[("qk",lastn)]+1+ds,deps,name=f"RQ{qb}.{ds}")
                if qb==0: need(("qk",14),-1,o)
    if dodma:
        d1,b4=qdma_ops(b,P(ctx.get("dmaprio",50)),ctx.get("dmadep",[]),scc=scc); scc=[b4]
    if ep:
        e=epilogue_ops(b,lambda qb,db:vO(par,qb,db),par*512,P(-1),P(OPT.get("ept",24)),OPT.get("epdt",3.2)*scale,[],None,{},scc,sc=scale); scc=e["A"]
    if "late" in ctx: scc=ctx["late"](scc,must_bar)
    if loopctl:
        c1=adds(salu(f"s_sub_u32 s{sLoop}, s{sLoop}, 1",S(sLoop),S(sLoop)+[SCC]),128,scc,name="lp-",earliest=128)
        c2=adds(salu(f"s_cmp_lg_u32 s{sLoop}, 0",S(sLoop),[SCC]),129,[c1],name="lp?",earliest=129)
        b.tail=[I(f"s_cbranch_scc1 {loopctl}","branch",[SCC])]
    b.slots.discard(base+nb-1)
    if last_bar: b.barrier(base+nb-1-baroff,must_bar,keep_dma=2*(D-2),all_ds=1)

def iteration(i, par, cur, nxt, pv, ep, dodma, prefix, log=None, **kw):
    b=Bld(); iter_parts(b,i,par,cur,nxt,pv,ep,dodma,**kw); return b.run(prefix,log)

def drain(i,prefix,log):
    b=Bld(); so=(i-1)%2; par=i%2
    ring=[128,144,64,80,32,48]; last={}
    for qb in range(2):
        for j in range(4):
            s_=qb*3+j-1
            for db in range(2):
                d=vO(so,qb,db)
                g=[mfma(d,aV(j,kp,db),vP(2*kp+qb) if j==0 else ring[s_]+4*kp,None if (j==0 and kp==0) else d,name=f"PV{qb}{j}{db}.{kp}") for kp in range(4)]
                p=b.group(g); last[(qb,db)]=g[3]
                if j and db==0:
                    for k in range(4): b.need(p-1,b.add(dsr128(ring[s_]+4*k,vPr[j],PB[so]+(2*k+qb)*1024),s_*2+k/2,name=f"R{s_}.{k}"))
    e=epilogue_ops(b,lambda qb,db:vO(par,qb,db),par*512,-1,10,0.7,[],None,{},[],sc=0.5)
    epilogue_ops(b,lambda qb,db:vO(so,qb,db),so*512,20,34,0.7,[],last,e,e["A"],sc=0.3,tg="z")
    return b.run(prefix,log)

vOs=[80,112][:T-LAG-1]+[vO(T%2,0,0)]+[200,216,232][:LAG-1]+[vO(1-T%2,0,0)]
vLs=lambda t:248+t
sKo=64
sVm=72
vKA,vVA,vTB,vTD=255,0,192,15
def kdma_units(c):
    u=[]
    for pr in range(4):
        for n in range(2):
            d=dma(vQdma,sK,45,n*1024); d.tag=f"K{c}"
            u.append(([salu(f"s_add_u32 m0, s54, {(pr//2)*4160+(pr%2)*2080}",S(54),[M0,SCC]), salu(f"s_add_u32 s45, s44, {c*8192+pr*2048}",S(44),S(45)+[SCC])] if n==0 else [])+[d])
    return u
def qdma_units(t):
    d0=dma(vQdma,sQ,46,0); d1=dma(vQdma,sQ,46,1024); d0.tag=d1.tag=f"Q{t}"
    return [[salu(f"s_add_u32 m0, s{sWoff}, {(t%NQ)*QSLOT}",S(sWoff),[M0,SCC]),salu(f"s_mov_b32 s46, {t*8192}",[],S(46)),d0],[d1]]
def vdma_units(c):
    u=[]
    for hf in range(2):
        for n in range(4):
            d=dma(vVA,sV,sKo+2*c+hf,n*1024); d.tag=f"V{c}"
            u.append(([salu(f"s_mov_b32 m0, s{sVm+hf}",S(sVm+hf),[M0])] if n==0 else [])+[d])
    return u
flat=lambda u:[x for y in u for x in y]
STREAM=kdma_units(0)+qdma_units(0)+qdma_units(1)+qdma_units(2)+vdma_units(0)+flat([qdma_units(t) for t in range(3,T)])+kdma_units(1)
NPRO=OPT.get("npro",20)
def kread(c):
    o=[dsr128(aK(2*c+h,ds),vKA,h*4160+ds*256,file='a') for h in range(2) for ds in range(4)]
    for x in o: x.meta["tags"]={f"K{c}"}
    return o
aSC=lambda lo,half:aV(lo,3,half)
vKT=[192,196,vLrd]
def ksops(c,j):
    a=aK(2*c+j//8,(j//2)%4)+2*(j%2); d=vKT[j%3]
    return [vcvt(d,d,d+1),vcvt(d+1,d+2,d+3)]+[vop(f"v_accvgpr_write_b32 a{a+x}, v{d+x}",V(d+x),A(a+x)) for x in range(2)]
def kscale(c,extra=None):
    o=[]
    for j in range(16):
        a=aK(2*c+j//8,(j//2)%4); d=vKT[j%3]; x=ksops(c,j-2) if j>=2 else [nop(2),None,nop(2),None]
        if j%2==0: o.append(waitslot())
        o+=[mfma(d,aSC(0,j%2),a,None,bfile='a',name="KSh")]+(extra(j) if extra else [])+x[:2]+[mfma(d,aSC(1,j%2),a,d,bfile='a',name="KSl")]+x[2:]
    return [i for i in o if i is not None]
def startup(prefix,log,off=0):
    b=Bld(); NS=4*T
    Sb=lambda n:64+(n%4)*4
    OWN=OPT.get("own",1) and T-LAG<=2
    Pw=lambda k,qb:96+((k%(4 if OWN else 2))*2+qb)*4
    ownk=lambda k:OWN and k<NS-OPT.get("ownskip",2)
    ent=lambda k,qb:PB[T%2 if (LAG>3 and 3*T<=k<NS-LAG) else 1-T%2]+((k%4)*2+qb)*1024
    assert LAG<=3 or all(k%4 for k in range(3*T,NS-LAG))
    pvstep=lambda k:k+(LAG0 if k<3*T else LAG)
    pvof={pvstep(k):k for k in range(NS)}
    QK={}; PV={}; ONE={}; start={}; end={}; posQ={}; posP={}; posO={}
    def pvg(k,qb,db):
        c,t=divmod(k,T); d=vOs[t]+qb*8+db*4
        return [mfma(d,aV(j,c,db),Pw(k,qb) if (ownk(k) and j==0) else vRing(2*k+qb,j),None if (c==0 and j==0) else d,name=f"PV{k}.{qb}{db}.{j}") for j in range(4)]
    def oneg(k): return [mfma(vLacc,vSEL[0],Pw(k,0),None,afile='v',name=f"ONE{k}.0"),mfma(vLacc,vSEL[1],Pw(k,1),vLacc,afile='v',name=f"ONE{k}.1")]
    for k in range(NS):
        c,t=divmod(k,T)
        start[k]=len(b.bb)
        for ch in range(4):
            kb=2*c+ch%2; qb=ch//2; n=4*k+ch
            QK[(k,ch)]=[mfma(Sb(n),aK(kb,ds),vQ(qb,ds),None if ds==0 else Sb(n),name=f"QK{k}.{ch}.{ds}") for ds in range(4)]
            posQ[(k,ch)]=b.group(QK[(k,ch)])
            if k in pvof:
                key=(pvof[k],ch//2,ch%2); PV[key]=pvg(*key); posP[key]=b.group(PV[key])
            if ch==2 and k>=1: ONE[k-1]=oneg(k-1); posO[k-1]=b.group(ONE[k-1])
        if k==NS-1:
            for n in(14,15):
                f,h,kb,qb=chain_info(n)
                QK[("pre",n)]=[mfma(vS(n),aK(kb,ds),vQ(qb,ds),None if ds==0 else vS(n),name=f"QKp{n}.{ds}") for ds in range(4)]
                posQ[("pre",n)]=b.group(QK[("pre",n)])
        end[k]=len(b.bb)-1
    cus={}
    x=0
    for k in range(NS-LAG,NS):
        for qb in range(2):
            for db in range(2):
                PV[(k,qb,db)]=pvg(k,qb,db); cus[x]=("pv",(k,qb,db)); x+=1
                if x==3: ONE[NS-1]=oneg(NS-1); cus[x]=("one",NS-1); x+=1
    nskip=18-len(cus); hi=OPT.get("skiphi",14)
    skip=set(hi-2*j for j in range(nskip)); slots_=[y for y in range(18) if y not in skip]
    cus={slots_[y]:v for y,v in cus.items()}
    def Ncustom(x):
        if x not in cus: return None
        return PV[cus[x][1]] if cus[x][0]=="pv" else ONE[cus[x][1]]
    def placed(x,p):
        (posP if cus[x][0]=="pv" else posO)[cus[x][1]]=p
    BAR={}; W={}; C={}; LA={}; LW={}; RQ={}; TR={}; E={}
    bdeps={k:[] for k in range(NS)}; btags={k:set() for k in range(NS)}; bneed={k:[] for k in range(NS)}
    for k in range(NS): BAR[k]=b.barrier(end[k]-off,[],tags=btags[k],need=set())
    def bneeds(k,o): BAR[k].deps.append(o); BAR[k].ins.meta["need"].add(id(o.ins))
    for k in range(1,NS): BAR[k].deps.append(BAR[k-1])
    state={"scc":[],"dma":[],"ep":{}}
    def softmax(k):
        c,t=divmod(k,T)
        for ch in range(4):
            n=4*k+ch; qb=ch//2; h=ch%2
            for r in range(4): E[(k,ch,r)]=b.add(vexp(Sb(n)+r),posQ[(k,ch)]+6+2*r,[QK[(k,ch)][3]],name=f"E{k}.{ch}.{r}")
            for p2 in range(2):
                deps=[E[(k,ch,2*p2)],E[(k,ch,2*p2+1)]]
                if OWN:
                    if k>=4: deps+=[ONE[k-4][qb],W[(k-4,qb)],PV[(k-4,qb,0)][0],PV[(k-4,qb,1)][0]]
                elif k>=2: deps+=[ONE[k-2][qb],W[(k-2,qb)]]
                o=b.add(vcvtp(Pw(k,qb)+2*h+p2,Sb(n)+2*p2,Sb(n)+2*p2+1),E[(k,ch,2*p2+1)].prio+1,deps,name=f"C{k}.{ch}.{p2}")
                C[(k,ch,p2)]=o
                if k+1<NS: b.need(posQ[(k+1,ch)],o)
            if h==1:
                W[(k,qb)]=b.add(dsw128(vPw,Pw(k,qb),ent(k,qb)),C[(k,ch,1)].prio+1,[C[(k,cc,pp)] for cc in(ch-1,ch) for pp in range(2)]+([BAR[pvstep(k-4)]] if (k>=4 and pvstep(k-4)<k and ent(k,0)==ent(k-4,0)) else [])+([BAR[k-3]] if k>NS-LAG else []),name=f"W{k}.{qb}")
                if k+1<NS: bneeds(k+1,W[(k,qb)])
    for k in range(NS): softmax(k)
    def one_ops(k):
        c,t=divmod(k,T)
        for cc in range(4):
            for pp in range(2): b.need(posO[k],C[(k,cc,pp)])
        if k>=1: b.need(posO[k],LA[k-1])
        ins=valu(f"v_mov_b32 v{vLs(t)}, v{vLacc}",V(vLacc),V(vLs(t))) if c==0 else v2("v_add_f32",vLs(t),vLs(t),vLacc)
        LA[k]=b.add(ins,posO[k]+6,[ONE[k][1]],name=f"LA{k}")
        if c==3:
            LW[t]=b.add(dsw32(vLw,vLs(t),((T-1)%2)*512 if t==T-1 else 1024+t*512),posO[k]+8,[LA[k]],name=f"LW{t}")
            if k+1<NS: bneeds(k+1,LW[t])
    for k in range(NS-1): one_ops(k)
    def preads(k):
        for qb in range(2):
            for j in range(1 if ownk(k) else 0,4):
                deps=[BAR[k+1]]+([PV[(k-1,qb,1)][j]] if k>=1 else [])
                o=b.add(dsr128(vRing(2*k+qb,j),vPw if j==0 else vPr[j],ent(k,qb)),posP[(k,qb,0)]-OPT.get('rlead',12)+j,deps,name=f"R{k}.{qb}.{j}")
                b.need(posP[(k,qb,0)]-1,o); state.setdefault("R",[]).append(o)
    for k in range(NS-LAG): preads(k)
    for k in range(NS+1):
        t=k%T if k<NS else T%NQ
        for qb in range(2):
            for ds in range(4):
                deps=[QK[(k-1,2*qb+1)][ds]] if k>=1 else []
                if 2<=k<T: deps.append(BAR[k-2]); btags[k-2].add(f"Q{k}")
                if k==NS: deps.append(BAR[NS-2]); btags[NS-2].add(f"Q{T}")
                pr=(posQ[(k-1,2*qb+1)]+1+ds) if k>=1 else 14+4*qb+ds
                o=b.add(dsr128(vQ(qb,ds),vQrd,t*QSLOT+qb*4160+ds*256),pr,deps,name=f"RQ{k}.{qb}.{ds}"); RQ[(k,qb,ds)]=o
                if k<NS: b.need(posQ[(k,2*qb)]-1,o)
                elif qb==0: b.need(posQ[("pre",14)]-1,o)
    btags[NS-1].add(f"Q{T+1}")
    state["chain"]=[]; hard={0,1}
    def issue(units,where,deps,nm):
        for u,(k,fr) in zip(units,where):
            tt=int(start[k]+fr*(end[k]-start[k])); prev=list(deps)+state["chain"]+state["scc"]
            nd=[x.kind for x in u].index("dma")
            for x,ins in enumerate(u):
                if ins.kind=="salu": o=b.adds(ins,tt+x-nd-3,prev,name="s"+nm,earliest=tt+x-nd-3 if x<nd else 0)
                else: o=b.add(ins,tt,prev,earliest=tt,name=nm); ins.cost=OPT.get("sdmac",8)
                prev=[o]
            state["chain"]=prev; state["scc"]=prev
            if k in hard: BAR[k].deps.append(prev[0])
    def spread(n,k0,per):
        w=[]; k=k0
        while len(w)<n:
            m=min(per,n-len(w)); w+=[(k,(x+0.5)/per) for x in range(m)]; k+=1
        return w
    kchain=[]
    def extra(j):
        o=flat(STREAM[12+(NPRO-12)*j//16:12+(NPRO-12)*(j+1)//16])
        if j==9: o+=[waitslot(),bar(tags={"Q0","Q1"},need=set())]
        if 10<=j<14: o+=[RQ[(0,(j-10)//2,2*(j%2)+x)].ins for x in range(2)]
        return o
    for qb in range(2):
        for ds in range(4): o=RQ[(0,qb,ds)]; b.ops.remove(o); o.done=True; o.gap=-1
    ks0=b.add([waitslot()]+kread(0)+kscale(0,extra)+[waitslot()],0,[],name="KS0"); b.need(0,ks0)
    rest=STREAM[NPRO:]
    n0=OPT.get("n0",4); n1=OPT.get("n1",10)
    w=[(0,(x+0.5)/n0) for x in range(n0)]+[(1,OPT.get('f1',30)/100+0.5*x/n1) for x in range(n1)]
    w=w[:len(rest)]; w+=spread(len(rest)-len(w),2,2)
    issue(rest,w,[ks0],"D")
    lastk=w[-1][0]
    for c in range(4):
        s1=pvstep(c*T)-1
        btags[s1-1].add(f"V{c}")
        p0=start[c*T]
        if c==0: ks=ks0
        else:
            kr=[b.add(ins,p0-14+x,kchain,earliest=p0-16,name=f"KR{c}") for x,ins in enumerate(kread(c))]
            ks=b.add(kscale(c),p0,kr+state["TR"],name=f"KS{c}"); b.need(p0,ks)
        aw=[]
        for j in(14,15):
            x=ksops(c,j); prev=[ks]
            for n,ins in enumerate(x): o=b.add(ins,p0-8+j-14+n*0.1,prev,name="Kx"); prev=[o]; aw.append(o); b.need(posQ[(c*T,1)],o)
        state["KS"]=aw
        if 1<=c<3: issue(kdma_units(c+1),spread(8,c*T,OPT.get("kper",6)),[ks],f"KD{c+1}")
        kchain=state["chain"]
        state["TR"]=[]
        for j in range(4):
            r=vPw if j==0 else vPr[j]
            tb=b.add(v2("v_add_u32",vTB+j,vTD,r),start[s1-1]+j,state.get("KS",[]),earliest=start[s1-1],name="TB")
            for db in range(2):
                for hf in range(2):
                    a=aV(j,c,db)+2*hf
                    o=b.add(I(f"ds_read_b64_tr_b16 a[{a}:{a+1}], v{vTB+j} offset:{hf*4096+8*db}","dsr",V(vTB+j),A(a,2)),start[s1]+j*4+db*2+hf,[BAR[s1-1],tb],name=f"TR{c}")
                    b.need(posP[(c*T,0,0)]-1,o); bneeds(s1,o); state["TR"].append(o)
        if c<3: issue(vdma_units(c+1),(spread(8,max(s1+1,lastk,OPT.get("v1",0)),OPT.get("v1per",6)) if c==0 else spread(8,s1+1,OPT.get("vper",6))),[BAR[s1]],f"VD{c+1}")
    state["ep"]={"L":state["KS"],"S":state["TR"]}
    for x in range(D):
        t=T+x; k=min(max(3*T+1+t-NQ,3*T-1+x),NS-1)
        issue(qdma_units(t),[(k,0.25),(k,0.6)],[BAR[3*T+t-NQ]] if t>=NQ else [],"QD")
    chain=state["chain"]
    def ep(t,t0,tm,dt,scc):
        k=3*T+t
        od={(qb,db):PV[(k,qb,db)][3] for qb in range(2) for db in range(2)}
        e=epilogue_ops(b,lambda qb,db:vOs[t]+qb*8+db*4,1024+t*512,t0,tm,dt,[BAR[k+1]],od,state["ep"],scc,sc=0.5,tg=f"t{t}")
        state["ep"]=e; return e
    eps={}; BARX=[]
    for t in range(T-LAG-1+0):
        k=3*T+t+LAG
        eps[t]=ep(t,start[k]+8,start[k]+20,1.3,state["scc"]); state["scc"]=eps[t]["A"]
    if T-LAG>=2:
        for o in eps[0]["M"]+eps[0]["S"]: b.need(posQ[("pre",14)],o)
    e14=[b.add(vexp(vS(14)+r),posQ[("pre",14)]+6+2*r,[QK[("pre",14)][3]],name=f"Ep{r}") for r in range(4)]
    def late(scc,must_bar):
        BAR[NS]=b.barrier(end[NS-1]+1+OPT.get("barx",23)+3-off,[BAR[NS-1]],keep=True,need=set())
        for qb in range(2): bneeds(NS,W[(NS-1,qb)])
        BARX.append(BAR[NS])
        state["R"]=[]
        for k in range(NS-LAG,NS): preads(k)
        must_bar+=state["R"]
        one_ops(NS-1); must_bar.append(LW[T-1])
        for t in range(T-LAG-1,T-1):
            k=3*T+t
            p=posP[(k,0,0)] if k>=NS-LAG else end[NS-1]-8
            eps[t]=ep(t,p-6,p+10,1.2,scc); scc=eps[t]["A"]
        return scc
    last=NS-1
    ctx=dict(dmaprio=5,placed=placed,late=late,scc=state["scc"],c15=[QK[("pre",15)][3]],e14=e14,dmadep=chain+[BAR[last]],
             must_bar=[W[(last,0)],W[(last,1)]],wdep=[BAR[last]],rqdep=[BAR[last]],rqprev=[RQ[(NS,qb,ds)] for qb in range(2) for ds in range(4)],
             pwar={f:[ONE[NS-4+f//2][f%2],W[(NS-4+f//2,f%2)]]+([PV[(NS-4+f//2,f%2,0)][0],PV[(NS-4+f//2,f%2,1)][0]] if ownk(NS-4+f//2) else []) for f in range(8)} if OWN else
                  {0:[ONE[last-1][0],W[(last-1,0)]],1:[ONE[last-1][1],W[(last-1,1)]],2:[ONE[last][0],W[(last,0)]],3:[ONE[last][1],W[(last,1)]],
                   **({f:eps[1]["M"]+eps[1]["S"] for f in range(4,8)} if T-LAG>=3 else {})},
             swar={n:[C[(last,n,pp)] for pp in range(2)] for n in range(4)})
    iter_parts(b,T,T%2,1,1,0,0,1,Ncustom=Ncustom,ctx=ctx,baroff=off)
    b.sops[-1].deps.append(BAR[NS])
    for ds in range(4): b.need(end[last]+1+8-1,RQ[(NS,1,ds)])
    res=b.run(prefix,log,overdue=OPT.get("od",3))
    if OPT["stamp"]==2 and not OPT.get("ps"):
        p0=OPT.get('p0'); pts=[2,3,6,9,13,16,20,23,27] if p0 is None else list(range(p0,p0+9)); o=[]
        for x in res:
            o.append(x)
            for n,k in enumerate(pts):
                if x is BAR[k].ins: o.append(raw(f"{'s_memtime' if OPT.get('cyc') else 's_memrealtime'} s[{78+2*n}:{79+2*n}]"))
        res=o
        if OPT.get("fine"):
            o=[]; on=False; n=0; x_=0
            for x in res:
                if x.kind=="raw" and x.text.startswith("s_mem"): continue
                o.append(x)
                if x is BAR[NS-1].ins: on=True; o.append(raw("s_memtime s[78:79]")); n=1
                if on and x.kind=="mfma":
                    x_+=1
                    if x_%OPT["fine"]==0 and n<9: o.append(raw(f"s_memtime s[{78+2*n}:{79+2*n}]")); n+=1
            res=o
    if OPT.get("seg"):
        idx=[n for n,x in enumerate(res) if x.kind=="bar"]
        print("step est:",[estimate(res[a:z]) for a,z in zip(idx,idx[1:])],file=sys.stderr)
    return res

class Seq:
    def __init__(s,prefix=()): s.o=list(prefix); s.n0=len(s.o)
    def __call__(s,*ins,slot=True):
        for i in ins:
            if slot and i.kind not in("label","comment","salu","wait","branch","raw","nop"): s.o.append(waitslot())
            k=hazard_need(s.o,i)
            if k>0: s.o.append(nop(k))
            s.o.append(i)
    def out(s): return s.o[s.n0:]

def vop(t,rd,wr): return valu(t,rd,wr)
def prologue():
    q=Seq()
    q(salu("s_cmp_ge_u32 s2, 256",S(2),[SCC]), I("s_cbranch_scc1 L_end","branch",[SCC]))
    if OPT["stamp"]: q(raw("s_memtime s[60:61]"),raw("s_memrealtime s[62:63]"),raw(f"s_load_dwordx2 s[{sDbg}:{sDbg+1}], s[0:1], 32"))
    q(raw("s_load_dwordx4 s[36:39], s[0:1], 0"), raw("s_load_dwordx4 s[40:43], s[0:1], 16"))
    L,Q_,G_,T1,T2,T3=200,201,202,203,204,205
    if OPT.get("warm",2):
        q(raw("s_getpc_b64 s[56:57]"), label("L_pc"), raw("s_and_b32 s57, s57, 0xffff"), raw("s_mov_b32 s58, L_end-L_pc"), raw("s_mov_b32 s59, 0x20000"))
        q(vop(f"v_lshlrev_b32 v{T2}, 7, v0",V(0),V(T2)))
    def warm(ks):
        for k in ks:
            q(raw(f"s_mov_b32 s55, {k*32768}"))
            q(I(f"buffer_load_dword v{240+k}, v{T2}, s[56:59], s55 offen","vld",V(T2),V(240+k)),slot=False)
    nw=OPT.get("warm",2); we=OPT.get("wearly",1)
    warm(range(min(we,nw)))
    q(vop(f"v_and_b32 v{L}, 63, v0",V(0),V(L)), vop(f"v_lshrrev_b32 v{T1}, 6, v0",V(0),V(T1)))
    q(I(f"v_readfirstlane_b32 s{sW}, v{T1}","valu",V(T1),S(sW),meta={"rfl":1}))
    q(vop(f"v_and_b32 v{Q_}, 15, v{L}",V(L),V(Q_)), vop(f"v_lshrrev_b32 v{G_}, 4, v{L}",V(L),V(G_)))
    R_,C_=208,209
    q(vop(f"v_bfe_u32 v{R_}, v{L}, 2, 2",V(L),V(R_)), vop(f"v_and_b32 v{C_}, 3, v{L}",V(L),V(C_)))
    q(salu(f"s_mul_i32 s3, s2, {QBYTES}",S(2),S(3)), salu("s_lshl_b32 s31, s2, 17",S(2),S(31)))
    q(salu(f"s_lshl_b32 s46, s{sW}, 11",S(sW),S(46)), salu(f"s_lshl_b32 s{sKo}, s{sW}, 15",S(sW),S(sKo)))
    q(vop(f"v_lshlrev_b32 v{vQdma}, 8, v{R_}",V(R_),V(vQdma)), vop(f"v_lshl_add_u32 v{vQdma}, v{G_}, 6, v{vQdma}",V(G_)+V(vQdma),V(vQdma)),
      vop(f"v_lshl_add_u32 v{vQdma}, v{C_}, 4, v{vQdma}",V(C_)+V(vQdma),V(vQdma)), vop(f"v_add_u32 v{vQdma}, s46, v{vQdma}",S(46)+V(vQdma),V(vQdma)))
    q(salu(f"s_mul_i32 s47, s{sW}, 2080",S(sW),S(47)), salu(f"s_add_u32 s{sWoff}, s47, {QBASE}",S(47),S(sWoff)))
    q(salu(f"s_sub_u32 s44, s{sKo}, s46",S(sKo)+S(46),S(44)), salu(f"s_mul_i32 s54, s{sW}, {QSLOT}",S(sW),S(54)), salu(f"s_add_u32 s54, s54, {KBASE}",S(54),S(54)))
    for srd,nb in((sQ,QBYTES),(sK,KBYTES),(sV,KBYTES),(sO,QBYTES)):
        q(salu(f"s_mov_b32 s{srd+2}, {nb}",[],S(srd+2)), salu(f"s_mov_b32 s{srd+3}, 0x20000",[],S(srd+3)))
    q(raw("s_waitcnt lgkmcnt(0)"))
    def base(srd,src,off):
        q(salu(f"s_add_u32 s{srd}, s{src}, s{off}",S(src)+S(off),S(srd)), salu(f"s_addc_u32 s{srd+1}, s{src+1}, 0",S(src+1),S(srd+1)),
          salu(f"s_and_b32 s{srd+1}, s{srd+1}, 0xffff",S(srd+1),S(srd+1)))
    ps=lambda n:[raw(f"s_memrealtime s[{78+2*n}:{79+2*n}]")] if OPT.get("ps") else []
    base(sK,38,31); q(*ps(0),*flat(STREAM[:8]),*ps(1),slot=False)
    base(sQ,36,3); q(*flat(STREAM[8:12]),slot=False)
    warm(range(min(we,nw),nw))
    base(sV,40,31); base(sO,42,3)
    for n in range(1,8): q(salu(f"s_add_u32 s{sKo+n}, s{sKo}, {n*4096}",S(sKo),S(sKo+n)))
    q(salu(f"s_add_u32 s{sT}, s47, {QEND}",S(47),S(sT)), salu(f"s_add_u32 s{sQm0}, s{sWoff}, {((T+D)%NQ)*QSLOT}",S(sWoff),S(sQm0)), salu(f"s_mov_b32 s{sQso}, {(T+D)*8192}",[],S(sQso)))
    q(vop(f"v_lshlrev_b32 v{T1}, 2, v{G_}",V(G_),V(T1)), vop(f"v_xor_b32 v{T1}, v{T1}, v{Q_}",V(T1)+V(Q_),V(T1)),
      vop(f"v_lshlrev_b32 v{T1}, 4, v{T1}",V(T1),V(T1)), vop(f"v_lshl_add_u32 v{vVA}, v{G_}, 8, v{T1}",V(G_)+V(T1),V(vVA)))
    q(salu(f"s_lshl_b32 s48, s{sW}, 13",S(sW),S(48)), salu(f"s_add_u32 s{sVm}, s48, {VBASE}",S(48),S(sVm)), salu(f"s_add_u32 s{sVm+1}, s48, {VBASE+4096}",S(48),S(sVm+1)))
    q(*ps(2))
    q(vop(f"v_lshrrev_b32 v{T1}, 2, v{Q_}",V(Q_),V(T1)), vop(f"v_lshlrev_b32 v{vQrd0}, 10, v{T1}",V(T1),V(vQrd0)),
      vop(f"v_lshrrev_b32 v{T1}, 3, v{Q_}",V(Q_),V(T1)), vop(f"v_lshl_add_u32 v{vQrd0}, v{T1}, 5, v{vQrd0}",V(T1)+V(vQrd0),V(vQrd0)),
      vop(f"v_lshl_add_u32 v{vQrd0}, v{C_}, 6, v{vQrd0}",V(C_)+V(vQrd0),V(vQrd0)), vop(f"v_lshl_add_u32 v{vQrd0}, v{G_}, 4, v{vQrd0}",V(G_)+V(vQrd0),V(vQrd0)))
    q(salu(f"s_mov_b32 s{sQrs}, {QBASE+(T%NQ)*QSLOT}",[],S(sQrs))); q(vop(f"v_add_u32 v{vQrd}, {QBASE}, v{vQrd0}",V(vQrd0),V(vQrd)))
    for j in range(4):
        q(salu(f"s_add_u32 s49, s{sW}, {j}",S(sW),S(49)), salu("s_and_b32 s49, s49, 3",S(49),S(49)), salu(f"s_lshl_b32 s{50+j}, s49, 13",S(49),S(50+j)))
        r=vPw if j==0 else vPr[j]
        q(vop(f"v_lshl_add_u32 v{r}, v{L}, 4, s{50+j}",V(L)+S(50+j),V(r)))
    q(salu(f"s_lshl_b32 s49, s{sW}, 6",S(sW),S(49)))
    q(vop(f"v_lshlrev_b32 v{vOst}, 8, v{Q_}",V(Q_),V(vOst)), vop(f"v_lshl_add_u32 v{vOst}, v{G_}, 4, v{vOst}",V(G_)+V(vOst),V(vOst)), vop(f"v_add_u32 v{vOst}, s49, v{vOst}",S(49)+V(vOst),V(vOst)))
    q(vop(f"v_lshrrev_b32 v{T1}, 1, v{G_}",V(G_),V(T1)), vop(f"v_lshl_add_u32 v{T1}, v{T1}, 4, v{Q_}",V(T1)+V(Q_),V(T1)),
      vop(f"v_lshlrev_b32 v{T1}, 4, v{T1}",V(T1),V(T1)), vop(f"v_add_u32 v{vLr}, {LBASE}, v{T1}",V(T1),V(vLr)))
    q(salu(f"s_lshl_b32 s49, s{sW}, 2",S(sW),S(49))); q(vop(f"v_add_u32 v{vLw}, s49, v{vLr}",S(49)+V(vLr),V(vLw)))
    q(vop(f"v_mov_b32 v{vLmax}, 0",[],V(vLmax)))
    q(vop(f"v_mov_b32 v{T1}, 0x3f803f80",[],V(T1)), valu(f"v_cmp_gt_u32 vcc, 8, v{Q_}",V(Q_),[VCC]))
    for r in range(4):
        q(valu(f"v_cndmask_b32 v{vSEL[0]+r}, 0, v{T1}, vcc",V(T1)+[VCC],V(vSEL[0]+r)))
        q(vop(f"v_xor_b32 v{vSEL[1]+r}, v{T1}, v{vSEL[0]+r}",V(T1)+V(vSEL[0]+r),V(vSEL[1]+r)))
    if OPT.get("trunc"): q(salu("s_mov_b32 s74, 0x07060302",[],S(74)))
    q(salu(f"s_mov_b32 s{sO0}, 0",[],S(sO0)), salu(f"s_mov_b32 s{sO1}, 4096",[],S(sO1)))
    q(vop(f"v_lshlrev_b32 v{T1}, 2, v{R_}",V(R_),V(T1)), vop(f"v_add_u32 v{T2}, s49, v{C_}",S(49)+V(C_),V(T2)), vop(f"v_xor_b32 v{T2}, v{T2}, v{T1}",V(T1)+V(T2),V(T2)),
      vop(f"v_lshl_add_u32 v{T3}, v{G_}, 2, v{R_}",V(G_)+V(R_),V(T3)), vop(f"v_lshlrev_b32 v{T3}, 8, v{T3}",V(T3),V(T3)), vop(f"v_lshl_add_u32 v{T3}, v{T2}, 4, v{T3}",V(T2)+V(T3),V(T3)),
      vop(f"v_lshlrev_b32 v{T1}, 4, v{L}",V(L),V(T1)), v2("v_sub_u32",T3,T3,T1), vop(f"v_add_u32 v{vTD}, {VBASE}, v{T3}",V(T3),V(vTD)))
    q(vop(f"v_add_u32 v{vKA}, s54, v{vQrd0}",S(54)+V(vQrd0),V(vKA)))
    q(vop(f"v_lshrrev_b32 v{T1}, 2, v{Q_}",V(Q_),V(T1)), valu(f"v_cmp_eq_u32 vcc, v{T1}, v{G_}",V(T1)+V(G_),[VCC]),
      vop(f"v_and_b32 v{T1}, 1, v{L}",V(L),V(T1)), vop(f"v_lshlrev_b32 v{T1}, 4, v{T1}",V(T1),V(T1)),
      vop(f"v_and_b32 v{T2}, 2, v{L}",V(L),V(T2)), valu(f"v_cmp_eq_u32 s[50:51], 0, v{T2}",V(T2),S(50,2)))
    for lo,cb in enumerate((CHI,CLO)):
        q(vop(f"v_mov_b32 v{T2}, {cb:#x}",[],V(T2)), v2("v_lshlrev_b32",T2,T1,T2), valu(f"v_cndmask_b32 v{T2}, 0, v{T2}, vcc",V(T2)+[VCC],V(T2)),
          valu(f"v_cndmask_b32 v{T3}, 0, v{T2}, s[50:51]",V(T2)+S(50,2),V(T3)), v2("v_xor_b32",T2,T2,T3))
        for half in range(2):
            a=aSC(lo,half)
            q(vop(f"v_accvgpr_write_b32 a{a+2*half}, v{T3}",V(T3),A(a+2*half)), vop(f"v_accvgpr_write_b32 a{a+2*half+1}, v{T2}",V(T2),A(a+2*half+1)),
              vop(f"v_accvgpr_write_b32 a{a+2-2*half}, 0",[],A(a+2-2*half)), vop(f"v_accvgpr_write_b32 a{a+3-2*half}, 0",[],A(a+3-2*half)))
    q(*ps(3))
    return q.out()

def fallback():
    q=Seq()
    q(label("L_fallback"), wait(vm=0,lg=0), bar())
    q(salu(f"s_mov_b32 s{sQso}, 0",[],S(sQso)), salu(f"s_mov_b32 s{sO0}, 0",[],S(sO0)), salu(f"s_mov_b32 s{sO1}, 4096",[],S(sO1)), salu(f"s_mov_b32 s{sLoop}, {NT}",[],S(sLoop)))
    q(vop(f"v_add_u32 v{vQrd}, {QBASE}, v{vQrd0}",V(vQrd0),V(vQrd)))
    MW,MR,T=216,217,218
    q(vop(f"v_mbcnt_lo_u32_b32 v{T}, -1, 0",[],V(T)), vop(f"v_mbcnt_hi_u32_b32 v{T}, -1, v{T}",V(T),V(T)),
      vop(f"v_and_b32 v{MR}, 15, v{T}",V(T),V(MR)), vop(f"v_lshlrev_b32 v{MR}, 6, v{MR}",V(MR),V(MR)), vop(f"v_add_u32 v{MR}, {MBASE}, v{MR}",V(MR),V(MR)),
      vop(f"v_lshrrev_b32 v{T}, 4, v{T}",V(T),V(T)), vop(f"v_lshl_add_u32 v{MW}, v{T}, 2, v{MR}",V(T)+V(MR),V(MW)))
    q(salu(f"s_lshl_b32 s49, s{sW}, 4",S(sW),S(49))); q(vop(f"v_add_u32 v{MW}, s49, v{MW}",S(49)+V(MW),V(MW)))
    q(label("L_fb_loop"))
    q(salu(f"s_mov_b32 m0, s{sWoff}",S(sWoff),[M0])); q(dma(vQdma,sQ,sQso,0),dma(vQdma,sQ,sQso,1024)); q(wait(vm=0),bar())
    for qb in range(2):
        for ds in range(4): q(dsr128(vQ(qb,ds),vQrd,qb*4160+ds*256))
    Sb=lambda kb,qb:64+(kb*2+qb)*4
    Pf=lambda f:128+f*4
    for kb in range(8):
        for qb in range(2):
            for ds in range(4): q(mfma(Sb(kb,qb),aK(kb,ds),vQ(qb,ds),None if ds==0 else Sb(kb,qb)))
    Mx=[220,221]; RD=224
    for qb in range(2):
        q(v2("v_max_f32",Mx[qb],Sb(0,qb),Sb(0,qb)+1))
        regs=[Sb(kb,qb)+r for kb in range(8) for r in range(4)][2:]
        for x in range(0,30,2): q(vop(f"v_max3_f32 v{Mx[qb]}, v{Mx[qb]}, v{regs[x]}, v{regs[x+1]}",V(Mx[qb])+V(regs[x])+V(regs[x+1]),V(Mx[qb])))
        q(dsw32(MW,Mx[qb],qb*1024))
    q(bar())
    for qb in range(2):
        for x in range(4): q(dsr128(RD+4*x,MR,qb*1024+16*x))
        q(v2("v_max_f32",Mx[qb],RD,RD+1))
        for x in range(2,16,2): q(vop(f"v_max3_f32 v{Mx[qb]}, v{Mx[qb]}, v{RD+x}, v{RD+x+1}",V(Mx[qb])+V(RD+x)+V(RD+x+1),V(Mx[qb])))
    for kb in range(8):
        for qb in range(2):
            for r in range(4): q(v2("v_sub_f32",Sb(kb,qb)+r,Sb(kb,qb)+r,Mx[qb]),slot=False)
            for r in range(4): q(vexp(Sb(kb,qb)+r),slot=False)
            for p2 in range(2): q(vcvt(Pf(2*(kb//2)+qb)+2*(kb%2)+p2,Sb(kb,qb)+2*p2,Sb(kb,qb)+2*p2+1),slot=False)
    for f in range(8): q(dsw128(vPw,Pf(f),f*1024))
    for qb in range(2):
        for kp in range(4): q(mfma(vLacc,vSEL[qb],Pf(2*kp+qb),None if (kp==0 and qb==0) else vLacc,afile='v'))
    q(dsw32(vLw,vLacc,0)); q(bar())
    for qb in range(2):
        for db in range(2):
            for kp in range(4): q(mfma(vO(0,qb,db),aV(0,kp,db),Pf(2*kp+qb),None if kp==0 else vO(0,qb,db)))
    for j in range(1,4):
        for qb in range(2):
            for k in range(4): q(dsr128(RD+4*k,vPr[j],(2*k+qb)*1024))
            for db in range(2):
                for kp in range(4): q(mfma(vO(0,qb,db),aV(j,kp,db),RD+4*kp,vO(0,qb,db)))
    q(dsr128(vLrd,vLr,0)); q(v2("v_add_f32",vLrd,vLrd,vLrd+1),v2("v_add_f32",vLrd+2,vLrd+2,vLrd+3),v2("v_add_f32",vLrd,vLrd,vLrd+2))
    q(valu(f"v_rcp_f32 v{vR0}, v{vLrd}",V(vLrd),V(vR0),"trans"), vop(f"v_mov_b32 v{vR1}, v{vR0}",V(vR0),V(vR1)),
      valu(f"v_permlane32_swap_b32 v{vR0}, v{vR1}",V(vR0)+V(vR1),V(vR0)+V(vR1),"perm"))
    for qb in range(2):
        for db in range(2):
            for p2 in range(2):
                r=vO(0,qb,db)+2*p2; R=vR0 if qb==0 else vR1
                q(v2("v_mul_f32",r,r,R),v2("v_mul_f32",r+1,r+1,R),vcvt(vOut(qb)+2*db+p2,r,r+1))
        q(vst(vOut(qb),vOst,sO,sO0 if qb==0 else sO1))
    q(salu(f"s_add_u32 s{sO0}, s{sO0}, 8192",S(sO0),S(sO0)), salu(f"s_add_u32 s{sO1}, s{sO1}, 8192",S(sO1),S(sO1)), salu(f"s_add_u32 s{sQso}, s{sQso}, 8192",S(sQso),S(sQso)))
    q(wait(vm=0,lg=0),bar())
    q(salu(f"s_sub_u32 s{sLoop}, s{sLoop}, 1",S(sLoop),S(sLoop)), salu(f"s_cmp_lg_u32 s{sLoop}, 0",S(sLoop),[SCC]), I("s_cbranch_scc1 L_fb_loop","branch",[SCC]))
    return q.out()

def stamp(n):
    if OPT["stamp"]==2: return [raw(f"s_memrealtime s[{76+2*n}:{77+2*n}]")] if n in(0,) else ([raw("s_memrealtime s[98:99]")] if n==1 else [])
    return [raw(f"s_memtime s[{76+4*n}:{77+4*n}]"),raw(f"s_memrealtime s[{78+4*n}:{79+4*n}]")] if OPT["stamp"] else []

def build():
    logs={}
    pro=prologue()+stamp(0)
    def it(i,par,cur,nxt,pv,ep,prefix,**kw):
        lg=[]; r=iteration(i,par,cur,nxt,pv,ep,(i+D<NT) or kw.get("force_dma"),prefix,log=lg,**{k:v for k,v in kw.items() if k!="force_dma"}); logs[i]=lg; return [comment(f"---- iteration {i}")]+r
    U=OPT.get("U",2); nst=40-(T+1); trips=nst//U; rem=nst-trips*U
    stag=OPT.get("stag",0); ncopy=OPT.get("ncopy",4) if stag else 1
    sst=OPT.get("sstag",0)
    disp=[]
    for cp in range(ncopy-1,0,-1):
        disp+=[salu(f"s_cmp_ge_u32 s{sW}, {cp*(4//ncopy)}",S(sW),[SCC]), I(f"s_cbranch_scc1 L_copy{cp}","branch",[SCC])]
    def mk0(off):
        lg=[]; r=[comment("---- start-up steps + merged iteration")]+startup(pro,lg,off); logs[0]=lg
        return r+[salu(f"s_mov_b32 s{sLoop}, {trips}",[],S(sLoop))]+stamp(1)
    def mkend(prev,off):
        r=[]
        for u in range(rem):
            x=it(40-rem+u,(40-rem+u)%2,1,1,1,1,prev,force_dma=True,baroff=off); prev=x; r+=x
        x=stamp(2)+it(40,0,1,0,1,1,prev,ctx={"eager":1},baroff=off)
        return r,x
    if not sst: i0=mk0(0)
    allb=[]; paths=[]; body_rem=[]
    for cp in range(ncopy):
        if sst: i0=mk0(stag*cp)
        body=[]; prev=i0
        for u in range(U):
            x=it(T+1+u,(T+1+u)%2,1,1,1,1,prev,force_dma=True,loopctl=f"L_loop{cp}" if (u==U-1 and trips>1) else None,baroff=stag*cp); body+=x; prev=x
            if u==0: ia=x
            if u==1: ib=x
        if sst or cp==0: br,i40=mkend(prev,stag*cp if sst else 0)
        paths.append(i0+body*min(trips,3)+br+i40)
        allb+=[label(f"L_copy{cp}")]+(i0 if sst else [])+[raw(f".p2align {OPT.get('al',6)}"),label(f"L_loop{cp}")]+body+(br+i40 if sst else [])
        body_rem+=body+br
        if cp<ncopy-1: allb+=[I("s_branch L_after","branch")]
    allb+=[label("L_after")]
    lg=[]; i41=[comment("---- drain")]+drain(41,i40,lg); logs[41]=lg; i42=[]; i1=[]
    main=pro+(disp if sst else i0+disp)+allb+([] if sst else br+i40)+i41
    fin=Seq(i41+i42)
    fin(salu(f"s_mov_b32 s49, {HI:#x}",[],S(49)))
    fin(valu(f"v_cmp_lt_u32 vcc, s49, v{vLmax}",S(49)+V(vLmax),[VCC]))
    fin(nop(5), I("s_cbranch_vccnz L_fallback","branch",[VCC]))
    if OPT["stamp"]==2 and OPT.get("all"):
        fin(raw("s_waitcnt vmcnt(0)"),raw("s_memrealtime s[100:101]"),raw("s_waitcnt lgkmcnt(0)"),raw(f"s_cmp_lg_u32 s{sW}, 0"),raw("s_cbranch_scc1 L_end"))
        fin(raw(f"s_and_b32 s{sDbg+1}, s{sDbg+1}, 0xffff"),raw(f"s_mov_b32 s{sDbg+2}, 4096"),raw(f"s_mov_b32 s{sDbg+3}, 0x20000"))
        fin(raw("s_getreg_b32 s3, hwreg(HW_REG_XCC_ID)"),raw("s_and_b32 s3, s3, 7"),raw("s_and_b32 s55, s62, 0xffffff"),raw("s_lshl_b32 s3, s3, 24"),raw("s_or_b32 s3, s3, s55"),raw("v_mov_b32 v200, s3"))
        for n,r in enumerate((82,98,100)): fin(raw(f"s_sub_u32 s3, s{r}, s62"),raw(f"v_mov_b32 v{201+n}, s3"))
        fin(raw("s_lshl_b32 s3, s2, 4"),raw("v_mov_b32 v220, s3"),raw("s_mov_b64 exec, 1"),raw(f"buffer_store_dwordx4 v[200:203], v220, s[{sDbg}:{sDbg+3}], 0 offen"))
    elif OPT["stamp"]==2:
        fin(raw("s_waitcnt vmcnt(0)"),raw("s_memrealtime s[100:101]"),raw("s_waitcnt lgkmcnt(0)"))
        fin(raw("s_and_b32 s3, s2, 63"),raw("s_cmp_lg_u32 s3, 0"),raw("s_cbranch_scc1 L_end"),raw(f"s_cmp_lg_u32 s{sW}, 0"),raw("s_cbranch_scc1 L_end"))
        fin(raw(f"s_and_b32 s{sDbg+1}, s{sDbg+1}, 0xffff"),raw(f"s_mov_b32 s{sDbg+2}, 256"),raw(f"s_mov_b32 s{sDbg+3}, 0x20000"))
        for n in range(13): fin(raw(f"s_sub_u32 s3, s{76+2*n}, s62"),raw(f"v_mov_b32 v{200+n}, s3"))
        fin(raw("s_lshr_b32 s3, s2, 6"),raw("s_lshl_b32 s3, s3, 6"),raw("v_mov_b32 v220, s3"),raw("s_mov_b64 exec, 1"))
        for n in range(4): fin(raw(f"buffer_store_dwordx4 v[{200+4*n}:{203+4*n}], v220, s[{sDbg}:{sDbg+3}], 0 offen offset:{16*n}"))
    elif OPT["stamp"]:
        fin(*stamp(3)); fin(raw("s_waitcnt vmcnt(0)")); fin(*stamp(4)); fin(raw("s_waitcnt lgkmcnt(0)"))
        sp=OPT.get("spin")
        if sp is not None:
            ex={0:["s_mov_b32 s3, 0"],1:["s_sub_u32 s3, s78, s62","s_lshl_b32 s3, s3, 2"],2:["s_sub_u32 s3, s86, s82"],3:["s_sub_u32 s3, s94, s62"],
                4:["s_sub_u32 s3, s84, s80","s_lshr_b32 s3, s3, 4"],5:["s_sub_u32 s3, s82, s62","s_lshl_b32 s3, s3, 2"]}[sp]
            for e in ex: fin(raw(e))
            fin(raw("s_add_u32 s3, s3, 15000"),label("L_spin"),raw("s_memrealtime s[98:99]"),raw("s_waitcnt lgkmcnt(0)"),raw("s_sub_u32 s98, s98, s62"),raw("s_cmp_lt_u32 s98, s3"),raw("s_cbranch_scc1 L_spin"))
        fin(raw("s_and_b32 s3, s2, 31"),raw("s_cmp_lg_u32 s3, 0"),raw("s_cbranch_scc1 L_end"),raw(f"s_cmp_lg_u32 s{sW}, 0"),raw("s_cbranch_scc1 L_end"))
        fin(raw(f"s_and_b32 s{sDbg+1}, s{sDbg+1}, 0xffff"),raw(f"s_mov_b32 s{sDbg+2}, 256"),raw(f"s_mov_b32 s{sDbg+3}, 0x20000"))
        for n in range(4): fin(raw(f"s_sub_u32 s3, s{76+4*(n+1 if n==3 else n)}, s60"),raw(f"v_mov_b32 v{200+2*n}, s3"),raw(f"s_sub_u32 s3, s{78+4*(n+1 if n==3 else n)}, s62"),raw(f"v_mov_b32 v{201+2*n}, s3"))
        fin(raw("s_lshr_b32 s3, s2, 5"),raw("s_lshl_b32 s3, s3, 5"),raw("v_mov_b32 v208, s3"),raw("s_mov_b64 exec, 1"),
            raw(f"buffer_store_dwordx4 v[200:203], v208, s[{sDbg}:{sDbg+3}], 0 offen"),raw(f"buffer_store_dwordx4 v[204:207], v208, s[{sDbg}:{sDbg+3}], 0 offen offset:16"))
    fin(raw("s_endpgm"))
    fb=fallback()
    static=main+fin.out()+fb+[label("L_end"),raw("s_endpgm")]
    dyns=[pro+p+i41+fin.out() for p in paths]
    for rep in range(2):
        for dyn in dyns: resolve_waits(dyn)
    k=[x for x,y in enumerate(fb) if y.text=="L_fb_loop"][0]
    dynf=fb+fb[k:]
    resolve_waits(dynf)
    for name,d in [("main",d) for d in dyns]+[("fallback",dynf)]:
        bad=check_hazards(d)
        for b in bad: print("HAZARD",name,b,file=sys.stderr)
        assert not bad
        print(name,"max outstanding",max_outstanding(d),file=sys.stderr)
    for nm,sq in(("i0",i0),("i1",i1),("ia",ia),("ib",ib),("i40",i40),("i41",i41),("i42",i42)):
        print(nm,"est cycles",estimate(sq),"nops",sum(1 for x in sq if x.kind=="nop"),"instrs",sum(1 for x in sq if states(x)),file=sys.stderr)
    if "log" in OPT: print("\n".join(logs[OPT["log"]]),file=sys.stderr)
    abl=str(OPT.get("abl","")).split("+")
    if abl!=[""]:
        loop=set(map(id,body_rem)) if not OPT.get('abs') else set(map(id,i0[len(i0)//4:]))
        def drop(x):
            if id(x) not in loop: return False
            t=x.text
            return (("st" in abl and x.kind=="vst") or ("dma" in abl and x.kind=="dma") or ("pr" in abl and x.kind=="dsr" and 128<=min(r[1] for r in x.wr)<160)
              or ("qr" in abl and x.kind=="dsr" and 32<=min(r[1] for r in x.wr)<64) or ("pw" in abl and x.kind=="dsw") or ("exp" in abl and t.startswith("v_exp"))
              or ("cvt" in abl and t.startswith("v_cvt")) or ("one" in abl and x.kind=="mfma" and x.name.startswith("ONE")) or ("bar" in abl and x.kind=="bar")
              or ("mul" in abl and t.startswith("v_mul")) or ("valu" in abl and x.kind in VALU_KINDS) or ("qk" in abl and x.kind=="mfma" and x.name.startswith("QK"))
              or ("pv" in abl and x.kind=="mfma" and x.name.startswith("PV")) or ("wait" in abl and x.kind=="wslot") or ("ks" in abl and (t.startswith("v_accvgpr") or t.startswith("v_pk_mul") or t.startswith("v_and") or t.startswith("v_lshlrev"))))
        static=[x for x in static if not drop(x)]
        static=[x for x in static if x.text!="s_cbranch_vccnz L_fallback"]
    if OPT.get("fake"): static=[x for x in static if x.text!="s_cbranch_vccnz L_fallback"]
    if OPT.get("swap"):
        import re as _re
        for x in body_rem:
            if x.kind=="mfma" and any(x.name.startswith(p) for p in OPT["swap"].split("+")):
                m=_re.match(r"(\S+ [^,]+), ([^,]+), ([^,]+), (.*)",x.text); x.text=f"{m[1]}, {m[3]}, {m[2]}, {m[4]}"
        static=[x for x in static if x.text!="s_cbranch_vccnz L_fallback"]
    hdr=open("standalone__mha_softmax__near_ridge.s.ref").read().split("; Override launch")[0]
    txt=hdr+f"""; One workgroup (4 waves) per head.  K (scaled once by log2(e)/sqrt(D)) and V^T stay in AGPRs: wave w owns keys
; 128w..128w+127 for S^T = K.Q^T and output columns 32w..32w+31 for O^T = V^T.P^T (16x16x32 bf16 MFMA); P and the row sums
; are exchanged through LDS, one barrier per 32-row query tile.  The first tiles are processed key-chunk by key-chunk while
; K and V stream in.  Softmax shift: the fast path shifts by 0; every row sum l is checked at run time (2^-48 <= l <= 2^48,
; inf/NaN included) and if any row leaves that range the whole head is recomputed with the true row max (L_fallback).
; @launch grid=(256,1,1) block=(256,1,1) lds={LDS_BYTES}
.amdgcn_target "amdgcn-amd-amdhsa--gfx950"
.text
.globl {NAME}
.p2align 8
.type {NAME},@function
{NAME}:
"""+emit(static)+f""".section .rodata,"a"
.p2align 6
.amdhsa_kernel {NAME}
  .amdhsa_next_free_vgpr 512
  .amdhsa_next_free_sgpr 102
  .amdhsa_accum_offset 256
  .amdhsa_group_segment_fixed_size 0
  .amdhsa_kernarg_size 48
  .amdhsa_user_sgpr_count 2
  .amdhsa_user_sgpr_kernarg_segment_ptr 1
  .amdhsa_system_sgpr_workgroup_id_x 1
.end_amdhsa_kernel
"""
    return txt

if __name__=="__main__":
    open(sys.argv[1],"w").write(build())
```

```python
import sys, struct, math
from core import *
from sched import *

NAME="standalone__mha_softmax__near_ridge_kernel"
NT=41
QBYTES=335872; KBYTES=131072
OPT=dict(D=4, st="sc0+sc1", ld="nt", stamp=0, wsplit=0, stag=3, ncopy=2)
for a in sys.argv[2:]:
    k,v=a.split("="); OPT[k]=int(v) if v.lstrip("-").isdigit() else v
D=OPT["D"]; NQ=7; T=OPT.get("T",5); LAG=OPT.get("lag",4); LAG0=OPT.get('lag0',3)
STF=(" "+OPT["st"].replace("+"," ")) if OPT["st"]!="none" else ""
LDF=(" "+OPT["ld"].replace("+"," ")) if OPT["ld"]!="none" else ""
QSLOT=8320; PB=[0,33280]; KBASE=PB[T%2]; QBASE=2*33280; QEND=QBASE+NQ*QSLOT; VBASE=QEND; LBASE=VBASE+32768; MBASE=LBASE+1024; LDS_BYTES=LBASE+4096
vQrd,vQrd0,vPw,vPr,vQdma,vOst,vLw,vLr=1,2,3,[None,4,5,6],7,8,9,10
vLmax,vLmin,vR0,vR1,vT=11,12,13,14,15
vLrd,vLacc,vSEL=16,20,[24,28]
vQ=lambda qb,ds:32+qb*16+ds*4
vS=lambda n:64+(n%8)*4
vP=lambda f:96+f*4
vRing=lambda s,k:128+(s%2)*16+k*4
vO=lambda st,qb,db:160+st*16+qb*8+db*4
vOut=lambda qb:192+qb*4
aK=lambda kb,ds:(kb*4+ds)*4
aV=lambda j,kp,db:128+((j*4+kp)*2+db)*4
sQ,sK,sV,sO=4,8,12,16
sW,sLoop,sQso,sQm0,sQrs,sO0,sO1,sT,sC=20,21,22,23,24,25,26,27,28
sWoff=30; sDbg=32
M0=('m0',0); VCC=('vcc',0); SCC=('scc',0)
CSCALE=struct.unpack("<I",struct.pack("<f",math.log2(math.e)/math.sqrt(128.0)))[0]
def bf16(x):
    u=struct.unpack("<I",struct.pack("<f",x))[0]; return (u+0x7fff+((u>>16)&1))>>16
CF=math.log2(math.e)/math.sqrt(128.0); CHI=bf16(CF); CLO=bf16(CF-struct.unpack("<f",struct.pack("<I",CHI<<16))[0])
HI=(127+48)<<23

def dsr128(dst,addr,off,file='v',name=None): return I(f"ds_read_b128 {rs(file,dst,4)}, v{addr} offset:{off}","dsr",V(addr),[(file,dst+i) for i in range(4)],name=name)
def dsw128(addr,src,off): return I(f"ds_write_b128 v{addr}, {rs('v',src,4)} offset:{off}","dsw",V(addr)+V(src,4),[],cost=20)
def dsw64(addr,src,off): return I(f"ds_write_b64 v{addr}, {rs('v',src,2)} offset:{off}","dsw",V(addr)+V(src,2),[],cost=12)
def dsw32(addr,src,off): return I(f"ds_write_b32 v{addr}, v{src} offset:{off}","dsw",V(addr)+V(src),[],cost=8)
def dma(voff,srd,soff,off,flag=LDF): return I(f"buffer_load_dwordx4 v{voff}, s[{srd}:{srd+3}], s{soff} offen offset:{off}{flag} lds","dma",V(voff)+S(srd,4)+S(soff)+[M0],[])
def vld(dst,voff,srd,soff,off,flag=LDF): return I(f"buffer_load_dwordx4 {rs('v',dst,4)}, v{voff}, s[{srd}:{srd+3}], s{soff} offen offset:{off}{flag}","vld",V(voff)+S(srd,4)+S(soff),V(dst,4))
def vst(src,voff,srd,soff,flag=STF): return I(f"buffer_store_dwordx4 {rs('v',src,4)}, v{voff}, s[{srd}:{srd+3}], s{soff} offen{flag}","vst",V(src,4)+V(voff)+S(srd,4)+S(soff),[],meta={"data":V(src,4)})
def vexp(r): return valu(f"v_exp_f32 v{r}, v{r}",V(r),V(r),"trans")
def vcvt(d,a,b): return valu(f"v_cvt_pk_bf16_f32 v{d}, v{a}, v{b}",V(a)+V(b),V(d))
def vcvtp(d,a,b):
    if OPT.get("trunc"): return valu(f"v_perm_b32 v{d}, v{b}, v{a}, s74",V(a)+V(b)+S(74),V(d))
    return vcvt(d,a,b)
def v2(op,d,a,b): return valu(f"{op} v{d}, v{a}, v{b}",V(a)+V(b),V(d))
def bar(**m): return I("s_barrier","bar",meta=m)
def label(t): return I(t,"label")
def comment(t): return I(t,"comment")

def chain_info(n):
    f=(n//2+1)%8; h=n%2
    return f,h,2*(f//2)+h,f%2
def s_block(f,h):
    return (2*((f-1)%8)+h)

class Bld:
    def __init__(s): s.bb=[]; s.ops=[]; s.sops=[]; s.mdeps={}; s.slots=set(); s.tail=[]
    def group(s,g):
        p=len(s.bb); s.bb+=g; s.slots.add(len(s.bb)-1); return p
    def add(s,ins,prio,deps=(),earliest=0,name=None):
        o=Op(ins,prio,deps,earliest,name); s.ops.append(o); return o
    def adds(s,ins,prio,deps=(),name=None,earliest=0):
        o=Op(ins,prio,deps,earliest,name); s.sops.append(o); return o
    def need(s,idx,o): s.mdeps.setdefault(max(idx,0),[]).append(o)
    def barrier(s,gap,deps,keep=False,**meta):
        if keep and gap in s.slots: gap-=1; o=s.adds(bar(**meta),-1,deps,name="BAR",earliest=gap); s.slots.add(gap-1); return o
        o=s.adds(bar(**meta),-1,deps,name="BAR",earliest=max(gap,0)); s.slots.discard(gap); s.slots.add(gap-1); return o
    def run(s,prefix,log=None,overdue=None): return schedule(s.bb,s.ops,s.sops,s.mdeps,prefix,s.slots,s.tail,log,overdue,fill=OPT.get('fill',1))

def qdma_ops(b,t0,deps,tag=None,scc=()):
    m=b.adds(salu(f"s_mov_b32 m0, s{sQm0}",S(sQm0),[M0]),t0-2,deps,name="m0")
    QF=(" "+OPT["lq"].replace("+"," ") if OPT["lq"]!="none" else "") if "lq" in OPT else LDF
    d0=b.add(dma(vQdma,sQ,sQso,0,QF),t0,[m],name="DMA0"); d1=b.add(dma(vQdma,sQ,sQso,1024,QF),t0+4,[d0],name="DMA1")
    d0.ins.cost=d1.ins.cost=OPT.get("dmac",8); d0.ins.tag=d1.ins.tag=tag
    b1=b.adds(salu(f"s_add_u32 s{sQm0}, s{sQm0}, {QSLOT}",S(sQm0),S(sQm0)+[SCC]),t0+10,[m]+list(scc),name="qm+")
    b2=b.adds(salu(f"s_cmp_eq_u32 s{sQm0}, s{sT}",S(sQm0)+S(sT),[SCC]),t0+11,[b1],name="qm?")
    b3=b.adds(salu(f"s_cselect_b32 s{sQm0}, s{sWoff}, s{sQm0}",S(sQm0)+S(sWoff)+[SCC],S(sQm0)),t0+12,[b2],name="qm=")
    b4=b.adds(salu(f"s_add_u32 s{sQso}, s{sQso}, 8192",S(sQso),S(sQso)+[SCC]),t0+14,[d1,b3],name="qso+")
    return d1,b4

def epilogue_ops(b,Ob,loff,t0,tm,dt,ldeps,odeps,prev,scc,sc=1.0,tg=""):
    lr=b.add(dsr128(vLrd,vLr,loff),t0,list(ldeps)+prev.get("L",[]),name="LR"+tg)
    a=b.add(v2("v_add_f32",vLrd,vLrd,vLrd+1),t0+11*sc,[lr],name="La")
    bb_=b.add(v2("v_add_f32",vLrd+2,vLrd+2,vLrd+3),t0+11.5*sc,[lr],name="Lb")
    c=b.add(v2("v_add_f32",vLrd,vLrd,vLrd+2),t0+12*sc,[a,bb_],name="Lc")
    rc=b.add(valu(f"v_rcp_f32 v{vR0}, v{vLrd}",V(vLrd),V(vR0),"trans"),t0+13*sc,[c]+prev.get("M",[]),name="RCP")
    x1=x2=b.add(valu(f"v_max3_u32 v{vLmax}, v{vLmax}, v{vLrd}, v{vR0}",V(vLmax)+V(vLrd)+V(vR0),V(vLmax)),t0+14.5*sc,[rc],name="chk")
    mv=b.add(valu(f"v_mov_b32 v{vR1}, v{vR0}",V(vR0),V(vR1)),t0+14*sc,[rc],name="MOV")
    sw=b.add(valu(f"v_permlane32_swap_b32 v{vR0}, v{vR1}",V(vR0)+V(vR1),V(vR0)+V(vR1),"perm"),t0+15*sc,[mv,x1],name="SWP")
    t=tm; sts=[]; muls=[]
    if OPT.get("pa") and not tg and odeps is None:
        b.ops.remove(mv); b.ops.remove(sw)
        rw=b.add(dsw32(vLw,vR0,3072),t0+14*sc,[rc],name="RW")
        rr=[b.add(dsr128(248+4*(qb),vLr,3072+16*qb),t0+16*sc+qb,[rw],name="RR") for qb in range(2)]
        for qb in range(2):
            for r in range(4):
                m0_=b.add(v2("v_mul_f32",Ob(qb,0)+r,Ob(qb,0)+r,248+4*qb+r),t,[rr[qb]],name=f"M"); t+=dt
                m1_=b.add(v2("v_mul_f32",Ob(qb,1)+r,Ob(qb,1)+r,248+4*qb+r),t,[rr[qb]],name=f"M"); t+=dt
                cv=b.add(vcvt(vOut(qb)+r,Ob(qb,0)+r,Ob(qb,1)+r),t,[m0_,m1_],name="OC"); t+=dt
                st_=b.add(I(f"buffer_store_dword v{vOut(qb)+r}, v0, s[{sO}:{sO+3}], s{sO0 if qb==0 else sO1} offen offset:{r*256}{STF}","vst",V(vOut(qb)+r)+V(0)+S(sO,4)+S(sO0 if qb==0 else sO1),[],cost=8),t,[cv],name="ST")
                if r==3: sts.append(st_)
    for qb in range(2 if not sts else 0):
        cv=[]
        for db in range(2):
            od=[odeps[(qb,db)]] if odeps else []
            for p2 in range(2):
                r=Ob(qb,db)+2*p2; R=vR0 if qb==0 else vR1
                m0_=b.add(v2("v_mul_f32",r,r,R),t,[sw]+od,name=f"M{qb}{db}{2*p2}"); t+=dt
                m1_=b.add(v2("v_mul_f32",r+1,r+1,R),t,[sw]+od,name=f"M{qb}{db}{2*p2+1}"); t+=dt
                muls+=[m0_,m1_]
                cv.append(b.add(vcvt(vOut(qb)+2*db+p2,r,r+1),t,[m0_,m1_]+prev.get("S",[]),name=f"OC{qb}{db}{p2}")); t+=dt
        sts.append(b.add(vst(vOut(qb),vOst,sO,sO0 if qb==0 else sO1),t,cv+prev.get("A",[]),name=f"ST{qb}"+tg)); sts[-1].ins.cost=OPT.get("stc",8)
    e1=b.adds(salu(f"s_add_u32 s{sO0}, s{sO0}, 8192",S(sO0),S(sO0)+[SCC]),t+1,[sts[0]]+list(scc),name="o0+")
    e2=b.adds(salu(f"s_add_u32 s{sO1}, s{sO1}, 8192",S(sO1),S(sO1)+[SCC]),t+2,[sts[1],e1],name="o1+")
    return {"L":[rc,x1,x2],"M":muls,"S":sts,"A":[e2]}

def iter_parts(b, i, par, cur, nxt, pv, ep, dodma, last_bar=True, loopctl=None, baroff=0, Ncustom=None, ctx=None):
    ctx=ctx or {}
    base=len(b.bb)
    def qk(n):
        f,h,kb,qb=chain_info(n)
        return [mfma(vS(n),aK(kb,ds),vQ(qb,ds),None if ds==0 else vS(n),name=f"QK{n}.{ds}") for ds in range(4)]
    so=1-par
    def pvo(qb,db): return [mfma(vO(so,qb,db),aV(0,kp,db),vP(2*kp+qb),None if kp==0 else vO(so,qb,db),name=f"PVo{qb}{db}.{kp}") for kp in range(4)]
    def one(qb): return [mfma(vLacc,vSEL[qb],vP(2*kp+qb),None if (kp==0 and qb==0) else vLacc,afile='v',name=f"ONE{qb}.{kp}") for kp in range(4)]
    sets=[(1,0),(1,1),(2,0),(2,1),(3,0),(3,1)]
    def pvx(s,db):
        j,qb=sets[s]
        return [mfma(vO(so,qb,db),aV(j,kp,db),vRing(s,kp),vO(so,qb,db),name=f"PVx{s}{db}.{kp}") for kp in range(4)]
    N=[("pvo",0,0),("pvo",0,1),("one",0),("pvo",1,0),("pvo",1,1),("one",1)]+[("pvx",s,db) for s in range(6) for db in range(2)]
    if Ncustom: N=[("cus",x) for x in range(18)]
    order=[N[0],N[1]]
    for n in range(16): order+=[("qk",n),N[n+2]]
    if ctx.get("eager"): order[-3],order[-2]=order[-2],order[-3]
    fk=OPT.get("fake",0) if (cur and nxt and pv and ep and not Ncustom) else 0
    if fk:
        order=[]; n=0; x=0
        while x<18 or n<16:
            order+=N[x:x+fk]; x+=fk
            order+=[("qk",m) for m in range(n,min(n+fk,16))]; n+=fk
    G={}; pos={}
    for key in order:
        if key[0]=="qk":
            n=key[1]
            if n>=14 and not nxt and cur and ctx.get("eager"):
                key=("eone",n-14); g=[mfma(vLacc,vSEL[n-14],vP(2*kp+n-14),None if (kp==0 and n==14) else vLacc,afile='v',name=f"eONE{n-14}.{kp}") for kp in range(4)]
            elif not (nxt if n>=14 else cur): continue
            else: g=qk(n)
        elif key[0]=="cus":
            g=Ncustom(key[1])
            if not g: continue
        else:
            if not pv: continue
            g={"pvo":pvo,"one":one,"pvx":pvx}[key[0]](*key[1:])
        if fk and key[0]!="qk" and OPT.get("fakeacc",1):
            d=vO(so,0,0)+4*((N.index(key)//fk)%4)
            for m in g:
                t=m.text.split(", "); t[0]=t[0].split(" ")[0]+f" v[{d}:{d+3}]"; t[3]=f"v[{d}:{d+3}]"; m.text=", ".join(t)
        G[key]=g; pos[key]=b.group(g)
        if key[0]=="cus": ctx["placed"](key[1],pos[key])
    nb=len(b.bb)-base
    nom={}; p=0
    for key in order: nom[key]=p; p+=4
    scale=(nb/136.0) if nb else 0
    import bisect
    alias={("qk",14):("eone",0),("qk",15):("eone",1)}
    pts=sorted((nom[k],pos[k if k in pos else alias[k]]) for k in nom if (k in pos or alias.get(k) in pos))
    def P(t):
        j=max(bisect.bisect_right(pts,(t,1<<30))-1,0)
        n0,a0=pts[j]; a1=pts[j+1][1] if j+1<len(pts) else 1<<30
        return min(a0+(t-n0),a1+(t-n0)*1e-3) if t>=n0 else a0+(t-n0)
    def add(ins,prio,deps=(),earliest=0,name=None):
        o=b.add(ins,P(prio),deps,int(P(earliest)) if earliest else base,name); o.nomp=prio; return o
    def adds(ins,prio,deps=(),name=None,earliest=0): return b.adds(ins,P(prio),deps,name,int(P(earliest)) if earliest else base)
    def need(key,k,o): b.need(pos[key]+k,o)
    rel=lambda o:o.nomp
    must_bar=list(ctx.get("must_bar",[]))
    scc=list(ctx.get("scc",[]))
    E={}
    for n in list(range(16))+[-1]:
        if n==15: continue
        if n==-1:
            if not cur: continue
            blk=vS(15); dep=ctx.get("c15",[]); t0=0
        else:
            if ("qk",n) not in G: continue
            blk=vS(n); dep=[G[("qk",n)][3]]; t0=nom[("qk",n)]+6
        for r in range(4):
            E[(n,r)]=add(vexp(blk+r),t0+2*r,dep,name=f"E{n}.{r}")
            if n>=0: E[(n,r)].prio=pos[("qk",n)]+6+2*r
    if cur:
        for f in range(8):
            qb=f%2; kp=f//2
            war=[G[k][kp] for k in (("pvo",qb,0),("pvo",qb,1),("one",qb)) if k in G]+ctx.get("pwar",{}).get(f,[])
            C=[]
            for h in range(2):
                n=s_block(f,h)
                en = -1 if n==15 else n
                for p2 in range(2):
                    deps=list(war)
                    if f==0 and h==0: t=1+p2; deps+=ctx.get("e14",[])
                    else:
                        deps+=[E[(en,2*p2)],E[(en,2*p2+1)]]; t=rel(E[(en,2*p2+1)])+1
                    c=add(vcvtp(vP(f)+2*h+p2,vS(n)+2*p2,vS(n)+2*p2+1),t,deps,name=f"C{f}.{2*h+p2}")
                    if not (f==0 and h==0): c.prio=E[(en,2*p2+1)].prio+1
                    C.append(c)
                    if ("eone",qb) in G: need(("eone",qb),kp,c)
                    nn=(n+8)%16
                    if ("qk",nn) in G and (n>=14 or n<8): need(("qk",nn),0,c)
            off=PB[par]+f*1024
            if str(f) in str(OPT.get("w32","")).replace("f",""):
                for x in range(4):
                    w=add(dsw32(vPw,vP(f)+x,off+4*x),rel(C[x])+1,[C[x]]+ctx.get("wdep",[]),name=f"W{f}.{x}"); must_bar.append(w)
            elif str(f) in str(OPT.get("w64","")).replace("f",""):
                for x in range(2):
                    w=add(dsw64(vPw,vP(f)+2*x,off+8*x),rel(C[2*x+1])+1,C[2*x:2*x+2]+ctx.get("wdep",[]),name=f"W{f}.{x}"); must_bar.append(w)
            else:
                w=add(dsw128(vPw,vP(f),off),rel(C[3])+1,C+ctx.get("wdep",[]),name=f"W{f}"); must_bar.append(w); w.prio=C[3].prio+1
        for n,ds_ in ctx.get("swar",{}).items():
            for o in ds_: need(("qk",n),0,o)
    if pv:
        for s,(j,qb) in enumerate(sets):
            for k in range(4):
                deps=[G[("pvx",s-2,1)][k]] if s>=2 else []
                t=nom[("pvx",s,0)]-14+k if s>=2 else s*4+k
                o=add(dsr128(vRing(s,k),vPr[j],PB[so]+(2*k+qb)*1024),t,deps,name=f"R{s}.{k}")
                need(("pvx",s,0),-1,o); must_bar.append(o)
        lw=add(dsw32(vLw,vLacc,so*512),nom[("one",1)]+8,[G[("one",1)][3]],name="LW"); must_bar.append(lw)
        if ("eone",0) in G:
            need(("eone",0),0,lw)
            must_bar.append(add(dsw32(vLw,vLacc,par*512),0,[G[("eone",1)][3]],name="eLW"))
    if nxt:
        a1=adds(salu(f"s_add_u32 s{sQrs}, s{sQrs}, {QSLOT}",S(sQrs),S(sQrs)+[SCC]),40,scc,name="qr+")
        a2=adds(salu(f"s_cmp_eq_u32 s{sQrs}, {QEND}",S(sQrs),[SCC]),41,[a1],name="qr?")
        a3=adds(salu(f"s_cselect_b32 s{sQrs}, {QBASE}, s{sQrs}",S(sQrs)+[SCC],S(sQrs)),42,[a2],name="qr=")
        scc=[a3]
        upd=add(valu(f"v_add_u32 v{vQrd}, s{sQrs}, v{vQrd0}",S(sQrs)+V(vQrd0),V(vQrd)),80,[a3]+ctx.get("rqprev",[]),name="qupd")
        for qb in range(2):
            lastn=11 if qb==0 else 13
            for ds in range(4):
                deps=[upd]+([G[("qk",lastn)][ds]] if ("qk",lastn) in G else [])+ctx.get("rqdep",[])
                o=add(dsr128(vQ(qb,ds),vQrd,qb*4160+ds*256),nom[("qk",lastn)]+1+ds,deps,name=f"RQ{qb}.{ds}")
                if qb==0: need(("qk",14),-1,o)
    if dodma:
        d1,b4=qdma_ops(b,P(ctx.get("dmaprio",50)),ctx.get("dmadep",[]),scc=scc); scc=[b4]
    if ep:
        e=epilogue_ops(b,lambda qb,db:vO(par,qb,db),par*512,P(-1),P(OPT.get("ept",24)),OPT.get("epdt",3.2)*scale,[],None,{},scc,sc=scale); scc=e["A"]
    if "late" in ctx: scc=ctx["late"](scc,must_bar)
    if loopctl:
        c1=adds(salu(f"s_sub_u32 s{sLoop}, s{sLoop}, 1",S(sLoop),S(sLoop)+[SCC]),128,scc,name="lp-",earliest=128)
        c2=adds(salu(f"s_cmp_lg_u32 s{sLoop}, 0",S(sLoop),[SCC]),129,[c1],name="lp?",earliest=129)
        b.tail=[I(f"s_cbranch_scc1 {loopctl}","branch",[SCC])]
    b.slots.discard(base+nb-1)
    if last_bar: b.barrier(base+nb-1-baroff,must_bar,keep_dma=2*(D-2),all_ds=1)

def iteration(i, par, cur, nxt, pv, ep, dodma, prefix, log=None, **kw):
    b=Bld(); iter_parts(b,i,par,cur,nxt,pv,ep,dodma,**kw); return b.run(prefix,log)

def drain(i,prefix,log):
    b=Bld(); so=(i-1)%2; par=i%2
    ring=[128,144,64,80,32,48]; last={}
    for qb in range(2):
        for j in range(4):
            s_=qb*3+j-1
            for db in range(2):
                d=vO(so,qb,db)
                g=[mfma(d,aV(j,kp,db),vP(2*kp+qb) if j==0 else ring[s_]+4*kp,None if (j==0 and kp==0) else d,name=f"PV{qb}{j}{db}.{kp}") for kp in range(4)]
                p=b.group(g); last[(qb,db)]=g[3]
                if j and db==0:
                    for k in range(4): b.need(p-1,b.add(dsr128(ring[s_]+4*k,vPr[j],PB[so]+(2*k+qb)*1024),s_*2+k/2,name=f"R{s_}.{k}"))
    e=epilogue_ops(b,lambda qb,db:vO(par,qb,db),par*512,-1,10,0.7,[],None,{},[],sc=0.5)
    epilogue_ops(b,lambda qb,db:vO(so,qb,db),so*512,20,34,0.7,[],last,e,e["A"],sc=0.3,tg="z")
    return b.run(prefix,log)

vOs=[80,112][:T-LAG-1]+[vO(T%2,0,0)]+[200,216,232][:LAG-1]+[vO(1-T%2,0,0)]
vLs=lambda t:248+t
sKo=64
sVm=72
vKA,vVA,vTB,vTD=255,0,192,15
def kdma_units(c):
    u=[]
    for pr in range(4):
        for n in range(2):
            d=dma(vQdma,sK,45,n*1024); d.tag=f"K{c}"
            u.append(([salu(f"s_add_u32 m0, s54, {(pr//2)*4160+(pr%2)*2080}",S(54),[M0,SCC]), salu(f"s_add_u32 s45, s44, {c*8192+pr*2048}",S(44),S(45)+[SCC])] if n==0 else [])+[d])
    return u
def qdma_units(t):
    d0=dma(vQdma,sQ,46,0); d1=dma(vQdma,sQ,46,1024); d0.tag=d1.tag=f"Q{t}"
    return [[salu(f"s_add_u32 m0, s{sWoff}, {(t%NQ)*QSLOT}",S(sWoff),[M0,SCC]),salu(f"s_mov_b32 s46, {t*8192}",[],S(46)),d0],[d1]]
def vdma_units(c):
    u=[]
    for hf in range(2):
        for n in range(4):
            d=dma(vVA,sV,sKo+2*c+hf,n*1024); d.tag=f"V{c}"
            u.append(([salu(f"s_mov_b32 m0, s{sVm+hf}",S(sVm+hf),[M0])] if n==0 else [])+[d])
    return u
flat=lambda u:[x for y in u for x in y]
STREAM=kdma_units(0)+qdma_units(0)+qdma_units(1)+qdma_units(2)+vdma_units(0)+flat([qdma_units(t) for t in range(3,T)])+kdma_units(1)
NPRO=OPT.get("npro",20)
def kread(c):
    o=[dsr128(aK(2*c+h,ds),vKA,h*4160+ds*256,file='a') for h in range(2) for ds in range(4)]
    for x in o: x.meta["tags"]={f"K{c}"}
    return o
aSC=lambda lo,half:aV(lo,3,half)
vKT=[192,196,vLrd]
def ksops(c,j):
    a=aK(2*c+j//8,(j//2)%4)+2*(j%2); d=vKT[j%3]
    return [vcvt(d,d,d+1),vcvt(d+1,d+2,d+3)]+[vop(f"v_accvgpr_write_b32 a{a+x}, v{d+x}",V(d+x),A(a+x)) for x in range(2)]
def kscale(c,extra=None):
    o=[]
    for j in range(16):
        a=aK(2*c+j//8,(j//2)%4); d=vKT[j%3]; x=ksops(c,j-2) if j>=2 else [nop(2),None,nop(2),None]
        if j%2==0: o.append(waitslot())
        o+=[mfma(d,aSC(0,j%2),a,None,bfile='a',name="KSh")]+(extra(j) if extra else [])+x[:2]+[mfma(d,aSC(1,j%2),a,d,bfile='a',name="KSl")]+x[2:]
    return [i for i in o if i is not None]
def startup(prefix,log,off=0):
    b=Bld(); NS=4*T
    Sb=lambda n:64+(n%4)*4
    OWN=OPT.get("own",1) and T-LAG<=2
    Pw=lambda k,qb:96+((k%(4 if OWN else 2))*2+qb)*4
    ownk=lambda k:OWN and k<NS-OPT.get("ownskip",2)
    ent=lambda k,qb:PB[T%2 if (LAG>3 and 3*T<=k<NS-LAG) else 1-T%2]+((k%4)*2+qb)*1024
    assert LAG<=3 or all(k%4 for k in range(3*T,NS-LAG))
    pvstep=lambda k:k+(LAG0 if k<3*T else LAG)
    pvof={pvstep(k):k for k in range(NS)}
    QK={}; PV={}; ONE={}; start={}; end={}; posQ={}; posP={}; posO={}
    def pvg(k,qb,db):
        c,t=divmod(k,T); d=vOs[t]+qb*8+db*4
        return [mfma(d,aV(j,c,db),Pw(k,qb) if (ownk(k) and j==0) else vRing(2*k+qb,j),None if (c==0 and j==0) else d,name=f"PV{k}.{qb}{db}.{j}") for j in range(4)]
    def oneg(k): return [mfma(vLacc,vSEL[0],Pw(k,0),None,afile='v',name=f"ONE{k}.0"),mfma(vLacc,vSEL[1],Pw(k,1),vLacc,afile='v',name=f"ONE{k}.1")]
    for k in range(NS):
        c,t=divmod(k,T)
        start[k]=len(b.bb)
        for ch in range(4):
            kb=2*c+ch%2; qb=ch//2; n=4*k+ch
            QK[(k,ch)]=[mfma(Sb(n),aK(kb,ds),vQ(qb,ds),None if ds==0 else Sb(n),name=f"QK{k}.{ch}.{ds}") for ds in range(4)]
            posQ[(k,ch)]=b.group(QK[(k,ch)])
            if k in pvof:
                key=(pvof[k],ch//2,ch%2); PV[key]=pvg(*key); posP[key]=b.group(PV[key])
            if ch==2 and k>=1: ONE[k-1]=oneg(k-1); posO[k-1]=b.group(ONE[k-1])
        if k==NS-1:
            for n in(14,15):
                f,h,kb,qb=chain_info(n)
                QK[("pre",n)]=[mfma(vS(n),aK(kb,ds),vQ(qb,ds),None if ds==0 else vS(n),name=f"QKp{n}.{ds}") for ds in range(4)]
                posQ[("pre",n)]=b.group(QK[("pre",n)])
        end[k]=len(b.bb)-1
    cus={}
    x=0
    for k in range(NS-LAG,NS):
        for qb in range(2):
            for db in range(2):
                PV[(k,qb,db)]=pvg(k,qb,db); cus[x]=("pv",(k,qb,db)); x+=1
                if x==3: ONE[NS-1]=oneg(NS-1); cus[x]=("one",NS-1); x+=1
    nskip=18-len(cus); hi=OPT.get("skiphi",14)
    skip=set(hi-2*j for j in range(nskip)); slots_=[y for y in range(18) if y not in skip]
    cus={slots_[y]:v for y,v in cus.items()}
    def Ncustom(x):
        if x not in cus: return None
        return PV[cus[x][1]] if cus[x][0]=="pv" else ONE[cus[x][1]]
    def placed(x,p):
        (posP if cus[x][0]=="pv" else posO)[cus[x][1]]=p
    BAR={}; W={}; C={}; LA={}; LW={}; RQ={}; TR={}; E={}
    bdeps={k:[] for k in range(NS)}; btags={k:set() for k in range(NS)}; bneed={k:[] for k in range(NS)}
    for k in range(NS): BAR[k]=b.barrier(end[k]-off,[],tags=btags[k],need=set())
    def bneeds(k,o): BAR[k].deps.append(o); BAR[k].ins.meta["need"].add(id(o.ins))
    for k in range(1,NS): BAR[k].deps.append(BAR[k-1])
    state={"scc":[],"dma":[],"ep":{}}
    def softmax(k):
        c,t=divmod(k,T)
        for ch in range(4):
            n=4*k+ch; qb=ch//2; h=ch%2
            for r in range(4): E[(k,ch,r)]=b.add(vexp(Sb(n)+r),posQ[(k,ch)]+6+2*r,[QK[(k,ch)][3]],name=f"E{k}.{ch}.{r}")
            for p2 in range(2):
                deps=[E[(k,ch,2*p2)],E[(k,ch,2*p2+1)]]
                if OWN:
                    if k>=4: deps+=[ONE[k-4][qb],W[(k-4,qb)],PV[(k-4,qb,0)][0],PV[(k-4,qb,1)][0]]
                elif k>=2: deps+=[ONE[k-2][qb],W[(k-2,qb)]]
                o=b.add(vcvtp(Pw(k,qb)+2*h+p2,Sb(n)+2*p2,Sb(n)+2*p2+1),E[(k,ch,2*p2+1)].prio+1,deps,name=f"C{k}.{ch}.{p2}")
                C[(k,ch,p2)]=o
                if k+1<NS: b.need(posQ[(k+1,ch)],o)
            if h==1:
                W[(k,qb)]=b.add(dsw128(vPw,Pw(k,qb),ent(k,qb)),C[(k,ch,1)].prio+1,[C[(k,cc,pp)] for cc in(ch-1,ch) for pp in range(2)]+([BAR[pvstep(k-4)]] if (k>=4 and pvstep(k-4)<k and ent(k,0)==ent(k-4,0)) else [])+([BAR[k-3]] if k>NS-LAG else []),name=f"W{k}.{qb}")
                if k+1<NS: bneeds(k+1,W[(k,qb)])
    for k in range(NS): softmax(k)
    def one_ops(k):
        c,t=divmod(k,T)
        for cc in range(4):
            for pp in range(2): b.need(posO[k],C[(k,cc,pp)])
        if k>=1: b.need(posO[k],LA[k-1])
        ins=valu(f"v_mov_b32 v{vLs(t)}, v{vLacc}",V(vLacc),V(vLs(t))) if c==0 else v2("v_add_f32",vLs(t),vLs(t),vLacc)
        LA[k]=b.add(ins,posO[k]+6,[ONE[k][1]],name=f"LA{k}")
        if c==3:
            LW[t]=b.add(dsw32(vLw,vLs(t),((T-1)%2)*512 if t==T-1 else 1024+t*512),posO[k]+8,[LA[k]],name=f"LW{t}")
            if k+1<NS: bneeds(k+1,LW[t])
    for k in range(NS-1): one_ops(k)
    def preads(k):
        for qb in range(2):
            for j in range(1 if ownk(k) else 0,4):
                deps=[BAR[k+1]]+([PV[(k-1,qb,1)][j]] if k>=1 else [])
                o=b.add(dsr128(vRing(2*k+qb,j),vPw if j==0 else vPr[j],ent(k,qb)),posP[(k,qb,0)]-OPT.get('rlead',12)+j,deps,name=f"R{k}.{qb}.{j}")
                b.need(posP[(k,qb,0)]-1,o); state.setdefault("R",[]).append(o)
    for k in range(NS-LAG): preads(k)
    for k in range(NS+1):
        t=k%T if k<NS else T%NQ
        for qb in range(2):
            for ds in range(4):
                deps=[QK[(k-1,2*qb+1)][ds]] if k>=1 else []
                if 2<=k<T: deps.append(BAR[k-2]); btags[k-2].add(f"Q{k}")
                if k==NS: deps.append(BAR[NS-2]); btags[NS-2].add(f"Q{T}")
                pr=(posQ[(k-1,2*qb+1)]+1+ds) if k>=1 else 14+4*qb+ds
                o=b.add(dsr128(vQ(qb,ds),vQrd,t*QSLOT+qb*4160+ds*256),pr,deps,name=f"RQ{k}.{qb}.{ds}"); RQ[(k,qb,ds)]=o
                if k<NS: b.need(posQ[(k,2*qb)]-1,o)
                elif qb==0: b.need(posQ[("pre",14)]-1,o)
    btags[NS-1].add(f"Q{T+1}")
    state["chain"]=[]; hard={0,1}
    def issue(units,where,deps,nm):
        for u,(k,fr) in zip(units,where):
            tt=int(start[k]+fr*(end[k]-start[k])); prev=list(deps)+state["chain"]+state["scc"]
            nd=[x.kind for x in u].index("dma")
            for x,ins in enumerate(u):
                if ins.kind=="salu": o=b.adds(ins,tt+x-nd-3,prev,name="s"+nm,earliest=tt+x-nd-3 if x<nd else 0)
                else: o=b.add(ins,tt,prev,earliest=tt,name=nm); ins.cost=OPT.get("sdmac",8)
                prev=[o]
            state["chain"]=prev; state["scc"]=prev
            if k in hard: BAR[k].deps.append(prev[0])
    def spread(n,k0,per):
        w=[]; k=k0
        while len(w)<n:
            m=min(per,n-len(w)); w+=[(k,(x+0.5)/per) for x in range(m)]; k+=1
        return w
    kchain=[]
    def extra(j):
        o=flat(STREAM[12+(NPRO-12)*j//16:12+(NPRO-12)*(j+1)//16])
        if j==9: o+=[waitslot(),bar(tags={"Q0","Q1"},need=set())]
        if 10<=j<14: o+=[RQ[(0,(j-10)//2,2*(j%2)+x)].ins for x in range(2)]
        return o
    for qb in range(2):
        for ds in range(4): o=RQ[(0,qb,ds)]; b.ops.remove(o); o.done=True; o.gap=-1
    ks0=b.add([waitslot()]+kread(0)+kscale(0,extra)+[waitslot()],0,[],name="KS0"); b.need(0,ks0)
    rest=STREAM[NPRO:]
    n0=OPT.get("n0",4); n1=OPT.get("n1",10)
    w=[(0,(x+0.5)/n0) for x in range(n0)]+[(1,OPT.get('f1',30)/100+0.5*x/n1) for x in range(n1)]
    w=w[:len(rest)]; w+=spread(len(rest)-len(w),2,2)
    issue(rest,w,[ks0],"D")
    lastk=w[-1][0]
    for c in range(4):
        s1=pvstep(c*T)-1
        btags[s1-1].add(f"V{c}")
        p0=start[c*T]
        if c==0: ks=ks0
        else:
            kr=[b.add(ins,p0-14+x,kchain,earliest=p0-16,name=f"KR{c}") for x,ins in enumerate(kread(c))]
            ks=b.add(kscale(c),p0,kr+state["TR"],name=f"KS{c}"); b.need(p0,ks)
        aw=[]
        for j in(14,15):
            x=ksops(c,j); prev=[ks]
            for n,ins in enumerate(x): o=b.add(ins,p0-8+j-14+n*0.1,prev,name="Kx"); prev=[o]; aw.append(o); b.need(posQ[(c*T,1)],o)
        state["KS"]=aw
        if 1<=c<3: issue(kdma_units(c+1),spread(8,c*T,OPT.get("kper",6)),[ks],f"KD{c+1}")
        kchain=state["chain"]
        state["TR"]=[]
        for j in range(4):
            r=vPw if j==0 else vPr[j]
            tb=b.add(v2("v_add_u32",vTB+j,vTD,r),start[s1-1]+j,state.get("KS",[]),earliest=start[s1-1],name="TB")
            for db in range(2):
                for hf in range(2):
                    a=aV(j,c,db)+2*hf
                    o=b.add(I(f"ds_read_b64_tr_b16 a[{a}:{a+1}], v{vTB+j} offset:{hf*4096+8*db}","dsr",V(vTB+j),A(a,2)),start[s1]+j*4+db*2+hf,[BAR[s1-1],tb],name=f"TR{c}")
                    b.need(posP[(c*T,0,0)]-1,o); bneeds(s1,o); state["TR"].append(o)
        if c<3: issue(vdma_units(c+1),(spread(8,max(s1+1,lastk,OPT.get("v1",0)),OPT.get("v1per",6)) if c==0 else spread(8,s1+1,OPT.get("vper",6))),[BAR[s1]],f"VD{c+1}")
    state["ep"]={"L":state["KS"],"S":state["TR"]}
    for x in range(D):
        t=T+x; k=min(max(3*T+1+t-NQ,3*T-1+x),NS-1)
        issue(qdma_units(t),[(k,0.25),(k,0.6)],[BAR[3*T+t-NQ]] if t>=NQ else [],"QD")
    chain=state["chain"]
    def ep(t,t0,tm,dt,scc):
        k=3*T+t
        od={(qb,db):PV[(k,qb,db)][3] for qb in range(2) for db in range(2)}
        e=epilogue_ops(b,lambda qb,db:vOs[t]+qb*8+db*4,1024+t*512,t0,tm,dt,[BAR[k+1]],od,state["ep"],scc,sc=0.5,tg=f"t{t}")
        state["ep"]=e; return e
    eps={}; BARX=[]
    for t in range(T-LAG-1+0):
        k=3*T+t+LAG
        eps[t]=ep(t,start[k]+8,start[k]+20,1.3,state["scc"]); state["scc"]=eps[t]["A"]
    if T-LAG>=2:
        for o in eps[0]["M"]+eps[0]["S"]: b.need(posQ[("pre",14)],o)
    e14=[b.add(vexp(vS(14)+r),posQ[("pre",14)]+6+2*r,[QK[("pre",14)][3]],name=f"Ep{r}") for r in range(4)]
    def late(scc,must_bar):
        BAR[NS]=b.barrier(end[NS-1]+1+OPT.get("barx",23)+3-off,[BAR[NS-1]],keep=True,need=set())
        for qb in range(2): bneeds(NS,W[(NS-1,qb)])
        BARX.append(BAR[NS])
        state["R"]=[]
        for k in range(NS-LAG,NS): preads(k)
        must_bar+=state["R"]
        one_ops(NS-1); must_bar.append(LW[T-1])
        for t in range(T-LAG-1,T-1):
            k=3*T+t
            p=posP[(k,0,0)] if k>=NS-LAG else end[NS-1]-8
            eps[t]=ep(t,p-6,p+10,1.2,scc); scc=eps[t]["A"]
        return scc
    last=NS-1
    ctx=dict(dmaprio=5,placed=placed,late=late,scc=state["scc"],c15=[QK[("pre",15)][3]],e14=e14,dmadep=chain+[BAR[last]],
             must_bar=[W[(last,0)],W[(last,1)]],wdep=[BAR[last]],rqdep=[BAR[last]],rqprev=[RQ[(NS,qb,ds)] for qb in range(2) for ds in range(4)],
             pwar={f:[ONE[NS-4+f//2][f%2],W[(NS-4+f//2,f%2)]]+([PV[(NS-4+f//2,f%2,0)][0],PV[(NS-4+f//2,f%2,1)][0]] if ownk(NS-4+f//2) else []) for f in range(8)} if OWN else
                  {0:[ONE[last-1][0],W[(last-1,0)]],1:[ONE[last-1][1],W[(last-1,1)]],2:[ONE[last][0],W[(last,0)]],3:[ONE[last][1],W[(last,1)]],
                   **({f:eps[1]["M"]+eps[1]["S"] for f in range(4,8)} if T-LAG>=3 else {})},
             swar={n:[C[(last,n,pp)] for pp in range(2)] for n in range(4)})
    iter_parts(b,T,T%2,1,1,0,0,1,Ncustom=Ncustom,ctx=ctx,baroff=off)
    b.sops[-1].deps.append(BAR[NS])
    for ds in range(4): b.need(end[last]+1+8-1,RQ[(NS,1,ds)])
    res=b.run(prefix,log,overdue=OPT.get("od",3))
    if OPT["stamp"]==2 and not OPT.get("ps"):
        p0=OPT.get('p0'); pts=[2,3,6,9,13,16,20,23,27] if p0 is None else list(range(p0,p0+9)); o=[]
        for x in res:
            o.append(x)
            for n,k in enumerate(pts):
                if x is BAR[k].ins: o.append(raw(f"{'s_memtime' if OPT.get('cyc') else 's_memrealtime'} s[{78+2*n}:{79+2*n}]"))
        res=o
        if OPT.get("fine"):
            o=[]; on=False; n=0; x_=0
            for x in res:
                if x.kind=="raw" and x.text.startswith("s_mem"): continue
                o.append(x)
                if x is BAR[NS-1].ins: on=True; o.append(raw("s_memtime s[78:79]")); n=1
                if on and x.kind=="mfma":
                    x_+=1
                    if x_%OPT["fine"]==0 and n<9: o.append(raw(f"s_memtime s[{78+2*n}:{79+2*n}]")); n+=1
            res=o
    if "spinbar" in OPT:
        n=[n for n,x in enumerate(res) if x is BAR[OPT["spinbar"]].ins][0]
        res=res[:n+1]+stamp(1)+res[n+1:]
    if OPT.get("seg"):
        idx=[n for n,x in enumerate(res) if x.kind=="bar"]
        print("step est:",[estimate(res[a:z]) for a,z in zip(idx,idx[1:])],file=sys.stderr)
    return res

class Seq:
    def __init__(s,prefix=()): s.o=list(prefix); s.n0=len(s.o)
    def __call__(s,*ins,slot=True):
        for i in ins:
            if slot and i.kind not in("label","comment","salu","wait","branch","raw","nop"): s.o.append(waitslot())
            k=hazard_need(s.o,i)
            if k>0: s.o.append(nop(k))
            s.o.append(i)
    def out(s): return s.o[s.n0:]

def vop(t,rd,wr): return valu(t,rd,wr)
def prologue():
    q=Seq()
    q(salu("s_cmp_ge_u32 s2, 256",S(2),[SCC]), I("s_cbranch_scc1 L_end","branch",[SCC]))
    if OPT["stamp"]: q(raw("s_memtime s[60:61]"),raw("s_memrealtime s[62:63]"),raw(f"s_load_dwordx2 s[{sDbg}:{sDbg+1}], s[0:1], 32"))
    q(raw("s_load_dwordx4 s[36:39], s[0:1], 0"), raw("s_load_dwordx4 s[40:43], s[0:1], 16"))
    L,Q_,G_,T1,T2,T3=200,201,202,203,204,205
    if OPT.get("warm",2):
        q(raw("s_getpc_b64 s[56:57]"), label("L_pc"), raw("s_and_b32 s57, s57, 0xffff"), raw("s_mov_b32 s58, L_end-L_pc"), raw("s_mov_b32 s59, 0x20000"))
        q(vop(f"v_lshlrev_b32 v{T2}, 7, v0",V(0),V(T2)))
    def warm(ks):
        for k in ks:
            q(raw(f"s_mov_b32 s55, {k*32768}"))
            q(I(f"buffer_load_dword v{240+k}, v{T2}, s[56:59], s55 offen","vld",V(T2),V(240+k)),slot=False)
    nw=OPT.get("warm",2); we=OPT.get("wearly",1)
    warm(range(min(we,nw)))
    q(vop(f"v_and_b32 v{L}, 63, v0",V(0),V(L)), vop(f"v_lshrrev_b32 v{T1}, 6, v0",V(0),V(T1)))
    q(I(f"v_readfirstlane_b32 s{sW}, v{T1}","valu",V(T1),S(sW),meta={"rfl":1}))
    q(vop(f"v_and_b32 v{Q_}, 15, v{L}",V(L),V(Q_)), vop(f"v_lshrrev_b32 v{G_}, 4, v{L}",V(L),V(G_)))
    R_,C_=208,209
    q(vop(f"v_bfe_u32 v{R_}, v{L}, 2, 2",V(L),V(R_)), vop(f"v_and_b32 v{C_}, 3, v{L}",V(L),V(C_)))
    q(salu(f"s_mul_i32 s3, s2, {QBYTES}",S(2),S(3)), salu("s_lshl_b32 s31, s2, 17",S(2),S(31)))
    q(salu(f"s_lshl_b32 s46, s{sW}, 11",S(sW),S(46)), salu(f"s_lshl_b32 s{sKo}, s{sW}, 15",S(sW),S(sKo)))
    q(vop(f"v_lshlrev_b32 v{vQdma}, 8, v{R_}",V(R_),V(vQdma)), vop(f"v_lshl_add_u32 v{vQdma}, v{G_}, 6, v{vQdma}",V(G_)+V(vQdma),V(vQdma)),
      vop(f"v_lshl_add_u32 v{vQdma}, v{C_}, 4, v{vQdma}",V(C_)+V(vQdma),V(vQdma)), vop(f"v_add_u32 v{vQdma}, s46, v{vQdma}",S(46)+V(vQdma),V(vQdma)))
    q(salu(f"s_mul_i32 s47, s{sW}, 2080",S(sW),S(47)), salu(f"s_add_u32 s{sWoff}, s47, {QBASE}",S(47),S(sWoff)))
    q(salu(f"s_sub_u32 s44, s{sKo}, s46",S(sKo)+S(46),S(44)), salu(f"s_mul_i32 s54, s{sW}, {QSLOT}",S(sW),S(54)), salu(f"s_add_u32 s54, s54, {KBASE}",S(54),S(54)))
    for srd,nb in((sQ,QBYTES),(sK,KBYTES),(sV,KBYTES),(sO,QBYTES)):
        q(salu(f"s_mov_b32 s{srd+2}, {nb}",[],S(srd+2)), salu(f"s_mov_b32 s{srd+3}, 0x20000",[],S(srd+3)))
    q(raw("s_waitcnt lgkmcnt(0)"))
    def base(srd,src,off):
        q(salu(f"s_add_u32 s{srd}, s{src}, s{off}",S(src)+S(off),S(srd)), salu(f"s_addc_u32 s{srd+1}, s{src+1}, 0",S(src+1),S(srd+1)),
          salu(f"s_and_b32 s{srd+1}, s{srd+1}, 0xffff",S(srd+1),S(srd+1)))
    ps=lambda n:[raw(f"s_memrealtime s[{78+2*n}:{79+2*n}]")] if OPT.get("ps") else []
    base(sK,38,31); q(*ps(0),*flat(STREAM[:8]),*ps(1),slot=False)
    base(sQ,36,3); q(*flat(STREAM[8:12]),slot=False)
    warm(range(min(we,nw),nw))
    base(sV,40,31); base(sO,42,3)
    for n in range(1,8): q(salu(f"s_add_u32 s{sKo+n}, s{sKo}, {n*4096}",S(sKo),S(sKo+n)))
    q(salu(f"s_add_u32 s{sT}, s47, {QEND}",S(47),S(sT)), salu(f"s_add_u32 s{sQm0}, s{sWoff}, {((T+D)%NQ)*QSLOT}",S(sWoff),S(sQm0)), salu(f"s_mov_b32 s{sQso}, {(T+D)*8192}",[],S(sQso)))
    q(vop(f"v_lshlrev_b32 v{T1}, 2, v{G_}",V(G_),V(T1)), vop(f"v_xor_b32 v{T1}, v{T1}, v{Q_}",V(T1)+V(Q_),V(T1)),
      vop(f"v_lshlrev_b32 v{T1}, 4, v{T1}",V(T1),V(T1)), vop(f"v_lshl_add_u32 v{vVA}, v{G_}, 8, v{T1}",V(G_)+V(T1),V(vVA)))
    q(salu(f"s_lshl_b32 s48, s{sW}, 13",S(sW),S(48)), salu(f"s_add_u32 s{sVm}, s48, {VBASE}",S(48),S(sVm)), salu(f"s_add_u32 s{sVm+1}, s48, {VBASE+4096}",S(48),S(sVm+1)))
    q(*ps(2))
    q(vop(f"v_lshrrev_b32 v{T1}, 2, v{Q_}",V(Q_),V(T1)), vop(f"v_lshlrev_b32 v{vQrd0}, 10, v{T1}",V(T1),V(vQrd0)),
      vop(f"v_lshrrev_b32 v{T1}, 3, v{Q_}",V(Q_),V(T1)), vop(f"v_lshl_add_u32 v{vQrd0}, v{T1}, 5, v{vQrd0}",V(T1)+V(vQrd0),V(vQrd0)),
      vop(f"v_lshl_add_u32 v{vQrd0}, v{C_}, 6, v{vQrd0}",V(C_)+V(vQrd0),V(vQrd0)), vop(f"v_lshl_add_u32 v{vQrd0}, v{G_}, 4, v{vQrd0}",V(G_)+V(vQrd0),V(vQrd0)))
    q(salu(f"s_mov_b32 s{sQrs}, {QBASE+(T%NQ)*QSLOT}",[],S(sQrs))); q(vop(f"v_add_u32 v{vQrd}, {QBASE}, v{vQrd0}",V(vQrd0),V(vQrd)))
    for j in range(4):
        q(salu(f"s_add_u32 s49, s{sW}, {j}",S(sW),S(49)), salu("s_and_b32 s49, s49, 3",S(49),S(49)), salu(f"s_lshl_b32 s{50+j}, s49, 13",S(49),S(50+j)))
        r=vPw if j==0 else vPr[j]
        q(vop(f"v_lshl_add_u32 v{r}, v{L}, 4, s{50+j}",V(L)+S(50+j),V(r)))
    q(salu(f"s_lshl_b32 s49, s{sW}, 6",S(sW),S(49)))
    q(vop(f"v_lshlrev_b32 v{vOst}, 8, v{Q_}",V(Q_),V(vOst)), vop(f"v_lshl_add_u32 v{vOst}, v{G_}, 4, v{vOst}",V(G_)+V(vOst),V(vOst)), vop(f"v_add_u32 v{vOst}, s49, v{vOst}",S(49)+V(vOst),V(vOst)))
    q(vop(f"v_lshrrev_b32 v{T1}, 1, v{G_}",V(G_),V(T1)), vop(f"v_lshl_add_u32 v{T1}, v{T1}, 4, v{Q_}",V(T1)+V(Q_),V(T1)),
      vop(f"v_lshlrev_b32 v{T1}, 4, v{T1}",V(T1),V(T1)), vop(f"v_add_u32 v{vLr}, {LBASE}, v{T1}",V(T1),V(vLr)))
    q(salu(f"s_lshl_b32 s49, s{sW}, 2",S(sW),S(49))); q(vop(f"v_add_u32 v{vLw}, s49, v{vLr}",S(49)+V(vLr),V(vLw)))
    q(vop(f"v_mov_b32 v{vLmax}, 0",[],V(vLmax)))
    q(vop(f"v_mov_b32 v{T1}, 0x3f803f80",[],V(T1)), valu(f"v_cmp_gt_u32 vcc, 8, v{Q_}",V(Q_),[VCC]))
    for r in range(4):
        q(valu(f"v_cndmask_b32 v{vSEL[0]+r}, 0, v{T1}, vcc",V(T1)+[VCC],V(vSEL[0]+r)))
        q(vop(f"v_xor_b32 v{vSEL[1]+r}, v{T1}, v{vSEL[0]+r}",V(T1)+V(vSEL[0]+r),V(vSEL[1]+r)))
    if OPT.get("trunc"): q(salu("s_mov_b32 s74, 0x07060302",[],S(74)))
    q(salu(f"s_mov_b32 s{sO0}, 0",[],S(sO0)), salu(f"s_mov_b32 s{sO1}, 4096",[],S(sO1)))
    q(vop(f"v_lshlrev_b32 v{T1}, 2, v{R_}",V(R_),V(T1)), vop(f"v_add_u32 v{T2}, s49, v{C_}",S(49)+V(C_),V(T2)), vop(f"v_xor_b32 v{T2}, v{T2}, v{T1}",V(T1)+V(T2),V(T2)),
      vop(f"v_lshl_add_u32 v{T3}, v{G_}, 2, v{R_}",V(G_)+V(R_),V(T3)), vop(f"v_lshlrev_b32 v{T3}, 8, v{T3}",V(T3),V(T3)), vop(f"v_lshl_add_u32 v{T3}, v{T2}, 4, v{T3}",V(T2)+V(T3),V(T3)),
      vop(f"v_lshlrev_b32 v{T1}, 4, v{L}",V(L),V(T1)), v2("v_sub_u32",T3,T3,T1), vop(f"v_add_u32 v{vTD}, {VBASE}, v{T3}",V(T3),V(vTD)))
    q(vop(f"v_add_u32 v{vKA}, s54, v{vQrd0}",S(54)+V(vQrd0),V(vKA)))
    q(vop(f"v_lshrrev_b32 v{T1}, 2, v{Q_}",V(Q_),V(T1)), valu(f"v_cmp_eq_u32 vcc, v{T1}, v{G_}",V(T1)+V(G_),[VCC]),
      vop(f"v_and_b32 v{T1}, 1, v{L}",V(L),V(T1)), vop(f"v_lshlrev_b32 v{T1}, 4, v{T1}",V(T1),V(T1)),
      vop(f"v_and_b32 v{T2}, 2, v{L}",V(L),V(T2)), valu(f"v_cmp_eq_u32 s[50:51], 0, v{T2}",V(T2),S(50,2)))
    for lo,cb in enumerate((CHI,CLO)):
        q(vop(f"v_mov_b32 v{T2}, {cb:#x}",[],V(T2)), v2("v_lshlrev_b32",T2,T1,T2), valu(f"v_cndmask_b32 v{T2}, 0, v{T2}, vcc",V(T2)+[VCC],V(T2)),
          valu(f"v_cndmask_b32 v{T3}, 0, v{T2}, s[50:51]",V(T2)+S(50,2),V(T3)), v2("v_xor_b32",T2,T2,T3))
        for half in range(2):
            a=aSC(lo,half)
            q(vop(f"v_accvgpr_write_b32 a{a+2*half}, v{T3}",V(T3),A(a+2*half)), vop(f"v_accvgpr_write_b32 a{a+2*half+1}, v{T2}",V(T2),A(a+2*half+1)),
              vop(f"v_accvgpr_write_b32 a{a+2-2*half}, 0",[],A(a+2-2*half)), vop(f"v_accvgpr_write_b32 a{a+3-2*half}, 0",[],A(a+3-2*half)))
    q(*ps(3))
    return q.out()

def fallback():
    q=Seq()
    q(label("L_fallback"), wait(vm=0,lg=0), bar())
    q(salu(f"s_mov_b32 s{sQso}, 0",[],S(sQso)), salu(f"s_mov_b32 s{sO0}, 0",[],S(sO0)), salu(f"s_mov_b32 s{sO1}, 4096",[],S(sO1)), salu(f"s_mov_b32 s{sLoop}, {NT}",[],S(sLoop)))
    q(vop(f"v_add_u32 v{vQrd}, {QBASE}, v{vQrd0}",V(vQrd0),V(vQrd)))
    MW,MR,T=216,217,218
    q(vop(f"v_mbcnt_lo_u32_b32 v{T}, -1, 0",[],V(T)), vop(f"v_mbcnt_hi_u32_b32 v{T}, -1, v{T}",V(T),V(T)),
      vop(f"v_and_b32 v{MR}, 15, v{T}",V(T),V(MR)), vop(f"v_lshlrev_b32 v{MR}, 6, v{MR}",V(MR),V(MR)), vop(f"v_add_u32 v{MR}, {MBASE}, v{MR}",V(MR),V(MR)),
      vop(f"v_lshrrev_b32 v{T}, 4, v{T}",V(T),V(T)), vop(f"v_lshl_add_u32 v{MW}, v{T}, 2, v{MR}",V(T)+V(MR),V(MW)))
    q(salu(f"s_lshl_b32 s49, s{sW}, 4",S(sW),S(49))); q(vop(f"v_add_u32 v{MW}, s49, v{MW}",S(49)+V(MW),V(MW)))
    q(label("L_fb_loop"))
    q(salu(f"s_mov_b32 m0, s{sWoff}",S(sWoff),[M0])); q(dma(vQdma,sQ,sQso,0),dma(vQdma,sQ,sQso,1024)); q(wait(vm=0),bar())
    for qb in range(2):
        for ds in range(4): q(dsr128(vQ(qb,ds),vQrd,qb*4160+ds*256))
    Sb=lambda kb,qb:64+(kb*2+qb)*4
    Pf=lambda f:128+f*4
    for kb in range(8):
        for qb in range(2):
            for ds in range(4): q(mfma(Sb(kb,qb),aK(kb,ds),vQ(qb,ds),None if ds==0 else Sb(kb,qb)))
    Mx=[220,221]; RD=224
    for qb in range(2):
        q(v2("v_max_f32",Mx[qb],Sb(0,qb),Sb(0,qb)+1))
        regs=[Sb(kb,qb)+r for kb in range(8) for r in range(4)][2:]
        for x in range(0,30,2): q(vop(f"v_max3_f32 v{Mx[qb]}, v{Mx[qb]}, v{regs[x]}, v{regs[x+1]}",V(Mx[qb])+V(regs[x])+V(regs[x+1]),V(Mx[qb])))
        q(dsw32(MW,Mx[qb],qb*1024))
    q(bar())
    for qb in range(2):
        for x in range(4): q(dsr128(RD+4*x,MR,qb*1024+16*x))
        q(v2("v_max_f32",Mx[qb],RD,RD+1))
        for x in range(2,16,2): q(vop(f"v_max3_f32 v{Mx[qb]}, v{Mx[qb]}, v{RD+x}, v{RD+x+1}",V(Mx[qb])+V(RD+x)+V(RD+x+1),V(Mx[qb])))
    for kb in range(8):
        for qb in range(2):
            for r in range(4): q(v2("v_sub_f32",Sb(kb,qb)+r,Sb(kb,qb)+r,Mx[qb]),slot=False)
            for r in range(4): q(vexp(Sb(kb,qb)+r),slot=False)
            for p2 in range(2): q(vcvt(Pf(2*(kb//2)+qb)+2*(kb%2)+p2,Sb(kb,qb)+2*p2,Sb(kb,qb)+2*p2+1),slot=False)
    for f in range(8): q(dsw128(vPw,Pf(f),f*1024))
    for qb in range(2):
        for kp in range(4): q(mfma(vLacc,vSEL[qb],Pf(2*kp+qb),None if (kp==0 and qb==0) else vLacc,afile='v'))
    q(dsw32(vLw,vLacc,0)); q(bar())
    for qb in range(2):
        for db in range(2):
            for kp in range(4): q(mfma(vO(0,qb,db),aV(0,kp,db),Pf(2*kp+qb),None if kp==0 else vO(0,qb,db)))
    for j in range(1,4):
        for qb in range(2):
            for k in range(4): q(dsr128(RD+4*k,vPr[j],(2*k+qb)*1024))
            for db in range(2):
                for kp in range(4): q(mfma(vO(0,qb,db),aV(j,kp,db),RD+4*kp,vO(0,qb,db)))
    q(dsr128(vLrd,vLr,0)); q(v2("v_add_f32",vLrd,vLrd,vLrd+1),v2("v_add_f32",vLrd+2,vLrd+2,vLrd+3),v2("v_add_f32",vLrd,vLrd,vLrd+2))
    q(valu(f"v_rcp_f32 v{vR0}, v{vLrd}",V(vLrd),V(vR0),"trans"), vop(f"v_mov_b32 v{vR1}, v{vR0}",V(vR0),V(vR1)),
      valu(f"v_permlane32_swap_b32 v{vR0}, v{vR1}",V(vR0)+V(vR1),V(vR0)+V(vR1),"perm"))
    for qb in range(2):
        for db in range(2):
            for p2 in range(2):
                r=vO(0,qb,db)+2*p2; R=vR0 if qb==0 else vR1
                q(v2("v_mul_f32",r,r,R),v2("v_mul_f32",r+1,r+1,R),vcvt(vOut(qb)+2*db+p2,r,r+1))
        q(vst(vOut(qb),vOst,sO,sO0 if qb==0 else sO1))
    q(salu(f"s_add_u32 s{sO0}, s{sO0}, 8192",S(sO0),S(sO0)), salu(f"s_add_u32 s{sO1}, s{sO1}, 8192",S(sO1),S(sO1)), salu(f"s_add_u32 s{sQso}, s{sQso}, 8192",S(sQso),S(sQso)))
    q(wait(vm=0,lg=0),bar())
    q(salu(f"s_sub_u32 s{sLoop}, s{sLoop}, 1",S(sLoop),S(sLoop)), salu(f"s_cmp_lg_u32 s{sLoop}, 0",S(sLoop),[SCC]), I("s_cbranch_scc1 L_fb_loop","branch",[SCC]))
    return q.out()

def stamp(n):
    if OPT["stamp"]==2: return [raw(f"s_memrealtime s[{76+2*n}:{77+2*n}]")] if n in(0,) else ([raw("s_memrealtime s[98:99]")] if n==1 else [])
    return [raw(f"s_memtime s[{76+4*n}:{77+4*n}]"),raw(f"s_memrealtime s[{78+4*n}:{79+4*n}]")] if OPT["stamp"] else []

def build():
    logs={}
    pro=prologue()+stamp(0)
    def it(i,par,cur,nxt,pv,ep,prefix,**kw):
        lg=[]; r=iteration(i,par,cur,nxt,pv,ep,(i+D<NT) or kw.get("force_dma"),prefix,log=lg,**{k:v for k,v in kw.items() if k!="force_dma"}); logs[i]=lg; return [comment(f"---- iteration {i}")]+r
    U=OPT.get("U",2); nst=40-(T+1); trips=nst//U; rem=nst-trips*U
    stag=OPT.get("stag",0); ncopy=OPT.get("ncopy",4) if stag else 1
    sst=OPT.get("sstag",0)
    disp=[]
    for cp in range(ncopy-1,0,-1):
        disp+=[salu(f"s_cmp_ge_u32 s{sW}, {cp*(4//ncopy)}",S(sW),[SCC]), I(f"s_cbranch_scc1 L_copy{cp}","branch",[SCC])]
    def mk0(off):
        lg=[]; r=[comment("---- start-up steps + merged iteration")]+startup(pro,lg,off); logs[0]=lg
        return r+[salu(f"s_mov_b32 s{sLoop}, {trips}",[],S(sLoop))]+([] if "spinbar" in OPT else stamp(1))
    def mkend(prev,off):
        r=[]
        for u in range(rem):
            x=it(40-rem+u,(40-rem+u)%2,1,1,1,1,prev,force_dma=True,baroff=off); prev=x; r+=x
        x=stamp(2)+it(40,0,1,0,1,1,prev,ctx={"eager":1},baroff=off)
        return r,x
    if not sst: i0=mk0(0)
    allb=[]; paths=[]; body_rem=[]
    for cp in range(ncopy):
        if sst: i0=mk0(stag*cp)
        body=[]; prev=i0
        for u in range(U):
            x=it(T+1+u,(T+1+u)%2,1,1,1,1,prev,force_dma=True,loopctl=f"L_loop{cp}" if (u==U-1 and trips>1) else None,baroff=stag*cp); body+=x; prev=x
            if u==0: ia=x
            if u==1: ib=x
        if sst or cp==0: br,i40=mkend(prev,stag*cp if sst else 0)
        paths.append(i0+body*min(trips,3)+br+i40)
        allb+=[label(f"L_copy{cp}")]+(i0 if sst else [])+[raw(f".p2align {OPT.get('al',6)}"),label(f"L_loop{cp}")]+body+(br+i40 if sst else [])
        body_rem+=body+br
        if cp<ncopy-1: allb+=[I("s_branch L_after","branch")]
    allb+=[label("L_after")]
    lg=[]; i41=[comment("---- drain")]+drain(41,i40,lg); logs[41]=lg; i42=[]; i1=[]
    main=pro+(disp if sst else i0+disp)+allb+([] if sst else br+i40)+i41
    fin=Seq(i41+i42)
    fin(salu(f"s_mov_b32 s49, {HI:#x}",[],S(49)))
    fin(valu(f"v_cmp_lt_u32 vcc, s49, v{vLmax}",S(49)+V(vLmax),[VCC]))
    fin(nop(5), I("s_cbranch_vccnz L_fallback","branch",[VCC]))
    if OPT["stamp"]==2 and OPT.get("all"):
        fin(raw("s_waitcnt vmcnt(0)"),raw("s_memrealtime s[100:101]"),raw("s_waitcnt lgkmcnt(0)"),raw(f"s_cmp_lg_u32 s{sW}, 0"),raw("s_cbranch_scc1 L_end"))
        fin(raw(f"s_and_b32 s{sDbg+1}, s{sDbg+1}, 0xffff"),raw(f"s_mov_b32 s{sDbg+2}, 4096"),raw(f"s_mov_b32 s{sDbg+3}, 0x20000"))
        fin(raw("s_getreg_b32 s3, hwreg(HW_REG_XCC_ID)"),raw("s_and_b32 s3, s3, 7"),raw("s_and_b32 s55, s62, 0xffffff"),raw("s_lshl_b32 s3, s3, 24"),raw("s_or_b32 s3, s3, s55"),raw("v_mov_b32 v200, s3"))
        for n,r in enumerate((82,98,100)): fin(raw(f"s_sub_u32 s3, s{r}, s62"),raw(f"v_mov_b32 v{201+n}, s3"))
        fin(raw("s_lshl_b32 s3, s2, 4"),raw("v_mov_b32 v220, s3"),raw("s_mov_b64 exec, 1"),raw(f"buffer_store_dwordx4 v[200:203], v220, s[{sDbg}:{sDbg+3}], 0 offen"))
    elif OPT["stamp"]==2:
        fin(raw("s_waitcnt vmcnt(0)"),raw("s_memrealtime s[100:101]"),raw("s_waitcnt lgkmcnt(0)"))
        fin(raw("s_and_b32 s3, s2, 63"),raw("s_cmp_lg_u32 s3, 0"),raw("s_cbranch_scc1 L_end"),raw(f"s_cmp_lg_u32 s{sW}, 0"),raw("s_cbranch_scc1 L_end"))
        fin(raw(f"s_and_b32 s{sDbg+1}, s{sDbg+1}, 0xffff"),raw(f"s_mov_b32 s{sDbg+2}, 256"),raw(f"s_mov_b32 s{sDbg+3}, 0x20000"))
        for n in range(13): fin(raw(f"s_sub_u32 s3, s{76+2*n}, s62"),raw(f"v_mov_b32 v{200+n}, s3"))
        fin(raw("s_lshr_b32 s3, s2, 6"),raw("s_lshl_b32 s3, s3, 6"),raw("v_mov_b32 v220, s3"),raw("s_mov_b64 exec, 1"))
        for n in range(4): fin(raw(f"buffer_store_dwordx4 v[{200+4*n}:{203+4*n}], v220, s[{sDbg}:{sDbg+3}], 0 offen offset:{16*n}"))
    elif OPT["stamp"]:
        fin(*stamp(3)); fin(raw("s_waitcnt vmcnt(0)")); fin(*stamp(4)); fin(raw("s_waitcnt lgkmcnt(0)"))
        sp=OPT.get("spin")
        if sp is not None:
            ex={0:["s_mov_b32 s3, 0"],1:["s_sub_u32 s3, s78, s62","s_lshl_b32 s3, s3, 2"],2:["s_sub_u32 s3, s86, s82"],3:["s_sub_u32 s3, s94, s62"],
                4:["s_sub_u32 s3, s84, s80","s_lshr_b32 s3, s3, 4"],5:["s_sub_u32 s3, s82, s62","s_lshl_b32 s3, s3, 2"]}[sp]
            for e in ex: fin(raw(e))
            fin(raw("s_add_u32 s3, s3, 15000"),label("L_spin"),raw("s_memrealtime s[98:99]"),raw("s_waitcnt lgkmcnt(0)"),raw("s_sub_u32 s98, s98, s62"),raw("s_cmp_lt_u32 s98, s3"),raw("s_cbranch_scc1 L_spin"))
        fin(raw("s_and_b32 s3, s2, 31"),raw("s_cmp_lg_u32 s3, 0"),raw("s_cbranch_scc1 L_end"),raw(f"s_cmp_lg_u32 s{sW}, 0"),raw("s_cbranch_scc1 L_end"))
        fin(raw(f"s_and_b32 s{sDbg+1}, s{sDbg+1}, 0xffff"),raw(f"s_mov_b32 s{sDbg+2}, 256"),raw(f"s_mov_b32 s{sDbg+3}, 0x20000"))
        for n in range(4): fin(raw(f"s_sub_u32 s3, s{76+4*(n+1 if n==3 else n)}, s60"),raw(f"v_mov_b32 v{200+2*n}, s3"),raw(f"s_sub_u32 s3, s{78+4*(n+1 if n==3 else n)}, s62"),raw(f"v_mov_b32 v{201+2*n}, s3"))
        fin(raw("s_lshr_b32 s3, s2, 5"),raw("s_lshl_b32 s3, s3, 5"),raw("v_mov_b32 v208, s3"),raw("s_mov_b64 exec, 1"),
            raw(f"buffer_store_dwordx4 v[200:203], v208, s[{sDbg}:{sDbg+3}], 0 offen"),raw(f"buffer_store_dwordx4 v[204:207], v208, s[{sDbg}:{sDbg+3}], 0 offen offset:16"))
    fin(raw("s_endpgm"))
    fb=fallback()
    static=main+fin.out()+fb+[label("L_end"),raw("s_endpgm")]
    dyns=[pro+p+i41+fin.out() for p in paths]
    for rep in range(2):
        for dyn in dyns: resolve_waits(dyn)
    k=[x for x,y in enumerate(fb) if y.text=="L_fb_loop"][0]
    dynf=fb+fb[k:]
    resolve_waits(dynf)
    for name,d in [("main",d) for d in dyns]+[("fallback",dynf)]:
        bad=check_hazards(d)
        for b in bad: print("HAZARD",name,b,file=sys.stderr)
        assert not bad
        print(name,"max outstanding",max_outstanding(d),file=sys.stderr)
    for nm,sq in(("i0",i0),("i1",i1),("ia",ia),("ib",ib),("i40",i40),("i41",i41),("i42",i42)):
        print(nm,"est cycles",estimate(sq),"nops",sum(1 for x in sq if x.kind=="nop"),"instrs",sum(1 for x in sq if states(x)),file=sys.stderr)
    if "log" in OPT: print("\n".join(logs[OPT["log"]]),file=sys.stderr)
    abl=str(OPT.get("abl","")).split("+")
    if abl!=[""]:
        loop=set(map(id,body_rem)) if not OPT.get('abs') else set(map(id,i0[len(i0)//4:]))
        def drop(x):
            if id(x) not in loop: return False
            t=x.text
            return (("st" in abl and x.kind=="vst") or ("dma" in abl and x.kind=="dma") or ("pr" in abl and x.kind=="dsr" and 128<=min(r[1] for r in x.wr)<160)
              or ("qr" in abl and x.kind=="dsr" and 32<=min(r[1] for r in x.wr)<64) or ("pw" in abl and x.kind=="dsw") or ("exp" in abl and t.startswith("v_exp"))
              or ("cvt" in abl and t.startswith("v_cvt")) or ("one" in abl and x.kind=="mfma" and x.name.startswith("ONE")) or ("bar" in abl and x.kind=="bar")
              or ("mul" in abl and t.startswith("v_mul")) or ("valu" in abl and x.kind in VALU_KINDS) or ("qk" in abl and x.kind=="mfma" and x.name.startswith("QK"))
              or ("pv" in abl and x.kind=="mfma" and x.name.startswith("PV")) or ("wait" in abl and x.kind=="wslot") or ("ks" in abl and (t.startswith("v_accvgpr") or t.startswith("v_pk_mul") or t.startswith("v_and") or t.startswith("v_lshlrev"))))
        static=[x for x in static if not drop(x)]
        static=[x for x in static if x.text!="s_cbranch_vccnz L_fallback"]
    if OPT.get("fake"): static=[x for x in static if x.text!="s_cbranch_vccnz L_fallback"]
    if OPT.get("swap"):
        import re as _re
        for x in body_rem:
            if x.kind=="mfma" and any(x.name.startswith(p) for p in OPT["swap"].split("+")):
                m=_re.match(r"(\S+ [^,]+), ([^,]+), ([^,]+), (.*)",x.text); x.text=f"{m[1]}, {m[3]}, {m[2]}, {m[4]}"
        static=[x for x in static if x.text!="s_cbranch_vccnz L_fallback"]
    hdr=open("standalone__mha_softmax__near_ridge.s.ref").read().split("; Override launch")[0]
    txt=hdr+f"""; One workgroup (4 waves) per head.  K (scaled once by log2(e)/sqrt(D)) and V^T stay in AGPRs: wave w owns keys
; 128w..128w+127 for S^T = K.Q^T and output columns 32w..32w+31 for O^T = V^T.P^T (16x16x32 bf16 MFMA); P and the row sums
; are exchanged through LDS, one barrier per 32-row query tile.  The first tiles are processed key-chunk by key-chunk while
; K and V stream in.  Softmax shift: the fast path shifts by 0; every row sum l is checked at run time (2^-48 <= l <= 2^48,
; inf/NaN included) and if any row leaves that range the whole head is recomputed with the true row max (L_fallback).
; @launch grid=(256,1,1) block=(256,1,1) lds={LDS_BYTES}
.amdgcn_target "amdgcn-amd-amdhsa--gfx950"
.text
.globl {NAME}
.p2align 8
.type {NAME},@function
{NAME}:
"""+emit(static)+f""".section .rodata,"a"
.p2align 6
.amdhsa_kernel {NAME}
  .amdhsa_next_free_vgpr 512
  .amdhsa_next_free_sgpr 102
  .amdhsa_accum_offset 256
  .amdhsa_group_segment_fixed_size 0
  .amdhsa_kernarg_size 48
  .amdhsa_user_sgpr_count 2
  .amdhsa_user_sgpr_kernarg_segment_ptr 1
  .amdhsa_system_sgpr_workgroup_id_x 1
.end_amdhsa_kernel
"""
    return txt

if __name__=="__main__":
    open(sys.argv[1],"w").write(build())
```

```python
import sys, struct, math
from core import *
from sched import *

NAME="standalone__mha_softmax__near_ridge_kernel"
NT=41
QBYTES=335872; KBYTES=131072
OPT=dict(D=4, st="sc0+sc1", ld="nt", stamp=0, wsplit=0, stag=3, ncopy=2)
for a in sys.argv[2:]:
    k,v=a.split("="); OPT[k]=int(v) if v.lstrip("-").isdigit() else v
D=OPT["D"]; NQ=7; T=OPT.get("T",5); LAG=OPT.get("lag",4); LAG0=OPT.get('lag0',3)
STF=(" "+OPT["st"].replace("+"," ")) if OPT["st"]!="none" else ""
LDF=(" "+OPT["ld"].replace("+"," ")) if OPT["ld"]!="none" else ""
QSLOT=8320; PB=[0,33280]; KBASE=PB[T%2]; QBASE=2*33280; QEND=QBASE+NQ*QSLOT; VBASE=QEND; LBASE=VBASE+32768; MBASE=LBASE+1024; LDS_BYTES=LBASE+4096
vQrd,vQrd0,vPw,vPr,vQdma,vOst,vLw,vLr=1,2,3,[None,4,5,6],7,8,9,10
vLmax,vLmin,vR0,vR1,vT=11,12,13,14,15
vLrd,vLacc,vSEL=16,20,[24,28]
vQ=lambda qb,ds:32+qb*16+ds*4
vS=lambda n:64+(n%8)*4
vP=lambda f:96+f*4
vRing=lambda s,k:128+(s%2)*16+k*4
vO=lambda st,qb,db:160+st*16+qb*8+db*4
vOut=lambda qb:192+qb*4
aK=lambda kb,ds:(kb*4+ds)*4
aV=lambda j,kp,db:128+((j*4+kp)*2+db)*4
sQ,sK,sV,sO=4,8,12,16
sW,sLoop,sQso,sQm0,sQrs,sO0,sO1,sT,sC=20,21,22,23,24,25,26,27,28
sWoff=30; sDbg=32
M0=('m0',0); VCC=('vcc',0); SCC=('scc',0)
CSCALE=struct.unpack("<I",struct.pack("<f",math.log2(math.e)/math.sqrt(128.0)))[0]
def bf16(x):
    u=struct.unpack("<I",struct.pack("<f",x))[0]; return (u+0x7fff+((u>>16)&1))>>16
CF=math.log2(math.e)/math.sqrt(128.0); CHI=bf16(CF); CLO=bf16(CF-struct.unpack("<f",struct.pack("<I",CHI<<16))[0])
HI=(127+48)<<23

def dsr128(dst,addr,off,file='v',name=None): return I(f"ds_read_b128 {rs(file,dst,4)}, v{addr} offset:{off}","dsr",V(addr),[(file,dst+i) for i in range(4)],name=name)
def dsw128(addr,src,off): return I(f"ds_write_b128 v{addr}, {rs('v',src,4)} offset:{off}","dsw",V(addr)+V(src,4),[],cost=20)
def dsw64(addr,src,off): return I(f"ds_write_b64 v{addr}, {rs('v',src,2)} offset:{off}","dsw",V(addr)+V(src,2),[],cost=12)
def dsw32(addr,src,off): return I(f"ds_write_b32 v{addr}, v{src} offset:{off}","dsw",V(addr)+V(src),[],cost=8)
def dma(voff,srd,soff,off,flag=LDF): return I(f"buffer_load_dwordx4 v{voff}, s[{srd}:{srd+3}], s{soff} offen offset:{off}{flag} lds","dma",V(voff)+S(srd,4)+S(soff)+[M0],[])
def vld(dst,voff,srd,soff,off,flag=LDF): return I(f"buffer_load_dwordx4 {rs('v',dst,4)}, v{voff}, s[{srd}:{srd+3}], s{soff} offen offset:{off}{flag}","vld",V(voff)+S(srd,4)+S(soff),V(dst,4))
def vst(src,voff,srd,soff,flag=STF): return I(f"buffer_store_dwordx4 {rs('v',src,4)}, v{voff}, s[{srd}:{srd+3}], s{soff} offen{flag}","vst",V(src,4)+V(voff)+S(srd,4)+S(soff),[],meta={"data":V(src,4)})
def vexp(r): return valu(f"v_exp_f32 v{r}, v{r}",V(r),V(r),"trans")
def vcvt(d,a,b): return valu(f"v_cvt_pk_bf16_f32 v{d}, v{a}, v{b}",V(a)+V(b),V(d))
def vcvtp(d,a,b):
    if OPT.get("trunc"): return valu(f"v_perm_b32 v{d}, v{b}, v{a}, s74",V(a)+V(b)+S(74),V(d))
    return vcvt(d,a,b)
def v2(op,d,a,b): return valu(f"{op} v{d}, v{a}, v{b}",V(a)+V(b),V(d))
def bar(**m): return I("s_barrier","bar",meta=m)
def label(t): return I(t,"label")
def comment(t): return I(t,"comment")

def chain_info(n):
    f=(n//2+1)%8; h=n%2
    return f,h,2*(f//2)+h,f%2
def s_block(f,h):
    return (2*((f-1)%8)+h)

class Bld:
    def __init__(s): s.bb=[]; s.ops=[]; s.sops=[]; s.mdeps={}; s.slots=set(); s.tail=[]
    def group(s,g):
        p=len(s.bb); s.bb+=g; s.slots.add(len(s.bb)-1); return p
    def add(s,ins,prio,deps=(),earliest=0,name=None):
        o=Op(ins,prio,deps,earliest,name); s.ops.append(o); return o
    def adds(s,ins,prio,deps=(),name=None,earliest=0):
        o=Op(ins,prio,deps,earliest,name); s.sops.append(o); return o
    def need(s,idx,o): s.mdeps.setdefault(max(idx,0),[]).append(o)
    def barrier(s,gap,deps,keep=False,**meta):
        if keep and gap in s.slots: gap-=1; o=s.adds(bar(**meta),-1,deps,name="BAR",earliest=gap); s.slots.add(gap-1); return o
        o=s.adds(bar(**meta),-1,deps,name="BAR",earliest=max(gap,0)); s.slots.discard(gap); s.slots.add(gap-1); return o
    def run(s,prefix,log=None,overdue=None): return schedule(s.bb,s.ops,s.sops,s.mdeps,prefix,s.slots,s.tail,log,overdue,fill=OPT.get('fill',1))

def qdma_ops(b,t0,deps,tag=None,scc=()):
    m=b.adds(salu(f"s_mov_b32 m0, s{sQm0}",S(sQm0),[M0]),t0-2,deps,name="m0")
    QF=(" "+OPT["lq"].replace("+"," ") if OPT["lq"]!="none" else "") if "lq" in OPT else LDF
    d0=b.add(dma(vQdma,sQ,sQso,0,QF),t0,[m],name="DMA0"); d1=b.add(dma(vQdma,sQ,sQso,1024,QF),t0+4,[d0],name="DMA1")
    d0.ins.cost=d1.ins.cost=OPT.get("dmac",8); d0.ins.tag=d1.ins.tag=tag
    b1=b.adds(salu(f"s_add_u32 s{sQm0}, s{sQm0}, {QSLOT}",S(sQm0),S(sQm0)+[SCC]),t0+10,[m]+list(scc),name="qm+")
    b2=b.adds(salu(f"s_cmp_eq_u32 s{sQm0}, s{sT}",S(sQm0)+S(sT),[SCC]),t0+11,[b1],name="qm?")
    b3=b.adds(salu(f"s_cselect_b32 s{sQm0}, s{sWoff}, s{sQm0}",S(sQm0)+S(sWoff)+[SCC],S(sQm0)),t0+12,[b2],name="qm=")
    b4=b.adds(salu(f"s_add_u32 s{sQso}, s{sQso}, 8192",S(sQso),S(sQso)+[SCC]),t0+14,[d1,b3],name="qso+")
    return d1,b4

def epilogue_ops(b,Ob,loff,t0,tm,dt,ldeps,odeps,prev,scc,sc=1.0,tg=""):
    lr=b.add(dsr128(vLrd,vLr,loff),t0,list(ldeps)+prev.get("L",[]),name="LR"+tg)
    a=b.add(v2("v_add_f32",vLrd,vLrd,vLrd+1),t0+11*sc,[lr],name="La")
    bb_=b.add(v2("v_add_f32",vLrd+2,vLrd+2,vLrd+3),t0+11.5*sc,[lr],name="Lb")
    c=b.add(v2("v_add_f32",vLrd,vLrd,vLrd+2),t0+12*sc,[a,bb_],name="Lc")
    rc=b.add(valu(f"v_rcp_f32 v{vR0}, v{vLrd}",V(vLrd),V(vR0),"trans"),t0+13*sc,[c]+prev.get("M",[]),name="RCP")
    x1=x2=b.add(valu(f"v_max3_u32 v{vLmax}, v{vLmax}, v{vLrd}, v{vR0}",V(vLmax)+V(vLrd)+V(vR0),V(vLmax)),t0+14.5*sc,[rc],name="chk")
    mv=b.add(valu(f"v_mov_b32 v{vR1}, v{vR0}",V(vR0),V(vR1)),t0+14*sc,[rc],name="MOV")
    sw=b.add(valu(f"v_permlane32_swap_b32 v{vR0}, v{vR1}",V(vR0)+V(vR1),V(vR0)+V(vR1),"perm"),t0+15*sc,[mv,x1],name="SWP")
    t=tm; sts=[]; muls=[]
    if OPT.get("pa") and not tg and odeps is None:
        b.ops.remove(mv); b.ops.remove(sw)
        rw=b.add(dsw32(vLw,vR0,3072),t0+14*sc,[rc],name="RW")
        rr=[b.add(dsr128(248+4*(qb),vLr,3072+16*qb),t0+16*sc+qb,[rw],name="RR") for qb in range(2)]
        for qb in range(2):
            for r in range(4):
                m0_=b.add(v2("v_mul_f32",Ob(qb,0)+r,Ob(qb,0)+r,248+4*qb+r),t,[rr[qb]],name=f"M"); t+=dt
                m1_=b.add(v2("v_mul_f32",Ob(qb,1)+r,Ob(qb,1)+r,248+4*qb+r),t,[rr[qb]],name=f"M"); t+=dt
                cv=b.add(vcvt(vOut(qb)+r,Ob(qb,0)+r,Ob(qb,1)+r),t,[m0_,m1_],name="OC"); t+=dt
                st_=b.add(I(f"buffer_store_dword v{vOut(qb)+r}, v0, s[{sO}:{sO+3}], s{sO0 if qb==0 else sO1} offen offset:{r*256}{STF}","vst",V(vOut(qb)+r)+V(0)+S(sO,4)+S(sO0 if qb==0 else sO1),[],cost=8),t,[cv],name="ST")
                if r==3: sts.append(st_)
    for qb in range(2 if not sts else 0):
        cv=[]
        for db in range(2):
            od=[odeps[(qb,db)]] if odeps else []
            for p2 in range(2):
                r=Ob(qb,db)+2*p2; R=vR0 if qb==0 else vR1
                m0_=b.add(v2("v_mul_f32",r,r,R),t,[sw]+od,name=f"M{qb}{db}{2*p2}"); t+=dt
                m1_=b.add(v2("v_mul_f32",r+1,r+1,R),t,[sw]+od,name=f"M{qb}{db}{2*p2+1}"); t+=dt
                muls+=[m0_,m1_]
                cv.append(b.add(vcvt(vOut(qb)+2*db+p2,r,r+1),t,[m0_,m1_]+prev.get("S",[]),name=f"OC{qb}{db}{p2}")); t+=dt
        sts.append(b.add(vst(vOut(qb),vOst,sO,sO0 if qb==0 else sO1),t,cv+prev.get("A",[]),name=f"ST{qb}"+tg)); sts[-1].ins.cost=OPT.get("stc",8)
    e1=b.adds(salu(f"s_add_u32 s{sO0}, s{sO0}, 8192",S(sO0),S(sO0)+[SCC]),t+1,[sts[0]]+list(scc),name="o0+")
    e2=b.adds(salu(f"s_add_u32 s{sO1}, s{sO1}, 8192",S(sO1),S(sO1)+[SCC]),t+2,[sts[1],e1],name="o1+")
    return {"L":[rc,x1,x2],"M":muls,"S":sts,"A":[e2]}

def iter_parts(b, i, par, cur, nxt, pv, ep, dodma, last_bar=True, loopctl=None, baroff=0, Ncustom=None, ctx=None):
    ctx=ctx or {}
    base=len(b.bb)
    def qk(n):
        f,h,kb,qb=chain_info(n)
        return [mfma(vS(n),aK(kb,ds),vQ(qb,ds),None if ds==0 else vS(n),name=f"QK{n}.{ds}") for ds in range(4)]
    so=1-par
    def pvo(qb,db): return [mfma(vO(so,qb,db),aV(0,kp,db),vP(2*kp+qb),None if kp==0 else vO(so,qb,db),name=f"PVo{qb}{db}.{kp}") for kp in range(4)]
    def one(qb): return [mfma(vLacc,vSEL[qb],vP(2*kp+qb),None if (kp==0 and qb==0) else vLacc,afile='v',name=f"ONE{qb}.{kp}") for kp in range(4)]
    sets=[(1,0),(1,1),(2,0),(2,1),(3,0),(3,1)]
    def pvx(s,db):
        j,qb=sets[s]
        return [mfma(vO(so,qb,db),aV(j,kp,db),vRing(s,kp),vO(so,qb,db),name=f"PVx{s}{db}.{kp}") for kp in range(4)]
    N=[("pvo",0,0),("pvo",0,1),("one",0),("pvo",1,0),("pvo",1,1),("one",1)]+[("pvx",s,db) for s in range(6) for db in range(2)]
    if Ncustom: N=[("cus",x) for x in range(18)]
    order=[N[0],N[1]]
    for n in range(16): order+=[("qk",n),N[n+2]]
    if ctx.get("eager"): order[-3],order[-2]=order[-2],order[-3]
    fk=OPT.get("fake",0) if (cur and nxt and pv and ep and not Ncustom) else 0
    if fk:
        order=[]; n=0; x=0
        while x<18 or n<16:
            order+=N[x:x+fk]; x+=fk
            order+=[("qk",m) for m in range(n,min(n+fk,16))]; n+=fk
    G={}; pos={}
    for key in order:
        if key[0]=="qk":
            n=key[1]
            if n>=14 and not nxt and cur and ctx.get("eager"):
                key=("eone",n-14); g=[mfma(vLacc,vSEL[n-14],vP(2*kp+n-14),None if (kp==0 and n==14) else vLacc,afile='v',name=f"eONE{n-14}.{kp}") for kp in range(4)]
            elif not (nxt if n>=14 else cur): continue
            else: g=qk(n)
        elif key[0]=="cus":
            g=Ncustom(key[1])
            if not g: continue
        else:
            if not pv: continue
            g={"pvo":pvo,"one":one,"pvx":pvx}[key[0]](*key[1:])
        if fk and key[0]!="qk" and OPT.get("fakeacc",1):
            d=vO(so,0,0)+4*((N.index(key)//fk)%4)
            for m in g:
                t=m.text.split(", "); t[0]=t[0].split(" ")[0]+f" v[{d}:{d+3}]"; t[3]=f"v[{d}:{d+3}]"; m.text=", ".join(t)
        G[key]=g; pos[key]=b.group(g)
        if key[0]=="cus": ctx["placed"](key[1],pos[key])
    nb=len(b.bb)-base
    nom={}; p=0
    for key in order: nom[key]=p; p+=4
    scale=(nb/136.0) if nb else 0
    import bisect
    alias={("qk",14):("eone",0),("qk",15):("eone",1)}
    pts=sorted((nom[k],pos[k if k in pos else alias[k]]) for k in nom if (k in pos or alias.get(k) in pos))
    def P(t):
        j=max(bisect.bisect_right(pts,(t,1<<30))-1,0)
        n0,a0=pts[j]; a1=pts[j+1][1] if j+1<len(pts) else 1<<30
        return min(a0+(t-n0),a1+(t-n0)*1e-3) if t>=n0 else a0+(t-n0)
    def add(ins,prio,deps=(),earliest=0,name=None):
        o=b.add(ins,P(prio),deps,int(P(earliest)) if earliest else base,name); o.nomp=prio; return o
    def adds(ins,prio,deps=(),name=None,earliest=0): return b.adds(ins,P(prio),deps,name,int(P(earliest)) if earliest else base)
    def need(key,k,o): b.need(pos[key]+k,o)
    rel=lambda o:o.nomp
    must_bar=list(ctx.get("must_bar",[]))
    scc=list(ctx.get("scc",[]))
    E={}
    for n in list(range(16))+[-1]:
        if n==15: continue
        if n==-1:
            if not cur: continue
            blk=vS(15); dep=ctx.get("c15",[]); t0=0
        else:
            if ("qk",n) not in G: continue
            blk=vS(n); dep=[G[("qk",n)][3]]; t0=nom[("qk",n)]+6
        for r in range(4):
            E[(n,r)]=add(vexp(blk+r),t0+2*r,dep,name=f"E{n}.{r}")
            if n>=0: E[(n,r)].prio=pos[("qk",n)]+6+2*r
    if cur:
        for f in range(8):
            qb=f%2; kp=f//2
            war=[G[k][kp] for k in (("pvo",qb,0),("pvo",qb,1),("one",qb)) if k in G]+ctx.get("pwar",{}).get(f,[])
            C=[]
            for h in range(2):
                n=s_block(f,h)
                en = -1 if n==15 else n
                for p2 in range(2):
                    deps=list(war)
                    if f==0 and h==0: t=1+p2; deps+=ctx.get("e14",[])
                    else:
                        deps+=[E[(en,2*p2)],E[(en,2*p2+1)]]; t=rel(E[(en,2*p2+1)])+1
                    c=add(vcvtp(vP(f)+2*h+p2,vS(n)+2*p2,vS(n)+2*p2+1),t,deps,name=f"C{f}.{2*h+p2}")
                    if not (f==0 and h==0): c.prio=E[(en,2*p2+1)].prio+1
                    C.append(c)
                    if ("eone",qb) in G: need(("eone",qb),kp,c)
                    nn=(n+8)%16
                    if ("qk",nn) in G and (n>=14 or n<8): need(("qk",nn),0,c)
            off=PB[par]+f*1024
            if str(f) in str(OPT.get("w32","")).replace("f",""):
                for x in range(4):
                    w=add(dsw32(vPw,vP(f)+x,off+4*x),rel(C[x])+1,[C[x]]+ctx.get("wdep",[]),name=f"W{f}.{x}"); must_bar.append(w)
            elif str(f) in str(OPT.get("w64","")).replace("f",""):
                for x in range(2):
                    w=add(dsw64(vPw,vP(f)+2*x,off+8*x),rel(C[2*x+1])+1,C[2*x:2*x+2]+ctx.get("wdep",[]),name=f"W{f}.{x}"); must_bar.append(w)
            else:
                w=add(dsw128(vPw,vP(f),off),rel(C[3])+1,C+ctx.get("wdep",[]),name=f"W{f}"); must_bar.append(w); w.prio=C[3].prio+1
        for n,ds_ in ctx.get("swar",{}).items():
            for o in ds_: need(("qk",n),0,o)
    if pv:
        for s,(j,qb) in enumerate(sets):
            for k in range(4):
                deps=[G[("pvx",s-2,1)][k]] if s>=2 else []
                t=nom[("pvx",s,0)]-14+k if s>=2 else s*4+k
                o=add(dsr128(vRing(s,k),vPr[j],PB[so]+(2*k+qb)*1024),t,deps,name=f"R{s}.{k}")
                need(("pvx",s,0),-1,o); must_bar.append(o)
        lw=add(dsw32(vLw,vLacc,so*512),nom[("one",1)]+8,[G[("one",1)][3]],name="LW"); must_bar.append(lw)
        if ("eone",0) in G:
            need(("eone",0),0,lw)
            must_bar.append(add(dsw32(vLw,vLacc,par*512),0,[G[("eone",1)][3]],name="eLW"))
    if nxt:
        a1=adds(salu(f"s_add_u32 s{sQrs}, s{sQrs}, {QSLOT}",S(sQrs),S(sQrs)+[SCC]),40,scc,name="qr+")
        a2=adds(salu(f"s_cmp_eq_u32 s{sQrs}, {QEND}",S(sQrs),[SCC]),41,[a1],name="qr?")
        a3=adds(salu(f"s_cselect_b32 s{sQrs}, {QBASE}, s{sQrs}",S(sQrs)+[SCC],S(sQrs)),42,[a2],name="qr=")
        scc=[a3]
        upd=add(valu(f"v_add_u32 v{vQrd}, s{sQrs}, v{vQrd0}",S(sQrs)+V(vQrd0),V(vQrd)),80,[a3]+ctx.get("rqprev",[]),name="qupd")
        for qb in range(2):
            lastn=11 if qb==0 else 13
            for ds in range(4):
                deps=[upd]+([G[("qk",lastn)][ds]] if ("qk",lastn) in G else [])+ctx.get("rqdep",[])
                o=add(dsr128(vQ(qb,ds),vQrd,qb*4160+ds*256),nom[("qk",lastn)]+1+ds,deps,name=f"RQ{qb}.{ds}")
                if qb==0: need(("qk",14),-1,o)
    if dodma:
        d1,b4=qdma_ops(b,P(ctx.get("dmaprio",50)),ctx.get("dmadep",[]),scc=scc); scc=[b4]
    if ep:
        e=epilogue_ops(b,lambda qb,db:vO(par,qb,db),par*512,P(-1),P(OPT.get("ept",24)),OPT.get("epdt",3.2)*scale,[],None,{},scc,sc=scale); scc=e["A"]
    if "late" in ctx: scc=ctx["late"](scc,must_bar)
    if loopctl:
        c1=adds(salu(f"s_sub_u32 s{sLoop}, s{sLoop}, 1",S(sLoop),S(sLoop)+[SCC]),128,scc,name="lp-",earliest=128)
        c2=adds(salu(f"s_cmp_lg_u32 s{sLoop}, 0",S(sLoop),[SCC]),129,[c1],name="lp?",earliest=129)
        b.tail=[I(f"s_cbranch_scc1 {loopctl}","branch",[SCC])]
    b.slots.discard(base+nb-1)
    if last_bar: b.barrier(base+nb-1-baroff,must_bar,keep_dma=2*(D-2),all_ds=1)

def iteration(i, par, cur, nxt, pv, ep, dodma, prefix, log=None, **kw):
    b=Bld(); iter_parts(b,i,par,cur,nxt,pv,ep,dodma,**kw); return b.run(prefix,log)

def drain(i,prefix,log):
    b=Bld(); so=(i-1)%2; par=i%2
    ring=[128,144,64,80,32,48]; last={}
    for qb in range(2):
        for j in range(4):
            s_=qb*3+j-1
            for db in range(2):
                d=vO(so,qb,db)
                g=[mfma(d,aV(j,kp,db),vP(2*kp+qb) if j==0 else ring[s_]+4*kp,None if (j==0 and kp==0) else d,name=f"PV{qb}{j}{db}.{kp}") for kp in range(4)]
                p=b.group(g); last[(qb,db)]=g[3]
                if j and db==0:
                    for k in range(4): b.need(p-1,b.add(dsr128(ring[s_]+4*k,vPr[j],PB[so]+(2*k+qb)*1024),s_*2+k/2,name=f"R{s_}.{k}"))
    e=epilogue_ops(b,lambda qb,db:vO(par,qb,db),par*512,-1,10,0.7,[],None,{},[],sc=0.5)
    epilogue_ops(b,lambda qb,db:vO(so,qb,db),so*512,20,34,0.7,[],last,e,e["A"],sc=0.3,tg="z")
    return b.run(prefix,log)

vOs=[80,112][:T-LAG-1]+[vO(T%2,0,0)]+[200,216,232][:LAG-1]+[vO(1-T%2,0,0)]
vLs=lambda t:248+t
sKo=64
sVm=72
vKA,vVA,vTB,vTD=255,0,192,15
def kdma_units(c):
    u=[]
    for pr in range(4):
        for n in range(2):
            d=dma(vQdma,sK,45,n*1024); d.tag=f"K{c}"
            u.append(([salu(f"s_add_u32 m0, s54, {(pr//2)*4160+(pr%2)*2080}",S(54),[M0,SCC]), salu(f"s_add_u32 s45, s44, {c*8192+pr*2048}",S(44),S(45)+[SCC])] if n==0 else [])+[d])
    return u
def qdma_units(t):
    d0=dma(vQdma,sQ,46,0); d1=dma(vQdma,sQ,46,1024); d0.tag=d1.tag=f"Q{t}"
    return [[salu(f"s_add_u32 m0, s{sWoff}, {(t%NQ)*QSLOT}",S(sWoff),[M0,SCC]),salu(f"s_mov_b32 s46, {t*8192}",[],S(46)),d0],[d1]]
def vdma_units(c):
    u=[]
    for hf in range(2):
        for n in range(4):
            d=dma(vVA,sV,sKo+2*c+hf,n*1024); d.tag=f"V{c}"
            u.append(([salu(f"s_mov_b32 m0, s{sVm+hf}",S(sVm+hf),[M0])] if n==0 else [])+[d])
    return u
flat=lambda u:[x for y in u for x in y]
STREAM=kdma_units(0)+qdma_units(0)+qdma_units(1)+qdma_units(2)+vdma_units(0)+flat([qdma_units(t) for t in range(3,T)])+kdma_units(1)
NPRO=OPT.get("npro",20)
def kread(c):
    o=[dsr128(aK(2*c+h,ds),vKA,h*4160+ds*256,file='a') for h in range(2) for ds in range(4)]
    for x in o: x.meta["tags"]={f"K{c}"}
    return o
aSC=lambda lo,half:aV(lo,3,half)
vKT=[192,196,vLrd]
def touch_ins(): return I(f"buffer_load_dword v253, v254, s[{sO}:{sO+3}], 0 offen nt","vld",V(254)+S(sO,4),V(253))
def ksops(c,j):
    a=aK(2*c+j//8,(j//2)%4)+2*(j%2); d=vKT[j%3]
    return [vcvt(d,d,d+1),vcvt(d+1,d+2,d+3)]+[vop(f"v_accvgpr_write_b32 a{a+x}, v{d+x}",V(d+x),A(a+x)) for x in range(2)]
def kscale(c,extra=None):
    o=[]
    for j in range(16):
        a=aK(2*c+j//8,(j//2)%4); d=vKT[j%3]; x=ksops(c,j-2) if j>=2 else [nop(2),None,nop(2),None]
        if j%2==0: o.append(waitslot())
        o+=[mfma(d,aSC(0,j%2),a,None,bfile='a',name="KSh")]+(extra(j) if extra else [])+x[:2]+[mfma(d,aSC(1,j%2),a,d,bfile='a',name="KSl")]+x[2:]
    return [i for i in o if i is not None]
def startup(prefix,log,off=0):
    b=Bld(); NS=4*T
    Sb=lambda n:64+(n%4)*4
    OWN=OPT.get("own",1) and T-LAG<=2
    Pw=lambda k,qb:96+((k%(4 if OWN else 2))*2+qb)*4
    ownk=lambda k:OWN and k<NS-OPT.get("ownskip",2)
    ent=lambda k,qb:PB[T%2 if (LAG>3 and 3*T<=k<NS-LAG) else 1-T%2]+((k%4)*2+qb)*1024
    assert LAG<=3 or all(k%4 for k in range(3*T,NS-LAG))
    pvstep=lambda k:k+(LAG0 if k<3*T else LAG)
    pvof={pvstep(k):k for k in range(NS)}
    QK={}; PV={}; ONE={}; start={}; end={}; posQ={}; posP={}; posO={}
    def pvg(k,qb,db):
        c,t=divmod(k,T); d=vOs[t]+qb*8+db*4
        return [mfma(d,aV(j,c,db),Pw(k,qb) if (ownk(k) and j==0) else vRing(2*k+qb,j),None if (c==0 and j==0) else d,name=f"PV{k}.{qb}{db}.{j}") for j in range(4)]
    def oneg(k): return [mfma(vLacc,vSEL[0],Pw(k,0),None,afile='v',name=f"ONE{k}.0"),mfma(vLacc,vSEL[1],Pw(k,1),vLacc,afile='v',name=f"ONE{k}.1")]
    for k in range(NS):
        c,t=divmod(k,T)
        start[k]=len(b.bb)
        for ch in range(4):
            kb=2*c+ch%2; qb=ch//2; n=4*k+ch
            QK[(k,ch)]=[mfma(Sb(n),aK(kb,ds),vQ(qb,ds),None if ds==0 else Sb(n),name=f"QK{k}.{ch}.{ds}") for ds in range(4)]
            posQ[(k,ch)]=b.group(QK[(k,ch)])
            if k in pvof:
                key=(pvof[k],ch//2,ch%2); PV[key]=pvg(*key); posP[key]=b.group(PV[key])
            if ch==2 and k>=1: ONE[k-1]=oneg(k-1); posO[k-1]=b.group(ONE[k-1])
        if k==NS-1:
            for n in(14,15):
                f,h,kb,qb=chain_info(n)
                QK[("pre",n)]=[mfma(vS(n),aK(kb,ds),vQ(qb,ds),None if ds==0 else vS(n),name=f"QKp{n}.{ds}") for ds in range(4)]
                posQ[("pre",n)]=b.group(QK[("pre",n)])
        end[k]=len(b.bb)-1
    cus={}
    x=0
    for k in range(NS-LAG,NS):
        for qb in range(2):
            for db in range(2):
                PV[(k,qb,db)]=pvg(k,qb,db); cus[x]=("pv",(k,qb,db)); x+=1
                if x==3: ONE[NS-1]=oneg(NS-1); cus[x]=("one",NS-1); x+=1
    nskip=18-len(cus); hi=OPT.get("skiphi",14)
    skip=set(hi-2*j for j in range(nskip)); slots_=[y for y in range(18) if y not in skip]
    cus={slots_[y]:v for y,v in cus.items()}
    def Ncustom(x):
        if x not in cus: return None
        return PV[cus[x][1]] if cus[x][0]=="pv" else ONE[cus[x][1]]
    def placed(x,p):
        (posP if cus[x][0]=="pv" else posO)[cus[x][1]]=p
    BAR={}; W={}; C={}; LA={}; LW={}; RQ={}; TR={}; E={}
    bdeps={k:[] for k in range(NS)}; btags={k:set() for k in range(NS)}; bneed={k:[] for k in range(NS)}
    for k in range(NS): BAR[k]=b.barrier(end[k]-off,[],tags=btags[k],need=set())
    def bneeds(k,o): BAR[k].deps.append(o); BAR[k].ins.meta["need"].add(id(o.ins))
    for k in range(1,NS): BAR[k].deps.append(BAR[k-1])
    state={"scc":[],"dma":[],"ep":{}}
    def softmax(k):
        c,t=divmod(k,T)
        for ch in range(4):
            n=4*k+ch; qb=ch//2; h=ch%2
            for r in range(4): E[(k,ch,r)]=b.add(vexp(Sb(n)+r),posQ[(k,ch)]+6+2*r,[QK[(k,ch)][3]],name=f"E{k}.{ch}.{r}")
            for p2 in range(2):
                deps=[E[(k,ch,2*p2)],E[(k,ch,2*p2+1)]]
                if OWN:
                    if k>=4: deps+=[ONE[k-4][qb],W[(k-4,qb)],PV[(k-4,qb,0)][0],PV[(k-4,qb,1)][0]]
                elif k>=2: deps+=[ONE[k-2][qb],W[(k-2,qb)]]
                o=b.add(vcvtp(Pw(k,qb)+2*h+p2,Sb(n)+2*p2,Sb(n)+2*p2+1),E[(k,ch,2*p2+1)].prio+1,deps,name=f"C{k}.{ch}.{p2}")
                C[(k,ch,p2)]=o
                if k+1<NS: b.need(posQ[(k+1,ch)],o)
            if h==1:
                W[(k,qb)]=b.add(dsw128(vPw,Pw(k,qb),ent(k,qb)),C[(k,ch,1)].prio+1,[C[(k,cc,pp)] for cc in(ch-1,ch) for pp in range(2)]+([BAR[pvstep(k-4)]] if (k>=4 and pvstep(k-4)<k and ent(k,0)==ent(k-4,0)) else [])+([BAR[k-3]] if k>NS-LAG else []),name=f"W{k}.{qb}")
                if k+1<NS: bneeds(k+1,W[(k,qb)])
    for k in range(NS): softmax(k)
    def one_ops(k):
        c,t=divmod(k,T)
        for cc in range(4):
            for pp in range(2): b.need(posO[k],C[(k,cc,pp)])
        if k>=1: b.need(posO[k],LA[k-1])
        ins=valu(f"v_mov_b32 v{vLs(t)}, v{vLacc}",V(vLacc),V(vLs(t))) if c==0 else v2("v_add_f32",vLs(t),vLs(t),vLacc)
        LA[k]=b.add(ins,posO[k]+6,[ONE[k][1]],name=f"LA{k}")
        if c==3:
            LW[t]=b.add(dsw32(vLw,vLs(t),((T-1)%2)*512 if t==T-1 else 1024+t*512),posO[k]+8,[LA[k]],name=f"LW{t}")
            if k+1<NS: bneeds(k+1,LW[t])
    for k in range(NS-1): one_ops(k)
    def preads(k):
        for qb in range(2):
            for j in range(1 if ownk(k) else 0,4):
                deps=[BAR[k+1]]+([PV[(k-1,qb,1)][j]] if k>=1 else [])
                o=b.add(dsr128(vRing(2*k+qb,j),vPw if j==0 else vPr[j],ent(k,qb)),posP[(k,qb,0)]-OPT.get('rlead',12)+j,deps,name=f"R{k}.{qb}.{j}")
                b.need(posP[(k,qb,0)]-1,o); state.setdefault("R",[]).append(o)
    for k in range(NS-LAG): preads(k)
    for k in range(NS+1):
        t=k%T if k<NS else T%NQ
        for qb in range(2):
            for ds in range(4):
                deps=[QK[(k-1,2*qb+1)][ds]] if k>=1 else []
                if 2<=k<T: deps.append(BAR[k-2]); btags[k-2].add(f"Q{k}")
                if k==NS: deps.append(BAR[NS-2]); btags[NS-2].add(f"Q{T}")
                pr=(posQ[(k-1,2*qb+1)]+1+ds) if k>=1 else 14+4*qb+ds
                o=b.add(dsr128(vQ(qb,ds),vQrd,t*QSLOT+qb*4160+ds*256),pr,deps,name=f"RQ{k}.{qb}.{ds}"); RQ[(k,qb,ds)]=o
                if k<NS: b.need(posQ[(k,2*qb)]-1,o)
                elif qb==0: b.need(posQ[("pre",14)]-1,o)
    btags[NS-1].add(f"Q{T+1}")
    state["chain"]=[]; hard={0,1}
    def issue(units,where,deps,nm):
        for u,(k,fr) in zip(units,where):
            tt=int(start[k]+fr*(end[k]-start[k])); prev=list(deps)+state["chain"]+state["scc"]
            nd=[x.kind for x in u].index("dma")
            for x,ins in enumerate(u):
                if ins.kind=="salu": o=b.adds(ins,tt+x-nd-3,prev,name="s"+nm,earliest=tt+x-nd-3 if x<nd else 0)
                else: o=b.add(ins,tt,prev,earliest=tt,name=nm); ins.cost=OPT.get("sdmac",8)
                prev=[o]
            state["chain"]=prev; state["scc"]=prev
            if k in hard: BAR[k].deps.append(prev[0])
    def spread(n,k0,per):
        w=[]; k=k0
        while len(w)<n:
            m=min(per,n-len(w)); w+=[(k,(x+0.5)/per) for x in range(m)]; k+=1
        return w
    kchain=[]
    def extra(j):
        o=flat(STREAM[12+(NPRO-12)*j//16:12+(NPRO-12)*(j+1)//16])
        if j==9: o+=[waitslot(),bar(tags={"Q0","Q1"},need=set())]
        if 10<=j<14: o+=[RQ[(0,(j-10)//2,2*(j%2)+x)].ins for x in range(2)]
        return o
    for qb in range(2):
        for ds in range(4): o=RQ[(0,qb,ds)]; b.ops.remove(o); o.done=True; o.gap=-1
    ks0=b.add([waitslot()]+kread(0)+kscale(0,extra)+[waitslot()],0,[],name="KS0"); b.need(0,ks0)
    rest=STREAM[NPRO:]
    n0=OPT.get("n0",4); n1=OPT.get("n1",10)
    w=[(0,(x+0.5)/n0) for x in range(n0)]+[(1,OPT.get('f1',30)/100+0.5*x/n1) for x in range(n1)]
    w=w[:len(rest)]; w+=spread(len(rest)-len(w),2,2)
    issue(rest,w,[ks0],"D")
    lastk=w[-1][0]
    for c in range(4):
        s1=pvstep(c*T)-1
        btags[s1-1].add(f"V{c}")
        p0=start[c*T]
        if c==0: ks=ks0
        else:
            kr=[b.add(ins,p0-14+x,kchain,earliest=p0-16,name=f"KR{c}") for x,ins in enumerate(kread(c))]
            ks=b.add(kscale(c),p0,kr+state["TR"],name=f"KS{c}"); b.need(p0,ks)
        aw=[]
        for j in(14,15):
            x=ksops(c,j); prev=[ks]
            for n,ins in enumerate(x): o=b.add(ins,p0-8+j-14+n*0.1,prev,name="Kx"); prev=[o]; aw.append(o); b.need(posQ[(c*T,1)],o)
        state["KS"]=aw
        if OPT.get("touch") and OPT.get("tpos")==c: state["chain"]=[b.add(touch_ins(),p0,[ks]+state["chain"],name="TOUCH")]
        if 1<=c<3: issue(kdma_units(c+1),spread(8,c*T,OPT.get("kper",6)),[ks],f"KD{c+1}")
        kchain=state["chain"]
        state["TR"]=[]
        for j in range(4):
            r=vPw if j==0 else vPr[j]
            tb=b.add(v2("v_add_u32",vTB+j,vTD,r),start[s1-1]+j,state.get("KS",[]),earliest=start[s1-1],name="TB")
            for db in range(2):
                for hf in range(2):
                    a=aV(j,c,db)+2*hf
                    o=b.add(I(f"ds_read_b64_tr_b16 a[{a}:{a+1}], v{vTB+j} offset:{hf*4096+8*db}","dsr",V(vTB+j),A(a,2)),start[s1]+j*4+db*2+hf,[BAR[s1-1],tb],name=f"TR{c}")
                    b.need(posP[(c*T,0,0)]-1,o); bneeds(s1,o); state["TR"].append(o)
        if c<3: issue(vdma_units(c+1),(spread(8,max(s1+1,lastk,OPT.get("v1",0)),OPT.get("v1per",6)) if c==0 else spread(8,s1+1,OPT.get("vper",6))),[BAR[s1]],f"VD{c+1}")
    state["ep"]={"L":state["KS"],"S":state["TR"]}
    for x in range(D):
        t=T+x; k=min(max(3*T+1+t-NQ,3*T-1+x),NS-1)
        issue(qdma_units(t),[(k,0.25),(k,0.6)],[BAR[3*T+t-NQ]] if t>=NQ else [],"QD")
    chain=state["chain"]
    def ep(t,t0,tm,dt,scc):
        k=3*T+t
        od={(qb,db):PV[(k,qb,db)][3] for qb in range(2) for db in range(2)}
        e=epilogue_ops(b,lambda qb,db:vOs[t]+qb*8+db*4,1024+t*512,t0,tm,dt,[BAR[k+1]],od,state["ep"],scc,sc=0.5,tg=f"t{t}")
        state["ep"]=e; return e
    eps={}; BARX=[]
    for t in range(T-LAG-1+0):
        k=3*T+t+LAG
        eps[t]=ep(t,start[k]+8,start[k]+20,1.3,state["scc"]); state["scc"]=eps[t]["A"]
    if T-LAG>=2:
        for o in eps[0]["M"]+eps[0]["S"]: b.need(posQ[("pre",14)],o)
    e14=[b.add(vexp(vS(14)+r),posQ[("pre",14)]+6+2*r,[QK[("pre",14)][3]],name=f"Ep{r}") for r in range(4)]
    def late(scc,must_bar):
        BAR[NS]=b.barrier(end[NS-1]+1+OPT.get("barx",23)+3-off,[BAR[NS-1]],keep=True,need=set())
        for qb in range(2): bneeds(NS,W[(NS-1,qb)])
        BARX.append(BAR[NS])
        state["R"]=[]
        for k in range(NS-LAG,NS): preads(k)
        must_bar+=state["R"]
        one_ops(NS-1); must_bar.append(LW[T-1])
        for t in range(T-LAG-1,T-1):
            k=3*T+t
            p=posP[(k,0,0)] if k>=NS-LAG else end[NS-1]-8
            eps[t]=ep(t,p-6,p+10,1.2,scc); scc=eps[t]["A"]
        return scc
    last=NS-1
    ctx=dict(dmaprio=5,placed=placed,late=late,scc=state["scc"],c15=[QK[("pre",15)][3]],e14=e14,dmadep=chain+[BAR[last]],
             must_bar=[W[(last,0)],W[(last,1)]],wdep=[BAR[last]],rqdep=[BAR[last]],rqprev=[RQ[(NS,qb,ds)] for qb in range(2) for ds in range(4)],
             pwar={f:[ONE[NS-4+f//2][f%2],W[(NS-4+f//2,f%2)]]+([PV[(NS-4+f//2,f%2,0)][0],PV[(NS-4+f//2,f%2,1)][0]] if ownk(NS-4+f//2) else []) for f in range(8)} if OWN else
                  {0:[ONE[last-1][0],W[(last-1,0)]],1:[ONE[last-1][1],W[(last-1,1)]],2:[ONE[last][0],W[(last,0)]],3:[ONE[last][1],W[(last,1)]],
                   **({f:eps[1]["M"]+eps[1]["S"] for f in range(4,8)} if T-LAG>=3 else {})},
             swar={n:[C[(last,n,pp)] for pp in range(2)] for n in range(4)})
    iter_parts(b,T,T%2,1,1,0,0,1,Ncustom=Ncustom,ctx=ctx,baroff=off)
    b.sops[-1].deps.append(BAR[NS])
    for ds in range(4): b.need(end[last]+1+8-1,RQ[(NS,1,ds)])
    res=b.run(prefix,log,overdue=OPT.get("od",3))
    if OPT["stamp"]==2 and not OPT.get("ps"):
        p0=OPT.get('p0'); pts=[2,3,6,9,13,16,20,23,27] if p0 is None else list(range(p0,p0+9)); o=[]
        for x in res:
            o.append(x)
            for n,k in enumerate(pts):
                if x is BAR[k].ins: o.append(raw(f"{'s_memtime' if OPT.get('cyc') else 's_memrealtime'} s[{78+2*n}:{79+2*n}]"))
        res=o
        if OPT.get("fine"):
            o=[]; on=False; n=0; x_=0
            for x in res:
                if x.kind=="raw" and x.text.startswith("s_mem"): continue
                o.append(x)
                if x is BAR[NS-1].ins: on=True; o.append(raw("s_memtime s[78:79]")); n=1
                if on and x.kind=="mfma":
                    x_+=1
                    if x_%OPT["fine"]==0 and n<9: o.append(raw(f"s_memtime s[{78+2*n}:{79+2*n}]")); n+=1
            res=o
    if "spinbar" in OPT:
        n=[n for n,x in enumerate(res) if x is BAR[OPT["spinbar"]].ins][0]
        res=res[:n+1]+stamp(1)+res[n+1:]
    if OPT.get("seg"):
        idx=[n for n,x in enumerate(res) if x.kind=="bar"]
        print("step est:",[estimate(res[a:z]) for a,z in zip(idx,idx[1:])],file=sys.stderr)
    return res

class Seq:
    def __init__(s,prefix=()): s.o=list(prefix); s.n0=len(s.o)
    def __call__(s,*ins,slot=True):
        for i in ins:
            if slot and i.kind not in("label","comment","salu","wait","branch","raw","nop"): s.o.append(waitslot())
            k=hazard_need(s.o,i)
            if k>0: s.o.append(nop(k))
            s.o.append(i)
    def out(s): return s.o[s.n0:]

def vop(t,rd,wr): return valu(t,rd,wr)
def prologue():
    q=Seq()
    q(salu("s_cmp_ge_u32 s2, 256",S(2),[SCC]), I("s_cbranch_scc1 L_end","branch",[SCC]))
    if OPT["stamp"]: q(raw("s_memtime s[60:61]"),raw("s_memrealtime s[62:63]"),raw(f"s_load_dwordx2 s[{sDbg}:{sDbg+1}], s[0:1], 32"))
    q(raw("s_load_dwordx4 s[36:39], s[0:1], 0"), raw("s_load_dwordx4 s[40:43], s[0:1], 16"))
    L,Q_,G_,T1,T2,T3=200,201,202,203,204,205
    if OPT.get("warm",2):
        q(raw("s_getpc_b64 s[56:57]"), label("L_pc"), raw("s_and_b32 s57, s57, 0xffff"), raw("s_mov_b32 s58, L_end-L_pc"), raw("s_mov_b32 s59, 0x20000"))
        q(vop(f"v_lshlrev_b32 v{T2}, 7, v0",V(0),V(T2)))
    def warm(ks):
        for k in ks:
            q(raw(f"s_mov_b32 s55, {k*32768}"))
            q(I(f"buffer_load_dword v{240+k}, v{T2}, s[56:59], s55 offen","vld",V(T2),V(240+k)),slot=False)
    nw=OPT.get("warm",2); we=OPT.get("wearly",1)
    warm(range(min(we,nw)))
    q(vop(f"v_and_b32 v{L}, 63, v0",V(0),V(L)), vop(f"v_lshrrev_b32 v{T1}, 6, v0",V(0),V(T1)))
    q(I(f"v_readfirstlane_b32 s{sW}, v{T1}","valu",V(T1),S(sW),meta={"rfl":1}))
    q(vop(f"v_and_b32 v{Q_}, 15, v{L}",V(L),V(Q_)), vop(f"v_lshrrev_b32 v{G_}, 4, v{L}",V(L),V(G_)))
    R_,C_=208,209
    q(vop(f"v_bfe_u32 v{R_}, v{L}, 2, 2",V(L),V(R_)), vop(f"v_and_b32 v{C_}, 3, v{L}",V(L),V(C_)))
    q(salu(f"s_mul_i32 s3, s2, {QBYTES}",S(2),S(3)), salu("s_lshl_b32 s31, s2, 17",S(2),S(31)))
    q(salu(f"s_lshl_b32 s46, s{sW}, 11",S(sW),S(46)), salu(f"s_lshl_b32 s{sKo}, s{sW}, 15",S(sW),S(sKo)))
    q(vop(f"v_lshlrev_b32 v{vQdma}, 8, v{R_}",V(R_),V(vQdma)), vop(f"v_lshl_add_u32 v{vQdma}, v{G_}, 6, v{vQdma}",V(G_)+V(vQdma),V(vQdma)),
      vop(f"v_lshl_add_u32 v{vQdma}, v{C_}, 4, v{vQdma}",V(C_)+V(vQdma),V(vQdma)), vop(f"v_add_u32 v{vQdma}, s46, v{vQdma}",S(46)+V(vQdma),V(vQdma)))
    q(salu(f"s_mul_i32 s47, s{sW}, 2080",S(sW),S(47)), salu(f"s_add_u32 s{sWoff}, s47, {QBASE}",S(47),S(sWoff)))
    q(salu(f"s_sub_u32 s44, s{sKo}, s46",S(sKo)+S(46),S(44)), salu(f"s_mul_i32 s54, s{sW}, {QSLOT}",S(sW),S(54)), salu(f"s_add_u32 s54, s54, {KBASE}",S(54),S(54)))
    for srd,nb in((sQ,QBYTES),(sK,KBYTES),(sV,KBYTES),(sO,QBYTES)):
        q(salu(f"s_mov_b32 s{srd+2}, {nb}",[],S(srd+2)), salu(f"s_mov_b32 s{srd+3}, 0x20000",[],S(srd+3)))
    q(raw("s_waitcnt lgkmcnt(0)"))
    def base(srd,src,off):
        q(salu(f"s_add_u32 s{srd}, s{src}, s{off}",S(src)+S(off),S(srd)), salu(f"s_addc_u32 s{srd+1}, s{src+1}, 0",S(src+1),S(srd+1)),
          salu(f"s_and_b32 s{srd+1}, s{srd+1}, 0xffff",S(srd+1),S(srd+1)))
    ps=lambda n:[raw(f"s_memrealtime s[{78+2*n}:{79+2*n}]")] if OPT.get("ps") else []
    base(sK,38,31); q(*ps(0),*flat(STREAM[:8]),*ps(1),slot=False)
    base(sQ,36,3); q(*flat(STREAM[8:12]),slot=False)
    warm(range(min(we,nw),nw))
    base(sV,40,31); base(sO,42,3)
    if OPT.get("touch"):
        q(vop(f"v_lshlrev_b32 v{T2}, {OPT.get('tsh',12)}, v0",V(0),V(T2)))
        q(vop(f"v_mov_b32 v254, v{T2}",V(T2),V(254)))
        if not OPT.get("tpos"): q(touch_ins(),slot=False)
    for n in range(1,8): q(salu(f"s_add_u32 s{sKo+n}, s{sKo}, {n*4096}",S(sKo),S(sKo+n)))
    q(salu(f"s_add_u32 s{sT}, s47, {QEND}",S(47),S(sT)), salu(f"s_add_u32 s{sQm0}, s{sWoff}, {((T+D)%NQ)*QSLOT}",S(sWoff),S(sQm0)), salu(f"s_mov_b32 s{sQso}, {(T+D)*8192}",[],S(sQso)))
    q(vop(f"v_lshlrev_b32 v{T1}, 2, v{G_}",V(G_),V(T1)), vop(f"v_xor_b32 v{T1}, v{T1}, v{Q_}",V(T1)+V(Q_),V(T1)),
      vop(f"v_lshlrev_b32 v{T1}, 4, v{T1}",V(T1),V(T1)), vop(f"v_lshl_add_u32 v{vVA}, v{G_}, 8, v{T1}",V(G_)+V(T1),V(vVA)))
    q(salu(f"s_lshl_b32 s48, s{sW}, 13",S(sW),S(48)), salu(f"s_add_u32 s{sVm}, s48, {VBASE}",S(48),S(sVm)), salu(f"s_add_u32 s{sVm+1}, s48, {VBASE+4096}",S(48),S(sVm+1)))
    q(*ps(2))
    q(vop(f"v_lshrrev_b32 v{T1}, 2, v{Q_}",V(Q_),V(T1)), vop(f"v_lshlrev_b32 v{vQrd0}, 10, v{T1}",V(T1),V(vQrd0)),
      vop(f"v_lshrrev_b32 v{T1}, 3, v{Q_}",V(Q_),V(T1)), vop(f"v_lshl_add_u32 v{vQrd0}, v{T1}, 5, v{vQrd0}",V(T1)+V(vQrd0),V(vQrd0)),
      vop(f"v_lshl_add_u32 v{vQrd0}, v{C_}, 6, v{vQrd0}",V(C_)+V(vQrd0),V(vQrd0)), vop(f"v_lshl_add_u32 v{vQrd0}, v{G_}, 4, v{vQrd0}",V(G_)+V(vQrd0),V(vQrd0)))
    q(salu(f"s_mov_b32 s{sQrs}, {QBASE+(T%NQ)*QSLOT}",[],S(sQrs))); q(vop(f"v_add_u32 v{vQrd}, {QBASE}, v{vQrd0}",V(vQrd0),V(vQrd)))
    for j in range(4):
        q(salu(f"s_add_u32 s49, s{sW}, {j}",S(sW),S(49)), salu("s_and_b32 s49, s49, 3",S(49),S(49)), salu(f"s_lshl_b32 s{50+j}, s49, 13",S(49),S(50+j)))
        r=vPw if j==0 else vPr[j]
        q(vop(f"v_lshl_add_u32 v{r}, v{L}, 4, s{50+j}",V(L)+S(50+j),V(r)))
    q(salu(f"s_lshl_b32 s49, s{sW}, 6",S(sW),S(49)))
    q(vop(f"v_lshlrev_b32 v{vOst}, 8, v{Q_}",V(Q_),V(vOst)), vop(f"v_lshl_add_u32 v{vOst}, v{G_}, 4, v{vOst}",V(G_)+V(vOst),V(vOst)), vop(f"v_add_u32 v{vOst}, s49, v{vOst}",S(49)+V(vOst),V(vOst)))
    q(vop(f"v_lshrrev_b32 v{T1}, 1, v{G_}",V(G_),V(T1)), vop(f"v_lshl_add_u32 v{T1}, v{T1}, 4, v{Q_}",V(T1)+V(Q_),V(T1)),
      vop(f"v_lshlrev_b32 v{T1}, 4, v{T1}",V(T1),V(T1)), vop(f"v_add_u32 v{vLr}, {LBASE}, v{T1}",V(T1),V(vLr)))
    q(salu(f"s_lshl_b32 s49, s{sW}, 2",S(sW),S(49))); q(vop(f"v_add_u32 v{vLw}, s49, v{vLr}",S(49)+V(vLr),V(vLw)))
    q(vop(f"v_mov_b32 v{vLmax}, 0",[],V(vLmax)))
    q(vop(f"v_mov_b32 v{T1}, 0x3f803f80",[],V(T1)), valu(f"v_cmp_gt_u32 vcc, 8, v{Q_}",V(Q_),[VCC]))
    for r in range(4):
        q(valu(f"v_cndmask_b32 v{vSEL[0]+r}, 0, v{T1}, vcc",V(T1)+[VCC],V(vSEL[0]+r)))
        q(vop(f"v_xor_b32 v{vSEL[1]+r}, v{T1}, v{vSEL[0]+r}",V(T1)+V(vSEL[0]+r),V(vSEL[1]+r)))
    if OPT.get("trunc"): q(salu("s_mov_b32 s74, 0x07060302",[],S(74)))
    q(salu(f"s_mov_b32 s{sO0}, 0",[],S(sO0)), salu(f"s_mov_b32 s{sO1}, 4096",[],S(sO1)))
    q(vop(f"v_lshlrev_b32 v{T1}, 2, v{R_}",V(R_),V(T1)), vop(f"v_add_u32 v{T2}, s49, v{C_}",S(49)+V(C_),V(T2)), vop(f"v_xor_b32 v{T2}, v{T2}, v{T1}",V(T1)+V(T2),V(T2)),
      vop(f"v_lshl_add_u32 v{T3}, v{G_}, 2, v{R_}",V(G_)+V(R_),V(T3)), vop(f"v_lshlrev_b32 v{T3}, 8, v{T3}",V(T3),V(T3)), vop(f"v_lshl_add_u32 v{T3}, v{T2}, 4, v{T3}",V(T2)+V(T3),V(T3)),
      vop(f"v_lshlrev_b32 v{T1}, 4, v{L}",V(L),V(T1)), v2("v_sub_u32",T3,T3,T1), vop(f"v_add_u32 v{vTD}, {VBASE}, v{T3}",V(T3),V(vTD)))
    q(vop(f"v_add_u32 v{vKA}, s54, v{vQrd0}",S(54)+V(vQrd0),V(vKA)))
    q(vop(f"v_lshrrev_b32 v{T1}, 2, v{Q_}",V(Q_),V(T1)), valu(f"v_cmp_eq_u32 vcc, v{T1}, v{G_}",V(T1)+V(G_),[VCC]),
      vop(f"v_and_b32 v{T1}, 1, v{L}",V(L),V(T1)), vop(f"v_lshlrev_b32 v{T1}, 4, v{T1}",V(T1),V(T1)),
      vop(f"v_and_b32 v{T2}, 2, v{L}",V(L),V(T2)), valu(f"v_cmp_eq_u32 s[50:51], 0, v{T2}",V(T2),S(50,2)))
    for lo,cb in enumerate((CHI,CLO)):
        q(vop(f"v_mov_b32 v{T2}, {cb:#x}",[],V(T2)), v2("v_lshlrev_b32",T2,T1,T2), valu(f"v_cndmask_b32 v{T2}, 0, v{T2}, vcc",V(T2)+[VCC],V(T2)),
          valu(f"v_cndmask_b32 v{T3}, 0, v{T2}, s[50:51]",V(T2)+S(50,2),V(T3)), v2("v_xor_b32",T2,T2,T3))
        for half in range(2):
            a=aSC(lo,half)
            q(vop(f"v_accvgpr_write_b32 a{a+2*half}, v{T3}",V(T3),A(a+2*half)), vop(f"v_accvgpr_write_b32 a{a+2*half+1}, v{T2}",V(T2),A(a+2*half+1)),
              vop(f"v_accvgpr_write_b32 a{a+2-2*half}, 0",[],A(a+2-2*half)), vop(f"v_accvgpr_write_b32 a{a+3-2*half}, 0",[],A(a+3-2*half)))
    q(*ps(3))
    return q.out()

def fallback():
    q=Seq()
    q(label("L_fallback"), wait(vm=0,lg=0), bar())
    q(salu(f"s_mov_b32 s{sQso}, 0",[],S(sQso)), salu(f"s_mov_b32 s{sO0}, 0",[],S(sO0)), salu(f"s_mov_b32 s{sO1}, 4096",[],S(sO1)), salu(f"s_mov_b32 s{sLoop}, {NT}",[],S(sLoop)))
    q(vop(f"v_add_u32 v{vQrd}, {QBASE}, v{vQrd0}",V(vQrd0),V(vQrd)))
    MW,MR,T=216,217,218
    q(vop(f"v_mbcnt_lo_u32_b32 v{T}, -1, 0",[],V(T)), vop(f"v_mbcnt_hi_u32_b32 v{T}, -1, v{T}",V(T),V(T)),
      vop(f"v_and_b32 v{MR}, 15, v{T}",V(T),V(MR)), vop(f"v_lshlrev_b32 v{MR}, 6, v{MR}",V(MR),V(MR)), vop(f"v_add_u32 v{MR}, {MBASE}, v{MR}",V(MR),V(MR)),
      vop(f"v_lshrrev_b32 v{T}, 4, v{T}",V(T),V(T)), vop(f"v_lshl_add_u32 v{MW}, v{T}, 2, v{MR}",V(T)+V(MR),V(MW)))
    q(salu(f"s_lshl_b32 s49, s{sW}, 4",S(sW),S(49))); q(vop(f"v_add_u32 v{MW}, s49, v{MW}",S(49)+V(MW),V(MW)))
    q(label("L_fb_loop"))
    q(salu(f"s_mov_b32 m0, s{sWoff}",S(sWoff),[M0])); q(dma(vQdma,sQ,sQso,0),dma(vQdma,sQ,sQso,1024)); q(wait(vm=0),bar())
    for qb in range(2):
        for ds in range(4): q(dsr128(vQ(qb,ds),vQrd,qb*4160+ds*256))
    Sb=lambda kb,qb:64+(kb*2+qb)*4
    Pf=lambda f:128+f*4
    for kb in range(8):
        for qb in range(2):
            for ds in range(4): q(mfma(Sb(kb,qb),aK(kb,ds),vQ(qb,ds),None if ds==0 else Sb(kb,qb)))
    Mx=[220,221]; RD=224
    for qb in range(2):
        q(v2("v_max_f32",Mx[qb],Sb(0,qb),Sb(0,qb)+1))
        regs=[Sb(kb,qb)+r for kb in range(8) for r in range(4)][2:]
        for x in range(0,30,2): q(vop(f"v_max3_f32 v{Mx[qb]}, v{Mx[qb]}, v{regs[x]}, v{regs[x+1]}",V(Mx[qb])+V(regs[x])+V(regs[x+1]),V(Mx[qb])))
        q(dsw32(MW,Mx[qb],qb*1024))
    q(bar())
    for qb in range(2):
        for x in range(4): q(dsr128(RD+4*x,MR,qb*1024+16*x))
        q(v2("v_max_f32",Mx[qb],RD,RD+1))
        for x in range(2,16,2): q(vop(f"v_max3_f32 v{Mx[qb]}, v{Mx[qb]}, v{RD+x}, v{RD+x+1}",V(Mx[qb])+V(RD+x)+V(RD+x+1),V(Mx[qb])))
    for kb in range(8):
        for qb in range(2):
            for r in range(4): q(v2("v_sub_f32",Sb(kb,qb)+r,Sb(kb,qb)+r,Mx[qb]),slot=False)
            for r in range(4): q(vexp(Sb(kb,qb)+r),slot=False)
            for p2 in range(2): q(vcvt(Pf(2*(kb//2)+qb)+2*(kb%2)+p2,Sb(kb,qb)+2*p2,Sb(kb,qb)+2*p2+1),slot=False)
    for f in range(8): q(dsw128(vPw,Pf(f),f*1024))
    for qb in range(2):
        for kp in range(4): q(mfma(vLacc,vSEL[qb],Pf(2*kp+qb),None if (kp==0 and qb==0) else vLacc,afile='v'))
    q(dsw32(vLw,vLacc,0)); q(bar())
    for qb in range(2):
        for db in range(2):
            for kp in range(4): q(mfma(vO(0,qb,db),aV(0,kp,db),Pf(2*kp+qb),None if kp==0 else vO(0,qb,db)))
    for j in range(1,4):
        for qb in range(2):
            for k in range(4): q(dsr128(RD+4*k,vPr[j],(2*k+qb)*1024))
            for db in range(2):
                for kp in range(4): q(mfma(vO(0,qb,db),aV(j,kp,db),RD+4*kp,vO(0,qb,db)))
    q(dsr128(vLrd,vLr,0)); q(v2("v_add_f32",vLrd,vLrd,vLrd+1),v2("v_add_f32",vLrd+2,vLrd+2,vLrd+3),v2("v_add_f32",vLrd,vLrd,vLrd+2))
    q(valu(f"v_rcp_f32 v{vR0}, v{vLrd}",V(vLrd),V(vR0),"trans"), vop(f"v_mov_b32 v{vR1}, v{vR0}",V(vR0),V(vR1)),
      valu(f"v_permlane32_swap_b32 v{vR0}, v{vR1}",V(vR0)+V(vR1),V(vR0)+V(vR1),"perm"))
    for qb in range(2):
        for db in range(2):
            for p2 in range(2):
                r=vO(0,qb,db)+2*p2; R=vR0 if qb==0 else vR1
                q(v2("v_mul_f32",r,r,R),v2("v_mul_f32",r+1,r+1,R),vcvt(vOut(qb)+2*db+p2,r,r+1))
        q(vst(vOut(qb),vOst,sO,sO0 if qb==0 else sO1))
    q(salu(f"s_add_u32 s{sO0}, s{sO0}, 8192",S(sO0),S(sO0)), salu(f"s_add_u32 s{sO1}, s{sO1}, 8192",S(sO1),S(sO1)), salu(f"s_add_u32 s{sQso}, s{sQso}, 8192",S(sQso),S(sQso)))
    q(wait(vm=0,lg=0),bar())
    q(salu(f"s_sub_u32 s{sLoop}, s{sLoop}, 1",S(sLoop),S(sLoop)), salu(f"s_cmp_lg_u32 s{sLoop}, 0",S(sLoop),[SCC]), I("s_cbranch_scc1 L_fb_loop","branch",[SCC]))
    return q.out()

def stamp(n):
    if OPT["stamp"]==2: return [raw(f"s_memrealtime s[{76+2*n}:{77+2*n}]")] if n in(0,) else ([raw("s_memrealtime s[98:99]")] if n==1 else [])
    return [raw(f"s_memtime s[{76+4*n}:{77+4*n}]"),raw(f"s_memrealtime s[{78+4*n}:{79+4*n}]")] if OPT["stamp"] else []

def build():
    logs={}
    pro=prologue()+stamp(0)
    def it(i,par,cur,nxt,pv,ep,prefix,**kw):
        lg=[]; r=iteration(i,par,cur,nxt,pv,ep,(i+D<NT) or kw.get("force_dma"),prefix,log=lg,**{k:v for k,v in kw.items() if k!="force_dma"}); logs[i]=lg; return [comment(f"---- iteration {i}")]+r
    U=OPT.get("U",2); nst=40-(T+1); trips=nst//U; rem=nst-trips*U
    stag=OPT.get("stag",0); ncopy=OPT.get("ncopy",4) if stag else 1
    sst=OPT.get("sstag",0)
    disp=[]
    for cp in range(ncopy-1,0,-1):
        disp+=[salu(f"s_cmp_ge_u32 s{sW}, {cp*(4//ncopy)}",S(sW),[SCC]), I(f"s_cbranch_scc1 L_copy{cp}","branch",[SCC])]
    def mk0(off):
        lg=[]; r=[comment("---- start-up steps + merged iteration")]+startup(pro,lg,off); logs[0]=lg
        return r+[salu(f"s_mov_b32 s{sLoop}, {trips}",[],S(sLoop))]+([] if "spinbar" in OPT else stamp(1))
    def mkend(prev,off):
        r=[]
        for u in range(rem):
            x=it(40-rem+u,(40-rem+u)%2,1,1,1,1,prev,force_dma=True,baroff=off); prev=x; r+=x
        x=stamp(2)+it(40,0,1,0,1,1,prev,ctx={"eager":1},baroff=off)
        return r,x
    if not sst: i0=mk0(0)
    allb=[]; paths=[]; body_rem=[]
    for cp in range(ncopy):
        if sst: i0=mk0(stag*cp)
        body=[]; prev=i0
        for u in range(U):
            x=it(T+1+u,(T+1+u)%2,1,1,1,1,prev,force_dma=True,loopctl=f"L_loop{cp}" if (u==U-1 and trips>1) else None,baroff=stag*cp); body+=x; prev=x
            if u==0: ia=x
            if u==1: ib=x
        if sst or cp==0: br,i40=mkend(prev,stag*cp if sst else 0)
        paths.append(i0+body*min(trips,3)+br+i40)
        allb+=[label(f"L_copy{cp}")]+(i0 if sst else [])+[raw(f".p2align {OPT.get('al',6)}"),label(f"L_loop{cp}")]+body+(br+i40 if sst else [])
        body_rem+=body+br
        if cp<ncopy-1: allb+=[I("s_branch L_after","branch")]
    allb+=[label("L_after")]
    lg=[]; i41=[comment("---- drain")]+drain(41,i40,lg); logs[41]=lg; i42=[]; i1=[]
    main=pro+(disp if sst else i0+disp)+allb+([] if sst else br+i40)+i41
    fin=Seq(i41+i42)
    fin(salu(f"s_mov_b32 s49, {HI:#x}",[],S(49)))
    fin(valu(f"v_cmp_lt_u32 vcc, s49, v{vLmax}",S(49)+V(vLmax),[VCC]))
    fin(nop(5), I("s_cbranch_vccnz L_fallback","branch",[VCC]))
    if OPT["stamp"]==2 and OPT.get("all"):
        fin(raw("s_waitcnt vmcnt(0)"),raw("s_memrealtime s[100:101]"),raw("s_waitcnt lgkmcnt(0)"),raw(f"s_cmp_lg_u32 s{sW}, 0"),raw("s_cbranch_scc1 L_end"))
        fin(raw(f"s_and_b32 s{sDbg+1}, s{sDbg+1}, 0xffff"),raw(f"s_mov_b32 s{sDbg+2}, 4096"),raw(f"s_mov_b32 s{sDbg+3}, 0x20000"))
        fin(raw("s_getreg_b32 s3, hwreg(HW_REG_XCC_ID)"),raw("s_and_b32 s3, s3, 7"),raw("s_and_b32 s55, s62, 0xffffff"),raw("s_lshl_b32 s3, s3, 24"),raw("s_or_b32 s3, s3, s55"),raw("v_mov_b32 v200, s3"))
        for n,r in enumerate((82,98,100)): fin(raw(f"s_sub_u32 s3, s{r}, s62"),raw(f"v_mov_b32 v{201+n}, s3"))
        fin(raw("s_lshl_b32 s3, s2, 4"),raw("v_mov_b32 v220, s3"),raw("s_mov_b64 exec, 1"),raw(f"buffer_store_dwordx4 v[200:203], v220, s[{sDbg}:{sDbg+3}], 0 offen"))
    elif OPT["stamp"]==2:
        fin(raw("s_waitcnt vmcnt(0)"),raw("s_memrealtime s[100:101]"),raw("s_waitcnt lgkmcnt(0)"))
        fin(raw("s_and_b32 s3, s2, 63"),raw("s_cmp_lg_u32 s3, 0"),raw("s_cbranch_scc1 L_end"),raw(f"s_cmp_lg_u32 s{sW}, 0"),raw("s_cbranch_scc1 L_end"))
        fin(raw(f"s_and_b32 s{sDbg+1}, s{sDbg+1}, 0xffff"),raw(f"s_mov_b32 s{sDbg+2}, 256"),raw(f"s_mov_b32 s{sDbg+3}, 0x20000"))
        for n in range(13): fin(raw(f"s_sub_u32 s3, s{76+2*n}, s62"),raw(f"v_mov_b32 v{200+n}, s3"))
        fin(raw("s_lshr_b32 s3, s2, 6"),raw("s_lshl_b32 s3, s3, 6"),raw("v_mov_b32 v220, s3"),raw("s_mov_b64 exec, 1"))
        for n in range(4): fin(raw(f"buffer_store_dwordx4 v[{200+4*n}:{203+4*n}], v220, s[{sDbg}:{sDbg+3}], 0 offen offset:{16*n}"))
    elif OPT["stamp"]:
        fin(*stamp(3)); fin(raw("s_waitcnt vmcnt(0)")); fin(*stamp(4)); fin(raw("s_waitcnt lgkmcnt(0)"))
        sp=OPT.get("spin")
        if sp is not None:
            ex={0:["s_mov_b32 s3, 0"],1:["s_sub_u32 s3, s78, s62","s_lshl_b32 s3, s3, 2"],2:["s_sub_u32 s3, s86, s82"],3:["s_sub_u32 s3, s94, s62"],
                4:["s_sub_u32 s3, s84, s80","s_lshr_b32 s3, s3, 4"],5:["s_sub_u32 s3, s82, s62","s_lshl_b32 s3, s3, 2"]}[sp]
            for e in ex: fin(raw(e))
            fin(raw("s_add_u32 s3, s3, 15000"),label("L_spin"),raw("s_memrealtime s[98:99]"),raw("s_waitcnt lgkmcnt(0)"),raw("s_sub_u32 s98, s98, s62"),raw("s_cmp_lt_u32 s98, s3"),raw("s_cbranch_scc1 L_spin"))
        fin(raw("s_and_b32 s3, s2, 31"),raw("s_cmp_lg_u32 s3, 0"),raw("s_cbranch_scc1 L_end"),raw(f"s_cmp_lg_u32 s{sW}, 0"),raw("s_cbranch_scc1 L_end"))
        fin(raw(f"s_and_b32 s{sDbg+1}, s{sDbg+1}, 0xffff"),raw(f"s_mov_b32 s{sDbg+2}, 256"),raw(f"s_mov_b32 s{sDbg+3}, 0x20000"))
        for n in range(4): fin(raw(f"s_sub_u32 s3, s{76+4*(n+1 if n==3 else n)}, s60"),raw(f"v_mov_b32 v{200+2*n}, s3"),raw(f"s_sub_u32 s3, s{78+4*(n+1 if n==3 else n)}, s62"),raw(f"v_mov_b32 v{201+2*n}, s3"))
        fin(raw("s_lshr_b32 s3, s2, 5"),raw("s_lshl_b32 s3, s3, 5"),raw("v_mov_b32 v208, s3"),raw("s_mov_b64 exec, 1"),
            raw(f"buffer_store_dwordx4 v[200:203], v208, s[{sDbg}:{sDbg+3}], 0 offen"),raw(f"buffer_store_dwordx4 v[204:207], v208, s[{sDbg}:{sDbg+3}], 0 offen offset:16"))
    fin(raw("s_endpgm"))
    fb=fallback()
    static=main+fin.out()+fb+[label("L_end"),raw("s_endpgm")]
    dyns=[pro+p+i41+fin.out() for p in paths]
    for rep in range(2):
        for dyn in dyns: resolve_waits(dyn)
    k=[x for x,y in enumerate(fb) if y.text=="L_fb_loop"][0]
    dynf=fb+fb[k:]
    resolve_waits(dynf)
    for name,d in [("main",d) for d in dyns]+[("fallback",dynf)]:
        bad=check_hazards(d)
        for b in bad: print("HAZARD",name,b,file=sys.stderr)
        assert not bad
        print(name,"max outstanding",max_outstanding(d),file=sys.stderr)
    for nm,sq in(("i0",i0),("i1",i1),("ia",ia),("ib",ib),("i40",i40),("i41",i41),("i42",i42)):
        print(nm,"est cycles",estimate(sq),"nops",sum(1 for x in sq if x.kind=="nop"),"instrs",sum(1 for x in sq if states(x)),file=sys.stderr)
    if "log" in OPT: print("\n".join(logs[OPT["log"]]),file=sys.stderr)
    abl=str(OPT.get("abl","")).split("+")
    if abl!=[""]:
        loop=set(map(id,body_rem)) if not OPT.get('abs') else set(map(id,i0[len(i0)//4:]))
        def drop(x):
            if id(x) not in loop: return False
            t=x.text
            return (("st" in abl and x.kind=="vst") or ("dma" in abl and x.kind=="dma") or ("pr" in abl and x.kind=="dsr" and 128<=min(r[1] for r in x.wr)<160)
              or ("qr" in abl and x.kind=="dsr" and 32<=min(r[1] for r in x.wr)<64) or ("pw" in abl and x.kind=="dsw") or ("exp" in abl and t.startswith("v_exp"))
              or ("cvt" in abl and t.startswith("v_cvt")) or ("one" in abl and x.kind=="mfma" and x.name.startswith("ONE")) or ("bar" in abl and x.kind=="bar")
              or ("mul" in abl and t.startswith("v_mul")) or ("valu" in abl and x.kind in VALU_KINDS) or ("qk" in abl and x.kind=="mfma" and x.name.startswith("QK"))
              or ("pv" in abl and x.kind=="mfma" and x.name.startswith("PV")) or ("wait" in abl and x.kind=="wslot") or ("ks" in abl and (t.startswith("v_accvgpr") or t.startswith("v_pk_mul") or t.startswith("v_and") or t.startswith("v_lshlrev"))))
        static=[x for x in static if not drop(x)]
        static=[x for x in static if x.text!="s_cbranch_vccnz L_fallback"]
    if OPT.get("fake"): static=[x for x in static if x.text!="s_cbranch_vccnz L_fallback"]
    if OPT.get("swap"):
        import re as _re
        for x in body_rem:
            if x.kind=="mfma" and any(x.name.startswith(p) for p in OPT["swap"].split("+")):
                m=_re.match(r"(\S+ [^,]+), ([^,]+), ([^,]+), (.*)",x.text); x.text=f"{m[1]}, {m[3]}, {m[2]}, {m[4]}"
        static=[x for x in static if x.text!="s_cbranch_vccnz L_fallback"]
    hdr=open("standalone__mha_softmax__near_ridge.s.ref").read().split("; Override launch")[0]
    txt=hdr+f"""; One workgroup (4 waves) per head.  K (scaled once by log2(e)/sqrt(D)) and V^T stay in AGPRs: wave w owns keys
; 128w..128w+127 for S^T = K.Q^T and output columns 32w..32w+31 for O^T = V^T.P^T (16x16x32 bf16 MFMA); P and the row sums
; are exchanged through LDS, one barrier per 32-row query tile.  The first tiles are processed key-chunk by key-chunk while
; K and V stream in.  Softmax shift: the fast path shifts by 0; every row sum l is checked at run time (2^-48 <= l <= 2^48,
; inf/NaN included) and if any row leaves that range the whole head is recomputed with the true row max (L_fallback).
; @launch grid=(256,1,1) block=(256,1,1) lds={LDS_BYTES}
.amdgcn_target "amdgcn-amd-amdhsa--gfx950"
.text
.globl {NAME}
.p2align 8
.type {NAME},@function
{NAME}:
"""+emit(static)+f""".section .rodata,"a"
.p2align 6
.amdhsa_kernel {NAME}
  .amdhsa_next_free_vgpr 512
  .amdhsa_next_free_sgpr 102
  .amdhsa_accum_offset 256
  .amdhsa_group_segment_fixed_size 0
  .amdhsa_kernarg_size 48
  .amdhsa_user_sgpr_count 2
  .amdhsa_user_sgpr_kernarg_segment_ptr 1
  .amdhsa_system_sgpr_workgroup_id_x 1
.end_amdhsa_kernel
"""
    return txt

if __name__=="__main__":
    open(sys.argv[1],"w").write(build())
```

```python
import sys, struct, math
from core import *
from sched import *

NAME="standalone__mha_softmax__near_ridge_kernel"
NT=41
QBYTES=335872; KBYTES=131072
OPT=dict(D=4, st="sc0+sc1", ld="nt", stamp=0, wsplit=0, stag=3, ncopy=2)
for a in sys.argv[2:]:
    k,v=a.split("="); OPT[k]=int(v) if v.lstrip("-").isdigit() else v
D=OPT["D"]; NQ=7; T=OPT.get("T",5); LAG=OPT.get("lag",4); LAG0=OPT.get('lag0',3)
STF=(" "+OPT["st"].replace("+"," ")) if OPT["st"]!="none" else ""
LDF=(" "+OPT["ld"].replace("+"," ")) if OPT["ld"]!="none" else ""
QSLOT=8320; PB=[0,33280]; KBASE=PB[T%2]; QBASE=2*33280; QEND=QBASE+NQ*QSLOT; VBASE=QEND; LBASE=VBASE+32768; MBASE=LBASE+1024; LDS_BYTES=LBASE+4096
vQrd,vQrd0,vPw,vPr,vQdma,vOst,vLw,vLr=1,2,3,[None,4,5,6],7,8,9,10
vLmax,vLmin,vR0,vR1,vT=11,12,13,14,15
vLrd,vLacc,vSEL=16,20,[24,28]
vQ=lambda qb,ds:32+qb*16+ds*4
vS=lambda n:64+(n%8)*4
vP=lambda f:96+f*4
vRing=lambda s,k:128+(s%2)*16+k*4
vO=lambda st,qb,db:160+st*16+qb*8+db*4
vOut=lambda qb:192+qb*4
aK=lambda kb,ds:(kb*4+ds)*4
aV=lambda j,kp,db:128+((j*4+kp)*2+db)*4
sQ,sK,sV,sO=4,8,12,16
sW,sLoop,sQso,sQm0,sQrs,sO0,sO1,sT,sC=20,21,22,23,24,25,26,27,28
sWoff=30; sDbg=32
M0=('m0',0); VCC=('vcc',0); SCC=('scc',0)
CSCALE=struct.unpack("<I",struct.pack("<f",math.log2(math.e)/math.sqrt(128.0)))[0]
def bf16(x):
    u=struct.unpack("<I",struct.pack("<f",x))[0]; return (u+0x7fff+((u>>16)&1))>>16
CF=math.log2(math.e)/math.sqrt(128.0); CHI=bf16(CF); CLO=bf16(CF-struct.unpack("<f",struct.pack("<I",CHI<<16))[0])
HI=(127+48)<<23

def dsr128(dst,addr,off,file='v',name=None): return I(f"ds_read_b128 {rs(file,dst,4)}, v{addr} offset:{off}","dsr",V(addr),[(file,dst+i) for i in range(4)],name=name)
def dsw128(addr,src,off): return I(f"ds_write_b128 v{addr}, {rs('v',src,4)} offset:{off}","dsw",V(addr)+V(src,4),[],cost=20)
def dsw64(addr,src,off): return I(f"ds_write_b64 v{addr}, {rs('v',src,2)} offset:{off}","dsw",V(addr)+V(src,2),[],cost=12)
def dsw32(addr,src,off): return I(f"ds_write_b32 v{addr}, v{src} offset:{off}","dsw",V(addr)+V(src),[],cost=8)
def dma(voff,srd,soff,off,flag=LDF): return I(f"buffer_load_dwordx4 v{voff}, s[{srd}:{srd+3}], s{soff} offen offset:{off}{flag} lds","dma",V(voff)+S(srd,4)+S(soff)+[M0],[])
def vld(dst,voff,srd,soff,off,flag=LDF): return I(f"buffer_load_dwordx4 {rs('v',dst,4)}, v{voff}, s[{srd}:{srd+3}], s{soff} offen offset:{off}{flag}","vld",V(voff)+S(srd,4)+S(soff),V(dst,4))
def vst(src,voff,srd,soff,flag=STF): return I(f"buffer_store_dwordx4 {rs('v',src,4)}, v{voff}, s[{srd}:{srd+3}], s{soff} offen{flag}","vst",V(src,4)+V(voff)+S(srd,4)+S(soff),[],meta={"data":V(src,4)})
def vexp(r): return valu(f"v_exp_f32 v{r}, v{r}",V(r),V(r),"trans")
def vcvt(d,a,b): return valu(f"v_cvt_pk_bf16_f32 v{d}, v{a}, v{b}",V(a)+V(b),V(d))
def vcvtp(d,a,b):
    if OPT.get("trunc"): return valu(f"v_perm_b32 v{d}, v{b}, v{a}, s74",V(a)+V(b)+S(74),V(d))
    return vcvt(d,a,b)
def v2(op,d,a,b): return valu(f"{op} v{d}, v{a}, v{b}",V(a)+V(b),V(d))
def bar(**m): return I("s_barrier","bar",meta=m)
def label(t): return I(t,"label")
def comment(t): return I(t,"comment")

def chain_info(n):
    f=(n//2+1)%8; h=n%2
    return f,h,2*(f//2)+h,f%2
def s_block(f,h):
    return (2*((f-1)%8)+h)

class Bld:
    def __init__(s): s.bb=[]; s.ops=[]; s.sops=[]; s.mdeps={}; s.slots=set(); s.tail=[]
    def group(s,g):
        p=len(s.bb); s.bb+=g; s.slots.add(len(s.bb)-1); return p
    def add(s,ins,prio,deps=(),earliest=0,name=None):
        o=Op(ins,prio,deps,earliest,name); s.ops.append(o); return o
    def adds(s,ins,prio,deps=(),name=None,earliest=0):
        o=Op(ins,prio,deps,earliest,name); s.sops.append(o); return o
    def need(s,idx,o): s.mdeps.setdefault(max(idx,0),[]).append(o)
    def barrier(s,gap,deps,keep=False,**meta):
        if keep and gap in s.slots: gap-=1; o=s.adds(bar(**meta),-1,deps,name="BAR",earliest=gap); s.slots.add(gap-1); return o
        o=s.adds(bar(**meta),-1,deps,name="BAR",earliest=max(gap,0)); s.slots.discard(gap); s.slots.add(gap-1); return o
    def run(s,prefix,log=None,overdue=None): return schedule(s.bb,s.ops,s.sops,s.mdeps,prefix,s.slots,s.tail,log,overdue,fill=OPT.get('fill',1))

def qdma_ops(b,t0,deps,tag=None,scc=()):
    m=b.adds(salu(f"s_mov_b32 m0, s{sQm0}",S(sQm0),[M0]),t0-2,deps,name="m0")
    QF=(" "+OPT["lq"].replace("+"," ") if OPT["lq"]!="none" else "") if "lq" in OPT else LDF
    d0=b.add(dma(vQdma,sQ,sQso,0,QF),t0,[m],name="DMA0"); d1=b.add(dma(vQdma,sQ,sQso,1024,QF),t0+4,[d0],name="DMA1")
    d0.ins.cost=d1.ins.cost=OPT.get("dmac",8); d0.ins.tag=d1.ins.tag=tag
    b1=b.adds(salu(f"s_add_u32 s{sQm0}, s{sQm0}, {QSLOT}",S(sQm0),S(sQm0)+[SCC]),t0+10,[m]+list(scc),name="qm+")
    b2=b.adds(salu(f"s_cmp_eq_u32 s{sQm0}, s{sT}",S(sQm0)+S(sT),[SCC]),t0+11,[b1],name="qm?")
    b3=b.adds(salu(f"s_cselect_b32 s{sQm0}, s{sWoff}, s{sQm0}",S(sQm0)+S(sWoff)+[SCC],S(sQm0)),t0+12,[b2],name="qm=")
    b4=b.adds(salu(f"s_add_u32 s{sQso}, s{sQso}, 8192",S(sQso),S(sQso)+[SCC]),t0+14,[d1,b3],name="qso+")
    return d1,b4

def epilogue_ops(b,Ob,loff,t0,tm,dt,ldeps,odeps,prev,scc,sc=1.0,tg=""):
    lr=b.add(dsr128(vLrd,vLr,loff),t0,list(ldeps)+prev.get("L",[]),name="LR"+tg)
    a=b.add(v2("v_add_f32",vLrd,vLrd,vLrd+1),t0+11*sc,[lr],name="La")
    bb_=b.add(v2("v_add_f32",vLrd+2,vLrd+2,vLrd+3),t0+11.5*sc,[lr],name="Lb")
    c=b.add(v2("v_add_f32",vLrd,vLrd,vLrd+2),t0+12*sc,[a,bb_],name="Lc")
    rc=b.add(valu(f"v_rcp_f32 v{vR0}, v{vLrd}",V(vLrd),V(vR0),"trans"),t0+13*sc,[c]+prev.get("M",[]),name="RCP")
    x1=x2=b.add(valu(f"v_max3_u32 v{vLmax}, v{vLmax}, v{vLrd}, v{vR0}",V(vLmax)+V(vLrd)+V(vR0),V(vLmax)),t0+14.5*sc,[rc],name="chk")
    mv=b.add(valu(f"v_mov_b32 v{vR1}, v{vR0}",V(vR0),V(vR1)),t0+14*sc,[rc],name="MOV")
    sw=b.add(valu(f"v_permlane32_swap_b32 v{vR0}, v{vR1}",V(vR0)+V(vR1),V(vR0)+V(vR1),"perm"),t0+15*sc,[mv,x1],name="SWP")
    t=tm; sts=[]; muls=[]
    if OPT.get("pa") and not tg and odeps is None:
        b.ops.remove(mv); b.ops.remove(sw)
        rw=b.add(dsw32(vLw,vR0,3072),t0+14*sc,[rc],name="RW")
        rr=[b.add(dsr128(248+4*(qb),vLr,3072+16*qb),t0+16*sc+qb,[rw],name="RR") for qb in range(2)]
        for qb in range(2):
            for r in range(4):
                m0_=b.add(v2("v_mul_f32",Ob(qb,0)+r,Ob(qb,0)+r,248+4*qb+r),t,[rr[qb]],name=f"M"); t+=dt
                m1_=b.add(v2("v_mul_f32",Ob(qb,1)+r,Ob(qb,1)+r,248+4*qb+r),t,[rr[qb]],name=f"M"); t+=dt
                cv=b.add(vcvt(vOut(qb)+r,Ob(qb,0)+r,Ob(qb,1)+r),t,[m0_,m1_],name="OC"); t+=dt
                st_=b.add(I(f"buffer_store_dword v{vOut(qb)+r}, v0, s[{sO}:{sO+3}], s{sO0 if qb==0 else sO1} offen offset:{r*256}{STF}","vst",V(vOut(qb)+r)+V(0)+S(sO,4)+S(sO0 if qb==0 else sO1),[],cost=8),t,[cv],name="ST")
                if r==3: sts.append(st_)
    for qb in range(2 if not sts else 0):
        cv=[]
        for db in range(2):
            od=[odeps[(qb,db)]] if odeps else []
            for p2 in range(2):
                r=Ob(qb,db)+2*p2; R=vR0 if qb==0 else vR1
                m0_=b.add(v2("v_mul_f32",r,r,R),t,[sw]+od,name=f"M{qb}{db}{2*p2}"); t+=dt
                m1_=b.add(v2("v_mul_f32",r+1,r+1,R),t,[sw]+od,name=f"M{qb}{db}{2*p2+1}"); t+=dt
                muls+=[m0_,m1_]
                cv.append(b.add(vcvt(vOut(qb)+2*db+p2,r,r+1),t,[m0_,m1_]+prev.get("S",[]),name=f"OC{qb}{db}{p2}")); t+=dt
        sts.append(b.add(vst(vOut(qb),vOst,sO,sO0 if qb==0 else sO1),t,cv+prev.get("A",[]),name=f"ST{qb}"+tg)); sts[-1].ins.cost=OPT.get("stc",8)
    e1=b.adds(salu(f"s_add_u32 s{sO0}, s{sO0}, 8192",S(sO0),S(sO0)+[SCC]),t+1,[sts[0]]+list(scc),name="o0+")
    e2=b.adds(salu(f"s_add_u32 s{sO1}, s{sO1}, 8192",S(sO1),S(sO1)+[SCC]),t+2,[sts[1],e1],name="o1+")
    return {"L":[rc,x1,x2],"M":muls,"S":sts,"A":[e2]}

def iter_parts(b, i, par, cur, nxt, pv, ep, dodma, last_bar=True, loopctl=None, baroff=0, Ncustom=None, ctx=None):
    ctx=ctx or {}
    base=len(b.bb)
    def qk(n):
        f,h,kb,qb=chain_info(n)
        return [mfma(vS(n),aK(kb,ds),vQ(qb,ds),None if ds==0 else vS(n),name=f"QK{n}.{ds}") for ds in range(4)]
    so=1-par
    def pvo(qb,db): return [mfma(vO(so,qb,db),aV(0,kp,db),vP(2*kp+qb),None if kp==0 else vO(so,qb,db),name=f"PVo{qb}{db}.{kp}") for kp in range(4)]
    def one(qb): return [mfma(vLacc,vSEL[qb],vP(2*kp+qb),None if (kp==0 and qb==0) else vLacc,afile='v',name=f"ONE{qb}.{kp}") for kp in range(4)]
    sets=[(1,0),(1,1),(2,0),(2,1),(3,0),(3,1)]
    def pvx(s,db):
        j,qb=sets[s]
        return [mfma(vO(so,qb,db),aV(j,kp,db),vRing(s,kp),vO(so,qb,db),name=f"PVx{s}{db}.{kp}") for kp in range(4)]
    N=[("pvo",0,0),("pvo",0,1),("one",0),("pvo",1,0),("pvo",1,1),("one",1)]+[("pvx",s,db) for s in range(6) for db in range(2)]
    if Ncustom: N=[("cus",x) for x in range(18)]
    order=[N[0],N[1]]
    for n in range(16): order+=[("qk",n),N[n+2]]
    if ctx.get("eager"): order[-3],order[-2]=order[-2],order[-3]
    fk=OPT.get("fake",0) if (cur and nxt and pv and ep and not Ncustom) else 0
    if fk:
        order=[]; n=0; x=0
        while x<18 or n<16:
            order+=N[x:x+fk]; x+=fk
            order+=[("qk",m) for m in range(n,min(n+fk,16))]; n+=fk
    G={}; pos={}
    for key in order:
        if key[0]=="qk":
            n=key[1]
            if n>=14 and not nxt and cur and ctx.get("eager"):
                key=("eone",n-14); g=[mfma(vLacc,vSEL[n-14],vP(2*kp+n-14),None if (kp==0 and n==14) else vLacc,afile='v',name=f"eONE{n-14}.{kp}") for kp in range(4)]
            elif not (nxt if n>=14 else cur): continue
            else: g=qk(n)
        elif key[0]=="cus":
            g=Ncustom(key[1])
            if not g: continue
        else:
            if not pv: continue
            g={"pvo":pvo,"one":one,"pvx":pvx}[key[0]](*key[1:])
        if fk and key[0]!="qk" and OPT.get("fakeacc",1):
            d=vO(so,0,0)+4*((N.index(key)//fk)%4)
            for m in g:
                t=m.text.split(", "); t[0]=t[0].split(" ")[0]+f" v[{d}:{d+3}]"; t[3]=f"v[{d}:{d+3}]"; m.text=", ".join(t)
        G[key]=g; pos[key]=b.group(g)
        if key[0]=="cus": ctx["placed"](key[1],pos[key])
    nb=len(b.bb)-base
    nom={}; p=0
    for key in order: nom[key]=p; p+=4
    scale=(nb/136.0) if nb else 0
    import bisect
    alias={("qk",14):("eone",0),("qk",15):("eone",1)}
    pts=sorted((nom[k],pos[k if k in pos else alias[k]]) for k in nom if (k in pos or alias.get(k) in pos))
    def P(t):
        j=max(bisect.bisect_right(pts,(t,1<<30))-1,0)
        n0,a0=pts[j]; a1=pts[j+1][1] if j+1<len(pts) else 1<<30
        return min(a0+(t-n0),a1+(t-n0)*1e-3) if t>=n0 else a0+(t-n0)
    def add(ins,prio,deps=(),earliest=0,name=None):
        o=b.add(ins,P(prio),deps,int(P(earliest)) if earliest else base,name); o.nomp=prio; return o
    def adds(ins,prio,deps=(),name=None,earliest=0): return b.adds(ins,P(prio),deps,name,int(P(earliest)) if earliest else base)
    def need(key,k,o): b.need(pos[key]+k,o)
    rel=lambda o:o.nomp
    must_bar=list(ctx.get("must_bar",[]))
    scc=list(ctx.get("scc",[]))
    E={}
    for n in list(range(16))+[-1]:
        if n==15: continue
        if n==-1:
            if not cur: continue
            blk=vS(15); dep=ctx.get("c15",[]); t0=0
        else:
            if ("qk",n) not in G: continue
            blk=vS(n); dep=[G[("qk",n)][3]]; t0=nom[("qk",n)]+6
        for r in range(4):
            E[(n,r)]=add(vexp(blk+r),t0+2*r,dep,name=f"E{n}.{r}")
            if n>=0: E[(n,r)].prio=pos[("qk",n)]+6+2*r
    if cur:
        for f in range(8):
            qb=f%2; kp=f//2
            war=[G[k][kp] for k in (("pvo",qb,0),("pvo",qb,1),("one",qb)) if k in G]+ctx.get("pwar",{}).get(f,[])
            C=[]
            for h in range(2):
                n=s_block(f,h)
                en = -1 if n==15 else n
                for p2 in range(2):
                    deps=list(war)
                    if f==0 and h==0: t=1+p2; deps+=ctx.get("e14",[])
                    else:
                        deps+=[E[(en,2*p2)],E[(en,2*p2+1)]]; t=rel(E[(en,2*p2+1)])+1
                    c=add(vcvtp(vP(f)+2*h+p2,vS(n)+2*p2,vS(n)+2*p2+1),t,deps,name=f"C{f}.{2*h+p2}")
                    if not (f==0 and h==0): c.prio=E[(en,2*p2+1)].prio+1
                    C.append(c)
                    if ("eone",qb) in G: need(("eone",qb),kp,c)
                    nn=(n+8)%16
                    if ("qk",nn) in G and (n>=14 or n<8): need(("qk",nn),0,c)
            off=PB[par]+f*1024
            if str(f) in str(OPT.get("w32","")).replace("f",""):
                for x in range(4):
                    w=add(dsw32(vPw,vP(f)+x,off+4*x),rel(C[x])+1,[C[x]]+ctx.get("wdep",[]),name=f"W{f}.{x}"); must_bar.append(w)
            elif str(f) in str(OPT.get("w64","")).replace("f",""):
                for x in range(2):
                    w=add(dsw64(vPw,vP(f)+2*x,off+8*x),rel(C[2*x+1])+1,C[2*x:2*x+2]+ctx.get("wdep",[]),name=f"W{f}.{x}"); must_bar.append(w)
            else:
                w=add(dsw128(vPw,vP(f),off),rel(C[3])+1,C+ctx.get("wdep",[]),name=f"W{f}"); must_bar.append(w); w.prio=C[3].prio+1
        for n,ds_ in ctx.get("swar",{}).items():
            for o in ds_: need(("qk",n),0,o)
    if pv:
        for s,(j,qb) in enumerate(sets):
            for k in range(4):
                deps=[G[("pvx",s-2,1)][k]] if s>=2 else []
                t=nom[("pvx",s,0)]-14+k if s>=2 else s*4+k
                o=add(dsr128(vRing(s,k),vPr[j],PB[so]+(2*k+qb)*1024),t,deps,name=f"R{s}.{k}")
                need(("pvx",s,0),-1,o); must_bar.append(o)
        lw=add(dsw32(vLw,vLacc,so*512),nom[("one",1)]+8,[G[("one",1)][3]],name="LW"); must_bar.append(lw)
        if ("eone",0) in G:
            need(("eone",0),0,lw)
            must_bar.append(add(dsw32(vLw,vLacc,par*512),0,[G[("eone",1)][3]],name="eLW"))
    if nxt:
        a1=adds(salu(f"s_add_u32 s{sQrs}, s{sQrs}, {QSLOT}",S(sQrs),S(sQrs)+[SCC]),40,scc,name="qr+")
        a2=adds(salu(f"s_cmp_eq_u32 s{sQrs}, {QEND}",S(sQrs),[SCC]),41,[a1],name="qr?")
        a3=adds(salu(f"s_cselect_b32 s{sQrs}, {QBASE}, s{sQrs}",S(sQrs)+[SCC],S(sQrs)),42,[a2],name="qr=")
        scc=[a3]
        upd=add(valu(f"v_add_u32 v{vQrd}, s{sQrs}, v{vQrd0}",S(sQrs)+V(vQrd0),V(vQrd)),80,[a3]+ctx.get("rqprev",[]),name="qupd")
        for qb in range(2):
            lastn=11 if qb==0 else 13
            for ds in range(4):
                deps=[upd]+([G[("qk",lastn)][ds]] if ("qk",lastn) in G else [])+ctx.get("rqdep",[])
                o=add(dsr128(vQ(qb,ds),vQrd,qb*4160+ds*256),nom[("qk",lastn)]+1+ds,deps,name=f"RQ{qb}.{ds}")
                if qb==0: need(("qk",14),-1,o)
    if dodma:
        d1,b4=qdma_ops(b,P(ctx.get("dmaprio",50)),ctx.get("dmadep",[]),scc=scc); scc=[b4]
    if ep:
        e=epilogue_ops(b,lambda qb,db:vO(par,qb,db),par*512,P(-1),P(OPT.get("ept",24)),OPT.get("epdt",3.2)*scale,[],None,{},scc,sc=scale); scc=e["A"]
    if "late" in ctx: scc=ctx["late"](scc,must_bar)
    if loopctl:
        c1=adds(salu(f"s_sub_u32 s{sLoop}, s{sLoop}, 1",S(sLoop),S(sLoop)+[SCC]),128,scc,name="lp-",earliest=128)
        c2=adds(salu(f"s_cmp_lg_u32 s{sLoop}, 0",S(sLoop),[SCC]),129,[c1],name="lp?",earliest=129)
        b.tail=[I(f"s_cbranch_scc1 {loopctl}","branch",[SCC])]
    b.slots.discard(base+nb-1)
    if last_bar: b.barrier(base+nb-1-baroff,must_bar,keep_dma=2*(D-2),all_ds=1)

def iteration(i, par, cur, nxt, pv, ep, dodma, prefix, log=None, **kw):
    b=Bld(); iter_parts(b,i,par,cur,nxt,pv,ep,dodma,**kw); return b.run(prefix,log)

def drain(i,prefix,log):
    b=Bld(); so=(i-1)%2; par=i%2
    ring=[128,144,64,80,32,48]; last={}
    for qb in range(2):
        for j in range(4):
            s_=qb*3+j-1
            for db in range(2):
                d=vO(so,qb,db)
                g=[mfma(d,aV(j,kp,db),vP(2*kp+qb) if j==0 else ring[s_]+4*kp,None if (j==0 and kp==0) else d,name=f"PV{qb}{j}{db}.{kp}") for kp in range(4)]
                p=b.group(g); last[(qb,db)]=g[3]
                if j and db==0:
                    for k in range(4): b.need(p-1,b.add(dsr128(ring[s_]+4*k,vPr[j],PB[so]+(2*k+qb)*1024),s_*2+k/2,name=f"R{s_}.{k}"))
    e=epilogue_ops(b,lambda qb,db:vO(par,qb,db),par*512,-1,10,0.7,[],None,{},[],sc=0.5)
    epilogue_ops(b,lambda qb,db:vO(so,qb,db),so*512,20,34,0.7,[],last,e,e["A"],sc=0.3,tg="z")
    return b.run(prefix,log)

vOs=[80,112][:T-LAG-1]+[vO(T%2,0,0)]+[200,216,232][:LAG-1]+[vO(1-T%2,0,0)]
vLs=lambda t:248+t
sKo=64
sVm=72
vKA,vVA,vTB,vTD=255,0,192,15
def kdma_units(c):
    u=[]
    for pr in range(4):
        for n in range(2):
            d=dma(vQdma,sK,45,n*1024); d.tag=f"K{c}"
            u.append(([salu(f"s_add_u32 m0, s54, {(pr//2)*4160+(pr%2)*2080}",S(54),[M0,SCC]), salu(f"s_add_u32 s45, s44, {c*8192+pr*2048}",S(44),S(45)+[SCC])] if n==0 else [])+[d])
    return u
def qdma_units(t):
    d0=dma(vQdma,sQ,46,0); d1=dma(vQdma,sQ,46,1024); d0.tag=d1.tag=f"Q{t}"
    return [[salu(f"s_add_u32 m0, s{sWoff}, {(t%NQ)*QSLOT}",S(sWoff),[M0,SCC]),salu(f"s_mov_b32 s46, {t*8192}",[],S(46)),d0],[d1]]
def vdma_units(c):
    u=[]
    for hf in range(2):
        for n in range(4):
            d=dma(vVA,sV,sKo+2*c+hf,n*1024); d.tag=f"V{c}"
            u.append(([salu(f"s_mov_b32 m0, s{sVm+hf}",S(sVm+hf),[M0])] if n==0 else [])+[d])
    return u
flat=lambda u:[x for y in u for x in y]
STREAM=kdma_units(0)+qdma_units(0)+qdma_units(1)+qdma_units(2)+vdma_units(0)+flat([qdma_units(t) for t in range(3,T)])+kdma_units(1)
NPRO=OPT.get("npro",20)
def kread(c):
    o=[dsr128(aK(2*c+h,ds),vKA,h*4160+ds*256,file='a') for h in range(2) for ds in range(4)]
    for x in o: x.meta["tags"]={f"K{c}"}
    return o
aSC=lambda lo,half:aV(lo,3,half)
vKT=[192,196,vLrd]
def touch_ins(): return I(f"buffer_load_dword v253, v254, s[{sO}:{sO+3}], 0 offen nt","vld",V(254)+S(sO,4),V(253))
def ksops(c,j):
    a=aK(2*c+j//8,(j//2)%4)+2*(j%2); d=vKT[j%3]
    return [vcvt(d,d,d+1),vcvt(d+1,d+2,d+3)]+[vop(f"v_accvgpr_write_b32 a{a+x}, v{d+x}",V(d+x),A(a+x)) for x in range(2)]
def kscale(c,extra=None):
    o=[]
    for j in range(16):
        a=aK(2*c+j//8,(j//2)%4); d=vKT[j%3]; x=ksops(c,j-2) if j>=2 else [nop(2),None,nop(2),None]
        if j%2==0: o.append(waitslot())
        o+=[mfma(d,aSC(0,j%2),a,None,bfile='a',name="KSh")]+(extra(j) if extra else [])+x[:2]+[mfma(d,aSC(1,j%2),a,d,bfile='a',name="KSl")]+x[2:]
    return [i for i in o if i is not None]
def startup(prefix,log,off=0):
    b=Bld(); NS=4*T
    Sb=lambda n:64+(n%4)*4
    OWN=OPT.get("own",1) and T-LAG<=2
    Pw=lambda k,qb:96+((k%(4 if OWN else 2))*2+qb)*4
    ownk=lambda k:OWN and k<NS-OPT.get("ownskip",2)
    ent=lambda k,qb:PB[T%2 if (LAG>3 and 3*T<=k<NS-LAG) else 1-T%2]+((k%4)*2+qb)*1024
    assert LAG<=3 or all(k%4 for k in range(3*T,NS-LAG))
    pvstep=lambda k:k+(LAG0 if k<3*T else LAG)
    pvof={pvstep(k):k for k in range(NS)}
    QK={}; PV={}; ONE={}; start={}; end={}; posQ={}; posP={}; posO={}
    def pvg(k,qb,db):
        c,t=divmod(k,T); d=vOs[t]+qb*8+db*4
        return [mfma(d,aV(j,c,db),Pw(k,qb) if (ownk(k) and j==0) else vRing(2*k+qb,j),None if (c==0 and j==0) else d,name=f"PV{k}.{qb}{db}.{j}") for j in range(4)]
    def oneg(k): return [mfma(vLacc,vSEL[0],Pw(k,0),None,afile='v',name=f"ONE{k}.0"),mfma(vLacc,vSEL[1],Pw(k,1),vLacc,afile='v',name=f"ONE{k}.1")]
    for k in range(NS):
        c,t=divmod(k,T)
        start[k]=len(b.bb)
        for ch in range(4):
            kb=2*c+ch%2; qb=ch//2; n=4*k+ch
            QK[(k,ch)]=[mfma(Sb(n),aK(kb,ds),vQ(qb,ds),None if ds==0 else Sb(n),name=f"QK{k}.{ch}.{ds}") for ds in range(4)]
            posQ[(k,ch)]=b.group(QK[(k,ch)])
            if k in pvof:
                key=(pvof[k],ch//2,ch%2); PV[key]=pvg(*key); posP[key]=b.group(PV[key])
            if ch==2 and k>=1: ONE[k-1]=oneg(k-1); posO[k-1]=b.group(ONE[k-1])
        if k==NS-1:
            for n in(14,15):
                f,h,kb,qb=chain_info(n)
                QK[("pre",n)]=[mfma(vS(n),aK(kb,ds),vQ(qb,ds),None if ds==0 else vS(n),name=f"QKp{n}.{ds}") for ds in range(4)]
                posQ[("pre",n)]=b.group(QK[("pre",n)])
        end[k]=len(b.bb)-1
    cus={}
    x=0
    for k in range(NS-LAG,NS):
        for qb in range(2):
            for db in range(2):
                PV[(k,qb,db)]=pvg(k,qb,db); cus[x]=("pv",(k,qb,db)); x+=1
                if x==3: ONE[NS-1]=oneg(NS-1); cus[x]=("one",NS-1); x+=1
    nskip=18-len(cus); hi=OPT.get("skiphi",14)
    skip=set(hi-2*j for j in range(nskip)); slots_=[y for y in range(18) if y not in skip]
    cus={slots_[y]:v for y,v in cus.items()}
    def Ncustom(x):
        if x not in cus: return None
        return PV[cus[x][1]] if cus[x][0]=="pv" else ONE[cus[x][1]]
    def placed(x,p):
        (posP if cus[x][0]=="pv" else posO)[cus[x][1]]=p
    BAR={}; W={}; C={}; LA={}; LW={}; RQ={}; TR={}; E={}
    bdeps={k:[] for k in range(NS)}; btags={k:set() for k in range(NS)}; bneed={k:[] for k in range(NS)}
    for k in range(NS): BAR[k]=b.barrier(end[k]-off,[],tags=btags[k],need=set())
    def bneeds(k,o): BAR[k].deps.append(o); BAR[k].ins.meta["need"].add(id(o.ins))
    for k in range(1,NS): BAR[k].deps.append(BAR[k-1])
    state={"scc":[],"dma":[],"ep":{}}
    def softmax(k):
        c,t=divmod(k,T)
        for ch in range(4):
            n=4*k+ch; qb=ch//2; h=ch%2
            for r in range(4): E[(k,ch,r)]=b.add(vexp(Sb(n)+r),posQ[(k,ch)]+6+2*r,[QK[(k,ch)][3]],name=f"E{k}.{ch}.{r}")
            for p2 in range(2):
                deps=[E[(k,ch,2*p2)],E[(k,ch,2*p2+1)]]
                if OWN:
                    if k>=4: deps+=[ONE[k-4][qb],W[(k-4,qb)],PV[(k-4,qb,0)][0],PV[(k-4,qb,1)][0]]
                elif k>=2: deps+=[ONE[k-2][qb],W[(k-2,qb)]]
                o=b.add(vcvtp(Pw(k,qb)+2*h+p2,Sb(n)+2*p2,Sb(n)+2*p2+1),E[(k,ch,2*p2+1)].prio+1,deps,name=f"C{k}.{ch}.{p2}")
                C[(k,ch,p2)]=o
                if k+1<NS: b.need(posQ[(k+1,ch)],o)
            if h==1:
                W[(k,qb)]=b.add(dsw128(vPw,Pw(k,qb),ent(k,qb)),C[(k,ch,1)].prio+1,[C[(k,cc,pp)] for cc in(ch-1,ch) for pp in range(2)]+([BAR[pvstep(k-4)]] if (k>=4 and pvstep(k-4)<k and ent(k,0)==ent(k-4,0)) else [])+([BAR[k-3]] if k>NS-LAG else []),name=f"W{k}.{qb}")
                if k+1<NS: bneeds(k+1,W[(k,qb)])
    for k in range(NS): softmax(k)
    def one_ops(k):
        c,t=divmod(k,T)
        for cc in range(4):
            for pp in range(2): b.need(posO[k],C[(k,cc,pp)])
        if k>=1: b.need(posO[k],LA[k-1])
        ins=valu(f"v_mov_b32 v{vLs(t)}, v{vLacc}",V(vLacc),V(vLs(t))) if c==0 else v2("v_add_f32",vLs(t),vLs(t),vLacc)
        LA[k]=b.add(ins,posO[k]+6,[ONE[k][1]],name=f"LA{k}")
        if c==3:
            LW[t]=b.add(dsw32(vLw,vLs(t),((T-1)%2)*512 if t==T-1 else 1024+t*512),posO[k]+8,[LA[k]],name=f"LW{t}")
            if k+1<NS: bneeds(k+1,LW[t])
    for k in range(NS-1): one_ops(k)
    def preads(k):
        for qb in range(2):
            for j in range(1 if ownk(k) else 0,4):
                deps=[BAR[k+1]]+([PV[(k-1,qb,1)][j]] if k>=1 else [])
                o=b.add(dsr128(vRing(2*k+qb,j),vPw if j==0 else vPr[j],ent(k,qb)),posP[(k,qb,0)]-OPT.get('rlead',12)+j,deps,name=f"R{k}.{qb}.{j}")
                b.need(posP[(k,qb,0)]-1,o); state.setdefault("R",[]).append(o)
    for k in range(NS-LAG): preads(k)
    for k in range(NS+1):
        t=k%T if k<NS else T%NQ
        for qb in range(2):
            for ds in range(4):
                deps=[QK[(k-1,2*qb+1)][ds]] if k>=1 else []
                if 2<=k<T: deps.append(BAR[k-2]); btags[k-2].add(f"Q{k}")
                if k==NS: deps.append(BAR[NS-2]); btags[NS-2].add(f"Q{T}")
                pr=(posQ[(k-1,2*qb+1)]+1+ds) if k>=1 else 14+4*qb+ds
                o=b.add(dsr128(vQ(qb,ds),vQrd,t*QSLOT+qb*4160+ds*256),pr,deps,name=f"RQ{k}.{qb}.{ds}"); RQ[(k,qb,ds)]=o
                if k<NS: b.need(posQ[(k,2*qb)]-1,o)
                elif qb==0: b.need(posQ[("pre",14)]-1,o)
    btags[NS-1].add(f"Q{T+1}")
    state["chain"]=[]; hard={0,1}
    def issue(units,where,deps,nm):
        for u,(k,fr) in zip(units,where):
            tt=int(start[k]+fr*(end[k]-start[k])); prev=list(deps)+state["chain"]+state["scc"]
            nd=[x.kind for x in u].index("dma")
            for x,ins in enumerate(u):
                if ins.kind=="salu": o=b.adds(ins,tt+x-nd-3,prev,name="s"+nm,earliest=tt+x-nd-3 if x<nd else 0)
                else: o=b.add(ins,tt,prev,earliest=tt,name=nm); ins.cost=OPT.get("sdmac",8)
                prev=[o]
            state["chain"]=prev; state["scc"]=prev
            if k in hard: BAR[k].deps.append(prev[0])
    def spread(n,k0,per):
        w=[]; k=k0
        while len(w)<n:
            m=min(per,n-len(w)); w+=[(k,(x+0.5)/per) for x in range(m)]; k+=1
        return w
    kchain=[]
    def extra(j):
        o=flat(STREAM[12+(NPRO-12)*j//16:12+(NPRO-12)*(j+1)//16])
        if j==9: o+=[waitslot(),bar(tags={"Q0","Q1"},need=set())]
        if 10<=j<14: o+=[RQ[(0,(j-10)//2,2*(j%2)+x)].ins for x in range(2)]
        return o
    for qb in range(2):
        for ds in range(4): o=RQ[(0,qb,ds)]; b.ops.remove(o); o.done=True; o.gap=-1
    ks0=b.add([waitslot()]+kread(0)+kscale(0,extra)+[waitslot()],0,[],name="KS0"); b.need(0,ks0)
    rest=STREAM[NPRO:]
    n0=OPT.get("n0",4); n1=OPT.get("n1",10)
    w=[(0,(x+0.5)/n0) for x in range(n0)]+[(1,OPT.get('f1',30)/100+0.5*x/n1) for x in range(n1)]
    w=w[:len(rest)]; w+=spread(len(rest)-len(w),2,2)
    issue(rest,w,[ks0],"D")
    lastk=w[-1][0]
    for c in range(4):
        s1=pvstep(c*T)-1
        btags[s1-1].add(f"V{c}")
        p0=start[c*T]
        if c==0: ks=ks0
        else:
            kr=[b.add(ins,p0-14+x,kchain,earliest=p0-16,name=f"KR{c}") for x,ins in enumerate(kread(c))]
            ks=b.add(kscale(c),p0,kr+state["TR"],name=f"KS{c}"); b.need(p0,ks)
        aw=[]
        for j in(14,15):
            x=ksops(c,j); prev=[ks]
            for n,ins in enumerate(x): o=b.add(ins,p0-8+j-14+n*0.1,prev,name="Kx"); prev=[o]; aw.append(o); b.need(posQ[(c*T,1)],o)
        state["KS"]=aw
        if OPT.get("touch") and OPT.get("tpos")==c: state["chain"]=[b.add(touch_ins(),p0,[ks]+state["chain"],name="TOUCH")]
        if 1<=c<3: issue(kdma_units(c+1),spread(8,c*T,OPT.get("kper",6)),[ks],f"KD{c+1}")
        kchain=state["chain"]
        state["TR"]=[]
        for j in range(4):
            r=vPw if j==0 else vPr[j]
            tb=b.add(v2("v_add_u32",vTB+j,vTD,r),start[s1-1]+j,state.get("KS",[]),earliest=start[s1-1],name="TB")
            for db in range(2):
                for hf in range(2):
                    a=aV(j,c,db)+2*hf
                    o=b.add(I(f"ds_read_b64_tr_b16 a[{a}:{a+1}], v{vTB+j} offset:{hf*4096+8*db}","dsr",V(vTB+j),A(a,2)),start[s1]+j*4+db*2+hf,[BAR[s1-1],tb],name=f"TR{c}")
                    b.need(posP[(c*T,0,0)]-1,o); bneeds(s1,o); state["TR"].append(o)
        if c<3: issue(vdma_units(c+1),(spread(8,max(s1+1,lastk,OPT.get("v1",0)),OPT.get("v1per",6)) if c==0 else spread(8,s1+1,OPT.get("vper",6))),[BAR[s1]],f"VD{c+1}")
    state["ep"]={"L":state["KS"],"S":state["TR"]}
    for x in range(D):
        t=T+x; k=min(max(3*T+1+t-NQ,3*T-1+x),NS-1)
        issue(qdma_units(t),[(k,0.25),(k,0.6)],[BAR[3*T+t-NQ]] if t>=NQ else [],"QD")
    chain=state["chain"]
    def ep(t,t0,tm,dt,scc):
        k=3*T+t
        od={(qb,db):PV[(k,qb,db)][3] for qb in range(2) for db in range(2)}
        e=epilogue_ops(b,lambda qb,db:vOs[t]+qb*8+db*4,1024+t*512,t0,tm,dt,[BAR[k+1]],od,state["ep"],scc,sc=0.5,tg=f"t{t}")
        state["ep"]=e; return e
    eps={}; BARX=[]
    for t in range(T-LAG-1+0):
        k=3*T+t+LAG
        eps[t]=ep(t,start[k]+8,start[k]+20,1.3,state["scc"]); state["scc"]=eps[t]["A"]
    if T-LAG>=2:
        for o in eps[0]["M"]+eps[0]["S"]: b.need(posQ[("pre",14)],o)
    e14=[b.add(vexp(vS(14)+r),posQ[("pre",14)]+6+2*r,[QK[("pre",14)][3]],name=f"Ep{r}") for r in range(4)]
    def late(scc,must_bar):
        BAR[NS]=b.barrier(end[NS-1]+1+OPT.get("barx",23)+3-off,[BAR[NS-1]],keep=True,need=set())
        for qb in range(2): bneeds(NS,W[(NS-1,qb)])
        BARX.append(BAR[NS])
        state["R"]=[]
        for k in range(NS-LAG,NS): preads(k)
        must_bar+=state["R"]
        one_ops(NS-1); must_bar.append(LW[T-1])
        for t in range(T-LAG-1,T-1):
            k=3*T+t
            p=posP[(k,0,0)] if k>=NS-LAG else end[NS-1]-8
            eps[t]=ep(t,p-6,p+10,1.2,scc); scc=eps[t]["A"]
        return scc
    last=NS-1
    ctx=dict(dmaprio=5,placed=placed,late=late,scc=state["scc"],c15=[QK[("pre",15)][3]],e14=e14,dmadep=chain+[BAR[last]],
             must_bar=[W[(last,0)],W[(last,1)]],wdep=[BAR[last]],rqdep=[BAR[last]],rqprev=[RQ[(NS,qb,ds)] for qb in range(2) for ds in range(4)],
             pwar={f:[ONE[NS-4+f//2][f%2],W[(NS-4+f//2,f%2)]]+([PV[(NS-4+f//2,f%2,0)][0],PV[(NS-4+f//2,f%2,1)][0]] if ownk(NS-4+f//2) else []) for f in range(8)} if OWN else
                  {0:[ONE[last-1][0],W[(last-1,0)]],1:[ONE[last-1][1],W[(last-1,1)]],2:[ONE[last][0],W[(last,0)]],3:[ONE[last][1],W[(last,1)]],
                   **({f:eps[1]["M"]+eps[1]["S"] for f in range(4,8)} if T-LAG>=3 else {})},
             swar={n:[C[(last,n,pp)] for pp in range(2)] for n in range(4)})
    iter_parts(b,T,T%2,1,1,0,0,1,Ncustom=Ncustom,ctx=ctx,baroff=off)
    b.sops[-1].deps.append(BAR[NS])
    for ds in range(4): b.need(end[last]+1+8-1,RQ[(NS,1,ds)])
    res=b.run(prefix,log,overdue=OPT.get("od",3))
    if OPT["stamp"]==2 and not OPT.get("ps"):
        p0=OPT.get('p0'); pts=[2,3,6,9,13,16,20,23,27] if p0 is None else list(range(p0,p0+9)); o=[]
        for x in res:
            o.append(x)
            for n,k in enumerate(pts):
                if x is BAR[k].ins: o.append(raw(f"{'s_memtime' if OPT.get('cyc') else 's_memrealtime'} s[{78+2*n}:{79+2*n}]"))
        res=o
        if OPT.get("fine"):
            o=[]; on=False; n=0; x_=0
            for x in res:
                if x.kind=="raw" and x.text.startswith("s_mem"): continue
                o.append(x)
                if x is BAR[NS-1].ins: on=True; o.append(raw("s_memtime s[78:79]")); n=1
                if on and x.kind=="mfma":
                    x_+=1
                    if x_%OPT["fine"]==0 and n<9: o.append(raw(f"s_memtime s[{78+2*n}:{79+2*n}]")); n+=1
            res=o
    if "spinbar" in OPT:
        n=[n for n,x in enumerate(res) if x is BAR[OPT["spinbar"]].ins][0]
        res=res[:n+1]+stamp(1)+res[n+1:]
    if "spinfrom" in OPT:
        n=[n for n,x in enumerate(res) if x is BAR[OPT["spinfrom"]].ins][0]
        res=res[:n+1]+stamp(0)+res[n+1:]
    if OPT.get("seg"):
        idx=[n for n,x in enumerate(res) if x.kind=="bar"]
        print("step est:",[estimate(res[a:z]) for a,z in zip(idx,idx[1:])],file=sys.stderr)
    return res

class Seq:
    def __init__(s,prefix=()): s.o=list(prefix); s.n0=len(s.o)
    def __call__(s,*ins,slot=True):
        for i in ins:
            if slot and i.kind not in("label","comment","salu","wait","branch","raw","nop"): s.o.append(waitslot())
            k=hazard_need(s.o,i)
            if k>0: s.o.append(nop(k))
            s.o.append(i)
    def out(s): return s.o[s.n0:]

def vop(t,rd,wr): return valu(t,rd,wr)
def prologue():
    q=Seq()
    q(salu("s_cmp_ge_u32 s2, 256",S(2),[SCC]), I("s_cbranch_scc1 L_end","branch",[SCC]))
    if OPT["stamp"]: q(raw("s_memtime s[60:61]"),raw("s_memrealtime s[62:63]"),raw(f"s_load_dwordx2 s[{sDbg}:{sDbg+1}], s[0:1], 32"))
    q(raw("s_load_dwordx4 s[36:39], s[0:1], 0"), raw("s_load_dwordx4 s[40:43], s[0:1], 16"))
    L,Q_,G_,T1,T2,T3=200,201,202,203,204,205
    if OPT.get("warm",2):
        q(raw("s_getpc_b64 s[56:57]"), label("L_pc"), raw("s_and_b32 s57, s57, 0xffff"), raw("s_mov_b32 s58, L_end-L_pc"), raw("s_mov_b32 s59, 0x20000"))
        q(vop(f"v_lshlrev_b32 v{T2}, 7, v0",V(0),V(T2)))
    def warm(ks):
        for k in ks:
            q(raw(f"s_mov_b32 s55, {k*32768}"))
            q(I(f"buffer_load_dword v{240+k}, v{T2}, s[56:59], s55 offen","vld",V(T2),V(240+k)),slot=False)
    nw=OPT.get("warm",2); we=OPT.get("wearly",1)
    warm(range(min(we,nw)))
    q(vop(f"v_and_b32 v{L}, 63, v0",V(0),V(L)), vop(f"v_lshrrev_b32 v{T1}, 6, v0",V(0),V(T1)))
    q(I(f"v_readfirstlane_b32 s{sW}, v{T1}","valu",V(T1),S(sW),meta={"rfl":1}))
    q(vop(f"v_and_b32 v{Q_}, 15, v{L}",V(L),V(Q_)), vop(f"v_lshrrev_b32 v{G_}, 4, v{L}",V(L),V(G_)))
    R_,C_=208,209
    q(vop(f"v_bfe_u32 v{R_}, v{L}, 2, 2",V(L),V(R_)), vop(f"v_and_b32 v{C_}, 3, v{L}",V(L),V(C_)))
    q(salu(f"s_mul_i32 s3, s2, {QBYTES}",S(2),S(3)), salu("s_lshl_b32 s31, s2, 17",S(2),S(31)))
    q(salu(f"s_lshl_b32 s46, s{sW}, 11",S(sW),S(46)), salu(f"s_lshl_b32 s{sKo}, s{sW}, 15",S(sW),S(sKo)))
    q(vop(f"v_lshlrev_b32 v{vQdma}, 8, v{R_}",V(R_),V(vQdma)), vop(f"v_lshl_add_u32 v{vQdma}, v{G_}, 6, v{vQdma}",V(G_)+V(vQdma),V(vQdma)),
      vop(f"v_lshl_add_u32 v{vQdma}, v{C_}, 4, v{vQdma}",V(C_)+V(vQdma),V(vQdma)), vop(f"v_add_u32 v{vQdma}, s46, v{vQdma}",S(46)+V(vQdma),V(vQdma)))
    q(salu(f"s_mul_i32 s47, s{sW}, 2080",S(sW),S(47)), salu(f"s_add_u32 s{sWoff}, s47, {QBASE}",S(47),S(sWoff)))
    q(salu(f"s_sub_u32 s44, s{sKo}, s46",S(sKo)+S(46),S(44)), salu(f"s_mul_i32 s54, s{sW}, {QSLOT}",S(sW),S(54)), salu(f"s_add_u32 s54, s54, {KBASE}",S(54),S(54)))
    for srd,nb in((sQ,QBYTES),(sK,KBYTES),(sV,KBYTES),(sO,QBYTES)):
        q(salu(f"s_mov_b32 s{srd+2}, {nb}",[],S(srd+2)), salu(f"s_mov_b32 s{srd+3}, 0x20000",[],S(srd+3)))
    q(raw("s_waitcnt lgkmcnt(0)"))
    def base(srd,src,off):
        q(salu(f"s_add_u32 s{srd}, s{src}, s{off}",S(src)+S(off),S(srd)), salu(f"s_addc_u32 s{srd+1}, s{src+1}, 0",S(src+1),S(srd+1)),
          salu(f"s_and_b32 s{srd+1}, s{srd+1}, 0xffff",S(srd+1),S(srd+1)))
    ps=lambda n:[raw(f"s_memrealtime s[{78+2*n}:{79+2*n}]")] if OPT.get("ps") else []
    base(sK,38,31); q(*ps(0),*flat(STREAM[:8]),*ps(1),slot=False)
    base(sQ,36,3); q(*flat(STREAM[8:12]),slot=False)
    warm(range(min(we,nw),nw))
    base(sV,40,31); base(sO,42,3)
    if OPT.get("touch"):
        q(vop(f"v_lshlrev_b32 v{T2}, {OPT.get('tsh',12)}, v0",V(0),V(T2)))
        q(vop(f"v_mov_b32 v254, v{T2}",V(T2),V(254)))
        if not OPT.get("tpos"): q(touch_ins(),slot=False)
    for n in range(1,8): q(salu(f"s_add_u32 s{sKo+n}, s{sKo}, {n*4096}",S(sKo),S(sKo+n)))
    q(salu(f"s_add_u32 s{sT}, s47, {QEND}",S(47),S(sT)), salu(f"s_add_u32 s{sQm0}, s{sWoff}, {((T+D)%NQ)*QSLOT}",S(sWoff),S(sQm0)), salu(f"s_mov_b32 s{sQso}, {(T+D)*8192}",[],S(sQso)))
    q(vop(f"v_lshlrev_b32 v{T1}, 2, v{G_}",V(G_),V(T1)), vop(f"v_xor_b32 v{T1}, v{T1}, v{Q_}",V(T1)+V(Q_),V(T1)),
      vop(f"v_lshlrev_b32 v{T1}, 4, v{T1}",V(T1),V(T1)), vop(f"v_lshl_add_u32 v{vVA}, v{G_}, 8, v{T1}",V(G_)+V(T1),V(vVA)))
    q(salu(f"s_lshl_b32 s48, s{sW}, 13",S(sW),S(48)), salu(f"s_add_u32 s{sVm}, s48, {VBASE}",S(48),S(sVm)), salu(f"s_add_u32 s{sVm+1}, s48, {VBASE+4096}",S(48),S(sVm+1)))
    q(*ps(2))
    q(vop(f"v_lshrrev_b32 v{T1}, 2, v{Q_}",V(Q_),V(T1)), vop(f"v_lshlrev_b32 v{vQrd0}, 10, v{T1}",V(T1),V(vQrd0)),
      vop(f"v_lshrrev_b32 v{T1}, 3, v{Q_}",V(Q_),V(T1)), vop(f"v_lshl_add_u32 v{vQrd0}, v{T1}, 5, v{vQrd0}",V(T1)+V(vQrd0),V(vQrd0)),
      vop(f"v_lshl_add_u32 v{vQrd0}, v{C_}, 6, v{vQrd0}",V(C_)+V(vQrd0),V(vQrd0)), vop(f"v_lshl_add_u32 v{vQrd0}, v{G_}, 4, v{vQrd0}",V(G_)+V(vQrd0),V(vQrd0)))
    q(salu(f"s_mov_b32 s{sQrs}, {QBASE+(T%NQ)*QSLOT}",[],S(sQrs))); q(vop(f"v_add_u32 v{vQrd}, {QBASE}, v{vQrd0}",V(vQrd0),V(vQrd)))
    for j in range(4):
        q(salu(f"s_add_u32 s49, s{sW}, {j}",S(sW),S(49)), salu("s_and_b32 s49, s49, 3",S(49),S(49)), salu(f"s_lshl_b32 s{50+j}, s49, 13",S(49),S(50+j)))
        r=vPw if j==0 else vPr[j]
        q(vop(f"v_lshl_add_u32 v{r}, v{L}, 4, s{50+j}",V(L)+S(50+j),V(r)))
    q(salu(f"s_lshl_b32 s49, s{sW}, 6",S(sW),S(49)))
    q(vop(f"v_lshlrev_b32 v{vOst}, 8, v{Q_}",V(Q_),V(vOst)), vop(f"v_lshl_add_u32 v{vOst}, v{G_}, 4, v{vOst}",V(G_)+V(vOst),V(vOst)), vop(f"v_add_u32 v{vOst}, s49, v{vOst}",S(49)+V(vOst),V(vOst)))
    q(vop(f"v_lshrrev_b32 v{T1}, 1, v{G_}",V(G_),V(T1)), vop(f"v_lshl_add_u32 v{T1}, v{T1}, 4, v{Q_}",V(T1)+V(Q_),V(T1)),
      vop(f"v_lshlrev_b32 v{T1}, 4, v{T1}",V(T1),V(T1)), vop(f"v_add_u32 v{vLr}, {LBASE}, v{T1}",V(T1),V(vLr)))
    q(salu(f"s_lshl_b32 s49, s{sW}, 2",S(sW),S(49))); q(vop(f"v_add_u32 v{vLw}, s49, v{vLr}",S(49)+V(vLr),V(vLw)))
    q(vop(f"v_mov_b32 v{vLmax}, 0",[],V(vLmax)))
    q(vop(f"v_mov_b32 v{T1}, 0x3f803f80",[],V(T1)), valu(f"v_cmp_gt_u32 vcc, 8, v{Q_}",V(Q_),[VCC]))
    for r in range(4):
        q(valu(f"v_cndmask_b32 v{vSEL[0]+r}, 0, v{T1}, vcc",V(T1)+[VCC],V(vSEL[0]+r)))
        q(vop(f"v_xor_b32 v{vSEL[1]+r}, v{T1}, v{vSEL[0]+r}",V(T1)+V(vSEL[0]+r),V(vSEL[1]+r)))
    if OPT.get("trunc"): q(salu("s_mov_b32 s74, 0x07060302",[],S(74)))
    q(salu(f"s_mov_b32 s{sO0}, 0",[],S(sO0)), salu(f"s_mov_b32 s{sO1}, 4096",[],S(sO1)))
    q(vop(f"v_lshlrev_b32 v{T1}, 2, v{R_}",V(R_),V(T1)), vop(f"v_add_u32 v{T2}, s49, v{C_}",S(49)+V(C_),V(T2)), vop(f"v_xor_b32 v{T2}, v{T2}, v{T1}",V(T1)+V(T2),V(T2)),
      vop(f"v_lshl_add_u32 v{T3}, v{G_}, 2, v{R_}",V(G_)+V(R_),V(T3)), vop(f"v_lshlrev_b32 v{T3}, 8, v{T3}",V(T3),V(T3)), vop(f"v_lshl_add_u32 v{T3}, v{T2}, 4, v{T3}",V(T2)+V(T3),V(T3)),
      vop(f"v_lshlrev_b32 v{T1}, 4, v{L}",V(L),V(T1)), v2("v_sub_u32",T3,T3,T1), vop(f"v_add_u32 v{vTD}, {VBASE}, v{T3}",V(T3),V(vTD)))
    q(vop(f"v_add_u32 v{vKA}, s54, v{vQrd0}",S(54)+V(vQrd0),V(vKA)))
    q(vop(f"v_lshrrev_b32 v{T1}, 2, v{Q_}",V(Q_),V(T1)), valu(f"v_cmp_eq_u32 vcc, v{T1}, v{G_}",V(T1)+V(G_),[VCC]),
      vop(f"v_and_b32 v{T1}, 1, v{L}",V(L),V(T1)), vop(f"v_lshlrev_b32 v{T1}, 4, v{T1}",V(T1),V(T1)),
      vop(f"v_and_b32 v{T2}, 2, v{L}",V(L),V(T2)), valu(f"v_cmp_eq_u32 s[50:51], 0, v{T2}",V(T2),S(50,2)))
    for lo,cb in enumerate((CHI,CLO)):
        q(vop(f"v_mov_b32 v{T2}, {cb:#x}",[],V(T2)), v2("v_lshlrev_b32",T2,T1,T2), valu(f"v_cndmask_b32 v{T2}, 0, v{T2}, vcc",V(T2)+[VCC],V(T2)),
          valu(f"v_cndmask_b32 v{T3}, 0, v{T2}, s[50:51]",V(T2)+S(50,2),V(T3)), v2("v_xor_b32",T2,T2,T3))
        for half in range(2):
            a=aSC(lo,half)
            q(vop(f"v_accvgpr_write_b32 a{a+2*half}, v{T3}",V(T3),A(a+2*half)), vop(f"v_accvgpr_write_b32 a{a+2*half+1}, v{T2}",V(T2),A(a+2*half+1)),
              vop(f"v_accvgpr_write_b32 a{a+2-2*half}, 0",[],A(a+2-2*half)), vop(f"v_accvgpr_write_b32 a{a+3-2*half}, 0",[],A(a+3-2*half)))
    q(*ps(3))
    return q.out()

def fallback():
    q=Seq()
    q(label("L_fallback"), wait(vm=0,lg=0), bar())
    q(salu(f"s_mov_b32 s{sQso}, 0",[],S(sQso)), salu(f"s_mov_b32 s{sO0}, 0",[],S(sO0)), salu(f"s_mov_b32 s{sO1}, 4096",[],S(sO1)), salu(f"s_mov_b32 s{sLoop}, {NT}",[],S(sLoop)))
    q(vop(f"v_add_u32 v{vQrd}, {QBASE}, v{vQrd0}",V(vQrd0),V(vQrd)))
    MW,MR,T=216,217,218
    q(vop(f"v_mbcnt_lo_u32_b32 v{T}, -1, 0",[],V(T)), vop(f"v_mbcnt_hi_u32_b32 v{T}, -1, v{T}",V(T),V(T)),
      vop(f"v_and_b32 v{MR}, 15, v{T}",V(T),V(MR)), vop(f"v_lshlrev_b32 v{MR}, 6, v{MR}",V(MR),V(MR)), vop(f"v_add_u32 v{MR}, {MBASE}, v{MR}",V(MR),V(MR)),
      vop(f"v_lshrrev_b32 v{T}, 4, v{T}",V(T),V(T)), vop(f"v_lshl_add_u32 v{MW}, v{T}, 2, v{MR}",V(T)+V(MR),V(MW)))
    q(salu(f"s_lshl_b32 s49, s{sW}, 4",S(sW),S(49))); q(vop(f"v_add_u32 v{MW}, s49, v{MW}",S(49)+V(MW),V(MW)))
    q(label("L_fb_loop"))
    q(salu(f"s_mov_b32 m0, s{sWoff}",S(sWoff),[M0])); q(dma(vQdma,sQ,sQso,0),dma(vQdma,sQ,sQso,1024)); q(wait(vm=0),bar())
    for qb in range(2):
        for ds in range(4): q(dsr128(vQ(qb,ds),vQrd,qb*4160+ds*256))
    Sb=lambda kb,qb:64+(kb*2+qb)*4
    Pf=lambda f:128+f*4
    for kb in range(8):
        for qb in range(2):
            for ds in range(4): q(mfma(Sb(kb,qb),aK(kb,ds),vQ(qb,ds),None if ds==0 else Sb(kb,qb)))
    Mx=[220,221]; RD=224
    for qb in range(2):
        q(v2("v_max_f32",Mx[qb],Sb(0,qb),Sb(0,qb)+1))
        regs=[Sb(kb,qb)+r for kb in range(8) for r in range(4)][2:]
        for x in range(0,30,2): q(vop(f"v_max3_f32 v{Mx[qb]}, v{Mx[qb]}, v{regs[x]}, v{regs[x+1]}",V(Mx[qb])+V(regs[x])+V(regs[x+1]),V(Mx[qb])))
        q(dsw32(MW,Mx[qb],qb*1024))
    q(bar())
    for qb in range(2):
        for x in range(4): q(dsr128(RD+4*x,MR,qb*1024+16*x))
        q(v2("v_max_f32",Mx[qb],RD,RD+1))
        for x in range(2,16,2): q(vop(f"v_max3_f32 v{Mx[qb]}, v{Mx[qb]}, v{RD+x}, v{RD+x+1}",V(Mx[qb])+V(RD+x)+V(RD+x+1),V(Mx[qb])))
    for kb in range(8):
        for qb in range(2):
            for r in range(4): q(v2("v_sub_f32",Sb(kb,qb)+r,Sb(kb,qb)+r,Mx[qb]),slot=False)
            for r in range(4): q(vexp(Sb(kb,qb)+r),slot=False)
            for p2 in range(2): q(vcvt(Pf(2*(kb//2)+qb)+2*(kb%2)+p2,Sb(kb,qb)+2*p2,Sb(kb,qb)+2*p2+1),slot=False)
    for f in range(8): q(dsw128(vPw,Pf(f),f*1024))
    for qb in range(2):
        for kp in range(4): q(mfma(vLacc,vSEL[qb],Pf(2*kp+qb),None if (kp==0 and qb==0) else vLacc,afile='v'))
    q(dsw32(vLw,vLacc,0)); q(bar())
    for qb in range(2):
        for db in range(2):
            for kp in range(4): q(mfma(vO(0,qb,db),aV(0,kp,db),Pf(2*kp+qb),None if kp==0 else vO(0,qb,db)))
    for j in range(1,4):
        for qb in range(2):
            for k in range(4): q(dsr128(RD+4*k,vPr[j],(2*k+qb)*1024))
            for db in range(2):
                for kp in range(4): q(mfma(vO(0,qb,db),aV(j,kp,db),RD+4*kp,vO(0,qb,db)))
    q(dsr128(vLrd,vLr,0)); q(v2("v_add_f32",vLrd,vLrd,vLrd+1),v2("v_add_f32",vLrd+2,vLrd+2,vLrd+3),v2("v_add_f32",vLrd,vLrd,vLrd+2))
    q(valu(f"v_rcp_f32 v{vR0}, v{vLrd}",V(vLrd),V(vR0),"trans"), vop(f"v_mov_b32 v{vR1}, v{vR0}",V(vR0),V(vR1)),
      valu(f"v_permlane32_swap_b32 v{vR0}, v{vR1}",V(vR0)+V(vR1),V(vR0)+V(vR1),"perm"))
    for qb in range(2):
        for db in range(2):
            for p2 in range(2):
                r=vO(0,qb,db)+2*p2; R=vR0 if qb==0 else vR1
                q(v2("v_mul_f32",r,r,R),v2("v_mul_f32",r+1,r+1,R),vcvt(vOut(qb)+2*db+p2,r,r+1))
        q(vst(vOut(qb),vOst,sO,sO0 if qb==0 else sO1))
    q(salu(f"s_add_u32 s{sO0}, s{sO0}, 8192",S(sO0),S(sO0)), salu(f"s_add_u32 s{sO1}, s{sO1}, 8192",S(sO1),S(sO1)), salu(f"s_add_u32 s{sQso}, s{sQso}, 8192",S(sQso),S(sQso)))
    q(wait(vm=0,lg=0),bar())
    q(salu(f"s_sub_u32 s{sLoop}, s{sLoop}, 1",S(sLoop),S(sLoop)), salu(f"s_cmp_lg_u32 s{sLoop}, 0",S(sLoop),[SCC]), I("s_cbranch_scc1 L_fb_loop","branch",[SCC]))
    return q.out()

def stamp(n):
    if OPT["stamp"]==2: return [raw(f"s_memrealtime s[{76+2*n}:{77+2*n}]")] if n in(0,) else ([raw("s_memrealtime s[98:99]")] if n==1 else [])
    return [raw(f"s_memtime s[{76+4*n}:{77+4*n}]"),raw(f"s_memrealtime s[{78+4*n}:{79+4*n}]")] if OPT["stamp"] else []

def build():
    logs={}
    pro=prologue()+stamp(0)
    def it(i,par,cur,nxt,pv,ep,prefix,**kw):
        lg=[]; r=iteration(i,par,cur,nxt,pv,ep,(i+D<NT) or kw.get("force_dma"),prefix,log=lg,**{k:v for k,v in kw.items() if k!="force_dma"}); logs[i]=lg; return [comment(f"---- iteration {i}")]+r
    U=OPT.get("U",2); nst=40-(T+1); trips=nst//U; rem=nst-trips*U
    stag=OPT.get("stag",0); ncopy=OPT.get("ncopy",4) if stag else 1
    sst=OPT.get("sstag",0)
    disp=[]
    for cp in range(ncopy-1,0,-1):
        disp+=[salu(f"s_cmp_ge_u32 s{sW}, {cp*(4//ncopy)}",S(sW),[SCC]), I(f"s_cbranch_scc1 L_copy{cp}","branch",[SCC])]
    def mk0(off):
        lg=[]; r=[comment("---- start-up steps + merged iteration")]+startup(pro,lg,off); logs[0]=lg
        return r+[salu(f"s_mov_b32 s{sLoop}, {trips}",[],S(sLoop))]+([] if "spinbar" in OPT else stamp(1))
    def mkend(prev,off):
        r=[]
        for u in range(rem):
            x=it(40-rem+u,(40-rem+u)%2,1,1,1,1,prev,force_dma=True,baroff=off); prev=x; r+=x
        x=stamp(2)+it(40,0,1,0,1,1,prev,ctx={"eager":1},baroff=off)
        return r,x
    if not sst: i0=mk0(0)
    allb=[]; paths=[]; body_rem=[]
    for cp in range(ncopy):
        if sst: i0=mk0(stag*cp)
        body=[]; prev=i0
        for u in range(U):
            x=it(T+1+u,(T+1+u)%2,1,1,1,1,prev,force_dma=True,loopctl=f"L_loop{cp}" if (u==U-1 and trips>1) else None,baroff=stag*cp); body+=x; prev=x
            if u==0: ia=x
            if u==1: ib=x
        if sst or cp==0: br,i40=mkend(prev,stag*cp if sst else 0)
        paths.append(i0+body*min(trips,3)+br+i40)
        allb+=[label(f"L_copy{cp}")]+(i0 if sst else [])+[raw(f".p2align {OPT.get('al',6)}"),label(f"L_loop{cp}")]+body+(br+i40 if sst else [])
        body_rem+=body+br
        if cp<ncopy-1: allb+=[I("s_branch L_after","branch")]
    allb+=[label("L_after")]
    lg=[]; i41=[comment("---- drain")]+drain(41,i40,lg); logs[41]=lg; i42=[]; i1=[]
    main=pro+(disp if sst else i0+disp)+allb+([] if sst else br+i40)+i41
    fin=Seq(i41+i42)
    fin(salu(f"s_mov_b32 s49, {HI:#x}",[],S(49)))
    fin(valu(f"v_cmp_lt_u32 vcc, s49, v{vLmax}",S(49)+V(vLmax),[VCC]))
    fin(nop(5), I("s_cbranch_vccnz L_fallback","branch",[VCC]))
    if OPT["stamp"]==2 and OPT.get("all"):
        fin(raw("s_waitcnt vmcnt(0)"),raw("s_memrealtime s[100:101]"),raw("s_waitcnt lgkmcnt(0)"),raw(f"s_cmp_lg_u32 s{sW}, 0"),raw("s_cbranch_scc1 L_end"))
        fin(raw(f"s_and_b32 s{sDbg+1}, s{sDbg+1}, 0xffff"),raw(f"s_mov_b32 s{sDbg+2}, 4096"),raw(f"s_mov_b32 s{sDbg+3}, 0x20000"))
        fin(raw("s_getreg_b32 s3, hwreg(HW_REG_XCC_ID)"),raw("s_and_b32 s3, s3, 7"),raw("s_and_b32 s55, s62, 0xffffff"),raw("s_lshl_b32 s3, s3, 24"),raw("s_or_b32 s3, s3, s55"),raw("v_mov_b32 v200, s3"))
        for n,r in enumerate((82,98,100)): fin(raw(f"s_sub_u32 s3, s{r}, s62"),raw(f"v_mov_b32 v{201+n}, s3"))
        fin(raw("s_lshl_b32 s3, s2, 4"),raw("v_mov_b32 v220, s3"),raw("s_mov_b64 exec, 1"),raw(f"buffer_store_dwordx4 v[200:203], v220, s[{sDbg}:{sDbg+3}], 0 offen"))
    elif OPT["stamp"]==2:
        fin(raw("s_waitcnt vmcnt(0)"),raw("s_memrealtime s[100:101]"),raw("s_waitcnt lgkmcnt(0)"))
        fin(raw("s_and_b32 s3, s2, 63"),raw("s_cmp_lg_u32 s3, 0"),raw("s_cbranch_scc1 L_end"),raw(f"s_cmp_lg_u32 s{sW}, 0"),raw("s_cbranch_scc1 L_end"))
        fin(raw(f"s_and_b32 s{sDbg+1}, s{sDbg+1}, 0xffff"),raw(f"s_mov_b32 s{sDbg+2}, 256"),raw(f"s_mov_b32 s{sDbg+3}, 0x20000"))
        for n in range(13): fin(raw(f"s_sub_u32 s3, s{76+2*n}, s62"),raw(f"v_mov_b32 v{200+n}, s3"))
        fin(raw("s_lshr_b32 s3, s2, 6"),raw("s_lshl_b32 s3, s3, 6"),raw("v_mov_b32 v220, s3"),raw("s_mov_b64 exec, 1"))
        for n in range(4): fin(raw(f"buffer_store_dwordx4 v[{200+4*n}:{203+4*n}], v220, s[{sDbg}:{sDbg+3}], 0 offen offset:{16*n}"))
    elif OPT["stamp"]:
        fin(*stamp(3)); fin(raw("s_waitcnt vmcnt(0)")); fin(*stamp(4)); fin(raw("s_waitcnt lgkmcnt(0)"))
        sp=OPT.get("spin")
        if sp is not None:
            ex={0:["s_mov_b32 s3, 0"],1:["s_sub_u32 s3, s78, s62","s_lshl_b32 s3, s3, 2"],2:["s_sub_u32 s3, s86, s82"],3:["s_sub_u32 s3, s94, s62"],
                4:["s_sub_u32 s3, s84, s80","s_lshr_b32 s3, s3, 4"],5:["s_sub_u32 s3, s82, s62","s_lshl_b32 s3, s3, 2"],6:["s_sub_u32 s3, s82, s78","s_lshl_b32 s3, s3, 3"],7:["s_sub_u32 s3, s80, s76","s_lshr_b32 s3, s3, 1"]}[sp]
            for e in ex: fin(raw(e))
            fin(raw("s_add_u32 s3, s3, 15000"),label("L_spin"),raw("s_memrealtime s[98:99]"),raw("s_waitcnt lgkmcnt(0)"),raw("s_sub_u32 s98, s98, s62"),raw("s_cmp_lt_u32 s98, s3"),raw("s_cbranch_scc1 L_spin"))
        fin(raw("s_and_b32 s3, s2, 31"),raw("s_cmp_lg_u32 s3, 0"),raw("s_cbranch_scc1 L_end"),raw(f"s_cmp_lg_u32 s{sW}, 0"),raw("s_cbranch_scc1 L_end"))
        fin(raw(f"s_and_b32 s{sDbg+1}, s{sDbg+1}, 0xffff"),raw(f"s_mov_b32 s{sDbg+2}, 256"),raw(f"s_mov_b32 s{sDbg+3}, 0x20000"))
        for n in range(4): fin(raw(f"s_sub_u32 s3, s{76+4*(n+1 if n==3 else n)}, s60"),raw(f"v_mov_b32 v{200+2*n}, s3"),raw(f"s_sub_u32 s3, s{78+4*(n+1 if n==3 else n)}, s62"),raw(f"v_mov_b32 v{201+2*n}, s3"))
        fin(raw("s_lshr_b32 s3, s2, 5"),raw("s_lshl_b32 s3, s3, 5"),raw("v_mov_b32 v208, s3"),raw("s_mov_b64 exec, 1"),
            raw(f"buffer_store_dwordx4 v[200:203], v208, s[{sDbg}:{sDbg+3}], 0 offen"),raw(f"buffer_store_dwordx4 v[204:207], v208, s[{sDbg}:{sDbg+3}], 0 offen offset:16"))
    fin(raw("s_endpgm"))
    fb=fallback()
    static=main+fin.out()+fb+[label("L_end"),raw("s_endpgm")]
    dyns=[pro+p+i41+fin.out() for p in paths]
    for rep in range(2):
        for dyn in dyns: resolve_waits(dyn)
    k=[x for x,y in enumerate(fb) if y.text=="L_fb_loop"][0]
    dynf=fb+fb[k:]
    resolve_waits(dynf)
    for name,d in [("main",d) for d in dyns]+[("fallback",dynf)]:
        bad=check_hazards(d)
        for b in bad: print("HAZARD",name,b,file=sys.stderr)
        assert not bad
        print(name,"max outstanding",max_outstanding(d),file=sys.stderr)
    for nm,sq in(("i0",i0),("i1",i1),("ia",ia),("ib",ib),("i40",i40),("i41",i41),("i42",i42)):
        print(nm,"est cycles",estimate(sq),"nops",sum(1 for x in sq if x.kind=="nop"),"instrs",sum(1 for x in sq if states(x)),file=sys.stderr)
    if "log" in OPT: print("\n".join(logs[OPT["log"]]),file=sys.stderr)
    abl=str(OPT.get("abl","")).split("+")
    if abl!=[""]:
        loop=set(map(id,body_rem)) if not OPT.get('abs') else set(map(id,i0[len(i0)//4:]))
        def drop(x):
            if id(x) not in loop: return False
            t=x.text
            return (("st" in abl and x.kind=="vst") or ("dma" in abl and x.kind=="dma") or ("pr" in abl and x.kind=="dsr" and 128<=min(r[1] for r in x.wr)<160)
              or ("qr" in abl and x.kind=="dsr" and 32<=min(r[1] for r in x.wr)<64) or ("pw" in abl and x.kind=="dsw") or ("exp" in abl and t.startswith("v_exp"))
              or ("cvt" in abl and t.startswith("v_cvt")) or ("one" in abl and x.kind=="mfma" and x.name.startswith("ONE")) or ("bar" in abl and x.kind=="bar")
              or ("mul" in abl and t.startswith("v_mul")) or ("valu" in abl and x.kind in VALU_KINDS) or ("qk" in abl and x.kind=="mfma" and x.name.startswith("QK"))
              or ("pv" in abl and x.kind=="mfma" and x.name.startswith("PV")) or ("wait" in abl and x.kind=="wslot") or ("ks" in abl and (t.startswith("v_accvgpr") or t.startswith("v_pk_mul") or t.startswith("v_and") or t.startswith("v_lshlrev"))))
        static=[x for x in static if not drop(x)]
        static=[x for x in static if x.text!="s_cbranch_vccnz L_fallback"]
    if OPT.get("fake"): static=[x for x in static if x.text!="s_cbranch_vccnz L_fallback"]
    if OPT.get("swap"):
        import re as _re
        for x in body_rem:
            if x.kind=="mfma" and any(x.name.startswith(p) for p in OPT["swap"].split("+")):
                m=_re.match(r"(\S+ [^,]+), ([^,]+), ([^,]+), (.*)",x.text); x.text=f"{m[1]}, {m[3]}, {m[2]}, {m[4]}"
        static=[x for x in static if x.text!="s_cbranch_vccnz L_fallback"]
    hdr=open("standalone__mha_softmax__near_ridge.s.ref").read().split("; Override launch")[0]
    txt=hdr+f"""; One workgroup (4 waves) per head.  K (scaled once by log2(e)/sqrt(D)) and V^T stay in AGPRs: wave w owns keys
; 128w..128w+127 for S^T = K.Q^T and output columns 32w..32w+31 for O^T = V^T.P^T (16x16x32 bf16 MFMA); P and the row sums
; are exchanged through LDS, one barrier per 32-row query tile.  The first tiles are processed key-chunk by key-chunk while
; K and V stream in.  Softmax shift: the fast path shifts by 0; every row sum l is checked at run time (2^-48 <= l <= 2^48,
; inf/NaN included) and if any row leaves that range the whole head is recomputed with the true row max (L_fallback).
; @launch grid=(256,1,1) block=(256,1,1) lds={LDS_BYTES}
.amdgcn_target "amdgcn-amd-amdhsa--gfx950"
.text
.globl {NAME}
.p2align 8
.type {NAME},@function
{NAME}:
"""+emit(static)+f""".section .rodata,"a"
.p2align 6
.amdhsa_kernel {NAME}
  .amdhsa_next_free_vgpr 512
  .amdhsa_next_free_sgpr 102
  .amdhsa_accum_offset 256
  .amdhsa_group_segment_fixed_size 0
  .amdhsa_kernarg_size 48
  .amdhsa_user_sgpr_count 2
  .amdhsa_user_sgpr_kernarg_segment_ptr 1
  .amdhsa_system_sgpr_workgroup_id_x 1
.end_amdhsa_kernel
"""
    return txt

if __name__=="__main__":
    open(sys.argv[1],"w").write(build())
```

```python
import sys, struct, math
from core import *
from sched import *

NAME="standalone__mha_softmax__near_ridge_kernel"
NT=41
QBYTES=335872; KBYTES=131072
OPT=dict(D=4, st="sc0+sc1", ld="nt", stamp=0, wsplit=0, stag=3, ncopy=2)
for a in sys.argv[2:]:
    k,v=a.split("="); OPT[k]=int(v) if v.lstrip("-").isdigit() else v
D=OPT["D"]; NQ=7; T=OPT.get("T",5); LAG=OPT.get("lag",4); LAG0=OPT.get('lag0',3)
STF=(" "+OPT["st"].replace("+"," ")) if OPT["st"]!="none" else ""
LDF=(" "+OPT["ld"].replace("+"," ")) if OPT["ld"]!="none" else ""
QSLOT=8320; PB=[0,33280]; KBASE=PB[T%2]; QBASE=2*33280; QEND=QBASE+NQ*QSLOT; VBASE=QEND; LBASE=VBASE+32768; MBASE=LBASE+1024; LDS_BYTES=LBASE+4096
vQrd,vQrd0,vPw,vPr,vQdma,vOst,vLw,vLr=1,2,3,[None,4,5,6],7,8,9,10
vLmax,vLmin,vR0,vR1,vT=11,12,13,14,15
vLrd,vLacc,vSEL=16,20,[24,28]
vQ=lambda qb,ds:32+qb*16+ds*4
vS=lambda n:64+(n%8)*4
vP=lambda f:96+f*4
vRing=lambda s,k:128+(s%2)*16+k*4
vO=lambda st,qb,db:160+st*16+qb*8+db*4
vOut=lambda qb:192+qb*4
aK=lambda kb,ds:(kb*4+ds)*4
aV=lambda j,kp,db:128+((j*4+kp)*2+db)*4
sQ,sK,sV,sO=4,8,12,16
sW,sLoop,sQso,sQm0,sQrs,sO0,sO1,sT,sC=20,21,22,23,24,25,26,27,28
sWoff=30; sDbg=32
M0=('m0',0); VCC=('vcc',0); SCC=('scc',0)
CSCALE=struct.unpack("<I",struct.pack("<f",math.log2(math.e)/math.sqrt(128.0)))[0]
def bf16(x):
    u=struct.unpack("<I",struct.pack("<f",x))[0]; return (u+0x7fff+((u>>16)&1))>>16
CF=math.log2(math.e)/math.sqrt(128.0); CHI=bf16(CF); CLO=bf16(CF-struct.unpack("<f",struct.pack("<I",CHI<<16))[0])
HI=(127+48)<<23

def dsr128(dst,addr,off,file='v',name=None): return I(f"ds_read_b128 {rs(file,dst,4)}, v{addr} offset:{off}","dsr",V(addr),[(file,dst+i) for i in range(4)],name=name)
def dsw128(addr,src,off): return I(f"ds_write_b128 v{addr}, {rs('v',src,4)} offset:{off}","dsw",V(addr)+V(src,4),[],cost=20)
def dsw64(addr,src,off): return I(f"ds_write_b64 v{addr}, {rs('v',src,2)} offset:{off}","dsw",V(addr)+V(src,2),[],cost=12)
def dsw32(addr,src,off): return I(f"ds_write_b32 v{addr}, v{src} offset:{off}","dsw",V(addr)+V(src),[],cost=8)
def dma(voff,srd,soff,off,flag=LDF): return I(f"buffer_load_dwordx4 v{voff}, s[{srd}:{srd+3}], s{soff} offen offset:{off}{flag} lds","dma",V(voff)+S(srd,4)+S(soff)+[M0],[])
def vld(dst,voff,srd,soff,off,flag=LDF): return I(f"buffer_load_dwordx4 {rs('v',dst,4)}, v{voff}, s[{srd}:{srd+3}], s{soff} offen offset:{off}{flag}","vld",V(voff)+S(srd,4)+S(soff),V(dst,4))
def vst(src,voff,srd,soff,flag=STF): return I(f"buffer_store_dwordx4 {rs('v',src,4)}, v{voff}, s[{srd}:{srd+3}], s{soff} offen{flag}","vst",V(src,4)+V(voff)+S(srd,4)+S(soff),[],meta={"data":V(src,4)})
def vexp(r): return valu(f"v_exp_f32 v{r}, v{r}",V(r),V(r),"trans")
def vcvt(d,a,b): return valu(f"v_cvt_pk_bf16_f32 v{d}, v{a}, v{b}",V(a)+V(b),V(d))
def vcvtp(d,a,b):
    if OPT.get("trunc"): return valu(f"v_perm_b32 v{d}, v{b}, v{a}, s74",V(a)+V(b)+S(74),V(d))
    return vcvt(d,a,b)
def v2(op,d,a,b): return valu(f"{op} v{d}, v{a}, v{b}",V(a)+V(b),V(d))
def bar(**m): return I("s_barrier","bar",meta=m)
def label(t): return I(t,"label")
def comment(t): return I(t,"comment")

def chain_info(n):
    f=(n//2+1)%8; h=n%2
    return f,h,2*(f//2)+h,f%2
def s_block(f,h):
    return (2*((f-1)%8)+h)

class Bld:
    def __init__(s): s.bb=[]; s.ops=[]; s.sops=[]; s.mdeps={}; s.slots=set(); s.tail=[]
    def group(s,g):
        p=len(s.bb); s.bb+=g; s.slots.add(len(s.bb)-1); return p
    def add(s,ins,prio,deps=(),earliest=0,name=None):
        o=Op(ins,prio,deps,earliest,name); s.ops.append(o); return o
    def adds(s,ins,prio,deps=(),name=None,earliest=0):
        o=Op(ins,prio,deps,earliest,name); s.sops.append(o); return o
    def need(s,idx,o): s.mdeps.setdefault(max(idx,0),[]).append(o)
    def barrier(s,gap,deps,keep=False,**meta):
        if keep and gap in s.slots: gap-=1; o=s.adds(bar(**meta),-1,deps,name="BAR",earliest=gap); s.slots.add(gap-1); return o
        o=s.adds(bar(**meta),-1,deps,name="BAR",earliest=max(gap,0)); s.slots.discard(gap); s.slots.add(gap-1); return o
    def run(s,prefix,log=None,overdue=None): return schedule(s.bb,s.ops,s.sops,s.mdeps,prefix,s.slots,s.tail,log,overdue,fill=OPT.get('fill',1))

def qdma_ops(b,t0,deps,tag=None,scc=()):
    m=b.adds(salu(f"s_mov_b32 m0, s{sQm0}",S(sQm0),[M0]),t0-2,deps,name="m0")
    QF=(" "+OPT["lq"].replace("+"," ") if OPT["lq"]!="none" else "") if "lq" in OPT else LDF
    d0=b.add(dma(vQdma,sQ,sQso,0,QF),t0,[m],name="DMA0"); d1=b.add(dma(vQdma,sQ,sQso,1024,QF),t0+4,[d0],name="DMA1")
    d0.ins.cost=d1.ins.cost=OPT.get("dmac",8); d0.ins.tag=d1.ins.tag=tag
    b1=b.adds(salu(f"s_add_u32 s{sQm0}, s{sQm0}, {QSLOT}",S(sQm0),S(sQm0)+[SCC]),t0+10,[m]+list(scc),name="qm+")
    b2=b.adds(salu(f"s_cmp_eq_u32 s{sQm0}, s{sT}",S(sQm0)+S(sT),[SCC]),t0+11,[b1],name="qm?")
    b3=b.adds(salu(f"s_cselect_b32 s{sQm0}, s{sWoff}, s{sQm0}",S(sQm0)+S(sWoff)+[SCC],S(sQm0)),t0+12,[b2],name="qm=")
    b4=b.adds(salu(f"s_add_u32 s{sQso}, s{sQso}, 8192",S(sQso),S(sQso)+[SCC]),t0+14,[d1,b3],name="qso+")
    return d1,b4

def epilogue_ops(b,Ob,loff,t0,tm,dt,ldeps,odeps,prev,scc,sc=1.0,tg=""):
    lr=b.add(dsr128(vLrd,vLr,loff),t0,list(ldeps)+prev.get("L",[]),name="LR"+tg)
    a=b.add(v2("v_add_f32",vLrd,vLrd,vLrd+1),t0+11*sc,[lr],name="La")
    bb_=b.add(v2("v_add_f32",vLrd+2,vLrd+2,vLrd+3),t0+11.5*sc,[lr],name="Lb")
    c=b.add(v2("v_add_f32",vLrd,vLrd,vLrd+2),t0+12*sc,[a,bb_],name="Lc")
    rc=b.add(valu(f"v_rcp_f32 v{vR0}, v{vLrd}",V(vLrd),V(vR0),"trans"),t0+13*sc,[c]+prev.get("M",[]),name="RCP")
    x1=x2=b.add(valu(f"v_max3_u32 v{vLmax}, v{vLmax}, v{vLrd}, v{vR0}",V(vLmax)+V(vLrd)+V(vR0),V(vLmax)),t0+14.5*sc,[rc],name="chk")
    mv=b.add(valu(f"v_mov_b32 v{vR1}, v{vR0}",V(vR0),V(vR1)),t0+14*sc,[rc],name="MOV")
    sw=b.add(valu(f"v_permlane32_swap_b32 v{vR0}, v{vR1}",V(vR0)+V(vR1),V(vR0)+V(vR1),"perm"),t0+15*sc,[mv,x1],name="SWP")
    t=tm; sts=[]; muls=[]
    if OPT.get("pa") and not tg and odeps is None:
        b.ops.remove(mv); b.ops.remove(sw)
        rw=b.add(dsw32(vLw,vR0,3072),t0+14*sc,[rc],name="RW")
        rr=[b.add(dsr128(248+4*(qb),vLr,3072+16*qb),t0+16*sc+qb,[rw],name="RR") for qb in range(2)]
        for qb in range(2):
            for r in range(4):
                m0_=b.add(v2("v_mul_f32",Ob(qb,0)+r,Ob(qb,0)+r,248+4*qb+r),t,[rr[qb]],name=f"M"); t+=dt
                m1_=b.add(v2("v_mul_f32",Ob(qb,1)+r,Ob(qb,1)+r,248+4*qb+r),t,[rr[qb]],name=f"M"); t+=dt
                cv=b.add(vcvt(vOut(qb)+r,Ob(qb,0)+r,Ob(qb,1)+r),t,[m0_,m1_],name="OC"); t+=dt
                st_=b.add(I(f"buffer_store_dword v{vOut(qb)+r}, v0, s[{sO}:{sO+3}], s{sO0 if qb==0 else sO1} offen offset:{r*256}{STF}","vst",V(vOut(qb)+r)+V(0)+S(sO,4)+S(sO0 if qb==0 else sO1),[],cost=8),t,[cv],name="ST")
                if r==3: sts.append(st_)
    for qb in range(2 if not sts else 0):
        cv=[]
        for db in range(2):
            od=[odeps[(qb,db)]] if odeps else []
            for p2 in range(2):
                r=Ob(qb,db)+2*p2; R=vR0 if qb==0 else vR1
                m0_=b.add(v2("v_mul_f32",r,r,R),t,[sw]+od,name=f"M{qb}{db}{2*p2}"); t+=dt
                m1_=b.add(v2("v_mul_f32",r+1,r+1,R),t,[sw]+od,name=f"M{qb}{db}{2*p2+1}"); t+=dt
                muls+=[m0_,m1_]
                cv.append(b.add(vcvt(vOut(qb)+2*db+p2,r,r+1),t,[m0_,m1_]+prev.get("S",[]),name=f"OC{qb}{db}{p2}")); t+=dt
        sts.append(b.add(vst(vOut(qb),vOst,sO,sO0 if qb==0 else sO1),t,cv+prev.get("A",[]),name=f"ST{qb}"+tg)); sts[-1].ins.cost=OPT.get("stc",8)
    e1=b.adds(salu(f"s_add_u32 s{sO0}, s{sO0}, 8192",S(sO0),S(sO0)+[SCC]),t+1,[sts[0]]+list(scc),name="o0+")
    e2=b.adds(salu(f"s_add_u32 s{sO1}, s{sO1}, 8192",S(sO1),S(sO1)+[SCC]),t+2,[sts[1],e1],name="o1+")
    return {"L":[rc,x1,x2],"M":muls,"S":sts,"A":[e2]}

def iter_parts(b, i, par, cur, nxt, pv, ep, dodma, last_bar=True, loopctl=None, baroff=0, Ncustom=None, ctx=None):
    ctx=ctx or {}
    base=len(b.bb)
    def qk(n):
        f,h,kb,qb=chain_info(n)
        return [mfma(vS(n),aK(kb,ds),vQ(qb,ds),None if ds==0 else vS(n),name=f"QK{n}.{ds}") for ds in range(4)]
    so=1-par
    def pvo(qb,db): return [mfma(vO(so,qb,db),aV(0,kp,db),vP(2*kp+qb),None if kp==0 else vO(so,qb,db),name=f"PVo{qb}{db}.{kp}") for kp in range(4)]
    def one(qb): return [mfma(vLacc,vSEL[qb],vP(2*kp+qb),None if (kp==0 and qb==0) else vLacc,afile='v',name=f"ONE{qb}.{kp}") for kp in range(4)]
    sets=[(1,0),(1,1),(2,0),(2,1),(3,0),(3,1)]
    def pvx(s,db):
        j,qb=sets[s]
        return [mfma(vO(so,qb,db),aV(j,kp,db),vRing(s,kp),vO(so,qb,db),name=f"PVx{s}{db}.{kp}") for kp in range(4)]
    N=[("pvo",0,0),("pvo",0,1),("one",0),("pvo",1,0),("pvo",1,1),("one",1)]+[("pvx",s,db) for s in range(6) for db in range(2)]
    if Ncustom: N=[("cus",x) for x in range(18)]
    order=[N[0],N[1]]
    for n in range(16): order+=[("qk",n),N[n+2]]
    if ctx.get("eager"): order[-3],order[-2]=order[-2],order[-3]
    fk=OPT.get("fake",0) if (cur and nxt and pv and ep and not Ncustom) else 0
    if fk:
        order=[]; n=0; x=0
        while x<18 or n<16:
            order+=N[x:x+fk]; x+=fk
            order+=[("qk",m) for m in range(n,min(n+fk,16))]; n+=fk
    G={}; pos={}
    for key in order:
        if key[0]=="qk":
            n=key[1]
            if n>=14 and not nxt and cur and ctx.get("eager"):
                key=("eone",n-14); g=[mfma(vLacc,vSEL[n-14],vP(2*kp+n-14),None if (kp==0 and n==14) else vLacc,afile='v',name=f"eONE{n-14}.{kp}") for kp in range(4)]
            elif not (nxt if n>=14 else cur): continue
            else: g=qk(n)
        elif key[0]=="cus":
            g=Ncustom(key[1])
            if not g: continue
        else:
            if not pv: continue
            g={"pvo":pvo,"one":one,"pvx":pvx}[key[0]](*key[1:])
        if fk and key[0]!="qk" and OPT.get("fakeacc",1):
            d=vO(so,0,0)+4*((N.index(key)//fk)%4)
            for m in g:
                t=m.text.split(", "); t[0]=t[0].split(" ")[0]+f" v[{d}:{d+3}]"; t[3]=f"v[{d}:{d+3}]"; m.text=", ".join(t)
        G[key]=g; pos[key]=b.group(g)
        if key[0]=="cus": ctx["placed"](key[1],pos[key])
    nb=len(b.bb)-base
    nom={}; p=0
    for key in order: nom[key]=p; p+=4
    scale=(nb/136.0) if nb else 0
    import bisect
    alias={("qk",14):("eone",0),("qk",15):("eone",1)}
    pts=sorted((nom[k],pos[k if k in pos else alias[k]]) for k in nom if (k in pos or alias.get(k) in pos))
    def P(t):
        j=max(bisect.bisect_right(pts,(t,1<<30))-1,0)
        n0,a0=pts[j]; a1=pts[j+1][1] if j+1<len(pts) else 1<<30
        return min(a0+(t-n0),a1+(t-n0)*1e-3) if t>=n0 else a0+(t-n0)
    def add(ins,prio,deps=(),earliest=0,name=None):
        o=b.add(ins,P(prio),deps,int(P(earliest)) if earliest else base,name); o.nomp=prio; return o
    def adds(ins,prio,deps=(),name=None,earliest=0): return b.adds(ins,P(prio),deps,name,int(P(earliest)) if earliest else base)
    def need(key,k,o): b.need(pos[key]+k,o)
    rel=lambda o:o.nomp
    must_bar=list(ctx.get("must_bar",[]))
    scc=list(ctx.get("scc",[]))
    E={}
    for n in list(range(16))+[-1]:
        if n==15: continue
        if n==-1:
            if not cur: continue
            blk=vS(15); dep=ctx.get("c15",[]); t0=0
        else:
            if ("qk",n) not in G: continue
            blk=vS(n); dep=[G[("qk",n)][3]]; t0=nom[("qk",n)]+6
        for r in range(4):
            E[(n,r)]=add(vexp(blk+r),t0+2*r,dep,name=f"E{n}.{r}")
            if n>=0: E[(n,r)].prio=pos[("qk",n)]+6+2*r
    if cur:
        for f in range(8):
            qb=f%2; kp=f//2
            war=[G[k][kp] for k in (("pvo",qb,0),("pvo",qb,1),("one",qb)) if k in G]+ctx.get("pwar",{}).get(f,[])
            C=[]
            for h in range(2):
                n=s_block(f,h)
                en = -1 if n==15 else n
                for p2 in range(2):
                    deps=list(war)
                    if f==0 and h==0: t=1+p2; deps+=ctx.get("e14",[])
                    else:
                        deps+=[E[(en,2*p2)],E[(en,2*p2+1)]]; t=rel(E[(en,2*p2+1)])+1
                    c=add(vcvtp(vP(f)+2*h+p2,vS(n)+2*p2,vS(n)+2*p2+1),t,deps,name=f"C{f}.{2*h+p2}")
                    if not (f==0 and h==0): c.prio=E[(en,2*p2+1)].prio+1
                    C.append(c)
                    if ("eone",qb) in G: need(("eone",qb),kp,c)
                    nn=(n+8)%16
                    if ("qk",nn) in G and (n>=14 or n<8): need(("qk",nn),0,c)
            off=PB[par]+f*1024
            if str(f) in str(OPT.get("w32","")).replace("f",""):
                for x in range(4):
                    w=add(dsw32(vPw,vP(f)+x,off+4*x),rel(C[x])+1,[C[x]]+ctx.get("wdep",[]),name=f"W{f}.{x}"); must_bar.append(w)
            elif str(f) in str(OPT.get("w64","")).replace("f",""):
                for x in range(2):
                    w=add(dsw64(vPw,vP(f)+2*x,off+8*x),rel(C[2*x+1])+1,C[2*x:2*x+2]+ctx.get("wdep",[]),name=f"W{f}.{x}"); must_bar.append(w)
            else:
                w=add(dsw128(vPw,vP(f),off),rel(C[3])+1,C+ctx.get("wdep",[]),name=f"W{f}"); must_bar.append(w); w.prio=C[3].prio+1
        for n,ds_ in ctx.get("swar",{}).items():
            for o in ds_: need(("qk",n),0,o)
    if pv:
        for s,(j,qb) in enumerate(sets):
            for k in range(4):
                deps=[G[("pvx",s-2,1)][k]] if s>=2 else []
                t=nom[("pvx",s,0)]-14+k if s>=2 else s*4+k
                o=add(dsr128(vRing(s,k),vPr[j],PB[so]+(2*k+qb)*1024),t,deps,name=f"R{s}.{k}")
                need(("pvx",s,0),-1,o); must_bar.append(o)
        lw=add(dsw32(vLw,vLacc,so*512),nom[("one",1)]+8,[G[("one",1)][3]],name="LW"); must_bar.append(lw)
        if ("eone",0) in G:
            need(("eone",0),0,lw)
            must_bar.append(add(dsw32(vLw,vLacc,par*512),0,[G[("eone",1)][3]],name="eLW"))
    if nxt:
        a1=adds(salu(f"s_add_u32 s{sQrs}, s{sQrs}, {QSLOT}",S(sQrs),S(sQrs)+[SCC]),40,scc,name="qr+")
        a2=adds(salu(f"s_cmp_eq_u32 s{sQrs}, {QEND}",S(sQrs),[SCC]),41,[a1],name="qr?")
        a3=adds(salu(f"s_cselect_b32 s{sQrs}, {QBASE}, s{sQrs}",S(sQrs)+[SCC],S(sQrs)),42,[a2],name="qr=")
        scc=[a3]
        upd=add(valu(f"v_add_u32 v{vQrd}, s{sQrs}, v{vQrd0}",S(sQrs)+V(vQrd0),V(vQrd)),80,[a3]+ctx.get("rqprev",[]),name="qupd")
        for qb in range(2):
            lastn=11 if qb==0 else 13
            for ds in range(4):
                deps=[upd]+([G[("qk",lastn)][ds]] if ("qk",lastn) in G else [])+ctx.get("rqdep",[])
                o=add(dsr128(vQ(qb,ds),vQrd,qb*4160+ds*256),nom[("qk",lastn)]+1+ds,deps,name=f"RQ{qb}.{ds}")
                if qb==0: need(("qk",14),-1,o)
    if dodma:
        d1,b4=qdma_ops(b,P(ctx.get("dmaprio",50)),ctx.get("dmadep",[]),scc=scc); scc=[b4]
    if ep:
        e=epilogue_ops(b,lambda qb,db:vO(par,qb,db),par*512,P(-1),P(OPT.get("ept",24)),OPT.get("epdt",3.2)*scale,[],None,{},scc,sc=scale); scc=e["A"]
    if "late" in ctx: scc=ctx["late"](scc,must_bar)
    if loopctl:
        if "rw2" in OPT:
            w1=adds(salu(f"s_cmp_eq_u32 s{sLoop}, {OPT['rw2']}",S(sLoop),[SCC]),124,scc,name="rw?",earliest=124)
            w2=adds(salu(f"s_cbranch_scc1 {loopctl}_rw\n{loopctl}_rwb:",[SCC],[]),125,[w1],name="rwb",earliest=125); scc=[w2]
        c1=adds(salu(f"s_sub_u32 s{sLoop}, s{sLoop}, 1",S(sLoop),S(sLoop)+[SCC]),128,scc,name="lp-",earliest=128)
        c2=adds(salu(f"s_cmp_lg_u32 s{sLoop}, 0",S(sLoop),[SCC]),129,[c1],name="lp?",earliest=129)
        b.tail=[I(f"s_cbranch_scc1 {loopctl}","branch",[SCC])]
    b.slots.discard(base+nb-1)
    if last_bar: b.barrier(base+nb-1-baroff,must_bar,keep_dma=2*(D-2),all_ds=1)

def iteration(i, par, cur, nxt, pv, ep, dodma, prefix, log=None, **kw):
    b=Bld(); iter_parts(b,i,par,cur,nxt,pv,ep,dodma,**kw); return b.run(prefix,log)

def drain(i,prefix,log):
    b=Bld(); so=(i-1)%2; par=i%2
    ring=[128,144,64,80,32,48]; last={}
    for qb in range(2):
        for j in range(4):
            s_=qb*3+j-1
            for db in range(2):
                d=vO(so,qb,db)
                g=[mfma(d,aV(j,kp,db),vP(2*kp+qb) if j==0 else ring[s_]+4*kp,None if (j==0 and kp==0) else d,name=f"PV{qb}{j}{db}.{kp}") for kp in range(4)]
                p=b.group(g); last[(qb,db)]=g[3]
                if j and db==0:
                    for k in range(4): b.need(p-1,b.add(dsr128(ring[s_]+4*k,vPr[j],PB[so]+(2*k+qb)*1024),s_*2+k/2,name=f"R{s_}.{k}"))
    e=epilogue_ops(b,lambda qb,db:vO(par,qb,db),par*512,-1,10,0.7,[],None,{},[],sc=0.5)
    epilogue_ops(b,lambda qb,db:vO(so,qb,db),so*512,20,34,0.7,[],last,e,e["A"],sc=0.3,tg="z")
    return b.run(prefix,log)

vOs=[80,112][:T-LAG-1]+[vO(T%2,0,0)]+[200,216,232][:LAG-1]+[vO(1-T%2,0,0)]
vLs=lambda t:248+t
sKo=64
sVm=72
vKA,vVA,vTB,vTD=255,0,192,15
def kdma_units(c):
    u=[]
    for pr in range(4):
        for n in range(2):
            d=dma(vQdma,sK,45,n*1024); d.tag=f"K{c}"
            u.append(([salu(f"s_add_u32 m0, s54, {(pr//2)*4160+(pr%2)*2080}",S(54),[M0,SCC]), salu(f"s_add_u32 s45, s44, {c*8192+pr*2048}",S(44),S(45)+[SCC])] if n==0 else [])+[d])
    return u
def qdma_units(t):
    d0=dma(vQdma,sQ,46,0); d1=dma(vQdma,sQ,46,1024); d0.tag=d1.tag=f"Q{t}"
    return [[salu(f"s_add_u32 m0, s{sWoff}, {(t%NQ)*QSLOT}",S(sWoff),[M0,SCC]),salu(f"s_mov_b32 s46, {t*8192}",[],S(46)),d0],[d1]]
def vdma_units(c):
    u=[]
    for hf in range(2):
        for n in range(4):
            d=dma(vVA,sV,sKo+2*c+hf,n*1024); d.tag=f"V{c}"
            u.append(([salu(f"s_mov_b32 m0, s{sVm+hf}",S(sVm+hf),[M0])] if n==0 else [])+[d])
    return u
flat=lambda u:[x for y in u for x in y]
STREAM=kdma_units(0)+qdma_units(0)+qdma_units(1)+qdma_units(2)+vdma_units(0)+flat([qdma_units(t) for t in range(3,T)])+kdma_units(1)
NPRO=OPT.get("npro",20)
def kread(c):
    o=[dsr128(aK(2*c+h,ds),vKA,h*4160+ds*256,file='a') for h in range(2) for ds in range(4)]
    for x in o: x.meta["tags"]={f"K{c}"}
    return o
aSC=lambda lo,half:aV(lo,3,half)
vKT=[192,196,vLrd]
def rewarm(lbl): return [raw(f"s_mov_b32 s55, {lbl}-L_pc"), I("buffer_load_dword v253, v254, s[56:59], s55 offen","vld",V(254),V(253))]
def touch_ins(): return I(f"buffer_load_dword v253, v254, s[{sO}:{sO+3}], 0 offen nt","vld",V(254)+S(sO,4),V(253))
def ksops(c,j):
    a=aK(2*c+j//8,(j//2)%4)+2*(j%2); d=vKT[j%3]
    return [vcvt(d,d,d+1),vcvt(d+1,d+2,d+3)]+[vop(f"v_accvgpr_write_b32 a{a+x}, v{d+x}",V(d+x),A(a+x)) for x in range(2)]
def kscale(c,extra=None):
    o=[]
    for j in range(16):
        a=aK(2*c+j//8,(j//2)%4); d=vKT[j%3]; x=ksops(c,j-2) if j>=2 else [nop(2),None,nop(2),None]
        if j%2==0: o.append(waitslot())
        o+=[mfma(d,aSC(0,j%2),a,None,bfile='a',name="KSh")]+(extra(j) if extra else [])+x[:2]+[mfma(d,aSC(1,j%2),a,d,bfile='a',name="KSl")]+x[2:]
    return [i for i in o if i is not None]
def startup(prefix,log,off=0):
    b=Bld(); NS=4*T
    Sb=lambda n:64+(n%4)*4
    OWN=OPT.get("own",1) and T-LAG<=2
    Pw=lambda k,qb:96+((k%(4 if OWN else 2))*2+qb)*4
    ownk=lambda k:OWN and k<NS-OPT.get("ownskip",2)
    ent=lambda k,qb:PB[T%2 if (LAG>3 and 3*T<=k<NS-LAG) else 1-T%2]+((k%4)*2+qb)*1024
    assert LAG<=3 or all(k%4 for k in range(3*T,NS-LAG))
    pvstep=lambda k:k+(LAG0 if k<3*T else LAG)
    pvof={pvstep(k):k for k in range(NS)}
    QK={}; PV={}; ONE={}; start={}; end={}; posQ={}; posP={}; posO={}
    def pvg(k,qb,db):
        c,t=divmod(k,T); d=vOs[t]+qb*8+db*4
        return [mfma(d,aV(j,c,db),Pw(k,qb) if (ownk(k) and j==0) else vRing(2*k+qb,j),None if (c==0 and j==0) else d,name=f"PV{k}.{qb}{db}.{j}") for j in range(4)]
    def oneg(k): return [mfma(vLacc,vSEL[0],Pw(k,0),None,afile='v',name=f"ONE{k}.0"),mfma(vLacc,vSEL[1],Pw(k,1),vLacc,afile='v',name=f"ONE{k}.1")]
    for k in range(NS):
        c,t=divmod(k,T)
        start[k]=len(b.bb)
        for ch in range(4):
            kb=2*c+ch%2; qb=ch//2; n=4*k+ch
            QK[(k,ch)]=[mfma(Sb(n),aK(kb,ds),vQ(qb,ds),None if ds==0 else Sb(n),name=f"QK{k}.{ch}.{ds}") for ds in range(4)]
            posQ[(k,ch)]=b.group(QK[(k,ch)])
            if k in pvof:
                key=(pvof[k],ch//2,ch%2); PV[key]=pvg(*key); posP[key]=b.group(PV[key])
            if ch==2 and k>=1: ONE[k-1]=oneg(k-1); posO[k-1]=b.group(ONE[k-1])
        if k==NS-1:
            for n in(14,15):
                f,h,kb,qb=chain_info(n)
                QK[("pre",n)]=[mfma(vS(n),aK(kb,ds),vQ(qb,ds),None if ds==0 else vS(n),name=f"QKp{n}.{ds}") for ds in range(4)]
                posQ[("pre",n)]=b.group(QK[("pre",n)])
        end[k]=len(b.bb)-1
    cus={}
    x=0
    for k in range(NS-LAG,NS):
        for qb in range(2):
            for db in range(2):
                PV[(k,qb,db)]=pvg(k,qb,db); cus[x]=("pv",(k,qb,db)); x+=1
                if x==3: ONE[NS-1]=oneg(NS-1); cus[x]=("one",NS-1); x+=1
    nskip=18-len(cus); hi=OPT.get("skiphi",14)
    skip=set(hi-2*j for j in range(nskip)); slots_=[y for y in range(18) if y not in skip]
    cus={slots_[y]:v for y,v in cus.items()}
    def Ncustom(x):
        if x not in cus: return None
        return PV[cus[x][1]] if cus[x][0]=="pv" else ONE[cus[x][1]]
    def placed(x,p):
        (posP if cus[x][0]=="pv" else posO)[cus[x][1]]=p
    BAR={}; W={}; C={}; LA={}; LW={}; RQ={}; TR={}; E={}
    bdeps={k:[] for k in range(NS)}; btags={k:set() for k in range(NS)}; bneed={k:[] for k in range(NS)}
    for k in range(NS): BAR[k]=b.barrier(end[k]-off,[],tags=btags[k],need=set())
    def bneeds(k,o): BAR[k].deps.append(o); BAR[k].ins.meta["need"].add(id(o.ins))
    for k in range(1,NS): BAR[k].deps.append(BAR[k-1])
    state={"scc":[],"dma":[],"ep":{}}
    def softmax(k):
        c,t=divmod(k,T)
        for ch in range(4):
            n=4*k+ch; qb=ch//2; h=ch%2
            for r in range(4): E[(k,ch,r)]=b.add(vexp(Sb(n)+r),posQ[(k,ch)]+6+2*r,[QK[(k,ch)][3]],name=f"E{k}.{ch}.{r}")
            for p2 in range(2):
                deps=[E[(k,ch,2*p2)],E[(k,ch,2*p2+1)]]
                if OWN:
                    if k>=4: deps+=[ONE[k-4][qb],W[(k-4,qb)],PV[(k-4,qb,0)][0],PV[(k-4,qb,1)][0]]
                elif k>=2: deps+=[ONE[k-2][qb],W[(k-2,qb)]]
                o=b.add(vcvtp(Pw(k,qb)+2*h+p2,Sb(n)+2*p2,Sb(n)+2*p2+1),E[(k,ch,2*p2+1)].prio+1,deps,name=f"C{k}.{ch}.{p2}")
                C[(k,ch,p2)]=o
                if k+1<NS: b.need(posQ[(k+1,ch)],o)
            if h==1:
                W[(k,qb)]=b.add(dsw128(vPw,Pw(k,qb),ent(k,qb)),C[(k,ch,1)].prio+1,[C[(k,cc,pp)] for cc in(ch-1,ch) for pp in range(2)]+([BAR[pvstep(k-4)]] if (k>=4 and pvstep(k-4)<k and ent(k,0)==ent(k-4,0)) else [])+([BAR[k-3]] if k>NS-LAG else []),name=f"W{k}.{qb}")
                if k+1<NS: bneeds(k+1,W[(k,qb)])
    for k in range(NS): softmax(k)
    def one_ops(k):
        c,t=divmod(k,T)
        for cc in range(4):
            for pp in range(2): b.need(posO[k],C[(k,cc,pp)])
        if k>=1: b.need(posO[k],LA[k-1])
        ins=valu(f"v_mov_b32 v{vLs(t)}, v{vLacc}",V(vLacc),V(vLs(t))) if c==0 else v2("v_add_f32",vLs(t),vLs(t),vLacc)
        LA[k]=b.add(ins,posO[k]+6,[ONE[k][1]],name=f"LA{k}")
        if c==3:
            LW[t]=b.add(dsw32(vLw,vLs(t),((T-1)%2)*512 if t==T-1 else 1024+t*512),posO[k]+8,[LA[k]],name=f"LW{t}")
            if k+1<NS: bneeds(k+1,LW[t])
    for k in range(NS-1): one_ops(k)
    def preads(k):
        for qb in range(2):
            for j in range(1 if ownk(k) else 0,4):
                deps=[BAR[k+1]]+([PV[(k-1,qb,1)][j]] if k>=1 else [])
                o=b.add(dsr128(vRing(2*k+qb,j),vPw if j==0 else vPr[j],ent(k,qb)),posP[(k,qb,0)]-OPT.get('rlead',12)+j,deps,name=f"R{k}.{qb}.{j}")
                b.need(posP[(k,qb,0)]-1,o); state.setdefault("R",[]).append(o)
    for k in range(NS-LAG): preads(k)
    for k in range(NS+1):
        t=k%T if k<NS else T%NQ
        for qb in range(2):
            for ds in range(4):
                deps=[QK[(k-1,2*qb+1)][ds]] if k>=1 else []
                if 2<=k<T: deps.append(BAR[k-2]); btags[k-2].add(f"Q{k}")
                if k==NS: deps.append(BAR[NS-2]); btags[NS-2].add(f"Q{T}")
                pr=(posQ[(k-1,2*qb+1)]+1+ds) if k>=1 else 14+4*qb+ds
                o=b.add(dsr128(vQ(qb,ds),vQrd,t*QSLOT+qb*4160+ds*256),pr,deps,name=f"RQ{k}.{qb}.{ds}"); RQ[(k,qb,ds)]=o
                if k<NS: b.need(posQ[(k,2*qb)]-1,o)
                elif qb==0: b.need(posQ[("pre",14)]-1,o)
    btags[NS-1].add(f"Q{T+1}")
    state["chain"]=[]; hard={0,1}
    def issue(units,where,deps,nm):
        for u,(k,fr) in zip(units,where):
            tt=int(start[k]+fr*(end[k]-start[k])); prev=list(deps)+state["chain"]+state["scc"]
            nd=[x.kind for x in u].index("dma")
            for x,ins in enumerate(u):
                if ins.kind=="salu": o=b.adds(ins,tt+x-nd-3,prev,name="s"+nm,earliest=tt+x-nd-3 if x<nd else 0)
                else: o=b.add(ins,tt,prev,earliest=tt,name=nm); ins.cost=OPT.get("sdmac",8)
                prev=[o]
            state["chain"]=prev; state["scc"]=prev
            if k in hard: BAR[k].deps.append(prev[0])
    def spread(n,k0,per):
        w=[]; k=k0
        while len(w)<n:
            m=min(per,n-len(w)); w+=[(k,(x+0.5)/per) for x in range(m)]; k+=1
        return w
    kchain=[]
    def extra(j):
        o=flat(STREAM[12+(NPRO-12)*j//16:12+(NPRO-12)*(j+1)//16])
        if j==9: o+=[waitslot(),bar(tags={"Q0","Q1"},need=set())]
        if 10<=j<14: o+=[RQ[(0,(j-10)//2,2*(j%2)+x)].ins for x in range(2)]
        return o
    for qb in range(2):
        for ds in range(4): o=RQ[(0,qb,ds)]; b.ops.remove(o); o.done=True; o.gap=-1
    ks0=b.add([waitslot()]+kread(0)+kscale(0,extra)+[waitslot()],0,[],name="KS0"); b.need(0,ks0)
    rest=STREAM[NPRO:]
    n0=OPT.get("n0",4); n1=OPT.get("n1",10)
    w=[(0,(x+0.5)/n0) for x in range(n0)]+[(1,OPT.get('f1',30)/100+0.5*x/n1) for x in range(n1)]
    w=w[:len(rest)]; w+=spread(len(rest)-len(w),2,2)
    issue(rest,w,[ks0],"D")
    lastk=w[-1][0]
    for c in range(4):
        s1=pvstep(c*T)-1
        btags[s1-1].add(f"V{c}")
        p0=start[c*T]
        if c==0: ks=ks0
        else:
            kr=[b.add(ins,p0-14+x,kchain,earliest=p0-16,name=f"KR{c}") for x,ins in enumerate(kread(c))]
            ks=b.add(kscale(c),p0,kr+state["TR"],name=f"KS{c}"); b.need(p0,ks)
        aw=[]
        for j in(14,15):
            x=ksops(c,j); prev=[ks]
            for n,ins in enumerate(x): o=b.add(ins,p0-8+j-14+n*0.1,prev,name="Kx"); prev=[o]; aw.append(o); b.need(posQ[(c*T,1)],o)
        state["KS"]=aw
        if OPT.get("rw1",-1)==c:
            x=rewarm("L_merged"); x[0].kind="salu"
            o0=b.adds(x[0],p0-2,[ks],name="sRW"); state["chain"]=[b.add(x[1],p0,[o0]+state["chain"],name="RW")]
        if OPT.get("touch") and OPT.get("tpos")==c: state["chain"]=[b.add(touch_ins(),p0,[ks]+state["chain"],name="TOUCH")]
        if 1<=c<3: issue(kdma_units(c+1),spread(8,c*T,OPT.get("kper",6)),[ks],f"KD{c+1}")
        kchain=state["chain"]
        state["TR"]=[]
        for j in range(4):
            r=vPw if j==0 else vPr[j]
            tb=b.add(v2("v_add_u32",vTB+j,vTD,r),start[s1-1]+j,state.get("KS",[]),earliest=start[s1-1],name="TB")
            for db in range(2):
                for hf in range(2):
                    a=aV(j,c,db)+2*hf
                    o=b.add(I(f"ds_read_b64_tr_b16 a[{a}:{a+1}], v{vTB+j} offset:{hf*4096+8*db}","dsr",V(vTB+j),A(a,2)),start[s1]+j*4+db*2+hf,[BAR[s1-1],tb],name=f"TR{c}")
                    b.need(posP[(c*T,0,0)]-1,o); bneeds(s1,o); state["TR"].append(o)
        if c<3: issue(vdma_units(c+1),(spread(8,max(s1+1,lastk,OPT.get("v1",0)),OPT.get("v1per",6)) if c==0 else spread(8,s1+1,OPT.get("vper",6))),[BAR[s1]],f"VD{c+1}")
    state["ep"]={"L":state["KS"],"S":state["TR"]}
    for x in range(D):
        t=T+x; k=min(max(3*T+1+t-NQ,3*T-1+x*OPT.get("qstep",1)+OPT.get("q0",0)),NS-1)
        issue(qdma_units(t),[(k,0.25),(k,0.6)],[BAR[3*T+t-NQ]] if t>=NQ else [],"QD")
    chain=state["chain"]
    def ep(t,t0,tm,dt,scc):
        k=3*T+t
        od={(qb,db):PV[(k,qb,db)][3] for qb in range(2) for db in range(2)}
        e=epilogue_ops(b,lambda qb,db:vOs[t]+qb*8+db*4,1024+t*512,t0,tm,dt,[BAR[k+1]],od,state["ep"],scc,sc=0.5,tg=f"t{t}")
        state["ep"]=e; return e
    eps={}; BARX=[]
    for t in range(T-LAG-1+0):
        k=3*T+t+LAG
        eps[t]=ep(t,start[k]+8,start[k]+20,1.3,state["scc"]); state["scc"]=eps[t]["A"]
    if T-LAG>=2:
        for o in eps[0]["M"]+eps[0]["S"]: b.need(posQ[("pre",14)],o)
    e14=[b.add(vexp(vS(14)+r),posQ[("pre",14)]+6+2*r,[QK[("pre",14)][3]],name=f"Ep{r}") for r in range(4)]
    def late(scc,must_bar):
        BAR[NS]=b.barrier(end[NS-1]+1+OPT.get("barx",23)+3-off,[BAR[NS-1]],keep=True,need=set())
        for qb in range(2): bneeds(NS,W[(NS-1,qb)])
        BARX.append(BAR[NS])
        state["R"]=[]
        for k in range(NS-LAG,NS): preads(k)
        must_bar+=state["R"]
        one_ops(NS-1); must_bar.append(LW[T-1])
        for t in range(T-LAG-1,T-1):
            k=3*T+t
            p=posP[(k,0,0)] if k>=NS-LAG else end[NS-1]-8
            eps[t]=ep(t,p-6,p+10,1.2,scc); scc=eps[t]["A"]
        return scc
    last=NS-1
    ctx=dict(dmaprio=5,placed=placed,late=late,scc=state["scc"],c15=[QK[("pre",15)][3]],e14=e14,dmadep=chain+[BAR[last]],
             must_bar=[W[(last,0)],W[(last,1)]],wdep=[BAR[last]],rqdep=[BAR[last]],rqprev=[RQ[(NS,qb,ds)] for qb in range(2) for ds in range(4)],
             pwar={f:[ONE[NS-4+f//2][f%2],W[(NS-4+f//2,f%2)]]+([PV[(NS-4+f//2,f%2,0)][0],PV[(NS-4+f//2,f%2,1)][0]] if ownk(NS-4+f//2) else []) for f in range(8)} if OWN else
                  {0:[ONE[last-1][0],W[(last-1,0)]],1:[ONE[last-1][1],W[(last-1,1)]],2:[ONE[last][0],W[(last,0)]],3:[ONE[last][1],W[(last,1)]],
                   **({f:eps[1]["M"]+eps[1]["S"] for f in range(4,8)} if T-LAG>=3 else {})},
             swar={n:[C[(last,n,pp)] for pp in range(2)] for n in range(4)})
    iter_parts(b,T,T%2,1,1,0,0,1,Ncustom=Ncustom,ctx=ctx,baroff=off)
    b.sops[-1].deps.append(BAR[NS])
    for ds in range(4): b.need(end[last]+1+8-1,RQ[(NS,1,ds)])
    res=b.run(prefix,log,overdue=OPT.get("od",3))
    if OPT["stamp"]==2 and not OPT.get("ps"):
        p0=OPT.get('p0'); pts=[2,3,6,9,13,16,20,23,27] if p0 is None else list(range(p0,p0+9)); o=[]
        for x in res:
            o.append(x)
            for n,k in enumerate(pts):
                if x is BAR[k].ins: o.append(raw(f"{'s_memtime' if OPT.get('cyc') else 's_memrealtime'} s[{78+2*n}:{79+2*n}]"))
        res=o
        if OPT.get("fine"):
            o=[]; on=False; n=0; x_=0
            for x in res:
                if x.kind=="raw" and x.text.startswith("s_mem"): continue
                o.append(x)
                if x is BAR[NS-1].ins: on=True; o.append(raw("s_memtime s[78:79]")); n=1
                if on and x.kind=="mfma":
                    x_+=1
                    if x_%OPT["fine"]==0 and n<9: o.append(raw(f"s_memtime s[{78+2*n}:{79+2*n}]")); n+=1
            res=o
    n=[n for n,x in enumerate(res) if x is BAR[NS-3].ins][0]
    res=res[:n+1]+[label(f"L_merged{off if off else ''}")]+res[n+1:]
    if "spinbar" in OPT:
        n=[n for n,x in enumerate(res) if x is BAR[OPT["spinbar"]].ins][0]
        res=res[:n+1]+stamp(1)+res[n+1:]
    if "spinfrom" in OPT:
        n=[n for n,x in enumerate(res) if x is BAR[OPT["spinfrom"]].ins][0]
        res=res[:n+1]+stamp(0)+res[n+1:]
    if OPT.get("seg"):
        idx=[n for n,x in enumerate(res) if x.kind=="bar"]
        print("step est:",[estimate(res[a:z]) for a,z in zip(idx,idx[1:])],file=sys.stderr)
    return res

class Seq:
    def __init__(s,prefix=()): s.o=list(prefix); s.n0=len(s.o)
    def __call__(s,*ins,slot=True):
        for i in ins:
            if slot and i.kind not in("label","comment","salu","wait","branch","raw","nop"): s.o.append(waitslot())
            k=hazard_need(s.o,i)
            if k>0: s.o.append(nop(k))
            s.o.append(i)
    def out(s): return s.o[s.n0:]

def vop(t,rd,wr): return valu(t,rd,wr)
def prologue():
    q=Seq()
    q(salu("s_cmp_ge_u32 s2, 256",S(2),[SCC]), I("s_cbranch_scc1 L_end","branch",[SCC]))
    if OPT["stamp"]: q(raw("s_memtime s[60:61]"),raw("s_memrealtime s[62:63]"),raw(f"s_load_dwordx2 s[{sDbg}:{sDbg+1}], s[0:1], 32"))
    q(raw("s_load_dwordx4 s[36:39], s[0:1], 0"), raw("s_load_dwordx4 s[40:43], s[0:1], 16"))
    L,Q_,G_,T1,T2,T3=200,201,202,203,204,205
    if OPT.get("warm",2):
        q(raw("s_getpc_b64 s[56:57]"), label("L_pc"), raw("s_and_b32 s57, s57, 0xffff"), raw("s_mov_b32 s58, L_end-L_pc"), raw("s_mov_b32 s59, 0x20000"))
        q(vop(f"v_lshlrev_b32 v{T2}, 7, v0",V(0),V(T2)))
    def warm(ks):
        for k in ks:
            q(raw(f"s_mov_b32 s55, {k*32768}"))
            q(I(f"buffer_load_dword v{240+k}, v{T2}, s[56:59], s55 offen","vld",V(T2),V(240+k)),slot=False)
    nw=OPT.get("warm",2); we=OPT.get("wearly",1)
    warm(range(min(we,nw)))
    if "rw1" in OPT or "rw2" in OPT: q(vop(f"v_mov_b32 v254, v{T2}",V(T2),V(254)))
    q(vop(f"v_and_b32 v{L}, 63, v0",V(0),V(L)), vop(f"v_lshrrev_b32 v{T1}, 6, v0",V(0),V(T1)))
    q(I(f"v_readfirstlane_b32 s{sW}, v{T1}","valu",V(T1),S(sW),meta={"rfl":1}))
    q(vop(f"v_and_b32 v{Q_}, 15, v{L}",V(L),V(Q_)), vop(f"v_lshrrev_b32 v{G_}, 4, v{L}",V(L),V(G_)))
    R_,C_=208,209
    q(vop(f"v_bfe_u32 v{R_}, v{L}, 2, 2",V(L),V(R_)), vop(f"v_and_b32 v{C_}, 3, v{L}",V(L),V(C_)))
    q(salu(f"s_mul_i32 s3, s2, {QBYTES}",S(2),S(3)), salu("s_lshl_b32 s31, s2, 17",S(2),S(31)))
    q(salu(f"s_lshl_b32 s46, s{sW}, 11",S(sW),S(46)), salu(f"s_lshl_b32 s{sKo}, s{sW}, 15",S(sW),S(sKo)))
    q(vop(f"v_lshlrev_b32 v{vQdma}, 8, v{R_}",V(R_),V(vQdma)), vop(f"v_lshl_add_u32 v{vQdma}, v{G_}, 6, v{vQdma}",V(G_)+V(vQdma),V(vQdma)),
      vop(f"v_lshl_add_u32 v{vQdma}, v{C_}, 4, v{vQdma}",V(C_)+V(vQdma),V(vQdma)), vop(f"v_add_u32 v{vQdma}, s46, v{vQdma}",S(46)+V(vQdma),V(vQdma)))
    q(salu(f"s_mul_i32 s47, s{sW}, 2080",S(sW),S(47)), salu(f"s_add_u32 s{sWoff}, s47, {QBASE}",S(47),S(sWoff)))
    q(salu(f"s_sub_u32 s44, s{sKo}, s46",S(sKo)+S(46),S(44)), salu(f"s_mul_i32 s54, s{sW}, {QSLOT}",S(sW),S(54)), salu(f"s_add_u32 s54, s54, {KBASE}",S(54),S(54)))
    for srd,nb in((sQ,QBYTES),(sK,KBYTES),(sV,KBYTES),(sO,QBYTES)):
        q(salu(f"s_mov_b32 s{srd+2}, {nb}",[],S(srd+2)), salu(f"s_mov_b32 s{srd+3}, 0x20000",[],S(srd+3)))
    q(raw("s_waitcnt lgkmcnt(0)"))
    def base(srd,src,off):
        q(salu(f"s_add_u32 s{srd}, s{src}, s{off}",S(src)+S(off),S(srd)), salu(f"s_addc_u32 s{srd+1}, s{src+1}, 0",S(src+1),S(srd+1)),
          salu(f"s_and_b32 s{srd+1}, s{srd+1}, 0xffff",S(srd+1),S(srd+1)))
    ps=lambda n:[raw(f"s_memrealtime s[{78+2*n}:{79+2*n}]")] if OPT.get("ps") else []
    base(sK,38,31); q(*ps(0),*flat(STREAM[:8]),*ps(1),slot=False)
    base(sQ,36,3); q(*flat(STREAM[8:12]),slot=False)
    warm(range(min(we,nw),nw))
    base(sV,40,31); base(sO,42,3)
    if OPT.get("touch"):
        q(vop(f"v_lshlrev_b32 v{T2}, {OPT.get('tsh',12)}, v0",V(0),V(T2)))
        q(vop(f"v_mov_b32 v254, v{T2}",V(T2),V(254)))
        if not OPT.get("tpos"): q(touch_ins(),slot=False)
    for n in range(1,8): q(salu(f"s_add_u32 s{sKo+n}, s{sKo}, {n*4096}",S(sKo),S(sKo+n)))
    q(salu(f"s_add_u32 s{sT}, s47, {QEND}",S(47),S(sT)), salu(f"s_add_u32 s{sQm0}, s{sWoff}, {((T+D)%NQ)*QSLOT}",S(sWoff),S(sQm0)), salu(f"s_mov_b32 s{sQso}, {(T+D)*8192}",[],S(sQso)))
    q(vop(f"v_lshlrev_b32 v{T1}, 2, v{G_}",V(G_),V(T1)), vop(f"v_xor_b32 v{T1}, v{T1}, v{Q_}",V(T1)+V(Q_),V(T1)),
      vop(f"v_lshlrev_b32 v{T1}, 4, v{T1}",V(T1),V(T1)), vop(f"v_lshl_add_u32 v{vVA}, v{G_}, 8, v{T1}",V(G_)+V(T1),V(vVA)))
    q(salu(f"s_lshl_b32 s48, s{sW}, 13",S(sW),S(48)), salu(f"s_add_u32 s{sVm}, s48, {VBASE}",S(48),S(sVm)), salu(f"s_add_u32 s{sVm+1}, s48, {VBASE+4096}",S(48),S(sVm+1)))
    q(*ps(2))
    q(vop(f"v_lshrrev_b32 v{T1}, 2, v{Q_}",V(Q_),V(T1)), vop(f"v_lshlrev_b32 v{vQrd0}, 10, v{T1}",V(T1),V(vQrd0)),
      vop(f"v_lshrrev_b32 v{T1}, 3, v{Q_}",V(Q_),V(T1)), vop(f"v_lshl_add_u32 v{vQrd0}, v{T1}, 5, v{vQrd0}",V(T1)+V(vQrd0),V(vQrd0)),
      vop(f"v_lshl_add_u32 v{vQrd0}, v{C_}, 6, v{vQrd0}",V(C_)+V(vQrd0),V(vQrd0)), vop(f"v_lshl_add_u32 v{vQrd0}, v{G_}, 4, v{vQrd0}",V(G_)+V(vQrd0),V(vQrd0)))
    q(salu(f"s_mov_b32 s{sQrs}, {QBASE+(T%NQ)*QSLOT}",[],S(sQrs))); q(vop(f"v_add_u32 v{vQrd}, {QBASE}, v{vQrd0}",V(vQrd0),V(vQrd)))
    for j in range(4):
        q(salu(f"s_add_u32 s49, s{sW}, {j}",S(sW),S(49)), salu("s_and_b32 s49, s49, 3",S(49),S(49)), salu(f"s_lshl_b32 s{50+j}, s49, 13",S(49),S(50+j)))
        r=vPw if j==0 else vPr[j]
        q(vop(f"v_lshl_add_u32 v{r}, v{L}, 4, s{50+j}",V(L)+S(50+j),V(r)))
    q(salu(f"s_lshl_b32 s49, s{sW}, 6",S(sW),S(49)))
    q(vop(f"v_lshlrev_b32 v{vOst}, 8, v{Q_}",V(Q_),V(vOst)), vop(f"v_lshl_add_u32 v{vOst}, v{G_}, 4, v{vOst}",V(G_)+V(vOst),V(vOst)), vop(f"v_add_u32 v{vOst}, s49, v{vOst}",S(49)+V(vOst),V(vOst)))
    q(vop(f"v_lshrrev_b32 v{T1}, 1, v{G_}",V(G_),V(T1)), vop(f"v_lshl_add_u32 v{T1}, v{T1}, 4, v{Q_}",V(T1)+V(Q_),V(T1)),
      vop(f"v_lshlrev_b32 v{T1}, 4, v{T1}",V(T1),V(T1)), vop(f"v_add_u32 v{vLr}, {LBASE}, v{T1}",V(T1),V(vLr)))
    q(salu(f"s_lshl_b32 s49, s{sW}, 2",S(sW),S(49))); q(vop(f"v_add_u32 v{vLw}, s49, v{vLr}",S(49)+V(vLr),V(vLw)))
    q(vop(f"v_mov_b32 v{vLmax}, 0",[],V(vLmax)))
    q(vop(f"v_mov_b32 v{T1}, 0x3f803f80",[],V(T1)), valu(f"v_cmp_gt_u32 vcc, 8, v{Q_}",V(Q_),[VCC]))
    for r in range(4):
        q(valu(f"v_cndmask_b32 v{vSEL[0]+r}, 0, v{T1}, vcc",V(T1)+[VCC],V(vSEL[0]+r)))
        q(vop(f"v_xor_b32 v{vSEL[1]+r}, v{T1}, v{vSEL[0]+r}",V(T1)+V(vSEL[0]+r),V(vSEL[1]+r)))
    if OPT.get("trunc"): q(salu("s_mov_b32 s74, 0x07060302",[],S(74)))
    q(salu(f"s_mov_b32 s{sO0}, 0",[],S(sO0)), salu(f"s_mov_b32 s{sO1}, 4096",[],S(sO1)))
    q(vop(f"v_lshlrev_b32 v{T1}, 2, v{R_}",V(R_),V(T1)), vop(f"v_add_u32 v{T2}, s49, v{C_}",S(49)+V(C_),V(T2)), vop(f"v_xor_b32 v{T2}, v{T2}, v{T1}",V(T1)+V(T2),V(T2)),
      vop(f"v_lshl_add_u32 v{T3}, v{G_}, 2, v{R_}",V(G_)+V(R_),V(T3)), vop(f"v_lshlrev_b32 v{T3}, 8, v{T3}",V(T3),V(T3)), vop(f"v_lshl_add_u32 v{T3}, v{T2}, 4, v{T3}",V(T2)+V(T3),V(T3)),
      vop(f"v_lshlrev_b32 v{T1}, 4, v{L}",V(L),V(T1)), v2("v_sub_u32",T3,T3,T1), vop(f"v_add_u32 v{vTD}, {VBASE}, v{T3}",V(T3),V(vTD)))
    q(vop(f"v_add_u32 v{vKA}, s54, v{vQrd0}",S(54)+V(vQrd0),V(vKA)))
    q(vop(f"v_lshrrev_b32 v{T1}, 2, v{Q_}",V(Q_),V(T1)), valu(f"v_cmp_eq_u32 vcc, v{T1}, v{G_}",V(T1)+V(G_),[VCC]),
      vop(f"v_and_b32 v{T1}, 1, v{L}",V(L),V(T1)), vop(f"v_lshlrev_b32 v{T1}, 4, v{T1}",V(T1),V(T1)),
      vop(f"v_and_b32 v{T2}, 2, v{L}",V(L),V(T2)), valu(f"v_cmp_eq_u32 s[50:51], 0, v{T2}",V(T2),S(50,2)))
    for lo,cb in enumerate((CHI,CLO)):
        q(vop(f"v_mov_b32 v{T2}, {cb:#x}",[],V(T2)), v2("v_lshlrev_b32",T2,T1,T2), valu(f"v_cndmask_b32 v{T2}, 0, v{T2}, vcc",V(T2)+[VCC],V(T2)),
          valu(f"v_cndmask_b32 v{T3}, 0, v{T2}, s[50:51]",V(T2)+S(50,2),V(T3)), v2("v_xor_b32",T2,T2,T3))
        for half in range(2):
            a=aSC(lo,half)
            q(vop(f"v_accvgpr_write_b32 a{a+2*half}, v{T3}",V(T3),A(a+2*half)), vop(f"v_accvgpr_write_b32 a{a+2*half+1}, v{T2}",V(T2),A(a+2*half+1)),
              vop(f"v_accvgpr_write_b32 a{a+2-2*half}, 0",[],A(a+2-2*half)), vop(f"v_accvgpr_write_b32 a{a+3-2*half}, 0",[],A(a+3-2*half)))
    q(*ps(3))
    return q.out()

def fallback():
    q=Seq()
    q(label("L_fallback"), wait(vm=0,lg=0), bar())
    q(salu(f"s_mov_b32 s{sQso}, 0",[],S(sQso)), salu(f"s_mov_b32 s{sO0}, 0",[],S(sO0)), salu(f"s_mov_b32 s{sO1}, 4096",[],S(sO1)), salu(f"s_mov_b32 s{sLoop}, {NT}",[],S(sLoop)))
    q(vop(f"v_add_u32 v{vQrd}, {QBASE}, v{vQrd0}",V(vQrd0),V(vQrd)))
    MW,MR,T=216,217,218
    q(vop(f"v_mbcnt_lo_u32_b32 v{T}, -1, 0",[],V(T)), vop(f"v_mbcnt_hi_u32_b32 v{T}, -1, v{T}",V(T),V(T)),
      vop(f"v_and_b32 v{MR}, 15, v{T}",V(T),V(MR)), vop(f"v_lshlrev_b32 v{MR}, 6, v{MR}",V(MR),V(MR)), vop(f"v_add_u32 v{MR}, {MBASE}, v{MR}",V(MR),V(MR)),
      vop(f"v_lshrrev_b32 v{T}, 4, v{T}",V(T),V(T)), vop(f"v_lshl_add_u32 v{MW}, v{T}, 2, v{MR}",V(T)+V(MR),V(MW)))
    q(salu(f"s_lshl_b32 s49, s{sW}, 4",S(sW),S(49))); q(vop(f"v_add_u32 v{MW}, s49, v{MW}",S(49)+V(MW),V(MW)))
    q(label("L_fb_loop"))
    q(salu(f"s_mov_b32 m0, s{sWoff}",S(sWoff),[M0])); q(dma(vQdma,sQ,sQso,0),dma(vQdma,sQ,sQso,1024)); q(wait(vm=0),bar())
    for qb in range(2):
        for ds in range(4): q(dsr128(vQ(qb,ds),vQrd,qb*4160+ds*256))
    Sb=lambda kb,qb:64+(kb*2+qb)*4
    Pf=lambda f:128+f*4
    for kb in range(8):
        for qb in range(2):
            for ds in range(4): q(mfma(Sb(kb,qb),aK(kb,ds),vQ(qb,ds),None if ds==0 else Sb(kb,qb)))
    Mx=[220,221]; RD=224
    for qb in range(2):
        q(v2("v_max_f32",Mx[qb],Sb(0,qb),Sb(0,qb)+1))
        regs=[Sb(kb,qb)+r for kb in range(8) for r in range(4)][2:]
        for x in range(0,30,2): q(vop(f"v_max3_f32 v{Mx[qb]}, v{Mx[qb]}, v{regs[x]}, v{regs[x+1]}",V(Mx[qb])+V(regs[x])+V(regs[x+1]),V(Mx[qb])))
        q(dsw32(MW,Mx[qb],qb*1024))
    q(bar())
    for qb in range(2):
        for x in range(4): q(dsr128(RD+4*x,MR,qb*1024+16*x))
        q(v2("v_max_f32",Mx[qb],RD,RD+1))
        for x in range(2,16,2): q(vop(f"v_max3_f32 v{Mx[qb]}, v{Mx[qb]}, v{RD+x}, v{RD+x+1}",V(Mx[qb])+V(RD+x)+V(RD+x+1),V(Mx[qb])))
    for kb in range(8):
        for qb in range(2):
            for r in range(4): q(v2("v_sub_f32",Sb(kb,qb)+r,Sb(kb,qb)+r,Mx[qb]),slot=False)
            for r in range(4): q(vexp(Sb(kb,qb)+r),slot=False)
            for p2 in range(2): q(vcvt(Pf(2*(kb//2)+qb)+2*(kb%2)+p2,Sb(kb,qb)+2*p2,Sb(kb,qb)+2*p2+1),slot=False)
    for f in range(8): q(dsw128(vPw,Pf(f),f*1024))
    for qb in range(2):
        for kp in range(4): q(mfma(vLacc,vSEL[qb],Pf(2*kp+qb),None if (kp==0 and qb==0) else vLacc,afile='v'))
    q(dsw32(vLw,vLacc,0)); q(bar())
    for qb in range(2):
        for db in range(2):
            for kp in range(4): q(mfma(vO(0,qb,db),aV(0,kp,db),Pf(2*kp+qb),None if kp==0 else vO(0,qb,db)))
    for j in range(1,4):
        for qb in range(2):
            for k in range(4): q(dsr128(RD+4*k,vPr[j],(2*k+qb)*1024))
            for db in range(2):
                for kp in range(4): q(mfma(vO(0,qb,db),aV(j,kp,db),RD+4*kp,vO(0,qb,db)))
    q(dsr128(vLrd,vLr,0)); q(v2("v_add_f32",vLrd,vLrd,vLrd+1),v2("v_add_f32",vLrd+2,vLrd+2,vLrd+3),v2("v_add_f32",vLrd,vLrd,vLrd+2))
    q(valu(f"v_rcp_f32 v{vR0}, v{vLrd}",V(vLrd),V(vR0),"trans"), vop(f"v_mov_b32 v{vR1}, v{vR0}",V(vR0),V(vR1)),
      valu(f"v_permlane32_swap_b32 v{vR0}, v{vR1}",V(vR0)+V(vR1),V(vR0)+V(vR1),"perm"))
    for qb in range(2):
        for db in range(2):
            for p2 in range(2):
                r=vO(0,qb,db)+2*p2; R=vR0 if qb==0 else vR1
                q(v2("v_mul_f32",r,r,R),v2("v_mul_f32",r+1,r+1,R),vcvt(vOut(qb)+2*db+p2,r,r+1))
        q(vst(vOut(qb),vOst,sO,sO0 if qb==0 else sO1))
    q(salu(f"s_add_u32 s{sO0}, s{sO0}, 8192",S(sO0),S(sO0)), salu(f"s_add_u32 s{sO1}, s{sO1}, 8192",S(sO1),S(sO1)), salu(f"s_add_u32 s{sQso}, s{sQso}, 8192",S(sQso),S(sQso)))
    q(wait(vm=0,lg=0),bar())
    q(salu(f"s_sub_u32 s{sLoop}, s{sLoop}, 1",S(sLoop),S(sLoop)), salu(f"s_cmp_lg_u32 s{sLoop}, 0",S(sLoop),[SCC]), I("s_cbranch_scc1 L_fb_loop","branch",[SCC]))
    return q.out()

def stamp(n):
    if OPT["stamp"]==2: return [raw(f"s_memrealtime s[{76+2*n}:{77+2*n}]")] if n in(0,) else ([raw("s_memrealtime s[98:99]")] if n==1 else [])
    return [raw(f"s_memtime s[{76+4*n}:{77+4*n}]"),raw(f"s_memrealtime s[{78+4*n}:{79+4*n}]")] if OPT["stamp"] else []

def build():
    logs={}
    pro=prologue()+stamp(0)
    def it(i,par,cur,nxt,pv,ep,prefix,**kw):
        lg=[]; r=iteration(i,par,cur,nxt,pv,ep,(i+D<NT) or kw.get("force_dma"),prefix,log=lg,**{k:v for k,v in kw.items() if k!="force_dma"}); logs[i]=lg; return [comment(f"---- iteration {i}")]+r
    U=OPT.get("U",2); nst=40-(T+1); trips=nst//U; rem=nst-trips*U
    stag=OPT.get("stag",0); ncopy=OPT.get("ncopy",4) if stag else 1
    sst=OPT.get("sstag",0)
    disp=[]
    for cp in range(ncopy-1,0,-1):
        disp+=[salu(f"s_cmp_ge_u32 s{sW}, {cp*(4//ncopy)}",S(sW),[SCC]), I(f"s_cbranch_scc1 L_copy{cp}","branch",[SCC])]
    def mk0(off):
        lg=[]; r=[comment("---- start-up steps + merged iteration")]+startup(pro,lg,off); logs[0]=lg
        return r+[salu(f"s_mov_b32 s{sLoop}, {trips}",[],S(sLoop))]+([] if "spinbar" in OPT else stamp(1))
    def mkend(prev,off):
        r=[]
        for u in range(rem):
            x=it(40-rem+u,(40-rem+u)%2,1,1,1,1,prev,force_dma=True,baroff=off); prev=x; r+=x
        x=stamp(2)+it(40,0,1,0,1,1,prev,ctx={"eager":1},baroff=off)
        return r,x
    if not sst: i0=mk0(0)
    allb=[]; paths=[]; body_rem=[]
    for cp in range(ncopy):
        if sst: i0=mk0(stag*cp)
        body=[]; prev=i0
        for u in range(U):
            x=it(T+1+u,(T+1+u)%2,1,1,1,1,prev,force_dma=True,loopctl=f"L_loop{cp}" if (u==U-1 and trips>1) else None,baroff=stag*cp); body+=x; prev=x
            if u==0: ia=x
            if u==1: ib=x
        if sst or cp==0: br,i40=mkend(prev,stag*cp if sst else 0)
        paths.append(i0+body*min(trips,3)+br+i40)
        allb+=[label(f"L_copy{cp}")]+(i0 if sst else [])+[raw(f".p2align {OPT.get('al',6)}"),label(f"L_loop{cp}")]+body+(br+i40 if sst else [])
        body_rem+=body+br
        if cp<ncopy-1: allb+=[I("s_branch L_after","branch")]
    allb+=[label("L_after")]
    lg=[]; i41=[comment("---- drain")]+drain(41,i40,lg); logs[41]=lg; i42=[]; i1=[]
    main=pro+(disp if sst else i0+disp)+allb+([] if sst else br+i40)+i41
    fin=Seq(i41+i42)
    fin(salu(f"s_mov_b32 s49, {HI:#x}",[],S(49)))
    fin(valu(f"v_cmp_lt_u32 vcc, s49, v{vLmax}",S(49)+V(vLmax),[VCC]))
    fin(nop(5), I("s_cbranch_vccnz L_fallback","branch",[VCC]))
    if OPT["stamp"]==2 and OPT.get("all"):
        fin(raw("s_waitcnt vmcnt(0)"),raw("s_memrealtime s[100:101]"),raw("s_waitcnt lgkmcnt(0)"),raw(f"s_cmp_lg_u32 s{sW}, 0"),raw("s_cbranch_scc1 L_end"))
        fin(raw(f"s_and_b32 s{sDbg+1}, s{sDbg+1}, 0xffff"),raw(f"s_mov_b32 s{sDbg+2}, 4096"),raw(f"s_mov_b32 s{sDbg+3}, 0x20000"))
        fin(raw("s_getreg_b32 s3, hwreg(HW_REG_XCC_ID)"),raw("s_and_b32 s3, s3, 7"),raw("s_and_b32 s55, s62, 0xffffff"),raw("s_lshl_b32 s3, s3, 24"),raw("s_or_b32 s3, s3, s55"),raw("v_mov_b32 v200, s3"))
        for n,r in enumerate((82,98,100)): fin(raw(f"s_sub_u32 s3, s{r}, s62"),raw(f"v_mov_b32 v{201+n}, s3"))
        fin(raw("s_lshl_b32 s3, s2, 4"),raw("v_mov_b32 v220, s3"),raw("s_mov_b64 exec, 1"),raw(f"buffer_store_dwordx4 v[200:203], v220, s[{sDbg}:{sDbg+3}], 0 offen"))
    elif OPT["stamp"]==2:
        fin(raw("s_waitcnt vmcnt(0)"),raw("s_memrealtime s[100:101]"),raw("s_waitcnt lgkmcnt(0)"))
        fin(raw("s_and_b32 s3, s2, 63"),raw("s_cmp_lg_u32 s3, 0"),raw("s_cbranch_scc1 L_end"),raw(f"s_cmp_lg_u32 s{sW}, 0"),raw("s_cbranch_scc1 L_end"))
        fin(raw(f"s_and_b32 s{sDbg+1}, s{sDbg+1}, 0xffff"),raw(f"s_mov_b32 s{sDbg+2}, 256"),raw(f"s_mov_b32 s{sDbg+3}, 0x20000"))
        for n in range(13): fin(raw(f"s_sub_u32 s3, s{76+2*n}, s62"),raw(f"v_mov_b32 v{200+n}, s3"))
        fin(raw("s_lshr_b32 s3, s2, 6"),raw("s_lshl_b32 s3, s3, 6"),raw("v_mov_b32 v220, s3"),raw("s_mov_b64 exec, 1"))
        for n in range(4): fin(raw(f"buffer_store_dwordx4 v[{200+4*n}:{203+4*n}], v220, s[{sDbg}:{sDbg+3}], 0 offen offset:{16*n}"))
    elif OPT["stamp"]:
        fin(*stamp(3)); fin(raw("s_waitcnt vmcnt(0)")); fin(*stamp(4)); fin(raw("s_waitcnt lgkmcnt(0)"))
        sp=OPT.get("spin")
        if sp is not None:
            ex={0:["s_mov_b32 s3, 0"],1:["s_sub_u32 s3, s78, s62","s_lshl_b32 s3, s3, 2"],2:["s_sub_u32 s3, s86, s82"],3:["s_sub_u32 s3, s94, s62"],
                4:["s_sub_u32 s3, s84, s80","s_lshr_b32 s3, s3, 4"],5:["s_sub_u32 s3, s82, s62","s_lshl_b32 s3, s3, 2"],6:["s_sub_u32 s3, s82, s78","s_lshl_b32 s3, s3, 3"],7:["s_sub_u32 s3, s80, s76","s_lshr_b32 s3, s3, 1"],8:["s_sub_u32 s3, s94, s86","s_lshl_b32 s3, s3, 3"]}[sp]
            for e in ex: fin(raw(e))
            fin(raw("s_add_u32 s3, s3, 15000"),label("L_spin"),raw("s_memrealtime s[98:99]"),raw("s_waitcnt lgkmcnt(0)"),raw("s_sub_u32 s98, s98, s62"),raw("s_cmp_lt_u32 s98, s3"),raw("s_cbranch_scc1 L_spin"))
        fin(raw("s_and_b32 s3, s2, 31"),raw("s_cmp_lg_u32 s3, 0"),raw("s_cbranch_scc1 L_end"),raw(f"s_cmp_lg_u32 s{sW}, 0"),raw("s_cbranch_scc1 L_end"))
        fin(raw(f"s_and_b32 s{sDbg+1}, s{sDbg+1}, 0xffff"),raw(f"s_mov_b32 s{sDbg+2}, 256"),raw(f"s_mov_b32 s{sDbg+3}, 0x20000"))
        for n in range(4): fin(raw(f"s_sub_u32 s3, s{76+4*(n+1 if n==3 else n)}, s60"),raw(f"v_mov_b32 v{200+2*n}, s3"),raw(f"s_sub_u32 s3, s{78+4*(n+1 if n==3 else n)}, s62"),raw(f"v_mov_b32 v{201+2*n}, s3"))
        fin(raw("s_lshr_b32 s3, s2, 5"),raw("s_lshl_b32 s3, s3, 5"),raw("v_mov_b32 v208, s3"),raw("s_mov_b64 exec, 1"),
            raw(f"buffer_store_dwordx4 v[200:203], v208, s[{sDbg}:{sDbg+3}], 0 offen"),raw(f"buffer_store_dwordx4 v[204:207], v208, s[{sDbg}:{sDbg+3}], 0 offen offset:16"))
    fin(raw("s_endpgm"))
    fb=fallback()
    ool=[]
    if "rw2" in OPT:
        for cp in range(ncopy): ool+=[label(f"L_loop{cp}_rw")]+rewarm("L_after")+[raw(f"s_branch L_loop{cp}_rwb")]
    static=main+fin.out()+ool+fb+[label("L_end"),raw("s_endpgm")]
    dyns=[pro+p+i41+fin.out() for p in paths]
    for rep in range(2):
        for dyn in dyns: resolve_waits(dyn)
    k=[x for x,y in enumerate(fb) if y.text=="L_fb_loop"][0]
    dynf=fb+fb[k:]
    resolve_waits(dynf)
    for name,d in [("main",d) for d in dyns]+[("fallback",dynf)]:
        bad=check_hazards(d)
        for b in bad: print("HAZARD",name,b,file=sys.stderr)
        assert not bad
        print(name,"max outstanding",max_outstanding(d),file=sys.stderr)
    for nm,sq in(("i0",i0),("i1",i1),("ia",ia),("ib",ib),("i40",i40),("i41",i41),("i42",i42)):
        print(nm,"est cycles",estimate(sq),"nops",sum(1 for x in sq if x.kind=="nop"),"instrs",sum(1 for x in sq if states(x)),file=sys.stderr)
    if "log" in OPT: print("\n".join(logs[OPT["log"]]),file=sys.stderr)
    abl=str(OPT.get("abl","")).split("+")
    if abl!=[""]:
        loop=set(map(id,body_rem)) if not OPT.get('abs') else set(map(id,i0[len(i0)//4:]))
        def drop(x):
            if id(x) not in loop: return False
            t=x.text
            return (("st" in abl and x.kind=="vst") or ("dma" in abl and x.kind=="dma") or ("pr" in abl and x.kind=="dsr" and 128<=min(r[1] for r in x.wr)<160)
              or ("qr" in abl and x.kind=="dsr" and 32<=min(r[1] for r in x.wr)<64) or ("pw" in abl and x.kind=="dsw") or ("exp" in abl and t.startswith("v_exp"))
              or ("cvt" in abl and t.startswith("v_cvt")) or ("one" in abl and x.kind=="mfma" and x.name.startswith("ONE")) or ("bar" in abl and x.kind=="bar")
              or ("mul" in abl and t.startswith("v_mul")) or ("valu" in abl and x.kind in VALU_KINDS) or ("qk" in abl and x.kind=="mfma" and x.name.startswith("QK"))
              or ("pv" in abl and x.kind=="mfma" and x.name.startswith("PV")) or ("wait" in abl and x.kind=="wslot") or ("ks" in abl and (t.startswith("v_accvgpr") or t.startswith("v_pk_mul") or t.startswith("v_and") or t.startswith("v_lshlrev"))))
        static=[x for x in static if not drop(x)]
        static=[x for x in static if x.text!="s_cbranch_vccnz L_fallback"]
    if OPT.get("fake"): static=[x for x in static if x.text!="s_cbranch_vccnz L_fallback"]
    if OPT.get("swap"):
        import re as _re
        for x in body_rem:
            if x.kind=="mfma" and any(x.name.startswith(p) for p in OPT["swap"].split("+")):
                m=_re.match(r"(\S+ [^,]+), ([^,]+), ([^,]+), (.*)",x.text); x.text=f"{m[1]}, {m[3]}, {m[2]}, {m[4]}"
        static=[x for x in static if x.text!="s_cbranch_vccnz L_fallback"]
    hdr=open("standalone__mha_softmax__near_ridge.s.ref").read().split("; Override launch")[0]
    txt=hdr+f"""; One workgroup (4 waves) per head.  K (scaled once by log2(e)/sqrt(D)) and V^T stay in AGPRs: wave w owns keys
; 128w..128w+127 for S^T = K.Q^T and output columns 32w..32w+31 for O^T = V^T.P^T (16x16x32 bf16 MFMA); P and the row sums
; are exchanged through LDS, one barrier per 32-row query tile.  The first tiles are processed key-chunk by key-chunk while
; K and V stream in.  Softmax shift: the fast path shifts by 0; every row sum l is checked at run time (2^-48 <= l <= 2^48,
; inf/NaN included) and if any row leaves that range the whole head is recomputed with the true row max (L_fallback).
; @launch grid=(256,1,1) block=(256,1,1) lds={LDS_BYTES}
.amdgcn_target "amdgcn-amd-amdhsa--gfx950"
.text
.globl {NAME}
.p2align 8
.type {NAME},@function
{NAME}:
"""+emit(static)+f""".section .rodata,"a"
.p2align 6
.amdhsa_kernel {NAME}
  .amdhsa_next_free_vgpr 512
  .amdhsa_next_free_sgpr 102
  .amdhsa_accum_offset 256
  .amdhsa_group_segment_fixed_size 0
  .amdhsa_kernarg_size 48
  .amdhsa_user_sgpr_count 2
  .amdhsa_user_sgpr_kernarg_segment_ptr 1
  .amdhsa_system_sgpr_workgroup_id_x 1
.end_amdhsa_kernel
"""
    return txt

if __name__=="__main__":
    open(sys.argv[1],"w").write(build())
```

```python
import sys, struct, math
from core import *
from sched import *

NAME="standalone__mha_softmax__near_ridge_kernel"
NT=41
QBYTES=335872; KBYTES=131072
OPT=dict(D=4, st="sc0+sc1", ld="nt", stamp=0, wsplit=0, stag=3, ncopy=2)
for a in sys.argv[2:]:
    k,v=a.split("="); OPT[k]=int(v) if v.lstrip("-").isdigit() else v
D=OPT["D"]; NQ=7; T=OPT.get("T",5); LAG=OPT.get("lag",4); LAG0=OPT.get('lag0',3)
STF=(" "+OPT["st"].replace("+"," ")) if OPT["st"]!="none" else ""
LDF=(" "+OPT["ld"].replace("+"," ")) if OPT["ld"]!="none" else ""
QSLOT=8320; PB=[0,33280]; KBASE=PB[T%2]; QBASE=2*33280; QEND=QBASE+NQ*QSLOT; VBASE=QEND; LBASE=VBASE+32768; MBASE=LBASE+1024; LDS_BYTES=LBASE+4096
vQrd,vQrd0,vPw,vPr,vQdma,vOst,vLw,vLr=1,2,3,[None,4,5,6],7,8,9,10
vLmax,vLmin,vR0,vR1,vT=11,12,13,14,15
vLrd,vLacc,vSEL=16,20,[24,28]
vQ=lambda qb,ds:32+qb*16+ds*4
vS=lambda n:64+(n%8)*4
vP=lambda f:96+f*4
vRing=lambda s,k:128+(s%2)*16+k*4
vO=lambda st,qb,db:160+st*16+qb*8+db*4
vOut=lambda qb:192+qb*4
aK=lambda kb,ds:(kb*4+ds)*4
aV=lambda j,kp,db:128+((j*4+kp)*2+db)*4
sQ,sK,sV,sO=4,8,12,16
sW,sLoop,sQso,sQm0,sQrs,sO0,sO1,sT,sC=20,21,22,23,24,25,26,27,28
sWoff=30; sDbg=32
M0=('m0',0); VCC=('vcc',0); SCC=('scc',0)
CSCALE=struct.unpack("<I",struct.pack("<f",math.log2(math.e)/math.sqrt(128.0)))[0]
def bf16(x):
    u=struct.unpack("<I",struct.pack("<f",x))[0]; return (u+0x7fff+((u>>16)&1))>>16
CF=math.log2(math.e)/math.sqrt(128.0); CHI=bf16(CF); CLO=bf16(CF-struct.unpack("<f",struct.pack("<I",CHI<<16))[0])
HI=(127+48)<<23

def dsr128(dst,addr,off,file='v',name=None): return I(f"ds_read_b128 {rs(file,dst,4)}, v{addr} offset:{off}","dsr",V(addr),[(file,dst+i) for i in range(4)],name=name)
def dsw128(addr,src,off): return I(f"ds_write_b128 v{addr}, {rs('v',src,4)} offset:{off}","dsw",V(addr)+V(src,4),[],cost=20)
def dsw64(addr,src,off): return I(f"ds_write_b64 v{addr}, {rs('v',src,2)} offset:{off}","dsw",V(addr)+V(src,2),[],cost=12)
def dsw32(addr,src,off): return I(f"ds_write_b32 v{addr}, v{src} offset:{off}","dsw",V(addr)+V(src),[],cost=8)
def dma(voff,srd,soff,off,flag=LDF): return I(f"buffer_load_dwordx4 v{voff}, s[{srd}:{srd+3}], s{soff} offen offset:{off}{flag} lds","dma",V(voff)+S(srd,4)+S(soff)+[M0],[])
def vld(dst,voff,srd,soff,off,flag=LDF): return I(f"buffer_load_dwordx4 {rs('v',dst,4)}, v{voff}, s[{srd}:{srd+3}], s{soff} offen offset:{off}{flag}","vld",V(voff)+S(srd,4)+S(soff),V(dst,4))
def vst(src,voff,srd,soff,flag=STF): return I(f"buffer_store_dwordx4 {rs('v',src,4)}, v{voff}, s[{srd}:{srd+3}], s{soff} offen{flag}","vst",V(src,4)+V(voff)+S(srd,4)+S(soff),[],meta={"data":V(src,4)})
def vexp(r): return valu(f"v_exp_f32 v{r}, v{r}",V(r),V(r),"trans")
def vcvt(d,a,b): return valu(f"v_cvt_pk_bf16_f32 v{d}, v{a}, v{b}",V(a)+V(b),V(d))
def vcvtp(d,a,b):
    if OPT.get("trunc"): return valu(f"v_perm_b32 v{d}, v{b}, v{a}, s74",V(a)+V(b)+S(74),V(d))
    return vcvt(d,a,b)
def v2(op,d,a,b): return valu(f"{op} v{d}, v{a}, v{b}",V(a)+V(b),V(d))
def bar(**m): return I("s_barrier","bar",meta=m)
def label(t): return I(t,"label")
def comment(t): return I(t,"comment")

def chain_info(n):
    f=(n//2+1)%8; h=n%2
    return f,h,2*(f//2)+h,f%2
def s_block(f,h):
    return (2*((f-1)%8)+h)

class Bld:
    def __init__(s): s.bb=[]; s.ops=[]; s.sops=[]; s.mdeps={}; s.slots=set(); s.tail=[]
    def group(s,g):
        p=len(s.bb); s.bb+=g; s.slots.add(len(s.bb)-1); return p
    def add(s,ins,prio,deps=(),earliest=0,name=None):
        o=Op(ins,prio,deps,earliest,name); s.ops.append(o); return o
    def adds(s,ins,prio,deps=(),name=None,earliest=0):
        o=Op(ins,prio,deps,earliest,name); s.sops.append(o); return o
    def need(s,idx,o): s.mdeps.setdefault(max(idx,0),[]).append(o)
    def barrier(s,gap,deps,keep=False,**meta):
        if keep and gap in s.slots: gap-=1; o=s.adds(bar(**meta),-1,deps,name="BAR",earliest=gap); s.slots.add(gap-1); return o
        o=s.adds(bar(**meta),-1,deps,name="BAR",earliest=max(gap,0)); s.slots.discard(gap); s.slots.add(gap-1); return o
    def run(s,prefix,log=None,overdue=None): return schedule(s.bb,s.ops,s.sops,s.mdeps,prefix,s.slots,s.tail,log,overdue,fill=OPT.get('fill',1))

def qdma_ops(b,t0,deps,tag=None,scc=()):
    m=b.adds(salu(f"s_mov_b32 m0, s{sQm0}",S(sQm0),[M0]),t0-2,deps,name="m0")
    QF=(" "+OPT["lq"].replace("+"," ") if OPT["lq"]!="none" else "") if "lq" in OPT else LDF
    d0=b.add(dma(vQdma,sQ,sQso,0,QF),t0,[m],name="DMA0"); d1=b.add(dma(vQdma,sQ,sQso,1024,QF),t0+4,[d0],name="DMA1")
    d0.ins.cost=d1.ins.cost=OPT.get("dmac",8); d0.ins.tag=d1.ins.tag=tag
    b1=b.adds(salu(f"s_add_u32 s{sQm0}, s{sQm0}, {QSLOT}",S(sQm0),S(sQm0)+[SCC]),t0+10,[m]+list(scc),name="qm+")
    b2=b.adds(salu(f"s_cmp_eq_u32 s{sQm0}, s{sT}",S(sQm0)+S(sT),[SCC]),t0+11,[b1],name="qm?")
    b3=b.adds(salu(f"s_cselect_b32 s{sQm0}, s{sWoff}, s{sQm0}",S(sQm0)+S(sWoff)+[SCC],S(sQm0)),t0+12,[b2],name="qm=")
    b4=b.adds(salu(f"s_add_u32 s{sQso}, s{sQso}, 8192",S(sQso),S(sQso)+[SCC]),t0+14,[d1,b3],name="qso+")
    return d1,b4

def epilogue_ops(b,Ob,loff,t0,tm,dt,ldeps,odeps,prev,scc,sc=1.0,tg=""):
    lr=b.add(dsr128(vLrd,vLr,loff),t0,list(ldeps)+prev.get("L",[]),name="LR"+tg)
    a=b.add(v2("v_add_f32",vLrd,vLrd,vLrd+1),t0+11*sc,[lr],name="La")
    bb_=b.add(v2("v_add_f32",vLrd+2,vLrd+2,vLrd+3),t0+11.5*sc,[lr],name="Lb")
    c=b.add(v2("v_add_f32",vLrd,vLrd,vLrd+2),t0+12*sc,[a,bb_],name="Lc")
    rc=b.add(valu(f"v_rcp_f32 v{vR0}, v{vLrd}",V(vLrd),V(vR0),"trans"),t0+13*sc,[c]+prev.get("M",[]),name="RCP")
    x1=x2=b.add(valu(f"v_max3_u32 v{vLmax}, v{vLmax}, v{vLrd}, v{vR0}",V(vLmax)+V(vLrd)+V(vR0),V(vLmax)),t0+14.5*sc,[rc],name="chk")
    mv=b.add(valu(f"v_mov_b32 v{vR1}, v{vR0}",V(vR0),V(vR1)),t0+14*sc,[rc],name="MOV")
    sw=b.add(valu(f"v_permlane32_swap_b32 v{vR0}, v{vR1}",V(vR0)+V(vR1),V(vR0)+V(vR1),"perm"),t0+15*sc,[mv,x1],name="SWP")
    t=tm; sts=[]; muls=[]
    if OPT.get("pa") and not tg and odeps is None:
        b.ops.remove(mv); b.ops.remove(sw)
        rw=b.add(dsw32(vLw,vR0,3072),t0+14*sc,[rc],name="RW")
        rr=[b.add(dsr128(248+4*(qb),vLr,3072+16*qb),t0+16*sc+qb,[rw],name="RR") for qb in range(2)]
        for qb in range(2):
            for r in range(4):
                m0_=b.add(v2("v_mul_f32",Ob(qb,0)+r,Ob(qb,0)+r,248+4*qb+r),t,[rr[qb]],name=f"M"); t+=dt
                m1_=b.add(v2("v_mul_f32",Ob(qb,1)+r,Ob(qb,1)+r,248+4*qb+r),t,[rr[qb]],name=f"M"); t+=dt
                cv=b.add(vcvt(vOut(qb)+r,Ob(qb,0)+r,Ob(qb,1)+r),t,[m0_,m1_],name="OC"); t+=dt
                st_=b.add(I(f"buffer_store_dword v{vOut(qb)+r}, v0, s[{sO}:{sO+3}], s{sO0 if qb==0 else sO1} offen offset:{r*256}{STF}","vst",V(vOut(qb)+r)+V(0)+S(sO,4)+S(sO0 if qb==0 else sO1),[],cost=8),t,[cv],name="ST")
                if r==3: sts.append(st_)
    for qb in range(2 if not sts else 0):
        cv=[]
        for db in range(2):
            od=[odeps[(qb,db)]] if odeps else []
            for p2 in range(2):
                r=Ob(qb,db)+2*p2; R=vR0 if qb==0 else vR1
                m0_=b.add(v2("v_mul_f32",r,r,R),t,[sw]+od,name=f"M{qb}{db}{2*p2}"); t+=dt
                m1_=b.add(v2("v_mul_f32",r+1,r+1,R),t,[sw]+od,name=f"M{qb}{db}{2*p2+1}"); t+=dt
                muls+=[m0_,m1_]
                cv.append(b.add(vcvt(vOut(qb)+2*db+p2,r,r+1),t,[m0_,m1_]+prev.get("S",[]),name=f"OC{qb}{db}{p2}")); t+=dt
        fl=STF if not (tg.startswith("t") and "st0" in OPT) else ("" if OPT["st0"]=="none" else " "+OPT["st0"].replace("+"," "))
        sts.append(b.add(vst(vOut(qb),vOst,sO,sO0 if qb==0 else sO1,fl),t,cv+prev.get("A",[]),name=f"ST{qb}"+tg)); sts[-1].ins.cost=OPT.get("stc",8)
    e1=b.adds(salu(f"s_add_u32 s{sO0}, s{sO0}, 8192",S(sO0),S(sO0)+[SCC]),t+1,[sts[0]]+list(scc),name="o0+")
    e2=b.adds(salu(f"s_add_u32 s{sO1}, s{sO1}, 8192",S(sO1),S(sO1)+[SCC]),t+2,[sts[1],e1],name="o1+")
    return {"L":[rc,x1,x2],"M":muls,"S":sts,"A":[e2]}

def iter_parts(b, i, par, cur, nxt, pv, ep, dodma, last_bar=True, loopctl=None, baroff=0, Ncustom=None, ctx=None):
    ctx=ctx or {}
    base=len(b.bb)
    def qk(n):
        f,h,kb,qb=chain_info(n)
        return [mfma(vS(n),aK(kb,ds),vQ(qb,ds),None if ds==0 else vS(n),name=f"QK{n}.{ds}") for ds in range(4)]
    so=1-par
    def pvo(qb,db): return [mfma(vO(so,qb,db),aV(0,kp,db),vP(2*kp+qb),None if kp==0 else vO(so,qb,db),name=f"PVo{qb}{db}.{kp}") for kp in range(4)]
    def one(qb): return [mfma(vLacc,vSEL[qb],vP(2*kp+qb),None if (kp==0 and qb==0) else vLacc,afile='v',name=f"ONE{qb}.{kp}") for kp in range(4)]
    sets=[(1,0),(1,1),(2,0),(2,1),(3,0),(3,1)]
    def pvx(s,db):
        j,qb=sets[s]
        return [mfma(vO(so,qb,db),aV(j,kp,db),vRing(s,kp),vO(so,qb,db),name=f"PVx{s}{db}.{kp}") for kp in range(4)]
    N=[("pvo",0,0),("pvo",0,1),("one",0),("pvo",1,0),("pvo",1,1),("one",1)]+[("pvx",s,db) for s in range(6) for db in range(2)]
    if Ncustom: N=[("cus",x) for x in range(18)]
    order=[N[0],N[1]]
    for n in range(16): order+=[("qk",n),N[n+2]]
    if ctx.get("eager"): order[-3],order[-2]=order[-2],order[-3]
    fk=OPT.get("fake",0) if (cur and nxt and pv and ep and not Ncustom) else 0
    if fk:
        order=[]; n=0; x=0
        while x<18 or n<16:
            order+=N[x:x+fk]; x+=fk
            order+=[("qk",m) for m in range(n,min(n+fk,16))]; n+=fk
    G={}; pos={}
    for key in order:
        if key[0]=="qk":
            n=key[1]
            if n>=14 and not nxt and cur and ctx.get("eager"):
                key=("eone",n-14); g=[mfma(vLacc,vSEL[n-14],vP(2*kp+n-14),None if (kp==0 and n==14) else vLacc,afile='v',name=f"eONE{n-14}.{kp}") for kp in range(4)]
            elif not (nxt if n>=14 else cur): continue
            else: g=qk(n)
        elif key[0]=="cus":
            g=Ncustom(key[1])
            if not g: continue
        else:
            if not pv: continue
            g={"pvo":pvo,"one":one,"pvx":pvx}[key[0]](*key[1:])
        if fk and key[0]!="qk" and OPT.get("fakeacc",1):
            d=vO(so,0,0)+4*((N.index(key)//fk)%4)
            for m in g:
                t=m.text.split(", "); t[0]=t[0].split(" ")[0]+f" v[{d}:{d+3}]"; t[3]=f"v[{d}:{d+3}]"; m.text=", ".join(t)
        G[key]=g; pos[key]=b.group(g)
        if key[0]=="cus": ctx["placed"](key[1],pos[key])
    nb=len(b.bb)-base
    nom={}; p=0
    for key in order: nom[key]=p; p+=4
    scale=(nb/136.0) if nb else 0
    import bisect
    alias={("qk",14):("eone",0),("qk",15):("eone",1)}
    pts=sorted((nom[k],pos[k if k in pos else alias[k]]) for k in nom if (k in pos or alias.get(k) in pos))
    def P(t):
        j=max(bisect.bisect_right(pts,(t,1<<30))-1,0)
        n0,a0=pts[j]; a1=pts[j+1][1] if j+1<len(pts) else 1<<30
        return min(a0+(t-n0),a1+(t-n0)*1e-3) if t>=n0 else a0+(t-n0)
    def add(ins,prio,deps=(),earliest=0,name=None):
        o=b.add(ins,P(prio),deps,int(P(earliest)) if earliest else base,name); o.nomp=prio; return o
    def adds(ins,prio,deps=(),name=None,earliest=0): return b.adds(ins,P(prio),deps,name,int(P(earliest)) if earliest else base)
    def need(key,k,o): b.need(pos[key]+k,o)
    rel=lambda o:o.nomp
    must_bar=list(ctx.get("must_bar",[]))
    scc=list(ctx.get("scc",[]))
    E={}
    for n in list(range(16))+[-1]:
        if n==15: continue
        if n==-1:
            if not cur: continue
            blk=vS(15); dep=ctx.get("c15",[]); t0=0
        else:
            if ("qk",n) not in G: continue
            blk=vS(n); dep=[G[("qk",n)][3]]; t0=nom[("qk",n)]+6
        for r in range(4):
            E[(n,r)]=add(vexp(blk+r),t0+2*r,dep,name=f"E{n}.{r}")
            if n>=0: E[(n,r)].prio=pos[("qk",n)]+6+2*r
    if cur:
        for f in range(8):
            qb=f%2; kp=f//2
            war=[G[k][kp] for k in (("pvo",qb,0),("pvo",qb,1),("one",qb)) if k in G]+ctx.get("pwar",{}).get(f,[])
            C=[]
            for h in range(2):
                n=s_block(f,h)
                en = -1 if n==15 else n
                for p2 in range(2):
                    deps=list(war)
                    if f==0 and h==0: t=1+p2; deps+=ctx.get("e14",[])
                    else:
                        deps+=[E[(en,2*p2)],E[(en,2*p2+1)]]; t=rel(E[(en,2*p2+1)])+1
                    c=add(vcvtp(vP(f)+2*h+p2,vS(n)+2*p2,vS(n)+2*p2+1),t,deps,name=f"C{f}.{2*h+p2}")
                    if not (f==0 and h==0): c.prio=E[(en,2*p2+1)].prio+1
                    C.append(c)
                    if ("eone",qb) in G: need(("eone",qb),kp,c)
                    nn=(n+8)%16
                    if ("qk",nn) in G and (n>=14 or n<8): need(("qk",nn),0,c)
            off=PB[par]+f*1024
            if str(f) in str(OPT.get("w32","")).replace("f",""):
                for x in range(4):
                    w=add(dsw32(vPw,vP(f)+x,off+4*x),rel(C[x])+1,[C[x]]+ctx.get("wdep",[]),name=f"W{f}.{x}"); must_bar.append(w)
            elif str(f) in str(OPT.get("w64","")).replace("f",""):
                for x in range(2):
                    w=add(dsw64(vPw,vP(f)+2*x,off+8*x),rel(C[2*x+1])+1,C[2*x:2*x+2]+ctx.get("wdep",[]),name=f"W{f}.{x}"); must_bar.append(w)
            else:
                w=add(dsw128(vPw,vP(f),off),rel(C[3])+1,C+ctx.get("wdep",[]),name=f"W{f}"); must_bar.append(w); w.prio=C[3].prio+1
        for n,ds_ in ctx.get("swar",{}).items():
            for o in ds_: need(("qk",n),0,o)
    if pv:
        for s,(j,qb) in enumerate(sets):
            for k in range(4):
                deps=[G[("pvx",s-2,1)][k]] if s>=2 else []
                t=nom[("pvx",s,0)]-14+k if s>=2 else s*4+k
                o=add(dsr128(vRing(s,k),vPr[j],PB[so]+(2*k+qb)*1024),t,deps,name=f"R{s}.{k}")
                need(("pvx",s,0),-1,o); must_bar.append(o)
        lw=add(dsw32(vLw,vLacc,so*512),nom[("one",1)]+8,[G[("one",1)][3]],name="LW"); must_bar.append(lw)
        if ("eone",0) in G:
            need(("eone",0),0,lw)
            must_bar.append(add(dsw32(vLw,vLacc,par*512),0,[G[("eone",1)][3]],name="eLW"))
    if nxt:
        a1=adds(salu(f"s_add_u32 s{sQrs}, s{sQrs}, {QSLOT}",S(sQrs),S(sQrs)+[SCC]),40,scc,name="qr+")
        a2=adds(salu(f"s_cmp_eq_u32 s{sQrs}, {QEND}",S(sQrs),[SCC]),41,[a1],name="qr?")
        a3=adds(salu(f"s_cselect_b32 s{sQrs}, {QBASE}, s{sQrs}",S(sQrs)+[SCC],S(sQrs)),42,[a2],name="qr=")
        scc=[a3]
        upd=add(valu(f"v_add_u32 v{vQrd}, s{sQrs}, v{vQrd0}",S(sQrs)+V(vQrd0),V(vQrd)),80,[a3]+ctx.get("rqprev",[]),name="qupd")
        for qb in range(2):
            lastn=11 if qb==0 else 13
            for ds in range(4):
                deps=[upd]+([G[("qk",lastn)][ds]] if ("qk",lastn) in G else [])+ctx.get("rqdep",[])
                o=add(dsr128(vQ(qb,ds),vQrd,qb*4160+ds*256),nom[("qk",lastn)]+1+ds,deps,name=f"RQ{qb}.{ds}")
                if qb==0: need(("qk",14),-1,o)
    if dodma:
        d1,b4=qdma_ops(b,P(ctx.get("dmaprio",50)),ctx.get("dmadep",[]),scc=scc); scc=[b4]
    if ep:
        e=epilogue_ops(b,lambda qb,db:vO(par,qb,db),par*512,P(-1),P(OPT.get("ept",24)),OPT.get("epdt",3.2)*scale,[],None,{},scc,sc=scale); scc=e["A"]
    if "late" in ctx: scc=ctx["late"](scc,must_bar)
    if loopctl:
        if "rw2" in OPT:
            w1=adds(salu(f"s_cmp_eq_u32 s{sLoop}, {OPT['rw2']}",S(sLoop),[SCC]),124,scc,name="rw?",earliest=124)
            w2=adds(salu(f"s_cbranch_scc1 {loopctl}_rw\n{loopctl}_rwb:",[SCC],[]),125,[w1],name="rwb",earliest=125); scc=[w2]
        c1=adds(salu(f"s_sub_u32 s{sLoop}, s{sLoop}, 1",S(sLoop),S(sLoop)+[SCC]),128,scc,name="lp-",earliest=128)
        c2=adds(salu(f"s_cmp_lg_u32 s{sLoop}, 0",S(sLoop),[SCC]),129,[c1],name="lp?",earliest=129)
        b.tail=[I(f"s_cbranch_scc1 {loopctl}","branch",[SCC])]
    b.slots.discard(base+nb-1)
    if last_bar: b.barrier(base+nb-1-baroff,must_bar,keep_dma=2*(D-2),all_ds=1)

def iteration(i, par, cur, nxt, pv, ep, dodma, prefix, log=None, **kw):
    b=Bld(); iter_parts(b,i,par,cur,nxt,pv,ep,dodma,**kw); return b.run(prefix,log)

def drain(i,prefix,log):
    b=Bld(); so=(i-1)%2; par=i%2
    ring=[128,144,64,80,32,48]; last={}
    for qb in range(2):
        for j in range(4):
            s_=qb*3+j-1
            for db in range(2):
                d=vO(so,qb,db)
                g=[mfma(d,aV(j,kp,db),vP(2*kp+qb) if j==0 else ring[s_]+4*kp,None if (j==0 and kp==0) else d,name=f"PV{qb}{j}{db}.{kp}") for kp in range(4)]
                p=b.group(g); last[(qb,db)]=g[3]
                if j and db==0:
                    for k in range(4): b.need(p-1,b.add(dsr128(ring[s_]+4*k,vPr[j],PB[so]+(2*k+qb)*1024),s_*2+k/2,name=f"R{s_}.{k}"))
    e=epilogue_ops(b,lambda qb,db:vO(par,qb,db),par*512,-1,10,0.7,[],None,{},[],sc=0.5)
    epilogue_ops(b,lambda qb,db:vO(so,qb,db),so*512,20,34,0.7,[],last,e,e["A"],sc=0.3,tg="z")
    return b.run(prefix,log)

vOs=[80,112][:T-LAG-1]+[vO(T%2,0,0)]+[200,216,232][:LAG-1]+[vO(1-T%2,0,0)]
vLs=lambda t:248+t
sKo=64
sVm=72
vKA,vVA,vTB,vTD=255,0,192,15
def kdma_units(c):
    u=[]
    for pr in range(4):
        for n in range(2):
            d=dma(vQdma,sK,45,n*1024); d.tag=f"K{c}"
            u.append(([salu(f"s_add_u32 m0, s54, {(pr//2)*4160+(pr%2)*2080}",S(54),[M0,SCC]), salu(f"s_add_u32 s45, s44, {c*8192+pr*2048}",S(44),S(45)+[SCC])] if n==0 else [])+[d])
    return u
def qdma_units(t):
    d0=dma(vQdma,sQ,46,0); d1=dma(vQdma,sQ,46,1024); d0.tag=d1.tag=f"Q{t}"
    return [[salu(f"s_add_u32 m0, s{sWoff}, {(t%NQ)*QSLOT}",S(sWoff),[M0,SCC]),salu(f"s_mov_b32 s46, {t*8192}",[],S(46)),d0],[d1]]
def vdma_units(c):
    u=[]
    for hf in range(2):
        for n in range(4):
            d=dma(vVA,sV,sKo+2*c+hf,n*1024); d.tag=f"V{c}"
            u.append(([salu(f"s_mov_b32 m0, s{sVm+hf}",S(sVm+hf),[M0])] if n==0 else [])+[d])
    return u
flat=lambda u:[x for y in u for x in y]
STREAM=kdma_units(0)+qdma_units(0)+qdma_units(1)+qdma_units(2)+vdma_units(0)+flat([qdma_units(t) for t in range(3,T)])+kdma_units(1)
NPRO=OPT.get("npro",20)
def kread(c):
    o=[dsr128(aK(2*c+h,ds),vKA,h*4160+ds*256,file='a') for h in range(2) for ds in range(4)]
    for x in o: x.meta["tags"]={f"K{c}"}
    return o
aSC=lambda lo,half:aV(lo,3,half)
vKT=[192,196,vLrd]
def rewarm(lbl): return [raw(f"s_mov_b32 s55, {lbl}-L_pc"), I("buffer_load_dword v253, v254, s[56:59], s55 offen","vld",V(254),V(253))]
def touch_ins(): return I(f"buffer_load_dword v253, v254, s[{sO}:{sO+3}], 0 offen nt","vld",V(254)+S(sO,4),V(253))
def ksops(c,j):
    a=aK(2*c+j//8,(j//2)%4)+2*(j%2); d=vKT[j%3]
    return [vcvt(d,d,d+1),vcvt(d+1,d+2,d+3)]+[vop(f"v_accvgpr_write_b32 a{a+x}, v{d+x}",V(d+x),A(a+x)) for x in range(2)]
def kscale(c,extra=None):
    o=[]
    for j in range(16):
        a=aK(2*c+j//8,(j//2)%4); d=vKT[j%3]; x=ksops(c,j-2) if j>=2 else [nop(2),None,nop(2),None]
        if j%2==0: o.append(waitslot())
        o+=[mfma(d,aSC(0,j%2),a,None,bfile='a',name="KSh")]+(extra(j) if extra else [])+x[:2]+[mfma(d,aSC(1,j%2),a,d,bfile='a',name="KSl")]+x[2:]
    return [i for i in o if i is not None]
def startup(prefix,log,off=0):
    b=Bld(); NS=4*T
    Sb=lambda n:64+(n%4)*4
    OWN=OPT.get("own",1) and T-LAG<=2
    Pw=lambda k,qb:96+((k%(4 if OWN else 2))*2+qb)*4
    ownk=lambda k:OWN and k<NS-OPT.get("ownskip",2)
    ent=lambda k,qb:PB[T%2 if (LAG>3 and 3*T<=k<NS-LAG) else 1-T%2]+((k%4)*2+qb)*1024
    assert LAG<=3 or all(k%4 for k in range(3*T,NS-LAG))
    pvstep=lambda k:k+(LAG0 if k<3*T else LAG)
    pvof={pvstep(k):k for k in range(NS)}
    QK={}; PV={}; ONE={}; start={}; end={}; posQ={}; posP={}; posO={}
    def pvg(k,qb,db):
        c,t=divmod(k,T); d=vOs[t]+qb*8+db*4
        return [mfma(d,aV(j,c,db),Pw(k,qb) if (ownk(k) and j==0) else vRing(2*k+qb,j),None if (c==0 and j==0) else d,name=f"PV{k}.{qb}{db}.{j}") for j in range(4)]
    def oneg(k): return [mfma(vLacc,vSEL[0],Pw(k,0),None,afile='v',name=f"ONE{k}.0"),mfma(vLacc,vSEL[1],Pw(k,1),vLacc,afile='v',name=f"ONE{k}.1")]
    for k in range(NS):
        c,t=divmod(k,T)
        start[k]=len(b.bb)
        for ch in range(4):
            kb=2*c+ch%2; qb=ch//2; n=4*k+ch
            QK[(k,ch)]=[mfma(Sb(n),aK(kb,ds),vQ(qb,ds),None if ds==0 else Sb(n),name=f"QK{k}.{ch}.{ds}") for ds in range(4)]
            posQ[(k,ch)]=b.group(QK[(k,ch)])
            if k in pvof:
                key=(pvof[k],ch//2,ch%2); PV[key]=pvg(*key); posP[key]=b.group(PV[key])
            if ch==2 and k>=1: ONE[k-1]=oneg(k-1); posO[k-1]=b.group(ONE[k-1])
        if k==NS-1:
            for n in(14,15):
                f,h,kb,qb=chain_info(n)
                QK[("pre",n)]=[mfma(vS(n),aK(kb,ds),vQ(qb,ds),None if ds==0 else vS(n),name=f"QKp{n}.{ds}") for ds in range(4)]
                posQ[("pre",n)]=b.group(QK[("pre",n)])
        end[k]=len(b.bb)-1
    cus={}
    x=0
    for k in range(NS-LAG,NS):
        for qb in range(2):
            for db in range(2):
                PV[(k,qb,db)]=pvg(k,qb,db); cus[x]=("pv",(k,qb,db)); x+=1
                if x==3: ONE[NS-1]=oneg(NS-1); cus[x]=("one",NS-1); x+=1
    nskip=18-len(cus); hi=OPT.get("skiphi",14)
    skip=set(hi-2*j for j in range(nskip)); slots_=[y for y in range(18) if y not in skip]
    cus={slots_[y]:v for y,v in cus.items()}
    def Ncustom(x):
        if x not in cus: return None
        return PV[cus[x][1]] if cus[x][0]=="pv" else ONE[cus[x][1]]
    def placed(x,p):
        (posP if cus[x][0]=="pv" else posO)[cus[x][1]]=p
    BAR={}; W={}; C={}; LA={}; LW={}; RQ={}; TR={}; E={}
    bdeps={k:[] for k in range(NS)}; btags={k:set() for k in range(NS)}; bneed={k:[] for k in range(NS)}
    for k in range(NS): BAR[k]=b.barrier(end[k]-off,[],tags=btags[k],need=set())
    def bneeds(k,o): BAR[k].deps.append(o); BAR[k].ins.meta["need"].add(id(o.ins))
    for k in range(1,NS): BAR[k].deps.append(BAR[k-1])
    state={"scc":[],"dma":[],"ep":{}}
    def softmax(k):
        c,t=divmod(k,T)
        for ch in range(4):
            n=4*k+ch; qb=ch//2; h=ch%2
            for r in range(4): E[(k,ch,r)]=b.add(vexp(Sb(n)+r),posQ[(k,ch)]+6+2*r,[QK[(k,ch)][3]],name=f"E{k}.{ch}.{r}")
            for p2 in range(2):
                deps=[E[(k,ch,2*p2)],E[(k,ch,2*p2+1)]]
                if OWN:
                    if k>=4: deps+=[ONE[k-4][qb],W[(k-4,qb)],PV[(k-4,qb,0)][0],PV[(k-4,qb,1)][0]]
                elif k>=2: deps+=[ONE[k-2][qb],W[(k-2,qb)]]
                o=b.add(vcvtp(Pw(k,qb)+2*h+p2,Sb(n)+2*p2,Sb(n)+2*p2+1),E[(k,ch,2*p2+1)].prio+1,deps,name=f"C{k}.{ch}.{p2}")
                C[(k,ch,p2)]=o
                if k+1<NS: b.need(posQ[(k+1,ch)],o)
            if h==1:
                W[(k,qb)]=b.add(dsw128(vPw,Pw(k,qb),ent(k,qb)),C[(k,ch,1)].prio+1,[C[(k,cc,pp)] for cc in(ch-1,ch) for pp in range(2)]+([BAR[pvstep(k-4)]] if (k>=4 and pvstep(k-4)<k and ent(k,0)==ent(k-4,0)) else [])+([BAR[k-3]] if k>NS-LAG else []),name=f"W{k}.{qb}")
                if k+1<NS: bneeds(k+1,W[(k,qb)])
    for k in range(NS): softmax(k)
    def one_ops(k):
        c,t=divmod(k,T)
        for cc in range(4):
            for pp in range(2): b.need(posO[k],C[(k,cc,pp)])
        if k>=1: b.need(posO[k],LA[k-1])
        ins=valu(f"v_mov_b32 v{vLs(t)}, v{vLacc}",V(vLacc),V(vLs(t))) if c==0 else v2("v_add_f32",vLs(t),vLs(t),vLacc)
        LA[k]=b.add(ins,posO[k]+6,[ONE[k][1]],name=f"LA{k}")
        if c==3:
            LW[t]=b.add(dsw32(vLw,vLs(t),((T-1)%2)*512 if t==T-1 else 1024+t*512),posO[k]+8,[LA[k]],name=f"LW{t}")
            if k+1<NS: bneeds(k+1,LW[t])
    for k in range(NS-1): one_ops(k)
    def preads(k):
        for qb in range(2):
            for j in range(1 if ownk(k) else 0,4):
                deps=[BAR[k+1]]+([PV[(k-1,qb,1)][j]] if k>=1 else [])
                o=b.add(dsr128(vRing(2*k+qb,j),vPw if j==0 else vPr[j],ent(k,qb)),posP[(k,qb,0)]-OPT.get('rlead',12)+j,deps,name=f"R{k}.{qb}.{j}")
                b.need(posP[(k,qb,0)]-1,o); state.setdefault("R",[]).append(o)
    for k in range(NS-LAG): preads(k)
    for k in range(NS+1):
        t=k%T if k<NS else T%NQ
        for qb in range(2):
            for ds in range(4):
                deps=[QK[(k-1,2*qb+1)][ds]] if k>=1 else []
                if 2<=k<T: deps.append(BAR[k-2]); btags[k-2].add(f"Q{k}")
                if k==NS: deps.append(BAR[NS-2]); btags[NS-2].add(f"Q{T}")
                pr=(posQ[(k-1,2*qb+1)]+1+ds) if k>=1 else 14+4*qb+ds
                o=b.add(dsr128(vQ(qb,ds),vQrd,t*QSLOT+qb*4160+ds*256),pr,deps,name=f"RQ{k}.{qb}.{ds}"); RQ[(k,qb,ds)]=o
                if k<NS: b.need(posQ[(k,2*qb)]-1,o)
                elif qb==0: b.need(posQ[("pre",14)]-1,o)
    btags[NS-1].add(f"Q{T+1}")
    state["chain"]=[]; hard={0,1}
    def issue(units,where,deps,nm):
        for u,(k,fr) in zip(units,where):
            tt=int(start[k]+fr*(end[k]-start[k])); prev=list(deps)+state["chain"]+state["scc"]
            nd=[x.kind for x in u].index("dma")
            for x,ins in enumerate(u):
                if ins.kind=="salu": o=b.adds(ins,tt+x-nd-3,prev,name="s"+nm,earliest=tt+x-nd-3 if x<nd else 0)
                else: o=b.add(ins,tt,prev,earliest=tt,name=nm); ins.cost=OPT.get("sdmac",8)
                prev=[o]
            state["chain"]=prev; state["scc"]=prev
            if k in hard: BAR[k].deps.append(prev[0])
    def spread(n,k0,per):
        w=[]; k=k0
        while len(w)<n:
            m=min(per,n-len(w)); w+=[(k,(x+0.5)/per) for x in range(m)]; k+=1
        return w
    kchain=[]
    def extra(j):
        o=flat(STREAM[12+(NPRO-12)*j//16:12+(NPRO-12)*(j+1)//16])
        if j==9: o+=[waitslot(),bar(tags={"Q0","Q1"},need=set())]
        if 10<=j<14: o+=[RQ[(0,(j-10)//2,2*(j%2)+x)].ins for x in range(2)]
        return o
    for qb in range(2):
        for ds in range(4): o=RQ[(0,qb,ds)]; b.ops.remove(o); o.done=True; o.gap=-1
    ks0=b.add([waitslot()]+kread(0)+kscale(0,extra)+[waitslot()],0,[],name="KS0"); b.need(0,ks0)
    rest=STREAM[NPRO:]
    n0=OPT.get("n0",4); n1=OPT.get("n1",10)
    w=[(0,(x+0.5)/n0) for x in range(n0)]+[(1,OPT.get('f1',30)/100+0.5*x/n1) for x in range(n1)]
    w=w[:len(rest)]; w+=spread(len(rest)-len(w),2,2)
    issue(rest,w,[ks0],"D")
    lastk=w[-1][0]
    for c in range(4):
        s1=pvstep(c*T)-1
        btags[s1-1].add(f"V{c}")
        p0=start[c*T]
        if c==0: ks=ks0
        else:
            kr=[b.add(ins,p0-14+x,kchain,earliest=p0-16,name=f"KR{c}") for x,ins in enumerate(kread(c))]
            ks=b.add(kscale(c),p0,kr+state["TR"],name=f"KS{c}"); b.need(p0,ks)
        aw=[]
        for j in(14,15):
            x=ksops(c,j); prev=[ks]
            for n,ins in enumerate(x): o=b.add(ins,p0-8+j-14+n*0.1,prev,name="Kx"); prev=[o]; aw.append(o); b.need(posQ[(c*T,1)],o)
        state["KS"]=aw
        if OPT.get("rw1",-1)==c:
            x=rewarm("L_merged"); x[0].kind="salu"
            o0=b.adds(x[0],p0-2,[ks],name="sRW"); state["chain"]=[b.add(x[1],p0,[o0]+state["chain"],name="RW")]
        if OPT.get("touch") and OPT.get("tpos")==c: state["chain"]=[b.add(touch_ins(),p0,[ks]+state["chain"],name="TOUCH")]
        if 1<=c<3: issue(kdma_units(c+1),spread(8,c*T,OPT.get("kper",6)),[ks],f"KD{c+1}")
        kchain=state["chain"]
        state["TR"]=[]
        for j in range(4):
            r=vPw if j==0 else vPr[j]
            tb=b.add(v2("v_add_u32",vTB+j,vTD,r),start[s1-1]+j,state.get("KS",[]),earliest=start[s1-1],name="TB")
            for db in range(2):
                for hf in range(2):
                    a=aV(j,c,db)+2*hf
                    o=b.add(I(f"ds_read_b64_tr_b16 a[{a}:{a+1}], v{vTB+j} offset:{hf*4096+8*db}","dsr",V(vTB+j),A(a,2)),start[s1]+j*4+db*2+hf,[BAR[s1-1],tb],name=f"TR{c}")
                    b.need(posP[(c*T,0,0)]-1,o); bneeds(s1,o); state["TR"].append(o)
        if c<3: issue(vdma_units(c+1),(spread(8,max(s1+1,lastk,OPT.get("v1",0)),OPT.get("v1per",6)) if c==0 else spread(8,s1+1,OPT.get("vper",6))),[BAR[s1]],f"VD{c+1}")
    state["ep"]={"L":state["KS"],"S":state["TR"]}
    for x in range(D):
        t=T+x; k=min(max(3*T+1+t-NQ,3*T-1+x*OPT.get("qstep",1)+OPT.get("q0",0)),NS-1)
        issue(qdma_units(t),[(k,0.25),(k,0.6)],[BAR[3*T+t-NQ]] if t>=NQ else [],"QD")
    chain=state["chain"]
    def ep(t,t0,tm,dt,scc):
        k=3*T+t
        od={(qb,db):PV[(k,qb,db)][3] for qb in range(2) for db in range(2)}
        e=epilogue_ops(b,lambda qb,db:vOs[t]+qb*8+db*4,1024+t*512,t0,tm,dt,[BAR[k+1]],od,state["ep"],scc,sc=0.5,tg=f"t{t}")
        state["ep"]=e; return e
    eps={}; BARX=[]
    for t in range(T-LAG-1+0):
        k=3*T+t+LAG
        eps[t]=ep(t,start[k]+8,start[k]+20,1.3,state["scc"]); state["scc"]=eps[t]["A"]
    if T-LAG>=2:
        for o in eps[0]["M"]+eps[0]["S"]: b.need(posQ[("pre",14)],o)
    e14=[b.add(vexp(vS(14)+r),posQ[("pre",14)]+6+2*r,[QK[("pre",14)][3]],name=f"Ep{r}") for r in range(4)]
    def late(scc,must_bar):
        BAR[NS]=b.barrier(end[NS-1]+1+OPT.get("barx",23)+3-off,[BAR[NS-1]],keep=True,need=set())
        for qb in range(2): bneeds(NS,W[(NS-1,qb)])
        BARX.append(BAR[NS])
        state["R"]=[]
        for k in range(NS-LAG,NS): preads(k)
        must_bar+=state["R"]
        one_ops(NS-1); must_bar.append(LW[T-1])
        for t in range(T-LAG-1,T-1):
            k=3*T+t
            p=posP[(k,0,0)] if k>=NS-LAG else end[NS-1]-8
            p+=OPT.get("epd",0)*(t-(T-LAG-1))
            eps[t]=ep(t,p-6,p+10,OPT.get("epdt0",12)/10,scc); scc=eps[t]["A"]
        return scc
    last=NS-1
    ctx=dict(dmaprio=5,placed=placed,late=late,scc=state["scc"],c15=[QK[("pre",15)][3]],e14=e14,dmadep=chain+[BAR[last]],
             must_bar=[W[(last,0)],W[(last,1)]],wdep=[BAR[last]],rqdep=[BAR[last]],rqprev=[RQ[(NS,qb,ds)] for qb in range(2) for ds in range(4)],
             pwar={f:[ONE[NS-4+f//2][f%2],W[(NS-4+f//2,f%2)]]+([PV[(NS-4+f//2,f%2,0)][0],PV[(NS-4+f//2,f%2,1)][0]] if ownk(NS-4+f//2) else []) for f in range(8)} if OWN else
                  {0:[ONE[last-1][0],W[(last-1,0)]],1:[ONE[last-1][1],W[(last-1,1)]],2:[ONE[last][0],W[(last,0)]],3:[ONE[last][1],W[(last,1)]],
                   **({f:eps[1]["M"]+eps[1]["S"] for f in range(4,8)} if T-LAG>=3 else {})},
             swar={n:[C[(last,n,pp)] for pp in range(2)] for n in range(4)})
    iter_parts(b,T,T%2,1,1,0,0,1,Ncustom=Ncustom,ctx=ctx,baroff=off)
    b.sops[-1].deps.append(BAR[NS])
    for ds in range(4): b.need(end[last]+1+8-1,RQ[(NS,1,ds)])
    res=b.run(prefix,log,overdue=OPT.get("od",3))
    if OPT["stamp"]==2 and not OPT.get("ps"):
        p0=OPT.get('p0'); pts=[2,3,6,9,13,16,20,23,27] if p0 is None else list(range(p0,p0+9)); o=[]
        for x in res:
            o.append(x)
            for n,k in enumerate(pts):
                if x is BAR[k].ins: o.append(raw(f"{'s_memtime' if OPT.get('cyc') else 's_memrealtime'} s[{78+2*n}:{79+2*n}]"))
        res=o
        if OPT.get("fine"):
            o=[]; on=False; n=0; x_=0
            for x in res:
                if x.kind=="raw" and x.text.startswith("s_mem"): continue
                o.append(x)
                if x is BAR[NS-1].ins: on=True; o.append(raw("s_memtime s[78:79]")); n=1
                if on and x.kind=="mfma":
                    x_+=1
                    if x_%OPT["fine"]==0 and n<9: o.append(raw(f"s_memtime s[{78+2*n}:{79+2*n}]")); n+=1
            res=o
    n=[n for n,x in enumerate(res) if x is BAR[NS-3].ins][0]
    res=res[:n+1]+[label(f"L_merged{off if off else ''}")]+res[n+1:]
    if "spinbar" in OPT:
        n=[n for n,x in enumerate(res) if x is BAR[OPT["spinbar"]].ins][0]
        res=res[:n+1]+stamp(1)+res[n+1:]
    if "spinfrom" in OPT:
        n=[n for n,x in enumerate(res) if x is BAR[OPT["spinfrom"]].ins][0]
        res=res[:n+1]+stamp(0)+res[n+1:]
    if OPT.get("seg"):
        idx=[n for n,x in enumerate(res) if x.kind=="bar"]
        print("step est:",[estimate(res[a:z]) for a,z in zip(idx,idx[1:])],file=sys.stderr)
    return res

class Seq:
    def __init__(s,prefix=()): s.o=list(prefix); s.n0=len(s.o)
    def __call__(s,*ins,slot=True):
        for i in ins:
            if slot and i.kind not in("label","comment","salu","wait","branch","raw","nop"): s.o.append(waitslot())
            k=hazard_need(s.o,i)
            if k>0: s.o.append(nop(k))
            s.o.append(i)
    def out(s): return s.o[s.n0:]

def vop(t,rd,wr): return valu(t,rd,wr)
def prologue():
    q=Seq()
    q(salu("s_cmp_ge_u32 s2, 256",S(2),[SCC]), I("s_cbranch_scc1 L_end","branch",[SCC]))
    if OPT["stamp"]: q(raw("s_memtime s[60:61]"),raw("s_memrealtime s[62:63]"),raw(f"s_load_dwordx2 s[{sDbg}:{sDbg+1}], s[0:1], 32"))
    q(raw("s_load_dwordx4 s[36:39], s[0:1], 0"), raw("s_load_dwordx4 s[40:43], s[0:1], 16"))
    L,Q_,G_,T1,T2,T3=200,201,202,203,204,205
    if OPT.get("warm",2):
        q(raw("s_getpc_b64 s[56:57]"), label("L_pc"), raw("s_and_b32 s57, s57, 0xffff"), raw("s_mov_b32 s58, L_end-L_pc"), raw("s_mov_b32 s59, 0x20000"))
        q(vop(f"v_lshlrev_b32 v{T2}, 7, v0",V(0),V(T2)))
    def warm(ks):
        for k in ks:
            q(raw(f"s_mov_b32 s55, {k*32768}"))
            q(I(f"buffer_load_dword v{240+k}, v{T2}, s[56:59], s55 offen","vld",V(T2),V(240+k)),slot=False)
    nw=OPT.get("warm",2); we=OPT.get("wearly",1)
    warm(range(min(we,nw)))
    if "rw1" in OPT or "rw2" in OPT: q(vop(f"v_mov_b32 v254, v{T2}",V(T2),V(254)))
    q(vop(f"v_and_b32 v{L}, 63, v0",V(0),V(L)), vop(f"v_lshrrev_b32 v{T1}, 6, v0",V(0),V(T1)))
    q(I(f"v_readfirstlane_b32 s{sW}, v{T1}","valu",V(T1),S(sW),meta={"rfl":1}))
    q(vop(f"v_and_b32 v{Q_}, 15, v{L}",V(L),V(Q_)), vop(f"v_lshrrev_b32 v{G_}, 4, v{L}",V(L),V(G_)))
    R_,C_=208,209
    q(vop(f"v_bfe_u32 v{R_}, v{L}, 2, 2",V(L),V(R_)), vop(f"v_and_b32 v{C_}, 3, v{L}",V(L),V(C_)))
    q(salu(f"s_mul_i32 s3, s2, {QBYTES}",S(2),S(3)), salu("s_lshl_b32 s31, s2, 17",S(2),S(31)))
    q(salu(f"s_lshl_b32 s46, s{sW}, 11",S(sW),S(46)), salu(f"s_lshl_b32 s{sKo}, s{sW}, 15",S(sW),S(sKo)))
    q(vop(f"v_lshlrev_b32 v{vQdma}, 8, v{R_}",V(R_),V(vQdma)), vop(f"v_lshl_add_u32 v{vQdma}, v{G_}, 6, v{vQdma}",V(G_)+V(vQdma),V(vQdma)),
      vop(f"v_lshl_add_u32 v{vQdma}, v{C_}, 4, v{vQdma}",V(C_)+V(vQdma),V(vQdma)), vop(f"v_add_u32 v{vQdma}, s46, v{vQdma}",S(46)+V(vQdma),V(vQdma)))
    q(salu(f"s_mul_i32 s47, s{sW}, 2080",S(sW),S(47)), salu(f"s_add_u32 s{sWoff}, s47, {QBASE}",S(47),S(sWoff)))
    q(salu(f"s_sub_u32 s44, s{sKo}, s46",S(sKo)+S(46),S(44)), salu(f"s_mul_i32 s54, s{sW}, {QSLOT}",S(sW),S(54)), salu(f"s_add_u32 s54, s54, {KBASE}",S(54),S(54)))
    for srd,nb in((sQ,QBYTES),(sK,KBYTES),(sV,KBYTES),(sO,QBYTES)):
        q(salu(f"s_mov_b32 s{srd+2}, {nb}",[],S(srd+2)), salu(f"s_mov_b32 s{srd+3}, 0x20000",[],S(srd+3)))
    q(raw("s_waitcnt lgkmcnt(0)"))
    def base(srd,src,off):
        q(salu(f"s_add_u32 s{srd}, s{src}, s{off}",S(src)+S(off),S(srd)), salu(f"s_addc_u32 s{srd+1}, s{src+1}, 0",S(src+1),S(srd+1)),
          salu(f"s_and_b32 s{srd+1}, s{srd+1}, 0xffff",S(srd+1),S(srd+1)))
    ps=lambda n:[raw(f"s_memrealtime s[{78+2*n}:{79+2*n}]")] if OPT.get("ps") else []
    base(sK,38,31); q(*ps(0),*flat(STREAM[:8]),*ps(1),slot=False)
    base(sQ,36,3); q(*flat(STREAM[8:12]),slot=False)
    warm(range(min(we,nw),nw))
    base(sV,40,31); base(sO,42,3)
    if OPT.get("touch"):
        q(vop(f"v_lshlrev_b32 v{T2}, {OPT.get('tsh',12)}, v0",V(0),V(T2)))
        q(vop(f"v_mov_b32 v254, v{T2}",V(T2),V(254)))
        if not OPT.get("tpos"): q(touch_ins(),slot=False)
    for n in range(1,8): q(salu(f"s_add_u32 s{sKo+n}, s{sKo}, {n*4096}",S(sKo),S(sKo+n)))
    q(salu(f"s_add_u32 s{sT}, s47, {QEND}",S(47),S(sT)), salu(f"s_add_u32 s{sQm0}, s{sWoff}, {((T+D)%NQ)*QSLOT}",S(sWoff),S(sQm0)), salu(f"s_mov_b32 s{sQso}, {(T+D)*8192}",[],S(sQso)))
    q(vop(f"v_lshlrev_b32 v{T1}, 2, v{G_}",V(G_),V(T1)), vop(f"v_xor_b32 v{T1}, v{T1}, v{Q_}",V(T1)+V(Q_),V(T1)),
      vop(f"v_lshlrev_b32 v{T1}, 4, v{T1}",V(T1),V(T1)), vop(f"v_lshl_add_u32 v{vVA}, v{G_}, 8, v{T1}",V(G_)+V(T1),V(vVA)))
    q(salu(f"s_lshl_b32 s48, s{sW}, 13",S(sW),S(48)), salu(f"s_add_u32 s{sVm}, s48, {VBASE}",S(48),S(sVm)), salu(f"s_add_u32 s{sVm+1}, s48, {VBASE+4096}",S(48),S(sVm+1)))
    q(*ps(2))
    q(vop(f"v_lshrrev_b32 v{T1}, 2, v{Q_}",V(Q_),V(T1)), vop(f"v_lshlrev_b32 v{vQrd0}, 10, v{T1}",V(T1),V(vQrd0)),
      vop(f"v_lshrrev_b32 v{T1}, 3, v{Q_}",V(Q_),V(T1)), vop(f"v_lshl_add_u32 v{vQrd0}, v{T1}, 5, v{vQrd0}",V(T1)+V(vQrd0),V(vQrd0)),
      vop(f"v_lshl_add_u32 v{vQrd0}, v{C_}, 6, v{vQrd0}",V(C_)+V(vQrd0),V(vQrd0)), vop(f"v_lshl_add_u32 v{vQrd0}, v{G_}, 4, v{vQrd0}",V(G_)+V(vQrd0),V(vQrd0)))
    q(salu(f"s_mov_b32 s{sQrs}, {QBASE+(T%NQ)*QSLOT}",[],S(sQrs))); q(vop(f"v_add_u32 v{vQrd}, {QBASE}, v{vQrd0}",V(vQrd0),V(vQrd)))
    for j in range(4):
        q(salu(f"s_add_u32 s49, s{sW}, {j}",S(sW),S(49)), salu("s_and_b32 s49, s49, 3",S(49),S(49)), salu(f"s_lshl_b32 s{50+j}, s49, 13",S(49),S(50+j)))
        r=vPw if j==0 else vPr[j]
        q(vop(f"v_lshl_add_u32 v{r}, v{L}, 4, s{50+j}",V(L)+S(50+j),V(r)))
    q(salu(f"s_lshl_b32 s49, s{sW}, 6",S(sW),S(49)))
    q(vop(f"v_lshlrev_b32 v{vOst}, 8, v{Q_}",V(Q_),V(vOst)), vop(f"v_lshl_add_u32 v{vOst}, v{G_}, 4, v{vOst}",V(G_)+V(vOst),V(vOst)), vop(f"v_add_u32 v{vOst}, s49, v{vOst}",S(49)+V(vOst),V(vOst)))
    q(vop(f"v_lshrrev_b32 v{T1}, 1, v{G_}",V(G_),V(T1)), vop(f"v_lshl_add_u32 v{T1}, v{T1}, 4, v{Q_}",V(T1)+V(Q_),V(T1)),
      vop(f"v_lshlrev_b32 v{T1}, 4, v{T1}",V(T1),V(T1)), vop(f"v_add_u32 v{vLr}, {LBASE}, v{T1}",V(T1),V(vLr)))
    q(salu(f"s_lshl_b32 s49, s{sW}, 2",S(sW),S(49))); q(vop(f"v_add_u32 v{vLw}, s49, v{vLr}",S(49)+V(vLr),V(vLw)))
    q(vop(f"v_mov_b32 v{vLmax}, 0",[],V(vLmax)))
    q(vop(f"v_mov_b32 v{T1}, 0x3f803f80",[],V(T1)), valu(f"v_cmp_gt_u32 vcc, 8, v{Q_}",V(Q_),[VCC]))
    for r in range(4):
        q(valu(f"v_cndmask_b32 v{vSEL[0]+r}, 0, v{T1}, vcc",V(T1)+[VCC],V(vSEL[0]+r)))
        q(vop(f"v_xor_b32 v{vSEL[1]+r}, v{T1}, v{vSEL[0]+r}",V(T1)+V(vSEL[0]+r),V(vSEL[1]+r)))
    if OPT.get("trunc"): q(salu("s_mov_b32 s74, 0x07060302",[],S(74)))
    q(salu(f"s_mov_b32 s{sO0}, 0",[],S(sO0)), salu(f"s_mov_b32 s{sO1}, 4096",[],S(sO1)))
    q(vop(f"v_lshlrev_b32 v{T1}, 2, v{R_}",V(R_),V(T1)), vop(f"v_add_u32 v{T2}, s49, v{C_}",S(49)+V(C_),V(T2)), vop(f"v_xor_b32 v{T2}, v{T2}, v{T1}",V(T1)+V(T2),V(T2)),
      vop(f"v_lshl_add_u32 v{T3}, v{G_}, 2, v{R_}",V(G_)+V(R_),V(T3)), vop(f"v_lshlrev_b32 v{T3}, 8, v{T3}",V(T3),V(T3)), vop(f"v_lshl_add_u32 v{T3}, v{T2}, 4, v{T3}",V(T2)+V(T3),V(T3)),
      vop(f"v_lshlrev_b32 v{T1}, 4, v{L}",V(L),V(T1)), v2("v_sub_u32",T3,T3,T1), vop(f"v_add_u32 v{vTD}, {VBASE}, v{T3}",V(T3),V(vTD)))
    q(vop(f"v_add_u32 v{vKA}, s54, v{vQrd0}",S(54)+V(vQrd0),V(vKA)))
    q(vop(f"v_lshrrev_b32 v{T1}, 2, v{Q_}",V(Q_),V(T1)), valu(f"v_cmp_eq_u32 vcc, v{T1}, v{G_}",V(T1)+V(G_),[VCC]),
      vop(f"v_and_b32 v{T1}, 1, v{L}",V(L),V(T1)), vop(f"v_lshlrev_b32 v{T1}, 4, v{T1}",V(T1),V(T1)),
      vop(f"v_and_b32 v{T2}, 2, v{L}",V(L),V(T2)), valu(f"v_cmp_eq_u32 s[50:51], 0, v{T2}",V(T2),S(50,2)))
    for lo,cb in enumerate((CHI,CLO)):
        q(vop(f"v_mov_b32 v{T2}, {cb:#x}",[],V(T2)), v2("v_lshlrev_b32",T2,T1,T2), valu(f"v_cndmask_b32 v{T2}, 0, v{T2}, vcc",V(T2)+[VCC],V(T2)),
          valu(f"v_cndmask_b32 v{T3}, 0, v{T2}, s[50:51]",V(T2)+S(50,2),V(T3)), v2("v_xor_b32",T2,T2,T3))
        for half in range(2):
            a=aSC(lo,half)
            q(vop(f"v_accvgpr_write_b32 a{a+2*half}, v{T3}",V(T3),A(a+2*half)), vop(f"v_accvgpr_write_b32 a{a+2*half+1}, v{T2}",V(T2),A(a+2*half+1)),
              vop(f"v_accvgpr_write_b32 a{a+2-2*half}, 0",[],A(a+2-2*half)), vop(f"v_accvgpr_write_b32 a{a+3-2*half}, 0",[],A(a+3-2*half)))
    q(*ps(3))
    return q.out()

def fallback():
    q=Seq()
    q(label("L_fallback"), wait(vm=0,lg=0), bar())
    q(salu(f"s_mov_b32 s{sQso}, 0",[],S(sQso)), salu(f"s_mov_b32 s{sO0}, 0",[],S(sO0)), salu(f"s_mov_b32 s{sO1}, 4096",[],S(sO1)), salu(f"s_mov_b32 s{sLoop}, {NT}",[],S(sLoop)))
    q(vop(f"v_add_u32 v{vQrd}, {QBASE}, v{vQrd0}",V(vQrd0),V(vQrd)))
    MW,MR,T=216,217,218
    q(vop(f"v_mbcnt_lo_u32_b32 v{T}, -1, 0",[],V(T)), vop(f"v_mbcnt_hi_u32_b32 v{T}, -1, v{T}",V(T),V(T)),
      vop(f"v_and_b32 v{MR}, 15, v{T}",V(T),V(MR)), vop(f"v_lshlrev_b32 v{MR}, 6, v{MR}",V(MR),V(MR)), vop(f"v_add_u32 v{MR}, {MBASE}, v{MR}",V(MR),V(MR)),
      vop(f"v_lshrrev_b32 v{T}, 4, v{T}",V(T),V(T)), vop(f"v_lshl_add_u32 v{MW}, v{T}, 2, v{MR}",V(T)+V(MR),V(MW)))
    q(salu(f"s_lshl_b32 s49, s{sW}, 4",S(sW),S(49))); q(vop(f"v_add_u32 v{MW}, s49, v{MW}",S(49)+V(MW),V(MW)))
    q(label("L_fb_loop"))
    q(salu(f"s_mov_b32 m0, s{sWoff}",S(sWoff),[M0])); q(dma(vQdma,sQ,sQso,0),dma(vQdma,sQ,sQso,1024)); q(wait(vm=0),bar())
    for qb in range(2):
        for ds in range(4): q(dsr128(vQ(qb,ds),vQrd,qb*4160+ds*256))
    Sb=lambda kb,qb:64+(kb*2+qb)*4
    Pf=lambda f:128+f*4
    for kb in range(8):
        for qb in range(2):
            for ds in range(4): q(mfma(Sb(kb,qb),aK(kb,ds),vQ(qb,ds),None if ds==0 else Sb(kb,qb)))
    Mx=[220,221]; RD=224
    for qb in range(2):
        q(v2("v_max_f32",Mx[qb],Sb(0,qb),Sb(0,qb)+1))
        regs=[Sb(kb,qb)+r for kb in range(8) for r in range(4)][2:]
        for x in range(0,30,2): q(vop(f"v_max3_f32 v{Mx[qb]}, v{Mx[qb]}, v{regs[x]}, v{regs[x+1]}",V(Mx[qb])+V(regs[x])+V(regs[x+1]),V(Mx[qb])))
        q(dsw32(MW,Mx[qb],qb*1024))
    q(bar())
    for qb in range(2):
        for x in range(4): q(dsr128(RD+4*x,MR,qb*1024+16*x))
        q(v2("v_max_f32",Mx[qb],RD,RD+1))
        for x in range(2,16,2): q(vop(f"v_max3_f32 v{Mx[qb]}, v{Mx[qb]}, v{RD+x}, v{RD+x+1}",V(Mx[qb])+V(RD+x)+V(RD+x+1),V(Mx[qb])))
    for kb in range(8):
        for qb in range(2):
            for r in range(4): q(v2("v_sub_f32",Sb(kb,qb)+r,Sb(kb,qb)+r,Mx[qb]),slot=False)
            for r in range(4): q(vexp(Sb(kb,qb)+r),slot=False)
            for p2 in range(2): q(vcvt(Pf(2*(kb//2)+qb)+2*(kb%2)+p2,Sb(kb,qb)+2*p2,Sb(kb,qb)+2*p2+1),slot=False)
    for f in range(8): q(dsw128(vPw,Pf(f),f*1024))
    for qb in range(2):
        for kp in range(4): q(mfma(vLacc,vSEL[qb],Pf(2*kp+qb),None if (kp==0 and qb==0) else vLacc,afile='v'))
    q(dsw32(vLw,vLacc,0)); q(bar())
    for qb in range(2):
        for db in range(2):
            for kp in range(4): q(mfma(vO(0,qb,db),aV(0,kp,db),Pf(2*kp+qb),None if kp==0 else vO(0,qb,db)))
    for j in range(1,4):
        for qb in range(2):
            for k in range(4): q(dsr128(RD+4*k,vPr[j],(2*k+qb)*1024))
            for db in range(2):
                for kp in range(4): q(mfma(vO(0,qb,db),aV(j,kp,db),RD+4*kp,vO(0,qb,db)))
    q(dsr128(vLrd,vLr,0)); q(v2("v_add_f32",vLrd,vLrd,vLrd+1),v2("v_add_f32",vLrd+2,vLrd+2,vLrd+3),v2("v_add_f32",vLrd,vLrd,vLrd+2))
    q(valu(f"v_rcp_f32 v{vR0}, v{vLrd}",V(vLrd),V(vR0),"trans"), vop(f"v_mov_b32 v{vR1}, v{vR0}",V(vR0),V(vR1)),
      valu(f"v_permlane32_swap_b32 v{vR0}, v{vR1}",V(vR0)+V(vR1),V(vR0)+V(vR1),"perm"))
    for qb in range(2):
        for db in range(2):
            for p2 in range(2):
                r=vO(0,qb,db)+2*p2; R=vR0 if qb==0 else vR1
                q(v2("v_mul_f32",r,r,R),v2("v_mul_f32",r+1,r+1,R),vcvt(vOut(qb)+2*db+p2,r,r+1))
        q(vst(vOut(qb),vOst,sO,sO0 if qb==0 else sO1))
    q(salu(f"s_add_u32 s{sO0}, s{sO0}, 8192",S(sO0),S(sO0)), salu(f"s_add_u32 s{sO1}, s{sO1}, 8192",S(sO1),S(sO1)), salu(f"s_add_u32 s{sQso}, s{sQso}, 8192",S(sQso),S(sQso)))
    q(wait(vm=0,lg=0),bar())
    q(salu(f"s_sub_u32 s{sLoop}, s{sLoop}, 1",S(sLoop),S(sLoop)), salu(f"s_cmp_lg_u32 s{sLoop}, 0",S(sLoop),[SCC]), I("s_cbranch_scc1 L_fb_loop","branch",[SCC]))
    return q.out()

def stamp(n):
    if OPT["stamp"]==2: return [raw(f"s_memrealtime s[{76+2*n}:{77+2*n}]")] if n in(0,) else ([raw("s_memrealtime s[98:99]")] if n==1 else [])
    return [raw(f"s_memtime s[{76+4*n}:{77+4*n}]"),raw(f"s_memrealtime s[{78+4*n}:{79+4*n}]")] if OPT["stamp"] else []

def build():
    logs={}
    pro=prologue()+stamp(0)
    def it(i,par,cur,nxt,pv,ep,prefix,**kw):
        lg=[]; r=iteration(i,par,cur,nxt,pv,ep,(i+D<NT) or kw.get("force_dma"),prefix,log=lg,**{k:v for k,v in kw.items() if k!="force_dma"}); logs[i]=lg; return [comment(f"---- iteration {i}")]+r
    U=OPT.get("U",2); nst=40-(T+1); trips=nst//U; rem=nst-trips*U
    stag=OPT.get("stag",0); ncopy=OPT.get("ncopy",4) if stag else 1
    sst=OPT.get("sstag",0)
    disp=[]
    for cp in range(ncopy-1,0,-1):
        disp+=[salu(f"s_cmp_ge_u32 s{sW}, {cp*(4//ncopy)}",S(sW),[SCC]), I(f"s_cbranch_scc1 L_copy{cp}","branch",[SCC])]
    def mk0(off):
        lg=[]; r=[comment("---- start-up steps + merged iteration")]+startup(pro,lg,off); logs[0]=lg
        return r+[salu(f"s_mov_b32 s{sLoop}, {trips}",[],S(sLoop))]+([] if "spinbar" in OPT else stamp(1))
    def mkend(prev,off):
        r=[]
        for u in range(rem):
            x=it(40-rem+u,(40-rem+u)%2,1,1,1,1,prev,force_dma=True,baroff=off); prev=x; r+=x
        x=stamp(2)+it(40,0,1,0,1,1,prev,ctx={"eager":1},baroff=off)
        return r,x
    if not sst: i0=mk0(0)
    allb=[]; paths=[]; body_rem=[]
    for cp in range(ncopy):
        if sst: i0=mk0(stag*cp)
        body=[]; prev=i0
        for u in range(U):
            x=it(T+1+u,(T+1+u)%2,1,1,1,1,prev,force_dma=True,loopctl=f"L_loop{cp}" if (u==U-1 and trips>1) else None,baroff=stag*cp); body+=x; prev=x
            if u==0: ia=x
            if u==1: ib=x
        if sst or cp==0: br,i40=mkend(prev,stag*cp if sst else 0)
        paths.append(i0+body*min(trips,3)+br+i40)
        allb+=[label(f"L_copy{cp}")]+(i0 if sst else [])+[raw(f".p2align {OPT.get('al',6)}"),label(f"L_loop{cp}")]+body+(br+i40 if sst else [])
        body_rem+=body+br
        if cp<ncopy-1: allb+=[I("s_branch L_after","branch")]
    allb+=[label("L_after")]
    lg=[]; i41=[comment("---- drain")]+drain(41,i40,lg); logs[41]=lg; i42=[]; i1=[]
    main=pro+(disp if sst else i0+disp)+allb+([] if sst else br+i40)+i41
    fin=Seq(i41+i42)
    fin(salu(f"s_mov_b32 s49, {HI:#x}",[],S(49)))
    fin(valu(f"v_cmp_lt_u32 vcc, s49, v{vLmax}",S(49)+V(vLmax),[VCC]))
    fin(nop(5), I("s_cbranch_vccnz L_fallback","branch",[VCC]))
    if OPT["stamp"]==2 and OPT.get("all"):
        fin(raw("s_waitcnt vmcnt(0)"),raw("s_memrealtime s[100:101]"),raw("s_waitcnt lgkmcnt(0)"),raw(f"s_cmp_lg_u32 s{sW}, 0"),raw("s_cbranch_scc1 L_end"))
        fin(raw(f"s_and_b32 s{sDbg+1}, s{sDbg+1}, 0xffff"),raw(f"s_mov_b32 s{sDbg+2}, 4096"),raw(f"s_mov_b32 s{sDbg+3}, 0x20000"))
        fin(raw("s_getreg_b32 s3, hwreg(HW_REG_XCC_ID)"),raw("s_and_b32 s3, s3, 7"),raw("s_and_b32 s55, s62, 0xffffff"),raw("s_lshl_b32 s3, s3, 24"),raw("s_or_b32 s3, s3, s55"),raw("v_mov_b32 v200, s3"))
        for n,r in enumerate((82,98,100)): fin(raw(f"s_sub_u32 s3, s{r}, s62"),raw(f"v_mov_b32 v{201+n}, s3"))
        fin(raw("s_lshl_b32 s3, s2, 4"),raw("v_mov_b32 v220, s3"),raw("s_mov_b64 exec, 1"),raw(f"buffer_store_dwordx4 v[200:203], v220, s[{sDbg}:{sDbg+3}], 0 offen"))
    elif OPT["stamp"]==2:
        fin(raw("s_waitcnt vmcnt(0)"),raw("s_memrealtime s[100:101]"),raw("s_waitcnt lgkmcnt(0)"))
        fin(raw("s_and_b32 s3, s2, 63"),raw("s_cmp_lg_u32 s3, 0"),raw("s_cbranch_scc1 L_end"),raw(f"s_cmp_lg_u32 s{sW}, 0"),raw("s_cbranch_scc1 L_end"))
        fin(raw(f"s_and_b32 s{sDbg+1}, s{sDbg+1}, 0xffff"),raw(f"s_mov_b32 s{sDbg+2}, 256"),raw(f"s_mov_b32 s{sDbg+3}, 0x20000"))
        for n in range(13): fin(raw(f"s_sub_u32 s3, s{76+2*n}, s62"),raw(f"v_mov_b32 v{200+n}, s3"))
        fin(raw("s_lshr_b32 s3, s2, 6"),raw("s_lshl_b32 s3, s3, 6"),raw("v_mov_b32 v220, s3"),raw("s_mov_b64 exec, 1"))
        for n in range(4): fin(raw(f"buffer_store_dwordx4 v[{200+4*n}:{203+4*n}], v220, s[{sDbg}:{sDbg+3}], 0 offen offset:{16*n}"))
    elif OPT["stamp"]:
        fin(*stamp(3)); fin(raw("s_waitcnt vmcnt(0)")); fin(*stamp(4)); fin(raw("s_waitcnt lgkmcnt(0)"))
        sp=OPT.get("spin")
        if sp is not None:
            ex={0:["s_mov_b32 s3, 0"],1:["s_sub_u32 s3, s78, s62","s_lshl_b32 s3, s3, 2"],2:["s_sub_u32 s3, s86, s82"],3:["s_sub_u32 s3, s94, s62"],
                4:["s_sub_u32 s3, s84, s80","s_lshr_b32 s3, s3, 4"],5:["s_sub_u32 s3, s82, s62","s_lshl_b32 s3, s3, 2"],6:["s_sub_u32 s3, s82, s78","s_lshl_b32 s3, s3, 3"],7:["s_sub_u32 s3, s80, s76","s_lshr_b32 s3, s3, 1"],8:["s_sub_u32 s3, s94, s86","s_lshl_b32 s3, s3, 3"]}[sp]
            for e in ex: fin(raw(e))
            fin(raw("s_add_u32 s3, s3, 15000"),label("L_spin"),raw("s_memrealtime s[98:99]"),raw("s_waitcnt lgkmcnt(0)"),raw("s_sub_u32 s98, s98, s62"),raw("s_cmp_lt_u32 s98, s3"),raw("s_cbranch_scc1 L_spin"))
        fin(raw("s_and_b32 s3, s2, 31"),raw("s_cmp_lg_u32 s3, 0"),raw("s_cbranch_scc1 L_end"),raw(f"s_cmp_lg_u32 s{sW}, 0"),raw("s_cbranch_scc1 L_end"))
        fin(raw(f"s_and_b32 s{sDbg+1}, s{sDbg+1}, 0xffff"),raw(f"s_mov_b32 s{sDbg+2}, 256"),raw(f"s_mov_b32 s{sDbg+3}, 0x20000"))
        for n in range(4): fin(raw(f"s_sub_u32 s3, s{76+4*(n+1 if n==3 else n)}, s60"),raw(f"v_mov_b32 v{200+2*n}, s3"),raw(f"s_sub_u32 s3, s{78+4*(n+1 if n==3 else n)}, s62"),raw(f"v_mov_b32 v{201+2*n}, s3"))
        fin(raw("s_lshr_b32 s3, s2, 5"),raw("s_lshl_b32 s3, s3, 5"),raw("v_mov_b32 v208, s3"),raw("s_mov_b64 exec, 1"),
            raw(f"buffer_store_dwordx4 v[200:203], v208, s[{sDbg}:{sDbg+3}], 0 offen"),raw(f"buffer_store_dwordx4 v[204:207], v208, s[{sDbg}:{sDbg+3}], 0 offen offset:16"))
    fin(raw("s_endpgm"))
    fb=fallback()
    ool=[]
    if "rw2" in OPT:
        for cp in range(ncopy): ool+=[label(f"L_loop{cp}_rw")]+rewarm("L_after")+[raw(f"s_branch L_loop{cp}_rwb")]
    static=main+fin.out()+ool+fb+[label("L_end"),raw("s_endpgm")]
    dyns=[pro+p+i41+fin.out() for p in paths]
    for rep in range(2):
        for dyn in dyns: resolve_waits(dyn)
    k=[x for x,y in enumerate(fb) if y.text=="L_fb_loop"][0]
    dynf=fb+fb[k:]
    resolve_waits(dynf)
    for name,d in [("main",d) for d in dyns]+[("fallback",dynf)]:
        bad=check_hazards(d)
        for b in bad: print("HAZARD",name,b,file=sys.stderr)
        assert not bad
        print(name,"max outstanding",max_outstanding(d),file=sys.stderr)
    for nm,sq in(("i0",i0),("i1",i1),("ia",ia),("ib",ib),("i40",i40),("i41",i41),("i42",i42)):
        print(nm,"est cycles",estimate(sq),"nops",sum(1 for x in sq if x.kind=="nop"),"instrs",sum(1 for x in sq if states(x)),file=sys.stderr)
    if "log" in OPT: print("\n".join(logs[OPT["log"]]),file=sys.stderr)
    abl=str(OPT.get("abl","")).split("+")
    if abl!=[""]:
        loop=set(map(id,body_rem)) if not OPT.get('abs') else set(map(id,i0[len(i0)//4:]))
        def drop(x):
            if id(x) not in loop: return False
            t=x.text
            return (("st" in abl and x.kind=="vst") or ("dma" in abl and x.kind=="dma") or ("pr" in abl and x.kind=="dsr" and 128<=min(r[1] for r in x.wr)<160)
              or ("qr" in abl and x.kind=="dsr" and 32<=min(r[1] for r in x.wr)<64) or ("pw" in abl and x.kind=="dsw") or ("exp" in abl and t.startswith("v_exp"))
              or ("cvt" in abl and t.startswith("v_cvt")) or ("one" in abl and x.kind=="mfma" and x.name.startswith("ONE")) or ("bar" in abl and x.kind=="bar")
              or ("mul" in abl and t.startswith("v_mul")) or ("valu" in abl and x.kind in VALU_KINDS) or ("qk" in abl and x.kind=="mfma" and x.name.startswith("QK"))
              or ("pv" in abl and x.kind=="mfma" and x.name.startswith("PV")) or ("wait" in abl and x.kind=="wslot") or ("ks" in abl and (t.startswith("v_accvgpr") or t.startswith("v_pk_mul") or t.startswith("v_and") or t.startswith("v_lshlrev"))))
        static=[x for x in static if not drop(x)]
        static=[x for x in static if x.text!="s_cbranch_vccnz L_fallback"]
    if OPT.get("fake"): static=[x for x in static if x.text!="s_cbranch_vccnz L_fallback"]
    if OPT.get("swap"):
        import re as _re
        for x in body_rem:
            if x.kind=="mfma" and any(x.name.startswith(p) for p in OPT["swap"].split("+")):
                m=_re.match(r"(\S+ [^,]+), ([^,]+), ([^,]+), (.*)",x.text); x.text=f"{m[1]}, {m[3]}, {m[2]}, {m[4]}"
        static=[x for x in static if x.text!="s_cbranch_vccnz L_fallback"]
    hdr=open("standalone__mha_softmax__near_ridge.s.ref").read().split("; Override launch")[0]
    txt=hdr+f"""; One workgroup (4 waves) per head.  K (scaled once by log2(e)/sqrt(D)) and V^T stay in AGPRs: wave w owns keys
; 128w..128w+127 for S^T = K.Q^T and output columns 32w..32w+31 for O^T = V^T.P^T (16x16x32 bf16 MFMA); P and the row sums
; are exchanged through LDS, one barrier per 32-row query tile.  The first tiles are processed key-chunk by key-chunk while
; K and V stream in.  Softmax shift: the fast path shifts by 0; every row sum l is checked at run time (2^-48 <= l <= 2^48,
; inf/NaN included) and if any row leaves that range the whole head is recomputed with the true row max (L_fallback).
; @launch grid=(256,1,1) block=(256,1,1) lds={LDS_BYTES}
.amdgcn_target "amdgcn-amd-amdhsa--gfx950"
.text
.globl {NAME}
.p2align 8
.type {NAME},@function
{NAME}:
"""+emit(static)+f""".section .rodata,"a"
.p2align 6
.amdhsa_kernel {NAME}
  .amdhsa_next_free_vgpr 512
  .amdhsa_next_free_sgpr 102
  .amdhsa_accum_offset 256
  .amdhsa_group_segment_fixed_size 0
  .amdhsa_kernarg_size 48
  .amdhsa_user_sgpr_count 2
  .amdhsa_user_sgpr_kernarg_segment_ptr 1
  .amdhsa_system_sgpr_workgroup_id_x 1
.end_amdhsa_kernel
"""
    return txt

if __name__=="__main__":
    open(sys.argv[1],"w").write(build())
```

```python
from core import *
INF=10**9
class Op:
    def __init__(s, ins, prio, deps=(), earliest=0, name=None):
        s.ins=ins; s.prio=prio; s.deps=list(deps); s.earliest=earliest; s.name=name; s.done=False; s.gap=None
        s.block=isinstance(ins,list)
        if s.block: s.earliest=INF
    @property
    def cost(s): return s.ins.cost
    @property
    def mem(s): return s.ins.kind in("dsr","dsw","vld","dma","vst")

def hazard_need(out, ins):
    dist=0; need=0
    for p in reversed(out[-40:]):
        need=max(need,required_gap(p,ins)-dist)
        dist+=states(p)
        if dist>=8: break
    return need
def hazard_ok(out, ins): return hazard_need(out,ins)<=0

def schedule(backbone, ops, sops, mdeps, prefix, slot_gaps, tail=(), log=None, overdue=None, ldlat=6, fill=0, veto=0, vdist=(1,2,3)):
    out=list(prefix); n0=len(out)
    emitted=set()
    def isdone(d): return (d.done if isinstance(d,Op) else id(d) in emitted)
    def ready(o,g):
        if o.done or o.earliest>g or not all(isdone(d) for d in o.deps): return False
        if getattr(o,"mingap",0) and any(isinstance(d,Op) and d.ins.kind=="valu" and d.gap>g-o.mingap for d in o.deps): return False
        if o.ins.kind=="bar" and any(isinstance(d,Op) and d.gap>g-2 for d in o.deps): return False
        for d in o.deps:
            if isinstance(d,Op) and not d.block and d.ins.kind in("dsr","vld") and (d.ins.wr & (o.ins.rd|o.ins.wr)):
                if g<d.gap+ldlat or not any(sg in slot_gaps for sg in range(d.gap+1,g+1)): return False
        return True
    def put1(i):
        k=hazard_need(out,i)
        if k>0: out.append(nop(k))
        out.append(i)
    def put(o,g,force=False):
        if o.block:
            for i in o.ins: put1(i)
        else:
            if force or (o.ins.kind=='bar' and (g-1) not in slot_gaps): out.append(waitslot())
            put1(o.ins)
        o.done=True; o.gap=g
    def force(o,g,names):
        if o.done: return
        for d in o.deps:
            if isinstance(d,Op): force(d,g,names)
            else: assert id(d) in emitted, f"forced op {o.name} depends on unemitted mfma {d.name}"
        put(o,g,True); names.append(o.name)
    HEAVY=("dsw","vst","dma","vld")
    def back_gaps(k):
        res=[[]]
        for x in reversed(out):
            if x.kind=="mfma":
                if len(res)>k: break
                res.append([])
            elif x.kind in HEAVY or x.kind=="dsr" or x.kind in VALU_KINDS: res[-1].insert(0,x)
        while len(res)<=k: res.append([])
        return res
    def vetoed(o,g,bg):
        if not veto or o.prio<g-veto: return False
        k=o.ins.kind
        if k=="dsr" and not bg[0] and any(x.kind in("dma","vld") or (x.kind=="dsw" and x.cost>8) for x in bg[1]): return True
        if k in HEAVY:
            if bg[1] and bg[1][-1].kind=="trans" and k in("dsw","vst"): return True
            if any(x.kind in HEAVY for d in vdist for x in bg[d]): return True
        return False
    n=len(backbone)
    pend_ops=list(ops); pend_s=list(sops)
    for g,m in enumerate(backbone):
        pend=[o for o in mdeps.get(g,[]) if not o.done]
        names=[]
        for o in pend: force(o,g-1,names)
        if pend:
            out.append(waitslot())
            if log is not None: log.append("    FORCED "+" ".join(names))
        put1(m); emitted.add(id(m))
        desc=[]
        pend_ops=[o for o in pend_ops if not o.done]; pend_s=[o for o in pend_s if not o.done]
        if g in slot_gaps: out.append(waitslot()); desc.append("w")
        else:
            c=sorted([o for o in pend_s if ready(o,g)],key=lambda o:o.prio)
            if c: put(c[0],g); desc.append("s:"+(c[0].name or ""))
        cap=8; had_valu=False
        if overdue is not None:
            while True:
                c=[o for o in pend_ops if o.prio<g-overdue and not o.block and o.mem and ready(o,g) and hazard_ok(out,o.ins)]
                c+=[o for o in pend_s if o.prio<g-overdue and o.ins.kind in("salu","wait") and ready(o,g)]
                if not c: break
                o=min(c,key=lambda o:o.prio); put(o,g); desc.append(o.name+"!"); cap-=o.cost
        while True:
            bg=back_gaps(max(vdist)) if veto else None
            c=[o for o in pend_ops if ready(o,g) and hazard_ok(out,o.ins) and not (o.mem and had_valu) and not vetoed(o,g,bg)]
            if veto and cap==8:
                h=[o for o in c if o.ins.kind=="dsw" and o.cost>8]
                if h: c=h
            if cap<8: c=[o for o in c if o.cost<=cap or (overdue is not None and o.prio<g-overdue)]
            if not c: break
            c.sort(key=lambda o:o.prio)
            o=c[0]
            if cap==8 and o.cost==4:
                small=[x for x in c if x.cost==4]
                big=[x for x in c if x.cost>=8]
                if len(small)>=2:
                    a,b=small[0],small[1]
                    if b.mem and not a.mem: o=b
                elif big and o.prio>g: o=big[0]
            put(o,g); desc.append(o.name or "?")
            cap-=o.cost
            if not o.mem: had_valu=True
        if fill and cap>=4 and any(not o.done and not o.block and o.earliest<=g+3 and all(isdone(d) for d in o.deps) and not hazard_ok(out,o.ins) for o in pend_ops):
            out.append(nop(cap//4)); desc.append("nop")
        if log is not None: log.append(f"{g:3d} {m.name:14s} "+" ".join(desc))
    rest=sorted([o for o in list(sops)+list(ops) if not o.done],key=lambda o:o.prio)
    for o in rest:
        names=[]; force(o,n,names)
        if log is not None and names: log.append("END "+" ".join(names))
    for t in tail: out.append(t)
    return out[n0:]
```

```python
import sys, struct, math
from core import *
from sched import *

NAME="standalone__mha_softmax__near_ridge_kernel"
NT=41
QBYTES=335872; KBYTES=131072
OPT=dict(D=4, st="sc0+sc1", ld="nt", stamp=0, wsplit=0, stag=3, ncopy=2)
for a in sys.argv[2:]:
    k,v=a.split("="); OPT[k]=int(v) if v.lstrip("-").isdigit() else v
D=OPT["D"]; NQ=7; T=OPT.get("T",5); LAG=OPT.get("lag",3); LAG0=OPT.get('lag0',3)
STF=(" "+OPT["st"].replace("+"," ")) if OPT["st"]!="none" else ""
LDF=(" "+OPT["ld"].replace("+"," ")) if OPT["ld"]!="none" else ""
QSLOT=8320; PB=[0,33280]; KBASE=PB[T%2]; QBASE=2*33280; QEND=QBASE+NQ*QSLOT; VBASE=QEND; LBASE=VBASE+32768; MBASE=LBASE+1024; LDS_BYTES=LBASE+4096
vQrd,vQrd0,vPw,vPr,vQdma,vOst,vLw,vLr=1,2,3,[None,4,5,6],7,8,9,10
vLmax,vLmin,vR0,vR1,vT=11,12,13,14,15
vLrd,vLacc,vSEL=16,20,[24,28]
vQ=lambda qb,ds:32+qb*16+ds*4
vS=lambda n:64+(n%8)*4
vP=lambda f:96+f*4
vRing=lambda s,k:128+(s%2)*16+k*4
vO=lambda st,qb,db:160+st*16+qb*8+db*4
vOut=lambda qb:192+qb*4
aK=lambda kb,ds:(kb*4+ds)*4
aV=lambda j,kp,db:128+((j*4+kp)*2+db)*4
sQ,sK,sV,sO=4,8,12,16
sW,sLoop,sQso,sQm0,sQrs,sO0,sO1,sT,sC=20,21,22,23,24,25,26,27,28
sWoff=30; sDbg=32
M0=('m0',0); VCC=('vcc',0); SCC=('scc',0)
CSCALE=struct.unpack("<I",struct.pack("<f",math.log2(math.e)/math.sqrt(128.0)))[0]
def bf16(x):
    u=struct.unpack("<I",struct.pack("<f",x))[0]; return (u+0x7fff+((u>>16)&1))>>16
CF=math.log2(math.e)/math.sqrt(128.0); CHI=bf16(CF); CLO=bf16(CF-struct.unpack("<f",struct.pack("<I",CHI<<16))[0])
HI=(127+48)<<23; RHI=(127+4)<<23

CI=OPT.get("cinit",-4); vCI=244; vC0=240; vN0,vN1=244,245; vRmax=12; OC=OPT.get("oc",1)
def qkm(d,a,b,first,name):
    if not first: return mfma(d,a,b,d,name=name)
    if abs(CI)>4: return mfma(d,a,b,vCI,name=name)
    m=mfma(d,a,b,None,name=name)
    if CI: m.text=m.text[:-1]+f"{float(CI):.1f}"
    return m
def dsr128(dst,addr,off,file='v',name=None): return I(f"ds_read_b128 {rs(file,dst,4)}, v{addr} offset:{off}","dsr",V(addr),[(file,dst+i) for i in range(4)],name=name)
def dsw128(addr,src,off): return I(f"ds_write_b128 v{addr}, {rs('v',src,4)} offset:{off}","dsw",V(addr)+V(src,4),[],cost=20)
def dsw64(addr,src,off): return I(f"ds_write_b64 v{addr}, {rs('v',src,2)} offset:{off}","dsw",V(addr)+V(src,2),[],cost=12)
def dsw32(addr,src,off): return I(f"ds_write_b32 v{addr}, v{src} offset:{off}","dsw",V(addr)+V(src),[],cost=8)
def dma(voff,srd,soff,off,flag=LDF): return I(f"buffer_load_dwordx4 v{voff}, s[{srd}:{srd+3}], s{soff} offen offset:{off}{flag} lds","dma",V(voff)+S(srd,4)+S(soff)+[M0],[])
def vld(dst,voff,srd,soff,off,flag=LDF): return I(f"buffer_load_dwordx4 {rs('v',dst,4)}, v{voff}, s[{srd}:{srd+3}], s{soff} offen offset:{off}{flag}","vld",V(voff)+S(srd,4)+S(soff),V(dst,4))
def vst(src,voff,srd,soff,flag=STF): return I(f"buffer_store_dwordx4 {rs('v',src,4)}, v{voff}, s[{srd}:{srd+3}], s{soff} offen{flag}","vst",V(src,4)+V(voff)+S(srd,4)+S(soff),[],meta={"data":V(src,4)})
def vexp(r): return valu(f"v_exp_f32 v{r}, v{r}",V(r),V(r),"trans")
def vcvt(d,a,b): return valu(f"v_cvt_pk_bf16_f32 v{d}, v{a}, v{b}",V(a)+V(b),V(d))
def vcvtp(d,a,b):
    if OPT.get("trunc"): return valu(f"v_perm_b32 v{d}, v{b}, v{a}, s74",V(a)+V(b)+S(74),V(d))
    return vcvt(d,a,b)
def v2(op,d,a,b): return valu(f"{op} v{d}, v{a}, v{b}",V(a)+V(b),V(d))
def bar(**m): return I("s_barrier","bar",meta=m)
def label(t): return I(t,"label")
def comment(t): return I(t,"comment")

def chain_info(n):
    f=(n//2+1)%8; h=n%2
    return f,h,2*(f//2)+h,f%2
def s_block(f,h):
    return (2*((f-1)%8)+h)

class Bld:
    def __init__(s): s.bb=[]; s.ops=[]; s.sops=[]; s.mdeps={}; s.slots=set(); s.tail=[]
    def group(s,g):
        p=len(s.bb); s.bb+=g; s.slots.add(len(s.bb)-1); return p
    def add(s,ins,prio,deps=(),earliest=0,name=None):
        o=Op(ins,prio,deps,earliest,name); s.ops.append(o); return o
    def adds(s,ins,prio,deps=(),name=None,earliest=0):
        o=Op(ins,prio,deps,earliest,name); s.sops.append(o); return o
    def need(s,idx,o): s.mdeps.setdefault(max(idx,0),[]).append(o)
    def barrier(s,gap,deps,keep=False,**meta):
        if keep and gap in s.slots: gap-=1; o=s.adds(bar(**meta),-1,deps,name="BAR",earliest=gap); s.slots.add(gap-1); return o
        o=s.adds(bar(**meta),-1,deps,name="BAR",earliest=max(gap,0)); s.slots.discard(gap); s.slots.add(gap-1); return o
    def run(s,prefix,log=None,overdue=None): return schedule(s.bb,s.ops,s.sops,s.mdeps,prefix,s.slots,s.tail,log,overdue,fill=OPT.get('fill',1),veto=(OPT.get('veto',8) if overdue is None else OPT.get('sveto',0)),vdist=tuple(int(c) for c in str(OPT.get('vd',1234))))

def qdma_ops(b,t0,deps,tag=None,scc=()):
    m=b.adds(salu(f"s_mov_b32 m0, s{sQm0}",S(sQm0),[M0]),t0-2,deps,name="m0")
    QF=(" "+OPT["lq"].replace("+"," ") if OPT["lq"]!="none" else "") if "lq" in OPT else LDF
    d0=b.add(dma(vQdma,sQ,sQso,0,QF),t0,[m],name="DMA0"); d1=b.add(dma(vQdma,sQ,sQso,1024,QF),t0+4,[d0],name="DMA1")
    d0.ins.cost=d1.ins.cost=OPT.get("dmac",8); d0.ins.tag=d1.ins.tag=tag
    if OPT.get("dpe"): d0.earliest=int(t0); d1.earliest=int(t0+OPT["dpe"])
    b1=b.adds(salu(f"s_add_u32 s{sQm0}, s{sQm0}, {QSLOT}",S(sQm0),S(sQm0)+[SCC]),t0+10,[m]+list(scc),name="qm+")
    b2=b.adds(salu(f"s_cmp_eq_u32 s{sQm0}, s{sT}",S(sQm0)+S(sT),[SCC]),t0+11,[b1],name="qm?")
    b3=b.adds(salu(f"s_cselect_b32 s{sQm0}, s{sWoff}, s{sQm0}",S(sQm0)+S(sWoff)+[SCC],S(sQm0)),t0+12,[b2],name="qm=")
    b4=b.adds(salu(f"s_add_u32 s{sQso}, s{sQso}, 8192",S(sQso),S(sQso)+[SCC]),t0+14,[d1,b3],name="qso+")
    return d1,b4

def epilogue_ops(b,Ob,loff,t0,tm,dt,ldeps,odeps,prev,scc,sc=1.0,tg="",OC=OC):
    lr=b.add(dsr128(vLrd,vLr,loff),t0,list(ldeps)+prev.get("L",[]),name="LR"+tg)
    a=b.add(v2("v_add_f32",vLrd,vLrd,vLrd+1),t0+11*sc,[lr],name="La")
    bb_=b.add(v2("v_add_f32",vLrd+2,vLrd+2,vLrd+3),t0+11.5*sc,[lr],name="Lb")
    c=b.add(v2("v_add_f32",vLrd,vLrd,vLrd+2),t0+12*sc,[a,bb_],name="Lc")
    rc=b.add(valu(f"v_rcp_f32 v{vR0}, v{vLrd}",V(vLrd),V(vR0),"trans"),t0+13*sc,[c]+prev.get("M",[]),name="RCP")
    x1=b.add(v2("v_max_u32",vRmax,vRmax,vR0),t0+14.5*sc,[rc],name="chkr"); x2=b.add(v2("v_max_u32",vLmax,vLmax,vLrd),t0+30*sc,[c],name="chkl")
    mv=b.add(valu(f"v_mov_b32 v{vR1}, v{vR0}",V(vR0),V(vR1)),t0+14*sc,[rc],name="MOV")
    sw=b.add(valu(f"v_permlane32_swap_b32 v{vR0}, v{vR1}",V(vR0)+V(vR1),V(vR0)+V(vR1),"perm"),t0+15*sc,[mv,x1],name="SWP")
    t=tm; sts=[]; muls=[]
    if OC==1:
        nc=[b.add(valu(f"v_mul_f32 v{N}, -v{vC0}, v{R}",V(vC0)+V(R),V(N)),t0+(16+x)*sc,[sw],name="nC") for x,(N,R) in enumerate(((vN0,vR0),(vN1,vR1)))]
    def scale_op(r,qb):
        R=vR0 if qb==0 else vR1; N=vN0 if qb==0 else vN1
        if OC==2: return valu(f"v_fma_f32 v{r}, v{r}, v{R}, -v{R}",V(r)+V(R),V(r)),[sw]
        if OC: return valu(f"v_fma_f32 v{r}, v{r}, v{R}, v{N}",V(r)+V(R)+V(N),V(r)),[nc[qb]]
        return v2("v_mul_f32",r,r,R),[sw]
    if OPT.get("pa") and not tg and odeps is None:
        b.ops.remove(mv); b.ops.remove(sw)
        rw=b.add(dsw32(vLw,vR0,3072),t0+14*sc,[rc],name="RW")
        rr=[b.add(dsr128(248+4*(qb),vLr,3072+16*qb),t0+16*sc+qb,[rw],name="RR") for qb in range(2)]
        for qb in range(2):
            for r in range(4):
                m0_=b.add(v2("v_mul_f32",Ob(qb,0)+r,Ob(qb,0)+r,248+4*qb+r),t,[rr[qb]],name=f"M"); t+=dt
                m1_=b.add(v2("v_mul_f32",Ob(qb,1)+r,Ob(qb,1)+r,248+4*qb+r),t,[rr[qb]],name=f"M"); t+=dt
                cv=b.add(vcvt(vOut(qb)+r,Ob(qb,0)+r,Ob(qb,1)+r),t,[m0_,m1_],name="OC"); t+=dt
                st_=b.add(I(f"buffer_store_dword v{vOut(qb)+r}, v0, s[{sO}:{sO+3}], s{sO0 if qb==0 else sO1} offen offset:{r*256}{STF}","vst",V(vOut(qb)+r)+V(0)+S(sO,4)+S(sO0 if qb==0 else sO1),[],cost=8),t,[cv],name="ST")
                if r==3: sts.append(st_)
    for qb in range(2 if not sts else 0):
        cv=[]
        for db in range(2):
            od=[odeps[(qb,db)]] if odeps else []
            for p2 in range(2):
                r=Ob(qb,db)+2*p2; R=vR0 if qb==0 else vR1
                x,dp=scale_op(r,qb); m0_=b.add(x,t,dp+od,name=f"M{qb}{db}{2*p2}"); t+=dt
                x,dp=scale_op(r+1,qb); m1_=b.add(x,t,dp+od,name=f"M{qb}{db}{2*p2+1}"); t+=dt
                muls+=[m0_,m1_]
                cv.append(b.add(vcvt(vOut(qb)+2*db+p2,r,r+1),t,[m0_,m1_]+prev.get("S",[]),name=f"OC{qb}{db}{p2}")); t+=dt
        fl=STF if not (tg.startswith("t") and "st0" in OPT) else ("" if OPT["st0"]=="none" else " "+OPT["st0"].replace("+"," "))
        sts.append(b.add(vst(vOut(qb),vOst,sO,sO0 if qb==0 else sO1,fl),t,cv+prev.get("A",[]),name=f"ST{qb}"+tg)); sts[-1].ins.cost=OPT.get("stc",8); sts[-1].mingap=OPT.get("stg",3)
    e1=b.adds(salu(f"s_add_u32 s{sO0}, s{sO0}, 8192",S(sO0),S(sO0)+[SCC]),t+1,[sts[0]]+list(scc),name="o0+")
    e2=b.adds(salu(f"s_add_u32 s{sO1}, s{sO1}, 8192",S(sO1),S(sO1)+[SCC]),t+2,[sts[1],e1],name="o1+")
    return {"L":[rc,x1,x2],"M":muls,"S":sts,"A":[e2]}

def iter_parts(b, i, par, cur, nxt, pv, ep, dodma, last_bar=True, loopctl=None, baroff=0, Ncustom=None, ctx=None):
    ctx=ctx or {}
    base=len(b.bb)
    def qk(n):
        f,h,kb,qb=chain_info(n)
        return [qkm(vS(n),aK(kb,ds),vQ(qb,ds),ds==0,f"QK{n}.{ds}") for ds in range(4)]
    so=1-par
    def pvo(qb,db): return [mfma(vO(so,qb,db),aV(0,kp,db),vP(2*kp+qb),(vC0 if OC==1 else None) if kp==0 else vO(so,qb,db),name=f"PVo{qb}{db}.{kp}") for kp in range(4)]
    def one(qb): return [mfma(vLacc,vSEL[qb],vP(2*kp+qb),None if (kp==0 and qb==0) else vLacc,afile='v',name=f"ONE{qb}.{kp}") for kp in range(4)]
    sets=[(1,0),(1,1),(2,0),(2,1),(3,0),(3,1)]
    def pvx(s,db):
        j,qb=sets[s]
        return [mfma(vO(so,qb,db),aV(j,kp,db),vRing(s,kp),vO(so,qb,db),name=f"PVx{s}{db}.{kp}") for kp in range(4)]
    N=[("pvo",0,0),("pvo",0,1),("one",0),("pvo",1,0),("pvo",1,1),("one",1)]+[("pvx",s,db) for s in range(6) for db in range(2)]
    if Ncustom: N=[("cus",x) for x in range(18)]
    order=[N[0],N[1]]
    for n in range(16): order+=[("qk",n),N[n+2]]
    if ctx.get("eager"): order[-3],order[-2]=order[-2],order[-3]
    fk=OPT.get("fake",0) if (cur and nxt and pv and ep and not Ncustom) else 0
    if fk:
        order=[]; n=0; x=0
        while x<18 or n<16:
            order+=N[x:x+fk]; x+=fk
            order+=[("qk",m) for m in range(n,min(n+fk,16))]; n+=fk
    G={}; pos={}
    for key in order:
        if key[0]=="qk":
            n=key[1]
            if n>=14 and not nxt and cur and ctx.get("eager"):
                key=("eone",n-14); g=[mfma(vLacc,vSEL[n-14],vP(2*kp+n-14),None if (kp==0 and n==14) else vLacc,afile='v',name=f"eONE{n-14}.{kp}") for kp in range(4)]
            elif not (nxt if n>=14 else cur): continue
            else: g=qk(n)
        elif key[0]=="cus":
            g=Ncustom(key[1])
            if not g: continue
        else:
            if not pv: continue
            g={"pvo":pvo,"one":one,"pvx":pvx}[key[0]](*key[1:])
        if fk and key[0]!="qk" and OPT.get("fakeacc",1):
            d=vO(so,0,0)+4*((N.index(key)//fk)%4)
            for m in g:
                t=m.text.split(", "); t[0]=t[0].split(" ")[0]+f" v[{d}:{d+3}]"; t[3]=f"v[{d}:{d+3}]"; m.text=", ".join(t)
        G[key]=g; pos[key]=b.group(g)
        if key[0]=="cus": ctx["placed"](key[1],pos[key])
    nb=len(b.bb)-base
    nom={}; p=0
    for key in order: nom[key]=p; p+=4
    scale=(nb/136.0) if nb else 0
    import bisect
    alias={("qk",14):("eone",0),("qk",15):("eone",1)}
    pts=sorted((nom[k],pos[k if k in pos else alias[k]]) for k in nom if (k in pos or alias.get(k) in pos))
    def P(t):
        j=max(bisect.bisect_right(pts,(t,1<<30))-1,0)
        n0,a0=pts[j]; a1=pts[j+1][1] if j+1<len(pts) else 1<<30
        return min(a0+(t-n0),a1+(t-n0)*1e-3) if t>=n0 else a0+(t-n0)
    def add(ins,prio,deps=(),earliest=0,name=None):
        o=b.add(ins,P(prio),deps,int(P(earliest)) if earliest else base,name); o.nomp=prio; return o
    def adds(ins,prio,deps=(),name=None,earliest=0): return b.adds(ins,P(prio),deps,name,int(P(earliest)) if earliest else base)
    def need(key,k,o): b.need(pos[key]+k,o)
    rel=lambda o:o.nomp
    must_bar=list(ctx.get("must_bar",[]))
    scc=list(ctx.get("scc",[]))
    E={}
    for n in list(range(16))+[-1]:
        if n==15: continue
        if n==-1:
            if not cur: continue
            blk=vS(15); dep=ctx.get("c15",[]); t0=0
        else:
            if ("qk",n) not in G: continue
            blk=vS(n); dep=[G[("qk",n)][3]]; t0=nom[("qk",n)]+6
        for r in range(4):
            E[(n,r)]=add(vexp(blk+r),t0+2*r,dep,name=f"E{n}.{r}")
            if n>=0: E[(n,r)].prio=pos[("qk",n)]+OPT.get("eo",4)+OPT.get("es",2)*r
    if cur:
        for f in range(8):
            qb=f%2; kp=f//2
            war=[G[k][kp] for k in (("pvo",qb,0),("pvo",qb,1),("one",qb)) if k in G]+ctx.get("pwar",{}).get(f,[])
            C=[]
            for h in range(2):
                n=s_block(f,h)
                en = -1 if n==15 else n
                for p2 in range(2):
                    deps=list(war)
                    if f==0 and h==0: t=1+p2; deps+=ctx.get("e14",[])
                    else:
                        deps+=[E[(en,2*p2)],E[(en,2*p2+1)]]; t=rel(E[(en,2*p2+1)])+1
                    c=add(vcvtp(vP(f)+2*h+p2,vS(n)+2*p2,vS(n)+2*p2+1),t,deps,name=f"C{f}.{2*h+p2}")
                    if not (f==0 and h==0): c.prio=E[(en,2*p2+1)].prio+1
                    C.append(c)
                    if ("eone",qb) in G: need(("eone",qb),kp,c)
                    nn=(n+8)%16
                    if ("qk",nn) in G and (n>=14 or n<8): need(("qk",nn),0,c)
            off=PB[par]+f*1024
            if str(f) in str(OPT.get("w32","")).replace("f",""):
                for x in range(4):
                    w=add(dsw32(vPw,vP(f)+x,off+4*x),rel(C[x])+1,[C[x]]+ctx.get("wdep",[]),name=f"W{f}.{x}"); must_bar.append(w)
            elif str(f) in str(OPT.get("w64","")).replace("f",""):
                for x in range(2):
                    w=add(dsw64(vPw,vP(f)+2*x,off+8*x),rel(C[2*x+1])+1,C[2*x:2*x+2]+ctx.get("wdep",[]),name=f"W{f}.{x}"); must_bar.append(w)
            else:
                w=add(dsw128(vPw,vP(f),off),rel(C[3])+1,C+ctx.get("wdep",[]),name=f"W{f}"); must_bar.append(w); w.prio=C[3].prio+1
        for n,ds_ in ctx.get("swar",{}).items():
            for o in ds_: need(("qk",n),0,o)
    if pv:
        for s,(j,qb) in enumerate(sets):
            for k in range(4):
                deps=[G[("pvx",s-2,1)][k]] if s>=2 else []
                t=nom[("pvx",s,0)]-OPT.get("rl",18)+k if s>=2 else s*OPT.get("r0",4)+k
                o=add(dsr128(vRing(s,k),vPr[j],PB[so]+(2*k+qb)*1024),t,deps,name=f"R{s}.{k}")
                need(("pvx",s,0),-1,o); must_bar.append(o)
        lw=add(dsw32(vLw,vLacc,so*512),nom[("one",1)]+8,[G[("one",1)][3]],name="LW"); must_bar.append(lw)
        if ("eone",0) in G:
            need(("eone",0),0,lw)
            must_bar.append(add(dsw32(vLw,vLacc,par*512),0,[G[("eone",1)][3]],name="eLW"))
    if nxt:
        a1=adds(salu(f"s_add_u32 s{sQrs}, s{sQrs}, {QSLOT}",S(sQrs),S(sQrs)+[SCC]),40,scc,name="qr+")
        a2=adds(salu(f"s_cmp_eq_u32 s{sQrs}, {QEND}",S(sQrs),[SCC]),41,[a1],name="qr?")
        a3=adds(salu(f"s_cselect_b32 s{sQrs}, {QBASE}, s{sQrs}",S(sQrs)+[SCC],S(sQrs)),42,[a2],name="qr=")
        scc=[a3]
        upd=add(valu(f"v_add_u32 v{vQrd}, s{sQrs}, v{vQrd0}",S(sQrs)+V(vQrd0),V(vQrd)),80,[a3]+ctx.get("rqprev",[]),name="qupd")
        for qb in range(2):
            lastn=11 if qb==0 else 13
            for ds in range(4):
                deps=[upd]+([G[("qk",lastn)][ds]] if ("qk",lastn) in G else [])+ctx.get("rqdep",[])
                o=add(dsr128(vQ(qb,ds),vQrd,qb*4160+ds*256),nom[("qk",lastn)]+1+ds,deps,name=f"RQ{qb}.{ds}")
                if qb==0: need(("qk",14),-1,o)
    if dodma:
        d1,b4=qdma_ops(b,P(ctx.get("dmaprio",OPT.get("dp",70))),ctx.get("dmadep",[]),scc=scc); scc=[b4]
    if ep:
        e=epilogue_ops(b,lambda qb,db:vO(par,qb,db),par*512,P(-1),P(OPT.get("ept",24)),OPT.get("epdt10",30)/10*scale,[],None,{},scc,sc=scale); scc=e["A"]
    if "late" in ctx: scc=ctx["late"](scc,must_bar)
    if loopctl:
        LP=112 if OPT.get("rot") else 128
        if "rw2" in OPT:
            w1=adds(salu(f"s_cmp_eq_u32 s{sLoop}, {OPT['rw2']}",S(sLoop),[SCC]),124,scc,name="rw?",earliest=124)
            w2=adds(salu(f"s_cbranch_scc1 {loopctl}_rw\n{loopctl}_rwb:",[SCC],[]),125,[w1],name="rwb",earliest=125); scc=[w2]
        c1=adds(salu(f"s_sub_u32 s{sLoop}, s{sLoop}, 1",S(sLoop),S(sLoop)+[SCC]),LP,scc,name="lp-",earliest=LP)
        c2=adds(salu(f"s_cmp_lg_u32 s{sLoop}, 0",S(sLoop),[SCC]),LP+1,[c1],name="lp?",earliest=LP+1)
        b.tail=[I(f"s_cbranch_scc1 {loopctl}","branch",[SCC])]
    b.slots.discard(base+nb-1)
    if last_bar: b.barrier(base+nb-1-baroff,must_bar,keep_dma=2*(D-2),all_ds=1)

def iteration(i, par, cur, nxt, pv, ep, dodma, prefix, log=None, **kw):
    b=Bld(); iter_parts(b,i,par,cur,nxt,pv,ep,dodma,**kw); return b.run(prefix,log)

def drain(i,prefix,log):
    b=Bld(); so=(i-1)%2; par=i%2
    ring=[128,144,64,80,32,48]; last={}
    for qb in range(2):
        for j in range(4):
            s_=qb*3+j-1
            for db in range(2):
                d=vO(so,qb,db)
                g=[mfma(d,aV(j,kp,db),vP(2*kp+qb) if j==0 else ring[s_]+4*kp,(vC0 if OC==1 else None) if (j==0 and kp==0) else d,name=f"PV{qb}{j}{db}.{kp}") for kp in range(4)]
                p=b.group(g); last[(qb,db)]=g[3]
                if j and db==0:
                    for k in range(4): b.need(p-1,b.add(dsr128(ring[s_]+4*k,vPr[j],PB[so]+(2*k+qb)*1024),s_*2+k/2,name=f"R{s_}.{k}"))
    e=epilogue_ops(b,lambda qb,db:vO(par,qb,db),par*512,-1,10,0.7,[],None,{},[],sc=0.5)
    epilogue_ops(b,lambda qb,db:vO(so,qb,db),so*512,20,34,0.7,[],last,e,e["A"],sc=0.3,tg="z")
    return b.run(prefix,log)

vOs=[80,112][:T-LAG-1]+[vO(T%2,0,0)]+[200,216,232][:LAG-1]+[vO(1-T%2,0,0)]
vLs=lambda t:248+t
sKo=64
sVm=72
vKA,vVA,vTB,vTD=255,0,192,15
def kdma_units(c):
    u=[]
    for pr in range(4):
        for n in range(2):
            d=dma(vQdma,sK,45,n*1024); d.tag=f"K{c}"
            u.append(([salu(f"s_add_u32 m0, s54, {(pr//2)*4160+(pr%2)*2080}",S(54),[M0,SCC]), salu(f"s_add_u32 s45, s44, {c*8192+pr*2048}",S(44),S(45)+[SCC])] if n==0 else [])+[d])
    return u
def qdma_units(t):
    d0=dma(vQdma,sQ,46,0); d1=dma(vQdma,sQ,46,1024); d0.tag=d1.tag=f"Q{t}"
    return [[salu(f"s_add_u32 m0, s{sWoff}, {(t%NQ)*QSLOT}",S(sWoff),[M0,SCC]),salu(f"s_mov_b32 s46, {t*8192}",[],S(46)),d0],[d1]]
def vdma_units(c):
    u=[]
    for hf in range(2):
        for n in range(4):
            d=dma(vVA,sV,sKo+2*c+hf,n*1024); d.tag=f"V{c}"
            u.append(([salu(f"s_mov_b32 m0, s{sVm+hf}",S(sVm+hf),[M0])] if n==0 else [])+[d])
    return u
flat=lambda u:[x for y in u for x in y]
STREAM=kdma_units(0)+qdma_units(0)+qdma_units(1)+qdma_units(2)+vdma_units(0)+flat([qdma_units(t) for t in range(3,T)])+kdma_units(1)
NPRO=OPT.get("npro",20)
def kread(c):
    o=[dsr128(aK(2*c+h,ds),vKA,h*4160+ds*256,file='a') for h in range(2) for ds in range(4)]
    for x in o: x.meta["tags"]={f"K{c}"}
    return o
aSC=lambda lo,half:aV(lo,3,half)
vKT=[192,196,vLrd]
def rewarm(lbl): return [raw(f"s_mov_b32 s55, {lbl}-L_pc"), I("buffer_load_dword v253, v254, s[56:59], s55 offen","vld",V(254),V(253))]
def vscale():
    o=[]; t=232; m=[236,237]; u=238
    for db in range(2):
        a=aV(0,0,db)
        o+=[vop(f"v_accvgpr_read_b32 v{t+r}, a{a+r}",A(a+r),V(t+r)) for r in range(4)]
        o+=[vop(f"v_max3_f32 v{m[db]}, |v{t}|, |v{t+1}|, |v{t+2}|",V(t,3),V(m[db])), vop(f"v_max_f32 v{m[db]}, v{m[db]}, |v{t+3}|",V(m[db])+V(t+3),V(m[db]))]
        for w_ in(32,16):
            o+=[vop(f"v_mov_b32 v{u}, v{m[db]}",V(m[db]),V(u)), valu(f"v_permlane{w_}_swap_b32 v{m[db]}, v{u}",V(m[db])+V(u),V(m[db])+V(u),"perm"), v2("v_max_f32",m[db],m[db],u)]
    o.append(v2("v_min_f32",u,m[0],m[1]))
    for r in(8,4,2,1):
        x=vop(f"v_min_f32_dpp v{u}, v{u}, v{u} row_ror:{r} row_mask:0xf bank_mask:0xf",V(u),V(u)); x.meta["dpp"]=1; o.append(x)
    o+=[vop(f"v_min_f32 v{u}, {(127+60)<<23:#x}, v{u}",V(u),V(u)), vop(f"v_and_b32 v{u}, 0x7f800000, v{u}",V(u),V(u))]
    o+=[vop(f"v_add_u32 v{vC0+r}, {(OPT.get('oce',2)<<23)+0x400000:#x}, v{u}",V(u),V(vC0+r)) for r in range(4)]
    return o
def touch_ins(): return I(f"buffer_load_dword v253, v254, s[{sO}:{sO+3}], 0 offen nt","vld",V(254)+S(sO,4),V(253))
def ksops(c,j):
    a=aK(2*c+j//8,(j//2)%4)+2*(j%2); d=vKT[j%3]
    return [vcvt(d,d,d+1),vcvt(d+1,d+2,d+3)]+[vop(f"v_accvgpr_write_b32 a{a+x}, v{d+x}",V(d+x),A(a+x)) for x in range(2)]
def kscale(c,extra=None):
    o=[]
    for j in range(16):
        a=aK(2*c+j//8,(j//2)%4); d=vKT[j%3]; x=ksops(c,j-2) if j>=2 else [nop(2),None,nop(2),None]
        if j%2==0: o.append(waitslot())
        o+=[mfma(d,aSC(0,j%2),a,None,bfile='a',name="KSh")]+(extra(j) if extra else [])+x[:2]+[mfma(d,aSC(1,j%2),a,d,bfile='a',name="KSl")]+x[2:]
    return [i for i in o if i is not None]
def startup(prefix,log,off=0):
    b=Bld(); NS=4*T
    Sb=lambda n:64+(n%4)*4
    OWN=OPT.get("own",1) and T-LAG<=2
    Pw=lambda k,qb:96+((k%(4 if OWN else 2))*2+qb)*4
    ownk=lambda k:OWN and k<NS-OPT.get("ownskip",2)
    ent=lambda k,qb:PB[T%2 if (LAG>3 and 3*T<=k<NS-LAG) else 1-T%2]+((k%4)*2+qb)*1024
    assert LAG<=3 or all(k%4 for k in range(3*T,NS-LAG))
    pvstep=lambda k:k+(LAG0 if k<3*T else LAG)
    pvof={pvstep(k):k for k in range(NS)}
    QK={}; PV={}; ONE={}; start={}; end={}; posQ={}; posP={}; posO={}
    def pvg(k,qb,db):
        c,t=divmod(k,T); d=vOs[t]+qb*8+db*4
        return [mfma(d,aV(j,c,db),Pw(k,qb) if (ownk(k) and j==0) else vRing(2*k+qb,j),(vC0 if (OC==1 and t==T-1) else None) if (c==0 and j==0) else d,name=f"PV{k}.{qb}{db}.{j}") for j in range(4)]
    def oneg(k): return [mfma(vLacc,vSEL[0],Pw(k,0),None,afile='v',name=f"ONE{k}.0"),mfma(vLacc,vSEL[1],Pw(k,1),vLacc,afile='v',name=f"ONE{k}.1")]
    for k in range(NS):
        c,t=divmod(k,T)
        start[k]=len(b.bb)
        for ch in range(4):
            kb=2*c+ch%2; qb=ch//2; n=4*k+ch
            QK[(k,ch)]=[qkm(Sb(n),aK(kb,ds),vQ(qb,ds),ds==0,f"QK{k}.{ch}.{ds}") for ds in range(4)]
            posQ[(k,ch)]=b.group(QK[(k,ch)])
            if k in pvof:
                key=(pvof[k],ch//2,ch%2); PV[key]=pvg(*key); posP[key]=b.group(PV[key])
            if ch==2 and k>=1: ONE[k-1]=oneg(k-1); posO[k-1]=b.group(ONE[k-1])
        if k==NS-1:
            for n in(14,15):
                f,h,kb,qb=chain_info(n)
                QK[("pre",n)]=[qkm(vS(n),aK(kb,ds),vQ(qb,ds),ds==0,f"QKp{n}.{ds}") for ds in range(4)]
                posQ[("pre",n)]=b.group(QK[("pre",n)])
        end[k]=len(b.bb)-1
    cus={}
    x=0
    for k in range(NS-LAG,NS):
        for qb in range(2):
            for db in range(2):
                PV[(k,qb,db)]=pvg(k,qb,db); cus[x]=("pv",(k,qb,db)); x+=1
                if x==3: ONE[NS-1]=oneg(NS-1); cus[x]=("one",NS-1); x+=1
    nskip=18-len(cus); hi=OPT.get("skiphi",14)
    skip=set(hi-2*j for j in range(nskip)); slots_=[y for y in range(18) if y not in skip]
    cus={slots_[y]:v for y,v in cus.items()}
    def Ncustom(x):
        if x not in cus: return None
        return PV[cus[x][1]] if cus[x][0]=="pv" else ONE[cus[x][1]]
    def placed(x,p):
        (posP if cus[x][0]=="pv" else posO)[cus[x][1]]=p
    BAR={}; W={}; C={}; LA={}; LW={}; RQ={}; TR={}; E={}
    bdeps={k:[] for k in range(NS)}; btags={k:set() for k in range(NS)}; bneed={k:[] for k in range(NS)}
    for k in range(NS): BAR[k]=b.barrier(end[k]-off,[],tags=btags[k],need=set())
    def bneeds(k,o): BAR[k].deps.append(o); BAR[k].ins.meta["need"].add(id(o.ins))
    for k in range(1,NS): BAR[k].deps.append(BAR[k-1])
    state={"scc":[],"dma":[],"ep":{}}
    def softmax(k):
        c,t=divmod(k,T)
        for ch in range(4):
            n=4*k+ch; qb=ch//2; h=ch%2
            for r in range(4): E[(k,ch,r)]=b.add(vexp(Sb(n)+r),posQ[(k,ch)]+6+2*r,[QK[(k,ch)][3]],name=f"E{k}.{ch}.{r}")
            for p2 in range(2):
                deps=[E[(k,ch,2*p2)],E[(k,ch,2*p2+1)]]
                if OWN:
                    if k>=4: deps+=[ONE[k-4][qb],W[(k-4,qb)],PV[(k-4,qb,0)][0],PV[(k-4,qb,1)][0]]
                elif k>=2: deps+=[ONE[k-2][qb],W[(k-2,qb)]]
                o=b.add(vcvtp(Pw(k,qb)+2*h+p2,Sb(n)+2*p2,Sb(n)+2*p2+1),E[(k,ch,2*p2+1)].prio+1,deps,name=f"C{k}.{ch}.{p2}")
                C[(k,ch,p2)]=o
                if k+1<NS: b.need(posQ[(k+1,ch)],o)
            if h==1:
                W[(k,qb)]=b.add(dsw128(vPw,Pw(k,qb),ent(k,qb)),C[(k,ch,1)].prio+1,[C[(k,cc,pp)] for cc in(ch-1,ch) for pp in range(2)]+([BAR[pvstep(k-4)]] if (k>=4 and pvstep(k-4)<k and ent(k,0)==ent(k-4,0)) else [])+([BAR[k-3]] if k>NS-LAG else []),name=f"W{k}.{qb}")
                if k+1<NS: bneeds(k+1,W[(k,qb)])
    for k in range(NS): softmax(k)
    def one_ops(k):
        c,t=divmod(k,T)
        for cc in range(4):
            for pp in range(2): b.need(posO[k],C[(k,cc,pp)])
        if k>=1: b.need(posO[k],LA[k-1])
        ins=valu(f"v_mov_b32 v{vLs(t)}, v{vLacc}",V(vLacc),V(vLs(t))) if c==0 else v2("v_add_f32",vLs(t),vLs(t),vLacc)
        LA[k]=b.add(ins,posO[k]+6,[ONE[k][1]],name=f"LA{k}")
        if c==3:
            LW[t]=b.add(dsw32(vLw,vLs(t),((T-1)%2)*512 if t==T-1 else 1024+t*512),posO[k]+8,[LA[k]],name=f"LW{t}")
            if k+1<NS: bneeds(k+1,LW[t])
    for k in range(NS-1): one_ops(k)
    def preads(k):
        for qb in range(2):
            for j in range(1 if ownk(k) else 0,4):
                deps=[BAR[k+1]]+([PV[(k-1,qb,1)][j]] if k>=1 else [])
                o=b.add(dsr128(vRing(2*k+qb,j),vPw if j==0 else vPr[j],ent(k,qb)),posP[(k,qb,0)]-OPT.get('rlead',12)+j,deps,name=f"R{k}.{qb}.{j}")
                b.need(posP[(k,qb,0)]-1,o); state.setdefault("R",[]).append(o)
    for k in range(NS-LAG): preads(k)
    for k in range(NS+1):
        t=k%T if k<NS else T%NQ
        for qb in range(2):
            for ds in range(4):
                deps=[QK[(k-1,2*qb+1)][ds]] if k>=1 else []
                if 2<=k<T: deps.append(BAR[k-2]); btags[k-2].add(f"Q{k}")
                if k==NS: deps.append(BAR[NS-2]); btags[NS-2].add(f"Q{T}")
                pr=(posQ[(k-1,2*qb+1)]+1+ds) if k>=1 else 14+4*qb+ds
                o=b.add(dsr128(vQ(qb,ds),vQrd,t*QSLOT+qb*4160+ds*256),pr,deps,name=f"RQ{k}.{qb}.{ds}"); RQ[(k,qb,ds)]=o
                if k<NS: b.need(posQ[(k,2*qb)]-1,o)
                elif qb==0: b.need(posQ[("pre",14)]-1,o)
    btags[NS-1].add(f"Q{T+1}")
    state["chain"]=[]; hard={0,1}
    def issue(units,where,deps,nm):
        for u,(k,fr) in zip(units,where):
            tt=int(start[k]+fr*(end[k]-start[k])); prev=list(deps)+state["chain"]+state["scc"]
            cap=OPT.get("cap0") if nm=="D" else OPT.get("cap1")
            if cap: u=[wait(vm=cap)]+list(u)
            nd=[x.kind for x in u].index("dma")
            for x,ins in enumerate(u):
                if ins.kind in("salu","wait"): o=b.adds(ins,tt+x-nd-3,prev,name="s"+nm,earliest=tt+x-nd-3 if x<nd else 0)
                else: o=b.add(ins,tt,prev,earliest=tt,name=nm); ins.cost=OPT.get("sdmac",8)
                prev=[o]
            state["chain"]=prev; state["scc"]=prev
            if k in hard: BAR[k].deps.append(prev[0])
    def spread(n,k0,per):
        w=[]; k=k0
        while len(w)<n:
            m=min(per,n-len(w)); w+=[(k,(x+0.5)/per) for x in range(m)]; k+=1
        return w
    kchain=[]
    def extra(j):
        o=flat([([wait(vm=OPT["cap0"])] if OPT.get("cap0") else [])+u for u in STREAM[12+(NPRO-12)*j//16:12+(NPRO-12)*(j+1)//16]])
        if j==9: o+=[waitslot(),bar(tags={"Q0","Q1"},need=set())]
        if 10<=j<14: o+=[RQ[(0,(j-10)//2,2*(j%2)+x)].ins for x in range(2)]
        return o
    for qb in range(2):
        for ds in range(4): o=RQ[(0,qb,ds)]; b.ops.remove(o); o.done=True; o.gap=-1
    ks0=b.add([waitslot()]+kread(0)+kscale(0,extra)+[waitslot()],0,[],name="KS0"); b.need(0,ks0)
    rest=STREAM[NPRO:]
    n0=OPT.get("n0",4); n1=OPT.get("n1",10)
    w=[(0,(x+0.5)/n0) for x in range(n0)]+[(1,OPT.get('f1',30)/100+0.5*x/n1) for x in range(n1)]
    w=w[:len(rest)]; w+=spread(len(rest)-len(w),2,2)
    issue(rest,w,[ks0],"D")
    lastk=w[-1][0]
    for c in range(4):
        s1=pvstep(c*T)-1
        btags[s1-1].add(f"V{c}")
        p0=start[c*T]
        if c==0: ks=ks0
        else:
            kr=[b.add(ins,p0-14+x,kchain,earliest=p0-16,name=f"KR{c}") for x,ins in enumerate(kread(c))]
            ks=b.add(kscale(c),p0,kr+state["TR"],name=f"KS{c}"); b.need(p0,ks)
        aw=[]
        for j in(14,15):
            x=ksops(c,j); prev=[ks]
            for n,ins in enumerate(x): o=b.add(ins,p0-8+j-14+n*0.1,prev,name="Kx"); prev=[o]; aw.append(o); b.need(posQ[(c*T,1)],o)
        state["KS"]=aw
        if OPT.get("rw1",-1)==c:
            x=rewarm("L_merged"); x[0].kind="salu"
            o0=b.adds(x[0],p0-2,[ks],name="sRW"); state["chain"]=[b.add(x[1],p0,[o0]+state["chain"],name="RW")]
        if OPT.get("touch") and OPT.get("tpos")==c: state["chain"]=[b.add(touch_ins(),p0,[ks]+state["chain"],name="TOUCH")]
        if 1<=c<3: issue(kdma_units(c+1),spread(8,c*T,OPT.get("kper",6)),[ks],f"KD{c+1}")
        kchain=state["chain"]
        state["TR"]=[]
        for j in range(4):
            r=vPw if j==0 else vPr[j]
            tb=b.add(v2("v_add_u32",vTB+j,vTD,r),start[s1-1]+j,state.get("KS",[]),earliest=start[s1-1],name="TB")
            for db in range(2):
                for hf in range(2):
                    a=aV(j,c,db)+2*hf
                    o=b.add(I(f"ds_read_b64_tr_b16 a[{a}:{a+1}], v{vTB+j} offset:{hf*4096+8*db}","dsr",V(vTB+j),A(a,2)),start[s1]+j*4+db*2+hf,[BAR[s1-1],tb],name=f"TR{c}")
                    b.need(posP[(c*T,0,0)]-1,o); bneeds(s1,o); state["TR"].append(o)
        if c==0 and OC==1 and "ocfix" not in OPT:
            assert LAG<=3 and T-LAG<=2
            prev=list(state["TR"][:4]); tt=start[s1+1]+2
            for ins in vscale(): o=b.add(ins,tt,prev,name="VS"); prev=[o]; tt+=2
            b.need(posP[(T-1,0,0)],o)
        if c<3: issue(vdma_units(c+1),(spread(8,max(s1+1,lastk,OPT.get("v1",0)),OPT.get("v1per",6)) if c==0 else spread(8,s1+1,OPT.get("vper",6))),[BAR[s1]],f"VD{c+1}")
    state["ep"]={"L":state["KS"],"S":state["TR"]}
    for x in range(D):
        t=T+x; k=min(max(3*T+1+t-NQ,3*T-1+x*OPT.get("qstep",1)+OPT.get("q0",0)),NS-1)
        issue(qdma_units(t),[(k,0.25),(k,0.6)],[BAR[3*T+t-NQ]] if t>=NQ else [],"QD")
    chain=state["chain"]
    def ep(t,t0,tm,dt,scc):
        k=3*T+t
        od={(qb,db):PV[(k,qb,db)][3] for qb in range(2) for db in range(2)}
        e=epilogue_ops(b,lambda qb,db:vOs[t]+qb*8+db*4,1024+t*512,t0,tm,dt,[BAR[k+1]],od,state["ep"],scc,sc=0.5,tg=f"t{t}",OC=0)
        state["ep"]=e; return e
    eps={}; BARX=[]
    for t in range(T-LAG-1+0):
        k=3*T+t+LAG
        eps[t]=ep(t,start[k]+8,start[k]+20,1.3,state["scc"]); state["scc"]=eps[t]["A"]
    if T-LAG>=2:
        for o in eps[0]["M"]+eps[0]["S"]: b.need(posQ[("pre",14)],o)
    e14=[b.add(vexp(vS(14)+r),posQ[("pre",14)]+6+2*r,[QK[("pre",14)][3]],name=f"Ep{r}") for r in range(4)]
    def late(scc,must_bar):
        BAR[NS]=b.barrier(end[NS-1]+1+OPT.get("barx",23)+3-off,[BAR[NS-1]],keep=True,need=set())
        for qb in range(2): bneeds(NS,W[(NS-1,qb)])
        BARX.append(BAR[NS])
        state["R"]=[]
        for k in range(NS-LAG,NS): preads(k)
        must_bar+=state["R"]
        one_ops(NS-1); must_bar.append(LW[T-1])
        for t in range(T-LAG-1,T-1):
            k=3*T+t
            p=posP[(k,0,0)] if k>=NS-LAG else end[NS-1]-8
            p+=OPT.get("epd",0)*(t-(T-LAG-1))
            eps[t]=ep(t,p-6,p+10,OPT.get("epdt0",12)/10,scc); scc=eps[t]["A"]
        return scc
    last=NS-1
    ctx=dict(dmaprio=5,placed=placed,late=late,scc=state["scc"],c15=[QK[("pre",15)][3]],e14=e14,dmadep=chain+[BAR[last]],
             must_bar=[W[(last,0)],W[(last,1)]],wdep=[BAR[last]],rqdep=[BAR[last]],rqprev=[RQ[(NS,qb,ds)] for qb in range(2) for ds in range(4)],
             pwar={f:[ONE[NS-4+f//2][f%2],W[(NS-4+f//2,f%2)]]+([PV[(NS-4+f//2,f%2,0)][0],PV[(NS-4+f//2,f%2,1)][0]] if ownk(NS-4+f//2) else []) for f in range(8)} if OWN else
                  {0:[ONE[last-1][0],W[(last-1,0)]],1:[ONE[last-1][1],W[(last-1,1)]],2:[ONE[last][0],W[(last,0)]],3:[ONE[last][1],W[(last,1)]],
                   **({f:eps[1]["M"]+eps[1]["S"] for f in range(4,8)} if T-LAG>=3 else {})},
             swar={n:[C[(last,n,pp)] for pp in range(2)] for n in range(4)})
    iter_parts(b,T,T%2,1,1,0,0,1,Ncustom=Ncustom,ctx=ctx,baroff=off)
    b.sops[-1].deps.append(BAR[NS])
    for ds in range(4): b.need(end[last]+1+8-1,RQ[(NS,1,ds)])
    res=b.run(prefix,log,overdue=OPT.get("od",3))
    if OPT["stamp"]==2 and not OPT.get("ps") and "lg0" not in OPT:
        p0=OPT.get('p0'); pts=[2,3,6,9,13,16,20,23,27] if p0 is None else list(range(p0,p0+9)); o=[]
        for x in res:
            o.append(x)
            for n,k in enumerate(pts):
                if x is BAR[k].ins: o.append(raw(f"{'s_memtime' if OPT.get('cyc') else 's_memrealtime'} s[{78+2*n}:{79+2*n}]"))
        res=o
        if OPT.get("fine"):
            o=[]; on=False; n=0; x_=0
            for x in res:
                if x.kind=="raw" and x.text.startswith("s_mem"): continue
                o.append(x)
                if x is BAR[NS-1].ins: on=True; o.append(raw("s_memtime s[78:79]")); n=1
                if on and x.kind=="mfma":
                    x_+=1
                    if x_%OPT["fine"]==0 and n<9: o.append(raw(f"s_memtime s[{78+2*n}:{79+2*n}]")); n+=1
            res=o
    n=[n for n,x in enumerate(res) if x is BAR[NS-3].ins][0]
    res=res[:n+1]+[label(f"L_merged{off if off else ''}")]+res[n+1:]
    if "spinbar" in OPT:
        n=[n for n,x in enumerate(res) if x is BAR[OPT["spinbar"]].ins][0]
        res=res[:n+1]+stamp(1)+res[n+1:]
    if "spinfrom" in OPT:
        n=[n for n,x in enumerate(res) if x is BAR[OPT["spinfrom"]].ins][0]
        res=res[:n+1]+stamp(0)+res[n+1:]
    if OPT.get("seg"):
        idx=[n for n,x in enumerate(res) if x.kind=="bar"]
        print("step est:",[estimate(res[a:z]) for a,z in zip(idx,idx[1:])],file=sys.stderr)
    return res

class Seq:
    def __init__(s,prefix=()): s.o=list(prefix); s.n0=len(s.o)
    def __call__(s,*ins,slot=True):
        for i in ins:
            if slot and i.kind not in("label","comment","salu","wait","branch","raw","nop"): s.o.append(waitslot())
            k=hazard_need(s.o,i)
            if k>0: s.o.append(nop(k))
            s.o.append(i)
    def out(s): return s.o[s.n0:]

def vop(t,rd,wr): return valu(t,rd,wr)
def prologue():
    q=Seq()
    q(salu("s_cmp_ge_u32 s2, 256",S(2),[SCC]), I("s_cbranch_scc1 L_end","branch",[SCC]))
    if OPT["stamp"]: q(raw("s_memtime s[60:61]"),raw("s_memrealtime s[62:63]"),raw(f"s_load_dwordx2 s[{sDbg}:{sDbg+1}], s[0:1], 32"))
    q(raw("s_load_dwordx4 s[36:39], s[0:1], 0"), raw("s_load_dwordx4 s[40:43], s[0:1], 16"))
    L,Q_,G_,T1,T2,T3=200,201,202,203,204,205
    if OPT.get("warm",2):
        q(raw("s_getpc_b64 s[56:57]"), label("L_pc"), raw("s_and_b32 s57, s57, 0xffff"), raw("s_mov_b32 s58, L_end-L_pc"), raw("s_mov_b32 s59, 0x20000"))
        q(vop(f"v_lshlrev_b32 v{T2}, 7, v0",V(0),V(T2)))
    def warm(ks):
        for k in ks:
            q(raw(f"s_mov_b32 s55, {k*32768}"))
            q(I(f"buffer_load_dword v{232+k}, v{T2}, s[56:59], s55 offen","vld",V(T2),V(232+k)),slot=False)
    nw=OPT.get("warm",2); we=OPT.get("wearly",1)
    warm(range(min(we,nw)))
    if "rw1" in OPT or "rw2" in OPT: q(vop(f"v_mov_b32 v254, v{T2}",V(T2),V(254)))
    q(vop(f"v_and_b32 v{L}, 63, v0",V(0),V(L)), vop(f"v_lshrrev_b32 v{T1}, 6, v0",V(0),V(T1)))
    q(I(f"v_readfirstlane_b32 s{sW}, v{T1}","valu",V(T1),S(sW),meta={"rfl":1}))
    q(vop(f"v_and_b32 v{Q_}, 15, v{L}",V(L),V(Q_)), vop(f"v_lshrrev_b32 v{G_}, 4, v{L}",V(L),V(G_)))
    R_,C_=208,209
    q(vop(f"v_bfe_u32 v{R_}, v{L}, 2, 2",V(L),V(R_)), vop(f"v_and_b32 v{C_}, 3, v{L}",V(L),V(C_)))
    q(salu(f"s_mul_i32 s3, s2, {QBYTES}",S(2),S(3)), salu("s_lshl_b32 s31, s2, 17",S(2),S(31)))
    q(salu(f"s_lshl_b32 s46, s{sW}, 11",S(sW),S(46)), salu(f"s_lshl_b32 s{sKo}, s{sW}, 15",S(sW),S(sKo)))
    q(vop(f"v_lshlrev_b32 v{vQdma}, 8, v{R_}",V(R_),V(vQdma)), vop(f"v_lshl_add_u32 v{vQdma}, v{G_}, 6, v{vQdma}",V(G_)+V(vQdma),V(vQdma)),
      vop(f"v_lshl_add_u32 v{vQdma}, v{C_}, 4, v{vQdma}",V(C_)+V(vQdma),V(vQdma)), vop(f"v_add_u32 v{vQdma}, s46, v{vQdma}",S(46)+V(vQdma),V(vQdma)))
    q(salu(f"s_mul_i32 s47, s{sW}, 2080",S(sW),S(47)), salu(f"s_add_u32 s{sWoff}, s47, {QBASE}",S(47),S(sWoff)))
    q(salu(f"s_sub_u32 s44, s{sKo}, s46",S(sKo)+S(46),S(44)), salu(f"s_mul_i32 s54, s{sW}, {QSLOT}",S(sW),S(54)), salu(f"s_add_u32 s54, s54, {KBASE}",S(54),S(54)))
    for srd,nb in((sQ,QBYTES),(sK,KBYTES),(sV,KBYTES),(sO,QBYTES)):
        q(salu(f"s_mov_b32 s{srd+2}, {nb}",[],S(srd+2)), salu(f"s_mov_b32 s{srd+3}, 0x20000",[],S(srd+3)))
    q(raw("s_waitcnt lgkmcnt(0)"))
    def base(srd,src,off):
        q(salu(f"s_add_u32 s{srd}, s{src}, s{off}",S(src)+S(off),S(srd)), salu(f"s_addc_u32 s{srd+1}, s{src+1}, 0",S(src+1),S(srd+1)),
          salu(f"s_and_b32 s{srd+1}, s{srd+1}, 0xffff",S(srd+1),S(srd+1)))
    ps=lambda n:[raw(f"s_memrealtime s[{78+2*n}:{79+2*n}]")] if OPT.get("ps") else []
    base(sK,38,31); q(*ps(0),*flat(STREAM[:8]),*ps(1),slot=False)
    base(sQ,36,3); q(*flat(STREAM[8:12]),slot=False)
    warm(range(min(we,nw),nw))
    base(sV,40,31); base(sO,42,3)
    if OPT.get("touch"):
        q(vop(f"v_lshlrev_b32 v{T2}, {OPT.get('tsh',12)}, v0",V(0),V(T2)))
        q(vop(f"v_mov_b32 v254, v{T2}",V(T2),V(254)))
        if not OPT.get("tpos"): q(touch_ins(),slot=False)
    for n in range(1,8): q(salu(f"s_add_u32 s{sKo+n}, s{sKo}, {n*4096}",S(sKo),S(sKo+n)))
    q(salu(f"s_add_u32 s{sT}, s47, {QEND}",S(47),S(sT)), salu(f"s_add_u32 s{sQm0}, s{sWoff}, {((T+D)%NQ)*QSLOT}",S(sWoff),S(sQm0)), salu(f"s_mov_b32 s{sQso}, {(T+D)*8192}",[],S(sQso)))
    q(vop(f"v_lshlrev_b32 v{T1}, 2, v{G_}",V(G_),V(T1)), vop(f"v_xor_b32 v{T1}, v{T1}, v{Q_}",V(T1)+V(Q_),V(T1)),
      vop(f"v_lshlrev_b32 v{T1}, 4, v{T1}",V(T1),V(T1)), vop(f"v_lshl_add_u32 v{vVA}, v{G_}, 8, v{T1}",V(G_)+V(T1),V(vVA)))
    q(salu(f"s_lshl_b32 s48, s{sW}, 13",S(sW),S(48)), salu(f"s_add_u32 s{sVm}, s48, {VBASE}",S(48),S(sVm)), salu(f"s_add_u32 s{sVm+1}, s48, {VBASE+4096}",S(48),S(sVm+1)))
    q(*ps(2))
    q(vop(f"v_lshrrev_b32 v{T1}, 2, v{Q_}",V(Q_),V(T1)), vop(f"v_lshlrev_b32 v{vQrd0}, 10, v{T1}",V(T1),V(vQrd0)),
      vop(f"v_lshrrev_b32 v{T1}, 3, v{Q_}",V(Q_),V(T1)), vop(f"v_lshl_add_u32 v{vQrd0}, v{T1}, 5, v{vQrd0}",V(T1)+V(vQrd0),V(vQrd0)),
      vop(f"v_lshl_add_u32 v{vQrd0}, v{C_}, 6, v{vQrd0}",V(C_)+V(vQrd0),V(vQrd0)), vop(f"v_lshl_add_u32 v{vQrd0}, v{G_}, 4, v{vQrd0}",V(G_)+V(vQrd0),V(vQrd0)))
    q(salu(f"s_mov_b32 s{sQrs}, {QBASE+(T%NQ)*QSLOT}",[],S(sQrs))); q(vop(f"v_add_u32 v{vQrd}, {QBASE}, v{vQrd0}",V(vQrd0),V(vQrd)))
    for j in range(4):
        q(salu(f"s_add_u32 s49, s{sW}, {j}",S(sW),S(49)), salu("s_and_b32 s49, s49, 3",S(49),S(49)), salu(f"s_lshl_b32 s{50+j}, s49, 13",S(49),S(50+j)))
        r=vPw if j==0 else vPr[j]
        q(vop(f"v_lshl_add_u32 v{r}, v{L}, 4, s{50+j}",V(L)+S(50+j),V(r)))
    q(salu(f"s_lshl_b32 s49, s{sW}, 6",S(sW),S(49)))
    q(vop(f"v_lshlrev_b32 v{vOst}, 8, v{Q_}",V(Q_),V(vOst)), vop(f"v_lshl_add_u32 v{vOst}, v{G_}, 4, v{vOst}",V(G_)+V(vOst),V(vOst)), vop(f"v_add_u32 v{vOst}, s49, v{vOst}",S(49)+V(vOst),V(vOst)))
    q(vop(f"v_lshrrev_b32 v{T1}, 1, v{G_}",V(G_),V(T1)), vop(f"v_lshl_add_u32 v{T1}, v{T1}, 4, v{Q_}",V(T1)+V(Q_),V(T1)),
      vop(f"v_lshlrev_b32 v{T1}, 4, v{T1}",V(T1),V(T1)), vop(f"v_add_u32 v{vLr}, {LBASE}, v{T1}",V(T1),V(vLr)))
    q(salu(f"s_lshl_b32 s49, s{sW}, 2",S(sW),S(49))); q(vop(f"v_add_u32 v{vLw}, s49, v{vLr}",S(49)+V(vLr),V(vLw)))
    q(vop(f"v_mov_b32 v{vLmax}, 0",[],V(vLmax)), vop(f"v_mov_b32 v{vRmax}, 0",[],V(vRmax)))
    if OC and "ocfix" in OPT:
        for r in range(4): q(vop(f"v_mov_b32 v{vC0+r}, {struct.unpack('<I',struct.pack('<f',OPT['ocfix']/8))[0]:#x}",[],V(vC0+r)))
    if abs(CI)>4:
        assert max(vOs)+15<vCI or T-LAG<=2 and LAG<=3
        for r in range(4): q(vop(f"v_mov_b32 v{vCI+r}, {struct.unpack('<I',struct.pack('<f',CI))[0]:#x}",[],V(vCI+r)))
    q(vop(f"v_mov_b32 v{T1}, 0x3f803f80",[],V(T1)), valu(f"v_cmp_gt_u32 vcc, 8, v{Q_}",V(Q_),[VCC]))
    for r in range(4):
        q(valu(f"v_cndmask_b32 v{vSEL[0]+r}, 0, v{T1}, vcc",V(T1)+[VCC],V(vSEL[0]+r)))
        q(vop(f"v_xor_b32 v{vSEL[1]+r}, v{T1}, v{vSEL[0]+r}",V(T1)+V(vSEL[0]+r),V(vSEL[1]+r)))
    if OPT.get("trunc"): q(salu("s_mov_b32 s74, 0x07060302",[],S(74)))
    q(salu(f"s_mov_b32 s{sO0}, 0",[],S(sO0)), salu(f"s_mov_b32 s{sO1}, 4096",[],S(sO1)))
    q(vop(f"v_lshlrev_b32 v{T1}, 2, v{R_}",V(R_),V(T1)), vop(f"v_add_u32 v{T2}, s49, v{C_}",S(49)+V(C_),V(T2)), vop(f"v_xor_b32 v{T2}, v{T2}, v{T1}",V(T1)+V(T2),V(T2)),
      vop(f"v_lshl_add_u32 v{T3}, v{G_}, 2, v{R_}",V(G_)+V(R_),V(T3)), vop(f"v_lshlrev_b32 v{T3}, 8, v{T3}",V(T3),V(T3)), vop(f"v_lshl_add_u32 v{T3}, v{T2}, 4, v{T3}",V(T2)+V(T3),V(T3)),
      vop(f"v_lshlrev_b32 v{T1}, 4, v{L}",V(L),V(T1)), v2("v_sub_u32",T3,T3,T1), vop(f"v_add_u32 v{vTD}, {VBASE}, v{T3}",V(T3),V(vTD)))
    q(vop(f"v_add_u32 v{vKA}, s54, v{vQrd0}",S(54)+V(vQrd0),V(vKA)))
    q(vop(f"v_lshrrev_b32 v{T1}, 2, v{Q_}",V(Q_),V(T1)), valu(f"v_cmp_eq_u32 vcc, v{T1}, v{G_}",V(T1)+V(G_),[VCC]),
      vop(f"v_and_b32 v{T1}, 1, v{L}",V(L),V(T1)), vop(f"v_lshlrev_b32 v{T1}, 4, v{T1}",V(T1),V(T1)),
      vop(f"v_and_b32 v{T2}, 2, v{L}",V(L),V(T2)), valu(f"v_cmp_eq_u32 s[50:51], 0, v{T2}",V(T2),S(50,2)))
    for lo,cb in enumerate((CHI,CLO)):
        q(vop(f"v_mov_b32 v{T2}, {cb:#x}",[],V(T2)), v2("v_lshlrev_b32",T2,T1,T2), valu(f"v_cndmask_b32 v{T2}, 0, v{T2}, vcc",V(T2)+[VCC],V(T2)),
          valu(f"v_cndmask_b32 v{T3}, 0, v{T2}, s[50:51]",V(T2)+S(50,2),V(T3)), v2("v_xor_b32",T2,T2,T3))
        for half in range(2):
            a=aSC(lo,half)
            q(vop(f"v_accvgpr_write_b32 a{a+2*half}, v{T3}",V(T3),A(a+2*half)), vop(f"v_accvgpr_write_b32 a{a+2*half+1}, v{T2}",V(T2),A(a+2*half+1)),
              vop(f"v_accvgpr_write_b32 a{a+2-2*half}, 0",[],A(a+2-2*half)), vop(f"v_accvgpr_write_b32 a{a+3-2*half}, 0",[],A(a+3-2*half)))
    q(*ps(3))
    return q.out()

def fallback():
    q=Seq()
    q(label("L_fallback"), wait(vm=0,lg=0), bar())
    q(salu(f"s_mov_b32 s{sQso}, 0",[],S(sQso)), salu(f"s_mov_b32 s{sO0}, 0",[],S(sO0)), salu(f"s_mov_b32 s{sO1}, 4096",[],S(sO1)), salu(f"s_mov_b32 s{sLoop}, {NT}",[],S(sLoop)))
    q(vop(f"v_add_u32 v{vQrd}, {QBASE}, v{vQrd0}",V(vQrd0),V(vQrd)))
    MW,MR,T=216,217,218
    q(vop(f"v_mbcnt_lo_u32_b32 v{T}, -1, 0",[],V(T)), vop(f"v_mbcnt_hi_u32_b32 v{T}, -1, v{T}",V(T),V(T)),
      vop(f"v_and_b32 v{MR}, 15, v{T}",V(T),V(MR)), vop(f"v_lshlrev_b32 v{MR}, 6, v{MR}",V(MR),V(MR)), vop(f"v_add_u32 v{MR}, {MBASE}, v{MR}",V(MR),V(MR)),
      vop(f"v_lshrrev_b32 v{T}, 4, v{T}",V(T),V(T)), vop(f"v_lshl_add_u32 v{MW}, v{T}, 2, v{MR}",V(T)+V(MR),V(MW)))
    q(salu(f"s_lshl_b32 s49, s{sW}, 4",S(sW),S(49))); q(vop(f"v_add_u32 v{MW}, s49, v{MW}",S(49)+V(MW),V(MW)))
    q(label("L_fb_loop"))
    q(salu(f"s_mov_b32 m0, s{sWoff}",S(sWoff),[M0])); q(dma(vQdma,sQ,sQso,0),dma(vQdma,sQ,sQso,1024)); q(wait(vm=0),bar())
    for qb in range(2):
        for ds in range(4): q(dsr128(vQ(qb,ds),vQrd,qb*4160+ds*256))
    Sb=lambda kb,qb:64+(kb*2+qb)*4
    Pf=lambda f:128+f*4
    for kb in range(8):
        for qb in range(2):
            for ds in range(4): q(mfma(Sb(kb,qb),aK(kb,ds),vQ(qb,ds),None if ds==0 else Sb(kb,qb)))
    Mx=[220,221]; RD=224
    for qb in range(2):
        q(v2("v_max_f32",Mx[qb],Sb(0,qb),Sb(0,qb)+1))
        regs=[Sb(kb,qb)+r for kb in range(8) for r in range(4)][2:]
        for x in range(0,30,2): q(vop(f"v_max3_f32 v{Mx[qb]}, v{Mx[qb]}, v{regs[x]}, v{regs[x+1]}",V(Mx[qb])+V(regs[x])+V(regs[x+1]),V(Mx[qb])))
        q(dsw32(MW,Mx[qb],qb*1024))
    q(bar())
    for qb in range(2):
        for x in range(4): q(dsr128(RD+4*x,MR,qb*1024+16*x))
        q(v2("v_max_f32",Mx[qb],RD,RD+1))
        for x in range(2,16,2): q(vop(f"v_max3_f32 v{Mx[qb]}, v{Mx[qb]}, v{RD+x}, v{RD+x+1}",V(Mx[qb])+V(RD+x)+V(RD+x+1),V(Mx[qb])))
    for kb in range(8):
        for qb in range(2):
            for r in range(4): q(v2("v_sub_f32",Sb(kb,qb)+r,Sb(kb,qb)+r,Mx[qb]),slot=False)
            for r in range(4): q(vexp(Sb(kb,qb)+r),slot=False)
            for p2 in range(2): q(vcvt(Pf(2*(kb//2)+qb)+2*(kb%2)+p2,Sb(kb,qb)+2*p2,Sb(kb,qb)+2*p2+1),slot=False)
    for f in range(8): q(dsw128(vPw,Pf(f),f*1024))
    for qb in range(2):
        for kp in range(4): q(mfma(vLacc,vSEL[qb],Pf(2*kp+qb),None if (kp==0 and qb==0) else vLacc,afile='v'))
    q(dsw32(vLw,vLacc,0)); q(bar())
    for qb in range(2):
        for db in range(2):
            for kp in range(4): q(mfma(vO(0,qb,db),aV(0,kp,db),Pf(2*kp+qb),None if kp==0 else vO(0,qb,db)))
    for j in range(1,4):
        for qb in range(2):
            for k in range(4): q(dsr128(RD+4*k,vPr[j],(2*k+qb)*1024))
            for db in range(2):
                for kp in range(4): q(mfma(vO(0,qb,db),aV(j,kp,db),RD+4*kp,vO(0,qb,db)))
    q(dsr128(vLrd,vLr,0)); q(v2("v_add_f32",vLrd,vLrd,vLrd+1),v2("v_add_f32",vLrd+2,vLrd+2,vLrd+3),v2("v_add_f32",vLrd,vLrd,vLrd+2))
    q(valu(f"v_rcp_f32 v{vR0}, v{vLrd}",V(vLrd),V(vR0),"trans"), vop(f"v_mov_b32 v{vR1}, v{vR0}",V(vR0),V(vR1)),
      valu(f"v_permlane32_swap_b32 v{vR0}, v{vR1}",V(vR0)+V(vR1),V(vR0)+V(vR1),"perm"))
    for qb in range(2):
        for db in range(2):
            for p2 in range(2):
                r=vO(0,qb,db)+2*p2; R=vR0 if qb==0 else vR1
                q(v2("v_mul_f32",r,r,R),v2("v_mul_f32",r+1,r+1,R),vcvt(vOut(qb)+2*db+p2,r,r+1))
        q(vst(vOut(qb),vOst,sO,sO0 if qb==0 else sO1))
    q(salu(f"s_add_u32 s{sO0}, s{sO0}, 8192",S(sO0),S(sO0)), salu(f"s_add_u32 s{sO1}, s{sO1}, 8192",S(sO1),S(sO1)), salu(f"s_add_u32 s{sQso}, s{sQso}, 8192",S(sQso),S(sQso)))
    q(wait(vm=0,lg=0),bar())
    q(salu(f"s_sub_u32 s{sLoop}, s{sLoop}, 1",S(sLoop),S(sLoop)), salu(f"s_cmp_lg_u32 s{sLoop}, 0",S(sLoop),[SCC]), I("s_cbranch_scc1 L_fb_loop","branch",[SCC]))
    return q.out()

def stamp(n):
    if OPT["stamp"]==2: return [raw(f"s_memrealtime s[{76+2*n}:{77+2*n}]")] if n in(0,) else ([raw("s_memrealtime s[98:99]")] if n==1 else [])
    return [raw(f"s_memtime s[{76+4*n}:{77+4*n}]"),raw(f"s_memrealtime s[{78+4*n}:{79+4*n}]")] if OPT["stamp"] else []

def build():
    logs={}
    pro=prologue()+stamp(0)
    def it(i,par,cur,nxt,pv,ep,prefix,**kw):
        lg=[]; r=iteration(i,par,cur,nxt,pv,ep,(i+D<NT) or kw.get("force_dma"),prefix,log=lg,**{k:v for k,v in kw.items() if k!="force_dma"}); logs[i]=lg; return [comment(f"---- iteration {i}")]+r
    U=OPT.get("U",2); nst=40-(T+1); trips=nst//U; rem=nst-trips*U
    stag=OPT.get("stag",0); ncopy=OPT.get("ncopy",4) if stag else 1
    sst=OPT.get("sstag",0)
    disp=[]
    for cp in range(ncopy-1,0,-1):
        disp+=[salu(f"s_cmp_ge_u32 s{sW}, {cp*(4//ncopy)}",S(sW),[SCC]), I(f"s_cbranch_scc1 L_copy{cp}","branch",[SCC])]
    def mk0(off):
        lg=[]; r=[comment("---- start-up steps + merged iteration")]+startup(pro,lg,off); logs[0]=lg
        return r+[salu(f"s_mov_b32 s{sLoop}, {trips}",[],S(sLoop))]+([] if "spinbar" in OPT else stamp(1))
    def mkend(prev,off):
        r=[]
        for u in range(rem):
            x=it(40-rem+u,(40-rem+u)%2,1,1,1,1,prev,force_dma=True,baroff=off); prev=x; r+=x
        x=stamp(2)+it(40,0,1,0,1,1,prev,ctx={"eager":1},baroff=off)
        return r,x
    if not sst: i0=mk0(0)
    allb=[]; paths=[]; body_rem=[]
    for cp in range(ncopy):
        if sst: i0=mk0(stag*cp)
        body=[]; prev=i0
        for u in range(U):
            x=it(T+1+u,(T+1+u)%2,1,1,1,1,prev,force_dma=True,loopctl=f"L_loop{cp}" if (u==U-1 and trips>1) else None,baroff=stag*cp); body+=x; prev=x
            if u==0: ia=x
            if u==1: ib=x
        if "lg0" in OPT:
            o=[]; n=0; g=-1
            for x in body:
                o.append(x)
                if x.kind=="mfma":
                    g+=1
                    if g>=OPT["lg0"] and (g-OPT["lg0"])%OPT.get("lgs",8)==0 and n<9: o.append(raw(f"s_memtime s[{78+2*n}:{79+2*n}]")); n+=1
            body=o
        if sst or cp==0: br,i40=mkend(prev,stag*cp if sst else 0)
        paths.append(i0+body*min(trips,3)+br+i40)
        if OPT.get("rot"):
            kind={"W":"dsw","S":"vst"}[OPT["rot"]]
            idx=max(n for n,x in enumerate(body) if x.kind==kind and x.cost>=8 and (kind!="dsw" or x.cost>8))+1
            assert body[-1].kind=="branch" and any(x.text.startswith(f"s_cmp_lg_u32 s{sLoop}") for x in body[:idx])
            lay=[I(f"s_branch L_entry{cp}","branch"),raw(f".p2align {OPT.get('al',6)}"),label(f"L_loop{cp}")]+body[idx:-1]+[label(f"L_entry{cp}")]+body[:idx]+[body[-1]]+body[idx:-1]
        else: lay=[raw(f".p2align {OPT.get('al',6)}"),label(f"L_loop{cp}")]+body
        allb+=[label(f"L_copy{cp}")]+(i0 if sst else [])+lay+(br+i40 if sst else [])
        body_rem+=body+br
        if cp<ncopy-1: allb+=[I("s_branch L_after","branch")]
    allb+=[label("L_after")]
    lg=[]; i41=[comment("---- drain")]+drain(41,i40,lg); logs[41]=lg; i42=[]; i1=[]
    main=pro+(disp if sst else i0+disp)+allb+([] if sst else br+i40)+i41
    fin=Seq(i41+i42)
    fin(salu(f"s_mov_b32 s49, {HI:#x}",[],S(49)), salu(f"s_mov_b32 s50, {RHI:#x}",[],S(50)))
    fin(valu(f"v_cmp_lt_u32 vcc, s49, v{vLmax}",S(49)+V(vLmax),[VCC]), valu(f"v_cmp_lt_u32 s[52:53], s50, v{vRmax}",S(50)+V(vRmax),S(52,2)))
    fin(nop(4), salu("s_or_b64 vcc, vcc, s[52:53]",[VCC]+S(52,2),[VCC]), nop(4), I("s_cbranch_vccnz L_fallback","branch",[VCC]))
    if OPT["stamp"]==2 and OPT.get("all"):
        fin(raw("s_waitcnt vmcnt(0)"),raw("s_memrealtime s[100:101]"),raw("s_waitcnt lgkmcnt(0)"),raw(f"s_cmp_lg_u32 s{sW}, 0"),raw("s_cbranch_scc1 L_end"))
        fin(raw(f"s_and_b32 s{sDbg+1}, s{sDbg+1}, 0xffff"),raw(f"s_mov_b32 s{sDbg+2}, 4096"),raw(f"s_mov_b32 s{sDbg+3}, 0x20000"))
        fin(raw("s_getreg_b32 s3, hwreg(HW_REG_XCC_ID)"),raw("s_and_b32 s3, s3, 7"),raw("s_and_b32 s55, s62, 0xffffff"),raw("s_lshl_b32 s3, s3, 24"),raw("s_or_b32 s3, s3, s55"),raw("v_mov_b32 v200, s3"))
        for n,r in enumerate((82,98,100)): fin(raw(f"s_sub_u32 s3, s{r}, s62"),raw(f"v_mov_b32 v{201+n}, s3"))
        fin(raw("s_lshl_b32 s3, s2, 4"),raw("v_mov_b32 v220, s3"),raw("s_mov_b64 exec, 1"),raw(f"buffer_store_dwordx4 v[200:203], v220, s[{sDbg}:{sDbg+3}], 0 offen"))
    elif OPT["stamp"]==2:
        fin(raw("s_waitcnt vmcnt(0)"),raw("s_memrealtime s[100:101]"),raw("s_waitcnt lgkmcnt(0)"))
        fin(raw("s_and_b32 s3, s2, 63"),raw("s_cmp_lg_u32 s3, 0"),raw("s_cbranch_scc1 L_end"),raw(f"s_cmp_lg_u32 s{sW}, 0"),raw("s_cbranch_scc1 L_end"))
        fin(raw(f"s_and_b32 s{sDbg+1}, s{sDbg+1}, 0xffff"),raw(f"s_mov_b32 s{sDbg+2}, 256"),raw(f"s_mov_b32 s{sDbg+3}, 0x20000"))
        for n in range(13): fin(raw(f"s_sub_u32 s3, s{76+2*n}, s62"),raw(f"v_mov_b32 v{200+n}, s3"))
        fin(raw("s_lshr_b32 s3, s2, 6"),raw("s_lshl_b32 s3, s3, 6"),raw("v_mov_b32 v220, s3"),raw("s_mov_b64 exec, 1"))
        for n in range(4): fin(raw(f"buffer_store_dwordx4 v[{200+4*n}:{203+4*n}], v220, s[{sDbg}:{sDbg+3}], 0 offen offset:{16*n}"))
    elif OPT["stamp"]:
        fin(*stamp(3)); fin(raw("s_waitcnt vmcnt(0)")); fin(*stamp(4)); fin(raw("s_waitcnt lgkmcnt(0)"))
        sp=OPT.get("spin")
        if sp is not None:
            ex={0:["s_mov_b32 s3, 0"],1:["s_sub_u32 s3, s78, s62","s_lshl_b32 s3, s3, 2"],2:["s_sub_u32 s3, s86, s82"],3:["s_sub_u32 s3, s94, s62"],
                4:["s_sub_u32 s3, s84, s80","s_lshr_b32 s3, s3, 4"],5:["s_sub_u32 s3, s82, s62","s_lshl_b32 s3, s3, 2"],6:["s_sub_u32 s3, s82, s78","s_lshl_b32 s3, s3, 3"],7:["s_sub_u32 s3, s80, s76","s_lshr_b32 s3, s3, 1"],8:["s_sub_u32 s3, s94, s86","s_lshl_b32 s3, s3, 3"]}[sp]
            for e in ex: fin(raw(e))
            fin(raw("s_add_u32 s3, s3, 15000"),label("L_spin"),raw("s_memrealtime s[98:99]"),raw("s_waitcnt lgkmcnt(0)"),raw("s_sub_u32 s98, s98, s62"),raw("s_cmp_lt_u32 s98, s3"),raw("s_cbranch_scc1 L_spin"))
        fin(raw("s_and_b32 s3, s2, 31"),raw("s_cmp_lg_u32 s3, 0"),raw("s_cbranch_scc1 L_end"),raw(f"s_cmp_lg_u32 s{sW}, 0"),raw("s_cbranch_scc1 L_end"))
        fin(raw(f"s_and_b32 s{sDbg+1}, s{sDbg+1}, 0xffff"),raw(f"s_mov_b32 s{sDbg+2}, 256"),raw(f"s_mov_b32 s{sDbg+3}, 0x20000"))
        for n in range(4): fin(raw(f"s_sub_u32 s3, s{76+4*(n+1 if n==3 else n)}, s60"),raw(f"v_mov_b32 v{200+2*n}, s3"),raw(f"s_sub_u32 s3, s{78+4*(n+1 if n==3 else n)}, s62"),raw(f"v_mov_b32 v{201+2*n}, s3"))
        fin(raw("s_lshr_b32 s3, s2, 5"),raw("s_lshl_b32 s3, s3, 5"),raw("v_mov_b32 v208, s3"),raw("s_mov_b64 exec, 1"),
            raw(f"buffer_store_dwordx4 v[200:203], v208, s[{sDbg}:{sDbg+3}], 0 offen"),raw(f"buffer_store_dwordx4 v[204:207], v208, s[{sDbg}:{sDbg+3}], 0 offen offset:16"))
    fin(raw("s_endpgm"))
    fb=fallback()
    ool=[]
    if "rw2" in OPT:
        for cp in range(ncopy): ool+=[label(f"L_loop{cp}_rw")]+rewarm("L_after")+[raw(f"s_branch L_loop{cp}_rwb")]
    static=main+fin.out()+ool+fb+[label("L_end"),raw("s_endpgm")]
    dyns=[pro+p+i41+fin.out() for p in paths]
    for rep in range(2):
        for dyn in dyns: resolve_waits(dyn)
    k=[x for x,y in enumerate(fb) if y.text=="L_fb_loop"][0]
    dynf=fb+fb[k:]
    resolve_waits(dynf)
    for name,d in [("main",d) for d in dyns]+[("fallback",dynf)]:
        bad=check_hazards(d)
        for b in bad: print("HAZARD",name,b,file=sys.stderr)
        assert not bad
        print(name,"max outstanding",max_outstanding(d),file=sys.stderr)
    for nm,sq in(("i0",i0),("i1",i1),("ia",ia),("ib",ib),("i40",i40),("i41",i41),("i42",i42)):
        print(nm,"est cycles",estimate(sq),"nops",sum(1 for x in sq if x.kind=="nop"),"instrs",sum(1 for x in sq if states(x)),file=sys.stderr)
    if "log" in OPT: print("\n".join(logs[OPT["log"]]),file=sys.stderr)
    if OC==2:
        for x in main:
            if x.kind=="mfma" and x.name.startswith("PV") and x.text.endswith(", 0"): x.text=x.text[:-1]+"1.0"
    if "linit" in OPT:
        for x in main:
            if x.kind=="mfma" and "ONE" in x.name and x.text.endswith(", 0"): x.text=x.text[:-1]+f"{float(OPT['linit']):.1f}"
    if "oinit" in OPT:
        for x in main:
            if x.kind=="mfma" and x.name.startswith("PV") and x.text.endswith(", 0"): x.text=x.text[:-1]+f"{float(OPT['oinit'])/2:.1f}"
        static=[x for x in static if x.text!="s_cbranch_vccnz L_fallback"]
    abl=str(OPT.get("abl","")).split("+")
    if abl!=[""]:
        loop=set(map(id,body_rem)) if not OPT.get('abs') else set(map(id,i0[len(i0)//4:]))
        def drop(x):
            if id(x) not in loop: return False
            t=x.text
            return (("st" in abl and x.kind=="vst") or ("dma" in abl and x.kind=="dma") or ("pr" in abl and x.kind=="dsr" and 128<=min(r[1] for r in x.wr)<160)
              or ("qr" in abl and x.kind=="dsr" and 32<=min(r[1] for r in x.wr)<64) or ("pw" in abl and x.kind=="dsw") or ("exp" in abl and t.startswith("v_exp"))
              or ("cvt" in abl and t.startswith("v_cvt")) or ("one" in abl and x.kind=="mfma" and x.name.startswith("ONE")) or ("bar" in abl and x.kind=="bar")
              or ("mul" in abl and t.startswith("v_mul")) or ("valu" in abl and x.kind in VALU_KINDS) or ("qk" in abl and x.kind=="mfma" and x.name.startswith("QK"))
              or ("pv" in abl and x.kind=="mfma" and x.name.startswith("PV")) or ("wait" in abl and x.kind=="wslot") or ("ks" in abl and (t.startswith("v_accvgpr") or t.startswith("v_pk_mul") or t.startswith("v_and") or t.startswith("v_lshlrev"))))
        static=[x for x in static if not drop(x)]
        static=[x for x in static if x.text!="s_cbranch_vccnz L_fallback"]
    if OPT.get("fake"): static=[x for x in static if x.text!="s_cbranch_vccnz L_fallback"]
    if OPT.get("swap"):
        import re as _re
        for x in body_rem:
            if x.kind=="mfma" and any(x.name.startswith(p) for p in OPT["swap"].split("+")):
                m=_re.match(r"(\S+ [^,]+), ([^,]+), ([^,]+), (.*)",x.text); x.text=f"{m[1]}, {m[3]}, {m[2]}, {m[4]}"
        static=[x for x in static if x.text!="s_cbranch_vccnz L_fallback"]
    hdr=open("standalone__mha_softmax__near_ridge.s.ref").read().split("; Override launch")[0]
    txt=hdr+f"""; One workgroup (4 waves) per head.  K (scaled once by log2(e)/sqrt(D)) and V^T stay in AGPRs: wave w owns keys
; 128w..128w+127 for S^T = K.Q^T and output columns 32w..32w+31 for O^T = V^T.P^T (16x16x32 bf16 MFMA); P and the row sums
; are exchanged through LDS, one barrier per 32-row query tile.  The first tiles are processed key-chunk by key-chunk while
; K and V stream in.  Softmax shift: the fast path shifts every score by the constant 4 (log2 units, through the MFMA
; accumulator init); every row sum l is checked at run time (2^-4 <= l <= 2^48, inf/NaN included) and if any row leaves that
; range the whole head is recomputed with the true row max (L_fallback).  The P.V accumulators start from an offset of a few
; times the wave's smallest column magnitude of V, removed exactly in the normalisation FMA (fewer accumulator sign flips).
; @launch grid=(256,1,1) block=(256,1,1) lds={LDS_BYTES}
.amdgcn_target "amdgcn-amd-amdhsa--gfx950"
.text
.globl {NAME}
.p2align 8
.type {NAME},@function
{NAME}:
"""+emit(static)+f""".section .rodata,"a"
.p2align 6
.amdhsa_kernel {NAME}
  .amdhsa_next_free_vgpr 512
  .amdhsa_next_free_sgpr 102
  .amdhsa_accum_offset 256
  .amdhsa_group_segment_fixed_size 0
  .amdhsa_kernarg_size 48
  .amdhsa_user_sgpr_count 2
  .amdhsa_user_sgpr_kernarg_segment_ptr 1
  .amdhsa_system_sgpr_workgroup_id_x 1
.end_amdhsa_kernel
"""
    return txt

if __name__=="__main__":
    open(sys.argv[1],"w").write(build())
```

```python
import sys, struct, math
from core import *
from sched import *

NAME="standalone__mha_softmax__near_ridge_kernel"
NT=41
QBYTES=335872; KBYTES=131072
OPT=dict(D=4, st="sc0+sc1", ld="nt", stamp=0, wsplit=0, stag=3, ncopy=2)
for a in sys.argv[2:]:
    k,v=a.split("="); OPT[k]=int(v) if v.lstrip("-").isdigit() else v
D=OPT["D"]; NQ=7; T=OPT.get("T",5); LAG=OPT.get("lag",3); LAG0=OPT.get('lag0',3)
STF=(" "+OPT["st"].replace("+"," ")) if OPT["st"]!="none" else ""
LDF=(" "+OPT["ld"].replace("+"," ")) if OPT["ld"]!="none" else ""
QSLOT=8320; PB=[0,33280]; KBASE=PB[T%2]; QBASE=2*33280; QEND=QBASE+NQ*QSLOT; VBASE=QEND; LBASE=VBASE+32768; MBASE=LBASE+1024; LDS_BYTES=LBASE+4096
vQrd,vQrd0,vPw,vPr,vQdma,vOst,vLw,vLr=1,2,3,[None,4,5,6],7,8,9,10
vLmax,vLmin,vR0,vR1,vT=11,12,13,14,15
vLrd,vLacc,vSEL=16,20,[24,28]
vQ=lambda qb,ds:32+qb*16+ds*4
vS=lambda n:64+(n%8)*4
vP=lambda f:96+f*4
vRing=lambda s,k:128+(s%2)*16+k*4
vO=lambda st,qb,db:160+st*16+qb*8+db*4
vOut=lambda qb:192+qb*4
aK=lambda kb,ds:(kb*4+ds)*4
aV=lambda j,kp,db:128+((j*4+kp)*2+db)*4
sQ,sK,sV,sO=4,8,12,16
sW,sLoop,sQso,sQm0,sQrs,sO0,sO1,sT,sC=20,21,22,23,24,25,26,27,28
sWoff=30; sDbg=32
M0=('m0',0); VCC=('vcc',0); SCC=('scc',0)
CSCALE=struct.unpack("<I",struct.pack("<f",math.log2(math.e)/math.sqrt(128.0)))[0]
def bf16(x):
    u=struct.unpack("<I",struct.pack("<f",x))[0]; return (u+0x7fff+((u>>16)&1))>>16
CF=math.log2(math.e)/math.sqrt(128.0); CHI=bf16(CF); CLO=bf16(CF-struct.unpack("<f",struct.pack("<I",CHI<<16))[0])
HI=(127+48)<<23; RHI=(127+4)<<23

CI=OPT.get("cinit",-4); vCI=244; vC0=240; vN0,vN1=253,254; vRmax=12; OC=OPT.get("oc",1)
def qkm(d,a,b,first,name):
    if not first: return mfma(d,a,b,d,name=name)
    if CI not in(0,1,2,4,-1,-2,-4): return mfma(d,a,b,vCI,name=name)
    m=mfma(d,a,b,None,name=name)
    if CI: m.text=m.text[:-1]+f"{float(CI):.1f}"
    return m
def dsr128(dst,addr,off,file='v',name=None): return I(f"ds_read_b128 {rs(file,dst,4)}, v{addr} offset:{off}","dsr",V(addr),[(file,dst+i) for i in range(4)],name=name)
def dsw128(addr,src,off): return I(f"ds_write_b128 v{addr}, {rs('v',src,4)} offset:{off}","dsw",V(addr)+V(src,4),[],cost=20)
def dsw64(addr,src,off): return I(f"ds_write_b64 v{addr}, {rs('v',src,2)} offset:{off}","dsw",V(addr)+V(src,2),[],cost=12)
def dsw32(addr,src,off): return I(f"ds_write_b32 v{addr}, v{src} offset:{off}","dsw",V(addr)+V(src),[],cost=8)
def dma(voff,srd,soff,off,flag=LDF): return I(f"buffer_load_dwordx4 v{voff}, s[{srd}:{srd+3}], s{soff} offen offset:{off}{flag} lds","dma",V(voff)+S(srd,4)+S(soff)+[M0],[])
def vld(dst,voff,srd,soff,off,flag=LDF): return I(f"buffer_load_dwordx4 {rs('v',dst,4)}, v{voff}, s[{srd}:{srd+3}], s{soff} offen offset:{off}{flag}","vld",V(voff)+S(srd,4)+S(soff),V(dst,4))
def vst(src,voff,srd,soff,flag=STF): return I(f"buffer_store_dwordx4 {rs('v',src,4)}, v{voff}, s[{srd}:{srd+3}], s{soff} offen{flag}","vst",V(src,4)+V(voff)+S(srd,4)+S(soff),[],meta={"data":V(src,4)})
def vexp(r): return valu(f"v_exp_f32 v{r}, v{r}",V(r),V(r),"trans")
def vcvt(d,a,b): return valu(f"v_cvt_pk_bf16_f32 v{d}, v{a}, v{b}",V(a)+V(b),V(d))
def vcvtp(d,a,b):
    if OPT.get("trunc"): return valu(f"v_perm_b32 v{d}, v{b}, v{a}, s74",V(a)+V(b)+S(74),V(d))
    return vcvt(d,a,b)
def v2(op,d,a,b): return valu(f"{op} v{d}, v{a}, v{b}",V(a)+V(b),V(d))
def bar(**m): return I("s_barrier","bar",meta=m)
def label(t): return I(t,"label")
def comment(t): return I(t,"comment")

def chain_info(n):
    f=(n//2+1)%8; h=n%2
    return f,h,2*(f//2)+h,f%2
def s_block(f,h):
    return (2*((f-1)%8)+h)

class Bld:
    def __init__(s): s.bb=[]; s.ops=[]; s.sops=[]; s.mdeps={}; s.slots=set(); s.tail=[]
    def group(s,g):
        p=len(s.bb); s.bb+=g; s.slots.add(len(s.bb)-1); return p
    def add(s,ins,prio,deps=(),earliest=0,name=None):
        o=Op(ins,prio,deps,earliest,name); s.ops.append(o); return o
    def adds(s,ins,prio,deps=(),name=None,earliest=0):
        o=Op(ins,prio,deps,earliest,name); s.sops.append(o); return o
    def need(s,idx,o): s.mdeps.setdefault(max(idx,0),[]).append(o)
    def barrier(s,gap,deps,keep=False,**meta):
        if keep and gap in s.slots: gap-=1; o=s.adds(bar(**meta),-1,deps,name="BAR",earliest=gap); s.slots.add(gap-1); return o
        o=s.adds(bar(**meta),-1,deps,name="BAR",earliest=max(gap,0)); s.slots.discard(gap); s.slots.add(gap-1); return o
    def run(s,prefix,log=None,overdue=None): return schedule(s.bb,s.ops,s.sops,s.mdeps,prefix,s.slots,s.tail,log,overdue,fill=OPT.get('fill',1),veto=(OPT.get('veto',8) if overdue is None else OPT.get('sveto',0)),vdist=tuple(int(c) for c in str(OPT.get('vd',1234) if overdue is None else OPT.get('svd',1))))

def qdma_ops(b,t0,deps,tag=None,scc=()):
    m=b.adds(salu(f"s_mov_b32 m0, s{sQm0}",S(sQm0),[M0]),t0-2,deps,name="m0")
    QF=(" "+OPT["lq"].replace("+"," ") if OPT["lq"]!="none" else "") if "lq" in OPT else LDF
    d0=b.add(dma(vQdma,sQ,sQso,0,QF),t0,[m],name="DMA0"); d1=b.add(dma(vQdma,sQ,sQso,1024,QF),t0+4,[d0],name="DMA1")
    d0.ins.cost=d1.ins.cost=OPT.get("dmac",8); d0.ins.tag=d1.ins.tag=tag
    if OPT.get("dpe"): d0.earliest=int(t0); d1.earliest=int(t0+OPT["dpe"])
    b1=b.adds(salu(f"s_add_u32 s{sQm0}, s{sQm0}, {QSLOT}",S(sQm0),S(sQm0)+[SCC]),t0+10,[m]+list(scc),name="qm+")
    b2=b.adds(salu(f"s_cmp_eq_u32 s{sQm0}, s{sT}",S(sQm0)+S(sT),[SCC]),t0+11,[b1],name="qm?")
    b3=b.adds(salu(f"s_cselect_b32 s{sQm0}, s{sWoff}, s{sQm0}",S(sQm0)+S(sWoff)+[SCC],S(sQm0)),t0+12,[b2],name="qm=")
    b4=b.adds(salu(f"s_add_u32 s{sQso}, s{sQso}, 8192",S(sQso),S(sQso)+[SCC]),t0+14,[d1,b3],name="qso+")
    return d1,b4

def epilogue_ops(b,Ob,loff,t0,tm,dt,ldeps,odeps,prev,scc,sc=1.0,tg="",OC=OC):
    lr=b.add(dsr128(vLrd,vLr,loff),t0,list(ldeps)+prev.get("L",[]),name="LR"+tg)
    a=b.add(v2("v_add_f32",vLrd,vLrd,vLrd+1),t0+11*sc,[lr],name="La")
    bb_=b.add(v2("v_add_f32",vLrd+2,vLrd+2,vLrd+3),t0+11.5*sc,[lr],name="Lb")
    c=b.add(v2("v_add_f32",vLrd,vLrd,vLrd+2),t0+12*sc,[a,bb_],name="Lc")
    rc=b.add(valu(f"v_rcp_f32 v{vR0}, v{vLrd}",V(vLrd),V(vR0),"trans"),t0+13*sc,[c]+prev.get("M",[]),name="RCP")
    x1=b.add(v2("v_max_u32",vRmax,vRmax,vR0),t0+14.5*sc,[rc],name="chkr"); x2=b.add(v2("v_max_u32",vLmax,vLmax,vLrd),t0+30*sc,[c],name="chkl")
    mv=b.add(valu(f"v_mov_b32 v{vR1}, v{vR0}",V(vR0),V(vR1)),t0+14*sc,[rc],name="MOV")
    sw=b.add(valu(f"v_permlane32_swap_b32 v{vR0}, v{vR1}",V(vR0)+V(vR1),V(vR0)+V(vR1),"perm"),t0+15*sc,[mv,x1],name="SWP")
    t=tm; sts=[]; muls=[]
    if OC==1:
        nc=[b.add(valu(f"v_mul_f32 v{N}, -v{vC0}, v{R}",V(vC0)+V(R),V(N)),t0+(16+x)*sc,[sw],name="nC") for x,(N,R) in enumerate(((vN0,vR0),(vN1,vR1)))]
    def scale_op(r,qb):
        R=vR0 if qb==0 else vR1; N=vN0 if qb==0 else vN1
        if OC==2: return valu(f"v_fma_f32 v{r}, v{r}, v{R}, -v{R}",V(r)+V(R),V(r)),[sw]
        if OC: return valu(f"v_fma_f32 v{r}, v{r}, v{R}, v{N}",V(r)+V(R)+V(N),V(r)),[nc[qb]]
        return v2("v_mul_f32",r,r,R),[sw]
    if OPT.get("pa") and not tg and odeps is None:
        b.ops.remove(mv); b.ops.remove(sw)
        rw=b.add(dsw32(vLw,vR0,3072),t0+14*sc,[rc],name="RW")
        rr=[b.add(dsr128(248+4*(qb),vLr,3072+16*qb),t0+16*sc+qb,[rw],name="RR") for qb in range(2)]
        for qb in range(2):
            for r in range(4):
                m0_=b.add(v2("v_mul_f32",Ob(qb,0)+r,Ob(qb,0)+r,248+4*qb+r),t,[rr[qb]],name=f"M"); t+=dt
                m1_=b.add(v2("v_mul_f32",Ob(qb,1)+r,Ob(qb,1)+r,248+4*qb+r),t,[rr[qb]],name=f"M"); t+=dt
                cv=b.add(vcvt(vOut(qb)+r,Ob(qb,0)+r,Ob(qb,1)+r),t,[m0_,m1_],name="OC"); t+=dt
                st_=b.add(I(f"buffer_store_dword v{vOut(qb)+r}, v0, s[{sO}:{sO+3}], s{sO0 if qb==0 else sO1} offen offset:{r*256}{STF}","vst",V(vOut(qb)+r)+V(0)+S(sO,4)+S(sO0 if qb==0 else sO1),[],cost=8),t,[cv],name="ST")
                if r==3: sts.append(st_)
    for qb in range(2 if not sts else 0):
        cv=[]
        for db in range(2):
            od=[odeps[(qb,db)]] if odeps else []
            for p2 in range(2):
                r=Ob(qb,db)+2*p2; R=vR0 if qb==0 else vR1
                x,dp=scale_op(r,qb); m0_=b.add(x,t,dp+od,name=f"M{qb}{db}{2*p2}"); t+=dt
                x,dp=scale_op(r+1,qb); m1_=b.add(x,t,dp+od,name=f"M{qb}{db}{2*p2+1}"); t+=dt
                muls+=[m0_,m1_]
                cv.append(b.add(vcvt(vOut(qb)+2*db+p2,r,r+1),t,[m0_,m1_]+prev.get("S",[]),name=f"OC{qb}{db}{p2}")); t+=dt
        fl=STF if not (tg.startswith("t") and "st0" in OPT) else ("" if OPT["st0"]=="none" else " "+OPT["st0"].replace("+"," "))
        sts.append(b.add(vst(vOut(qb),vOst,sO,sO0 if qb==0 else sO1,fl),t,cv+prev.get("A",[]),name=f"ST{qb}"+tg)); sts[-1].ins.cost=OPT.get("stc",8); sts[-1].mingap=OPT.get("stg",3)
    e1=b.adds(salu(f"s_add_u32 s{sO0}, s{sO0}, 8192",S(sO0),S(sO0)+[SCC]),t+1,[sts[0]]+list(scc),name="o0+")
    e2=b.adds(salu(f"s_add_u32 s{sO1}, s{sO1}, 8192",S(sO1),S(sO1)+[SCC]),t+2,[sts[1],e1],name="o1+")
    return {"L":[rc,x1,x2],"M":muls,"S":sts,"A":[e2]}

def iter_parts(b, i, par, cur, nxt, pv, ep, dodma, last_bar=True, loopctl=None, baroff=0, Ncustom=None, ctx=None):
    ctx=ctx or {}
    base=len(b.bb)
    def qk(n):
        f,h,kb,qb=chain_info(n)
        return [qkm(vS(n),aK(kb,ds),vQ(qb,ds),ds==0,f"QK{n}.{ds}") for ds in range(4)]
    so=1-par
    def pvo(qb,db): return [mfma(vO(so,qb,db),aV(0,kp,db),vP(2*kp+qb),(vC0 if OC==1 else None) if kp==0 else vO(so,qb,db),name=f"PVo{qb}{db}.{kp}") for kp in range(4)]
    def one(qb): return [mfma(vLacc,vSEL[qb],vP(2*kp+qb),None if (kp==0 and qb==0) else vLacc,afile='v',name=f"ONE{qb}.{kp}") for kp in range(4)]
    sets=[(1,0),(1,1),(2,0),(2,1),(3,0),(3,1)]
    def pvx(s,db):
        j,qb=sets[s]
        return [mfma(vO(so,qb,db),aV(j,kp,db),vRing(s,kp),vO(so,qb,db),name=f"PVx{s}{db}.{kp}") for kp in range(4)]
    N=[("pvo",0,0),("pvo",0,1),("one",0),("pvo",1,0),("pvo",1,1),("one",1)]+[("pvx",s,db) for s in range(6) for db in range(2)]
    if Ncustom: N=[("cus",x) for x in range(18)]
    order=[N[0],N[1]]
    for n in range(16): order+=[("qk",n),N[n+2]]
    if ctx.get("eager"): order[-3],order[-2]=order[-2],order[-3]
    fk=OPT.get("fake",0) if (cur and nxt and pv and ep and not Ncustom) else 0
    if fk:
        order=[]; n=0; x=0
        while x<18 or n<16:
            order+=N[x:x+fk]; x+=fk
            order+=[("qk",m) for m in range(n,min(n+fk,16))]; n+=fk
    G={}; pos={}
    for key in order:
        if key[0]=="qk":
            n=key[1]
            if n>=14 and not nxt and cur and ctx.get("eager"):
                key=("eone",n-14); g=[mfma(vLacc,vSEL[n-14],vP(2*kp+n-14),None if (kp==0 and n==14) else vLacc,afile='v',name=f"eONE{n-14}.{kp}") for kp in range(4)]
            elif not (nxt if n>=14 else cur): continue
            else: g=qk(n)
        elif key[0]=="cus":
            g=Ncustom(key[1])
            if not g: continue
        else:
            if not pv: continue
            g={"pvo":pvo,"one":one,"pvx":pvx}[key[0]](*key[1:])
        if fk and key[0]!="qk" and OPT.get("fakeacc",1):
            d=vO(so,0,0)+4*((N.index(key)//fk)%4)
            for m in g:
                t=m.text.split(", "); t[0]=t[0].split(" ")[0]+f" v[{d}:{d+3}]"; t[3]=f"v[{d}:{d+3}]"; m.text=", ".join(t)
        G[key]=g; pos[key]=b.group(g)
        if key[0]=="cus": ctx["placed"](key[1],pos[key])
    if OPT.get("samea") and cur and nxt and pv and ep and not Ncustom:
        def ilv(g0,g1,fixb):
            t0=[m.text for m in g0]; t1=[m.text for m in g1]
            for x in range(4):
                a=t0[x].split(", "); c=t1[x].split(", "); c[1]=a[1]
                if fixb: c[2]=fixb(c[2])
                t1[x]=", ".join(c)
            seq=[t0[0],t1[0],t0[1],t1[1],t0[2],t1[2],t0[3],t1[3]]
            for m,t in zip(g0+g1,seq): m.text=t
        def otherq(r):
            n=int(r[2:r.index(":")]); n=32+(n-32+16)%32; return f"v[{n}:{n+3}]"
        if "q" in OPT["samea"]:
            for n in range(0,16,2): ilv(G[("qk",n)],G[("qk",n+1)],otherq)
        if "p" in OPT["samea"]:
            def otherr(r):
                n=int(r[2:r.index(":")]); n=(128+(n-128+16)%32) if n>=128 else n^4; return f"v[{n}:{n+3}]"
            for s_ in range(6): ilv(G[("pvx",s_,0)],G[("pvx",s_,1)],otherr)
            for q_ in range(2): ilv(G[("pvo",q_,0)],G[("pvo",q_,1)],otherr)
    nb=len(b.bb)-base
    nom={}; p=0
    for key in order: nom[key]=p; p+=4
    scale=(nb/136.0) if nb else 0
    import bisect
    alias={("qk",14):("eone",0),("qk",15):("eone",1)}
    pts=sorted((nom[k],pos[k if k in pos else alias[k]]) for k in nom if (k in pos or alias.get(k) in pos))
    def P(t):
        j=max(bisect.bisect_right(pts,(t,1<<30))-1,0)
        n0,a0=pts[j]; a1=pts[j+1][1] if j+1<len(pts) else 1<<30
        return min(a0+(t-n0),a1+(t-n0)*1e-3) if t>=n0 else a0+(t-n0)
    def add(ins,prio,deps=(),earliest=0,name=None):
        o=b.add(ins,P(prio),deps,int(P(earliest)) if earliest else base,name); o.nomp=prio; return o
    def adds(ins,prio,deps=(),name=None,earliest=0): return b.adds(ins,P(prio),deps,name,int(P(earliest)) if earliest else base)
    def need(key,k,o): b.need(pos[key]+k,o)
    rel=lambda o:o.nomp
    must_bar=list(ctx.get("must_bar",[]))
    scc=list(ctx.get("scc",[]))
    E={}
    for n in list(range(16))+[-1]:
        if n==15: continue
        if n==-1:
            if not cur: continue
            blk=vS(15); dep=ctx.get("c15",[]); t0=0
        else:
            if ("qk",n) not in G: continue
            blk=vS(n); dep=[G[("qk",n)][3]]; t0=nom[("qk",n)]+6
        for r in range(4):
            E[(n,r)]=add(vexp(blk+r),t0+2*r,dep,name=f"E{n}.{r}")
            if n>=0: E[(n,r)].prio=pos[("qk",n)]+OPT.get("eo",4)+OPT.get("es",2)*r
    if cur:
        for f in range(8):
            qb=f%2; kp=f//2
            war=[G[k][kp] for k in (("pvo",qb,0),("pvo",qb,1),("one",qb)) if k in G]+ctx.get("pwar",{}).get(f,[])
            C=[]
            for h in range(2):
                n=s_block(f,h)
                en = -1 if n==15 else n
                for p2 in range(2):
                    deps=list(war)
                    if f==0 and h==0: t=1+p2; deps+=ctx.get("e14",[])
                    else:
                        deps+=[E[(en,2*p2)],E[(en,2*p2+1)]]; t=rel(E[(en,2*p2+1)])+1
                    c=add(vcvtp(vP(f)+2*h+p2,vS(n)+2*p2,vS(n)+2*p2+1),t,deps,name=f"C{f}.{2*h+p2}")
                    if not (f==0 and h==0): c.prio=E[(en,2*p2+1)].prio+1
                    C.append(c)
                    if ("eone",qb) in G: need(("eone",qb),kp,c)
                    nn=(n+8)%16
                    if ("qk",nn) in G and (n>=14 or n<8): need(("qk",nn),0,c)
            off=PB[par]+f*1024
            if str(f) in str(OPT.get("w32","")).replace("f",""):
                for x in range(4):
                    w=add(dsw32(vPw,vP(f)+x,off+4*x),rel(C[x])+1,[C[x]]+ctx.get("wdep",[]),name=f"W{f}.{x}"); must_bar.append(w)
            elif str(f) in str(OPT.get("w64","")).replace("f",""):
                for x in range(2):
                    w=add(dsw64(vPw,vP(f)+2*x,off+8*x),rel(C[2*x+1])+1,C[2*x:2*x+2]+ctx.get("wdep",[]),name=f"W{f}.{x}"); must_bar.append(w)
            else:
                w=add(dsw128(vPw,vP(f),off),rel(C[3])+1,C+ctx.get("wdep",[]),name=f"W{f}"); must_bar.append(w); w.prio=C[3].prio+1
        for n,ds_ in ctx.get("swar",{}).items():
            for o in ds_: need(("qk",n),0,o)
    if pv:
        for s,(j,qb) in enumerate(sets):
            for k in range(4):
                deps=[G[("pvx",s-2,1)][k]] if s>=2 else []
                t=nom[("pvx",s,0)]-OPT.get("rl",18)+k if s>=2 else s*OPT.get("r0",4)+k
                o=add(dsr128(vRing(s,k),vPr[j],PB[so]+(2*k+qb)*1024),t,deps,name=f"R{s}.{k}")
                need(("pvx",s,0),-1,o); must_bar.append(o)
        lw=add(dsw32(vLw,vLacc,so*512),nom[("one",1)]+8,[G[("one",1)][3]],name="LW"); must_bar.append(lw)
        if ("eone",0) in G:
            need(("eone",0),0,lw)
            must_bar.append(add(dsw32(vLw,vLacc,par*512),0,[G[("eone",1)][3]],name="eLW"))
    if nxt:
        a1=adds(salu(f"s_add_u32 s{sQrs}, s{sQrs}, {QSLOT}",S(sQrs),S(sQrs)+[SCC]),40,scc,name="qr+")
        a2=adds(salu(f"s_cmp_eq_u32 s{sQrs}, {QEND}",S(sQrs),[SCC]),41,[a1],name="qr?")
        a3=adds(salu(f"s_cselect_b32 s{sQrs}, {QBASE}, s{sQrs}",S(sQrs)+[SCC],S(sQrs)),42,[a2],name="qr=")
        scc=[a3]
        upd=add(valu(f"v_add_u32 v{vQrd}, s{sQrs}, v{vQrd0}",S(sQrs)+V(vQrd0),V(vQrd)),80,[a3]+ctx.get("rqprev",[]),name="qupd")
        for qb in range(2):
            lastn=11 if qb==0 else 13
            for ds in range(4):
                deps=[upd]+([G[("qk",lastn)][ds]] if ("qk",lastn) in G else [])+ctx.get("rqdep",[])
                o=add(dsr128(vQ(qb,ds),vQrd,qb*4160+ds*256),nom[("qk",lastn)]+1+ds,deps,name=f"RQ{qb}.{ds}")
                if qb==0: need(("qk",14),-1,o)
    if dodma:
        d1,b4=qdma_ops(b,P(ctx.get("dmaprio",OPT.get("dp",70))),ctx.get("dmadep",[]),scc=scc); scc=[b4]
    if ep:
        e=epilogue_ops(b,lambda qb,db:vO(par,qb,db),par*512,P(-1),P(OPT.get("ept",24)),OPT.get("epdt10",30)/10*scale,[],None,{},scc,sc=scale); scc=e["A"]
    if "late" in ctx: scc=ctx["late"](scc,must_bar)
    if loopctl:
        LP=112 if OPT.get("rot") else 128
        if "rw2" in OPT:
            w1=adds(salu(f"s_cmp_eq_u32 s{sLoop}, {OPT['rw2']}",S(sLoop),[SCC]),124,scc,name="rw?",earliest=124)
            w2=adds(salu(f"s_cbranch_scc1 {loopctl}_rw\n{loopctl}_rwb:",[SCC],[]),125,[w1],name="rwb",earliest=125); scc=[w2]
        c1=adds(salu(f"s_sub_u32 s{sLoop}, s{sLoop}, 1",S(sLoop),S(sLoop)+[SCC]),LP,scc,name="lp-",earliest=LP)
        c2=adds(salu(f"s_cmp_lg_u32 s{sLoop}, 0",S(sLoop),[SCC]),LP+1,[c1],name="lp?",earliest=LP+1)
        b.tail=[I(f"s_cbranch_scc1 {loopctl}","branch",[SCC])]
    b.slots.discard(base+nb-1)
    if last_bar: b.barrier(base+nb-1-baroff,must_bar,keep_dma=2*(D-2),all_ds=1)

def iteration(i, par, cur, nxt, pv, ep, dodma, prefix, log=None, **kw):
    b=Bld(); iter_parts(b,i,par,cur,nxt,pv,ep,dodma,**kw); return b.run(prefix,log)

def drain(i,prefix,log):
    b=Bld(); so=(i-1)%2; par=i%2
    ring=[128,144,64,80,32,48]; last={}
    for qb in range(2):
        for j in range(4):
            s_=qb*3+j-1
            for db in range(2):
                d=vO(so,qb,db)
                g=[mfma(d,aV(j,kp,db),vP(2*kp+qb) if j==0 else ring[s_]+4*kp,(vC0 if OC==1 else None) if (j==0 and kp==0) else d,name=f"PV{qb}{j}{db}.{kp}") for kp in range(4)]
                p=b.group(g); last[(qb,db)]=g[3]
                if j and db==0:
                    for k in range(4): b.need(p-1,b.add(dsr128(ring[s_]+4*k,vPr[j],PB[so]+(2*k+qb)*1024),s_*2+k/2,name=f"R{s_}.{k}"))
    e=epilogue_ops(b,lambda qb,db:vO(par,qb,db),par*512,-1,10,0.7,[],None,{},[],sc=0.5)
    epilogue_ops(b,lambda qb,db:vO(so,qb,db),so*512,20,34,0.7,[],last,e,e["A"],sc=0.3,tg="z")
    return b.run(prefix,log)

vOs=[80,112][:T-LAG-1]+[vO(T%2,0,0)]+[200,216,232][:LAG-1]+[vO(1-T%2,0,0)]
vLs=lambda t:248+t
sKo=64
sVm=72
vKA,vVA,vTB,vTD=255,0,192,15
def kdma_units(c):
    u=[]
    for pr in range(4):
        for n in range(2):
            d=dma(vQdma,sK,45,n*1024); d.tag=f"K{c}"
            u.append(([salu(f"s_add_u32 m0, s54, {(pr//2)*4160+(pr%2)*2080}",S(54),[M0,SCC]), salu(f"s_add_u32 s45, s44, {c*8192+pr*2048}",S(44),S(45)+[SCC])] if n==0 else [])+[d])
    return u
def qdma_units(t):
    d0=dma(vQdma,sQ,46,0); d1=dma(vQdma,sQ,46,1024); d0.tag=d1.tag=f"Q{t}"
    return [[salu(f"s_add_u32 m0, s{sWoff}, {(t%NQ)*QSLOT}",S(sWoff),[M0,SCC]),salu(f"s_mov_b32 s46, {t*8192}",[],S(46)),d0],[d1]]
V3=OPT.get("v3",1) and T<=5
XB=QBASE+5*QSLOT
vbuf=lambda h:([VBASE,VBASE+16384,XB][h%3] if V3 else VBASE+(h%2)*16384)
def vdma_half(h):
    u=[]
    for n in range(4):
        d=dma(vVA,sV,sKo+h,n*1024); d.tag=f"V{h//2}"
        u.append(([salu(f"s_add_u32 m0, s{sVm}, {vbuf(h)}",S(sVm),[M0,SCC])] if n==0 else [])+[d])
    return u
def vdma_units(c): return vdma_half(2*c)+vdma_half(2*c+1)
flat=lambda u:[x for y in u for x in y]
STREAM=kdma_units(0)+qdma_units(0)+qdma_units(1)+qdma_units(2)+vdma_units(0)+flat([qdma_units(t) for t in range(3,T)])+kdma_units(1)+(vdma_half(2) if V3 else [])
NPRO=OPT.get("npro",20)
def kread(c):
    o=[dsr128(aK(2*c+h,ds),vKA,h*4160+ds*256,file='a') for h in range(2) for ds in range(4)]
    for x in o: x.meta["tags"]={f"K{c}"}
    return o
aSC=lambda lo,half:aV(lo,3,half)
vKT=[192,196,vLrd]
def rewarm(lbl): return [raw(f"s_mov_b32 s55, {lbl}-L_pc"), I("buffer_load_dword v253, v254, s[56:59], s55 offen","vld",V(254),V(253))]
def vscale():
    o=[]; t=232; m=[236,237]; u=238
    for db in range(2):
        a=aV(0,0,db)
        o+=[vop(f"v_accvgpr_read_b32 v{t+r}, a{a+r}",A(a+r),V(t+r)) for r in range(4)]
        o+=[vop(f"v_max3_f32 v{m[db]}, |v{t}|, |v{t+1}|, |v{t+2}|",V(t,3),V(m[db])), vop(f"v_max_f32 v{m[db]}, v{m[db]}, |v{t+3}|",V(m[db])+V(t+3),V(m[db]))]
        for w_ in(32,16):
            o+=[vop(f"v_mov_b32 v{u}, v{m[db]}",V(m[db]),V(u)), valu(f"v_permlane{w_}_swap_b32 v{m[db]}, v{u}",V(m[db])+V(u),V(m[db])+V(u),"perm"), v2("v_max_f32",m[db],m[db],u)]
    o.append(v2("v_min_f32",u,m[0],m[1]))
    for r in(8,4,2,1):
        x=vop(f"v_min_f32_dpp v{u}, v{u}, v{u} row_ror:{r} row_mask:0xf bank_mask:0xf",V(u),V(u)); x.meta["dpp"]=1; o.append(x)
    o+=[vop(f"v_min_f32 v{u}, {(127+60)<<23:#x}, v{u}",V(u),V(u)), vop(f"v_and_b32 v{u}, 0x7f800000, v{u}",V(u),V(u))]
    o+=[vop(f"v_add_u32 v{vC0+r}, {(OPT.get('oce',2)<<23)+0x400000:#x}, v{u}",V(u),V(vC0+r)) for r in range(4)]
    return o
def touch_ins(): return I(f"buffer_load_dword v253, v254, s[{sO}:{sO+3}], 0 offen nt","vld",V(254)+S(sO,4),V(253))
def ksops(c,j):
    a=aK(2*c+j//8,(j//2)%4)+2*(j%2); d=vKT[j%3]
    return [vcvt(d,d,d+1),vcvt(d+1,d+2,d+3)]+[vop(f"v_accvgpr_write_b32 a{a+x}, v{d+x}",V(d+x),A(a+x)) for x in range(2)]
def kscale(c,extra=None):
    o=[]
    for j in range(16):
        a=aK(2*c+j//8,(j//2)%4); d=vKT[j%3]; x=ksops(c,j-2) if j>=2 else [nop(2),None,nop(2),None]
        if j%2==0: o.append(waitslot())
        o+=[mfma(d,aSC(0,j%2),a,None,bfile='a',name="KSh")]+(extra(j) if extra else [])+x[:2]+[mfma(d,aSC(1,j%2),a,d,bfile='a',name="KSl")]+x[2:]
    return [i for i in o if i is not None]
def startup(prefix,log,off=0):
    b=Bld(); NS=4*T
    Sb=lambda n:64+(n%4)*4
    OWN=OPT.get("own",1) and T-LAG<=2
    Pw=lambda k,qb:96+((k%(4 if OWN else 2))*2+qb)*4
    ownk=lambda k:OWN and k<NS-OPT.get("ownskip",2)
    ent=lambda k,qb:PB[T%2 if (LAG>3 and 3*T<=k<NS-LAG) else 1-T%2]+((k%4)*2+qb)*1024
    assert LAG<=3 or all(k%4 for k in range(3*T,NS-LAG))
    pvstep=lambda k:k+(LAG0 if k<3*T else LAG)
    pvof={pvstep(k):k for k in range(NS)}
    QK={}; PV={}; ONE={}; start={}; end={}; posQ={}; posP={}; posO={}
    def pvg(k,qb,db):
        c,t=divmod(k,T); d=vOs[t]+qb*8+db*4
        return [mfma(d,aV(j,c,db),Pw(k,qb) if (ownk(k) and j==0) else vRing(2*k+qb,j),(vC0 if (OC==1 and t==T-1) else None) if (c==0 and j==0) else d,name=f"PV{k}.{qb}{db}.{j}") for j in range(4)]
    def oneg(k): return [mfma(vLacc,vSEL[0],Pw(k,0),None,afile='v',name=f"ONE{k}.0"),mfma(vLacc,vSEL[1],Pw(k,1),vLacc,afile='v',name=f"ONE{k}.1")]
    for k in range(NS):
        c,t=divmod(k,T)
        start[k]=len(b.bb)
        for ch in range(4):
            kb=2*c+ch%2; qb=ch//2; n=4*k+ch
            QK[(k,ch)]=[qkm(Sb(n),aK(kb,ds),vQ(qb,ds),ds==0,f"QK{k}.{ch}.{ds}") for ds in range(4)]
            posQ[(k,ch)]=b.group(QK[(k,ch)])
            if k in pvof:
                key=(pvof[k],ch//2,ch%2); PV[key]=pvg(*key); posP[key]=b.group(PV[key])
            if ch==2 and k>=1: ONE[k-1]=oneg(k-1); posO[k-1]=b.group(ONE[k-1])
        if k==NS-1:
            for n in(14,15):
                f,h,kb,qb=chain_info(n)
                QK[("pre",n)]=[qkm(vS(n),aK(kb,ds),vQ(qb,ds),ds==0,f"QKp{n}.{ds}") for ds in range(4)]
                posQ[("pre",n)]=b.group(QK[("pre",n)])
        end[k]=len(b.bb)-1
    cus={}
    x=0
    for k in range(NS-LAG,NS):
        for qb in range(2):
            for db in range(2):
                PV[(k,qb,db)]=pvg(k,qb,db); cus[x]=("pv",(k,qb,db)); x+=1
                if x==3: ONE[NS-1]=oneg(NS-1); cus[x]=("one",NS-1); x+=1
    nskip=18-len(cus); hi=OPT.get("skiphi",14)
    skip=set(hi-2*j for j in range(nskip)); slots_=[y for y in range(18) if y not in skip]
    cus={slots_[y]:v for y,v in cus.items()}
    def Ncustom(x):
        if x not in cus: return None
        return PV[cus[x][1]] if cus[x][0]=="pv" else ONE[cus[x][1]]
    def placed(x,p):
        (posP if cus[x][0]=="pv" else posO)[cus[x][1]]=p
    BAR={}; W={}; C={}; LA={}; LW={}; RQ={}; TR={}; E={}
    bdeps={k:[] for k in range(NS)}; btags={k:set() for k in range(NS)}; bneed={k:[] for k in range(NS)}
    for k in range(NS): BAR[k]=b.barrier(end[k]-off,[],tags=btags[k],need=set())
    def bneeds(k,o): BAR[k].deps.append(o); BAR[k].ins.meta["need"].add(id(o.ins))
    for k in range(1,NS): BAR[k].deps.append(BAR[k-1])
    state={"scc":[],"dma":[],"ep":{}}
    def softmax(k):
        c,t=divmod(k,T)
        for ch in range(4):
            n=4*k+ch; qb=ch//2; h=ch%2
            for r in range(4): E[(k,ch,r)]=b.add(vexp(Sb(n)+r),posQ[(k,ch)]+6+2*r,[QK[(k,ch)][3]],name=f"E{k}.{ch}.{r}")
            for p2 in range(2):
                deps=[E[(k,ch,2*p2)],E[(k,ch,2*p2+1)]]
                if OWN:
                    if k>=4: deps+=[ONE[k-4][qb],W[(k-4,qb)],PV[(k-4,qb,0)][0],PV[(k-4,qb,1)][0]]
                elif k>=2: deps+=[ONE[k-2][qb],W[(k-2,qb)]]
                o=b.add(vcvtp(Pw(k,qb)+2*h+p2,Sb(n)+2*p2,Sb(n)+2*p2+1),E[(k,ch,2*p2+1)].prio+1,deps,name=f"C{k}.{ch}.{p2}")
                C[(k,ch,p2)]=o
                if k+1<NS: b.need(posQ[(k+1,ch)],o)
            if h==1:
                W[(k,qb)]=b.add(dsw128(vPw,Pw(k,qb),ent(k,qb)),C[(k,ch,1)].prio+1,[C[(k,cc,pp)] for cc in(ch-1,ch) for pp in range(2)]+([BAR[pvstep(k-4)]] if (k>=4 and pvstep(k-4)<k and ent(k,0)==ent(k-4,0)) else [])+([BAR[k-3]] if k>NS-LAG else []),name=f"W{k}.{qb}")
                if k+1<NS: bneeds(k+1,W[(k,qb)])
    for k in range(NS): softmax(k)
    def one_ops(k):
        c,t=divmod(k,T)
        for cc in range(4):
            for pp in range(2): b.need(posO[k],C[(k,cc,pp)])
        if k>=1: b.need(posO[k],LA[k-1])
        ins=valu(f"v_mov_b32 v{vLs(t)}, v{vLacc}",V(vLacc),V(vLs(t))) if c==0 else v2("v_add_f32",vLs(t),vLs(t),vLacc)
        LA[k]=b.add(ins,posO[k]+6,[ONE[k][1]],name=f"LA{k}")
        if c==3:
            LW[t]=b.add(dsw32(vLw,vLs(t),((T-1)%2)*512 if t==T-1 else 1024+t*512),posO[k]+8,[LA[k]],name=f"LW{t}")
            if k+1<NS: bneeds(k+1,LW[t])
    for k in range(NS-1): one_ops(k)
    def preads(k):
        for qb in range(2):
            for j in range(1 if ownk(k) else 0,4):
                deps=[BAR[k+1]]+([PV[(k-1,qb,1)][j]] if k>=1 else [])
                o=b.add(dsr128(vRing(2*k+qb,j),vPw if j==0 else vPr[j],ent(k,qb)),posP[(k,qb,0)]-OPT.get('rlead',12)+j,deps,name=f"R{k}.{qb}.{j}")
                b.need(posP[(k,qb,0)]-1,o); state.setdefault("R",[]).append(o)
    for k in range(NS-LAG): preads(k)
    for k in range(NS+1):
        t=k%T if k<NS else T%NQ
        for qb in range(2):
            for ds in range(4):
                deps=[QK[(k-1,2*qb+1)][ds]] if k>=1 else []
                if 2<=k<T: deps.append(BAR[k-2]); btags[k-2].add(f"Q{k}")
                if k==NS: deps.append(BAR[NS-2]); btags[NS-2].add(f"Q{T}")
                pr=(posQ[(k-1,2*qb+1)]+1+ds) if k>=1 else 14+4*qb+ds
                o=b.add(dsr128(vQ(qb,ds),vQrd,t*QSLOT+qb*4160+ds*256),pr,deps,name=f"RQ{k}.{qb}.{ds}"); RQ[(k,qb,ds)]=o
                if k<NS: b.need(posQ[(k,2*qb)]-1,o)
                elif qb==0: b.need(posQ[("pre",14)]-1,o)
    btags[NS-1].add(f"Q{T+1}")
    state["chain"]=[]; hard={0,1}
    def issue(units,where,deps,nm):
        for u,(k,fr) in zip(units,where):
            tt=int(start[k]+fr*(end[k]-start[k])); prev=list(deps)+state["chain"]+state["scc"]
            cap=OPT.get("cap0") if nm=="D" else OPT.get("cap1")
            if cap: u=[wait(vm=cap)]+list(u)
            nd=[x.kind for x in u].index("dma")
            for x,ins in enumerate(u):
                if ins.kind in("salu","wait"): o=b.adds(ins,tt+x-nd-3,prev,name="s"+nm,earliest=tt+x-nd-3 if x<nd else 0)
                else: o=b.add(ins,tt,prev,earliest=tt,name=nm); ins.cost=OPT.get("sdmac",8)
                prev=[o]
            state["chain"]=prev; state["scc"]=prev
            if k in hard: BAR[k].deps.append(prev[0])
    def spread(n,k0,per):
        w=[]; k=k0
        while len(w)<n:
            m=min(per,n-len(w)); w+=[(k,(x+0.5)/per) for x in range(m)]; k+=1
        return w
    kchain=[]
    def extra(j):
        o=flat([([wait(vm=OPT["cap0"])] if OPT.get("cap0") else [])+u for u in STREAM[12+(NPRO-12)*j//16:12+(NPRO-12)*(j+1)//16]])
        if j==9: o+=[waitslot(),bar(tags={"Q0","Q1"},need=set())]
        if 10<=j<14: o+=[RQ[(0,(j-10)//2,2*(j%2)+x)].ins for x in range(2)]
        return o
    for qb in range(2):
        for ds in range(4): o=RQ[(0,qb,ds)]; b.ops.remove(o); o.done=True; o.gap=-1
    ks0=b.add([waitslot()]+kread(0)+kscale(0,extra)+[waitslot()],0,[],name="KS0"); b.need(0,ks0)
    rest=STREAM[NPRO:]
    n0=OPT.get("n0",4); n1=OPT.get("n1",10)
    w=[(0,(x+0.5)/n0) for x in range(n0)]+[(1,OPT.get('f1',30)/100+0.5*x/n1) for x in range(n1)]
    w=w[:len(rest)]; w+=spread(len(rest)-len(w),2,2)
    issue(rest,w,[ks0],"D")
    lastk=w[-1][0]
    for c in range(4):
        s1=pvstep(c*T)-1
        btags[s1-1].add(f"V{c}")
        p0=start[c*T]
        if c==0: ks=ks0
        else:
            kr=[b.add(ins,p0-14+x,kchain,earliest=p0-16,name=f"KR{c}") for x,ins in enumerate(kread(c))]
            if OPT.get("kin",1) and c<3:
                ku=kdma_units(c+1); k0=OPT.get("kin0",0)
                ks=b.add([wait(lg=0)]+kscale(c,lambda j:ku[(j-k0)//OPT.get("kst",2)] if (j>=k0 and (j-k0)%OPT.get("kst",2)==0 and (j-k0)//OPT.get("kst",2)<8) else []),p0,kr+state["TR"]+state["chain"]+state["scc"],name=f"KS{c}")
                state["chain"]=[ks]; state["scc"]=[ks]
            else: ks=b.add(kscale(c),p0,kr+state["TR"],name=f"KS{c}")
            b.need(p0,ks)
        aw=[]
        for j in(14,15):
            x=ksops(c,j); prev=[ks]
            for n,ins in enumerate(x): o=b.add(ins,p0-8+j-14+n*0.1,prev,name="Kx"); prev=[o]; aw.append(o); b.need(posQ[(c*T,1)],o)
        state["KS"]=aw
        if OPT.get("rw1",-1)==c:
            x=rewarm("L_merged"); x[0].kind="salu"
            o0=b.adds(x[0],p0-2,[ks],name="sRW"); state["chain"]=[b.add(x[1],p0,[o0]+state["chain"],name="RW")]
        if OPT.get("touch") and OPT.get("tpos")==c: state["chain"]=[b.add(touch_ins(),p0,[ks]+state["chain"],name="TOUCH")]
        if 1<=c<3 and not OPT.get("kin",1): issue(kdma_units(c+1),spread(8,c*T,OPT.get("kper",6)),[ks],f"KD{c+1}")
        kchain=state["chain"]
        if V3 and OPT.get("vlate",1) and 1<=c<3:
            issue(vdma_half(2*c+2),[(c*T+int(f),f-int(f)) for f in [OPT.get("vl10",8)/10+(x+0.5)/OPT.get("vlper",4) for x in range(4)]],[state["vrel"]],f"VA{c+1}")
        state["TR"]=[]
        for j in range(4):
            r=vPw if j==0 else vPr[j]
            tb=b.add(vop(f"v_add_u32 v{vTB+j}, s{50+j}, v{vTD}",S(50+j)+V(vTD),V(vTB+j)),start[s1-1]+j,state.get("KS",[]),earliest=start[s1-1],name="TB")
            for db in range(2):
                for hf in range(2):
                    a=aV(j,c,db)+2*hf
                    o=b.add(I(f"ds_read_b64_tr_b16 a[{a}:{a+1}], v{vTB+j} offset:{vbuf(2*c+hf)-XB+8*db}","dsr",V(vTB+j),A(a,2)),start[s1]+(j*4+db*2+hf)*OPT.get("trs",10)/10-OPT.get("tro",0),[BAR[s1-1],tb],name=f"TR{c}")
                    b.need(posP[(c*T,0,0)]-1,o); state["TR"].append(o)
                    if not (OPT.get("vbar") and c<3): bneeds(s1,o)
        vrel=BAR[s1]; vk=s1+1; vf=0
        if OPT.get("vbar") and c<3:
            vrel=b.barrier(start[s1]+OPT["vbar"],[BAR[s1-1]]+state["TR"],keep=True,need={id(o.ins) for o in state["TR"]}); BAR[s1].deps.append(vrel)
            vk=s1; vf=(OPT["vbar"]+2)/(end[s1]-start[s1])
        if c==0 and OC==1 and "ocfix" not in OPT:
            assert LAG<=3 and T-LAG<=2
            prev=list(state["TR"][:4]); tt=start[s1+1]+2
            for ins in vscale(): o=b.add(ins,tt,prev,name="VS"); prev=[o]; tt+=2
            b.need(posP[(T-1,0,0)],o)
        if c<3:
            per=OPT.get("v1per",6) if c==0 else OPT.get("vper",6)
            k0=max(vk,lastk,OPT.get("v1",0)) if c==0 else vk
            w=[(k0+int(f),f-int(f)) for f in [(vf if k0==vk else 0)+(x+0.5)/per for x in range(8)]]
            if V3:
                issue(vdma_half(2*c+3),w[:4],[vrel],f"VD{c+1}")
                state["vrel"]=vrel
                if c<2 and not OPT.get("vlate",1): issue(vdma_half(2*c+4),[(k0+int(f),f-int(f)) for f in [OPT.get("va10",10)/10+(x+0.5)/per for x in range(4)]],[vrel],f"VD{c+2}")
            else: issue(vdma_units(c+1),w,[vrel],f"VD{c+1}")
        if c==2: state["xfree"]=[BAR[s1]]
    state["ep"]={"L":state["KS"],"S":state["TR"]}
    for x in range(D):
        t=T+x; k=min(max(3*T+1+t-NQ,3*T-1+x*OPT.get("qstep",1)+OPT.get("q0",0)),NS-1)
        issue(qdma_units(t),[(k,0.25),(k,0.6)],[BAR[3*T+t-NQ]] if t>=NQ else state["xfree"],"QD")
    chain=state["chain"]
    def ep(t,t0,tm,dt,scc):
        k=3*T+t
        od={(qb,db):PV[(k,qb,db)][3] for qb in range(2) for db in range(2)}
        e=epilogue_ops(b,lambda qb,db:vOs[t]+qb*8+db*4,1024+t*512,t0,tm,dt,[BAR[k+1]],od,state["ep"],scc,sc=0.5,tg=f"t{t}",OC=0)
        state["ep"]=e; return e
    eps={}; BARX=[]
    for t in range(T-LAG-1+0):
        k=3*T+t+LAG
        eps[t]=ep(t,start[k]+8,start[k]+20,1.3,state["scc"]); state["scc"]=eps[t]["A"]
    if T-LAG>=2:
        for o in eps[0]["M"]+eps[0]["S"]: b.need(posQ[("pre",14)],o)
    e14=[b.add(vexp(vS(14)+r),posQ[("pre",14)]+6+2*r,[QK[("pre",14)][3]],name=f"Ep{r}") for r in range(4)]
    def late(scc,must_bar):
        BAR[NS]=b.barrier(end[NS-1]+1+OPT.get("barx",23)+3-off,[BAR[NS-1]],keep=True,need=set())
        for qb in range(2): bneeds(NS,W[(NS-1,qb)])
        BARX.append(BAR[NS])
        state["R"]=[]
        for k in range(NS-LAG,NS): preads(k)
        must_bar+=state["R"]
        one_ops(NS-1); must_bar.append(LW[T-1])
        for t in range(T-LAG-1,T-1):
            k=3*T+t
            p=posP[(k,0,0)] if k>=NS-LAG else end[NS-1]-8
            p+=OPT.get("epd",0)*(t-(T-LAG-1))
            eps[t]=ep(t,p-6,p+10,OPT.get("epdt0",12)/10,scc); scc=eps[t]["A"]
        return scc
    last=NS-1
    ctx=dict(dmaprio=5,placed=placed,late=late,scc=state["scc"],c15=[QK[("pre",15)][3]],e14=e14,dmadep=chain+[BAR[last]],
             must_bar=[W[(last,0)],W[(last,1)]],wdep=[BAR[last]],rqdep=[BAR[last]],rqprev=[RQ[(NS,qb,ds)] for qb in range(2) for ds in range(4)],
             pwar={f:[ONE[NS-4+f//2][f%2],W[(NS-4+f//2,f%2)]]+([PV[(NS-4+f//2,f%2,0)][0],PV[(NS-4+f//2,f%2,1)][0]] if ownk(NS-4+f//2) else []) for f in range(8)} if OWN else
                  {0:[ONE[last-1][0],W[(last-1,0)]],1:[ONE[last-1][1],W[(last-1,1)]],2:[ONE[last][0],W[(last,0)]],3:[ONE[last][1],W[(last,1)]],
                   **({f:eps[1]["M"]+eps[1]["S"] for f in range(4,8)} if T-LAG>=3 else {})},
             swar={n:[C[(last,n,pp)] for pp in range(2)] for n in range(4)})
    iter_parts(b,T,T%2,1,1,0,0,1,Ncustom=Ncustom,ctx=ctx,baroff=off)
    b.sops[-1].deps.append(BAR[NS])
    for ds in range(4): b.need(end[last]+1+8-1,RQ[(NS,1,ds)])
    res=b.run(prefix,log,overdue=OPT.get("od",3))
    if OPT["stamp"]==2 and not OPT.get("ps") and "lg0" not in OPT:
        p0=OPT.get('p0'); pts=[2,3,6,9,13,16,20,23,27] if p0 is None else list(range(p0,p0+9)); o=[]
        for x in res:
            o.append(x)
            for n,k in enumerate(pts):
                if x is BAR[k].ins: o.append(raw(f"{'s_memtime' if OPT.get('cyc') else 's_memrealtime'} s[{78+2*n}:{79+2*n}]"))
        res=o
        if OPT.get("fine"):
            o=[]; on=False; n=0; x_=0
            for x in res:
                if x.kind=="raw" and x.text.startswith("s_mem"): continue
                o.append(x)
                if x is BAR[NS-1].ins: on=True; o.append(raw("s_memtime s[78:79]")); n=1
                if on and x.kind=="mfma":
                    x_+=1
                    if x_%OPT["fine"]==0 and n<9: o.append(raw(f"s_memtime s[{78+2*n}:{79+2*n}]")); n+=1
            res=o
    n=[n for n,x in enumerate(res) if x is BAR[NS-3].ins][0]
    res=res[:n+1]+[label(f"L_merged{off if off else ''}")]+res[n+1:]
    if "spinbar" in OPT:
        n=[n for n,x in enumerate(res) if x is BAR[OPT["spinbar"]].ins][0]
        res=res[:n+1]+stamp(1)+res[n+1:]
    if "spinfrom" in OPT:
        n=[n for n,x in enumerate(res) if x is BAR[OPT["spinfrom"]].ins][0]
        res=res[:n+1]+stamp(0)+res[n+1:]
    if OPT.get("seg"):
        idx=[n for n,x in enumerate(res) if x.kind=="bar"]
        print("step est:",[estimate(res[a:z]) for a,z in zip(idx,idx[1:])],file=sys.stderr)
    return res

class Seq:
    def __init__(s,prefix=()): s.o=list(prefix); s.n0=len(s.o)
    def __call__(s,*ins,slot=True):
        for i in ins:
            if slot and i.kind not in("label","comment","salu","wait","branch","raw","nop"): s.o.append(waitslot())
            k=hazard_need(s.o,i)
            if k>0: s.o.append(nop(k))
            s.o.append(i)
    def out(s): return s.o[s.n0:]

def vop(t,rd,wr): return valu(t,rd,wr)
def prologue():
    q=Seq()
    q(salu("s_cmp_ge_u32 s2, 256",S(2),[SCC]), I("s_cbranch_scc1 L_end","branch",[SCC]))
    if OPT["stamp"]: q(raw("s_memtime s[60:61]"),raw("s_memrealtime s[62:63]"),raw(f"s_load_dwordx2 s[{sDbg}:{sDbg+1}], s[0:1], 32"))
    q(raw("s_load_dwordx4 s[36:39], s[0:1], 0"), raw("s_load_dwordx4 s[40:43], s[0:1], 16"))
    L,Q_,G_,T1,T2,T3=200,201,202,203,204,205
    if OPT.get("warm",2):
        q(raw("s_getpc_b64 s[56:57]"), label("L_pc"), raw("s_and_b32 s57, s57, 0xffff"), raw("s_mov_b32 s58, L_end-L_pc"), raw("s_mov_b32 s59, 0x20000"))
        q(vop(f"v_lshlrev_b32 v{T2}, 7, v0",V(0),V(T2)))
    def warm(ks):
        for k in ks:
            q(raw(f"s_mov_b32 s55, {k*32768}"))
            q(I(f"buffer_load_dword v{232+k}, v{T2}, s[56:59], s55 offen","vld",V(T2),V(232+k)),slot=False)
    nw=OPT.get("warm",2); we=OPT.get("wearly",1)
    warm(range(min(we,nw)))
    if "rw1" in OPT or "rw2" in OPT: q(vop(f"v_mov_b32 v254, v{T2}",V(T2),V(254)))
    q(vop(f"v_and_b32 v{L}, 63, v0",V(0),V(L)), vop(f"v_lshrrev_b32 v{T1}, 6, v0",V(0),V(T1)))
    q(I(f"v_readfirstlane_b32 s{sW}, v{T1}","valu",V(T1),S(sW),meta={"rfl":1}))
    q(vop(f"v_and_b32 v{Q_}, 15, v{L}",V(L),V(Q_)), vop(f"v_lshrrev_b32 v{G_}, 4, v{L}",V(L),V(G_)))
    R_,C_=208,209
    q(vop(f"v_bfe_u32 v{R_}, v{L}, 2, 2",V(L),V(R_)), vop(f"v_and_b32 v{C_}, 3, v{L}",V(L),V(C_)))
    q(salu(f"s_mul_i32 s3, s2, {QBYTES}",S(2),S(3)), salu("s_lshl_b32 s31, s2, 17",S(2),S(31)))
    q(salu(f"s_lshl_b32 s46, s{sW}, 11",S(sW),S(46)), salu(f"s_lshl_b32 s{sKo}, s{sW}, 15",S(sW),S(sKo)))
    q(vop(f"v_lshlrev_b32 v{vQdma}, 8, v{R_}",V(R_),V(vQdma)), vop(f"v_lshl_add_u32 v{vQdma}, v{G_}, 6, v{vQdma}",V(G_)+V(vQdma),V(vQdma)),
      vop(f"v_lshl_add_u32 v{vQdma}, v{C_}, 4, v{vQdma}",V(C_)+V(vQdma),V(vQdma)), vop(f"v_add_u32 v{vQdma}, s46, v{vQdma}",S(46)+V(vQdma),V(vQdma)))
    q(salu(f"s_mul_i32 s47, s{sW}, 2080",S(sW),S(47)), salu(f"s_add_u32 s{sWoff}, s47, {QBASE}",S(47),S(sWoff)))
    q(salu(f"s_sub_u32 s44, s{sKo}, s46",S(sKo)+S(46),S(44)), salu(f"s_mul_i32 s54, s{sW}, {QSLOT}",S(sW),S(54)), salu(f"s_add_u32 s54, s54, {KBASE}",S(54),S(54)))
    for srd,nb in((sQ,QBYTES),(sK,KBYTES),(sV,KBYTES),(sO,QBYTES)):
        q(salu(f"s_mov_b32 s{srd+2}, {nb}",[],S(srd+2)), salu(f"s_mov_b32 s{srd+3}, 0x20000",[],S(srd+3)))
    q(raw("s_waitcnt lgkmcnt(0)"))
    def base(srd,src,off):
        q(salu(f"s_add_u32 s{srd}, s{src}, s{off}",S(src)+S(off),S(srd)), salu(f"s_addc_u32 s{srd+1}, s{src+1}, 0",S(src+1),S(srd+1)),
          salu(f"s_and_b32 s{srd+1}, s{srd+1}, 0xffff",S(srd+1),S(srd+1)))
    ps=lambda n:[raw(f"s_memrealtime s[{78+2*n}:{79+2*n}]")] if OPT.get("ps") else []
    base(sK,38,31); q(*ps(0),*flat(STREAM[:8]),*ps(1),slot=False)
    base(sQ,36,3); q(*flat(STREAM[8:12]),slot=False)
    warm(range(min(we,nw),nw))
    base(sV,40,31); base(sO,42,3)
    if OPT.get("touch"):
        q(vop(f"v_lshlrev_b32 v{T2}, {OPT.get('tsh',12)}, v0",V(0),V(T2)))
        q(vop(f"v_mov_b32 v254, v{T2}",V(T2),V(254)))
        if not OPT.get("tpos"): q(touch_ins(),slot=False)
    for n in range(1,8): q(salu(f"s_add_u32 s{sKo+n}, s{sKo}, {n*4096}",S(sKo),S(sKo+n)))
    q(salu(f"s_add_u32 s{sT}, s47, {QEND}",S(47),S(sT)), salu(f"s_add_u32 s{sQm0}, s{sWoff}, {((T+D)%NQ)*QSLOT}",S(sWoff),S(sQm0)), salu(f"s_mov_b32 s{sQso}, {(T+D)*8192}",[],S(sQso)))
    q(vop(f"v_lshlrev_b32 v{T1}, 2, v{G_}",V(G_),V(T1)), vop(f"v_xor_b32 v{T1}, v{T1}, v{Q_}",V(T1)+V(Q_),V(T1)),
      vop(f"v_lshlrev_b32 v{T1}, 4, v{T1}",V(T1),V(T1)), vop(f"v_lshl_add_u32 v{vVA}, v{G_}, 8, v{T1}",V(G_)+V(T1),V(vVA)))
    q(salu(f"s_lshl_b32 s{sVm}, s{sW}, 12",S(sW),S(sVm)))
    q(*ps(2))
    q(vop(f"v_lshrrev_b32 v{T1}, 2, v{Q_}",V(Q_),V(T1)), vop(f"v_lshlrev_b32 v{vQrd0}, 10, v{T1}",V(T1),V(vQrd0)),
      vop(f"v_lshrrev_b32 v{T1}, 3, v{Q_}",V(Q_),V(T1)), vop(f"v_lshl_add_u32 v{vQrd0}, v{T1}, 5, v{vQrd0}",V(T1)+V(vQrd0),V(vQrd0)),
      vop(f"v_lshl_add_u32 v{vQrd0}, v{C_}, 6, v{vQrd0}",V(C_)+V(vQrd0),V(vQrd0)), vop(f"v_lshl_add_u32 v{vQrd0}, v{G_}, 4, v{vQrd0}",V(G_)+V(vQrd0),V(vQrd0)))
    q(salu(f"s_mov_b32 s{sQrs}, {QBASE+(T%NQ)*QSLOT}",[],S(sQrs))); q(vop(f"v_add_u32 v{vQrd}, {QBASE}, v{vQrd0}",V(vQrd0),V(vQrd)))
    for j in range(4):
        q(salu(f"s_add_u32 s49, s{sW}, {j}",S(sW),S(49)), salu("s_and_b32 s49, s49, 3",S(49),S(49)), salu(f"s_lshl_b32 s{50+j}, s49, 13",S(49),S(50+j)))
        r=vPw if j==0 else vPr[j]
        q(vop(f"v_lshl_add_u32 v{r}, v{L}, 4, s{50+j}",V(L)+S(50+j),V(r)))
        q(salu(f"s_lshr_b32 s{50+j}, s{50+j}, 1",S(50+j),S(50+j)), salu(f"s_add_u32 s{50+j}, s{50+j}, {XB}",S(50+j),S(50+j)))
    q(salu(f"s_lshl_b32 s49, s{sW}, 6",S(sW),S(49)))
    q(vop(f"v_lshlrev_b32 v{vOst}, 8, v{Q_}",V(Q_),V(vOst)), vop(f"v_lshl_add_u32 v{vOst}, v{G_}, 4, v{vOst}",V(G_)+V(vOst),V(vOst)), vop(f"v_add_u32 v{vOst}, s49, v{vOst}",S(49)+V(vOst),V(vOst)))
    q(vop(f"v_lshrrev_b32 v{T1}, 1, v{G_}",V(G_),V(T1)), vop(f"v_lshl_add_u32 v{T1}, v{T1}, 4, v{Q_}",V(T1)+V(Q_),V(T1)),
      vop(f"v_lshlrev_b32 v{T1}, 4, v{T1}",V(T1),V(T1)), vop(f"v_add_u32 v{vLr}, {LBASE}, v{T1}",V(T1),V(vLr)))
    q(salu(f"s_lshl_b32 s49, s{sW}, 2",S(sW),S(49))); q(vop(f"v_add_u32 v{vLw}, s49, v{vLr}",S(49)+V(vLr),V(vLw)))
    q(vop(f"v_mov_b32 v{vLmax}, 0",[],V(vLmax)), vop(f"v_mov_b32 v{vRmax}, 0",[],V(vRmax)))
    if OC and "ocfix" in OPT:
        for r in range(4): q(vop(f"v_mov_b32 v{vC0+r}, {struct.unpack('<I',struct.pack('<f',OPT['ocfix']/8))[0]:#x}",[],V(vC0+r)))
    if CI not in(0,1,2,4,-1,-2,-4):
        assert max(vOs)+15<vCI or T-LAG<=2 and LAG<=3
        for r in range(4): q(vop(f"v_mov_b32 v{vCI+r}, {struct.unpack('<I',struct.pack('<f',CI))[0]:#x}",[],V(vCI+r)))
    q(vop(f"v_mov_b32 v{T1}, 0x3f803f80",[],V(T1)), valu(f"v_cmp_gt_u32 vcc, 8, v{Q_}",V(Q_),[VCC]))
    for r in range(4):
        q(valu(f"v_cndmask_b32 v{vSEL[0]+r}, 0, v{T1}, vcc",V(T1)+[VCC],V(vSEL[0]+r)))
        q(vop(f"v_xor_b32 v{vSEL[1]+r}, v{T1}, v{vSEL[0]+r}",V(T1)+V(vSEL[0]+r),V(vSEL[1]+r)))
    if OPT.get("trunc"): q(salu("s_mov_b32 s74, 0x07060302",[],S(74)))
    q(salu(f"s_mov_b32 s{sO0}, 0",[],S(sO0)), salu(f"s_mov_b32 s{sO1}, 4096",[],S(sO1)))
    q(vop(f"v_lshlrev_b32 v{T1}, 2, v{R_}",V(R_),V(T1)), vop(f"v_add_u32 v{T2}, s49, v{C_}",S(49)+V(C_),V(T2)), vop(f"v_xor_b32 v{T2}, v{T2}, v{T1}",V(T1)+V(T2),V(T2)),
      vop(f"v_lshl_add_u32 v{T3}, v{G_}, 2, v{R_}",V(G_)+V(R_),V(T3)), vop(f"v_lshlrev_b32 v{T3}, 8, v{T3}",V(T3),V(T3)), vop(f"v_lshl_add_u32 v{vTD}, v{T2}, 4, v{T3}",V(T2)+V(T3),V(vTD)))
    q(vop(f"v_add_u32 v{vKA}, s54, v{vQrd0}",S(54)+V(vQrd0),V(vKA)))
    q(vop(f"v_lshrrev_b32 v{T1}, 2, v{Q_}",V(Q_),V(T1)), valu(f"v_cmp_eq_u32 vcc, v{T1}, v{G_}",V(T1)+V(G_),[VCC]),
      vop(f"v_and_b32 v{T1}, 1, v{L}",V(L),V(T1)), vop(f"v_lshlrev_b32 v{T1}, 4, v{T1}",V(T1),V(T1)),
      vop(f"v_and_b32 v{T2}, 2, v{L}",V(L),V(T2)), valu(f"v_cmp_eq_u32 s[48:49], 0, v{T2}",V(T2),S(48,2)))
    for lo,cb in enumerate((CHI,CLO)):
        q(vop(f"v_mov_b32 v{T2}, {cb:#x}",[],V(T2)), v2("v_lshlrev_b32",T2,T1,T2), valu(f"v_cndmask_b32 v{T2}, 0, v{T2}, vcc",V(T2)+[VCC],V(T2)),
          valu(f"v_cndmask_b32 v{T3}, 0, v{T2}, s[48:49]",V(T2)+S(48,2),V(T3)), v2("v_xor_b32",T2,T2,T3))
        for half in range(2):
            a=aSC(lo,half)
            q(vop(f"v_accvgpr_write_b32 a{a+2*half}, v{T3}",V(T3),A(a+2*half)), vop(f"v_accvgpr_write_b32 a{a+2*half+1}, v{T2}",V(T2),A(a+2*half+1)),
              vop(f"v_accvgpr_write_b32 a{a+2-2*half}, 0",[],A(a+2-2*half)), vop(f"v_accvgpr_write_b32 a{a+3-2*half}, 0",[],A(a+3-2*half)))
    q(*ps(3))
    return q.out()

def fallback():
    q=Seq()
    q(label("L_fallback"), wait(vm=0,lg=0), bar())
    q(salu(f"s_mov_b32 s{sQso}, 0",[],S(sQso)), salu(f"s_mov_b32 s{sO0}, 0",[],S(sO0)), salu(f"s_mov_b32 s{sO1}, 4096",[],S(sO1)), salu(f"s_mov_b32 s{sLoop}, {NT}",[],S(sLoop)))
    q(vop(f"v_add_u32 v{vQrd}, {QBASE}, v{vQrd0}",V(vQrd0),V(vQrd)))
    MW,MR,T=216,217,218
    q(vop(f"v_mbcnt_lo_u32_b32 v{T}, -1, 0",[],V(T)), vop(f"v_mbcnt_hi_u32_b32 v{T}, -1, v{T}",V(T),V(T)),
      vop(f"v_and_b32 v{MR}, 15, v{T}",V(T),V(MR)), vop(f"v_lshlrev_b32 v{MR}, 6, v{MR}",V(MR),V(MR)), vop(f"v_add_u32 v{MR}, {MBASE}, v{MR}",V(MR),V(MR)),
      vop(f"v_lshrrev_b32 v{T}, 4, v{T}",V(T),V(T)), vop(f"v_lshl_add_u32 v{MW}, v{T}, 2, v{MR}",V(T)+V(MR),V(MW)))
    q(salu(f"s_lshl_b32 s49, s{sW}, 4",S(sW),S(49))); q(vop(f"v_add_u32 v{MW}, s49, v{MW}",S(49)+V(MW),V(MW)))
    q(label("L_fb_loop"))
    q(salu(f"s_mov_b32 m0, s{sWoff}",S(sWoff),[M0])); q(dma(vQdma,sQ,sQso,0),dma(vQdma,sQ,sQso,1024)); q(wait(vm=0),bar())
    for qb in range(2):
        for ds in range(4): q(dsr128(vQ(qb,ds),vQrd,qb*4160+ds*256))
    Sb=lambda kb,qb:64+(kb*2+qb)*4
    Pf=lambda f:128+f*4
    for kb in range(8):
        for qb in range(2):
            for ds in range(4): q(mfma(Sb(kb,qb),aK(kb,ds),vQ(qb,ds),None if ds==0 else Sb(kb,qb)))
    Mx=[220,221]; RD=224
    for qb in range(2):
        q(v2("v_max_f32",Mx[qb],Sb(0,qb),Sb(0,qb)+1))
        regs=[Sb(kb,qb)+r for kb in range(8) for r in range(4)][2:]
        for x in range(0,30,2): q(vop(f"v_max3_f32 v{Mx[qb]}, v{Mx[qb]}, v{regs[x]}, v{regs[x+1]}",V(Mx[qb])+V(regs[x])+V(regs[x+1]),V(Mx[qb])))
        q(dsw32(MW,Mx[qb],qb*1024))
    q(bar())
    for qb in range(2):
        for x in range(4): q(dsr128(RD+4*x,MR,qb*1024+16*x))
        q(v2("v_max_f32",Mx[qb],RD,RD+1))
        for x in range(2,16,2): q(vop(f"v_max3_f32 v{Mx[qb]}, v{Mx[qb]}, v{RD+x}, v{RD+x+1}",V(Mx[qb])+V(RD+x)+V(RD+x+1),V(Mx[qb])))
    for kb in range(8):
        for qb in range(2):
            for r in range(4): q(v2("v_sub_f32",Sb(kb,qb)+r,Sb(kb,qb)+r,Mx[qb]),slot=False)
            for r in range(4): q(vexp(Sb(kb,qb)+r),slot=False)
            for p2 in range(2): q(vcvt(Pf(2*(kb//2)+qb)+2*(kb%2)+p2,Sb(kb,qb)+2*p2,Sb(kb,qb)+2*p2+1),slot=False)
    for f in range(8): q(dsw128(vPw,Pf(f),f*1024))
    for qb in range(2):
        for kp in range(4): q(mfma(vLacc,vSEL[qb],Pf(2*kp+qb),None if (kp==0 and qb==0) else vLacc,afile='v'))
    q(dsw32(vLw,vLacc,0)); q(bar())
    for qb in range(2):
        for db in range(2):
            for kp in range(4): q(mfma(vO(0,qb,db),aV(0,kp,db),Pf(2*kp+qb),None if kp==0 else vO(0,qb,db)))
    for j in range(1,4):
        for qb in range(2):
            for k in range(4): q(dsr128(RD+4*k,vPr[j],(2*k+qb)*1024))
            for db in range(2):
                for kp in range(4): q(mfma(vO(0,qb,db),aV(j,kp,db),RD+4*kp,vO(0,qb,db)))
    q(dsr128(vLrd,vLr,0)); q(v2("v_add_f32",vLrd,vLrd,vLrd+1),v2("v_add_f32",vLrd+2,vLrd+2,vLrd+3),v2("v_add_f32",vLrd,vLrd,vLrd+2))
    q(valu(f"v_rcp_f32 v{vR0}, v{vLrd}",V(vLrd),V(vR0),"trans"), vop(f"v_mov_b32 v{vR1}, v{vR0}",V(vR0),V(vR1)),
      valu(f"v_permlane32_swap_b32 v{vR0}, v{vR1}",V(vR0)+V(vR1),V(vR0)+V(vR1),"perm"))
    for qb in range(2):
        for db in range(2):
            for p2 in range(2):
                r=vO(0,qb,db)+2*p2; R=vR0 if qb==0 else vR1
                q(v2("v_mul_f32",r,r,R),v2("v_mul_f32",r+1,r+1,R),vcvt(vOut(qb)+2*db+p2,r,r+1))
        q(vst(vOut(qb),vOst,sO,sO0 if qb==0 else sO1))
    q(salu(f"s_add_u32 s{sO0}, s{sO0}, 8192",S(sO0),S(sO0)), salu(f"s_add_u32 s{sO1}, s{sO1}, 8192",S(sO1),S(sO1)), salu(f"s_add_u32 s{sQso}, s{sQso}, 8192",S(sQso),S(sQso)))
    q(wait(vm=0,lg=0),bar())
    q(salu(f"s_sub_u32 s{sLoop}, s{sLoop}, 1",S(sLoop),S(sLoop)), salu(f"s_cmp_lg_u32 s{sLoop}, 0",S(sLoop),[SCC]), I("s_cbranch_scc1 L_fb_loop","branch",[SCC]))
    return q.out()

def stamp(n):
    if OPT["stamp"]==2: return [raw(f"s_memrealtime s[{76+2*n}:{77+2*n}]")] if n in(0,) else ([raw("s_memrealtime s[98:99]")] if n==1 else [])
    return [raw(f"s_memtime s[{76+4*n}:{77+4*n}]"),raw(f"s_memrealtime s[{78+4*n}:{79+4*n}]")] if OPT["stamp"] else []

def build():
    logs={}
    pro=prologue()+stamp(0)
    def it(i,par,cur,nxt,pv,ep,prefix,**kw):
        lg=[]; r=iteration(i,par,cur,nxt,pv,ep,(i+D<NT) or kw.get("force_dma"),prefix,log=lg,**{k:v for k,v in kw.items() if k!="force_dma"}); logs[i]=lg; return [comment(f"---- iteration {i}")]+r
    U=OPT.get("U",2); nst=40-(T+1); trips=nst//U; rem=nst-trips*U
    stag=OPT.get("stag",0); ncopy=OPT.get("ncopy",4) if stag else 1
    sst=OPT.get("sstag",0)
    disp=[]
    for cp in range(ncopy-1,0,-1):
        disp+=[salu(f"s_cmp_ge_u32 s{sW}, {cp*(4//ncopy)}",S(sW),[SCC]), I(f"s_cbranch_scc1 L_copy{cp}","branch",[SCC])]
    def mk0(off):
        lg=[]; r=[comment("---- start-up steps + merged iteration")]+startup(pro,lg,off); logs[0]=lg
        return r+[salu(f"s_mov_b32 s{sLoop}, {trips}",[],S(sLoop))]+([] if "spinbar" in OPT else stamp(1))
    def mkend(prev,off):
        r=[]
        for u in range(rem):
            x=it(40-rem+u,(40-rem+u)%2,1,1,1,1,prev,force_dma=True,baroff=off); prev=x; r+=x
        x=stamp(2)+it(40,0,1,0,1,1,prev,ctx={"eager":1},baroff=off)
        return r,x
    if not sst: i0=mk0(0)
    allb=[]; paths=[]; body_rem=[]
    for cp in range(ncopy):
        if sst: i0=mk0(stag*cp)
        body=[]; prev=i0
        for u in range(U):
            x=it(T+1+u,(T+1+u)%2,1,1,1,1,prev,force_dma=True,loopctl=f"L_loop{cp}" if (u==U-1 and trips>1) else None,baroff=stag*cp); body+=x; prev=x
            if u==0: ia=x
            if u==1: ib=x
        if "lg0" in OPT:
            o=[]; n=0; g=-1
            for x in body:
                o.append(x)
                if x.kind=="mfma":
                    g+=1
                    if g>=OPT["lg0"] and (g-OPT["lg0"])%OPT.get("lgs",8)==0 and n<9: o.append(raw(f"s_memtime s[{78+2*n}:{79+2*n}]")); n+=1
            body=o
        if sst or cp==0: br,i40=mkend(prev,stag*cp if sst else 0)
        paths.append(i0+body*min(trips,3)+br+i40)
        if OPT.get("rot"):
            kind={"W":"dsw","S":"vst"}[OPT["rot"]]
            idx=max(n for n,x in enumerate(body) if x.kind==kind and x.cost>=8 and (kind!="dsw" or x.cost>8))+1
            assert body[-1].kind=="branch" and any(x.text.startswith(f"s_cmp_lg_u32 s{sLoop}") for x in body[:idx])
            lay=[I(f"s_branch L_entry{cp}","branch"),raw(f".p2align {OPT.get('al',6)}"),label(f"L_loop{cp}")]+body[idx:-1]+[label(f"L_entry{cp}")]+body[:idx]+[body[-1]]+body[idx:-1]
        else: lay=[raw(f".p2align {OPT.get('al',6)}"),label(f"L_loop{cp}")]+body
        allb+=[label(f"L_copy{cp}")]+(i0 if sst else [])+lay+(br+i40 if sst else [])
        body_rem+=body+br
        if cp<ncopy-1: allb+=[I("s_branch L_after","branch")]
    allb+=[label("L_after")]
    lg=[]; i41=[comment("---- drain")]+drain(41,i40,lg); logs[41]=lg; i42=[]; i1=[]
    main=pro+(disp if sst else i0+disp)+allb+([] if sst else br+i40)+i41
    fin=Seq(i41+i42)
    fin(salu(f"s_mov_b32 s49, {HI:#x}",[],S(49)), salu(f"s_mov_b32 s50, {RHI:#x}",[],S(50)))
    fin(valu(f"v_cmp_lt_u32 vcc, s49, v{vLmax}",S(49)+V(vLmax),[VCC]), valu(f"v_cmp_lt_u32 s[52:53], s50, v{vRmax}",S(50)+V(vRmax),S(52,2)))
    fin(nop(4), salu("s_or_b64 vcc, vcc, s[52:53]",[VCC]+S(52,2),[VCC]), nop(4), I("s_cbranch_vccnz L_fallback","branch",[VCC]))
    if OPT["stamp"]==2 and OPT.get("all"):
        fin(raw("s_waitcnt vmcnt(0)"),raw("s_memrealtime s[100:101]"),raw("s_waitcnt lgkmcnt(0)"),raw(f"s_cmp_lg_u32 s{sW}, 0"),raw("s_cbranch_scc1 L_end"))
        fin(raw(f"s_and_b32 s{sDbg+1}, s{sDbg+1}, 0xffff"),raw(f"s_mov_b32 s{sDbg+2}, 4096"),raw(f"s_mov_b32 s{sDbg+3}, 0x20000"))
        fin(raw("s_getreg_b32 s3, hwreg(HW_REG_XCC_ID)"),raw("s_and_b32 s3, s3, 7"),raw("s_and_b32 s55, s62, 0xffffff"),raw("s_lshl_b32 s3, s3, 24"),raw("s_or_b32 s3, s3, s55"),raw("v_mov_b32 v200, s3"))
        for n,r in enumerate((82,98,100)): fin(raw(f"s_sub_u32 s3, s{r}, s62"),raw(f"v_mov_b32 v{201+n}, s3"))
        fin(raw("s_lshl_b32 s3, s2, 4"),raw("v_mov_b32 v220, s3"),raw("s_mov_b64 exec, 1"),raw(f"buffer_store_dwordx4 v[200:203], v220, s[{sDbg}:{sDbg+3}], 0 offen"))
    elif OPT["stamp"]==2:
        fin(raw("s_waitcnt vmcnt(0)"),raw("s_memrealtime s[100:101]"),raw("s_waitcnt lgkmcnt(0)"))
        fin(raw("s_and_b32 s3, s2, 63"),raw("s_cmp_lg_u32 s3, 0"),raw("s_cbranch_scc1 L_end"),raw(f"s_cmp_lg_u32 s{sW}, 0"),raw("s_cbranch_scc1 L_end"))
        fin(raw(f"s_and_b32 s{sDbg+1}, s{sDbg+1}, 0xffff"),raw(f"s_mov_b32 s{sDbg+2}, 256"),raw(f"s_mov_b32 s{sDbg+3}, 0x20000"))
        for n in range(13): fin(raw(f"s_sub_u32 s3, s{76+2*n}, s62"),raw(f"v_mov_b32 v{200+n}, s3"))
        fin(raw("s_lshr_b32 s3, s2, 6"),raw("s_lshl_b32 s3, s3, 6"),raw("v_mov_b32 v220, s3"),raw("s_mov_b64 exec, 1"))
        for n in range(4): fin(raw(f"buffer_store_dwordx4 v[{200+4*n}:{203+4*n}], v220, s[{sDbg}:{sDbg+3}], 0 offen offset:{16*n}"))
    elif OPT["stamp"]:
        fin(*stamp(3)); fin(raw("s_waitcnt vmcnt(0)")); fin(*stamp(4)); fin(raw("s_waitcnt lgkmcnt(0)"))
        sp=OPT.get("spin")
        if sp is not None:
            ex={0:["s_mov_b32 s3, 0"],1:["s_sub_u32 s3, s78, s62","s_lshl_b32 s3, s3, 2"],2:["s_sub_u32 s3, s86, s82"],3:["s_sub_u32 s3, s94, s62"],
                4:["s_sub_u32 s3, s84, s80","s_lshr_b32 s3, s3, 4"],5:["s_sub_u32 s3, s82, s62","s_lshl_b32 s3, s3, 2"],6:["s_sub_u32 s3, s82, s78","s_lshl_b32 s3, s3, 3"],7:["s_sub_u32 s3, s80, s76","s_lshr_b32 s3, s3, 1"],8:["s_sub_u32 s3, s94, s86","s_lshl_b32 s3, s3, 3"]}[sp]
            for e in ex: fin(raw(e))
            fin(raw("s_add_u32 s3, s3, 15000"),label("L_spin"),raw("s_memrealtime s[98:99]"),raw("s_waitcnt lgkmcnt(0)"),raw("s_sub_u32 s98, s98, s62"),raw("s_cmp_lt_u32 s98, s3"),raw("s_cbranch_scc1 L_spin"))
        fin(raw("s_and_b32 s3, s2, 31"),raw("s_cmp_lg_u32 s3, 0"),raw("s_cbranch_scc1 L_end"),raw(f"s_cmp_lg_u32 s{sW}, 0"),raw("s_cbranch_scc1 L_end"))
        fin(raw(f"s_and_b32 s{sDbg+1}, s{sDbg+1}, 0xffff"),raw(f"s_mov_b32 s{sDbg+2}, 256"),raw(f"s_mov_b32 s{sDbg+3}, 0x20000"))
        for n in range(4): fin(raw(f"s_sub_u32 s3, s{76+4*(n+1 if n==3 else n)}, s60"),raw(f"v_mov_b32 v{200+2*n}, s3"),raw(f"s_sub_u32 s3, s{78+4*(n+1 if n==3 else n)}, s62"),raw(f"v_mov_b32 v{201+2*n}, s3"))
        fin(raw("s_lshr_b32 s3, s2, 5"),raw("s_lshl_b32 s3, s3, 5"),raw("v_mov_b32 v208, s3"),raw("s_mov_b64 exec, 1"),
            raw(f"buffer_store_dwordx4 v[200:203], v208, s[{sDbg}:{sDbg+3}], 0 offen"),raw(f"buffer_store_dwordx4 v[204:207], v208, s[{sDbg}:{sDbg+3}], 0 offen offset:16"))
    fin(raw("s_endpgm"))
    fb=fallback()
    ool=[]
    if "rw2" in OPT:
        for cp in range(ncopy): ool+=[label(f"L_loop{cp}_rw")]+rewarm("L_after")+[raw(f"s_branch L_loop{cp}_rwb")]
    static=main+fin.out()+ool+fb+[label("L_end"),raw("s_endpgm")]
    dyns=[pro+p+i41+fin.out() for p in paths]
    for rep in range(2):
        for dyn in dyns: resolve_waits(dyn)
    k=[x for x,y in enumerate(fb) if y.text=="L_fb_loop"][0]
    dynf=fb+fb[k:]
    resolve_waits(dynf)
    for name,d in [("main",d) for d in dyns]+[("fallback",dynf)]:
        bad=check_hazards(d)
        for b in bad: print("HAZARD",name,b,file=sys.stderr)
        assert not bad
        print(name,"max outstanding",max_outstanding(d),file=sys.stderr)
    for nm,sq in(("i0",i0),("i1",i1),("ia",ia),("ib",ib),("i40",i40),("i41",i41),("i42",i42)):
        print(nm,"est cycles",estimate(sq),"nops",sum(1 for x in sq if x.kind=="nop"),"instrs",sum(1 for x in sq if states(x)),file=sys.stderr)
    if "log" in OPT: print("\n".join(logs[OPT["log"]]),file=sys.stderr)
    if OC==2:
        for x in main:
            if x.kind=="mfma" and x.name.startswith("PV") and x.text.endswith(", 0"): x.text=x.text[:-1]+"1.0"
    if "linit" in OPT:
        for x in main:
            if x.kind=="mfma" and "ONE" in x.name and x.text.endswith(", 0"): x.text=x.text[:-1]+f"{float(OPT['linit']):.1f}"
    if "oinit" in OPT:
        for x in main:
            if x.kind=="mfma" and x.name.startswith("PV") and x.text.endswith(", 0"): x.text=x.text[:-1]+f"{float(OPT['oinit'])/2:.1f}"
        static=[x for x in static if x.text!="s_cbranch_vccnz L_fallback"]
    abl=str(OPT.get("abl","")).split("+")
    if abl!=[""]:
        loop=set(map(id,body_rem)) if not OPT.get('abs') else set(map(id,i0[len(i0)//4:]))
        def drop(x):
            if id(x) not in loop: return False
            t=x.text
            return (("st" in abl and x.kind=="vst") or ("dma" in abl and x.kind=="dma") or ("pr" in abl and x.kind=="dsr" and 128<=min(r[1] for r in x.wr)<160)
              or ("qr" in abl and x.kind=="dsr" and 32<=min(r[1] for r in x.wr)<64) or ("pw" in abl and x.kind=="dsw") or ("exp" in abl and t.startswith("v_exp"))
              or ("cvt" in abl and t.startswith("v_cvt")) or ("one" in abl and x.kind=="mfma" and x.name.startswith("ONE")) or ("bar" in abl and x.kind=="bar")
              or ("mul" in abl and t.startswith("v_mul")) or ("valu" in abl and x.kind in VALU_KINDS) or ("qk" in abl and x.kind=="mfma" and x.name.startswith("QK"))
              or ("pv" in abl and x.kind=="mfma" and x.name.startswith("PV")) or ("wait" in abl and x.kind=="wslot") or ("ks" in abl and (t.startswith("v_accvgpr") or t.startswith("v_pk_mul") or t.startswith("v_and") or t.startswith("v_lshlrev"))))
        static=[x for x in static if not drop(x)]
        static=[x for x in static if x.text!="s_cbranch_vccnz L_fallback"]
    if OPT.get("fake") or OPT.get("samea"): static=[x for x in static if x.text!="s_cbranch_vccnz L_fallback"]
    if OPT.get("swap"):
        import re as _re
        for x in body_rem:
            if x.kind=="mfma" and any(x.name.startswith(p) for p in OPT["swap"].split("+")):
                m=_re.match(r"(\S+ [^,]+), ([^,]+), ([^,]+), (.*)",x.text); x.text=f"{m[1]}, {m[3]}, {m[2]}, {m[4]}"
        static=[x for x in static if x.text!="s_cbranch_vccnz L_fallback"]
    hdr=open("standalone__mha_softmax__near_ridge.s.ref").read().split("; Override launch")[0]
    txt=hdr+f"""; One workgroup (4 waves) per head.  K (scaled once by log2(e)/sqrt(D)) and V^T stay in AGPRs: wave w owns keys
; 128w..128w+127 for S^T = K.Q^T and output columns 32w..32w+31 for O^T = V^T.P^T (16x16x32 bf16 MFMA); P and the row sums
; are exchanged through LDS, one barrier per 32-row query tile.  The first tiles are processed key-chunk by key-chunk while
; K and V stream in.  Softmax shift: the fast path shifts every score by the constant 4 (log2 units, through the MFMA
; accumulator init); every row sum l is checked at run time (2^-4 <= l <= 2^48, inf/NaN included) and if any row leaves that
; range the whole head is recomputed with the true row max (L_fallback).  The P.V accumulators start from an offset of a few
; times the wave's smallest column magnitude of V, removed exactly in the normalisation FMA (fewer accumulator sign flips).
; @launch grid=(256,1,1) block=(256,1,1) lds={LDS_BYTES}
.amdgcn_target "amdgcn-amd-amdhsa--gfx950"
.text
.globl {NAME}
.p2align 8
.type {NAME},@function
{NAME}:
"""+emit(static)+f""".section .rodata,"a"
.p2align 6
.amdhsa_kernel {NAME}
  .amdhsa_next_free_vgpr 512
  .amdhsa_next_free_sgpr 102
  .amdhsa_accum_offset 256
  .amdhsa_group_segment_fixed_size 0
  .amdhsa_kernarg_size 48
  .amdhsa_user_sgpr_count 2
  .amdhsa_user_sgpr_kernarg_segment_ptr 1
  .amdhsa_system_sgpr_workgroup_id_x 1
.end_amdhsa_kernel
"""
    return txt

if __name__=="__main__":
    open(sys.argv[1],"w").write(build())
```

```python
import sys, struct, math
from core import *
from sched import *

NAME="standalone__mha_softmax__near_ridge_kernel"
NT=41
QBYTES=335872; KBYTES=131072
OPT=dict(D=4, st="sc0+sc1", ld="nt", stamp=0, wsplit=0, stag=3, ncopy=2)
for a in sys.argv[2:]:
    k,v=a.split("="); OPT[k]=int(v) if v.lstrip("-").isdigit() else v
D=OPT["D"]; NQ=7; T=OPT.get("T",5); LAG=OPT.get("lag",3); LAG0=OPT.get('lag0',3)
STF=(" "+OPT["st"].replace("+"," ")) if OPT["st"]!="none" else ""
LDF=(" "+OPT["ld"].replace("+"," ")) if OPT["ld"]!="none" else ""
QSLOT=8320; PB=[0,33280]; KBASE=PB[T%2]; QBASE=2*33280; QEND=QBASE+NQ*QSLOT; VBASE=QEND; LBASE=VBASE+32768; MBASE=LBASE+1024; LDS_BYTES=LBASE+4096
vQrd,vQrd0,vPw,vPr,vQdma,vOst,vLw,vLr=1,2,3,[None,4,5,6],7,8,9,10
vLmax,vLmin,vR0,vR1,vT=11,12,13,14,15
vLrd,vLacc,vSEL=16,20,[24,28]
vQ=lambda qb,ds:32+qb*16+ds*4
vS=lambda n:64+(n%8)*4
vP=lambda f:96+f*4
vRing=lambda s,k:128+(s%2)*16+k*4
vO=lambda st,qb,db:160+st*16+qb*8+db*4
vOut=lambda qb:192+qb*4
aK=lambda kb,ds:(kb*4+ds)*4
aV=lambda j,kp,db:128+((j*4+kp)*2+db)*4
sQ,sK,sV,sO=4,8,12,16
sW,sLoop,sQso,sQm0,sQrs,sO0,sO1,sT,sC=20,21,22,23,24,25,26,27,28
sWoff=30; sDbg=32
M0=('m0',0); VCC=('vcc',0); SCC=('scc',0)
CSCALE=struct.unpack("<I",struct.pack("<f",math.log2(math.e)/math.sqrt(128.0)))[0]
def bf16(x):
    u=struct.unpack("<I",struct.pack("<f",x))[0]; return (u+0x7fff+((u>>16)&1))>>16
CF=math.log2(math.e)/math.sqrt(128.0); CHI=bf16(CF); CLO=bf16(CF-struct.unpack("<f",struct.pack("<I",CHI<<16))[0])
HI=(127+48)<<23; RHI=(127+4)<<23

CI=OPT.get("cinit",-4); vCI=244; vC0=240; vN0,vN1=253,254; vRmax=12; OC=OPT.get("oc",1)
def qkm(d,a,b,first,name):
    if not first: return mfma(d,a,b,d,name=name)
    if CI not in(0,1,2,4,-1,-2,-4): return mfma(d,a,b,vCI,name=name)
    m=mfma(d,a,b,None,name=name)
    if CI: m.text=m.text[:-1]+f"{float(CI):.1f}"
    return m
def dsr128(dst,addr,off,file='v',name=None): return I(f"ds_read_b128 {rs(file,dst,4)}, v{addr} offset:{off}","dsr",V(addr),[(file,dst+i) for i in range(4)],name=name)
def dsw128(addr,src,off): return I(f"ds_write_b128 v{addr}, {rs('v',src,4)} offset:{off}","dsw",V(addr)+V(src,4),[],cost=20)
def dsw64(addr,src,off): return I(f"ds_write_b64 v{addr}, {rs('v',src,2)} offset:{off}","dsw",V(addr)+V(src,2),[],cost=12)
def dsw32(addr,src,off): return I(f"ds_write_b32 v{addr}, v{src} offset:{off}","dsw",V(addr)+V(src),[],cost=8)
def dma(voff,srd,soff,off,flag=LDF): return I(f"buffer_load_dwordx4 v{voff}, s[{srd}:{srd+3}], s{soff} offen offset:{off}{flag} lds","dma",V(voff)+S(srd,4)+S(soff)+[M0],[])
def vld(dst,voff,srd,soff,off,flag=LDF): return I(f"buffer_load_dwordx4 {rs('v',dst,4)}, v{voff}, s[{srd}:{srd+3}], s{soff} offen offset:{off}{flag}","vld",V(voff)+S(srd,4)+S(soff),V(dst,4))
def vst(src,voff,srd,soff,flag=STF): return I(f"buffer_store_dwordx4 {rs('v',src,4)}, v{voff}, s[{srd}:{srd+3}], s{soff} offen{flag}","vst",V(src,4)+V(voff)+S(srd,4)+S(soff),[],meta={"data":V(src,4)})
def vexp(r): return valu(f"v_exp_f32 v{r}, v{r}",V(r),V(r),"trans")
def vcvt(d,a,b): return valu(f"v_cvt_pk_bf16_f32 v{d}, v{a}, v{b}",V(a)+V(b),V(d))
def vcvtp(d,a,b):
    if OPT.get("trunc"): return valu(f"v_perm_b32 v{d}, v{b}, v{a}, s74",V(a)+V(b)+S(74),V(d))
    return vcvt(d,a,b)
def v2(op,d,a,b): return valu(f"{op} v{d}, v{a}, v{b}",V(a)+V(b),V(d))
def bar(**m): return I("s_barrier","bar",meta=m)
def label(t): return I(t,"label")
def comment(t): return I(t,"comment")

def chain_info(n):
    f=(n//2+1)%8; h=n%2
    return f,h,2*(f//2)+h,f%2
def s_block(f,h):
    return (2*((f-1)%8)+h)

class Bld:
    def __init__(s): s.bb=[]; s.ops=[]; s.sops=[]; s.mdeps={}; s.slots=set(); s.tail=[]
    def group(s,g):
        p=len(s.bb); s.bb+=g; s.slots.add(len(s.bb)-1); return p
    def add(s,ins,prio,deps=(),earliest=0,name=None):
        o=Op(ins,prio,deps,earliest,name); s.ops.append(o); return o
    def adds(s,ins,prio,deps=(),name=None,earliest=0):
        o=Op(ins,prio,deps,earliest,name); s.sops.append(o); return o
    def need(s,idx,o): s.mdeps.setdefault(max(idx,0),[]).append(o)
    def barrier(s,gap,deps,keep=False,**meta):
        if keep and gap in s.slots: gap-=1; o=s.adds(bar(**meta),-1,deps,name="BAR",earliest=gap); s.slots.add(gap-1); return o
        o=s.adds(bar(**meta),-1,deps,name="BAR",earliest=max(gap,0)); s.slots.discard(gap); s.slots.add(gap-1); return o
    def run(s,prefix,log=None,overdue=None): return schedule(s.bb,s.ops,s.sops,s.mdeps,prefix,s.slots,s.tail,log,overdue,fill=OPT.get('fill',1),veto=(OPT.get('veto',8) if overdue is None else OPT.get('sveto',0)),vdist=tuple(int(c) for c in str(OPT.get('vd',1234) if overdue is None else OPT.get('svd',1))))

def qdma_ops(b,t0,deps,tag=None,scc=()):
    m=b.adds(salu(f"s_mov_b32 m0, s{sQm0}",S(sQm0),[M0]),t0-2,deps,name="m0")
    QF=(" "+OPT["lq"].replace("+"," ") if OPT["lq"]!="none" else "") if "lq" in OPT else LDF
    d0=b.add(dma(vQdma,sQ,sQso,0,QF),t0,[m],name="DMA0"); d1=b.add(dma(vQdma,sQ,sQso,1024,QF),t0+4,[d0],name="DMA1")
    d0.ins.cost=d1.ins.cost=OPT.get("dmac",8); d0.ins.tag=d1.ins.tag=tag
    if OPT.get("dpe"): d0.earliest=int(t0); d1.earliest=int(t0+OPT["dpe"])
    b1=b.adds(salu(f"s_add_u32 s{sQm0}, s{sQm0}, {QSLOT}",S(sQm0),S(sQm0)+[SCC]),t0+10,[m]+list(scc),name="qm+")
    b2=b.adds(salu(f"s_cmp_eq_u32 s{sQm0}, s{sT}",S(sQm0)+S(sT),[SCC]),t0+11,[b1],name="qm?")
    b3=b.adds(salu(f"s_cselect_b32 s{sQm0}, s{sWoff}, s{sQm0}",S(sQm0)+S(sWoff)+[SCC],S(sQm0)),t0+12,[b2],name="qm=")
    b4=b.adds(salu(f"s_add_u32 s{sQso}, s{sQso}, 8192",S(sQso),S(sQso)+[SCC]),t0+14,[d1,b3],name="qso+")
    return d1,b4

def epilogue_ops(b,Ob,loff,t0,tm,dt,ldeps,odeps,prev,scc,sc=1.0,tg="",OC=OC):
    lr=b.add(dsr128(vLrd,vLr,loff),t0,list(ldeps)+prev.get("L",[]),name="LR"+tg)
    a=b.add(v2("v_add_f32",vLrd,vLrd,vLrd+1),t0+11*sc,[lr],name="La")
    bb_=b.add(v2("v_add_f32",vLrd+2,vLrd+2,vLrd+3),t0+11.5*sc,[lr],name="Lb")
    c=b.add(v2("v_add_f32",vLrd,vLrd,vLrd+2),t0+12*sc,[a,bb_],name="Lc")
    rc=b.add(valu(f"v_rcp_f32 v{vR0}, v{vLrd}",V(vLrd),V(vR0),"trans"),t0+13*sc,[c]+prev.get("M",[]),name="RCP")
    x1=b.add(v2("v_max_u32",vRmax,vRmax,vR0),t0+14.5*sc,[rc],name="chkr"); x2=b.add(v2("v_max_u32",vLmax,vLmax,vLrd),t0+30*sc,[c],name="chkl")
    mv=b.add(valu(f"v_mov_b32 v{vR1}, v{vR0}",V(vR0),V(vR1)),t0+14*sc,[rc],name="MOV")
    sw=b.add(valu(f"v_permlane32_swap_b32 v{vR0}, v{vR1}",V(vR0)+V(vR1),V(vR0)+V(vR1),"perm"),t0+15*sc,[mv,x1],name="SWP")
    t=tm; sts=[]; muls=[]
    if OC==1:
        nc=[b.add(valu(f"v_mul_f32 v{N}, -v{vC0}, v{R}",V(vC0)+V(R),V(N)),t0+(16+x)*sc,[sw],name="nC") for x,(N,R) in enumerate(((vN0,vR0),(vN1,vR1)))]
    def scale_op(r,qb):
        R=vR0 if qb==0 else vR1; N=vN0 if qb==0 else vN1
        if OC==2: return valu(f"v_fma_f32 v{r}, v{r}, v{R}, -v{R}",V(r)+V(R),V(r)),[sw]
        if OC: return valu(f"v_fma_f32 v{r}, v{r}, v{R}, v{N}",V(r)+V(R)+V(N),V(r)),[nc[qb]]
        return v2("v_mul_f32",r,r,R),[sw]
    if OPT.get("pa") and not tg and odeps is None:
        b.ops.remove(mv); b.ops.remove(sw)
        rw=b.add(dsw32(vLw,vR0,3072),t0+14*sc,[rc],name="RW")
        rr=[b.add(dsr128(248+4*(qb),vLr,3072+16*qb),t0+16*sc+qb,[rw],name="RR") for qb in range(2)]
        for qb in range(2):
            for r in range(4):
                m0_=b.add(v2("v_mul_f32",Ob(qb,0)+r,Ob(qb,0)+r,248+4*qb+r),t,[rr[qb]],name=f"M"); t+=dt
                m1_=b.add(v2("v_mul_f32",Ob(qb,1)+r,Ob(qb,1)+r,248+4*qb+r),t,[rr[qb]],name=f"M"); t+=dt
                cv=b.add(vcvt(vOut(qb)+r,Ob(qb,0)+r,Ob(qb,1)+r),t,[m0_,m1_],name="OC"); t+=dt
                st_=b.add(I(f"buffer_store_dword v{vOut(qb)+r}, v0, s[{sO}:{sO+3}], s{sO0 if qb==0 else sO1} offen offset:{r*256}{STF}","vst",V(vOut(qb)+r)+V(0)+S(sO,4)+S(sO0 if qb==0 else sO1),[],cost=8),t,[cv],name="ST")
                if r==3: sts.append(st_)
    for qb in range(2 if not sts else 0):
        cv=[]
        for db in range(2):
            od=[odeps[(qb,db)]] if odeps else []
            for p2 in range(2):
                r=Ob(qb,db)+2*p2; R=vR0 if qb==0 else vR1
                x,dp=scale_op(r,qb); m0_=b.add(x,t,dp+od,name=f"M{qb}{db}{2*p2}"); t+=dt
                x,dp=scale_op(r+1,qb); m1_=b.add(x,t,dp+od,name=f"M{qb}{db}{2*p2+1}"); t+=dt
                muls+=[m0_,m1_]
                cv.append(b.add(vcvt(vOut(qb)+2*db+p2,r,r+1),t,[m0_,m1_]+prev.get("S",[]),name=f"OC{qb}{db}{p2}")); t+=dt
        fl=STF if not (tg.startswith("t") and "st0" in OPT) else ("" if OPT["st0"]=="none" else " "+OPT["st0"].replace("+"," "))
        sts.append(b.add(vst(vOut(qb),vOst,sO,sO0 if qb==0 else sO1,fl),t,cv+prev.get("A",[]),name=f"ST{qb}"+tg)); sts[-1].ins.cost=OPT.get("stc",8); sts[-1].mingap=OPT.get("stg",3)
    e1=b.adds(salu(f"s_add_u32 s{sO0}, s{sO0}, 8192",S(sO0),S(sO0)+[SCC]),t+1,[sts[0]]+list(scc),name="o0+")
    e2=b.adds(salu(f"s_add_u32 s{sO1}, s{sO1}, 8192",S(sO1),S(sO1)+[SCC]),t+2,[sts[1],e1],name="o1+")
    return {"L":[rc,x1,x2],"M":muls,"S":sts,"A":[e2]}

def iter_parts(b, i, par, cur, nxt, pv, ep, dodma, last_bar=True, loopctl=None, baroff=0, Ncustom=None, ctx=None):
    ctx=ctx or {}
    base=len(b.bb)
    def qk(n):
        f,h,kb,qb=chain_info(n)
        return [qkm(vS(n),aK(kb,ds),vQ(qb,ds),ds==0,f"QK{n}.{ds}") for ds in range(4)]
    so=1-par
    def pvo(qb,db): return [mfma(vO(so,qb,db),aV(0,kp,db),vP(2*kp+qb),(vC0 if OC==1 else None) if kp==0 else vO(so,qb,db),name=f"PVo{qb}{db}.{kp}") for kp in range(4)]
    def one(qb): return [mfma(vLacc,vSEL[qb],vP(2*kp+qb),None if (kp==0 and qb==0) else vLacc,afile='v',name=f"ONE{qb}.{kp}") for kp in range(4)]
    sets=[(1,0),(1,1),(2,0),(2,1),(3,0),(3,1)]
    def pvx(s,db):
        j,qb=sets[s]
        return [mfma(vO(so,qb,db),aV(j,kp,db),vRing(s,kp),vO(so,qb,db),name=f"PVx{s}{db}.{kp}") for kp in range(4)]
    N=[("pvo",0,0),("pvo",0,1),("one",0),("pvo",1,0),("pvo",1,1),("one",1)]+[("pvx",s,db) for s in range(6) for db in range(2)]
    if Ncustom: N=[("cus",x) for x in range(18)]
    order=[N[0],N[1]]
    for n in range(16): order+=[("qk",n),N[n+2]]
    if ctx.get("eager"): order[-3],order[-2]=order[-2],order[-3]
    fk=OPT.get("fake",0) if (cur and nxt and pv and ep and not Ncustom) else 0
    if fk:
        order=[]; n=0; x=0
        while x<18 or n<16:
            order+=N[x:x+fk]; x+=fk
            order+=[("qk",m) for m in range(n,min(n+fk,16))]; n+=fk
    G={}; pos={}
    for key in order:
        if key[0]=="qk":
            n=key[1]
            if n>=14 and not nxt and cur and ctx.get("eager"):
                key=("eone",n-14); g=[mfma(vLacc,vSEL[n-14],vP(2*kp+n-14),None if (kp==0 and n==14) else vLacc,afile='v',name=f"eONE{n-14}.{kp}") for kp in range(4)]
            elif not (nxt if n>=14 else cur): continue
            else: g=qk(n)
        elif key[0]=="cus":
            g=Ncustom(key[1])
            if not g: continue
        else:
            if not pv: continue
            g={"pvo":pvo,"one":one,"pvx":pvx}[key[0]](*key[1:])
        if fk and key[0]!="qk" and OPT.get("fakeacc",1):
            d=vO(so,0,0)+4*((N.index(key)//fk)%4)
            for m in g:
                t=m.text.split(", "); t[0]=t[0].split(" ")[0]+f" v[{d}:{d+3}]"; t[3]=f"v[{d}:{d+3}]"; m.text=", ".join(t)
        G[key]=g; pos[key]=b.group(g)
        if key[0]=="cus": ctx["placed"](key[1],pos[key])
    if OPT.get("samea") and cur and nxt and pv and ep and not Ncustom:
        def ilv(g0,g1,fixb):
            t0=[m.text for m in g0]; t1=[m.text for m in g1]
            for x in range(4):
                a=t0[x].split(", "); c=t1[x].split(", "); c[1]=a[1]
                if fixb: c[2]=fixb(c[2])
                t1[x]=", ".join(c)
            seq=[t0[0],t1[0],t0[1],t1[1],t0[2],t1[2],t0[3],t1[3]]
            for m,t in zip(g0+g1,seq): m.text=t
        def otherq(r):
            n=int(r[2:r.index(":")]); n=32+(n-32+16)%32; return f"v[{n}:{n+3}]"
        if "q" in OPT["samea"]:
            for n in range(0,16,2): ilv(G[("qk",n)],G[("qk",n+1)],otherq)
        if "p" in OPT["samea"]:
            def otherr(r):
                n=int(r[2:r.index(":")]); n=(128+(n-128+16)%32) if n>=128 else n^4; return f"v[{n}:{n+3}]"
            for s_ in range(6): ilv(G[("pvx",s_,0)],G[("pvx",s_,1)],otherr)
            for q_ in range(2): ilv(G[("pvo",q_,0)],G[("pvo",q_,1)],otherr)
    nb=len(b.bb)-base
    nom={}; p=0
    for key in order: nom[key]=p; p+=4
    scale=(nb/136.0) if nb else 0
    import bisect
    alias={("qk",14):("eone",0),("qk",15):("eone",1)}
    pts=sorted((nom[k],pos[k if k in pos else alias[k]]) for k in nom if (k in pos or alias.get(k) in pos))
    def P(t):
        j=max(bisect.bisect_right(pts,(t,1<<30))-1,0)
        n0,a0=pts[j]; a1=pts[j+1][1] if j+1<len(pts) else 1<<30
        return min(a0+(t-n0),a1+(t-n0)*1e-3) if t>=n0 else a0+(t-n0)
    def add(ins,prio,deps=(),earliest=0,name=None):
        o=b.add(ins,P(prio),deps,int(P(earliest)) if earliest else base,name); o.nomp=prio; return o
    def adds(ins,prio,deps=(),name=None,earliest=0): return b.adds(ins,P(prio),deps,name,int(P(earliest)) if earliest else base)
    def need(key,k,o): b.need(pos[key]+k,o)
    rel=lambda o:o.nomp
    must_bar=list(ctx.get("must_bar",[]))
    scc=list(ctx.get("scc",[]))
    E={}
    for n in list(range(16))+[-1]:
        if n==15: continue
        if n==-1:
            if not cur: continue
            blk=vS(15); dep=ctx.get("c15",[]); t0=0
        else:
            if ("qk",n) not in G: continue
            blk=vS(n); dep=[G[("qk",n)][3]]; t0=nom[("qk",n)]+6
        for r in range(4):
            E[(n,r)]=add(vexp(blk+r),t0+2*r,dep,name=f"E{n}.{r}")
            if n>=0: E[(n,r)].prio=pos[("qk",n)]+OPT.get("eo",4)+OPT.get("es",2)*r
    if cur:
        for f in range(8):
            qb=f%2; kp=f//2
            war=[G[k][kp] for k in (("pvo",qb,0),("pvo",qb,1),("one",qb)) if k in G]+ctx.get("pwar",{}).get(f,[])
            C=[]
            for h in range(2):
                n=s_block(f,h)
                en = -1 if n==15 else n
                for p2 in range(2):
                    deps=list(war)
                    if f==0 and h==0: t=1+p2; deps+=ctx.get("e14",[])
                    else:
                        deps+=[E[(en,2*p2)],E[(en,2*p2+1)]]; t=rel(E[(en,2*p2+1)])+1
                    c=add(vcvtp(vP(f)+2*h+p2,vS(n)+2*p2,vS(n)+2*p2+1),t,deps,name=f"C{f}.{2*h+p2}")
                    if not (f==0 and h==0): c.prio=E[(en,2*p2+1)].prio+1
                    C.append(c)
                    if ("eone",qb) in G: need(("eone",qb),kp,c)
                    nn=(n+8)%16
                    if ("qk",nn) in G and (n>=14 or n<8): need(("qk",nn),0,c)
            off=PB[par]+f*1024
            if str(f) in str(OPT.get("w32","")).replace("f",""):
                for x in range(4):
                    w=add(dsw32(vPw,vP(f)+x,off+4*x),rel(C[x])+1,[C[x]]+ctx.get("wdep",[]),name=f"W{f}.{x}"); must_bar.append(w)
            elif str(f) in str(OPT.get("w64","")).replace("f",""):
                for x in range(2):
                    w=add(dsw64(vPw,vP(f)+2*x,off+8*x),rel(C[2*x+1])+1,C[2*x:2*x+2]+ctx.get("wdep",[]),name=f"W{f}.{x}"); must_bar.append(w)
            else:
                w=add(dsw128(vPw,vP(f),off),rel(C[3])+1,C+ctx.get("wdep",[]),name=f"W{f}"); must_bar.append(w); w.prio=C[3].prio+1
        for n,ds_ in ctx.get("swar",{}).items():
            for o in ds_: need(("qk",n),0,o)
    if pv:
        for s,(j,qb) in enumerate(sets):
            for k in range(4):
                deps=[G[("pvx",s-2,1)][k]] if s>=2 else []
                t=nom[("pvx",s,0)]-OPT.get("rl",18)+k if s>=2 else s*OPT.get("r0",4)+k
                o=add(dsr128(vRing(s,k),vPr[j],PB[so]+(2*k+qb)*1024),t,deps,name=f"R{s}.{k}")
                need(("pvx",s,0),-1,o); must_bar.append(o)
        lw=add(dsw32(vLw,vLacc,so*512),nom[("one",1)]+8,[G[("one",1)][3]],name="LW"); must_bar.append(lw)
        if ("eone",0) in G:
            need(("eone",0),0,lw)
            must_bar.append(add(dsw32(vLw,vLacc,par*512),0,[G[("eone",1)][3]],name="eLW"))
    if nxt:
        a1=adds(salu(f"s_add_u32 s{sQrs}, s{sQrs}, {QSLOT}",S(sQrs),S(sQrs)+[SCC]),40,scc,name="qr+")
        a2=adds(salu(f"s_cmp_eq_u32 s{sQrs}, {QEND}",S(sQrs),[SCC]),41,[a1],name="qr?")
        a3=adds(salu(f"s_cselect_b32 s{sQrs}, {QBASE}, s{sQrs}",S(sQrs)+[SCC],S(sQrs)),42,[a2],name="qr=")
        scc=[a3]
        upd=add(valu(f"v_add_u32 v{vQrd}, s{sQrs}, v{vQrd0}",S(sQrs)+V(vQrd0),V(vQrd)),80,[a3]+ctx.get("rqprev",[]),name="qupd")
        for qb in range(2):
            lastn=11 if qb==0 else 13
            for ds in range(4):
                deps=[upd]+([G[("qk",lastn)][ds]] if ("qk",lastn) in G else [])+ctx.get("rqdep",[])
                o=add(dsr128(vQ(qb,ds),vQrd,qb*4160+ds*256),nom[("qk",lastn)]+1+ds,deps,name=f"RQ{qb}.{ds}")
                if qb==0: need(("qk",14),-1,o)
    if dodma:
        d1,b4=qdma_ops(b,P(ctx.get("dmaprio",OPT.get("dp",70))),ctx.get("dmadep",[]),scc=scc); scc=[b4]
    if ep:
        e=epilogue_ops(b,lambda qb,db:vO(par,qb,db),par*512,P(-1),P(OPT.get("ept",24)),OPT.get("epdt10",30)/10*scale,[],None,{},scc,sc=scale); scc=e["A"]
    if "late" in ctx: scc=ctx["late"](scc,must_bar)
    if loopctl:
        LP=112 if OPT.get("rot") else 128
        if "rw2" in OPT:
            w1=adds(salu(f"s_cmp_eq_u32 s{sLoop}, {OPT['rw2']}",S(sLoop),[SCC]),124,scc,name="rw?",earliest=124)
            w2=adds(salu(f"s_cbranch_scc1 {loopctl}_rw\n{loopctl}_rwb:",[SCC],[]),125,[w1],name="rwb",earliest=125); scc=[w2]
        c1=adds(salu(f"s_sub_u32 s{sLoop}, s{sLoop}, 1",S(sLoop),S(sLoop)+[SCC]),LP,scc,name="lp-",earliest=LP)
        c2=adds(salu(f"s_cmp_lg_u32 s{sLoop}, 0",S(sLoop),[SCC]),LP+1,[c1],name="lp?",earliest=LP+1)
        b.tail=[I(f"s_cbranch_scc1 {loopctl}","branch",[SCC])]
    b.slots.discard(base+nb-1)
    if last_bar: b.barrier(base+nb-1-baroff,must_bar,keep_dma=2*(D-2),all_ds=1)

def iteration(i, par, cur, nxt, pv, ep, dodma, prefix, log=None, **kw):
    b=Bld(); iter_parts(b,i,par,cur,nxt,pv,ep,dodma,**kw); return b.run(prefix,log)

def drain(i,prefix,log):
    b=Bld(); so=(i-1)%2; par=i%2
    ring=[128,144,64,80,32,48]; last={}
    for qb in range(2):
        for j in range(4):
            s_=qb*3+j-1
            for db in range(2):
                d=vO(so,qb,db)
                g=[mfma(d,aV(j,kp,db),vP(2*kp+qb) if j==0 else ring[s_]+4*kp,(vC0 if OC==1 else None) if (j==0 and kp==0) else d,name=f"PV{qb}{j}{db}.{kp}") for kp in range(4)]
                p=b.group(g); last[(qb,db)]=g[3]
                if j and db==0:
                    for k in range(4): b.need(p-1,b.add(dsr128(ring[s_]+4*k,vPr[j],PB[so]+(2*k+qb)*1024),s_*2+k/2,name=f"R{s_}.{k}"))
    e=epilogue_ops(b,lambda qb,db:vO(par,qb,db),par*512,-1,10,0.7,[],None,{},[],sc=0.5)
    epilogue_ops(b,lambda qb,db:vO(so,qb,db),so*512,20,34,0.7,[],last,e,e["A"],sc=0.3,tg="z")
    return b.run(prefix,log)

vOs=[80,112][:T-LAG-1]+[vO(T%2,0,0)]+[200,216,232][:LAG-1]+[vO(1-T%2,0,0)]
vLs=lambda t:248+t
sKo=64
sVm=72
vKA,vVA,vTB,vTD=255,0,192,15
def kdma_units(c):
    u=[]
    for pr in range(4):
        for n in range(2):
            d=dma(vQdma,sK,45,n*1024); d.tag=f"K{c}"
            u.append(([salu(f"s_add_u32 m0, s54, {(pr//2)*4160+(pr%2)*2080}",S(54),[M0,SCC]), salu(f"s_add_u32 s45, s44, {c*8192+pr*2048}",S(44),S(45)+[SCC])] if n==0 else [])+[d])
    return u
def qdma_units(t):
    d0=dma(vQdma,sQ,46,0); d1=dma(vQdma,sQ,46,1024); d0.tag=d1.tag=f"Q{t}"
    return [[salu(f"s_add_u32 m0, s{sWoff}, {(t%NQ)*QSLOT}",S(sWoff),[M0,SCC]),salu(f"s_mov_b32 s46, {t*8192}",[],S(46)),d0],[d1]]
V3=OPT.get("v3",1) and T<=5
XB=QBASE+5*QSLOT
vbuf=lambda h:([VBASE,VBASE+16384,XB][h%3] if V3 else VBASE+(h%2)*16384)
def vdma_half(h):
    u=[]
    for n in range(4):
        d=dma(vVA,sV,sKo+h,n*1024); d.tag=f"V{h//2}"
        u.append(([salu(f"s_add_u32 m0, s{sVm}, {vbuf(h)}",S(sVm),[M0,SCC])] if n==0 else [])+[d])
    return u
def vdma_units(c): return vdma_half(2*c)+vdma_half(2*c+1)
flat=lambda u:[x for y in u for x in y]
STREAM=kdma_units(0)+qdma_units(0)+qdma_units(1)+qdma_units(2)+vdma_units(0)+flat([qdma_units(t) for t in range(3,T)])+kdma_units(1)+(vdma_half(2) if V3 else [])
NPRO=OPT.get("npro",20)
def kread(c):
    o=[dsr128(aK(2*c+h,ds),vKA,h*4160+ds*256,file='a') for h in range(2) for ds in range(4)]
    for x in o: x.meta["tags"]={f"K{c}"}
    return o
aSC=lambda lo,half:aV(lo,3,half)
vKT=[192,196,vLrd]
def rewarm(lbl): return [raw(f"s_mov_b32 s55, {lbl}-L_pc"), I("buffer_load_dword v253, v254, s[56:59], s55 offen","vld",V(254),V(253))]
def vscale():
    o=[]; t=232; m=[236,237]; u=238
    for db in range(2):
        a=aV(0,0,db)
        o+=[vop(f"v_accvgpr_read_b32 v{t+r}, a{a+r}",A(a+r),V(t+r)) for r in range(4)]
        o+=[vop(f"v_max3_f32 v{m[db]}, |v{t}|, |v{t+1}|, |v{t+2}|",V(t,3),V(m[db])), vop(f"v_max_f32 v{m[db]}, v{m[db]}, |v{t+3}|",V(m[db])+V(t+3),V(m[db]))]
        for w_ in(32,16):
            o+=[vop(f"v_mov_b32 v{u}, v{m[db]}",V(m[db]),V(u)), valu(f"v_permlane{w_}_swap_b32 v{m[db]}, v{u}",V(m[db])+V(u),V(m[db])+V(u),"perm"), v2("v_max_f32",m[db],m[db],u)]
    o.append(v2("v_min_f32",u,m[0],m[1]))
    for r in(8,4,2,1):
        x=vop(f"v_min_f32_dpp v{u}, v{u}, v{u} row_ror:{r} row_mask:0xf bank_mask:0xf",V(u),V(u)); x.meta["dpp"]=1; o.append(x)
    o+=[vop(f"v_min_f32 v{u}, {(127+60)<<23:#x}, v{u}",V(u),V(u)), vop(f"v_and_b32 v{u}, 0x7f800000, v{u}",V(u),V(u))]
    o+=[vop(f"v_add_u32 v{vC0+r}, {(OPT.get('oce',2)<<23)+0x400000:#x}, v{u}",V(u),V(vC0+r)) for r in range(4)]
    return o
def touch_ins(): return I(f"buffer_load_dword v253, v254, s[{sO}:{sO+3}], 0 offen nt","vld",V(254)+S(sO,4),V(253))
def ksops(c,j):
    a=aK(2*c+j//8,(j//2)%4)+2*(j%2); d=vKT[j%3]
    return [vcvt(d,d,d+1),vcvt(d+1,d+2,d+3)]+[vop(f"v_accvgpr_write_b32 a{a+x}, v{d+x}",V(d+x),A(a+x)) for x in range(2)]
def kscale(c,extra=None):
    o=[]
    for j in range(16):
        a=aK(2*c+j//8,(j//2)%4); d=vKT[j%3]; x=ksops(c,j-2) if j>=2 else [nop(2),None,nop(2),None]
        if j%2==0: o.append(waitslot())
        o+=[mfma(d,aSC(0,j%2),a,None,bfile='a',name="KSh")]+(extra(j) if extra else [])+x[:2]+[mfma(d,aSC(1,j%2),a,d,bfile='a',name="KSl")]+x[2:]
    return [i for i in o if i is not None]
def startup(prefix,log,off=0):
    b=Bld(); NS=4*T
    Sb=lambda n:64+(n%4)*4
    OWN=OPT.get("own",1) and T-LAG<=2
    Pw=lambda k,qb:96+((k%(4 if OWN else 2))*2+qb)*4
    ownk=lambda k:OWN and k<NS-OPT.get("ownskip",2)
    ent=lambda k,qb:PB[T%2 if (LAG>3 and 3*T<=k<NS-LAG) else 1-T%2]+((k%4)*2+qb)*1024
    assert LAG<=3 or all(k%4 for k in range(3*T,NS-LAG))
    pvstep=lambda k:k+(LAG0 if k<3*T else LAG)
    pvof={pvstep(k):k for k in range(NS)}
    QK={}; PV={}; ONE={}; start={}; end={}; posQ={}; posP={}; posO={}
    def pvg(k,qb,db):
        c,t=divmod(k,T); d=vOs[t]+qb*8+db*4
        return [mfma(d,aV(j,c,db),Pw(k,qb) if (ownk(k) and j==0) else vRing(2*k+qb,j),(vC0 if (OC==1 and t==T-1) else None) if (c==0 and j==0) else d,name=f"PV{k}.{qb}{db}.{j}") for j in range(4)]
    def oneg(k): return [mfma(vLacc,vSEL[0],Pw(k,0),None,afile='v',name=f"ONE{k}.0"),mfma(vLacc,vSEL[1],Pw(k,1),vLacc,afile='v',name=f"ONE{k}.1")]
    for k in range(NS):
        c,t=divmod(k,T)
        start[k]=len(b.bb)
        for ch in range(4):
            kb=2*c+ch%2; qb=ch//2; n=4*k+ch
            QK[(k,ch)]=[qkm(Sb(n),aK(kb,ds),vQ(qb,ds),ds==0,f"QK{k}.{ch}.{ds}") for ds in range(4)]
            posQ[(k,ch)]=b.group(QK[(k,ch)])
            if k in pvof:
                key=(pvof[k],ch//2,ch%2); PV[key]=pvg(*key); posP[key]=b.group(PV[key])
            if ch==2 and k>=1: ONE[k-1]=oneg(k-1); posO[k-1]=b.group(ONE[k-1])
        if k==NS-1:
            for n in(14,15):
                f,h,kb,qb=chain_info(n)
                QK[("pre",n)]=[qkm(vS(n),aK(kb,ds),vQ(qb,ds),ds==0,f"QKp{n}.{ds}") for ds in range(4)]
                posQ[("pre",n)]=b.group(QK[("pre",n)])
        end[k]=len(b.bb)-1
    cus={}
    x=0
    for k in range(NS-LAG,NS):
        for qb in range(2):
            for db in range(2):
                PV[(k,qb,db)]=pvg(k,qb,db); cus[x]=("pv",(k,qb,db)); x+=1
                if x==3: ONE[NS-1]=oneg(NS-1); cus[x]=("one",NS-1); x+=1
    nskip=18-len(cus); hi=OPT.get("skiphi",14)
    skip=set(hi-2*j for j in range(nskip)); slots_=[y for y in range(18) if y not in skip]
    cus={slots_[y]:v for y,v in cus.items()}
    def Ncustom(x):
        if x not in cus: return None
        return PV[cus[x][1]] if cus[x][0]=="pv" else ONE[cus[x][1]]
    def placed(x,p):
        (posP if cus[x][0]=="pv" else posO)[cus[x][1]]=p
    BAR={}; W={}; C={}; LA={}; LW={}; RQ={}; TR={}; E={}
    bdeps={k:[] for k in range(NS)}; btags={k:set() for k in range(NS)}; bneed={k:[] for k in range(NS)}
    for k in range(NS): BAR[k]=b.barrier(end[k]-off,[],tags=btags[k],need=set())
    def bneeds(k,o): BAR[k].deps.append(o); BAR[k].ins.meta["need"].add(id(o.ins))
    for k in range(1,NS): BAR[k].deps.append(BAR[k-1])
    state={"scc":[],"dma":[],"ep":{}}
    def softmax(k):
        c,t=divmod(k,T)
        for ch in range(4):
            n=4*k+ch; qb=ch//2; h=ch%2
            for r in range(4): E[(k,ch,r)]=b.add(vexp(Sb(n)+r),posQ[(k,ch)]+6+2*r,[QK[(k,ch)][3]],name=f"E{k}.{ch}.{r}")
            for p2 in range(2):
                deps=[E[(k,ch,2*p2)],E[(k,ch,2*p2+1)]]
                if OWN:
                    if k>=4: deps+=[ONE[k-4][qb],W[(k-4,qb)],PV[(k-4,qb,0)][0],PV[(k-4,qb,1)][0]]
                elif k>=2: deps+=[ONE[k-2][qb],W[(k-2,qb)]]
                o=b.add(vcvtp(Pw(k,qb)+2*h+p2,Sb(n)+2*p2,Sb(n)+2*p2+1),E[(k,ch,2*p2+1)].prio+1,deps,name=f"C{k}.{ch}.{p2}")
                C[(k,ch,p2)]=o
                if k+1<NS: b.need(posQ[(k+1,ch)],o)
            if h==1:
                W[(k,qb)]=b.add(dsw128(vPw,Pw(k,qb),ent(k,qb)),C[(k,ch,1)].prio+1,[C[(k,cc,pp)] for cc in(ch-1,ch) for pp in range(2)]+([BAR[pvstep(k-4)]] if (k>=4 and pvstep(k-4)<k and ent(k,0)==ent(k-4,0)) else [])+([BAR[k-3]] if k>NS-LAG else []),name=f"W{k}.{qb}")
                if k+1<NS: bneeds(k+1,W[(k,qb)])
    for k in range(NS): softmax(k)
    def one_ops(k):
        c,t=divmod(k,T)
        for cc in range(4):
            for pp in range(2): b.need(posO[k],C[(k,cc,pp)])
        if k>=1: b.need(posO[k],LA[k-1])
        ins=valu(f"v_mov_b32 v{vLs(t)}, v{vLacc}",V(vLacc),V(vLs(t))) if c==0 else v2("v_add_f32",vLs(t),vLs(t),vLacc)
        LA[k]=b.add(ins,posO[k]+6,[ONE[k][1]],name=f"LA{k}")
        if c==3:
            LW[t]=b.add(dsw32(vLw,vLs(t),((T-1)%2)*512 if t==T-1 else 1024+t*512),posO[k]+8,[LA[k]],name=f"LW{t}")
            if k+1<NS: bneeds(k+1,LW[t])
    for k in range(NS-1): one_ops(k)
    def preads(k):
        for qb in range(2):
            for j in range(1 if ownk(k) else 0,4):
                deps=[BAR[k+1]]+([PV[(k-1,qb,1)][j]] if k>=1 else [])
                o=b.add(dsr128(vRing(2*k+qb,j),vPw if j==0 else vPr[j],ent(k,qb)),posP[(k,qb,0)]-OPT.get('rlead',12)+j,deps,name=f"R{k}.{qb}.{j}")
                b.need(posP[(k,qb,0)]-1,o); state.setdefault("R",[]).append(o)
    for k in range(NS-LAG): preads(k)
    for k in range(NS+1):
        t=k%T if k<NS else T%NQ
        for qb in range(2):
            for ds in range(4):
                deps=[QK[(k-1,2*qb+1)][ds]] if k>=1 else []
                if 2<=k<T: deps.append(BAR[k-2]); btags[k-2].add(f"Q{k}")
                if k==NS: deps.append(BAR[NS-2]); btags[NS-2].add(f"Q{T}")
                pr=(posQ[(k-1,2*qb+1)]+1+ds) if k>=1 else 14+4*qb+ds
                o=b.add(dsr128(vQ(qb,ds),vQrd,t*QSLOT+qb*4160+ds*256),pr,deps,name=f"RQ{k}.{qb}.{ds}"); RQ[(k,qb,ds)]=o
                if k<NS: b.need(posQ[(k,2*qb)]-1,o)
                elif qb==0: b.need(posQ[("pre",14)]-1,o)
    btags[NS-1].add(f"Q{T+1}")
    state["chain"]=[]; hard={0,1}
    def issue(units,where,deps,nm):
        for u,(k,fr) in zip(units,where):
            tt=int(start[k]+fr*(end[k]-start[k])); prev=list(deps)+state["chain"]+state["scc"]
            cap=OPT.get("cap0") if nm=="D" else OPT.get("cap1")
            if cap: u=[wait(vm=cap)]+list(u)
            nd=[x.kind for x in u].index("dma")
            for x,ins in enumerate(u):
                if ins.kind in("salu","wait"): o=b.adds(ins,tt+x-nd-3,prev,name="s"+nm,earliest=tt+x-nd-3 if x<nd else 0)
                else: o=b.add(ins,tt,prev,earliest=tt,name=nm); ins.cost=OPT.get("sdmac",8)
                prev=[o]
            state["chain"]=prev; state["scc"]=prev
            if k in hard: BAR[k].deps.append(prev[0])
    def spread(n,k0,per):
        w=[]; k=k0
        while len(w)<n:
            m=min(per,n-len(w)); w+=[(k,(x+0.5)/per) for x in range(m)]; k+=1
        return w
    kchain=[]
    def extra(j):
        o=flat([([wait(vm=OPT["cap0"])] if OPT.get("cap0") else [])+u for u in STREAM[12+(NPRO-12)*j//16:12+(NPRO-12)*(j+1)//16]])
        if j==9: o+=[waitslot(),bar(tags={"Q0","Q1"},need=set())]
        if 10<=j<14: o+=[RQ[(0,(j-10)//2,2*(j%2)+x)].ins for x in range(2)]
        return o
    for qb in range(2):
        for ds in range(4): o=RQ[(0,qb,ds)]; b.ops.remove(o); o.done=True; o.gap=-1
    ks0=b.add([waitslot()]+kread(0)+kscale(0,extra)+[waitslot()],0,[],name="KS0"); b.need(0,ks0)
    rest=STREAM[NPRO:]
    n0=OPT.get("n0",4); n1=OPT.get("n1",10)
    w=[(0,(x+0.5)/n0) for x in range(n0)]+[(1,OPT.get('f1',30)/100+0.5*x/n1) for x in range(n1)]
    w=w[:len(rest)]; w+=spread(len(rest)-len(w),2,2)
    issue(rest,w,[ks0],"D")
    lastk=w[-1][0]
    for c in range(4):
        s1=pvstep(c*T)-1
        btags[s1-1].add(f"V{c}")
        p0=start[c*T]
        if c==0: ks=ks0
        else:
            kr=[b.add(ins,p0-14+x,kchain,earliest=p0-16,name=f"KR{c}") for x,ins in enumerate(kread(c))]
            if OPT.get("kin",1) and c<3:
                ku=kdma_units(c+1); k0=OPT.get("kin0",0)
                ks=b.add([wait(lg=0)]+kscale(c,lambda j:ku[(j-k0)//OPT.get("kst",2)] if (j>=k0 and (j-k0)%OPT.get("kst",2)==0 and (j-k0)//OPT.get("kst",2)<8) else []),p0,kr+state["TR"]+state["chain"]+state["scc"],name=f"KS{c}")
                state["chain"]=[ks]; state["scc"]=[ks]
            else: ks=b.add(kscale(c),p0,kr+state["TR"],name=f"KS{c}")
            b.need(p0,ks)
        aw=[]
        for j in(14,15):
            x=ksops(c,j); prev=[ks]
            for n,ins in enumerate(x): o=b.add(ins,p0-8+j-14+n*0.1,prev,name="Kx"); prev=[o]; aw.append(o); b.need(posQ[(c*T,1)],o)
        state["KS"]=aw
        if OPT.get("rw1",-1)==c:
            x=rewarm("L_merged"); x[0].kind="salu"
            o0=b.adds(x[0],p0-2,[ks],name="sRW"); state["chain"]=[b.add(x[1],p0,[o0]+state["chain"],name="RW")]
        if OPT.get("touch") and OPT.get("tpos")==c: state["chain"]=[b.add(touch_ins(),p0,[ks]+state["chain"],name="TOUCH")]
        if 1<=c<3 and not OPT.get("kin",1): issue(kdma_units(c+1),spread(8,c*T,OPT.get("kper",6)),[ks],f"KD{c+1}")
        kchain=state["chain"]
        if V3 and OPT.get("vlate",1) and 1<=c<3:
            issue(vdma_half(2*c+2),[(c*T+int(f),f-int(f)) for f in [OPT.get("vl10",8)/10+(x+0.5)/OPT.get("vlper",4) for x in range(4)]],[state["vrel"]],f"VA{c+1}")
        state["TR"]=[]
        for j in range(4):
            r=vPw if j==0 else vPr[j]
            tb=b.add(vop(f"v_add_u32 v{vTB+j}, s{50+j}, v{vTD}",S(50+j)+V(vTD),V(vTB+j)),start[s1-1]+j,state.get("KS",[]),earliest=start[s1-1],name="TB")
            for db in range(2):
                for hf in range(2):
                    a=aV(j,c,db)+2*hf
                    o=b.add(I(f"ds_read_b64_tr_b16 a[{a}:{a+1}], v{vTB+j} offset:{vbuf(2*c+hf)-XB+8*db}","dsr",V(vTB+j),A(a,2)),start[s1]+(j*4+db*2+hf)*OPT.get("trs",10)/10-OPT.get("tro",0),[BAR[s1-1],tb],name=f"TR{c}")
                    b.need(posP[(c*T,0,0)]-1,o); state["TR"].append(o)
                    if not (OPT.get("vbar") and c<3): bneeds(s1,o)
        vrel=BAR[s1]; vk=s1+1; vf=0
        if OPT.get("vbar") and c<3:
            vrel=b.barrier(start[s1]+OPT["vbar"],[BAR[s1-1]]+state["TR"],keep=True,need={id(o.ins) for o in state["TR"]}); BAR[s1].deps.append(vrel)
            vk=s1; vf=(OPT["vbar"]+2)/(end[s1]-start[s1])
        if c==0 and OC==1 and "ocfix" not in OPT:
            assert LAG<=3 and T-LAG<=2
            prev=list(state["TR"][:4]); tt=start[s1+1]+2
            for ins in vscale(): o=b.add(ins,tt,prev,name="VS"); prev=[o]; tt+=2
            b.need(posP[(T-1,0,0)],o)
        if c<3:
            per=OPT.get("v1per",6) if c==0 else OPT.get("vper",6)
            k0=max(vk,lastk,OPT.get("v1",0)) if c==0 else vk
            w=[(k0+int(f),f-int(f)) for f in [(vf if k0==vk else 0)+(x+0.5)/per for x in range(8)]]
            if V3:
                issue(vdma_half(2*c+3),w[:4],[vrel],f"VD{c+1}")
                state["vrel"]=vrel
                if c<2 and not OPT.get("vlate",1): issue(vdma_half(2*c+4),[(k0+int(f),f-int(f)) for f in [OPT.get("va10",10)/10+(x+0.5)/per for x in range(4)]],[vrel],f"VD{c+2}")
            else: issue(vdma_units(c+1),w,[vrel],f"VD{c+1}")
        if c==2: state["xfree"]=[BAR[s1]]
    state["ep"]={"L":state["KS"],"S":state["TR"]}
    for x in range(D):
        t=T+x; k=min(max(3*T+1+t-NQ,3*T-1+x*OPT.get("qstep",1)+OPT.get("q0",0)),NS-1)
        issue(qdma_units(t),[(k,0.25),(k,0.6)],[BAR[3*T+t-NQ]] if t>=NQ else state["xfree"],"QD")
    chain=state["chain"]
    def ep(t,t0,tm,dt,scc):
        k=3*T+t
        od={(qb,db):PV[(k,qb,db)][3] for qb in range(2) for db in range(2)}
        e=epilogue_ops(b,lambda qb,db:vOs[t]+qb*8+db*4,1024+t*512,t0,tm,dt,[BAR[k+1]],od,state["ep"],scc,sc=0.5,tg=f"t{t}",OC=0)
        state["ep"]=e; return e
    eps={}; BARX=[]
    for t in range(T-LAG-1+0):
        k=3*T+t+LAG
        eps[t]=ep(t,start[k]+8,start[k]+20,1.3,state["scc"]); state["scc"]=eps[t]["A"]
    if T-LAG>=2:
        for o in eps[0]["M"]+eps[0]["S"]: b.need(posQ[("pre",14)],o)
    e14=[b.add(vexp(vS(14)+r),posQ[("pre",14)]+6+2*r,[QK[("pre",14)][3]],name=f"Ep{r}") for r in range(4)]
    def late(scc,must_bar):
        BAR[NS]=b.barrier(end[NS-1]+1+OPT.get("barx",23)+3-off,[BAR[NS-1]],keep=True,need=set())
        for qb in range(2): bneeds(NS,W[(NS-1,qb)])
        BARX.append(BAR[NS])
        state["R"]=[]
        for k in range(NS-LAG,NS): preads(k)
        must_bar+=state["R"]
        one_ops(NS-1); must_bar.append(LW[T-1])
        for t in range(T-LAG-1,T-1):
            k=3*T+t
            p=posP[(k,0,0)] if k>=NS-LAG else end[NS-1]-8
            p+=OPT.get("epd",0)*(t-(T-LAG-1))
            eps[t]=ep(t,p-6,p+10,OPT.get("epdt0",12)/10,scc); scc=eps[t]["A"]
        return scc
    last=NS-1
    ctx=dict(dmaprio=5,placed=placed,late=late,scc=state["scc"],c15=[QK[("pre",15)][3]],e14=e14,dmadep=chain+[BAR[last]],
             must_bar=[W[(last,0)],W[(last,1)]],wdep=[BAR[last]],rqdep=[BAR[last]],rqprev=[RQ[(NS,qb,ds)] for qb in range(2) for ds in range(4)],
             pwar={f:[ONE[NS-4+f//2][f%2],W[(NS-4+f//2,f%2)]]+([PV[(NS-4+f//2,f%2,0)][0],PV[(NS-4+f//2,f%2,1)][0]] if ownk(NS-4+f//2) else []) for f in range(8)} if OWN else
                  {0:[ONE[last-1][0],W[(last-1,0)]],1:[ONE[last-1][1],W[(last-1,1)]],2:[ONE[last][0],W[(last,0)]],3:[ONE[last][1],W[(last,1)]],
                   **({f:eps[1]["M"]+eps[1]["S"] for f in range(4,8)} if T-LAG>=3 else {})},
             swar={n:[C[(last,n,pp)] for pp in range(2)] for n in range(4)})
    iter_parts(b,T,T%2,1,1,0,0,1,Ncustom=Ncustom,ctx=ctx,baroff=off)
    b.sops[-1].deps.append(BAR[NS])
    for ds in range(4): b.need(end[last]+1+8-1,RQ[(NS,1,ds)])
    res=b.run(prefix,log,overdue=OPT.get("od",3))
    if OPT["stamp"]==2 and not OPT.get("ps") and "lg0" not in OPT:
        p0=OPT.get('p0'); pts=[2,3,6,9,13,16,20,23,27] if p0 is None else list(range(p0,p0+9)); o=[]
        for x in res:
            o.append(x)
            for n,k in enumerate(pts):
                if x is BAR[k].ins: o.append(raw(f"{'s_memtime' if OPT.get('cyc') else 's_memrealtime'} s[{78+2*n}:{79+2*n}]"))
        res=o
        if OPT.get("fine"):
            o=[]; on=False; n=0; x_=0
            for x in res:
                if x.kind=="raw" and x.text.startswith("s_mem"): continue
                o.append(x)
                if x is BAR[NS-1].ins: on=True; o.append(raw("s_memtime s[78:79]")); n=1
                if on and x.kind=="mfma":
                    x_+=1
                    if x_%OPT["fine"]==0 and n<9: o.append(raw(f"s_memtime s[{78+2*n}:{79+2*n}]")); n+=1
            res=o
    n=[n for n,x in enumerate(res) if x is BAR[NS-3].ins][0]
    res=res[:n+1]+[label(f"L_merged{off if off else ''}")]+res[n+1:]
    if "spinbar" in OPT:
        n=[n for n,x in enumerate(res) if x is BAR[OPT["spinbar"]].ins][0]
        res=res[:n+1]+stamp(1)+res[n+1:]
    if "spinfrom" in OPT:
        n=[n for n,x in enumerate(res) if x is BAR[OPT["spinfrom"]].ins][0]
        res=res[:n+1]+stamp(0)+res[n+1:]
    if OPT.get("seg"):
        idx=[n for n,x in enumerate(res) if x.kind=="bar"]
        print("step est:",[estimate(res[a:z]) for a,z in zip(idx,idx[1:])],file=sys.stderr)
    return res

class Seq:
    def __init__(s,prefix=()): s.o=list(prefix); s.n0=len(s.o)
    def __call__(s,*ins,slot=True):
        for i in ins:
            if slot and i.kind not in("label","comment","salu","wait","branch","raw","nop"): s.o.append(waitslot())
            k=hazard_need(s.o,i)
            if k>0: s.o.append(nop(k))
            s.o.append(i)
    def out(s): return s.o[s.n0:]

def vop(t,rd,wr): return valu(t,rd,wr)
def prologue():
    q=Seq()
    q(salu("s_cmp_ge_u32 s2, 256",S(2),[SCC]), I("s_cbranch_scc1 L_end","branch",[SCC]))
    if OPT["stamp"]: q(raw("s_memtime s[60:61]"),raw("s_memrealtime s[62:63]"),raw(f"s_load_dwordx2 s[{sDbg}:{sDbg+1}], s[0:1], 32"))
    q(raw("s_load_dwordx4 s[36:39], s[0:1], 0"), raw("s_load_dwordx4 s[40:43], s[0:1], 16"))
    L,Q_,G_,T1,T2,T3=200,201,202,203,204,205
    if OPT.get("warm",2):
        q(raw("s_getpc_b64 s[56:57]"), label("L_pc"), raw("s_and_b32 s57, s57, 0xffff"), raw("s_mov_b32 s58, L_end-L_pc"), raw("s_mov_b32 s59, 0x20000"))
        q(vop(f"v_lshlrev_b32 v{T2}, 7, v0",V(0),V(T2)))
    def warm(ks):
        for k in ks:
            q(raw(f"s_mov_b32 s55, {k*32768}"))
            q(I(f"buffer_load_dword v{232+k}, v{T2}, s[56:59], s55 offen","vld",V(T2),V(232+k)),slot=False)
    nw=OPT.get("warm",2); we=OPT.get("wearly",1)
    warm(range(min(we,nw)))
    if "rw1" in OPT or "rw2" in OPT: q(vop(f"v_mov_b32 v254, v{T2}",V(T2),V(254)))
    q(vop(f"v_and_b32 v{L}, 63, v0",V(0),V(L)), vop(f"v_lshrrev_b32 v{T1}, 6, v0",V(0),V(T1)))
    q(I(f"v_readfirstlane_b32 s{sW}, v{T1}","valu",V(T1),S(sW),meta={"rfl":1}))
    q(vop(f"v_and_b32 v{Q_}, 15, v{L}",V(L),V(Q_)), vop(f"v_lshrrev_b32 v{G_}, 4, v{L}",V(L),V(G_)))
    R_,C_=208,209
    q(vop(f"v_bfe_u32 v{R_}, v{L}, 2, 2",V(L),V(R_)), vop(f"v_and_b32 v{C_}, 3, v{L}",V(L),V(C_)))
    q(salu(f"s_mul_i32 s3, s2, {QBYTES}",S(2),S(3)), salu("s_lshl_b32 s31, s2, 17",S(2),S(31)))
    q(salu(f"s_lshl_b32 s46, s{sW}, 11",S(sW),S(46)), salu(f"s_lshl_b32 s{sKo}, s{sW}, 15",S(sW),S(sKo)))
    q(vop(f"v_lshlrev_b32 v{vQdma}, 8, v{R_}",V(R_),V(vQdma)), vop(f"v_lshl_add_u32 v{vQdma}, v{G_}, 6, v{vQdma}",V(G_)+V(vQdma),V(vQdma)),
      vop(f"v_lshl_add_u32 v{vQdma}, v{C_}, 4, v{vQdma}",V(C_)+V(vQdma),V(vQdma)), vop(f"v_add_u32 v{vQdma}, s46, v{vQdma}",S(46)+V(vQdma),V(vQdma)))
    q(salu(f"s_mul_i32 s47, s{sW}, 2080",S(sW),S(47)), salu(f"s_add_u32 s{sWoff}, s47, {QBASE}",S(47),S(sWoff)))
    q(salu(f"s_sub_u32 s44, s{sKo}, s46",S(sKo)+S(46),S(44)), salu(f"s_mul_i32 s54, s{sW}, {QSLOT}",S(sW),S(54)), salu(f"s_add_u32 s54, s54, {KBASE}",S(54),S(54)))
    for srd,nb in((sQ,QBYTES),(sK,KBYTES),(sV,KBYTES),(sO,QBYTES)):
        q(salu(f"s_mov_b32 s{srd+2}, {nb}",[],S(srd+2)), salu(f"s_mov_b32 s{srd+3}, 0x20000",[],S(srd+3)))
    q(raw("s_waitcnt lgkmcnt(0)"))
    def base(srd,src,off):
        q(salu(f"s_add_u32 s{srd}, s{src}, s{off}",S(src)+S(off),S(srd)), salu(f"s_addc_u32 s{srd+1}, s{src+1}, 0",S(src+1),S(srd+1)),
          salu(f"s_and_b32 s{srd+1}, s{srd+1}, 0xffff",S(srd+1),S(srd+1)))
    ps=lambda n:[raw(f"s_memrealtime s[{78+2*n}:{79+2*n}]")] if OPT.get("ps") else []
    base(sK,38,31); q(*ps(0),*flat(STREAM[:8]),*ps(1),slot=False)
    base(sQ,36,3); q(*flat(STREAM[8:12]),slot=False)
    warm(range(min(we,nw),nw))
    base(sV,40,31); base(sO,42,3)
    if OPT.get("touch"):
        q(vop(f"v_lshlrev_b32 v{T2}, {OPT.get('tsh',12)}, v0",V(0),V(T2)))
        q(vop(f"v_mov_b32 v254, v{T2}",V(T2),V(254)))
        if not OPT.get("tpos"): q(touch_ins(),slot=False)
    for n in range(1,8): q(salu(f"s_add_u32 s{sKo+n}, s{sKo}, {n*4096}",S(sKo),S(sKo+n)))
    q(salu(f"s_add_u32 s{sT}, s47, {QEND}",S(47),S(sT)), salu(f"s_add_u32 s{sQm0}, s{sWoff}, {((T+D)%NQ)*QSLOT}",S(sWoff),S(sQm0)), salu(f"s_mov_b32 s{sQso}, {(T+D)*8192}",[],S(sQso)))
    q(vop(f"v_lshlrev_b32 v{T1}, 2, v{G_}",V(G_),V(T1)), vop(f"v_xor_b32 v{T1}, v{T1}, v{Q_}",V(T1)+V(Q_),V(T1)),
      vop(f"v_lshlrev_b32 v{T1}, 4, v{T1}",V(T1),V(T1)), vop(f"v_lshl_add_u32 v{vVA}, v{G_}, 8, v{T1}",V(G_)+V(T1),V(vVA)))
    q(salu(f"s_lshl_b32 s{sVm}, s{sW}, 12",S(sW),S(sVm)))
    q(*ps(2))
    q(vop(f"v_lshrrev_b32 v{T1}, 2, v{Q_}",V(Q_),V(T1)), vop(f"v_lshlrev_b32 v{vQrd0}, 10, v{T1}",V(T1),V(vQrd0)),
      vop(f"v_lshrrev_b32 v{T1}, 3, v{Q_}",V(Q_),V(T1)), vop(f"v_lshl_add_u32 v{vQrd0}, v{T1}, 5, v{vQrd0}",V(T1)+V(vQrd0),V(vQrd0)),
      vop(f"v_lshl_add_u32 v{vQrd0}, v{C_}, 6, v{vQrd0}",V(C_)+V(vQrd0),V(vQrd0)), vop(f"v_lshl_add_u32 v{vQrd0}, v{G_}, 4, v{vQrd0}",V(G_)+V(vQrd0),V(vQrd0)))
    q(salu(f"s_mov_b32 s{sQrs}, {QBASE+(T%NQ)*QSLOT}",[],S(sQrs))); q(vop(f"v_add_u32 v{vQrd}, {QBASE}, v{vQrd0}",V(vQrd0),V(vQrd)))
    for j in range(4):
        q(salu(f"s_add_u32 s49, s{sW}, {j}",S(sW),S(49)), salu("s_and_b32 s49, s49, 3",S(49),S(49)), salu(f"s_lshl_b32 s{50+j}, s49, 13",S(49),S(50+j)))
        r=vPw if j==0 else vPr[j]
        q(vop(f"v_lshl_add_u32 v{r}, v{L}, 4, s{50+j}",V(L)+S(50+j),V(r)))
        q(salu(f"s_lshr_b32 s{50+j}, s{50+j}, 1",S(50+j),S(50+j)), salu(f"s_add_u32 s{50+j}, s{50+j}, {XB}",S(50+j),S(50+j)))
    q(salu(f"s_lshl_b32 s49, s{sW}, 6",S(sW),S(49)))
    q(vop(f"v_lshlrev_b32 v{vOst}, 8, v{Q_}",V(Q_),V(vOst)), vop(f"v_lshl_add_u32 v{vOst}, v{G_}, 4, v{vOst}",V(G_)+V(vOst),V(vOst)), vop(f"v_add_u32 v{vOst}, s49, v{vOst}",S(49)+V(vOst),V(vOst)))
    q(vop(f"v_lshrrev_b32 v{T1}, 1, v{G_}",V(G_),V(T1)), vop(f"v_lshl_add_u32 v{T1}, v{T1}, 4, v{Q_}",V(T1)+V(Q_),V(T1)),
      vop(f"v_lshlrev_b32 v{T1}, 4, v{T1}",V(T1),V(T1)), vop(f"v_add_u32 v{vLr}, {LBASE}, v{T1}",V(T1),V(vLr)))
    q(salu(f"s_lshl_b32 s49, s{sW}, 2",S(sW),S(49))); q(vop(f"v_add_u32 v{vLw}, s49, v{vLr}",S(49)+V(vLr),V(vLw)))
    q(vop(f"v_mov_b32 v{vLmax}, 0",[],V(vLmax)), vop(f"v_mov_b32 v{vRmax}, 0",[],V(vRmax)))
    if OC and "ocfix" in OPT:
        for r in range(4): q(vop(f"v_mov_b32 v{vC0+r}, {struct.unpack('<I',struct.pack('<f',OPT['ocfix']/8))[0]:#x}",[],V(vC0+r)))
    if CI not in(0,1,2,4,-1,-2,-4):
        assert max(vOs)+15<vCI or T-LAG<=2 and LAG<=3
        for r in range(4): q(vop(f"v_mov_b32 v{vCI+r}, {struct.unpack('<I',struct.pack('<f',CI))[0]:#x}",[],V(vCI+r)))
    q(vop(f"v_mov_b32 v{T1}, 0x3f803f80",[],V(T1)), vop(f"v_and_b32 v{T2}, {11 if OPT.get('sel2',1) else 8}, v{Q_}",V(Q_),V(T2)))
    for x in range(2):
        q(valu(f"v_cmp_eq_u32 vcc, {8*x}, v{T2}",V(T2),[VCC]))
        for r in range(4): q(valu(f"v_cndmask_b32 v{vSEL[x]+r}, 0, v{T1}, vcc",V(T1)+[VCC],V(vSEL[x]+r)))
    if OPT.get("trunc"): q(salu("s_mov_b32 s74, 0x07060302",[],S(74)))
    q(salu(f"s_mov_b32 s{sO0}, 0",[],S(sO0)), salu(f"s_mov_b32 s{sO1}, 4096",[],S(sO1)))
    q(vop(f"v_lshlrev_b32 v{T1}, 2, v{R_}",V(R_),V(T1)), vop(f"v_add_u32 v{T2}, s49, v{C_}",S(49)+V(C_),V(T2)), vop(f"v_xor_b32 v{T2}, v{T2}, v{T1}",V(T1)+V(T2),V(T2)),
      vop(f"v_lshl_add_u32 v{T3}, v{G_}, 2, v{R_}",V(G_)+V(R_),V(T3)), vop(f"v_lshlrev_b32 v{T3}, 8, v{T3}",V(T3),V(T3)), vop(f"v_lshl_add_u32 v{vTD}, v{T2}, 4, v{T3}",V(T2)+V(T3),V(vTD)))
    q(vop(f"v_add_u32 v{vKA}, s54, v{vQrd0}",S(54)+V(vQrd0),V(vKA)))
    q(vop(f"v_lshrrev_b32 v{T1}, 2, v{Q_}",V(Q_),V(T1)), valu(f"v_cmp_eq_u32 vcc, v{T1}, v{G_}",V(T1)+V(G_),[VCC]),
      vop(f"v_and_b32 v{T1}, 1, v{L}",V(L),V(T1)), vop(f"v_lshlrev_b32 v{T1}, 4, v{T1}",V(T1),V(T1)),
      vop(f"v_and_b32 v{T2}, 2, v{L}",V(L),V(T2)), valu(f"v_cmp_eq_u32 s[48:49], 0, v{T2}",V(T2),S(48,2)))
    for lo,cb in enumerate((CHI,CLO)):
        q(vop(f"v_mov_b32 v{T2}, {cb:#x}",[],V(T2)), v2("v_lshlrev_b32",T2,T1,T2), valu(f"v_cndmask_b32 v{T2}, 0, v{T2}, vcc",V(T2)+[VCC],V(T2)),
          valu(f"v_cndmask_b32 v{T3}, 0, v{T2}, s[48:49]",V(T2)+S(48,2),V(T3)), v2("v_xor_b32",T2,T2,T3))
        for half in range(2):
            a=aSC(lo,half)
            q(vop(f"v_accvgpr_write_b32 a{a+2*half}, v{T3}",V(T3),A(a+2*half)), vop(f"v_accvgpr_write_b32 a{a+2*half+1}, v{T2}",V(T2),A(a+2*half+1)),
              vop(f"v_accvgpr_write_b32 a{a+2-2*half}, 0",[],A(a+2-2*half)), vop(f"v_accvgpr_write_b32 a{a+3-2*half}, 0",[],A(a+3-2*half)))
    q(*ps(3))
    return q.out()

def fallback():
    q=Seq()
    q(label("L_fallback"), wait(vm=0,lg=0), bar())
    q(salu(f"s_mov_b32 s{sQso}, 0",[],S(sQso)), salu(f"s_mov_b32 s{sO0}, 0",[],S(sO0)), salu(f"s_mov_b32 s{sO1}, 4096",[],S(sO1)), salu(f"s_mov_b32 s{sLoop}, {NT}",[],S(sLoop)))
    q(vop(f"v_add_u32 v{vQrd}, {QBASE}, v{vQrd0}",V(vQrd0),V(vQrd)))
    MW,MR,T=216,217,218
    q(vop(f"v_mbcnt_lo_u32_b32 v{T}, -1, 0",[],V(T)), vop(f"v_mbcnt_hi_u32_b32 v{T}, -1, v{T}",V(T),V(T)),
      vop(f"v_and_b32 v{MR}, 15, v{T}",V(T),V(MR)), vop(f"v_lshlrev_b32 v{MR}, 6, v{MR}",V(MR),V(MR)), vop(f"v_add_u32 v{MR}, {MBASE}, v{MR}",V(MR),V(MR)),
      vop(f"v_lshrrev_b32 v{T}, 4, v{T}",V(T),V(T)), vop(f"v_lshl_add_u32 v{MW}, v{T}, 2, v{MR}",V(T)+V(MR),V(MW)))
    q(salu(f"s_lshl_b32 s49, s{sW}, 4",S(sW),S(49))); q(vop(f"v_add_u32 v{MW}, s49, v{MW}",S(49)+V(MW),V(MW)))
    q(label("L_fb_loop"))
    q(salu(f"s_mov_b32 m0, s{sWoff}",S(sWoff),[M0])); q(dma(vQdma,sQ,sQso,0),dma(vQdma,sQ,sQso,1024)); q(wait(vm=0),bar())
    for qb in range(2):
        for ds in range(4): q(dsr128(vQ(qb,ds),vQrd,qb*4160+ds*256))
    Sb=lambda kb,qb:64+(kb*2+qb)*4
    Pf=lambda f:128+f*4
    for kb in range(8):
        for qb in range(2):
            for ds in range(4): q(mfma(Sb(kb,qb),aK(kb,ds),vQ(qb,ds),None if ds==0 else Sb(kb,qb)))
    Mx=[220,221]; RD=224
    for qb in range(2):
        q(v2("v_max_f32",Mx[qb],Sb(0,qb),Sb(0,qb)+1))
        regs=[Sb(kb,qb)+r for kb in range(8) for r in range(4)][2:]
        for x in range(0,30,2): q(vop(f"v_max3_f32 v{Mx[qb]}, v{Mx[qb]}, v{regs[x]}, v{regs[x+1]}",V(Mx[qb])+V(regs[x])+V(regs[x+1]),V(Mx[qb])))
        q(dsw32(MW,Mx[qb],qb*1024))
    q(bar())
    for qb in range(2):
        for x in range(4): q(dsr128(RD+4*x,MR,qb*1024+16*x))
        q(v2("v_max_f32",Mx[qb],RD,RD+1))
        for x in range(2,16,2): q(vop(f"v_max3_f32 v{Mx[qb]}, v{Mx[qb]}, v{RD+x}, v{RD+x+1}",V(Mx[qb])+V(RD+x)+V(RD+x+1),V(Mx[qb])))
    for kb in range(8):
        for qb in range(2):
            for r in range(4): q(v2("v_sub_f32",Sb(kb,qb)+r,Sb(kb,qb)+r,Mx[qb]),slot=False)
            for r in range(4): q(vexp(Sb(kb,qb)+r),slot=False)
            for p2 in range(2): q(vcvt(Pf(2*(kb//2)+qb)+2*(kb%2)+p2,Sb(kb,qb)+2*p2,Sb(kb,qb)+2*p2+1),slot=False)
    for f in range(8): q(dsw128(vPw,Pf(f),f*1024))
    for qb in range(2):
        for kp in range(4): q(mfma(vLacc,vSEL[qb],Pf(2*kp+qb),None if (kp==0 and qb==0) else vLacc,afile='v'))
    q(dsw32(vLw,vLacc,0)); q(bar())
    for qb in range(2):
        for db in range(2):
            for kp in range(4): q(mfma(vO(0,qb,db),aV(0,kp,db),Pf(2*kp+qb),None if kp==0 else vO(0,qb,db)))
    for j in range(1,4):
        for qb in range(2):
            for k in range(4): q(dsr128(RD+4*k,vPr[j],(2*k+qb)*1024))
            for db in range(2):
                for kp in range(4): q(mfma(vO(0,qb,db),aV(j,kp,db),RD+4*kp,vO(0,qb,db)))
    q(dsr128(vLrd,vLr,0)); q(v2("v_add_f32",vLrd,vLrd,vLrd+1),v2("v_add_f32",vLrd+2,vLrd+2,vLrd+3),v2("v_add_f32",vLrd,vLrd,vLrd+2))
    q(valu(f"v_rcp_f32 v{vR0}, v{vLrd}",V(vLrd),V(vR0),"trans"), vop(f"v_mov_b32 v{vR1}, v{vR0}",V(vR0),V(vR1)),
      valu(f"v_permlane32_swap_b32 v{vR0}, v{vR1}",V(vR0)+V(vR1),V(vR0)+V(vR1),"perm"))
    for qb in range(2):
        for db in range(2):
            for p2 in range(2):
                r=vO(0,qb,db)+2*p2; R=vR0 if qb==0 else vR1
                q(v2("v_mul_f32",r,r,R),v2("v_mul_f32",r+1,r+1,R),vcvt(vOut(qb)+2*db+p2,r,r+1))
        q(vst(vOut(qb),vOst,sO,sO0 if qb==0 else sO1))
    q(salu(f"s_add_u32 s{sO0}, s{sO0}, 8192",S(sO0),S(sO0)), salu(f"s_add_u32 s{sO1}, s{sO1}, 8192",S(sO1),S(sO1)), salu(f"s_add_u32 s{sQso}, s{sQso}, 8192",S(sQso),S(sQso)))
    q(wait(vm=0,lg=0),bar())
    q(salu(f"s_sub_u32 s{sLoop}, s{sLoop}, 1",S(sLoop),S(sLoop)), salu(f"s_cmp_lg_u32 s{sLoop}, 0",S(sLoop),[SCC]), I("s_cbranch_scc1 L_fb_loop","branch",[SCC]))
    return q.out()

def stamp(n):
    if OPT["stamp"]==2: return [raw(f"s_memrealtime s[{76+2*n}:{77+2*n}]")] if n in(0,) else ([raw("s_memrealtime s[98:99]")] if n==1 else [])
    return [raw(f"s_memtime s[{76+4*n}:{77+4*n}]"),raw(f"s_memrealtime s[{78+4*n}:{79+4*n}]")] if OPT["stamp"] else []

def build():
    logs={}
    pro=prologue()+stamp(0)
    def it(i,par,cur,nxt,pv,ep,prefix,**kw):
        lg=[]; r=iteration(i,par,cur,nxt,pv,ep,(i+D<NT) or kw.get("force_dma"),prefix,log=lg,**{k:v for k,v in kw.items() if k!="force_dma"}); logs[i]=lg; return [comment(f"---- iteration {i}")]+r
    U=OPT.get("U",2); nst=40-(T+1); trips=nst//U; rem=nst-trips*U
    stag=OPT.get("stag",0); ncopy=OPT.get("ncopy",4) if stag else 1
    sst=OPT.get("sstag",0)
    disp=[]
    for cp in range(ncopy-1,0,-1):
        disp+=[salu(f"s_cmp_ge_u32 s{sW}, {cp*(4//ncopy)}",S(sW),[SCC]), I(f"s_cbranch_scc1 L_copy{cp}","branch",[SCC])]
    def mk0(off):
        lg=[]; r=[comment("---- start-up steps + merged iteration")]+startup(pro,lg,off); logs[0]=lg
        return r+[salu(f"s_mov_b32 s{sLoop}, {trips}",[],S(sLoop))]+([] if "spinbar" in OPT else stamp(1))
    def mkend(prev,off):
        r=[]
        for u in range(rem):
            x=it(40-rem+u,(40-rem+u)%2,1,1,1,1,prev,force_dma=True,baroff=off); prev=x; r+=x
        x=stamp(2)+it(40,0,1,0,1,1,prev,ctx={"eager":1},baroff=off)
        return r,x
    if not sst: i0=mk0(0)
    allb=[]; paths=[]; body_rem=[]
    for cp in range(ncopy):
        if sst: i0=mk0(stag*cp)
        body=[]; prev=i0
        for u in range(U):
            x=it(T+1+u,(T+1+u)%2,1,1,1,1,prev,force_dma=True,loopctl=f"L_loop{cp}" if (u==U-1 and trips>1) else None,baroff=stag*cp); body+=x; prev=x
            if u==0: ia=x
            if u==1: ib=x
        if "lg0" in OPT:
            o=[]; n=0; g=-1
            for x in body:
                o.append(x)
                if x.kind=="mfma":
                    g+=1
                    if g>=OPT["lg0"] and (g-OPT["lg0"])%OPT.get("lgs",8)==0 and n<9: o.append(raw(f"s_memtime s[{78+2*n}:{79+2*n}]")); n+=1
            body=o
        if sst or cp==0: br,i40=mkend(prev,stag*cp if sst else 0)
        paths.append(i0+body*min(trips,3)+br+i40)
        if OPT.get("rot"):
            kind={"W":"dsw","S":"vst"}[OPT["rot"]]
            idx=max(n for n,x in enumerate(body) if x.kind==kind and x.cost>=8 and (kind!="dsw" or x.cost>8))+1
            assert body[-1].kind=="branch" and any(x.text.startswith(f"s_cmp_lg_u32 s{sLoop}") for x in body[:idx])
            lay=[I(f"s_branch L_entry{cp}","branch"),raw(f".p2align {OPT.get('al',6)}"),label(f"L_loop{cp}")]+body[idx:-1]+[label(f"L_entry{cp}")]+body[:idx]+[body[-1]]+body[idx:-1]
        else: lay=[raw(f".p2align {OPT.get('al',6)}"),label(f"L_loop{cp}")]+body
        allb+=[label(f"L_copy{cp}")]+(i0 if sst else [])+lay+(br+i40 if sst else [])
        body_rem+=body+br
        if cp<ncopy-1: allb+=[I("s_branch L_after","branch")]
    allb+=[label("L_after")]
    lg=[]; i41=[comment("---- drain")]+drain(41,i40,lg); logs[41]=lg; i42=[]; i1=[]
    main=pro+(disp if sst else i0+disp)+allb+([] if sst else br+i40)+i41
    fin=Seq(i41+i42)
    fin(salu(f"s_mov_b32 s49, {HI:#x}",[],S(49)), salu(f"s_mov_b32 s50, {RHI:#x}",[],S(50)))
    fin(valu(f"v_cmp_lt_u32 vcc, s49, v{vLmax}",S(49)+V(vLmax),[VCC]), valu(f"v_cmp_lt_u32 s[52:53], s50, v{vRmax}",S(50)+V(vRmax),S(52,2)))
    fin(nop(4), salu("s_or_b64 vcc, vcc, s[52:53]",[VCC]+S(52,2),[VCC]), nop(4), I("s_cbranch_vccnz L_fallback","branch",[VCC]))
    if OPT["stamp"]==2 and OPT.get("all"):
        fin(raw("s_waitcnt vmcnt(0)"),raw("s_memrealtime s[100:101]"),raw("s_waitcnt lgkmcnt(0)"),raw(f"s_cmp_lg_u32 s{sW}, 0"),raw("s_cbranch_scc1 L_end"))
        fin(raw(f"s_and_b32 s{sDbg+1}, s{sDbg+1}, 0xffff"),raw(f"s_mov_b32 s{sDbg+2}, 4096"),raw(f"s_mov_b32 s{sDbg+3}, 0x20000"))
        fin(raw("s_getreg_b32 s3, hwreg(HW_REG_XCC_ID)"),raw("s_and_b32 s3, s3, 7"),raw("s_and_b32 s55, s62, 0xffffff"),raw("s_lshl_b32 s3, s3, 24"),raw("s_or_b32 s3, s3, s55"),raw("v_mov_b32 v200, s3"))
        for n,r in enumerate((82,98,100)): fin(raw(f"s_sub_u32 s3, s{r}, s62"),raw(f"v_mov_b32 v{201+n}, s3"))
        fin(raw("s_lshl_b32 s3, s2, 4"),raw("v_mov_b32 v220, s3"),raw("s_mov_b64 exec, 1"),raw(f"buffer_store_dwordx4 v[200:203], v220, s[{sDbg}:{sDbg+3}], 0 offen"))
    elif OPT["stamp"]==2:
        fin(raw("s_waitcnt vmcnt(0)"),raw("s_memrealtime s[100:101]"),raw("s_waitcnt lgkmcnt(0)"))
        fin(raw("s_and_b32 s3, s2, 63"),raw("s_cmp_lg_u32 s3, 0"),raw("s_cbranch_scc1 L_end"),raw(f"s_cmp_lg_u32 s{sW}, 0"),raw("s_cbranch_scc1 L_end"))
        fin(raw(f"s_and_b32 s{sDbg+1}, s{sDbg+1}, 0xffff"),raw(f"s_mov_b32 s{sDbg+2}, 256"),raw(f"s_mov_b32 s{sDbg+3}, 0x20000"))
        for n in range(13): fin(raw(f"s_sub_u32 s3, s{76+2*n}, s62"),raw(f"v_mov_b32 v{200+n}, s3"))
        fin(raw("s_lshr_b32 s3, s2, 6"),raw("s_lshl_b32 s3, s3, 6"),raw("v_mov_b32 v220, s3"),raw("s_mov_b64 exec, 1"))
        for n in range(4): fin(raw(f"buffer_store_dwordx4 v[{200+4*n}:{203+4*n}], v220, s[{sDbg}:{sDbg+3}], 0 offen offset:{16*n}"))
    elif OPT["stamp"]:
        fin(*stamp(3)); fin(raw("s_waitcnt vmcnt(0)")); fin(*stamp(4)); fin(raw("s_waitcnt lgkmcnt(0)"))
        sp=OPT.get("spin")
        if sp is not None:
            ex={0:["s_mov_b32 s3, 0"],1:["s_sub_u32 s3, s78, s62","s_lshl_b32 s3, s3, 2"],2:["s_sub_u32 s3, s86, s82"],3:["s_sub_u32 s3, s94, s62"],
                4:["s_sub_u32 s3, s84, s80","s_lshr_b32 s3, s3, 4"],5:["s_sub_u32 s3, s82, s62","s_lshl_b32 s3, s3, 2"],6:["s_sub_u32 s3, s82, s78","s_lshl_b32 s3, s3, 3"],7:["s_sub_u32 s3, s80, s76","s_lshr_b32 s3, s3, 1"],8:["s_sub_u32 s3, s94, s86","s_lshl_b32 s3, s3, 3"]}[sp]
            for e in ex: fin(raw(e))
            fin(raw("s_add_u32 s3, s3, 15000"),label("L_spin"),raw("s_memrealtime s[98:99]"),raw("s_waitcnt lgkmcnt(0)"),raw("s_sub_u32 s98, s98, s62"),raw("s_cmp_lt_u32 s98, s3"),raw("s_cbranch_scc1 L_spin"))
        fin(raw("s_and_b32 s3, s2, 31"),raw("s_cmp_lg_u32 s3, 0"),raw("s_cbranch_scc1 L_end"),raw(f"s_cmp_lg_u32 s{sW}, 0"),raw("s_cbranch_scc1 L_end"))
        fin(raw(f"s_and_b32 s{sDbg+1}, s{sDbg+1}, 0xffff"),raw(f"s_mov_b32 s{sDbg+2}, 256"),raw(f"s_mov_b32 s{sDbg+3}, 0x20000"))
        for n in range(4): fin(raw(f"s_sub_u32 s3, s{76+4*(n+1 if n==3 else n)}, s60"),raw(f"v_mov_b32 v{200+2*n}, s3"),raw(f"s_sub_u32 s3, s{78+4*(n+1 if n==3 else n)}, s62"),raw(f"v_mov_b32 v{201+2*n}, s3"))
        fin(raw("s_lshr_b32 s3, s2, 5"),raw("s_lshl_b32 s3, s3, 5"),raw("v_mov_b32 v208, s3"),raw("s_mov_b64 exec, 1"),
            raw(f"buffer_store_dwordx4 v[200:203], v208, s[{sDbg}:{sDbg+3}], 0 offen"),raw(f"buffer_store_dwordx4 v[204:207], v208, s[{sDbg}:{sDbg+3}], 0 offen offset:16"))
    fin(raw("s_endpgm"))
    fb=fallback()
    ool=[]
    if "rw2" in OPT:
        for cp in range(ncopy): ool+=[label(f"L_loop{cp}_rw")]+rewarm("L_after")+[raw(f"s_branch L_loop{cp}_rwb")]
    static=main+fin.out()+ool+fb+[label("L_end"),raw("s_endpgm")]
    dyns=[pro+p+i41+fin.out() for p in paths]
    for rep in range(2):
        for dyn in dyns: resolve_waits(dyn)
    k=[x for x,y in enumerate(fb) if y.text=="L_fb_loop"][0]
    dynf=fb+fb[k:]
    resolve_waits(dynf)
    for name,d in [("main",d) for d in dyns]+[("fallback",dynf)]:
        bad=check_hazards(d)
        for b in bad: print("HAZARD",name,b,file=sys.stderr)
        assert not bad
        print(name,"max outstanding",max_outstanding(d),file=sys.stderr)
    for nm,sq in(("i0",i0),("i1",i1),("ia",ia),("ib",ib),("i40",i40),("i41",i41),("i42",i42)):
        print(nm,"est cycles",estimate(sq),"nops",sum(1 for x in sq if x.kind=="nop"),"instrs",sum(1 for x in sq if states(x)),file=sys.stderr)
    if "log" in OPT: print("\n".join(logs[OPT["log"]]),file=sys.stderr)
    if OC==2:
        for x in main:
            if x.kind=="mfma" and x.name.startswith("PV") and x.text.endswith(", 0"): x.text=x.text[:-1]+"1.0"
    if "linit" in OPT:
        for x in main:
            if x.kind=="mfma" and "ONE" in x.name and x.text.endswith(", 0"): x.text=x.text[:-1]+f"{float(OPT['linit']):.1f}"
    if "oinit" in OPT:
        for x in main:
            if x.kind=="mfma" and x.name.startswith("PV") and x.text.endswith(", 0"): x.text=x.text[:-1]+f"{float(OPT['oinit'])/2:.1f}"
        static=[x for x in static if x.text!="s_cbranch_vccnz L_fallback"]
    abl=str(OPT.get("abl","")).split("+")
    if abl!=[""]:
        loop=set(map(id,body_rem)) if not OPT.get('abs') else set(map(id,i0[len(i0)//4:]))
        def drop(x):
            if id(x) not in loop: return False
            t=x.text
            return (("st" in abl and x.kind=="vst") or ("dma" in abl and x.kind=="dma") or ("pr" in abl and x.kind=="dsr" and 128<=min(r[1] for r in x.wr)<160)
              or ("qr" in abl and x.kind=="dsr" and 32<=min(r[1] for r in x.wr)<64) or ("pw" in abl and x.kind=="dsw") or ("exp" in abl and t.startswith("v_exp"))
              or ("cvt" in abl and t.startswith("v_cvt")) or ("one" in abl and x.kind=="mfma" and x.name.startswith("ONE")) or ("bar" in abl and x.kind=="bar")
              or ("mul" in abl and t.startswith("v_mul")) or ("valu" in abl and x.kind in VALU_KINDS) or ("qk" in abl and x.kind=="mfma" and x.name.startswith("QK"))
              or ("pv" in abl and x.kind=="mfma" and x.name.startswith("PV")) or ("wait" in abl and x.kind=="wslot") or ("ks" in abl and (t.startswith("v_accvgpr") or t.startswith("v_pk_mul") or t.startswith("v_and") or t.startswith("v_lshlrev"))))
        static=[x for x in static if not drop(x)]
        static=[x for x in static if x.text!="s_cbranch_vccnz L_fallback"]
    if OPT.get("fake") or OPT.get("samea"): static=[x for x in static if x.text!="s_cbranch_vccnz L_fallback"]
    if OPT.get("swap"):
        import re as _re
        for x in body_rem:
            if x.kind=="mfma" and any(x.name.startswith(p) for p in OPT["swap"].split("+")):
                m=_re.match(r"(\S+ [^,]+), ([^,]+), ([^,]+), (.*)",x.text); x.text=f"{m[1]}, {m[3]}, {m[2]}, {m[4]}"
        static=[x for x in static if x.text!="s_cbranch_vccnz L_fallback"]
    hdr=open("standalone__mha_softmax__near_ridge.s.ref").read().split("; Override launch")[0]
    txt=hdr+f"""; One workgroup (4 waves) per head.  K (scaled once by log2(e)/sqrt(D)) and V^T stay in AGPRs: wave w owns keys
; 128w..128w+127 for S^T = K.Q^T and output columns 32w..32w+31 for O^T = V^T.P^T (16x16x32 bf16 MFMA); P and the row sums
; are exchanged through LDS, one barrier per 32-row query tile.  The first tiles are processed key-chunk by key-chunk while
; K and V stream in.  Softmax shift: the fast path shifts every score by the constant 4 (log2 units, through the MFMA
; accumulator init); every row sum l is checked at run time (2^-4 <= l <= 2^48, inf/NaN included) and if any row leaves that
; range the whole head is recomputed with the true row max (L_fallback).  The P.V accumulators start from an offset of a few
; times the wave's smallest column magnitude of V, removed exactly in the normalisation FMA (fewer accumulator sign flips).
; @launch grid=(256,1,1) block=(256,1,1) lds={LDS_BYTES}
.amdgcn_target "amdgcn-amd-amdhsa--gfx950"
.text
.globl {NAME}
.p2align 8
.type {NAME},@function
{NAME}:
"""+emit(static)+f""".section .rodata,"a"
.p2align 6
.amdhsa_kernel {NAME}
  .amdhsa_next_free_vgpr 512
  .amdhsa_next_free_sgpr 102
  .amdhsa_accum_offset 256
  .amdhsa_group_segment_fixed_size 0
  .amdhsa_kernarg_size 48
  .amdhsa_user_sgpr_count 2
  .amdhsa_user_sgpr_kernarg_segment_ptr 1
  .amdhsa_system_sgpr_workgroup_id_x 1
.end_amdhsa_kernel
"""
    return txt

if __name__=="__main__":
    open(sys.argv[1],"w").write(build())
```

```python
import sys, struct, math
from core import *
from sched import *

NAME="standalone__mha_softmax__near_ridge_kernel"
NT=41
QBYTES=335872; KBYTES=131072
OPT=dict(D=4, st="sc0+sc1", ld="nt", stamp=0, wsplit=0, stag=3, ncopy=2)
for a in sys.argv[2:]:
    k,v=a.split("="); OPT[k]=int(v) if v.lstrip("-").isdigit() else v
D=OPT["D"]; NQ=7; T=OPT.get("T",5); LAG=OPT.get("lag",3); LAG0=OPT.get('lag0',3)
STF=(" "+OPT["st"].replace("+"," ")) if OPT["st"]!="none" else ""
LDF=(" "+OPT["ld"].replace("+"," ")) if OPT["ld"]!="none" else ""
QSLOT=8320; PB=[0,33280]; KBASE=PB[T%2]; QBASE=2*33280; QEND=QBASE+NQ*QSLOT; VBASE=QEND; LBASE=VBASE+32768; MBASE=LBASE+1024; LDS_BYTES=LBASE+4096
vQrd,vQrd0,vPw,vPr,vQdma,vOst,vLw,vLr=1,2,3,[None,4,5,6],7,8,9,10
vLmax,vLmin,vR0,vR1,vT=11,12,13,14,15
vLrd,vLacc,vSEL=16,20,[24,28]
vQ=lambda qb,ds:32+qb*16+ds*4
vS=lambda n:64+(n%8)*4
vP=lambda f:96+f*4
vRing=lambda s,k:128+(s%2)*16+k*4
vO=lambda st,qb,db:160+st*16+qb*8+db*4
vOut=lambda qb:192+qb*4
aK=lambda kb,ds:(kb*4+ds)*4
aV=lambda j,kp,db:128+((j*4+kp)*2+db)*4
sQ,sK,sV,sO=4,8,12,16
sW,sLoop,sQso,sQm0,sQrs,sO0,sO1,sT,sC=20,21,22,23,24,25,26,27,28
sWoff=30; sDbg=32
M0=('m0',0); VCC=('vcc',0); SCC=('scc',0)
CSCALE=struct.unpack("<I",struct.pack("<f",math.log2(math.e)/math.sqrt(128.0)))[0]
def bf16(x):
    u=struct.unpack("<I",struct.pack("<f",x))[0]; return (u+0x7fff+((u>>16)&1))>>16
CF=math.log2(math.e)/math.sqrt(128.0); CHI=bf16(CF); CLO=bf16(CF-struct.unpack("<f",struct.pack("<I",CHI<<16))[0])
HI=(127+48)<<23; RHI=(127+4)<<23

CI=OPT.get("cinit",-4); vCI=244; vC0=240; vN0,vN1=253,254; vRmax=12; OC=OPT.get("oc",1)
def qkm(d,a,b,first,name):
    if not first: return mfma(d,a,b,d,name=name)
    if CI not in(0,1,2,4,-1,-2,-4): return mfma(d,a,b,vCI,name=name)
    m=mfma(d,a,b,None,name=name)
    if CI: m.text=m.text[:-1]+f"{float(CI):.1f}"
    return m
def dsr128(dst,addr,off,file='v',name=None): return I(f"ds_read_b128 {rs(file,dst,4)}, v{addr} offset:{off}","dsr",V(addr),[(file,dst+i) for i in range(4)],name=name)
def dsw128(addr,src,off): return I(f"ds_write_b128 v{addr}, {rs('v',src,4)} offset:{off}","dsw",V(addr)+V(src,4),[],cost=20)
def dsw64(addr,src,off): return I(f"ds_write_b64 v{addr}, {rs('v',src,2)} offset:{off}","dsw",V(addr)+V(src,2),[],cost=12)
def dsw32(addr,src,off): return I(f"ds_write_b32 v{addr}, v{src} offset:{off}","dsw",V(addr)+V(src),[],cost=8)
def dma(voff,srd,soff,off,flag=LDF): return I(f"buffer_load_dwordx4 v{voff}, s[{srd}:{srd+3}], s{soff} offen offset:{off}{flag} lds","dma",V(voff)+S(srd,4)+S(soff)+[M0],[])
def vld(dst,voff,srd,soff,off,flag=LDF): return I(f"buffer_load_dwordx4 {rs('v',dst,4)}, v{voff}, s[{srd}:{srd+3}], s{soff} offen offset:{off}{flag}","vld",V(voff)+S(srd,4)+S(soff),V(dst,4))
def vst(src,voff,srd,soff,flag=STF): return I(f"buffer_store_dwordx4 {rs('v',src,4)}, v{voff}, s[{srd}:{srd+3}], s{soff} offen{flag}","vst",V(src,4)+V(voff)+S(srd,4)+S(soff),[],meta={"data":V(src,4)})
def vexp(r): return valu(f"v_exp_f32 v{r}, v{r}",V(r),V(r),"trans")
def vcvt(d,a,b): return valu(f"v_cvt_pk_bf16_f32 v{d}, v{a}, v{b}",V(a)+V(b),V(d))
def vcvtp(d,a,b):
    if OPT.get("trunc"): return valu(f"v_perm_b32 v{d}, v{b}, v{a}, s74",V(a)+V(b)+S(74),V(d))
    return vcvt(d,a,b)
def v2(op,d,a,b): return valu(f"{op} v{d}, v{a}, v{b}",V(a)+V(b),V(d))
def bar(**m): return I("s_barrier","bar",meta=m)
def label(t): return I(t,"label")
def comment(t): return I(t,"comment")

def chain_info(n):
    f=(n//2+1)%8; h=n%2
    return f,h,2*(f//2)+h,f%2
def s_block(f,h):
    return (2*((f-1)%8)+h)

class Bld:
    def __init__(s): s.bb=[]; s.ops=[]; s.sops=[]; s.mdeps={}; s.slots=set(); s.tail=[]
    def group(s,g):
        p=len(s.bb); s.bb+=g; s.slots.add(len(s.bb)-1); return p
    def add(s,ins,prio,deps=(),earliest=0,name=None):
        o=Op(ins,prio,deps,earliest,name); s.ops.append(o); return o
    def adds(s,ins,prio,deps=(),name=None,earliest=0):
        o=Op(ins,prio,deps,earliest,name); s.sops.append(o); return o
    def need(s,idx,o): s.mdeps.setdefault(max(idx,0),[]).append(o)
    def barrier(s,gap,deps,keep=False,**meta):
        if keep and gap in s.slots: gap-=1; o=s.adds(bar(**meta),-1,deps,name="BAR",earliest=gap); s.slots.add(gap-1); return o
        o=s.adds(bar(**meta),-1,deps,name="BAR",earliest=max(gap,0)); s.slots.discard(gap); s.slots.add(gap-1); return o
    def run(s,prefix,log=None,overdue=None): return schedule(s.bb,s.ops,s.sops,s.mdeps,prefix,s.slots,s.tail,log,overdue,fill=OPT.get('fill',1),veto=(OPT.get('veto',8) if overdue is None else OPT.get('sveto',0)),vdist=tuple(int(c) for c in str(OPT.get('vd',1234) if overdue is None else OPT.get('svd',1))))

def qdma_ops(b,t0,deps,tag=None,scc=()):
    m=b.adds(salu(f"s_mov_b32 m0, s{sQm0}",S(sQm0),[M0]),t0-2,deps,name="m0")
    QF=(" "+OPT["lq"].replace("+"," ") if OPT["lq"]!="none" else "") if "lq" in OPT else LDF
    d0=b.add(dma(vQdma,sQ,sQso,0,QF),t0,[m],name="DMA0"); d1=b.add(dma(vQdma,sQ,sQso,1024,QF),t0+4,[d0],name="DMA1")
    d0.ins.cost=d1.ins.cost=OPT.get("dmac",8); d0.ins.tag=d1.ins.tag=tag
    if OPT.get("dpe"): d0.earliest=int(t0); d1.earliest=int(t0+OPT["dpe"])
    b1=b.adds(salu(f"s_add_u32 s{sQm0}, s{sQm0}, {QSLOT}",S(sQm0),S(sQm0)+[SCC]),t0+10,[m]+list(scc),name="qm+")
    b2=b.adds(salu(f"s_cmp_eq_u32 s{sQm0}, s{sT}",S(sQm0)+S(sT),[SCC]),t0+11,[b1],name="qm?")
    b3=b.adds(salu(f"s_cselect_b32 s{sQm0}, s{sWoff}, s{sQm0}",S(sQm0)+S(sWoff)+[SCC],S(sQm0)),t0+12,[b2],name="qm=")
    b4=b.adds(salu(f"s_add_u32 s{sQso}, s{sQso}, 8192",S(sQso),S(sQso)+[SCC]),t0+14,[d1,b3],name="qso+")
    return d1,b4

def epilogue_ops(b,Ob,loff,t0,tm,dt,ldeps,odeps,prev,scc,sc=1.0,tg="",OC=OC):
    lr=b.add(dsr128(vLrd,vLr,loff),t0,list(ldeps)+prev.get("L",[]),name="LR"+tg)
    a=b.add(v2("v_add_f32",vLrd,vLrd,vLrd+1),t0+11*sc,[lr],name="La")
    bb_=b.add(v2("v_add_f32",vLrd+2,vLrd+2,vLrd+3),t0+11.5*sc,[lr],name="Lb")
    c=b.add(v2("v_add_f32",vLrd,vLrd,vLrd+2),t0+12*sc,[a,bb_],name="Lc")
    rc=b.add(valu(f"v_rcp_f32 v{vR0}, v{vLrd}",V(vLrd),V(vR0),"trans"),t0+13*sc,[c]+prev.get("M",[]),name="RCP")
    x1=b.add(v2("v_max_u32",vRmax,vRmax,vR0),t0+14.5*sc,[rc],name="chkr"); x2=b.add(v2("v_max_u32",vLmax,vLmax,vLrd),t0+30*sc,[c],name="chkl")
    mv=b.add(valu(f"v_mov_b32 v{vR1}, v{vR0}",V(vR0),V(vR1)),t0+14*sc,[rc],name="MOV")
    sw=b.add(valu(f"v_permlane32_swap_b32 v{vR0}, v{vR1}",V(vR0)+V(vR1),V(vR0)+V(vR1),"perm"),t0+15*sc,[mv,x1],name="SWP")
    t=tm; sts=[]; muls=[]
    if OC==1:
        nc=[b.add(valu(f"v_mul_f32 v{N}, -v{vC0}, v{R}",V(vC0)+V(R),V(N)),t0+(16+x)*sc,[sw],name="nC") for x,(N,R) in enumerate(((vN0,vR0),(vN1,vR1)))]
    def scale_op(r,qb):
        R=vR0 if qb==0 else vR1; N=vN0 if qb==0 else vN1
        if OC==2: return valu(f"v_fma_f32 v{r}, v{r}, v{R}, -v{R}",V(r)+V(R),V(r)),[sw]
        if OC: return valu(f"v_fma_f32 v{r}, v{r}, v{R}, v{N}",V(r)+V(R)+V(N),V(r)),[nc[qb]]
        return v2("v_mul_f32",r,r,R),[sw]
    if OPT.get("pa") and not tg and odeps is None:
        b.ops.remove(mv); b.ops.remove(sw)
        rw=b.add(dsw32(vLw,vR0,3072),t0+14*sc,[rc],name="RW")
        rr=[b.add(dsr128(248+4*(qb),vLr,3072+16*qb),t0+16*sc+qb,[rw],name="RR") for qb in range(2)]
        for qb in range(2):
            for r in range(4):
                m0_=b.add(v2("v_mul_f32",Ob(qb,0)+r,Ob(qb,0)+r,248+4*qb+r),t,[rr[qb]],name=f"M"); t+=dt
                m1_=b.add(v2("v_mul_f32",Ob(qb,1)+r,Ob(qb,1)+r,248+4*qb+r),t,[rr[qb]],name=f"M"); t+=dt
                cv=b.add(vcvt(vOut(qb)+r,Ob(qb,0)+r,Ob(qb,1)+r),t,[m0_,m1_],name="OC"); t+=dt
                st_=b.add(I(f"buffer_store_dword v{vOut(qb)+r}, v0, s[{sO}:{sO+3}], s{sO0 if qb==0 else sO1} offen offset:{r*256}{STF}","vst",V(vOut(qb)+r)+V(0)+S(sO,4)+S(sO0 if qb==0 else sO1),[],cost=8),t,[cv],name="ST")
                if r==3: sts.append(st_)
    for qb in range(2 if not sts else 0):
        cv=[]
        for db in range(2):
            od=[odeps[(qb,db)]] if odeps else []
            for p2 in range(2):
                r=Ob(qb,db)+2*p2; R=vR0 if qb==0 else vR1
                x,dp=scale_op(r,qb); m0_=b.add(x,t,dp+od,name=f"M{qb}{db}{2*p2}"); t+=dt
                x,dp=scale_op(r+1,qb); m1_=b.add(x,t,dp+od,name=f"M{qb}{db}{2*p2+1}"); t+=dt
                muls+=[m0_,m1_]
                cv.append(b.add(vcvt(vOut(qb)+2*db+p2,r,r+1),t,[m0_,m1_]+prev.get("S",[]),name=f"OC{qb}{db}{p2}")); t+=dt
        fl=STF if not (tg.startswith("t") and "st0" in OPT) else ("" if OPT["st0"]=="none" else " "+OPT["st0"].replace("+"," "))
        sts.append(b.add(vst(vOut(qb),vOst,sO,sO0 if qb==0 else sO1,fl),t,cv+prev.get("A",[]),name=f"ST{qb}"+tg)); sts[-1].ins.cost=OPT.get("stc",8); sts[-1].mingap=OPT.get("stg",3)
    e1=b.adds(salu(f"s_add_u32 s{sO0}, s{sO0}, 8192",S(sO0),S(sO0)+[SCC]),t+1,[sts[0]]+list(scc),name="o0+")
    e2=b.adds(salu(f"s_add_u32 s{sO1}, s{sO1}, 8192",S(sO1),S(sO1)+[SCC]),t+2,[sts[1],e1],name="o1+")
    return {"L":[rc,x1,x2],"M":muls,"S":sts,"A":[e2]}

def iter_parts(b, i, par, cur, nxt, pv, ep, dodma, last_bar=True, loopctl=None, baroff=0, Ncustom=None, ctx=None):
    ctx=ctx or {}
    base=len(b.bb)
    def qk(n):
        f,h,kb,qb=chain_info(n)
        return [qkm(vS(n),aK(kb,ds),vQ(qb,ds),ds==0,f"QK{n}.{ds}") for ds in range(4)]
    so=1-par
    def pvo(qb,db): return [mfma(vO(so,qb,db),aV(0,kp,db),vP(2*kp+qb),(vC0 if OC==1 else None) if kp==0 else vO(so,qb,db),name=f"PVo{qb}{db}.{kp}") for kp in range(4)]
    def one(qb): return [mfma(vLacc,vSEL[qb],vP(2*kp+qb),None if (kp==0 and qb==0) else vLacc,afile='v',name=f"ONE{qb}.{kp}") for kp in range(4)]
    sets=[(1,0),(1,1),(2,0),(2,1),(3,0),(3,1)]
    def pvx(s,db):
        j,qb=sets[s]
        return [mfma(vO(so,qb,db),aV(j,kp,db),vRing(s,kp),vO(so,qb,db),name=f"PVx{s}{db}.{kp}") for kp in range(4)]
    N=[("pvo",0,0),("pvo",0,1),("one",0),("pvo",1,0),("pvo",1,1),("one",1)]+[("pvx",s,db) for s in range(6) for db in range(2)]
    if Ncustom: N=[("cus",x) for x in range(18)]
    order=[N[0],N[1]]
    for n in range(16): order+=[("qk",n),N[n+2]]
    if ctx.get("eager"): order[-3],order[-2]=order[-2],order[-3]
    fk=OPT.get("fake",0) if (cur and nxt and pv and ep and not Ncustom) else 0
    if fk:
        order=[]; n=0; x=0
        while x<18 or n<16:
            order+=N[x:x+fk]; x+=fk
            order+=[("qk",m) for m in range(n,min(n+fk,16))]; n+=fk
    G={}; pos={}
    for key in order:
        if key[0]=="qk":
            n=key[1]
            if n>=14 and not nxt and cur and ctx.get("eager"):
                key=("eone",n-14); g=[mfma(vLacc,vSEL[n-14],vP(2*kp+n-14),None if (kp==0 and n==14) else vLacc,afile='v',name=f"eONE{n-14}.{kp}") for kp in range(4)]
            elif not (nxt if n>=14 else cur): continue
            else: g=qk(n)
        elif key[0]=="cus":
            g=Ncustom(key[1])
            if not g: continue
        else:
            if not pv: continue
            g={"pvo":pvo,"one":one,"pvx":pvx}[key[0]](*key[1:])
        if fk and key[0]!="qk" and OPT.get("fakeacc",1):
            d=vO(so,0,0)+4*((N.index(key)//fk)%4)
            for m in g:
                t=m.text.split(", "); t[0]=t[0].split(" ")[0]+f" v[{d}:{d+3}]"; t[3]=f"v[{d}:{d+3}]"; m.text=", ".join(t)
        G[key]=g; pos[key]=b.group(g)
        if key[0]=="cus": ctx["placed"](key[1],pos[key])
    if OPT.get("samea") and cur and nxt and pv and ep and not Ncustom:
        def ilv(g0,g1,fixb):
            t0=[m.text for m in g0]; t1=[m.text for m in g1]
            for x in range(4):
                a=t0[x].split(", "); c=t1[x].split(", "); c[1]=a[1]
                if fixb: c[2]=fixb(c[2])
                t1[x]=", ".join(c)
            seq=[t0[0],t1[0],t0[1],t1[1],t0[2],t1[2],t0[3],t1[3]]
            for m,t in zip(g0+g1,seq): m.text=t
        def otherq(r):
            n=int(r[2:r.index(":")]); n=32+(n-32+16)%32; return f"v[{n}:{n+3}]"
        if "q" in OPT["samea"]:
            for n in range(0,16,2): ilv(G[("qk",n)],G[("qk",n+1)],otherq)
        if "p" in OPT["samea"]:
            def otherr(r):
                n=int(r[2:r.index(":")]); n=(128+(n-128+16)%32) if n>=128 else n^4; return f"v[{n}:{n+3}]"
            for s_ in range(6): ilv(G[("pvx",s_,0)],G[("pvx",s_,1)],otherr)
            for q_ in range(2): ilv(G[("pvo",q_,0)],G[("pvo",q_,1)],otherr)
    nb=len(b.bb)-base
    nom={}; p=0
    for key in order: nom[key]=p; p+=4
    scale=(nb/136.0) if nb else 0
    import bisect
    alias={("qk",14):("eone",0),("qk",15):("eone",1)}
    pts=sorted((nom[k],pos[k if k in pos else alias[k]]) for k in nom if (k in pos or alias.get(k) in pos))
    def P(t):
        j=max(bisect.bisect_right(pts,(t,1<<30))-1,0)
        n0,a0=pts[j]; a1=pts[j+1][1] if j+1<len(pts) else 1<<30
        return min(a0+(t-n0),a1+(t-n0)*1e-3) if t>=n0 else a0+(t-n0)
    def add(ins,prio,deps=(),earliest=0,name=None):
        o=b.add(ins,P(prio),deps,int(P(earliest)) if earliest else base,name); o.nomp=prio; return o
    def adds(ins,prio,deps=(),name=None,earliest=0): return b.adds(ins,P(prio),deps,name,int(P(earliest)) if earliest else base)
    def need(key,k,o): b.need(pos[key]+k,o)
    rel=lambda o:o.nomp
    must_bar=list(ctx.get("must_bar",[]))
    scc=list(ctx.get("scc",[]))
    E={}
    for n in list(range(16))+[-1]:
        if n==15: continue
        if n==-1:
            if not cur: continue
            blk=vS(15); dep=ctx.get("c15",[]); t0=0
        else:
            if ("qk",n) not in G: continue
            blk=vS(n); dep=[G[("qk",n)][3]]; t0=nom[("qk",n)]+6
        for r in range(4):
            E[(n,r)]=add(vexp(blk+r),t0+2*r,dep,name=f"E{n}.{r}")
            if n>=0: E[(n,r)].prio=pos[("qk",n)]+OPT.get("eo",4)+OPT.get("es",2)*r
    if cur:
        for f in range(8):
            qb=f%2; kp=f//2
            war=[G[k][kp] for k in (("pvo",qb,0),("pvo",qb,1),("one",qb)) if k in G]+ctx.get("pwar",{}).get(f,[])
            C=[]
            for h in range(2):
                n=s_block(f,h)
                en = -1 if n==15 else n
                for p2 in range(2):
                    deps=list(war)
                    if f==0 and h==0: t=1+p2; deps+=ctx.get("e14",[])
                    else:
                        deps+=[E[(en,2*p2)],E[(en,2*p2+1)]]; t=rel(E[(en,2*p2+1)])+1
                    c=add(vcvtp(vP(f)+2*h+p2,vS(n)+2*p2,vS(n)+2*p2+1),t,deps,name=f"C{f}.{2*h+p2}")
                    if not (f==0 and h==0): c.prio=E[(en,2*p2+1)].prio+1
                    C.append(c)
                    if ("eone",qb) in G: need(("eone",qb),kp,c)
                    nn=(n+8)%16
                    if ("qk",nn) in G and (n>=14 or n<8): need(("qk",nn),0,c)
            off=PB[par]+f*1024
            if str(f) in str(OPT.get("w32","")).replace("f",""):
                for x in range(4):
                    w=add(dsw32(vPw,vP(f)+x,off+4*x),rel(C[x])+1,[C[x]]+ctx.get("wdep",[]),name=f"W{f}.{x}"); must_bar.append(w)
            elif str(f) in str(OPT.get("w64","")).replace("f",""):
                for x in range(2):
                    w=add(dsw64(vPw,vP(f)+2*x,off+8*x),rel(C[2*x+1])+1,C[2*x:2*x+2]+ctx.get("wdep",[]),name=f"W{f}.{x}"); must_bar.append(w)
            else:
                w=add(dsw128(vPw,vP(f),off),rel(C[3])+1,C+ctx.get("wdep",[]),name=f"W{f}"); must_bar.append(w); w.prio=C[3].prio+1
        for n,ds_ in ctx.get("swar",{}).items():
            for o in ds_: need(("qk",n),0,o)
    if pv:
        for s,(j,qb) in enumerate(sets):
            for k in range(4):
                deps=[G[("pvx",s-2,1)][k]] if s>=2 else []
                t=nom[("pvx",s,0)]-OPT.get("rl",18)+k if s>=2 else s*OPT.get("r0",4)+k
                o=add(dsr128(vRing(s,k),vPr[j],PB[so]+(2*k+qb)*1024),t,deps,name=f"R{s}.{k}")
                need(("pvx",s,0),-1,o); must_bar.append(o)
        lw=add(dsw32(vLw,vLacc,so*512),nom[("one",1)]+8,[G[("one",1)][3]],name="LW"); must_bar.append(lw)
        if ("eone",0) in G:
            need(("eone",0),0,lw)
            must_bar.append(add(dsw32(vLw,vLacc,par*512),0,[G[("eone",1)][3]],name="eLW"))
    if nxt:
        a1=adds(salu(f"s_add_u32 s{sQrs}, s{sQrs}, {QSLOT}",S(sQrs),S(sQrs)+[SCC]),40,scc,name="qr+")
        a2=adds(salu(f"s_cmp_eq_u32 s{sQrs}, {QEND}",S(sQrs),[SCC]),41,[a1],name="qr?")
        a3=adds(salu(f"s_cselect_b32 s{sQrs}, {QBASE}, s{sQrs}",S(sQrs)+[SCC],S(sQrs)),42,[a2],name="qr=")
        scc=[a3]
        upd=add(valu(f"v_add_u32 v{vQrd}, s{sQrs}, v{vQrd0}",S(sQrs)+V(vQrd0),V(vQrd)),80,[a3]+ctx.get("rqprev",[]),name="qupd")
        for qb in range(2):
            lastn=11 if qb==0 else 13
            for ds in range(4):
                deps=[upd]+([G[("qk",lastn)][ds]] if ("qk",lastn) in G else [])+ctx.get("rqdep",[])
                o=add(dsr128(vQ(qb,ds),vQrd,qb*4160+ds*256),nom[("qk",lastn)]+1+ds,deps,name=f"RQ{qb}.{ds}")
                if qb==0: need(("qk",14),-1,o)
    if dodma:
        d1,b4=qdma_ops(b,P(ctx.get("dmaprio",OPT.get("dp",70))),ctx.get("dmadep",[]),scc=scc); scc=[b4]
    if ep:
        e=epilogue_ops(b,lambda qb,db:vO(par,qb,db),par*512,P(-1),P(OPT.get("ept",24)),OPT.get("epdt10",30)/10*scale,[],None,{},scc,sc=scale); scc=e["A"]
    if "late" in ctx: scc=ctx["late"](scc,must_bar)
    if loopctl:
        LP=112 if OPT.get("rot") else 128
        if "rw2" in OPT:
            w1=adds(salu(f"s_cmp_eq_u32 s{sLoop}, {OPT['rw2']}",S(sLoop),[SCC]),124,scc,name="rw?",earliest=124)
            w2=adds(salu(f"s_cbranch_scc1 {loopctl}_rw\n{loopctl}_rwb:",[SCC],[]),125,[w1],name="rwb",earliest=125); scc=[w2]
        c1=adds(salu(f"s_sub_u32 s{sLoop}, s{sLoop}, 1",S(sLoop),S(sLoop)+[SCC]),LP,scc,name="lp-",earliest=LP)
        c2=adds(salu(f"s_cmp_lg_u32 s{sLoop}, 0",S(sLoop),[SCC]),LP+1,[c1],name="lp?",earliest=LP+1)
        b.tail=[I(f"s_cbranch_scc1 {loopctl}","branch",[SCC])]
    b.slots.discard(base+nb-1)
    if last_bar: b.barrier(base+nb-1-baroff,must_bar,keep_dma=2*(D-2),all_ds=1)

def iteration(i, par, cur, nxt, pv, ep, dodma, prefix, log=None, **kw):
    b=Bld(); iter_parts(b,i,par,cur,nxt,pv,ep,dodma,**kw); return b.run(prefix,log)

def drain(i,prefix,log):
    b=Bld(); so=(i-1)%2; par=i%2
    ring=[128,144,64,80,32,48]; last={}
    for qb in range(2):
        for j in range(4):
            s_=qb*3+j-1
            for db in range(2):
                d=vO(so,qb,db)
                g=[mfma(d,aV(j,kp,db),vP(2*kp+qb) if j==0 else ring[s_]+4*kp,(vC0 if OC==1 else None) if (j==0 and kp==0) else d,name=f"PV{qb}{j}{db}.{kp}") for kp in range(4)]
                p=b.group(g); last[(qb,db)]=g[3]
                if j and db==0:
                    for k in range(4): b.need(p-1,b.add(dsr128(ring[s_]+4*k,vPr[j],PB[so]+(2*k+qb)*1024),s_*2+k/2,name=f"R{s_}.{k}"))
    e=epilogue_ops(b,lambda qb,db:vO(par,qb,db),par*512,-1,10,0.7,[],None,{},[],sc=0.5)
    epilogue_ops(b,lambda qb,db:vO(so,qb,db),so*512,20,34,0.7,[],last,e,e["A"],sc=0.3,tg="z")
    return b.run(prefix,log)

vOs=[80,112][:T-LAG-1]+[vO(T%2,0,0)]+[200,216,232][:LAG-1]+[vO(1-T%2,0,0)]
vLs=lambda t:248+t
sKo=64
sVm=72
vKA,vVA,vTB,vTD=255,0,192,15
def kdma_units(c):
    u=[]
    for pr in range(4):
        for n in range(2):
            d=dma(vQdma,sK,45,n*1024); d.tag=f"K{c}"
            u.append(([salu(f"s_add_u32 m0, s54, {(pr//2)*4160+(pr%2)*2080}",S(54),[M0,SCC]), salu(f"s_add_u32 s45, s44, {c*8192+pr*2048}",S(44),S(45)+[SCC])] if n==0 else [])+[d])
    return u
def qdma_units(t):
    d0=dma(vQdma,sQ,46,0); d1=dma(vQdma,sQ,46,1024); d0.tag=d1.tag=f"Q{t}"
    return [[salu(f"s_add_u32 m0, s{sWoff}, {(t%NQ)*QSLOT}",S(sWoff),[M0,SCC]),salu(f"s_mov_b32 s46, {t*8192}",[],S(46)),d0],[d1]]
V3=OPT.get("v3",1) and T<=5
XB=QBASE+5*QSLOT
vbuf=lambda h:([VBASE,VBASE+16384,XB][h%3] if V3 else VBASE+(h%2)*16384)
def vdma_half(h):
    u=[]
    for n in range(4):
        d=dma(vVA,sV,sKo+h,n*1024); d.tag=f"V{h//2}"
        u.append(([salu(f"s_add_u32 m0, s{sVm}, {vbuf(h)}",S(sVm),[M0,SCC])] if n==0 else [])+[d])
    return u
def vdma_units(c): return vdma_half(2*c)+vdma_half(2*c+1)
flat=lambda u:[x for y in u for x in y]
STREAM=kdma_units(0)+qdma_units(0)+qdma_units(1)+qdma_units(2)+vdma_units(0)+flat([qdma_units(t) for t in range(3,T)])+kdma_units(1)+(vdma_half(2) if V3 else [])
NPRO=OPT.get("npro",20)
def kread(c):
    o=[dsr128(aK(2*c+h,ds),vKA,h*4160+ds*256,file='a') for h in range(2) for ds in range(4)]
    for x in o: x.meta["tags"]={f"K{c}"}
    return o
aSC=lambda lo,half:aV(lo,3,half)
vKT=[192,196,vLrd]
def rewarm(lbl): return [raw(f"s_mov_b32 s55, {lbl}-L_pc"), I("buffer_load_dword v253, v254, s[56:59], s55 offen","vld",V(254),V(253))]
def vscale():
    o=[]; t=232; m=[236,237]; u=238
    for db in range(2):
        a=aV(0,0,db)
        o+=[vop(f"v_accvgpr_read_b32 v{t+r}, a{a+r}",A(a+r),V(t+r)) for r in range(4)]
        o+=[vop(f"v_max3_f32 v{m[db]}, |v{t}|, |v{t+1}|, |v{t+2}|",V(t,3),V(m[db])), vop(f"v_max_f32 v{m[db]}, v{m[db]}, |v{t+3}|",V(m[db])+V(t+3),V(m[db]))]
        for w_ in(32,16):
            o+=[vop(f"v_mov_b32 v{u}, v{m[db]}",V(m[db]),V(u)), valu(f"v_permlane{w_}_swap_b32 v{m[db]}, v{u}",V(m[db])+V(u),V(m[db])+V(u),"perm"), v2("v_max_f32",m[db],m[db],u)]
    o.append(v2("v_min_f32",u,m[0],m[1]))
    for r in(8,4,2,1):
        x=vop(f"v_min_f32_dpp v{u}, v{u}, v{u} row_ror:{r} row_mask:0xf bank_mask:0xf",V(u),V(u)); x.meta["dpp"]=1; o.append(x)
    o+=[vop(f"v_min_f32 v{u}, {(127+60)<<23:#x}, v{u}",V(u),V(u)), vop(f"v_and_b32 v{u}, 0x7f800000, v{u}",V(u),V(u))]
    o+=[vop(f"v_add_u32 v{vC0+r}, {(OPT.get('oce',2)<<23)+0x400000:#x}, v{u}",V(u),V(vC0+r)) for r in range(4)]
    return o
def touch_ins(): return I(f"buffer_load_dword v253, v254, s[{sO}:{sO+3}], 0 offen nt","vld",V(254)+S(sO,4),V(253))
def ksops(c,j):
    a=aK(2*c+j//8,(j//2)%4)+2*(j%2); d=vKT[j%3]
    return [vcvt(d,d,d+1),vcvt(d+1,d+2,d+3)]+[vop(f"v_accvgpr_write_b32 a{a+x}, v{d+x}",V(d+x),A(a+x)) for x in range(2)]
def kscale(c,extra=None):
    o=[]
    for j in range(16):
        a=aK(2*c+j//8,(j//2)%4); d=vKT[j%3]; x=ksops(c,j-2) if j>=2 else [nop(2),None,nop(2),None]
        if j%2==0: o.append(waitslot())
        o+=[mfma(d,aSC(0,j%2),a,None,bfile='a',name="KSh")]+(extra(j) if extra else [])+x[:2]+[mfma(d,aSC(1,j%2),a,d,bfile='a',name="KSl")]+x[2:]
    return [i for i in o if i is not None]
def startup(prefix,log,off=0):
    b=Bld(); NS=4*T
    Sb=lambda n:64+(n%4)*4
    OWN=OPT.get("own",1) and T-LAG<=2
    Pw=lambda k,qb:96+((k%(4 if OWN else 2))*2+qb)*4
    ownk=lambda k:OWN and k<NS-OPT.get("ownskip",2)
    ent=lambda k,qb:PB[T%2 if (LAG>3 and 3*T<=k<NS-LAG) else 1-T%2]+((k%4)*2+qb)*1024
    assert LAG<=3 or all(k%4 for k in range(3*T,NS-LAG))
    pvstep=lambda k:k+(LAG0 if k<3*T else LAG)
    pvof={pvstep(k):k for k in range(NS)}
    QK={}; PV={}; ONE={}; start={}; end={}; posQ={}; posP={}; posO={}
    def pvg(k,qb,db):
        c,t=divmod(k,T); d=vOs[t]+qb*8+db*4
        return [mfma(d,aV(j,c,db),Pw(k,qb) if (ownk(k) and j==0) else vRing(2*k+qb,j),(vC0 if (OC==1 and t==T-1) else None) if (c==0 and j==0) else d,name=f"PV{k}.{qb}{db}.{j}") for j in range(4)]
    def oneg(k): return [mfma(vLacc,vSEL[0],Pw(k,0),None,afile='v',name=f"ONE{k}.0"),mfma(vLacc,vSEL[1],Pw(k,1),vLacc,afile='v',name=f"ONE{k}.1")]
    for k in range(NS):
        c,t=divmod(k,T)
        start[k]=len(b.bb)
        for ch in range(4):
            kb=2*c+ch%2; qb=ch//2; n=4*k+ch
            QK[(k,ch)]=[qkm(Sb(n),aK(kb,ds),vQ(qb,ds),ds==0,f"QK{k}.{ch}.{ds}") for ds in range(4)]
            posQ[(k,ch)]=b.group(QK[(k,ch)])
            if k in pvof:
                key=(pvof[k],ch//2,ch%2); PV[key]=pvg(*key); posP[key]=b.group(PV[key])
            if ch==2 and k>=1: ONE[k-1]=oneg(k-1); posO[k-1]=b.group(ONE[k-1])
        if k==NS-1:
            for n in(14,15):
                f,h,kb,qb=chain_info(n)
                QK[("pre",n)]=[qkm(vS(n),aK(kb,ds),vQ(qb,ds),ds==0,f"QKp{n}.{ds}") for ds in range(4)]
                posQ[("pre",n)]=b.group(QK[("pre",n)])
        end[k]=len(b.bb)-1
    cus={}
    x=0
    for k in range(NS-LAG,NS):
        for qb in range(2):
            for db in range(2):
                PV[(k,qb,db)]=pvg(k,qb,db); cus[x]=("pv",(k,qb,db)); x+=1
                if x==3: ONE[NS-1]=oneg(NS-1); cus[x]=("one",NS-1); x+=1
    nskip=18-len(cus); hi=OPT.get("skiphi",14)
    skip=set(hi-2*j for j in range(nskip)); slots_=[y for y in range(18) if y not in skip]
    cus={slots_[y]:v for y,v in cus.items()}
    def Ncustom(x):
        if x not in cus: return None
        return PV[cus[x][1]] if cus[x][0]=="pv" else ONE[cus[x][1]]
    def placed(x,p):
        (posP if cus[x][0]=="pv" else posO)[cus[x][1]]=p
    BAR={}; W={}; C={}; LA={}; LW={}; RQ={}; TR={}; E={}
    bdeps={k:[] for k in range(NS)}; btags={k:set() for k in range(NS)}; bneed={k:[] for k in range(NS)}
    for k in range(NS): BAR[k]=b.barrier(end[k]-off,[],tags=btags[k],need=set())
    def bneeds(k,o): BAR[k].deps.append(o); BAR[k].ins.meta["need"].add(id(o.ins))
    for k in range(1,NS): BAR[k].deps.append(BAR[k-1])
    state={"scc":[],"dma":[],"ep":{}}
    def softmax(k):
        c,t=divmod(k,T)
        for ch in range(4):
            n=4*k+ch; qb=ch//2; h=ch%2
            for r in range(4): E[(k,ch,r)]=b.add(vexp(Sb(n)+r),posQ[(k,ch)]+6+2*r,[QK[(k,ch)][3]],name=f"E{k}.{ch}.{r}")
            for p2 in range(2):
                deps=[E[(k,ch,2*p2)],E[(k,ch,2*p2+1)]]
                if OWN:
                    if k>=4: deps+=[ONE[k-4][qb],W[(k-4,qb)],PV[(k-4,qb,0)][0],PV[(k-4,qb,1)][0]]
                elif k>=2: deps+=[ONE[k-2][qb],W[(k-2,qb)]]
                o=b.add(vcvtp(Pw(k,qb)+2*h+p2,Sb(n)+2*p2,Sb(n)+2*p2+1),E[(k,ch,2*p2+1)].prio+1,deps,name=f"C{k}.{ch}.{p2}")
                C[(k,ch,p2)]=o
                if k+1<NS: b.need(posQ[(k+1,ch)],o)
            if h==1:
                W[(k,qb)]=b.add(dsw128(vPw,Pw(k,qb),ent(k,qb)),C[(k,ch,1)].prio+1,[C[(k,cc,pp)] for cc in(ch-1,ch) for pp in range(2)]+([BAR[pvstep(k-4)]] if (k>=4 and pvstep(k-4)<k and ent(k,0)==ent(k-4,0)) else [])+([BAR[k-3]] if k>NS-LAG else []),name=f"W{k}.{qb}")
                if k+1<NS: bneeds(k+1,W[(k,qb)])
    for k in range(NS): softmax(k)
    def one_ops(k):
        c,t=divmod(k,T)
        for cc in range(4):
            for pp in range(2): b.need(posO[k],C[(k,cc,pp)])
        if k>=1: b.need(posO[k],LA[k-1])
        ins=valu(f"v_mov_b32 v{vLs(t)}, v{vLacc}",V(vLacc),V(vLs(t))) if c==0 else v2("v_add_f32",vLs(t),vLs(t),vLacc)
        LA[k]=b.add(ins,posO[k]+6,[ONE[k][1]],name=f"LA{k}")
        if c==3:
            LW[t]=b.add(dsw32(vLw,vLs(t),((T-1)%2)*512 if t==T-1 else 1024+t*512),posO[k]+8,[LA[k]],name=f"LW{t}")
            if k+1<NS: bneeds(k+1,LW[t])
    for k in range(NS-1): one_ops(k)
    def preads(k):
        for qb in range(2):
            for j in range(1 if ownk(k) else 0,4):
                deps=[BAR[k+1]]+([PV[(k-1,qb,1)][j]] if k>=1 else [])
                o=b.add(dsr128(vRing(2*k+qb,j),vPw if j==0 else vPr[j],ent(k,qb)),posP[(k,qb,0)]-OPT.get('rlead',12)+j,deps,name=f"R{k}.{qb}.{j}")
                b.need(posP[(k,qb,0)]-1,o); state.setdefault("R",[]).append(o)
    for k in range(NS-LAG): preads(k)
    for k in range(NS+1):
        t=k%T if k<NS else T%NQ
        for qb in range(2):
            for ds in range(4):
                deps=[QK[(k-1,2*qb+1)][ds]] if k>=1 else []
                if 2<=k<T: deps.append(BAR[k-2]); btags[k-2].add(f"Q{k}")
                if k==NS: deps.append(BAR[NS-2]); btags[NS-2].add(f"Q{T}")
                pr=(posQ[(k-1,2*qb+1)]+1+ds) if k>=1 else 14+4*qb+ds
                o=b.add(dsr128(vQ(qb,ds),vQrd,t*QSLOT+qb*4160+ds*256),pr,deps,name=f"RQ{k}.{qb}.{ds}"); RQ[(k,qb,ds)]=o
                if k<NS: b.need(posQ[(k,2*qb)]-1,o)
                elif qb==0: b.need(posQ[("pre",14)]-1,o)
    btags[NS-1].add(f"Q{T+1}")
    state["chain"]=[]; hard={0,1}
    def issue(units,where,deps,nm):
        for u,(k,fr) in zip(units,where):
            tt=int(start[k]+fr*(end[k]-start[k])); prev=list(deps)+state["chain"]+state["scc"]
            cap=OPT.get("cap0") if nm=="D" else OPT.get("cap1")
            if cap: u=[wait(vm=cap)]+list(u)
            nd=[x.kind for x in u].index("dma")
            for x,ins in enumerate(u):
                if ins.kind in("salu","wait"): o=b.adds(ins,tt+x-nd-3,prev,name="s"+nm,earliest=tt+x-nd-3 if x<nd else 0)
                else: o=b.add(ins,tt,prev,earliest=tt,name=nm); ins.cost=OPT.get("sdmac",8)
                prev=[o]
            state["chain"]=prev; state["scc"]=prev
            if k in hard: BAR[k].deps.append(prev[0])
    def spread(n,k0,per):
        w=[]; k=k0
        while len(w)<n:
            m=min(per,n-len(w)); w+=[(k,(x+0.5)/per) for x in range(m)]; k+=1
        return w
    kchain=[]
    def extra(j):
        o=flat([([wait(vm=OPT["cap0"])] if OPT.get("cap0") else [])+u for u in STREAM[12+(NPRO-12)*j//16:12+(NPRO-12)*(j+1)//16]])
        if j==9: o+=[waitslot(),bar(tags={"Q0","Q1"},need=set())]
        if 10<=j<14: o+=[RQ[(0,(j-10)//2,2*(j%2)+x)].ins for x in range(2)]
        return o
    for qb in range(2):
        for ds in range(4): o=RQ[(0,qb,ds)]; b.ops.remove(o); o.done=True; o.gap=-1
    ks0=b.add([waitslot()]+kread(0)+kscale(0,extra)+[waitslot()],0,[],name="KS0"); b.need(0,ks0)
    rest=STREAM[NPRO:]
    n0=OPT.get("n0",4); n1=OPT.get("n1",10)
    w=[(0,(x+0.5)/n0) for x in range(n0)]+[(1,OPT.get('f1',30)/100+0.5*x/n1) for x in range(n1)]
    w=w[:len(rest)]; w+=spread(len(rest)-len(w),2,2)
    issue(rest,w,[ks0],"D")
    lastk=w[-1][0]
    for c in range(4):
        s1=pvstep(c*T)-1
        btags[s1-1].add(f"V{c}")
        p0=start[c*T]
        if c==0: ks=ks0
        else:
            kr=[b.add(ins,p0-14+x,kchain,earliest=p0-16,name=f"KR{c}") for x,ins in enumerate(kread(c))]
            if OPT.get("kin",1) and c<3:
                ku=kdma_units(c+1); k0=OPT.get("kin0",0)
                ks=b.add([wait(lg=0)]+kscale(c,lambda j:ku[(j-k0)//OPT.get("kst",2)] if (j>=k0 and (j-k0)%OPT.get("kst",2)==0 and (j-k0)//OPT.get("kst",2)<8) else []),p0,kr+state["TR"]+state["chain"]+state["scc"],name=f"KS{c}")
                state["chain"]=[ks]; state["scc"]=[ks]
            else: ks=b.add(kscale(c),p0,kr+state["TR"],name=f"KS{c}")
            b.need(p0,ks)
        aw=[]
        for j in(14,15):
            x=ksops(c,j); prev=[ks]
            for n,ins in enumerate(x): o=b.add(ins,p0-8+j-14+n*0.1,prev,name="Kx"); prev=[o]; aw.append(o); b.need(posQ[(c*T,1)],o)
        state["KS"]=aw
        if OPT.get("rw1",-1)==c:
            x=rewarm("L_merged"); x[0].kind="salu"
            o0=b.adds(x[0],p0-2,[ks],name="sRW"); state["chain"]=[b.add(x[1],p0,[o0]+state["chain"],name="RW")]
        if OPT.get("touch") and OPT.get("tpos")==c: state["chain"]=[b.add(touch_ins(),p0,[ks]+state["chain"],name="TOUCH")]
        if 1<=c<3 and not OPT.get("kin",1): issue(kdma_units(c+1),spread(8,c*T,OPT.get("kper",6)),[ks],f"KD{c+1}")
        kchain=state["chain"]
        if V3 and OPT.get("vlate",1) and 1<=c<3:
            issue(vdma_half(2*c+2),[(c*T+int(f),f-int(f)) for f in [OPT.get("vl10",8)/10+(x+0.5)/OPT.get("vlper",4) for x in range(4)]],[state["vrel"]],f"VA{c+1}")
        state["TR"]=[]
        for j in range(4):
            r=vPw if j==0 else vPr[j]
            tb=b.add(vop(f"v_add_u32 v{vTB+j}, s{50+j}, v{vTD}",S(50+j)+V(vTD),V(vTB+j)),start[s1-1]+j,state.get("KS",[]),earliest=start[s1-1],name="TB")
            for db in range(2):
                for hf in range(2):
                    a=aV(j,c,db)+2*hf
                    o=b.add(I(f"ds_read_b64_tr_b16 a[{a}:{a+1}], v{vTB+j} offset:{vbuf(2*c+hf)-XB+8*db}","dsr",V(vTB+j),A(a,2)),start[s1]+(j*4+db*2+hf)*OPT.get("trs",10)/10-OPT.get("tro",0),[BAR[s1-1],tb],name=f"TR{c}")
                    b.need(posP[(c*T,0,0)]-1,o); state["TR"].append(o)
                    if not (OPT.get("vbar") and c<3): bneeds(s1,o)
        vrel=BAR[s1]; vk=s1+1; vf=0
        if OPT.get("vbar") and c<3:
            vrel=b.barrier(start[s1]+OPT["vbar"],[BAR[s1-1]]+state["TR"],keep=True,need={id(o.ins) for o in state["TR"]}); BAR[s1].deps.append(vrel)
            vk=s1; vf=(OPT["vbar"]+2)/(end[s1]-start[s1])
        if c==0 and OC==1 and "ocfix" not in OPT:
            assert LAG<=3 and T-LAG<=2
            prev=list(state["TR"][:4]); tt=start[s1+1]+2
            for ins in vscale(): o=b.add(ins,tt,prev,name="VS"); prev=[o]; tt+=2
            b.need(posP[(T-1,0,0)],o)
        if c<3:
            per=OPT.get("v1per",6) if c==0 else OPT.get("vper",6)
            k0=max(vk,lastk,OPT.get("v1",0)) if c==0 else vk
            w=[(k0+int(f),f-int(f)) for f in [(vf if k0==vk else 0)+(x+0.5)/per for x in range(8)]]
            if V3:
                issue(vdma_half(2*c+3),w[:4],[vrel],f"VD{c+1}")
                state["vrel"]=vrel
                if c<2 and not OPT.get("vlate",1): issue(vdma_half(2*c+4),[(k0+int(f),f-int(f)) for f in [OPT.get("va10",10)/10+(x+0.5)/per for x in range(4)]],[vrel],f"VD{c+2}")
            else: issue(vdma_units(c+1),w,[vrel],f"VD{c+1}")
        if c==2: state["xfree"]=[BAR[s1]]
    state["ep"]={"L":state["KS"],"S":state["TR"]}
    for x in range(D):
        t=T+x; k=min(max(3*T+1+t-NQ,3*T-1+x*OPT.get("qstep",1)+OPT.get("q0",0)),NS-1)
        issue(qdma_units(t),[(k,0.25),(k,0.6)],[BAR[3*T+t-NQ]] if t>=NQ else state["xfree"],"QD")
    chain=state["chain"]
    def ep(t,t0,tm,dt,scc):
        k=3*T+t
        od={(qb,db):PV[(k,qb,db)][3] for qb in range(2) for db in range(2)}
        e=epilogue_ops(b,lambda qb,db:vOs[t]+qb*8+db*4,1024+t*512,t0,tm,dt,[BAR[k+1]],od,state["ep"],scc,sc=0.5,tg=f"t{t}",OC=0)
        state["ep"]=e; return e
    eps={}; BARX=[]
    for t in range(T-LAG-1+0):
        k=3*T+t+LAG
        eps[t]=ep(t,start[k]+8,start[k]+20,1.3,state["scc"]); state["scc"]=eps[t]["A"]
    if T-LAG>=2:
        for o in eps[0]["M"]+eps[0]["S"]: b.need(posQ[("pre",14)],o)
    e14=[b.add(vexp(vS(14)+r),posQ[("pre",14)]+6+2*r,[QK[("pre",14)][3]],name=f"Ep{r}") for r in range(4)]
    def late(scc,must_bar):
        BAR[NS]=b.barrier(end[NS-1]+1+OPT.get("barx",23)+3-off,[BAR[NS-1]],keep=True,need=set())
        for qb in range(2): bneeds(NS,W[(NS-1,qb)])
        BARX.append(BAR[NS])
        state["R"]=[]
        for k in range(NS-LAG,NS): preads(k)
        must_bar+=state["R"]
        one_ops(NS-1); must_bar.append(LW[T-1])
        for t in range(T-LAG-1,T-1):
            k=3*T+t
            p=posP[(k,0,0)] if k>=NS-LAG else end[NS-1]-8
            p+=OPT.get("epd",0)*(t-(T-LAG-1))
            eps[t]=ep(t,p-6,p+10,OPT.get("epdt0",12)/10,scc); scc=eps[t]["A"]
        return scc
    last=NS-1
    ctx=dict(dmaprio=5,placed=placed,late=late,scc=state["scc"],c15=[QK[("pre",15)][3]],e14=e14,dmadep=chain+[BAR[last]],
             must_bar=[W[(last,0)],W[(last,1)]],wdep=[BAR[last]],rqdep=[BAR[last]],rqprev=[RQ[(NS,qb,ds)] for qb in range(2) for ds in range(4)],
             pwar={f:[ONE[NS-4+f//2][f%2],W[(NS-4+f//2,f%2)]]+([PV[(NS-4+f//2,f%2,0)][0],PV[(NS-4+f//2,f%2,1)][0]] if ownk(NS-4+f//2) else []) for f in range(8)} if OWN else
                  {0:[ONE[last-1][0],W[(last-1,0)]],1:[ONE[last-1][1],W[(last-1,1)]],2:[ONE[last][0],W[(last,0)]],3:[ONE[last][1],W[(last,1)]],
                   **({f:eps[1]["M"]+eps[1]["S"] for f in range(4,8)} if T-LAG>=3 else {})},
             swar={n:[C[(last,n,pp)] for pp in range(2)] for n in range(4)})
    iter_parts(b,T,T%2,1,1,0,0,1,Ncustom=Ncustom,ctx=ctx,baroff=off)
    b.sops[-1].deps.append(BAR[NS])
    for ds in range(4): b.need(end[last]+1+8-1,RQ[(NS,1,ds)])
    res=b.run(prefix,log,overdue=OPT.get("od",3))
    if OPT["stamp"]==2 and not OPT.get("ps") and "lg0" not in OPT:
        p0=OPT.get('p0'); pts=[2,3,6,9,13,16,20,23,27] if p0 is None else list(range(p0,p0+9)); o=[]
        for x in res:
            o.append(x)
            for n,k in enumerate(pts):
                if x is BAR[k].ins: o.append(raw(f"{'s_memtime' if OPT.get('cyc') else 's_memrealtime'} s[{78+2*n}:{79+2*n}]"))
        res=o
        if OPT.get("fine"):
            o=[]; on=False; n=0; x_=0
            for x in res:
                if x.kind=="raw" and x.text.startswith("s_mem"): continue
                o.append(x)
                if x is BAR[NS-1].ins: on=True; o.append(raw("s_memtime s[78:79]")); n=1
                if on and x.kind=="mfma":
                    x_+=1
                    if x_%OPT["fine"]==0 and n<9: o.append(raw(f"s_memtime s[{78+2*n}:{79+2*n}]")); n+=1
            res=o
    n=[n for n,x in enumerate(res) if x is BAR[NS-3].ins][0]
    res=res[:n+1]+[label(f"L_merged{off if off else ''}")]+res[n+1:]
    if "spinbar" in OPT:
        n=[n for n,x in enumerate(res) if x is BAR[OPT["spinbar"]].ins][0]
        res=res[:n+1]+stamp(1)+res[n+1:]
    if "spinfrom" in OPT:
        n=[n for n,x in enumerate(res) if x is BAR[OPT["spinfrom"]].ins][0]
        res=res[:n+1]+stamp(0)+res[n+1:]
    if OPT.get("seg"):
        idx=[n for n,x in enumerate(res) if x.kind=="bar"]
        print("step est:",[estimate(res[a:z]) for a,z in zip(idx,idx[1:])],file=sys.stderr)
    return res

class Seq:
    def __init__(s,prefix=()): s.o=list(prefix); s.n0=len(s.o)
    def __call__(s,*ins,slot=True):
        for i in ins:
            if slot and i.kind not in("label","comment","salu","wait","branch","raw","nop"): s.o.append(waitslot())
            k=hazard_need(s.o,i)
            if k>0: s.o.append(nop(k))
            s.o.append(i)
    def out(s): return s.o[s.n0:]

def vop(t,rd,wr): return valu(t,rd,wr)
def prologue():
    q=Seq()
    q(salu("s_cmp_ge_u32 s2, 256",S(2),[SCC]), I("s_cbranch_scc1 L_end","branch",[SCC]))
    if OPT["stamp"]: q(raw("s_memtime s[60:61]"),raw("s_memrealtime s[62:63]"),raw(f"s_load_dwordx2 s[{sDbg}:{sDbg+1}], s[0:1], 32"))
    q(raw("s_load_dwordx4 s[36:39], s[0:1], 0"), raw("s_load_dwordx4 s[40:43], s[0:1], 16"))
    L,Q_,G_,T1,T2,T3=200,201,202,203,204,205
    if OPT.get("warm",2):
        q(raw("s_getpc_b64 s[56:57]"), label("L_pc"), raw("s_and_b32 s57, s57, 0xffff"), raw("s_mov_b32 s58, L_end-L_pc"), raw("s_mov_b32 s59, 0x20000"))
        q(vop(f"v_lshlrev_b32 v{T2}, 7, v0",V(0),V(T2)))
    def warm(ks):
        for k in ks:
            q(raw(f"s_mov_b32 s55, {k*32768}"))
            q(I(f"buffer_load_dword v{232+k}, v{T2}, s[56:59], s55 offen","vld",V(T2),V(232+k)),slot=False)
    nw=OPT.get("warm",2); we=OPT.get("wearly",1)
    warm(range(min(we,nw)))
    if "rw1" in OPT or "rw2" in OPT: q(vop(f"v_mov_b32 v254, v{T2}",V(T2),V(254)))
    q(vop(f"v_and_b32 v{L}, 63, v0",V(0),V(L)), vop(f"v_lshrrev_b32 v{T1}, 6, v0",V(0),V(T1)))
    q(I(f"v_readfirstlane_b32 s{sW}, v{T1}","valu",V(T1),S(sW),meta={"rfl":1}))
    q(vop(f"v_and_b32 v{Q_}, 15, v{L}",V(L),V(Q_)), vop(f"v_lshrrev_b32 v{G_}, 4, v{L}",V(L),V(G_)))
    R_,C_=208,209
    q(vop(f"v_bfe_u32 v{R_}, v{L}, 2, 2",V(L),V(R_)), vop(f"v_and_b32 v{C_}, 3, v{L}",V(L),V(C_)))
    if OPT.get("remap",0):
        q(salu("s_and_b32 s3, s2, 7",S(2),S(3)), salu("s_lshl_b32 s3, s3, 5",S(3),S(3)), salu("s_lshr_b32 s75, s2, 3",S(2),S(75)), salu("s_or_b32 s75, s75, s3",S(75)+S(3),S(75)))
    hd=75 if OPT.get("remap",0) else 2
    q(salu(f"s_mul_i32 s3, s{hd}, {QBYTES}",S(hd),S(3)), salu(f"s_lshl_b32 s31, s{hd}, 17",S(hd),S(31)))
    q(salu(f"s_lshl_b32 s46, s{sW}, 11",S(sW),S(46)), salu(f"s_lshl_b32 s{sKo}, s{sW}, 15",S(sW),S(sKo)))
    q(vop(f"v_lshlrev_b32 v{vQdma}, 8, v{R_}",V(R_),V(vQdma)), vop(f"v_lshl_add_u32 v{vQdma}, v{G_}, 6, v{vQdma}",V(G_)+V(vQdma),V(vQdma)),
      vop(f"v_lshl_add_u32 v{vQdma}, v{C_}, 4, v{vQdma}",V(C_)+V(vQdma),V(vQdma)), vop(f"v_add_u32 v{vQdma}, s46, v{vQdma}",S(46)+V(vQdma),V(vQdma)))
    q(salu(f"s_mul_i32 s47, s{sW}, 2080",S(sW),S(47)), salu(f"s_add_u32 s{sWoff}, s47, {QBASE}",S(47),S(sWoff)))
    q(salu(f"s_sub_u32 s44, s{sKo}, s46",S(sKo)+S(46),S(44)), salu(f"s_mul_i32 s54, s{sW}, {QSLOT}",S(sW),S(54)), salu(f"s_add_u32 s54, s54, {KBASE}",S(54),S(54)))
    for srd,nb in((sQ,QBYTES),(sK,KBYTES),(sV,KBYTES),(sO,QBYTES)):
        q(salu(f"s_mov_b32 s{srd+2}, {nb}",[],S(srd+2)), salu(f"s_mov_b32 s{srd+3}, 0x20000",[],S(srd+3)))
    q(raw("s_waitcnt lgkmcnt(0)"))
    def base(srd,src,off):
        q(salu(f"s_add_u32 s{srd}, s{src}, s{off}",S(src)+S(off),S(srd)), salu(f"s_addc_u32 s{srd+1}, s{src+1}, 0",S(src+1),S(srd+1)),
          salu(f"s_and_b32 s{srd+1}, s{srd+1}, 0xffff",S(srd+1),S(srd+1)))
    ps=lambda n:[raw(f"s_memrealtime s[{78+2*n}:{79+2*n}]")] if OPT.get("ps") else []
    base(sK,38,31); q(*ps(0),*flat(STREAM[:8]),*ps(1),slot=False)
    base(sQ,36,3); q(*flat(STREAM[8:12]),slot=False)
    warm(range(min(we,nw),nw))
    base(sV,40,31); base(sO,42,3)
    if OPT.get("touch"):
        q(vop(f"v_lshlrev_b32 v{T2}, {OPT.get('tsh',12)}, v0",V(0),V(T2)))
        q(vop(f"v_mov_b32 v254, v{T2}",V(T2),V(254)))
        if not OPT.get("tpos"): q(touch_ins(),slot=False)
    for n in range(1,8): q(salu(f"s_add_u32 s{sKo+n}, s{sKo}, {n*4096}",S(sKo),S(sKo+n)))
    q(salu(f"s_add_u32 s{sT}, s47, {QEND}",S(47),S(sT)), salu(f"s_add_u32 s{sQm0}, s{sWoff}, {((T+D)%NQ)*QSLOT}",S(sWoff),S(sQm0)), salu(f"s_mov_b32 s{sQso}, {(T+D)*8192}",[],S(sQso)))
    q(vop(f"v_lshlrev_b32 v{T1}, 2, v{G_}",V(G_),V(T1)), vop(f"v_xor_b32 v{T1}, v{T1}, v{Q_}",V(T1)+V(Q_),V(T1)),
      vop(f"v_lshlrev_b32 v{T1}, 4, v{T1}",V(T1),V(T1)), vop(f"v_lshl_add_u32 v{vVA}, v{G_}, 8, v{T1}",V(G_)+V(T1),V(vVA)))
    q(salu(f"s_lshl_b32 s{sVm}, s{sW}, 12",S(sW),S(sVm)))
    q(*ps(2))
    q(vop(f"v_lshrrev_b32 v{T1}, 2, v{Q_}",V(Q_),V(T1)), vop(f"v_lshlrev_b32 v{vQrd0}, 10, v{T1}",V(T1),V(vQrd0)),
      vop(f"v_lshrrev_b32 v{T1}, 3, v{Q_}",V(Q_),V(T1)), vop(f"v_lshl_add_u32 v{vQrd0}, v{T1}, 5, v{vQrd0}",V(T1)+V(vQrd0),V(vQrd0)),
      vop(f"v_lshl_add_u32 v{vQrd0}, v{C_}, 6, v{vQrd0}",V(C_)+V(vQrd0),V(vQrd0)), vop(f"v_lshl_add_u32 v{vQrd0}, v{G_}, 4, v{vQrd0}",V(G_)+V(vQrd0),V(vQrd0)))
    q(salu(f"s_mov_b32 s{sQrs}, {QBASE+(T%NQ)*QSLOT}",[],S(sQrs))); q(vop(f"v_add_u32 v{vQrd}, {QBASE}, v{vQrd0}",V(vQrd0),V(vQrd)))
    for j in range(4):
        q(salu(f"s_add_u32 s49, s{sW}, {j}",S(sW),S(49)), salu("s_and_b32 s49, s49, 3",S(49),S(49)), salu(f"s_lshl_b32 s{50+j}, s49, 13",S(49),S(50+j)))
        r=vPw if j==0 else vPr[j]
        q(vop(f"v_lshl_add_u32 v{r}, v{L}, 4, s{50+j}",V(L)+S(50+j),V(r)))
        q(salu(f"s_lshr_b32 s{50+j}, s{50+j}, 1",S(50+j),S(50+j)), salu(f"s_add_u32 s{50+j}, s{50+j}, {XB}",S(50+j),S(50+j)))
    q(salu(f"s_lshl_b32 s49, s{sW}, 6",S(sW),S(49)))
    q(vop(f"v_lshlrev_b32 v{vOst}, 8, v{Q_}",V(Q_),V(vOst)), vop(f"v_lshl_add_u32 v{vOst}, v{G_}, 4, v{vOst}",V(G_)+V(vOst),V(vOst)), vop(f"v_add_u32 v{vOst}, s49, v{vOst}",S(49)+V(vOst),V(vOst)))
    q(vop(f"v_lshrrev_b32 v{T1}, 1, v{G_}",V(G_),V(T1)), vop(f"v_lshl_add_u32 v{T1}, v{T1}, 4, v{Q_}",V(T1)+V(Q_),V(T1)),
      vop(f"v_lshlrev_b32 v{T1}, 4, v{T1}",V(T1),V(T1)), vop(f"v_add_u32 v{vLr}, {LBASE}, v{T1}",V(T1),V(vLr)))
    q(salu(f"s_lshl_b32 s49, s{sW}, 2",S(sW),S(49))); q(vop(f"v_add_u32 v{vLw}, s49, v{vLr}",S(49)+V(vLr),V(vLw)))
    q(vop(f"v_mov_b32 v{vLmax}, 0",[],V(vLmax)), vop(f"v_mov_b32 v{vRmax}, 0",[],V(vRmax)))
    if OC and "ocfix" in OPT:
        for r in range(4): q(vop(f"v_mov_b32 v{vC0+r}, {struct.unpack('<I',struct.pack('<f',OPT['ocfix']/8))[0]:#x}",[],V(vC0+r)))
    if CI not in(0,1,2,4,-1,-2,-4):
        assert max(vOs)+15<vCI or T-LAG<=2 and LAG<=3
        for r in range(4): q(vop(f"v_mov_b32 v{vCI+r}, {struct.unpack('<I',struct.pack('<f',CI))[0]:#x}",[],V(vCI+r)))
    q(vop(f"v_mov_b32 v{T1}, 0x3f803f80",[],V(T1)), vop(f"v_and_b32 v{T2}, {11 if OPT.get('sel2',1) else 8}, v{Q_}",V(Q_),V(T2)))
    for x in range(2):
        q(valu(f"v_cmp_eq_u32 vcc, {8*x}, v{T2}",V(T2),[VCC]))
        for r in range(4): q(valu(f"v_cndmask_b32 v{vSEL[x]+r}, 0, v{T1}, vcc",V(T1)+[VCC],V(vSEL[x]+r)))
    if OPT.get("trunc"): q(salu("s_mov_b32 s74, 0x07060302",[],S(74)))
    q(salu(f"s_mov_b32 s{sO0}, 0",[],S(sO0)), salu(f"s_mov_b32 s{sO1}, 4096",[],S(sO1)))
    q(vop(f"v_lshlrev_b32 v{T1}, 2, v{R_}",V(R_),V(T1)), vop(f"v_add_u32 v{T2}, s49, v{C_}",S(49)+V(C_),V(T2)), vop(f"v_xor_b32 v{T2}, v{T2}, v{T1}",V(T1)+V(T2),V(T2)),
      vop(f"v_lshl_add_u32 v{T3}, v{G_}, 2, v{R_}",V(G_)+V(R_),V(T3)), vop(f"v_lshlrev_b32 v{T3}, 8, v{T3}",V(T3),V(T3)), vop(f"v_lshl_add_u32 v{vTD}, v{T2}, 4, v{T3}",V(T2)+V(T3),V(vTD)))
    q(vop(f"v_add_u32 v{vKA}, s54, v{vQrd0}",S(54)+V(vQrd0),V(vKA)))
    q(vop(f"v_lshrrev_b32 v{T1}, 2, v{Q_}",V(Q_),V(T1)), valu(f"v_cmp_eq_u32 vcc, v{T1}, v{G_}",V(T1)+V(G_),[VCC]),
      vop(f"v_and_b32 v{T1}, 1, v{L}",V(L),V(T1)), vop(f"v_lshlrev_b32 v{T1}, 4, v{T1}",V(T1),V(T1)),
      vop(f"v_and_b32 v{T2}, 2, v{L}",V(L),V(T2)), valu(f"v_cmp_eq_u32 s[48:49], 0, v{T2}",V(T2),S(48,2)))
    for lo,cb in enumerate((CHI,CLO)):
        q(vop(f"v_mov_b32 v{T2}, {cb:#x}",[],V(T2)), v2("v_lshlrev_b32",T2,T1,T2), valu(f"v_cndmask_b32 v{T2}, 0, v{T2}, vcc",V(T2)+[VCC],V(T2)),
          valu(f"v_cndmask_b32 v{T3}, 0, v{T2}, s[48:49]",V(T2)+S(48,2),V(T3)), v2("v_xor_b32",T2,T2,T3))
        for half in range(2):
            a=aSC(lo,half)
            q(vop(f"v_accvgpr_write_b32 a{a+2*half}, v{T3}",V(T3),A(a+2*half)), vop(f"v_accvgpr_write_b32 a{a+2*half+1}, v{T2}",V(T2),A(a+2*half+1)),
              vop(f"v_accvgpr_write_b32 a{a+2-2*half}, 0",[],A(a+2-2*half)), vop(f"v_accvgpr_write_b32 a{a+3-2*half}, 0",[],A(a+3-2*half)))
    q(*ps(3))
    return q.out()

def fallback():
    q=Seq()
    q(label("L_fallback"), wait(vm=0,lg=0), bar())
    q(salu(f"s_mov_b32 s{sQso}, 0",[],S(sQso)), salu(f"s_mov_b32 s{sO0}, 0",[],S(sO0)), salu(f"s_mov_b32 s{sO1}, 4096",[],S(sO1)), salu(f"s_mov_b32 s{sLoop}, {NT}",[],S(sLoop)))
    q(vop(f"v_add_u32 v{vQrd}, {QBASE}, v{vQrd0}",V(vQrd0),V(vQrd)))
    MW,MR,T=216,217,218
    q(vop(f"v_mbcnt_lo_u32_b32 v{T}, -1, 0",[],V(T)), vop(f"v_mbcnt_hi_u32_b32 v{T}, -1, v{T}",V(T),V(T)),
      vop(f"v_and_b32 v{MR}, 15, v{T}",V(T),V(MR)), vop(f"v_lshlrev_b32 v{MR}, 6, v{MR}",V(MR),V(MR)), vop(f"v_add_u32 v{MR}, {MBASE}, v{MR}",V(MR),V(MR)),
      vop(f"v_lshrrev_b32 v{T}, 4, v{T}",V(T),V(T)), vop(f"v_lshl_add_u32 v{MW}, v{T}, 2, v{MR}",V(T)+V(MR),V(MW)))
    q(salu(f"s_lshl_b32 s49, s{sW}, 4",S(sW),S(49))); q(vop(f"v_add_u32 v{MW}, s49, v{MW}",S(49)+V(MW),V(MW)))
    q(label("L_fb_loop"))
    q(salu(f"s_mov_b32 m0, s{sWoff}",S(sWoff),[M0])); q(dma(vQdma,sQ,sQso,0),dma(vQdma,sQ,sQso,1024)); q(wait(vm=0),bar())
    for qb in range(2):
        for ds in range(4): q(dsr128(vQ(qb,ds),vQrd,qb*4160+ds*256))
    Sb=lambda kb,qb:64+(kb*2+qb)*4
    Pf=lambda f:128+f*4
    for kb in range(8):
        for qb in range(2):
            for ds in range(4): q(mfma(Sb(kb,qb),aK(kb,ds),vQ(qb,ds),None if ds==0 else Sb(kb,qb)))
    Mx=[220,221]; RD=224
    for qb in range(2):
        q(v2("v_max_f32",Mx[qb],Sb(0,qb),Sb(0,qb)+1))
        regs=[Sb(kb,qb)+r for kb in range(8) for r in range(4)][2:]
        for x in range(0,30,2): q(vop(f"v_max3_f32 v{Mx[qb]}, v{Mx[qb]}, v{regs[x]}, v{regs[x+1]}",V(Mx[qb])+V(regs[x])+V(regs[x+1]),V(Mx[qb])))
        q(dsw32(MW,Mx[qb],qb*1024))
    q(bar())
    for qb in range(2):
        for x in range(4): q(dsr128(RD+4*x,MR,qb*1024+16*x))
        q(v2("v_max_f32",Mx[qb],RD,RD+1))
        for x in range(2,16,2): q(vop(f"v_max3_f32 v{Mx[qb]}, v{Mx[qb]}, v{RD+x}, v{RD+x+1}",V(Mx[qb])+V(RD+x)+V(RD+x+1),V(Mx[qb])))
    for kb in range(8):
        for qb in range(2):
            for r in range(4): q(v2("v_sub_f32",Sb(kb,qb)+r,Sb(kb,qb)+r,Mx[qb]),slot=False)
            for r in range(4): q(vexp(Sb(kb,qb)+r),slot=False)
            for p2 in range(2): q(vcvt(Pf(2*(kb//2)+qb)+2*(kb%2)+p2,Sb(kb,qb)+2*p2,Sb(kb,qb)+2*p2+1),slot=False)
    for f in range(8): q(dsw128(vPw,Pf(f),f*1024))
    for qb in range(2):
        for kp in range(4): q(mfma(vLacc,vSEL[qb],Pf(2*kp+qb),None if (kp==0 and qb==0) else vLacc,afile='v'))
    q(dsw32(vLw,vLacc,0)); q(bar())
    for qb in range(2):
        for db in range(2):
            for kp in range(4): q(mfma(vO(0,qb,db),aV(0,kp,db),Pf(2*kp+qb),None if kp==0 else vO(0,qb,db)))
    for j in range(1,4):
        for qb in range(2):
            for k in range(4): q(dsr128(RD+4*k,vPr[j],(2*k+qb)*1024))
            for db in range(2):
                for kp in range(4): q(mfma(vO(0,qb,db),aV(j,kp,db),RD+4*kp,vO(0,qb,db)))
    q(dsr128(vLrd,vLr,0)); q(v2("v_add_f32",vLrd,vLrd,vLrd+1),v2("v_add_f32",vLrd+2,vLrd+2,vLrd+3),v2("v_add_f32",vLrd,vLrd,vLrd+2))
    q(valu(f"v_rcp_f32 v{vR0}, v{vLrd}",V(vLrd),V(vR0),"trans"), vop(f"v_mov_b32 v{vR1}, v{vR0}",V(vR0),V(vR1)),
      valu(f"v_permlane32_swap_b32 v{vR0}, v{vR1}",V(vR0)+V(vR1),V(vR0)+V(vR1),"perm"))
    for qb in range(2):
        for db in range(2):
            for p2 in range(2):
                r=vO(0,qb,db)+2*p2; R=vR0 if qb==0 else vR1
                q(v2("v_mul_f32",r,r,R),v2("v_mul_f32",r+1,r+1,R),vcvt(vOut(qb)+2*db+p2,r,r+1))
        q(vst(vOut(qb),vOst,sO,sO0 if qb==0 else sO1))
    q(salu(f"s_add_u32 s{sO0}, s{sO0}, 8192",S(sO0),S(sO0)), salu(f"s_add_u32 s{sO1}, s{sO1}, 8192",S(sO1),S(sO1)), salu(f"s_add_u32 s{sQso}, s{sQso}, 8192",S(sQso),S(sQso)))
    q(wait(vm=0,lg=0),bar())
    q(salu(f"s_sub_u32 s{sLoop}, s{sLoop}, 1",S(sLoop),S(sLoop)), salu(f"s_cmp_lg_u32 s{sLoop}, 0",S(sLoop),[SCC]), I("s_cbranch_scc1 L_fb_loop","branch",[SCC]))
    return q.out()

def stamp(n):
    if OPT["stamp"]==2: return [raw(f"s_memrealtime s[{76+2*n}:{77+2*n}]")] if n in(0,) else ([raw("s_memrealtime s[98:99]")] if n==1 else [])
    return [raw(f"s_memtime s[{76+4*n}:{77+4*n}]"),raw(f"s_memrealtime s[{78+4*n}:{79+4*n}]")] if OPT["stamp"] else []

def build():
    logs={}
    pro=prologue()+stamp(0)
    def it(i,par,cur,nxt,pv,ep,prefix,**kw):
        lg=[]; r=iteration(i,par,cur,nxt,pv,ep,(i+D<NT) or kw.get("force_dma"),prefix,log=lg,**{k:v for k,v in kw.items() if k!="force_dma"}); logs[i]=lg; return [comment(f"---- iteration {i}")]+r
    U=OPT.get("U",2); nst=40-(T+1); trips=nst//U; rem=nst-trips*U
    stag=OPT.get("stag",0); ncopy=OPT.get("ncopy",4) if stag else 1
    sst=OPT.get("sstag",0)
    disp=[]
    for cp in range(ncopy-1,0,-1):
        disp+=[salu(f"s_cmp_ge_u32 s{sW}, {cp*(4//ncopy)}",S(sW),[SCC]), I(f"s_cbranch_scc1 L_copy{cp}","branch",[SCC])]
    def mk0(off):
        lg=[]; r=[comment("---- start-up steps + merged iteration")]+startup(pro,lg,off); logs[0]=lg
        return r+[salu(f"s_mov_b32 s{sLoop}, {trips}",[],S(sLoop))]+([] if "spinbar" in OPT else stamp(1))
    def mkend(prev,off):
        r=[]
        for u in range(rem):
            x=it(40-rem+u,(40-rem+u)%2,1,1,1,1,prev,force_dma=True,baroff=off); prev=x; r+=x
        x=stamp(2)+it(40,0,1,0,1,1,prev,ctx={"eager":1},baroff=off)
        return r,x
    if not sst: i0=mk0(0)
    allb=[]; paths=[]; body_rem=[]
    for cp in range(ncopy):
        if sst: i0=mk0(stag*cp)
        body=[]; prev=i0
        for u in range(U):
            x=it(T+1+u,(T+1+u)%2,1,1,1,1,prev,force_dma=True,loopctl=f"L_loop{cp}" if (u==U-1 and trips>1) else None,baroff=stag*cp); body+=x; prev=x
            if u==0: ia=x
            if u==1: ib=x
        if "lg0" in OPT:
            o=[]; n=0; g=-1
            for x in body:
                o.append(x)
                if x.kind=="mfma":
                    g+=1
                    if g>=OPT["lg0"] and (g-OPT["lg0"])%OPT.get("lgs",8)==0 and n<9: o.append(raw(f"s_memtime s[{78+2*n}:{79+2*n}]")); n+=1
            body=o
        if sst or cp==0: br,i40=mkend(prev,stag*cp if sst else 0)
        paths.append(i0+body*min(trips,3)+br+i40)
        if OPT.get("rot"):
            kind={"W":"dsw","S":"vst"}[OPT["rot"]]
            idx=max(n for n,x in enumerate(body) if x.kind==kind and x.cost>=8 and (kind!="dsw" or x.cost>8))+1
            assert body[-1].kind=="branch" and any(x.text.startswith(f"s_cmp_lg_u32 s{sLoop}") for x in body[:idx])
            lay=[I(f"s_branch L_entry{cp}","branch"),raw(f".p2align {OPT.get('al',6)}"),label(f"L_loop{cp}")]+body[idx:-1]+[label(f"L_entry{cp}")]+body[:idx]+[body[-1]]+body[idx:-1]
        else: lay=[raw(f".p2align {OPT.get('al',6)}"),label(f"L_loop{cp}")]+body
        allb+=[label(f"L_copy{cp}")]+(i0 if sst else [])+lay+(br+i40 if sst else [])
        body_rem+=body+br
        if cp<ncopy-1: allb+=[I("s_branch L_after","branch")]
    allb+=[label("L_after")]
    lg=[]; i41=[comment("---- drain")]+drain(41,i40,lg); logs[41]=lg; i42=[]; i1=[]
    main=pro+(disp if sst else i0+disp)+allb+([] if sst else br+i40)+i41
    fin=Seq(i41+i42)
    fin(salu(f"s_mov_b32 s49, {HI:#x}",[],S(49)), salu(f"s_mov_b32 s50, {RHI:#x}",[],S(50)))
    fin(valu(f"v_cmp_lt_u32 vcc, s49, v{vLmax}",S(49)+V(vLmax),[VCC]), valu(f"v_cmp_lt_u32 s[52:53], s50, v{vRmax}",S(50)+V(vRmax),S(52,2)))
    fin(nop(4), salu("s_or_b64 vcc, vcc, s[52:53]",[VCC]+S(52,2),[VCC]), nop(4), I("s_cbranch_vccnz L_fallback","branch",[VCC]))
    if OPT["stamp"]==2 and OPT.get("all"):
        fin(raw("s_waitcnt vmcnt(0)"),raw("s_memrealtime s[100:101]"),raw("s_waitcnt lgkmcnt(0)"),raw(f"s_cmp_lg_u32 s{sW}, 0"),raw("s_cbranch_scc1 L_end"))
        fin(raw(f"s_and_b32 s{sDbg+1}, s{sDbg+1}, 0xffff"),raw(f"s_mov_b32 s{sDbg+2}, 4096"),raw(f"s_mov_b32 s{sDbg+3}, 0x20000"))
        fin(raw("s_getreg_b32 s3, hwreg(HW_REG_XCC_ID)"),raw("s_and_b32 s3, s3, 7"),raw("s_and_b32 s55, s62, 0xffffff"),raw("s_lshl_b32 s3, s3, 24"),raw("s_or_b32 s3, s3, s55"),raw("v_mov_b32 v200, s3"))
        for n,r in enumerate((82,98,100)): fin(raw(f"s_sub_u32 s3, s{r}, s62"),raw(f"v_mov_b32 v{201+n}, s3"))
        fin(raw("s_lshl_b32 s3, s2, 4"),raw("v_mov_b32 v220, s3"),raw("s_mov_b64 exec, 1"),raw(f"buffer_store_dwordx4 v[200:203], v220, s[{sDbg}:{sDbg+3}], 0 offen"))
    elif OPT["stamp"]==2:
        fin(raw("s_waitcnt vmcnt(0)"),raw("s_memrealtime s[100:101]"),raw("s_waitcnt lgkmcnt(0)"))
        fin(raw("s_and_b32 s3, s2, 63"),raw("s_cmp_lg_u32 s3, 0"),raw("s_cbranch_scc1 L_end"),raw(f"s_cmp_lg_u32 s{sW}, 0"),raw("s_cbranch_scc1 L_end"))
        fin(raw(f"s_and_b32 s{sDbg+1}, s{sDbg+1}, 0xffff"),raw(f"s_mov_b32 s{sDbg+2}, 256"),raw(f"s_mov_b32 s{sDbg+3}, 0x20000"))
        for n in range(13): fin(raw(f"s_sub_u32 s3, s{76+2*n}, s62"),raw(f"v_mov_b32 v{200+n}, s3"))
        fin(raw("s_lshr_b32 s3, s2, 6"),raw("s_lshl_b32 s3, s3, 6"),raw("v_mov_b32 v220, s3"),raw("s_mov_b64 exec, 1"))
        for n in range(4): fin(raw(f"buffer_store_dwordx4 v[{200+4*n}:{203+4*n}], v220, s[{sDbg}:{sDbg+3}], 0 offen offset:{16*n}"))
    elif OPT["stamp"]:
        fin(*stamp(3)); fin(raw("s_waitcnt vmcnt(0)")); fin(*stamp(4)); fin(raw("s_waitcnt lgkmcnt(0)"))
        sp=OPT.get("spin")
        if sp is not None:
            ex={0:["s_mov_b32 s3, 0"],1:["s_sub_u32 s3, s78, s62","s_lshl_b32 s3, s3, 2"],2:["s_sub_u32 s3, s86, s82"],3:["s_sub_u32 s3, s94, s62"],
                4:["s_sub_u32 s3, s84, s80","s_lshr_b32 s3, s3, 4"],5:["s_sub_u32 s3, s82, s62","s_lshl_b32 s3, s3, 2"],6:["s_sub_u32 s3, s82, s78","s_lshl_b32 s3, s3, 3"],7:["s_sub_u32 s3, s80, s76","s_lshr_b32 s3, s3, 1"],8:["s_sub_u32 s3, s94, s86","s_lshl_b32 s3, s3, 3"]}[sp]
            for e in ex: fin(raw(e))
            fin(raw("s_add_u32 s3, s3, 15000"),label("L_spin"),raw("s_memrealtime s[98:99]"),raw("s_waitcnt lgkmcnt(0)"),raw("s_sub_u32 s98, s98, s62"),raw("s_cmp_lt_u32 s98, s3"),raw("s_cbranch_scc1 L_spin"))
        fin(raw("s_and_b32 s3, s2, 31"),raw("s_cmp_lg_u32 s3, 0"),raw("s_cbranch_scc1 L_end"),raw(f"s_cmp_lg_u32 s{sW}, 0"),raw("s_cbranch_scc1 L_end"))
        fin(raw(f"s_and_b32 s{sDbg+1}, s{sDbg+1}, 0xffff"),raw(f"s_mov_b32 s{sDbg+2}, 256"),raw(f"s_mov_b32 s{sDbg+3}, 0x20000"))
        for n in range(4): fin(raw(f"s_sub_u32 s3, s{76+4*(n+1 if n==3 else n)}, s60"),raw(f"v_mov_b32 v{200+2*n}, s3"),raw(f"s_sub_u32 s3, s{78+4*(n+1 if n==3 else n)}, s62"),raw(f"v_mov_b32 v{201+2*n}, s3"))
        fin(raw("s_lshr_b32 s3, s2, 5"),raw("s_lshl_b32 s3, s3, 5"),raw("v_mov_b32 v208, s3"),raw("s_mov_b64 exec, 1"),
            raw(f"buffer_store_dwordx4 v[200:203], v208, s[{sDbg}:{sDbg+3}], 0 offen"),raw(f"buffer_store_dwordx4 v[204:207], v208, s[{sDbg}:{sDbg+3}], 0 offen offset:16"))
    fin(raw("s_endpgm"))
    fb=fallback()
    ool=[]
    if "rw2" in OPT:
        for cp in range(ncopy): ool+=[label(f"L_loop{cp}_rw")]+rewarm("L_after")+[raw(f"s_branch L_loop{cp}_rwb")]
    static=main+fin.out()+ool+fb+[label("L_end"),raw("s_endpgm")]
    dyns=[pro+p+i41+fin.out() for p in paths]
    for rep in range(2):
        for dyn in dyns: resolve_waits(dyn)
    k=[x for x,y in enumerate(fb) if y.text=="L_fb_loop"][0]
    dynf=fb+fb[k:]
    resolve_waits(dynf)
    for name,d in [("main",d) for d in dyns]+[("fallback",dynf)]:
        bad=check_hazards(d)
        for b in bad: print("HAZARD",name,b,file=sys.stderr)
        assert not bad
        print(name,"max outstanding",max_outstanding(d),file=sys.stderr)
    for nm,sq in(("i0",i0),("i1",i1),("ia",ia),("ib",ib),("i40",i40),("i41",i41),("i42",i42)):
        print(nm,"est cycles",estimate(sq),"nops",sum(1 for x in sq if x.kind=="nop"),"instrs",sum(1 for x in sq if states(x)),file=sys.stderr)
    if "log" in OPT: print("\n".join(logs[OPT["log"]]),file=sys.stderr)
    if OC==2:
        for x in main:
            if x.kind=="mfma" and x.name.startswith("PV") and x.text.endswith(", 0"): x.text=x.text[:-1]+"1.0"
    if "linit" in OPT:
        for x in main:
            if x.kind=="mfma" and "ONE" in x.name and x.text.endswith(", 0"): x.text=x.text[:-1]+f"{float(OPT['linit']):.1f}"
    if "oinit" in OPT:
        for x in main:
            if x.kind=="mfma" and x.name.startswith("PV") and x.text.endswith(", 0"): x.text=x.text[:-1]+f"{float(OPT['oinit'])/2:.1f}"
        static=[x for x in static if x.text!="s_cbranch_vccnz L_fallback"]
    abl=str(OPT.get("abl","")).split("+")
    if abl!=[""]:
        loop=set(map(id,body_rem)) if not OPT.get('abs') else set(map(id,i0[len(i0)//4:]))
        def drop(x):
            if id(x) not in loop: return False
            t=x.text
            return (("st" in abl and x.kind=="vst") or ("dma" in abl and x.kind=="dma") or ("pr" in abl and x.kind=="dsr" and 128<=min(r[1] for r in x.wr)<160)
              or ("qr" in abl and x.kind=="dsr" and 32<=min(r[1] for r in x.wr)<64) or ("pw" in abl and x.kind=="dsw") or ("exp" in abl and t.startswith("v_exp"))
              or ("cvt" in abl and t.startswith("v_cvt")) or ("one" in abl and x.kind=="mfma" and x.name.startswith("ONE")) or ("bar" in abl and x.kind=="bar")
              or ("mul" in abl and t.startswith("v_mul")) or ("valu" in abl and x.kind in VALU_KINDS) or ("qk" in abl and x.kind=="mfma" and x.name.startswith("QK"))
              or ("pv" in abl and x.kind=="mfma" and x.name.startswith("PV")) or ("wait" in abl and x.kind=="wslot") or ("ks" in abl and (t.startswith("v_accvgpr") or t.startswith("v_pk_mul") or t.startswith("v_and") or t.startswith("v_lshlrev"))))
        static=[x for x in static if not drop(x)]
        static=[x for x in static if x.text!="s_cbranch_vccnz L_fallback"]
    if OPT.get("fake") or OPT.get("samea"): static=[x for x in static if x.text!="s_cbranch_vccnz L_fallback"]
    if OPT.get("swap"):
        import re as _re
        for x in body_rem:
            if x.kind=="mfma" and any(x.name.startswith(p) for p in OPT["swap"].split("+")):
                m=_re.match(r"(\S+ [^,]+), ([^,]+), ([^,]+), (.*)",x.text); x.text=f"{m[1]}, {m[3]}, {m[2]}, {m[4]}"
        static=[x for x in static if x.text!="s_cbranch_vccnz L_fallback"]
    hdr=open("standalone__mha_softmax__near_ridge.s.ref").read().split("; Override launch")[0]
    txt=hdr+f"""; One workgroup (4 waves) per head.  K (scaled once by log2(e)/sqrt(D)) and V^T stay in AGPRs: wave w owns keys
; 128w..128w+127 for S^T = K.Q^T and output columns 32w..32w+31 for O^T = V^T.P^T (16x16x32 bf16 MFMA); P and the row sums
; are exchanged through LDS, one barrier per 32-row query tile.  The first tiles are processed key-chunk by key-chunk while
; K and V stream in.  Softmax shift: the fast path shifts every score by the constant 4 (log2 units, through the MFMA
; accumulator init); every row sum l is checked at run time (2^-4 <= l <= 2^48, inf/NaN included) and if any row leaves that
; range the whole head is recomputed with the true row max (L_fallback).  The P.V accumulators start from an offset of a few
; times the wave's smallest column magnitude of V, removed exactly in the normalisation FMA (fewer accumulator sign flips).
; @launch grid=(256,1,1) block=(256,1,1) lds={LDS_BYTES}
.amdgcn_target "amdgcn-amd-amdhsa--gfx950"
.text
.globl {NAME}
.p2align 8
.type {NAME},@function
{NAME}:
"""+emit(static)+f""".section .rodata,"a"
.p2align 6
.amdhsa_kernel {NAME}
  .amdhsa_next_free_vgpr 512
  .amdhsa_next_free_sgpr 102
  .amdhsa_accum_offset 256
  .amdhsa_group_segment_fixed_size 0
  .amdhsa_kernarg_size 48
  .amdhsa_user_sgpr_count 2
  .amdhsa_user_sgpr_kernarg_segment_ptr 1
  .amdhsa_system_sgpr_workgroup_id_x 1
.end_amdhsa_kernel
"""
    return txt

if __name__=="__main__":
    open(sys.argv[1],"w").write(build())
```

```python
import sys, struct, math
from core import *
from sched import *

NAME="standalone__mha_softmax__near_ridge_kernel"
NT=41
QBYTES=335872; KBYTES=131072
OPT=dict(D=4, st="sc0+sc1", ld="nt", stamp=0, wsplit=0, stag=3, ncopy=2)
for a in sys.argv[2:]:
    k,v=a.split("="); OPT[k]=int(v) if v.lstrip("-").isdigit() else v
D=OPT["D"]; NQ=7; T=OPT.get("T",5); LAG=OPT.get("lag",3); LAG0=OPT.get('lag0',3)
STF=(" "+OPT["st"].replace("+"," ")) if OPT["st"]!="none" else ""
LDF=(" "+OPT["ld"].replace("+"," ")) if OPT["ld"]!="none" else ""
QSLOT=8320; PB=[0,33280]; KBASE=PB[T%2]; QBASE=2*33280; QEND=QBASE+NQ*QSLOT; VBASE=QEND; LBASE=VBASE+32768; MBASE=LBASE+1024; LDS_BYTES=LBASE+4096
vQrd,vQrd0,vPw,vPr,vQdma,vOst,vLw,vLr=1,2,3,[None,4,5,6],7,8,9,10
vLmax,vLmin,vR0,vR1,vT=11,12,13,14,15
vLrd,vLacc,vSEL=16,20,[24,28]
vQ=lambda qb,ds:32+qb*16+ds*4
vS=lambda n:64+(n%8)*4
vP=lambda f:96+f*4
vRing=lambda s,k:128+(s%2)*16+k*4
vO=lambda st,qb,db:160+st*16+qb*8+db*4
vOut=lambda qb:192+qb*4
aK=lambda kb,ds:(kb*4+ds)*4
aV=lambda j,kp,db:128+((j*4+kp)*2+db)*4
sQ,sK,sV,sO=4,8,12,16
sW,sLoop,sQso,sQm0,sQrs,sO0,sO1,sT,sC=20,21,22,23,24,25,26,27,28
sWoff=30; sDbg=32
M0=('m0',0); VCC=('vcc',0); SCC=('scc',0)
CSCALE=struct.unpack("<I",struct.pack("<f",math.log2(math.e)/math.sqrt(128.0)))[0]
def bf16(x):
    u=struct.unpack("<I",struct.pack("<f",x))[0]; return (u+0x7fff+((u>>16)&1))>>16
CF=math.log2(math.e)/math.sqrt(128.0); CHI=bf16(CF); CLO=bf16(CF-struct.unpack("<f",struct.pack("<I",CHI<<16))[0])
HI=(127+48)<<23; RHI=(127+4)<<23

CI=OPT.get("cinit",-4); vCI=244; vC0=240; vN0,vN1=253,254; vRmax=12; OC=OPT.get("oc",1)
def qkm(d,a,b,first,name):
    if not first: return mfma(d,a,b,d,name=name)
    if CI not in(0,1,2,4,-1,-2,-4): return mfma(d,a,b,vCI,name=name)
    m=mfma(d,a,b,None,name=name)
    if CI: m.text=m.text[:-1]+f"{float(CI):.1f}"
    return m
def dsr128(dst,addr,off,file='v',name=None): return I(f"ds_read_b128 {rs(file,dst,4)}, v{addr} offset:{off}","dsr",V(addr),[(file,dst+i) for i in range(4)],name=name)
def dsw128(addr,src,off): return I(f"ds_write_b128 v{addr}, {rs('v',src,4)} offset:{off}","dsw",V(addr)+V(src,4),[],cost=20)
def dsw64(addr,src,off): return I(f"ds_write_b64 v{addr}, {rs('v',src,2)} offset:{off}","dsw",V(addr)+V(src,2),[],cost=12)
def dsw32(addr,src,off): return I(f"ds_write_b32 v{addr}, v{src} offset:{off}","dsw",V(addr)+V(src),[],cost=8)
def dma(voff,srd,soff,off,flag=LDF): return I(f"buffer_load_dwordx4 v{voff}, s[{srd}:{srd+3}], s{soff} offen offset:{off}{flag} lds","dma",V(voff)+S(srd,4)+S(soff)+[M0],[])
def vld(dst,voff,srd,soff,off,flag=LDF): return I(f"buffer_load_dwordx4 {rs('v',dst,4)}, v{voff}, s[{srd}:{srd+3}], s{soff} offen offset:{off}{flag}","vld",V(voff)+S(srd,4)+S(soff),V(dst,4))
def vst(src,voff,srd,soff,flag=STF): return I(f"buffer_store_dwordx4 {rs('v',src,4)}, v{voff}, s[{srd}:{srd+3}], s{soff} offen{flag}","vst",V(src,4)+V(voff)+S(srd,4)+S(soff),[],meta={"data":V(src,4)})
def vexp(r): return valu(f"v_exp_f32 v{r}, v{r}",V(r),V(r),"trans")
def vcvt(d,a,b): return valu(f"v_cvt_pk_bf16_f32 v{d}, v{a}, v{b}",V(a)+V(b),V(d))
def vcvtp(d,a,b):
    if OPT.get("trunc"): return valu(f"v_perm_b32 v{d}, v{b}, v{a}, s74",V(a)+V(b)+S(74),V(d))
    return vcvt(d,a,b)
def v2(op,d,a,b): return valu(f"{op} v{d}, v{a}, v{b}",V(a)+V(b),V(d))
def bar(**m): return I("s_barrier","bar",meta=m)
def label(t): return I(t,"label")
def comment(t): return I(t,"comment")

def chain_info(n):
    f=(n//2+1)%8; h=n%2
    return f,h,2*(f//2)+h,f%2
def s_block(f,h):
    return (2*((f-1)%8)+h)

class Bld:
    def __init__(s): s.bb=[]; s.ops=[]; s.sops=[]; s.mdeps={}; s.slots=set(); s.tail=[]
    def group(s,g):
        p=len(s.bb); s.bb+=g; s.slots.add(len(s.bb)-1); return p
    def add(s,ins,prio,deps=(),earliest=0,name=None):
        o=Op(ins,prio,deps,earliest,name); s.ops.append(o); return o
    def adds(s,ins,prio,deps=(),name=None,earliest=0):
        o=Op(ins,prio,deps,earliest,name); s.sops.append(o); return o
    def need(s,idx,o): s.mdeps.setdefault(max(idx,0),[]).append(o)
    def barrier(s,gap,deps,keep=False,**meta):
        if keep and gap in s.slots: gap-=1; o=s.adds(bar(**meta),-1,deps,name="BAR",earliest=gap); s.slots.add(gap-1); return o
        o=s.adds(bar(**meta),-1,deps,name="BAR",earliest=max(gap,0)); s.slots.discard(gap); s.slots.add(gap-1); return o
    def run(s,prefix,log=None,overdue=None): return schedule(s.bb,s.ops,s.sops,s.mdeps,prefix,s.slots,s.tail,log,overdue,fill=OPT.get('fill',1),veto=(OPT.get('veto',8) if overdue is None else OPT.get('sveto',0)),vdist=tuple(int(c) for c in str(OPT.get('vd',1234) if overdue is None else OPT.get('svd',1))))

def qdma_ops(b,t0,deps,tag=None,scc=()):
    m=b.adds(salu(f"s_mov_b32 m0, s{sQm0}",S(sQm0),[M0]),t0-2,deps,name="m0")
    QF=(" "+OPT["lq"].replace("+"," ") if OPT["lq"]!="none" else "") if "lq" in OPT else LDF
    d0=b.add(dma(vQdma,sQ,sQso,0,QF),t0,[m],name="DMA0"); d1=b.add(dma(vQdma,sQ,sQso,1024,QF),t0+4,[d0],name="DMA1")
    d0.ins.cost=d1.ins.cost=OPT.get("dmac",8); d0.ins.tag=d1.ins.tag=tag
    if OPT.get("dpe"): d0.earliest=int(t0); d1.earliest=int(t0+OPT["dpe"])
    b1=b.adds(salu(f"s_add_u32 s{sQm0}, s{sQm0}, {QSLOT}",S(sQm0),S(sQm0)+[SCC]),t0+10,[m]+list(scc),name="qm+")
    b2=b.adds(salu(f"s_cmp_eq_u32 s{sQm0}, s{sT}",S(sQm0)+S(sT),[SCC]),t0+11,[b1],name="qm?")
    b3=b.adds(salu(f"s_cselect_b32 s{sQm0}, s{sWoff}, s{sQm0}",S(sQm0)+S(sWoff)+[SCC],S(sQm0)),t0+12,[b2],name="qm=")
    b4=b.adds(salu(f"s_add_u32 s{sQso}, s{sQso}, 8192",S(sQso),S(sQso)+[SCC]),t0+14,[d1,b3],name="qso+")
    return d1,b4

def epilogue_ops(b,Ob,loff,t0,tm,dt,ldeps,odeps,prev,scc,sc=1.0,tg="",OC=OC):
    lr=b.add(dsr128(vLrd,vLr,loff),t0,list(ldeps)+prev.get("L",[]),name="LR"+tg)
    a=b.add(v2("v_add_f32",vLrd,vLrd,vLrd+1),t0+11*sc,[lr],name="La")
    bb_=b.add(v2("v_add_f32",vLrd+2,vLrd+2,vLrd+3),t0+11.5*sc,[lr],name="Lb")
    c=b.add(v2("v_add_f32",vLrd,vLrd,vLrd+2),t0+12*sc,[a,bb_],name="Lc")
    rc=b.add(valu(f"v_rcp_f32 v{vR0}, v{vLrd}",V(vLrd),V(vR0),"trans"),t0+13*sc,[c]+prev.get("M",[]),name="RCP")
    x1=b.add(v2("v_max_u32",vRmax,vRmax,vR0),t0+14.5*sc,[rc],name="chkr"); x2=b.add(v2("v_max_u32",vLmax,vLmax,vLrd),t0+30*sc,[c],name="chkl")
    mv=b.add(valu(f"v_mov_b32 v{vR1}, v{vR0}",V(vR0),V(vR1)),t0+14*sc,[rc],name="MOV")
    sw=b.add(valu(f"v_permlane32_swap_b32 v{vR0}, v{vR1}",V(vR0)+V(vR1),V(vR0)+V(vR1),"perm"),t0+15*sc,[mv,x1],name="SWP")
    t=tm; sts=[]; muls=[]
    if OC==1:
        nc=[b.add(valu(f"v_mul_f32 v{N}, -v{vC0}, v{R}",V(vC0)+V(R),V(N)),t0+(16+x)*sc,[sw],name="nC") for x,(N,R) in enumerate(((vN0,vR0),(vN1,vR1)))]
    def scale_op(r,qb):
        R=vR0 if qb==0 else vR1; N=vN0 if qb==0 else vN1
        if OC==2: return valu(f"v_fma_f32 v{r}, v{r}, v{R}, -v{R}",V(r)+V(R),V(r)),[sw]
        if OC: return valu(f"v_fma_f32 v{r}, v{r}, v{R}, v{N}",V(r)+V(R)+V(N),V(r)),[nc[qb]]
        return v2("v_mul_f32",r,r,R),[sw]
    if OPT.get("pa") and not tg and odeps is None:
        b.ops.remove(mv); b.ops.remove(sw)
        rw=b.add(dsw32(vLw,vR0,3072),t0+14*sc,[rc],name="RW")
        rr=[b.add(dsr128(248+4*(qb),vLr,3072+16*qb),t0+16*sc+qb,[rw],name="RR") for qb in range(2)]
        for qb in range(2):
            for r in range(4):
                m0_=b.add(v2("v_mul_f32",Ob(qb,0)+r,Ob(qb,0)+r,248+4*qb+r),t,[rr[qb]],name=f"M"); t+=dt
                m1_=b.add(v2("v_mul_f32",Ob(qb,1)+r,Ob(qb,1)+r,248+4*qb+r),t,[rr[qb]],name=f"M"); t+=dt
                cv=b.add(vcvt(vOut(qb)+r,Ob(qb,0)+r,Ob(qb,1)+r),t,[m0_,m1_],name="OC"); t+=dt
                st_=b.add(I(f"buffer_store_dword v{vOut(qb)+r}, v0, s[{sO}:{sO+3}], s{sO0 if qb==0 else sO1} offen offset:{r*256}{STF}","vst",V(vOut(qb)+r)+V(0)+S(sO,4)+S(sO0 if qb==0 else sO1),[],cost=8),t,[cv],name="ST")
                if r==3: sts.append(st_)
    for qb in range(2 if not sts else 0):
        cv=[]
        for db in range(2):
            od=[odeps[(qb,db)]] if odeps else []
            for p2 in range(2):
                r=Ob(qb,db)+2*p2; R=vR0 if qb==0 else vR1
                x,dp=scale_op(r,qb); m0_=b.add(x,t,dp+od,name=f"M{qb}{db}{2*p2}"); t+=dt
                x,dp=scale_op(r+1,qb); m1_=b.add(x,t,dp+od,name=f"M{qb}{db}{2*p2+1}"); t+=dt
                muls+=[m0_,m1_]
                cv.append(b.add(vcvt(vOut(qb)+2*db+p2,r,r+1),t,[m0_,m1_]+prev.get("S",[]),name=f"OC{qb}{db}{p2}")); t+=dt
        fl=STF if not (tg.startswith("t") and "st0" in OPT) else ("" if OPT["st0"]=="none" else " "+OPT["st0"].replace("+"," "))
        sts.append(b.add(vst(vOut(qb),vOst,sO,sO0 if qb==0 else sO1,fl),t,cv+prev.get("A",[]),name=f"ST{qb}"+tg)); sts[-1].ins.cost=OPT.get("stc",8); sts[-1].mingap=OPT.get("stg",3)
    e1=b.adds(salu(f"s_add_u32 s{sO0}, s{sO0}, 8192",S(sO0),S(sO0)+[SCC]),t+1,[sts[0]]+list(scc),name="o0+")
    e2=b.adds(salu(f"s_add_u32 s{sO1}, s{sO1}, 8192",S(sO1),S(sO1)+[SCC]),t+2,[sts[1],e1],name="o1+")
    return {"L":[rc,x1,x2],"M":muls,"S":sts,"A":[e2]}

def iter_parts(b, i, par, cur, nxt, pv, ep, dodma, last_bar=True, loopctl=None, baroff=0, Ncustom=None, ctx=None):
    ctx=ctx or {}
    base=len(b.bb)
    def qk(n):
        f,h,kb,qb=chain_info(n)
        return [qkm(vS(n),aK(kb,ds),vQ(qb,ds),ds==0,f"QK{n}.{ds}") for ds in range(4)]
    so=1-par
    def pvo(qb,db): return [mfma(vO(so,qb,db),aV(0,kp,db),vP(2*kp+qb),(vC0 if OC==1 else None) if kp==0 else vO(so,qb,db),name=f"PVo{qb}{db}.{kp}") for kp in range(4)]
    def one(qb): return [mfma(vLacc,vSEL[qb],vP(2*kp+qb),None if (kp==0 and qb==0) else vLacc,afile='v',name=f"ONE{qb}.{kp}") for kp in range(4)]
    sets=[(1,0),(1,1),(2,0),(2,1),(3,0),(3,1)]
    def pvx(s,db):
        j,qb=sets[s]
        return [mfma(vO(so,qb,db),aV(j,kp,db),vRing(s,kp),vO(so,qb,db),name=f"PVx{s}{db}.{kp}") for kp in range(4)]
    N=[("pvo",0,0),("pvo",0,1),("one",0),("pvo",1,0),("pvo",1,1),("one",1)]+[("pvx",s,db) for s in range(6) for db in range(2)]
    if Ncustom: N=[("cus",x) for x in range(18)]
    order=[N[0],N[1]]
    for n in range(16): order+=[("qk",n),N[n+2]]
    if ctx.get("eager"): order[-3],order[-2]=order[-2],order[-3]
    fk=OPT.get("fake",0) if (cur and nxt and pv and ep and not Ncustom) else 0
    if fk:
        order=[]; n=0; x=0
        while x<18 or n<16:
            order+=N[x:x+fk]; x+=fk
            order+=[("qk",m) for m in range(n,min(n+fk,16))]; n+=fk
    G={}; pos={}
    for key in order:
        if key[0]=="qk":
            n=key[1]
            if n>=14 and not nxt and cur and ctx.get("eager"):
                key=("eone",n-14); g=[mfma(vLacc,vSEL[n-14],vP(2*kp+n-14),None if (kp==0 and n==14) else vLacc,afile='v',name=f"eONE{n-14}.{kp}") for kp in range(4)]
            elif not (nxt if n>=14 else cur): continue
            else: g=qk(n)
        elif key[0]=="cus":
            g=Ncustom(key[1])
            if not g: continue
        else:
            if not pv: continue
            g={"pvo":pvo,"one":one,"pvx":pvx}[key[0]](*key[1:])
        if fk and key[0]!="qk" and OPT.get("fakeacc",1):
            d=vO(so,0,0)+4*((N.index(key)//fk)%4)
            for m in g:
                t=m.text.split(", "); t[0]=t[0].split(" ")[0]+f" v[{d}:{d+3}]"; t[3]=f"v[{d}:{d+3}]"; m.text=", ".join(t)
        G[key]=g; pos[key]=b.group(g)
        if key[0]=="cus": ctx["placed"](key[1],pos[key])
    if OPT.get("samea") and cur and nxt and pv and ep and not Ncustom:
        def ilv(g0,g1,fixb):
            t0=[m.text for m in g0]; t1=[m.text for m in g1]
            for x in range(4):
                a=t0[x].split(", "); c=t1[x].split(", "); c[1]=a[1]
                if fixb: c[2]=fixb(c[2])
                t1[x]=", ".join(c)
            seq=[t0[0],t1[0],t0[1],t1[1],t0[2],t1[2],t0[3],t1[3]]
            for m,t in zip(g0+g1,seq): m.text=t
        def otherq(r):
            n=int(r[2:r.index(":")]); n=32+(n-32+16)%32; return f"v[{n}:{n+3}]"
        if "q" in OPT["samea"]:
            for n in range(0,16,2): ilv(G[("qk",n)],G[("qk",n+1)],otherq)
        if "p" in OPT["samea"]:
            def otherr(r):
                n=int(r[2:r.index(":")]); n=(128+(n-128+16)%32) if n>=128 else n^4; return f"v[{n}:{n+3}]"
            for s_ in range(6): ilv(G[("pvx",s_,0)],G[("pvx",s_,1)],otherr)
            for q_ in range(2): ilv(G[("pvo",q_,0)],G[("pvo",q_,1)],otherr)
    nb=len(b.bb)-base
    nom={}; p=0
    for key in order: nom[key]=p; p+=4
    scale=(nb/136.0) if nb else 0
    import bisect
    alias={("qk",14):("eone",0),("qk",15):("eone",1)}
    pts=sorted((nom[k],pos[k if k in pos else alias[k]]) for k in nom if (k in pos or alias.get(k) in pos))
    def P(t):
        j=max(bisect.bisect_right(pts,(t,1<<30))-1,0)
        n0,a0=pts[j]; a1=pts[j+1][1] if j+1<len(pts) else 1<<30
        return min(a0+(t-n0),a1+(t-n0)*1e-3) if t>=n0 else a0+(t-n0)
    def add(ins,prio,deps=(),earliest=0,name=None):
        o=b.add(ins,P(prio),deps,int(P(earliest)) if earliest else base,name); o.nomp=prio; return o
    def adds(ins,prio,deps=(),name=None,earliest=0): return b.adds(ins,P(prio),deps,name,int(P(earliest)) if earliest else base)
    def need(key,k,o): b.need(pos[key]+k,o)
    rel=lambda o:o.nomp
    must_bar=list(ctx.get("must_bar",[]))
    scc=list(ctx.get("scc",[]))
    E={}
    for n in list(range(16))+[-1]:
        if n==15: continue
        if n==-1:
            if not cur: continue
            blk=vS(15); dep=ctx.get("c15",[]); t0=0
        else:
            if ("qk",n) not in G: continue
            blk=vS(n); dep=[G[("qk",n)][3]]; t0=nom[("qk",n)]+6
        for r in range(4):
            E[(n,r)]=add(vexp(blk+r),t0+2*r,dep,name=f"E{n}.{r}")
            if n>=0: E[(n,r)].prio=pos[("qk",n)]+OPT.get("eo",4)+OPT.get("es",2)*r
    if cur:
        for f in range(8):
            qb=f%2; kp=f//2
            war=[G[k][kp] for k in (("pvo",qb,0),("pvo",qb,1),("one",qb)) if k in G]+ctx.get("pwar",{}).get(f,[])
            C=[]
            for h in range(2):
                n=s_block(f,h)
                en = -1 if n==15 else n
                for p2 in range(2):
                    deps=list(war)
                    if f==0 and h==0: t=1+p2; deps+=ctx.get("e14",[])
                    else:
                        deps+=[E[(en,2*p2)],E[(en,2*p2+1)]]; t=rel(E[(en,2*p2+1)])+1
                    c=add(vcvtp(vP(f)+2*h+p2,vS(n)+2*p2,vS(n)+2*p2+1),t,deps,name=f"C{f}.{2*h+p2}")
                    if not (f==0 and h==0): c.prio=E[(en,2*p2+1)].prio+1
                    C.append(c)
                    if ("eone",qb) in G: need(("eone",qb),kp,c)
                    nn=(n+8)%16
                    if ("qk",nn) in G and (n>=14 or n<8): need(("qk",nn),0,c)
            off=PB[par]+f*1024
            if str(f) in str(OPT.get("w32","")).replace("f",""):
                for x in range(4):
                    w=add(dsw32(vPw,vP(f)+x,off+4*x),rel(C[x])+1,[C[x]]+ctx.get("wdep",[]),name=f"W{f}.{x}"); must_bar.append(w)
            elif str(f) in str(OPT.get("w64","")).replace("f",""):
                for x in range(2):
                    w=add(dsw64(vPw,vP(f)+2*x,off+8*x),rel(C[2*x+1])+1,C[2*x:2*x+2]+ctx.get("wdep",[]),name=f"W{f}.{x}"); must_bar.append(w)
            else:
                w=add(dsw128(vPw,vP(f),off),rel(C[3])+1,C+ctx.get("wdep",[]),name=f"W{f}"); must_bar.append(w); w.prio=C[3].prio+1
        for n,ds_ in ctx.get("swar",{}).items():
            for o in ds_: need(("qk",n),0,o)
    if pv:
        for s,(j,qb) in enumerate(sets):
            for k in range(4):
                deps=[G[("pvx",s-2,1)][k]] if s>=2 else []
                t=nom[("pvx",s,0)]-OPT.get("rl",18)+k if s>=2 else s*OPT.get("r0",4)+k
                o=add(dsr128(vRing(s,k),vPr[j],PB[so]+(2*k+qb)*1024),t,deps,name=f"R{s}.{k}")
                need(("pvx",s,0),-1,o); must_bar.append(o)
        lw=add(dsw32(vLw,vLacc,so*512),nom[("one",1)]+8,[G[("one",1)][3]],name="LW"); must_bar.append(lw)
        if ("eone",0) in G:
            need(("eone",0),0,lw)
            must_bar.append(add(dsw32(vLw,vLacc,par*512),0,[G[("eone",1)][3]],name="eLW"))
    if nxt:
        a1=adds(salu(f"s_add_u32 s{sQrs}, s{sQrs}, {QSLOT}",S(sQrs),S(sQrs)+[SCC]),40,scc,name="qr+")
        a2=adds(salu(f"s_cmp_eq_u32 s{sQrs}, {QEND}",S(sQrs),[SCC]),41,[a1],name="qr?")
        a3=adds(salu(f"s_cselect_b32 s{sQrs}, {QBASE}, s{sQrs}",S(sQrs)+[SCC],S(sQrs)),42,[a2],name="qr=")
        scc=[a3]
        upd=add(valu(f"v_add_u32 v{vQrd}, s{sQrs}, v{vQrd0}",S(sQrs)+V(vQrd0),V(vQrd)),80,[a3]+ctx.get("rqprev",[]),name="qupd")
        for qb in range(2):
            lastn=11 if qb==0 else 13
            for ds in range(4):
                deps=[upd]+([G[("qk",lastn)][ds]] if ("qk",lastn) in G else [])+ctx.get("rqdep",[])
                o=add(dsr128(vQ(qb,ds),vQrd,qb*4160+ds*256),nom[("qk",lastn)]+1+ds,deps,name=f"RQ{qb}.{ds}")
                if qb==0: need(("qk",14),-1,o)
    if dodma:
        d1,b4=qdma_ops(b,P(ctx.get("dmaprio",OPT.get("dp",70))),ctx.get("dmadep",[]),scc=scc); scc=[b4]
    if ep:
        e=epilogue_ops(b,lambda qb,db:vO(par,qb,db),par*512,P(-1),P(OPT.get("ept",24)),OPT.get("epdt10",30)/10*scale,[],None,{},scc,sc=scale); scc=e["A"]
    if "late" in ctx: scc=ctx["late"](scc,must_bar)
    if loopctl:
        LP=112 if OPT.get("rot") else 128
        if "rw2" in OPT:
            w1=adds(salu(f"s_cmp_eq_u32 s{sLoop}, {OPT['rw2']}",S(sLoop),[SCC]),124,scc,name="rw?",earliest=124)
            w2=adds(salu(f"s_cbranch_scc1 {loopctl}_rw\n{loopctl}_rwb:",[SCC],[]),125,[w1],name="rwb",earliest=125); scc=[w2]
        c1=adds(salu(f"s_sub_u32 s{sLoop}, s{sLoop}, 1",S(sLoop),S(sLoop)+[SCC]),LP,scc,name="lp-",earliest=LP)
        c2=adds(salu(f"s_cmp_lg_u32 s{sLoop}, 0",S(sLoop),[SCC]),LP+1,[c1],name="lp?",earliest=LP+1)
        b.tail=[I(f"s_cbranch_scc1 {loopctl}","branch",[SCC])]
    b.slots.discard(base+nb-1)
    if last_bar: b.barrier(base+nb-1-baroff,must_bar,keep_dma=2*(D-2),all_ds=1)

def iteration(i, par, cur, nxt, pv, ep, dodma, prefix, log=None, **kw):
    b=Bld(); iter_parts(b,i,par,cur,nxt,pv,ep,dodma,**kw); return b.run(prefix,log)

def drain(i,prefix,log):
    b=Bld(); so=(i-1)%2; par=i%2
    ring=[128,144,64,80,32,48]; last={}
    for qb in range(2):
        for j in range(4):
            s_=qb*3+j-1
            for db in range(2):
                d=vO(so,qb,db)
                g=[mfma(d,aV(j,kp,db),vP(2*kp+qb) if j==0 else ring[s_]+4*kp,(vC0 if OC==1 else None) if (j==0 and kp==0) else d,name=f"PV{qb}{j}{db}.{kp}") for kp in range(4)]
                p=b.group(g); last[(qb,db)]=g[3]
                if j and db==0:
                    for k in range(4): b.need(p-1,b.add(dsr128(ring[s_]+4*k,vPr[j],PB[so]+(2*k+qb)*1024),s_*2+k/2,name=f"R{s_}.{k}"))
    e=epilogue_ops(b,lambda qb,db:vO(par,qb,db),par*512,-1,10,0.7,[],None,{},[],sc=0.5)
    epilogue_ops(b,lambda qb,db:vO(so,qb,db),so*512,20,34,0.7,[],last,e,e["A"],sc=0.3,tg="z")
    return b.run(prefix,log)

vOs=[80,112][:T-LAG-1]+[vO(T%2,0,0)]+[200,216,232][:LAG-1]+[vO(1-T%2,0,0)]
vLs=lambda t:248+t
sKo=64
sVm=72
vKA,vVA,vTB,vTD=255,0,192,15
def kdma_units(c):
    u=[]
    for pr in range(4):
        for n in range(2):
            d=dma(vQdma,sK,45,n*1024); d.tag=f"K{c}"
            u.append(([salu(f"s_add_u32 m0, s54, {(pr//2)*4160+(pr%2)*2080}",S(54),[M0,SCC]), salu(f"s_add_u32 s45, s44, {c*8192+pr*2048}",S(44),S(45)+[SCC])] if n==0 else [])+[d])
    return u
def qdma_units(t):
    d0=dma(vQdma,sQ,46,0); d1=dma(vQdma,sQ,46,1024); d0.tag=d1.tag=f"Q{t}"
    return [[salu(f"s_add_u32 m0, s{sWoff}, {(t%NQ)*QSLOT}",S(sWoff),[M0,SCC]),salu(f"s_mov_b32 s46, {t*8192}",[],S(46)),d0],[d1]]
V3=OPT.get("v3",1) and T<=5
XB=QBASE+5*QSLOT
vbuf=lambda h:([VBASE,VBASE+16384,XB][h%3] if V3 else VBASE+(h%2)*16384)
def vdma_half(h):
    u=[]
    for n in range(4):
        d=dma(vVA,sV,sKo+h,n*1024); d.tag=f"V{h//2}"
        u.append(([salu(f"s_add_u32 m0, s{sVm}, {vbuf(h)}",S(sVm),[M0,SCC])] if n==0 else [])+[d])
    return u
def vdma_units(c): return vdma_half(2*c)+vdma_half(2*c+1)
flat=lambda u:[x for y in u for x in y]
STREAM=kdma_units(0)+qdma_units(0)+qdma_units(1)+qdma_units(2)+vdma_units(0)+flat([qdma_units(t) for t in range(3,T)])+kdma_units(1)+(vdma_half(2) if V3 else [])
NPRO=OPT.get("npro",20)
def kread(c):
    o=[dsr128(aK(2*c+h,ds),vKA,h*4160+ds*256,file='a') for h in range(2) for ds in range(4)]
    for x in o: x.meta["tags"]={f"K{c}"}
    return o
aSC=lambda lo,half:aV(lo,3,half)
vKT=[192,196,vLrd]
def rewarm(lbl): return [raw(f"s_mov_b32 s55, {lbl}-L_pc"), I("buffer_load_dword v253, v254, s[56:59], s55 offen","vld",V(254),V(253))]
def vscale():
    o=[]; t=232; m=[236,237]; u=238
    for db in range(2):
        a=aV(0,0,db)
        o+=[vop(f"v_accvgpr_read_b32 v{t+r}, a{a+r}",A(a+r),V(t+r)) for r in range(4)]
        o+=[vop(f"v_max3_f32 v{m[db]}, |v{t}|, |v{t+1}|, |v{t+2}|",V(t,3),V(m[db])), vop(f"v_max_f32 v{m[db]}, v{m[db]}, |v{t+3}|",V(m[db])+V(t+3),V(m[db]))]
        for w_ in(32,16):
            o+=[vop(f"v_mov_b32 v{u}, v{m[db]}",V(m[db]),V(u)), valu(f"v_permlane{w_}_swap_b32 v{m[db]}, v{u}",V(m[db])+V(u),V(m[db])+V(u),"perm"), v2("v_max_f32",m[db],m[db],u)]
    o.append(v2("v_min_f32",u,m[0],m[1]))
    for r in(8,4,2,1):
        x=vop(f"v_min_f32_dpp v{u}, v{u}, v{u} row_ror:{r} row_mask:0xf bank_mask:0xf",V(u),V(u)); x.meta["dpp"]=1; o.append(x)
    o+=[vop(f"v_min_f32 v{u}, {(127+60)<<23:#x}, v{u}",V(u),V(u)), vop(f"v_and_b32 v{u}, 0x7f800000, v{u}",V(u),V(u))]
    o+=[vop(f"v_add_u32 v{vC0+r}, {(OPT.get('oce',2)<<23)+0x400000:#x}, v{u}",V(u),V(vC0+r)) for r in range(4)]
    return o
def touch_ins(): return I(f"buffer_load_dword v253, v254, s[{sO}:{sO+3}], 0 offen nt","vld",V(254)+S(sO,4),V(253))
def ksops(c,j):
    a=aK(2*c+j//8,(j//2)%4)+2*(j%2); d=vKT[j%3]
    return [vcvt(d,d,d+1),vcvt(d+1,d+2,d+3)]+[vop(f"v_accvgpr_write_b32 a{a+x}, v{d+x}",V(d+x),A(a+x)) for x in range(2)]
def kscale(c,extra=None):
    o=[]
    for j in range(16):
        a=aK(2*c+j//8,(j//2)%4); d=vKT[j%3]; x=ksops(c,j-2) if j>=2 else [nop(2),None,nop(2),None]
        if j%2==0: o.append(waitslot())
        o+=[mfma(d,aSC(0,j%2),a,None,bfile='a',name="KSh")]+(extra(j) if extra else [])+x[:2]+[mfma(d,aSC(1,j%2),a,d,bfile='a',name="KSl")]+x[2:]
    return [i for i in o if i is not None]
def startup(prefix,log,off=0,caps=(0,0),sfx=''):
    b=Bld(); NS=4*T
    Sb=lambda n:64+(n%4)*4
    OWN=OPT.get("own",1) and T-LAG<=2
    Pw=lambda k,qb:96+((k%(4 if OWN else 2))*2+qb)*4
    ownk=lambda k:OWN and k<NS-OPT.get("ownskip",2)
    ent=lambda k,qb:PB[T%2 if (LAG>3 and 3*T<=k<NS-LAG) else 1-T%2]+((k%4)*2+qb)*1024
    assert LAG<=3 or all(k%4 for k in range(3*T,NS-LAG))
    pvstep=lambda k:k+(LAG0 if k<3*T else LAG)
    pvof={pvstep(k):k for k in range(NS)}
    QK={}; PV={}; ONE={}; start={}; end={}; posQ={}; posP={}; posO={}
    def pvg(k,qb,db):
        c,t=divmod(k,T); d=vOs[t]+qb*8+db*4
        return [mfma(d,aV(j,c,db),Pw(k,qb) if (ownk(k) and j==0) else vRing(2*k+qb,j),(vC0 if (OC==1 and t==T-1) else None) if (c==0 and j==0) else d,name=f"PV{k}.{qb}{db}.{j}") for j in range(4)]
    def oneg(k): return [mfma(vLacc,vSEL[0],Pw(k,0),None,afile='v',name=f"ONE{k}.0"),mfma(vLacc,vSEL[1],Pw(k,1),vLacc,afile='v',name=f"ONE{k}.1")]
    for k in range(NS):
        c,t=divmod(k,T)
        start[k]=len(b.bb)
        for ch in range(4):
            kb=2*c+ch%2; qb=ch//2; n=4*k+ch
            QK[(k,ch)]=[qkm(Sb(n),aK(kb,ds),vQ(qb,ds),ds==0,f"QK{k}.{ch}.{ds}") for ds in range(4)]
            posQ[(k,ch)]=b.group(QK[(k,ch)])
            if k in pvof:
                key=(pvof[k],ch//2,ch%2); PV[key]=pvg(*key); posP[key]=b.group(PV[key])
            if ch==2 and k>=1: ONE[k-1]=oneg(k-1); posO[k-1]=b.group(ONE[k-1])
        if k==NS-1:
            for n in(14,15):
                f,h,kb,qb=chain_info(n)
                QK[("pre",n)]=[qkm(vS(n),aK(kb,ds),vQ(qb,ds),ds==0,f"QKp{n}.{ds}") for ds in range(4)]
                posQ[("pre",n)]=b.group(QK[("pre",n)])
        end[k]=len(b.bb)-1
    cus={}
    x=0
    for k in range(NS-LAG,NS):
        for qb in range(2):
            for db in range(2):
                PV[(k,qb,db)]=pvg(k,qb,db); cus[x]=("pv",(k,qb,db)); x+=1
                if x==3: ONE[NS-1]=oneg(NS-1); cus[x]=("one",NS-1); x+=1
    nskip=18-len(cus); hi=OPT.get("skiphi",14)
    skip=set(hi-2*j for j in range(nskip)); slots_=[y for y in range(18) if y not in skip]
    cus={slots_[y]:v for y,v in cus.items()}
    def Ncustom(x):
        if x not in cus: return None
        return PV[cus[x][1]] if cus[x][0]=="pv" else ONE[cus[x][1]]
    def placed(x,p):
        (posP if cus[x][0]=="pv" else posO)[cus[x][1]]=p
    BAR={}; W={}; C={}; LA={}; LW={}; RQ={}; TR={}; E={}
    bdeps={k:[] for k in range(NS)}; btags={k:set() for k in range(NS)}; bneed={k:[] for k in range(NS)}
    for k in range(NS): BAR[k]=b.barrier(end[k]-off,[],tags=btags[k],need=set())
    def bneeds(k,o): BAR[k].deps.append(o); BAR[k].ins.meta["need"].add(id(o.ins))
    for k in range(1,NS): BAR[k].deps.append(BAR[k-1])
    state={"scc":[],"dma":[],"ep":{}}
    def softmax(k):
        c,t=divmod(k,T)
        for ch in range(4):
            n=4*k+ch; qb=ch//2; h=ch%2
            for r in range(4): E[(k,ch,r)]=b.add(vexp(Sb(n)+r),posQ[(k,ch)]+6+2*r,[QK[(k,ch)][3]],name=f"E{k}.{ch}.{r}")
            for p2 in range(2):
                deps=[E[(k,ch,2*p2)],E[(k,ch,2*p2+1)]]
                if OWN:
                    if k>=4: deps+=[ONE[k-4][qb],W[(k-4,qb)],PV[(k-4,qb,0)][0],PV[(k-4,qb,1)][0]]
                elif k>=2: deps+=[ONE[k-2][qb],W[(k-2,qb)]]
                o=b.add(vcvtp(Pw(k,qb)+2*h+p2,Sb(n)+2*p2,Sb(n)+2*p2+1),E[(k,ch,2*p2+1)].prio+1,deps,name=f"C{k}.{ch}.{p2}")
                C[(k,ch,p2)]=o
                if k+1<NS: b.need(posQ[(k+1,ch)],o)
            if h==1:
                W[(k,qb)]=b.add(dsw128(vPw,Pw(k,qb),ent(k,qb)),C[(k,ch,1)].prio+1,[C[(k,cc,pp)] for cc in(ch-1,ch) for pp in range(2)]+([BAR[pvstep(k-4)]] if (k>=4 and pvstep(k-4)<k and ent(k,0)==ent(k-4,0)) else [])+([BAR[k-3]] if k>NS-LAG else []),name=f"W{k}.{qb}")
                if k+1<NS: bneeds(k+1,W[(k,qb)])
    for k in range(NS): softmax(k)
    def one_ops(k):
        c,t=divmod(k,T)
        for cc in range(4):
            for pp in range(2): b.need(posO[k],C[(k,cc,pp)])
        if k>=1: b.need(posO[k],LA[k-1])
        ins=valu(f"v_mov_b32 v{vLs(t)}, v{vLacc}",V(vLacc),V(vLs(t))) if c==0 else v2("v_add_f32",vLs(t),vLs(t),vLacc)
        LA[k]=b.add(ins,posO[k]+6,[ONE[k][1]],name=f"LA{k}")
        if c==3:
            LW[t]=b.add(dsw32(vLw,vLs(t),((T-1)%2)*512 if t==T-1 else 1024+t*512),posO[k]+8,[LA[k]],name=f"LW{t}")
            if k+1<NS: bneeds(k+1,LW[t])
    for k in range(NS-1): one_ops(k)
    def preads(k):
        for qb in range(2):
            for j in range(1 if ownk(k) else 0,4):
                deps=[BAR[k+1]]+([PV[(k-1,qb,1)][j]] if k>=1 else [])
                o=b.add(dsr128(vRing(2*k+qb,j),vPw if j==0 else vPr[j],ent(k,qb)),posP[(k,qb,0)]-OPT.get('rlead',12)+j,deps,name=f"R{k}.{qb}.{j}")
                b.need(posP[(k,qb,0)]-1,o); state.setdefault("R",[]).append(o)
    for k in range(NS-LAG): preads(k)
    for k in range(NS+1):
        t=k%T if k<NS else T%NQ
        for qb in range(2):
            for ds in range(4):
                deps=[QK[(k-1,2*qb+1)][ds]] if k>=1 else []
                if 2<=k<T: deps.append(BAR[k-2]); btags[k-2].add(f"Q{k}")
                if k==NS: deps.append(BAR[NS-2]); btags[NS-2].add(f"Q{T}")
                pr=(posQ[(k-1,2*qb+1)]+1+ds) if k>=1 else 14+4*qb+ds
                o=b.add(dsr128(vQ(qb,ds),vQrd,t*QSLOT+qb*4160+ds*256),pr,deps,name=f"RQ{k}.{qb}.{ds}"); RQ[(k,qb,ds)]=o
                if k<NS: b.need(posQ[(k,2*qb)]-1,o)
                elif qb==0: b.need(posQ[("pre",14)]-1,o)
    btags[NS-1].add(f"Q{T+1}")
    state["chain"]=[]; hard={0,1}
    def issue(units,where,deps,nm):
        for u,(k,fr) in zip(units,where):
            tt=int(start[k]+fr*(end[k]-start[k])); prev=list(deps)+state["chain"]+state["scc"]
            cap=caps[0] if nm=="D" else caps[1]
            if cap: u=[wait(vm=cap)]+list(u)
            nd=[x.kind for x in u].index("dma")
            for x,ins in enumerate(u):
                if ins.kind in("salu","wait"): o=b.adds(ins,tt+x-nd-3,prev,name="s"+nm,earliest=tt+x-nd-3 if x<nd else 0)
                else: o=b.add(ins,tt,prev,earliest=tt,name=nm); ins.cost=OPT.get("sdmac",8)
                prev=[o]
            state["chain"]=prev; state["scc"]=prev
            if k in hard: BAR[k].deps.append(prev[0])
    def spread(n,k0,per):
        w=[]; k=k0
        while len(w)<n:
            m=min(per,n-len(w)); w+=[(k,(x+0.5)/per) for x in range(m)]; k+=1
        return w
    kchain=[]
    def extra(j):
        o=flat([([wait(vm=caps[0])] if caps[0] else [])+u for u in STREAM[12+(NPRO-12)*j//16:12+(NPRO-12)*(j+1)//16]])
        if j==9: o+=[waitslot(),bar(tags={"Q0","Q1"},need=set())]
        if 10<=j<14: o+=[RQ[(0,(j-10)//2,2*(j%2)+x)].ins for x in range(2)]
        return o
    for qb in range(2):
        for ds in range(4): o=RQ[(0,qb,ds)]; b.ops.remove(o); o.done=True; o.gap=-1
    ks0=b.add([waitslot()]+kread(0)+kscale(0,extra)+[waitslot()],0,[],name="KS0"); b.need(0,ks0)
    rest=STREAM[NPRO:]
    n0=OPT.get("n0",4); n1=OPT.get("n1",10)
    w=[(0,(x+0.5)/n0) for x in range(n0)]+[(1,OPT.get('f1',30)/100+0.5*x/n1) for x in range(n1)]
    w=w[:len(rest)]; w+=spread(len(rest)-len(w),2,2)
    issue(rest,w,[ks0],"D")
    lastk=w[-1][0]
    for c in range(4):
        s1=pvstep(c*T)-1
        btags[s1-1].add(f"V{c}")
        p0=start[c*T]
        if c==0: ks=ks0
        else:
            kr=[b.add(ins,p0-14+x,kchain,earliest=p0-16,name=f"KR{c}") for x,ins in enumerate(kread(c))]
            if OPT.get("kin",1) and c<3:
                ku=[([wait(vm=caps[1])] if caps[1] else [])+u for u in kdma_units(c+1)]; k0=OPT.get("kin0",0)
                ks=b.add([wait(lg=0)]+kscale(c,lambda j:ku[(j-k0)//OPT.get("kst",2)] if (j>=k0 and (j-k0)%OPT.get("kst",2)==0 and (j-k0)//OPT.get("kst",2)<8) else []),p0,kr+state["TR"]+state["chain"]+state["scc"],name=f"KS{c}")
                state["chain"]=[ks]; state["scc"]=[ks]
            else: ks=b.add(kscale(c),p0,kr+state["TR"],name=f"KS{c}")
            b.need(p0,ks)
        aw=[]
        for j in(14,15):
            x=ksops(c,j); prev=[ks]
            for n,ins in enumerate(x): o=b.add(ins,p0-8+j-14+n*0.1,prev,name="Kx"); prev=[o]; aw.append(o); b.need(posQ[(c*T,1)],o)
        state["KS"]=aw
        if OPT.get("rw1",-1)==c:
            x=rewarm("L_merged"); x[0].kind="salu"
            o0=b.adds(x[0],p0-2,[ks],name="sRW"); state["chain"]=[b.add(x[1],p0,[o0]+state["chain"],name="RW")]
        if OPT.get("touch") and OPT.get("tpos")==c: state["chain"]=[b.add(touch_ins(),p0,[ks]+state["chain"],name="TOUCH")]
        if 1<=c<3 and not OPT.get("kin",1): issue(kdma_units(c+1),spread(8,c*T,OPT.get("kper",6)),[ks],f"KD{c+1}")
        kchain=state["chain"]
        if V3 and OPT.get("vlate",1) and 1<=c<3:
            issue(vdma_half(2*c+2),[(c*T+int(f),f-int(f)) for f in [OPT.get("vl10",8)/10+(x+0.5)/OPT.get("vlper",4) for x in range(4)]],[state["vrel"]],f"VA{c+1}")
        state["TR"]=[]
        for j in range(4):
            r=vPw if j==0 else vPr[j]
            tb=b.add(vop(f"v_add_u32 v{vTB+j}, s{50+j}, v{vTD}",S(50+j)+V(vTD),V(vTB+j)),start[s1-1]+j,state.get("KS",[]),earliest=start[s1-1],name="TB")
            for db in range(2):
                for hf in range(2):
                    a=aV(j,c,db)+2*hf
                    o=b.add(I(f"ds_read_b64_tr_b16 a[{a}:{a+1}], v{vTB+j} offset:{vbuf(2*c+hf)-XB+8*db}","dsr",V(vTB+j),A(a,2)),start[s1]+(j*4+db*2+hf)*OPT.get("trs",10)/10-OPT.get("tro",0),[BAR[s1-1],tb],name=f"TR{c}")
                    b.need(posP[(c*T,0,0)]-1,o); state["TR"].append(o)
                    if not (OPT.get("vbar") and c<3): bneeds(s1,o)
        vrel=BAR[s1]; vk=s1+1; vf=0
        if OPT.get("vbar") and c<3:
            vrel=b.barrier(start[s1]+OPT["vbar"],[BAR[s1-1]]+state["TR"],keep=True,need={id(o.ins) for o in state["TR"]}); BAR[s1].deps.append(vrel)
            vk=s1; vf=(OPT["vbar"]+2)/(end[s1]-start[s1])
        if c==0 and OC==1 and "ocfix" not in OPT:
            assert LAG<=3 and T-LAG<=2
            prev=list(state["TR"][:4]); tt=start[s1+1]+2
            for ins in vscale(): o=b.add(ins,tt,prev,name="VS"); prev=[o]; tt+=2
            b.need(posP[(T-1,0,0)],o)
        if c<3:
            per=OPT.get("v1per",6) if c==0 else OPT.get("vper",6)
            k0=max(vk,lastk,OPT.get("v1",0)) if c==0 else vk
            w=[(k0+int(f),f-int(f)) for f in [(vf if k0==vk else 0)+(x+0.5)/per for x in range(8)]]
            if V3:
                issue(vdma_half(2*c+3),w[:4],[vrel],f"VD{c+1}")
                state["vrel"]=vrel
                if c<2 and not OPT.get("vlate",1): issue(vdma_half(2*c+4),[(k0+int(f),f-int(f)) for f in [OPT.get("va10",10)/10+(x+0.5)/per for x in range(4)]],[vrel],f"VD{c+2}")
            else: issue(vdma_units(c+1),w,[vrel],f"VD{c+1}")
        if c==2: state["xfree"]=[BAR[s1]]
    state["ep"]={"L":state["KS"],"S":state["TR"]}
    for x in range(D):
        t=T+x; k=min(max(3*T+1+t-NQ,3*T-1+x*OPT.get("qstep",1)+OPT.get("q0",0)),NS-1)
        issue(qdma_units(t),[(k,0.25),(k,0.6)],[BAR[3*T+t-NQ]] if t>=NQ else state["xfree"],"QD")
    chain=state["chain"]
    def ep(t,t0,tm,dt,scc):
        k=3*T+t
        od={(qb,db):PV[(k,qb,db)][3] for qb in range(2) for db in range(2)}
        e=epilogue_ops(b,lambda qb,db:vOs[t]+qb*8+db*4,1024+t*512,t0,tm,dt,[BAR[k+1]],od,state["ep"],scc,sc=0.5,tg=f"t{t}",OC=0)
        state["ep"]=e; return e
    eps={}; BARX=[]
    for t in range(T-LAG-1+0):
        k=3*T+t+LAG
        eps[t]=ep(t,start[k]+8,start[k]+20,1.3,state["scc"]); state["scc"]=eps[t]["A"]
    if T-LAG>=2:
        for o in eps[0]["M"]+eps[0]["S"]: b.need(posQ[("pre",14)],o)
    e14=[b.add(vexp(vS(14)+r),posQ[("pre",14)]+6+2*r,[QK[("pre",14)][3]],name=f"Ep{r}") for r in range(4)]
    def late(scc,must_bar):
        BAR[NS]=b.barrier(end[NS-1]+1+OPT.get("barx",23)+3-off,[BAR[NS-1]],keep=True,need=set())
        for qb in range(2): bneeds(NS,W[(NS-1,qb)])
        BARX.append(BAR[NS])
        state["R"]=[]
        for k in range(NS-LAG,NS): preads(k)
        must_bar+=state["R"]
        one_ops(NS-1); must_bar.append(LW[T-1])
        for t in range(T-LAG-1,T-1):
            k=3*T+t
            p=posP[(k,0,0)] if k>=NS-LAG else end[NS-1]-8
            p+=OPT.get("epd",0)*(t-(T-LAG-1))
            eps[t]=ep(t,p-6,p+10,OPT.get("epdt0",12)/10,scc); scc=eps[t]["A"]
        return scc
    last=NS-1
    ctx=dict(dmaprio=5,placed=placed,late=late,scc=state["scc"],c15=[QK[("pre",15)][3]],e14=e14,dmadep=chain+[BAR[last]],
             must_bar=[W[(last,0)],W[(last,1)]],wdep=[BAR[last]],rqdep=[BAR[last]],rqprev=[RQ[(NS,qb,ds)] for qb in range(2) for ds in range(4)],
             pwar={f:[ONE[NS-4+f//2][f%2],W[(NS-4+f//2,f%2)]]+([PV[(NS-4+f//2,f%2,0)][0],PV[(NS-4+f//2,f%2,1)][0]] if ownk(NS-4+f//2) else []) for f in range(8)} if OWN else
                  {0:[ONE[last-1][0],W[(last-1,0)]],1:[ONE[last-1][1],W[(last-1,1)]],2:[ONE[last][0],W[(last,0)]],3:[ONE[last][1],W[(last,1)]],
                   **({f:eps[1]["M"]+eps[1]["S"] for f in range(4,8)} if T-LAG>=3 else {})},
             swar={n:[C[(last,n,pp)] for pp in range(2)] for n in range(4)})
    iter_parts(b,T,T%2,1,1,0,0,1,Ncustom=Ncustom,ctx=ctx,baroff=off)
    b.sops[-1].deps.append(BAR[NS])
    for ds in range(4): b.need(end[last]+1+8-1,RQ[(NS,1,ds)])
    res=b.run(prefix,log,overdue=OPT.get("od",3))
    if OPT["stamp"]==2 and not OPT.get("ps") and "lg0" not in OPT:
        p0=OPT.get('p0'); pts=[2,3,6,9,13,16,20,23,27] if p0 is None else list(range(p0,p0+9)); o=[]
        for x in res:
            o.append(x)
            for n,k in enumerate(pts):
                if x is BAR[k].ins: o.append(raw(f"{'s_memtime' if OPT.get('cyc') else 's_memrealtime'} s[{78+2*n}:{79+2*n}]"))
        res=o
        if OPT.get("fine"):
            o=[]; on=False; n=0; x_=0
            for x in res:
                if x.kind=="raw" and x.text.startswith("s_mem"): continue
                o.append(x)
                if x is BAR[NS-1].ins: on=True; o.append(raw("s_memtime s[78:79]")); n=1
                if on and x.kind=="mfma":
                    x_+=1
                    if x_%OPT["fine"]==0 and n<9: o.append(raw(f"s_memtime s[{78+2*n}:{79+2*n}]")); n+=1
            res=o
    n=[n for n,x in enumerate(res) if x is BAR[NS-3].ins][0]
    res=res[:n+1]+[label(f"L_merged{off if off else ''}{sfx}")]+res[n+1:]
    if "spinbar" in OPT:
        n=[n for n,x in enumerate(res) if x is BAR[OPT["spinbar"]].ins][0]
        res=res[:n+1]+stamp(1)+res[n+1:]
    if "spinfrom" in OPT:
        n=[n for n,x in enumerate(res) if x is BAR[OPT["spinfrom"]].ins][0]
        res=res[:n+1]+stamp(0)+res[n+1:]
    if OPT.get("seg"):
        idx=[n for n,x in enumerate(res) if x.kind=="bar"]
        print("step est:",[estimate(res[a:z]) for a,z in zip(idx,idx[1:])],file=sys.stderr)
    return res

class Seq:
    def __init__(s,prefix=()): s.o=list(prefix); s.n0=len(s.o)
    def __call__(s,*ins,slot=True):
        for i in ins:
            if slot and i.kind not in("label","comment","salu","wait","branch","raw","nop"): s.o.append(waitslot())
            k=hazard_need(s.o,i)
            if k>0: s.o.append(nop(k))
            s.o.append(i)
    def out(s): return s.o[s.n0:]

def vop(t,rd,wr): return valu(t,rd,wr)
def prologue():
    q=Seq()
    q(salu("s_cmp_ge_u32 s2, 256",S(2),[SCC]), I("s_cbranch_scc1 L_end","branch",[SCC]))
    if OPT["stamp"]: q(raw("s_memtime s[60:61]"),raw("s_memrealtime s[62:63]"),raw(f"s_load_dwordx2 s[{sDbg}:{sDbg+1}], s[0:1], 32"))
    q(raw("s_load_dwordx4 s[36:39], s[0:1], 0"), raw("s_load_dwordx4 s[40:43], s[0:1], 16"))
    L,Q_,G_,T1,T2,T3=200,201,202,203,204,205
    if OPT.get("warm",2):
        q(raw("s_getpc_b64 s[56:57]"), label("L_pc"), raw("s_and_b32 s57, s57, 0xffff"), raw("s_mov_b32 s58, L_end-L_pc"), raw("s_mov_b32 s59, 0x20000"))
        q(vop(f"v_lshlrev_b32 v{T2}, 7, v0",V(0),V(T2)))
    XV=OPT.get("xc0",3) or OPT.get("xc1",0)
    def warm(ks):
        for k in ks:
            if not XV: q(raw(f"s_mov_b32 s55, {k*32768}"))
            elif k==0: q(raw("s_getreg_b32 s73, hwreg(HW_REG_XCC_ID)"),raw(f"s_bitcmp{OPT.get('xpar',0)}_b32 s73, 0"),raw("s_cselect_b32 s55, L_xs-L_pc, 0"))
            else: q(raw("s_mov_b32 s55, L_xj-L_pc"))
            q(I(f"buffer_load_dword v{232+k}, v{T2}, s[56:59], s55 offen","vld",V(T2),V(232+k)),slot=False)
    nw=OPT.get("warm",2); we=OPT.get("wearly",1)
    warm(range(min(we,nw)))
    if "rw1" in OPT or "rw2" in OPT: q(vop(f"v_mov_b32 v254, v{T2}",V(T2),V(254)))
    q(vop(f"v_and_b32 v{L}, 63, v0",V(0),V(L)), vop(f"v_lshrrev_b32 v{T1}, 6, v0",V(0),V(T1)))
    q(I(f"v_readfirstlane_b32 s{sW}, v{T1}","valu",V(T1),S(sW),meta={"rfl":1}))
    q(vop(f"v_and_b32 v{Q_}, 15, v{L}",V(L),V(Q_)), vop(f"v_lshrrev_b32 v{G_}, 4, v{L}",V(L),V(G_)))
    R_,C_=208,209
    q(vop(f"v_bfe_u32 v{R_}, v{L}, 2, 2",V(L),V(R_)), vop(f"v_and_b32 v{C_}, 3, v{L}",V(L),V(C_)))
    if OPT.get("remap",1):
        q(salu("s_and_b32 s3, s2, 7",S(2),S(3)), salu("s_lshl_b32 s3, s3, 5",S(3),S(3)), salu("s_lshr_b32 s75, s2, 3",S(2),S(75)), salu("s_or_b32 s75, s75, s3",S(75)+S(3),S(75)))
    hd=75 if OPT.get("remap",1) else 2
    q(salu(f"s_mul_i32 s3, s{hd}, {QBYTES}",S(hd),S(3)), salu(f"s_lshl_b32 s31, s{hd}, 17",S(hd),S(31)))
    q(salu(f"s_lshl_b32 s46, s{sW}, 11",S(sW),S(46)), salu(f"s_lshl_b32 s{sKo}, s{sW}, 15",S(sW),S(sKo)))
    q(vop(f"v_lshlrev_b32 v{vQdma}, 8, v{R_}",V(R_),V(vQdma)), vop(f"v_lshl_add_u32 v{vQdma}, v{G_}, 6, v{vQdma}",V(G_)+V(vQdma),V(vQdma)),
      vop(f"v_lshl_add_u32 v{vQdma}, v{C_}, 4, v{vQdma}",V(C_)+V(vQdma),V(vQdma)), vop(f"v_add_u32 v{vQdma}, s46, v{vQdma}",S(46)+V(vQdma),V(vQdma)))
    q(salu(f"s_mul_i32 s47, s{sW}, 2080",S(sW),S(47)), salu(f"s_add_u32 s{sWoff}, s47, {QBASE}",S(47),S(sWoff)))
    q(salu(f"s_sub_u32 s44, s{sKo}, s46",S(sKo)+S(46),S(44)), salu(f"s_mul_i32 s54, s{sW}, {QSLOT}",S(sW),S(54)), salu(f"s_add_u32 s54, s54, {KBASE}",S(54),S(54)))
    for srd,nb in((sQ,QBYTES),(sK,KBYTES),(sV,KBYTES),(sO,QBYTES)):
        q(salu(f"s_mov_b32 s{srd+2}, {nb}",[],S(srd+2)), salu(f"s_mov_b32 s{srd+3}, 0x20000",[],S(srd+3)))
    q(raw("s_waitcnt lgkmcnt(0)"))
    def base(srd,src,off):
        q(salu(f"s_add_u32 s{srd}, s{src}, s{off}",S(src)+S(off),S(srd)), salu(f"s_addc_u32 s{srd+1}, s{src+1}, 0",S(src+1),S(srd+1)),
          salu(f"s_and_b32 s{srd+1}, s{srd+1}, 0xffff",S(srd+1),S(srd+1)))
    ps=lambda n:[raw(f"s_memrealtime s[{78+2*n}:{79+2*n}]")] if OPT.get("ps") else []
    base(sK,38,31); q(*ps(0),*flat(STREAM[:8]),*ps(1),slot=False)
    base(sQ,36,3); q(*flat(STREAM[8:12]),slot=False)
    warm(range(min(we,nw),nw))
    base(sV,40,31); base(sO,42,3)
    if OPT.get("touch"):
        q(vop(f"v_lshlrev_b32 v{T2}, {OPT.get('tsh',12)}, v0",V(0),V(T2)))
        q(vop(f"v_mov_b32 v254, v{T2}",V(T2),V(254)))
        if not OPT.get("tpos"): q(touch_ins(),slot=False)
    for n in range(1,8): q(salu(f"s_add_u32 s{sKo+n}, s{sKo}, {n*4096}",S(sKo),S(sKo+n)))
    q(salu(f"s_add_u32 s{sT}, s47, {QEND}",S(47),S(sT)), salu(f"s_add_u32 s{sQm0}, s{sWoff}, {((T+D)%NQ)*QSLOT}",S(sWoff),S(sQm0)), salu(f"s_mov_b32 s{sQso}, {(T+D)*8192}",[],S(sQso)))
    q(vop(f"v_lshlrev_b32 v{T1}, 2, v{G_}",V(G_),V(T1)), vop(f"v_xor_b32 v{T1}, v{T1}, v{Q_}",V(T1)+V(Q_),V(T1)),
      vop(f"v_lshlrev_b32 v{T1}, 4, v{T1}",V(T1),V(T1)), vop(f"v_lshl_add_u32 v{vVA}, v{G_}, 8, v{T1}",V(G_)+V(T1),V(vVA)))
    q(salu(f"s_lshl_b32 s{sVm}, s{sW}, 12",S(sW),S(sVm)))
    q(*ps(2))
    q(vop(f"v_lshrrev_b32 v{T1}, 2, v{Q_}",V(Q_),V(T1)), vop(f"v_lshlrev_b32 v{vQrd0}, 10, v{T1}",V(T1),V(vQrd0)),
      vop(f"v_lshrrev_b32 v{T1}, 3, v{Q_}",V(Q_),V(T1)), vop(f"v_lshl_add_u32 v{vQrd0}, v{T1}, 5, v{vQrd0}",V(T1)+V(vQrd0),V(vQrd0)),
      vop(f"v_lshl_add_u32 v{vQrd0}, v{C_}, 6, v{vQrd0}",V(C_)+V(vQrd0),V(vQrd0)), vop(f"v_lshl_add_u32 v{vQrd0}, v{G_}, 4, v{vQrd0}",V(G_)+V(vQrd0),V(vQrd0)))
    q(salu(f"s_mov_b32 s{sQrs}, {QBASE+(T%NQ)*QSLOT}",[],S(sQrs))); q(vop(f"v_add_u32 v{vQrd}, {QBASE}, v{vQrd0}",V(vQrd0),V(vQrd)))
    for j in range(4):
        q(salu(f"s_add_u32 s49, s{sW}, {j}",S(sW),S(49)), salu("s_and_b32 s49, s49, 3",S(49),S(49)), salu(f"s_lshl_b32 s{50+j}, s49, 13",S(49),S(50+j)))
        r=vPw if j==0 else vPr[j]
        q(vop(f"v_lshl_add_u32 v{r}, v{L}, 4, s{50+j}",V(L)+S(50+j),V(r)))
        q(salu(f"s_lshr_b32 s{50+j}, s{50+j}, 1",S(50+j),S(50+j)), salu(f"s_add_u32 s{50+j}, s{50+j}, {XB}",S(50+j),S(50+j)))
    q(salu(f"s_lshl_b32 s49, s{sW}, 6",S(sW),S(49)))
    q(vop(f"v_lshlrev_b32 v{vOst}, 8, v{Q_}",V(Q_),V(vOst)), vop(f"v_lshl_add_u32 v{vOst}, v{G_}, 4, v{vOst}",V(G_)+V(vOst),V(vOst)), vop(f"v_add_u32 v{vOst}, s49, v{vOst}",S(49)+V(vOst),V(vOst)))
    q(vop(f"v_lshrrev_b32 v{T1}, 1, v{G_}",V(G_),V(T1)), vop(f"v_lshl_add_u32 v{T1}, v{T1}, 4, v{Q_}",V(T1)+V(Q_),V(T1)),
      vop(f"v_lshlrev_b32 v{T1}, 4, v{T1}",V(T1),V(T1)), vop(f"v_add_u32 v{vLr}, {LBASE}, v{T1}",V(T1),V(vLr)))
    q(salu(f"s_lshl_b32 s49, s{sW}, 2",S(sW),S(49))); q(vop(f"v_add_u32 v{vLw}, s49, v{vLr}",S(49)+V(vLr),V(vLw)))
    q(vop(f"v_mov_b32 v{vLmax}, 0",[],V(vLmax)), vop(f"v_mov_b32 v{vRmax}, 0",[],V(vRmax)))
    if OC and "ocfix" in OPT:
        for r in range(4): q(vop(f"v_mov_b32 v{vC0+r}, {struct.unpack('<I',struct.pack('<f',OPT['ocfix']/8))[0]:#x}",[],V(vC0+r)))
    if CI not in(0,1,2,4,-1,-2,-4):
        assert max(vOs)+15<vCI or T-LAG<=2 and LAG<=3
        for r in range(4): q(vop(f"v_mov_b32 v{vCI+r}, {struct.unpack('<I',struct.pack('<f',CI))[0]:#x}",[],V(vCI+r)))
    q(vop(f"v_mov_b32 v{T1}, 0x3f803f80",[],V(T1)), vop(f"v_and_b32 v{T2}, {11 if OPT.get('sel2',1) else 8}, v{Q_}",V(Q_),V(T2)))
    for x in range(2):
        q(valu(f"v_cmp_eq_u32 vcc, {8*x}, v{T2}",V(T2),[VCC]))
        for r in range(4): q(valu(f"v_cndmask_b32 v{vSEL[x]+r}, 0, v{T1}, vcc",V(T1)+[VCC],V(vSEL[x]+r)))
    if OPT.get("trunc"): q(salu("s_mov_b32 s74, 0x07060302",[],S(74)))
    q(salu(f"s_mov_b32 s{sO0}, 0",[],S(sO0)), salu(f"s_mov_b32 s{sO1}, 4096",[],S(sO1)))
    q(vop(f"v_lshlrev_b32 v{T1}, 2, v{R_}",V(R_),V(T1)), vop(f"v_add_u32 v{T2}, s49, v{C_}",S(49)+V(C_),V(T2)), vop(f"v_xor_b32 v{T2}, v{T2}, v{T1}",V(T1)+V(T2),V(T2)),
      vop(f"v_lshl_add_u32 v{T3}, v{G_}, 2, v{R_}",V(G_)+V(R_),V(T3)), vop(f"v_lshlrev_b32 v{T3}, 8, v{T3}",V(T3),V(T3)), vop(f"v_lshl_add_u32 v{vTD}, v{T2}, 4, v{T3}",V(T2)+V(T3),V(vTD)))
    q(vop(f"v_add_u32 v{vKA}, s54, v{vQrd0}",S(54)+V(vQrd0),V(vKA)))
    q(vop(f"v_lshrrev_b32 v{T1}, 2, v{Q_}",V(Q_),V(T1)), valu(f"v_cmp_eq_u32 vcc, v{T1}, v{G_}",V(T1)+V(G_),[VCC]),
      vop(f"v_and_b32 v{T1}, 1, v{L}",V(L),V(T1)), vop(f"v_lshlrev_b32 v{T1}, 4, v{T1}",V(T1),V(T1)),
      vop(f"v_and_b32 v{T2}, 2, v{L}",V(L),V(T2)), valu(f"v_cmp_eq_u32 s[48:49], 0, v{T2}",V(T2),S(48,2)))
    for lo,cb in enumerate((CHI,CLO)):
        q(vop(f"v_mov_b32 v{T2}, {cb:#x}",[],V(T2)), v2("v_lshlrev_b32",T2,T1,T2), valu(f"v_cndmask_b32 v{T2}, 0, v{T2}, vcc",V(T2)+[VCC],V(T2)),
          valu(f"v_cndmask_b32 v{T3}, 0, v{T2}, s[48:49]",V(T2)+S(48,2),V(T3)), v2("v_xor_b32",T2,T2,T3))
        for half in range(2):
            a=aSC(lo,half)
            q(vop(f"v_accvgpr_write_b32 a{a+2*half}, v{T3}",V(T3),A(a+2*half)), vop(f"v_accvgpr_write_b32 a{a+2*half+1}, v{T2}",V(T2),A(a+2*half+1)),
              vop(f"v_accvgpr_write_b32 a{a+2-2*half}, 0",[],A(a+2-2*half)), vop(f"v_accvgpr_write_b32 a{a+3-2*half}, 0",[],A(a+3-2*half)))
    q(*ps(3))
    return q.out()

def fallback():
    q=Seq()
    q(label("L_fallback"), wait(vm=0,lg=0), bar())
    q(salu(f"s_mov_b32 s{sQso}, 0",[],S(sQso)), salu(f"s_mov_b32 s{sO0}, 0",[],S(sO0)), salu(f"s_mov_b32 s{sO1}, 4096",[],S(sO1)), salu(f"s_mov_b32 s{sLoop}, {NT}",[],S(sLoop)))
    q(vop(f"v_add_u32 v{vQrd}, {QBASE}, v{vQrd0}",V(vQrd0),V(vQrd)))
    MW,MR,T=216,217,218
    q(vop(f"v_mbcnt_lo_u32_b32 v{T}, -1, 0",[],V(T)), vop(f"v_mbcnt_hi_u32_b32 v{T}, -1, v{T}",V(T),V(T)),
      vop(f"v_and_b32 v{MR}, 15, v{T}",V(T),V(MR)), vop(f"v_lshlrev_b32 v{MR}, 6, v{MR}",V(MR),V(MR)), vop(f"v_add_u32 v{MR}, {MBASE}, v{MR}",V(MR),V(MR)),
      vop(f"v_lshrrev_b32 v{T}, 4, v{T}",V(T),V(T)), vop(f"v_lshl_add_u32 v{MW}, v{T}, 2, v{MR}",V(T)+V(MR),V(MW)))
    q(salu(f"s_lshl_b32 s49, s{sW}, 4",S(sW),S(49))); q(vop(f"v_add_u32 v{MW}, s49, v{MW}",S(49)+V(MW),V(MW)))
    q(label("L_fb_loop"))
    q(salu(f"s_mov_b32 m0, s{sWoff}",S(sWoff),[M0])); q(dma(vQdma,sQ,sQso,0),dma(vQdma,sQ,sQso,1024)); q(wait(vm=0),bar())
    for qb in range(2):
        for ds in range(4): q(dsr128(vQ(qb,ds),vQrd,qb*4160+ds*256))
    Sb=lambda kb,qb:64+(kb*2+qb)*4
    Pf=lambda f:128+f*4
    for kb in range(8):
        for qb in range(2):
            for ds in range(4): q(mfma(Sb(kb,qb),aK(kb,ds),vQ(qb,ds),None if ds==0 else Sb(kb,qb)))
    Mx=[220,221]; RD=224
    for qb in range(2):
        q(v2("v_max_f32",Mx[qb],Sb(0,qb),Sb(0,qb)+1))
        regs=[Sb(kb,qb)+r for kb in range(8) for r in range(4)][2:]
        for x in range(0,30,2): q(vop(f"v_max3_f32 v{Mx[qb]}, v{Mx[qb]}, v{regs[x]}, v{regs[x+1]}",V(Mx[qb])+V(regs[x])+V(regs[x+1]),V(Mx[qb])))
        q(dsw32(MW,Mx[qb],qb*1024))
    q(bar())
    for qb in range(2):
        for x in range(4): q(dsr128(RD+4*x,MR,qb*1024+16*x))
        q(v2("v_max_f32",Mx[qb],RD,RD+1))
        for x in range(2,16,2): q(vop(f"v_max3_f32 v{Mx[qb]}, v{Mx[qb]}, v{RD+x}, v{RD+x+1}",V(Mx[qb])+V(RD+x)+V(RD+x+1),V(Mx[qb])))
    for kb in range(8):
        for qb in range(2):
            for r in range(4): q(v2("v_sub_f32",Sb(kb,qb)+r,Sb(kb,qb)+r,Mx[qb]),slot=False)
            for r in range(4): q(vexp(Sb(kb,qb)+r),slot=False)
            for p2 in range(2): q(vcvt(Pf(2*(kb//2)+qb)+2*(kb%2)+p2,Sb(kb,qb)+2*p2,Sb(kb,qb)+2*p2+1),slot=False)
    for f in range(8): q(dsw128(vPw,Pf(f),f*1024))
    for qb in range(2):
        for kp in range(4): q(mfma(vLacc,vSEL[qb],Pf(2*kp+qb),None if (kp==0 and qb==0) else vLacc,afile='v'))
    q(dsw32(vLw,vLacc,0)); q(bar())
    for qb in range(2):
        for db in range(2):
            for kp in range(4): q(mfma(vO(0,qb,db),aV(0,kp,db),Pf(2*kp+qb),None if kp==0 else vO(0,qb,db)))
    for j in range(1,4):
        for qb in range(2):
            for k in range(4): q(dsr128(RD+4*k,vPr[j],(2*k+qb)*1024))
            for db in range(2):
                for kp in range(4): q(mfma(vO(0,qb,db),aV(j,kp,db),RD+4*kp,vO(0,qb,db)))
    q(dsr128(vLrd,vLr,0)); q(v2("v_add_f32",vLrd,vLrd,vLrd+1),v2("v_add_f32",vLrd+2,vLrd+2,vLrd+3),v2("v_add_f32",vLrd,vLrd,vLrd+2))
    q(valu(f"v_rcp_f32 v{vR0}, v{vLrd}",V(vLrd),V(vR0),"trans"), vop(f"v_mov_b32 v{vR1}, v{vR0}",V(vR0),V(vR1)),
      valu(f"v_permlane32_swap_b32 v{vR0}, v{vR1}",V(vR0)+V(vR1),V(vR0)+V(vR1),"perm"))
    for qb in range(2):
        for db in range(2):
            for p2 in range(2):
                r=vO(0,qb,db)+2*p2; R=vR0 if qb==0 else vR1
                q(v2("v_mul_f32",r,r,R),v2("v_mul_f32",r+1,r+1,R),vcvt(vOut(qb)+2*db+p2,r,r+1))
        q(vst(vOut(qb),vOst,sO,sO0 if qb==0 else sO1))
    q(salu(f"s_add_u32 s{sO0}, s{sO0}, 8192",S(sO0),S(sO0)), salu(f"s_add_u32 s{sO1}, s{sO1}, 8192",S(sO1),S(sO1)), salu(f"s_add_u32 s{sQso}, s{sQso}, 8192",S(sQso),S(sQso)))
    q(wait(vm=0,lg=0),bar())
    q(salu(f"s_sub_u32 s{sLoop}, s{sLoop}, 1",S(sLoop),S(sLoop)), salu(f"s_cmp_lg_u32 s{sLoop}, 0",S(sLoop),[SCC]), I("s_cbranch_scc1 L_fb_loop","branch",[SCC]))
    return q.out()

def stamp(n):
    if OPT["stamp"]==2: return [raw(f"s_memrealtime s[{76+2*n}:{77+2*n}]")] if n in(0,) else ([raw("s_memrealtime s[98:99]")] if n==1 else [])
    return [raw(f"s_memtime s[{76+4*n}:{77+4*n}]"),raw(f"s_memrealtime s[{78+4*n}:{79+4*n}]")] if OPT["stamp"] else []

def build():
    logs={}
    pro=prologue()+stamp(0)
    def it(i,par,cur,nxt,pv,ep,prefix,**kw):
        lg=[]; r=iteration(i,par,cur,nxt,pv,ep,(i+D<NT) or kw.get("force_dma"),prefix,log=lg,**{k:v for k,v in kw.items() if k!="force_dma"}); logs[i]=lg; return [comment(f"---- iteration {i}")]+r
    U=OPT.get("U",2); nst=40-(T+1); trips=nst//U; rem=nst-trips*U
    stag=OPT.get("stag",0); ncopy=OPT.get("ncopy",4) if stag else 1
    sst=OPT.get("sstag",0)
    disp=[]
    for cp in range(ncopy-1,0,-1):
        disp+=[salu(f"s_cmp_ge_u32 s{sW}, {cp*(4//ncopy)}",S(sW),[SCC]), I(f"s_cbranch_scc1 L_copy{cp}","branch",[SCC])]
    def mk0(off,caps=(OPT.get("cap0",0),OPT.get("cap1",0)),sfx=""):
        lg=[]; r=[comment("---- start-up steps + merged iteration")]+startup(pro,lg,off,caps,sfx); logs[0]=lg
        return r+[salu(f"s_mov_b32 s{sLoop}, {trips}",[],S(sLoop))]+([] if "spinbar" in OPT else stamp(1))
    XC=(OPT.get("xc0",3),OPT.get("xc1",0))
    i0x=mk0(0,XC,"x") if any(XC) else None
    def mkend(prev,off):
        r=[]
        for u in range(rem):
            x=it(40-rem+u,(40-rem+u)%2,1,1,1,1,prev,force_dma=True,baroff=off); prev=x; r+=x
        x=stamp(2)+it(40,0,1,0,1,1,prev,ctx={"eager":1},baroff=off)
        return r,x
    if not sst: i0=mk0(0)
    allb=[]; paths=[]; body_rem=[]
    for cp in range(ncopy):
        if sst: i0=mk0(stag*cp)
        body=[]; prev=i0
        for u in range(U):
            x=it(T+1+u,(T+1+u)%2,1,1,1,1,prev,force_dma=True,loopctl=f"L_loop{cp}" if (u==U-1 and trips>1) else None,baroff=stag*cp); body+=x; prev=x
            if u==0: ia=x
            if u==1: ib=x
        if "lg0" in OPT:
            o=[]; n=0; g=-1
            for x in body:
                o.append(x)
                if x.kind=="mfma":
                    g+=1
                    if g>=OPT["lg0"] and (g-OPT["lg0"])%OPT.get("lgs",8)==0 and n<9: o.append(raw(f"s_memtime s[{78+2*n}:{79+2*n}]")); n+=1
            body=o
        if sst or cp==0: br,i40=mkend(prev,stag*cp if sst else 0)
        paths.append(i0+body*min(trips,3)+br+i40)
        if i0x: paths.append(i0x+body*min(trips,3)+br+i40)
        if OPT.get("rot"):
            kind={"W":"dsw","S":"vst"}[OPT["rot"]]
            idx=max(n for n,x in enumerate(body) if x.kind==kind and x.cost>=8 and (kind!="dsw" or x.cost>8))+1
            assert body[-1].kind=="branch" and any(x.text.startswith(f"s_cmp_lg_u32 s{sLoop}") for x in body[:idx])
            lay=[I(f"s_branch L_entry{cp}","branch"),raw(f".p2align {OPT.get('al',6)}"),label(f"L_loop{cp}")]+body[idx:-1]+[label(f"L_entry{cp}")]+body[:idx]+[body[-1]]+body[idx:-1]
        else: lay=[raw(f".p2align {OPT.get('al',6)}"),label(f"L_loop{cp}")]+body
        allb+=[label(f"L_copy{cp}")]+(i0 if sst else [])+lay+(br+i40 if sst else [])
        body_rem+=body+br
        if cp<ncopy-1: allb+=[I("s_branch L_after","branch")]
    allb+=[label("L_after")]
    lg=[]; i41=[comment("---- drain")]+drain(41,i40,lg); logs[41]=lg; i42=[]; i1=[]
    if i0x:
        assert not sst
        i0=[salu(f"s_bitcmp{OPT.get('xpar',0)}_b32 s73, 0",S(73),[SCC]),I("s_cbranch_scc1 L_xs","branch",[SCC])]+i0+[I("s_branch L_xj","branch"),label("L_xs")]+i0x+[label("L_xj")]
    main=pro+(disp if sst else i0+disp)+allb+([] if sst else br+i40)+i41
    fin=Seq(i41+i42)
    fin(salu(f"s_mov_b32 s49, {HI:#x}",[],S(49)), salu(f"s_mov_b32 s50, {RHI:#x}",[],S(50)))
    fin(valu(f"v_cmp_lt_u32 vcc, s49, v{vLmax}",S(49)+V(vLmax),[VCC]), valu(f"v_cmp_lt_u32 s[52:53], s50, v{vRmax}",S(50)+V(vRmax),S(52,2)))
    fin(nop(4), salu("s_or_b64 vcc, vcc, s[52:53]",[VCC]+S(52,2),[VCC]), nop(4), I("s_cbranch_vccnz L_fallback","branch",[VCC]))
    if OPT["stamp"]==2 and OPT.get("all"):
        fin(raw("s_waitcnt vmcnt(0)"),raw("s_memrealtime s[100:101]"),raw("s_waitcnt lgkmcnt(0)"),raw(f"s_cmp_lg_u32 s{sW}, 0"),raw("s_cbranch_scc1 L_end"))
        fin(raw(f"s_and_b32 s{sDbg+1}, s{sDbg+1}, 0xffff"),raw(f"s_mov_b32 s{sDbg+2}, 4096"),raw(f"s_mov_b32 s{sDbg+3}, 0x20000"))
        fin(raw("s_getreg_b32 s3, hwreg(HW_REG_XCC_ID)"),raw("s_and_b32 s3, s3, 7"),raw("s_and_b32 s55, s62, 0xffffff"),raw("s_lshl_b32 s3, s3, 24"),raw("s_or_b32 s3, s3, s55"),raw("v_mov_b32 v200, s3"))
        if OPT.get("hwid"): fin(raw("s_getreg_b32 s82, hwreg(HW_REG_HW_ID)"),raw("s_add_u32 s82, s82, s62"))
        for n,r in enumerate((82,98,100)): fin(raw(f"s_sub_u32 s3, s{r}, s62"),raw(f"v_mov_b32 v{201+n}, s3"))
        fin(raw("s_lshl_b32 s3, s2, 4"),raw("v_mov_b32 v220, s3"),raw("s_mov_b64 exec, 1"),raw(f"buffer_store_dwordx4 v[200:203], v220, s[{sDbg}:{sDbg+3}], 0 offen"))
    elif OPT["stamp"]==2:
        fin(raw("s_waitcnt vmcnt(0)"),raw("s_memrealtime s[100:101]"),raw("s_waitcnt lgkmcnt(0)"))
        fin(raw("s_and_b32 s3, s2, 63"),raw("s_cmp_lg_u32 s3, 0"),raw("s_cbranch_scc1 L_end"),raw(f"s_cmp_lg_u32 s{sW}, 0"),raw("s_cbranch_scc1 L_end"))
        fin(raw(f"s_and_b32 s{sDbg+1}, s{sDbg+1}, 0xffff"),raw(f"s_mov_b32 s{sDbg+2}, 256"),raw(f"s_mov_b32 s{sDbg+3}, 0x20000"))
        for n in range(13): fin(raw(f"s_sub_u32 s3, s{76+2*n}, s62"),raw(f"v_mov_b32 v{200+n}, s3"))
        fin(raw("s_lshr_b32 s3, s2, 6"),raw("s_lshl_b32 s3, s3, 6"),raw("v_mov_b32 v220, s3"),raw("s_mov_b64 exec, 1"))
        for n in range(4): fin(raw(f"buffer_store_dwordx4 v[{200+4*n}:{203+4*n}], v220, s[{sDbg}:{sDbg+3}], 0 offen offset:{16*n}"))
    elif OPT["stamp"]:
        fin(*stamp(3)); fin(raw("s_waitcnt vmcnt(0)")); fin(*stamp(4)); fin(raw("s_waitcnt lgkmcnt(0)"))
        sp=OPT.get("spin")
        if sp is not None:
            ex={0:["s_mov_b32 s3, 0"],1:["s_sub_u32 s3, s78, s62","s_lshl_b32 s3, s3, 2"],2:["s_sub_u32 s3, s86, s82"],3:["s_sub_u32 s3, s94, s62"],
                4:["s_sub_u32 s3, s84, s80","s_lshr_b32 s3, s3, 4"],5:["s_sub_u32 s3, s82, s62","s_lshl_b32 s3, s3, 2"],6:["s_sub_u32 s3, s82, s78","s_lshl_b32 s3, s3, 3"],7:["s_sub_u32 s3, s80, s76","s_lshr_b32 s3, s3, 1"],8:["s_sub_u32 s3, s94, s86","s_lshl_b32 s3, s3, 3"]}[sp]
            for e in ex: fin(raw(e))
            fin(raw("s_add_u32 s3, s3, 15000"),label("L_spin"),raw("s_memrealtime s[98:99]"),raw("s_waitcnt lgkmcnt(0)"),raw("s_sub_u32 s98, s98, s62"),raw("s_cmp_lt_u32 s98, s3"),raw("s_cbranch_scc1 L_spin"))
        fin(raw("s_and_b32 s3, s2, 31"),raw("s_cmp_lg_u32 s3, 0"),raw("s_cbranch_scc1 L_end"),raw(f"s_cmp_lg_u32 s{sW}, 0"),raw("s_cbranch_scc1 L_end"))
        fin(raw(f"s_and_b32 s{sDbg+1}, s{sDbg+1}, 0xffff"),raw(f"s_mov_b32 s{sDbg+2}, 256"),raw(f"s_mov_b32 s{sDbg+3}, 0x20000"))
        for n in range(4): fin(raw(f"s_sub_u32 s3, s{76+4*(n+1 if n==3 else n)}, s60"),raw(f"v_mov_b32 v{200+2*n}, s3"),raw(f"s_sub_u32 s3, s{78+4*(n+1 if n==3 else n)}, s62"),raw(f"v_mov_b32 v{201+2*n}, s3"))
        fin(raw("s_lshr_b32 s3, s2, 5"),raw("s_lshl_b32 s3, s3, 5"),raw("v_mov_b32 v208, s3"),raw("s_mov_b64 exec, 1"),
            raw(f"buffer_store_dwordx4 v[200:203], v208, s[{sDbg}:{sDbg+3}], 0 offen"),raw(f"buffer_store_dwordx4 v[204:207], v208, s[{sDbg}:{sDbg+3}], 0 offen offset:16"))
    fin(raw("s_endpgm"))
    fb=fallback()
    ool=[]
    if "rw2" in OPT:
        for cp in range(ncopy): ool+=[label(f"L_loop{cp}_rw")]+rewarm("L_after")+[raw(f"s_branch L_loop{cp}_rwb")]
    static=main+fin.out()+ool+fb+[label("L_end"),raw("s_endpgm")]
    dyns=[pro+p+i41+fin.out() for p in paths]
    for rep in range(2):
        for dyn in dyns: resolve_waits(dyn)
    k=[x for x,y in enumerate(fb) if y.text=="L_fb_loop"][0]
    dynf=fb+fb[k:]
    resolve_waits(dynf)
    for name,d in [("main",d) for d in dyns]+[("fallback",dynf)]:
        bad=check_hazards(d)
        for b in bad: print("HAZARD",name,b,file=sys.stderr)
        assert not bad
        print(name,"max outstanding",max_outstanding(d),file=sys.stderr)
    for nm,sq in(("i0",i0),("i1",i1),("ia",ia),("ib",ib),("i40",i40),("i41",i41),("i42",i42)):
        print(nm,"est cycles",estimate(sq),"nops",sum(1 for x in sq if x.kind=="nop"),"instrs",sum(1 for x in sq if states(x)),file=sys.stderr)
    if "log" in OPT: print("\n".join(logs[OPT["log"]]),file=sys.stderr)
    if OC==2:
        for x in main:
            if x.kind=="mfma" and x.name.startswith("PV") and x.text.endswith(", 0"): x.text=x.text[:-1]+"1.0"
    if "linit" in OPT:
        for x in main:
            if x.kind=="mfma" and "ONE" in x.name and x.text.endswith(", 0"): x.text=x.text[:-1]+f"{float(OPT['linit']):.1f}"
    if "oinit" in OPT:
        for x in main:
            if x.kind=="mfma" and x.name.startswith("PV") and x.text.endswith(", 0"): x.text=x.text[:-1]+f"{float(OPT['oinit'])/2:.1f}"
        static=[x for x in static if x.text!="s_cbranch_vccnz L_fallback"]
    abl=str(OPT.get("abl","")).split("+")
    if abl!=[""]:
        loop=set(map(id,body_rem)) if not OPT.get('abs') else set(map(id,i0[len(i0)//4:]))
        def drop(x):
            if id(x) not in loop: return False
            t=x.text
            return (("st" in abl and x.kind=="vst") or ("dma" in abl and x.kind=="dma") or ("pr" in abl and x.kind=="dsr" and 128<=min(r[1] for r in x.wr)<160)
              or ("qr" in abl and x.kind=="dsr" and 32<=min(r[1] for r in x.wr)<64) or ("pw" in abl and x.kind=="dsw") or ("exp" in abl and t.startswith("v_exp"))
              or ("cvt" in abl and t.startswith("v_cvt")) or ("one" in abl and x.kind=="mfma" and x.name.startswith("ONE")) or ("bar" in abl and x.kind=="bar")
              or ("mul" in abl and t.startswith("v_mul")) or ("valu" in abl and x.kind in VALU_KINDS) or ("qk" in abl and x.kind=="mfma" and x.name.startswith("QK"))
              or ("pv" in abl and x.kind=="mfma" and x.name.startswith("PV")) or ("wait" in abl and x.kind=="wslot") or ("ks" in abl and (t.startswith("v_accvgpr") or t.startswith("v_pk_mul") or t.startswith("v_and") or t.startswith("v_lshlrev"))))
        static=[x for x in static if not drop(x)]
        static=[x for x in static if x.text!="s_cbranch_vccnz L_fallback"]
    if OPT.get("fake") or OPT.get("samea"): static=[x for x in static if x.text!="s_cbranch_vccnz L_fallback"]
    if OPT.get("swap"):
        import re as _re
        for x in body_rem:
            if x.kind=="mfma" and any(x.name.startswith(p) for p in OPT["swap"].split("+")):
                m=_re.match(r"(\S+ [^,]+), ([^,]+), ([^,]+), (.*)",x.text); x.text=f"{m[1]}, {m[3]}, {m[2]}, {m[4]}"
        static=[x for x in static if x.text!="s_cbranch_vccnz L_fallback"]
    hdr=open("standalone__mha_softmax__near_ridge.s.ref").read().split("; Override launch")[0]
    txt=hdr+f"""; One workgroup (4 waves) per head.  K (scaled once by log2(e)/sqrt(D)) and V^T stay in AGPRs: wave w owns keys
; 128w..128w+127 for S^T = K.Q^T and output columns 32w..32w+31 for O^T = V^T.P^T (16x16x32 bf16 MFMA); P and the row sums
; are exchanged through LDS, one barrier per 32-row query tile.  The first tiles are processed key-chunk by key-chunk while
; K and V stream in.  Softmax shift: the fast path shifts every score by the constant 4 (log2 units, through the MFMA
; accumulator init); every row sum l is checked at run time (2^-4 <= l <= 2^48, inf/NaN included) and if any row leaves that
; range the whole head is recomputed with the true row max (L_fallback).  The P.V accumulators start from an offset of a few
; times the wave's smallest column magnitude of V, removed exactly in the normalisation FMA (fewer accumulator sign flips).
; @launch grid=(256,1,1) block=(256,1,1) lds={LDS_BYTES}
.amdgcn_target "amdgcn-amd-amdhsa--gfx950"
.text
.globl {NAME}
.p2align 8
.type {NAME},@function
{NAME}:
"""+emit(static)+f""".section .rodata,"a"
.p2align 6
.amdhsa_kernel {NAME}
  .amdhsa_next_free_vgpr 512
  .amdhsa_next_free_sgpr 102
  .amdhsa_accum_offset 256
  .amdhsa_group_segment_fixed_size 0
  .amdhsa_kernarg_size 48
  .amdhsa_user_sgpr_count 2
  .amdhsa_user_sgpr_kernarg_segment_ptr 1
  .amdhsa_system_sgpr_workgroup_id_x 1
.end_amdhsa_kernel
"""
    return txt

if __name__=="__main__":
    open(sys.argv[1],"w").write(build())
```

```python
import sys, struct, math
from core import *
from sched import *

NAME="standalone__mha_softmax__near_ridge_kernel"
NT=41
QBYTES=335872; KBYTES=131072
OPT=dict(D=4, st="sc0+sc1", ld="nt", stamp=0, wsplit=0, stag=3, ncopy=2)
for a in sys.argv[2:]:
    k,v=a.split("="); OPT[k]=int(v) if v.lstrip("-").isdigit() else v
D=OPT["D"]; NQ=7; T=OPT.get("T",5); LAG=OPT.get("lag",3); LAG0=OPT.get('lag0',3)
STF=(" "+OPT["st"].replace("+"," ")) if OPT["st"]!="none" else ""
LDF=(" "+OPT["ld"].replace("+"," ")) if OPT["ld"]!="none" else ""
QSLOT=8320; PB=[0,33280]; KBASE=PB[T%2]; QBASE=2*33280; QEND=QBASE+NQ*QSLOT; VBASE=QEND; LBASE=VBASE+32768; MBASE=LBASE+1024; LDS_BYTES=LBASE+4096
vQrd,vQrd0,vPw,vPr,vQdma,vOst,vLw,vLr=1,2,3,[None,4,5,6],7,8,9,10
vLmax,vLmin,vR0,vR1,vT=11,12,13,14,15
vLrd,vLacc,vSEL=16,20,[24,28]
vQ=lambda qb,ds:32+qb*16+ds*4
vS=lambda n:64+(n%8)*4
vP=lambda f:96+f*4
vRing=lambda s,k:128+(s%2)*16+k*4
vO=lambda st,qb,db:160+st*16+qb*8+db*4
vOut=lambda qb:192+qb*4
aK=lambda kb,ds:(kb*4+ds)*4
aV=lambda j,kp,db:128+((j*4+kp)*2+db)*4
sQ,sK,sV,sO=4,8,12,16
sW,sLoop,sQso,sQm0,sQrs,sO0,sO1,sT,sC=20,21,22,23,24,25,26,27,28
sWoff=30; sDbg=32
M0=('m0',0); VCC=('vcc',0); SCC=('scc',0)
CSCALE=struct.unpack("<I",struct.pack("<f",math.log2(math.e)/math.sqrt(128.0)))[0]
def bf16(x):
    u=struct.unpack("<I",struct.pack("<f",x))[0]; return (u+0x7fff+((u>>16)&1))>>16
CF=math.log2(math.e)/math.sqrt(128.0); CHI=bf16(CF); CLO=bf16(CF-struct.unpack("<f",struct.pack("<I",CHI<<16))[0])
HI=(127+48)<<23; RHI=(127+4)<<23

CI=OPT.get("cinit",-4); vCI=244; vC0=240; vN0,vN1=253,254; vRmax=12; OC=OPT.get("oc",1)
def qkm(d,a,b,first,name):
    if not first: return mfma(d,a,b,d,name=name)
    if CI not in(0,1,2,4,-1,-2,-4): return mfma(d,a,b,vCI,name=name)
    m=mfma(d,a,b,None,name=name)
    if CI: m.text=m.text[:-1]+f"{float(CI):.1f}"
    return m
def dsr128(dst,addr,off,file='v',name=None): return I(f"ds_read_b128 {rs(file,dst,4)}, v{addr} offset:{off}","dsr",V(addr),[(file,dst+i) for i in range(4)],name=name)
def dsw128(addr,src,off): return I(f"ds_write_b128 v{addr}, {rs('v',src,4)} offset:{off}","dsw",V(addr)+V(src,4),[],cost=20)
def dsw64(addr,src,off): return I(f"ds_write_b64 v{addr}, {rs('v',src,2)} offset:{off}","dsw",V(addr)+V(src,2),[],cost=12)
def dsw32(addr,src,off): return I(f"ds_write_b32 v{addr}, v{src} offset:{off}","dsw",V(addr)+V(src),[],cost=8)
def dma(voff,srd,soff,off,flag=LDF): return I(f"buffer_load_dwordx4 v{voff}, s[{srd}:{srd+3}], s{soff} offen offset:{off}{flag} lds","dma",V(voff)+S(srd,4)+S(soff)+[M0],[])
def vld(dst,voff,srd,soff,off,flag=LDF): return I(f"buffer_load_dwordx4 {rs('v',dst,4)}, v{voff}, s[{srd}:{srd+3}], s{soff} offen offset:{off}{flag}","vld",V(voff)+S(srd,4)+S(soff),V(dst,4))
def vst(src,voff,srd,soff,flag=STF): return I(f"buffer_store_dwordx4 {rs('v',src,4)}, v{voff}, s[{srd}:{srd+3}], s{soff} offen{flag}","vst",V(src,4)+V(voff)+S(srd,4)+S(soff),[],meta={"data":V(src,4)})
def vexp(r): return valu(f"v_exp_f32 v{r}, v{r}",V(r),V(r),"trans")
def vcvt(d,a,b): return valu(f"v_cvt_pk_bf16_f32 v{d}, v{a}, v{b}",V(a)+V(b),V(d))
def vcvtp(d,a,b):
    if OPT.get("trunc"): return valu(f"v_perm_b32 v{d}, v{b}, v{a}, s74",V(a)+V(b)+S(74),V(d))
    return vcvt(d,a,b)
def v2(op,d,a,b): return valu(f"{op} v{d}, v{a}, v{b}",V(a)+V(b),V(d))
def bar(**m): return I("s_barrier","bar",meta=m)
def label(t): return I(t,"label")
def comment(t): return I(t,"comment")

def chain_info(n):
    f=(n//2+1)%8; h=n%2
    return f,h,2*(f//2)+h,f%2
def s_block(f,h):
    return (2*((f-1)%8)+h)

class Bld:
    def __init__(s): s.bb=[]; s.ops=[]; s.sops=[]; s.mdeps={}; s.slots=set(); s.tail=[]
    def group(s,g):
        p=len(s.bb); s.bb+=g; s.slots.add(len(s.bb)-1); return p
    def add(s,ins,prio,deps=(),earliest=0,name=None):
        o=Op(ins,prio,deps,earliest,name); s.ops.append(o); return o
    def adds(s,ins,prio,deps=(),name=None,earliest=0):
        o=Op(ins,prio,deps,earliest,name); s.sops.append(o); return o
    def need(s,idx,o): s.mdeps.setdefault(max(idx,0),[]).append(o)
    def barrier(s,gap,deps,keep=False,**meta):
        if keep and gap in s.slots: gap-=1; o=s.adds(bar(**meta),-1,deps,name="BAR",earliest=gap); s.slots.add(gap-1); return o
        o=s.adds(bar(**meta),-1,deps,name="BAR",earliest=max(gap,0)); s.slots.discard(gap); s.slots.add(gap-1); return o
    def run(s,prefix,log=None,overdue=None): return schedule(s.bb,s.ops,s.sops,s.mdeps,prefix,s.slots,s.tail,log,overdue,fill=OPT.get('fill',1),veto=(OPT.get('veto',8) if overdue is None else OPT.get('sveto',0)),vdist=tuple(int(c) for c in str(OPT.get('vd',1234) if overdue is None else OPT.get('svd',1))))

def qdma_ops(b,t0,deps,tag=None,scc=()):
    m=b.adds(salu(f"s_mov_b32 m0, s{sQm0}",S(sQm0),[M0]),t0-2,deps,name="m0")
    QF=(" "+OPT["lq"].replace("+"," ") if OPT["lq"]!="none" else "") if "lq" in OPT else LDF
    d0=b.add(dma(vQdma,sQ,sQso,0,QF),t0,[m],name="DMA0"); d1=b.add(dma(vQdma,sQ,sQso,1024,QF),t0+4,[d0],name="DMA1")
    d0.ins.cost=d1.ins.cost=OPT.get("dmac",8); d0.ins.tag=d1.ins.tag=tag
    if OPT.get("dpe"): d0.earliest=int(t0); d1.earliest=int(t0+OPT["dpe"])
    b1=b.adds(salu(f"s_add_u32 s{sQm0}, s{sQm0}, {QSLOT}",S(sQm0),S(sQm0)+[SCC]),t0+10,[m]+list(scc),name="qm+")
    b2=b.adds(salu(f"s_cmp_eq_u32 s{sQm0}, s{sT}",S(sQm0)+S(sT),[SCC]),t0+11,[b1],name="qm?")
    b3=b.adds(salu(f"s_cselect_b32 s{sQm0}, s{sWoff}, s{sQm0}",S(sQm0)+S(sWoff)+[SCC],S(sQm0)),t0+12,[b2],name="qm=")
    b4=b.adds(salu(f"s_add_u32 s{sQso}, s{sQso}, 8192",S(sQso),S(sQso)+[SCC]),t0+14,[d1,b3],name="qso+")
    return d1,b4

def epilogue_ops(b,Ob,loff,t0,tm,dt,ldeps,odeps,prev,scc,sc=1.0,tg="",OC=OC):
    lr=b.add(dsr128(vLrd,vLr,loff),t0,list(ldeps)+prev.get("L",[]),name="LR"+tg)
    a=b.add(v2("v_add_f32",vLrd,vLrd,vLrd+1),t0+11*sc,[lr],name="La")
    bb_=b.add(v2("v_add_f32",vLrd+2,vLrd+2,vLrd+3),t0+11.5*sc,[lr],name="Lb")
    c=b.add(v2("v_add_f32",vLrd,vLrd,vLrd+2),t0+12*sc,[a,bb_],name="Lc")
    rc=b.add(valu(f"v_rcp_f32 v{vR0}, v{vLrd}",V(vLrd),V(vR0),"trans"),t0+13*sc,[c]+prev.get("M",[]),name="RCP")
    x1=b.add(v2("v_max_u32",vRmax,vRmax,vR0),t0+14.5*sc,[rc],name="chkr"); x2=b.add(v2("v_max_u32",vLmax,vLmax,vLrd),t0+30*sc,[c],name="chkl")
    mv=b.add(valu(f"v_mov_b32 v{vR1}, v{vR0}",V(vR0),V(vR1)),t0+14*sc,[rc],name="MOV")
    sw=b.add(valu(f"v_permlane32_swap_b32 v{vR0}, v{vR1}",V(vR0)+V(vR1),V(vR0)+V(vR1),"perm"),t0+15*sc,[mv,x1],name="SWP")
    t=tm; sts=[]; muls=[]
    if OC==1:
        nc=[b.add(valu(f"v_mul_f32 v{N}, -v{vC0}, v{R}",V(vC0)+V(R),V(N)),t0+(16+x)*sc,[sw],name="nC") for x,(N,R) in enumerate(((vN0,vR0),(vN1,vR1)))]
    def scale_op(r,qb):
        R=vR0 if qb==0 else vR1; N=vN0 if qb==0 else vN1
        if OC==2: return valu(f"v_fma_f32 v{r}, v{r}, v{R}, -v{R}",V(r)+V(R),V(r)),[sw]
        if OC: return valu(f"v_fma_f32 v{r}, v{r}, v{R}, v{N}",V(r)+V(R)+V(N),V(r)),[nc[qb]]
        return v2("v_mul_f32",r,r,R),[sw]
    if OPT.get("pa") and not tg and odeps is None:
        b.ops.remove(mv); b.ops.remove(sw)
        rw=b.add(dsw32(vLw,vR0,3072),t0+14*sc,[rc],name="RW")
        rr=[b.add(dsr128(248+4*(qb),vLr,3072+16*qb),t0+16*sc+qb,[rw],name="RR") for qb in range(2)]
        for qb in range(2):
            for r in range(4):
                m0_=b.add(v2("v_mul_f32",Ob(qb,0)+r,Ob(qb,0)+r,248+4*qb+r),t,[rr[qb]],name=f"M"); t+=dt
                m1_=b.add(v2("v_mul_f32",Ob(qb,1)+r,Ob(qb,1)+r,248+4*qb+r),t,[rr[qb]],name=f"M"); t+=dt
                cv=b.add(vcvt(vOut(qb)+r,Ob(qb,0)+r,Ob(qb,1)+r),t,[m0_,m1_],name="OC"); t+=dt
                st_=b.add(I(f"buffer_store_dword v{vOut(qb)+r}, v0, s[{sO}:{sO+3}], s{sO0 if qb==0 else sO1} offen offset:{r*256}{STF}","vst",V(vOut(qb)+r)+V(0)+S(sO,4)+S(sO0 if qb==0 else sO1),[],cost=8),t,[cv],name="ST")
                if r==3: sts.append(st_)
    for qb in range(2 if not sts else 0):
        cv=[]
        for db in range(2):
            od=[odeps[(qb,db)]] if odeps else []
            for p2 in range(2):
                r=Ob(qb,db)+2*p2; R=vR0 if qb==0 else vR1
                x,dp=scale_op(r,qb); m0_=b.add(x,t,dp+od,name=f"M{qb}{db}{2*p2}"); t+=dt
                x,dp=scale_op(r+1,qb); m1_=b.add(x,t,dp+od,name=f"M{qb}{db}{2*p2+1}"); t+=dt
                muls+=[m0_,m1_]
                cv.append(b.add(vcvt(vOut(qb)+2*db+p2,r,r+1),t,[m0_,m1_]+prev.get("S",[]),name=f"OC{qb}{db}{p2}")); t+=dt
        fl=STF if not (tg.startswith("t") and "st0" in OPT) else ("" if OPT["st0"]=="none" else " "+OPT["st0"].replace("+"," "))
        if tg=="z" and "stz" in OPT: fl="" if OPT["stz"]=="none" else " "+OPT["stz"].replace("+"," ")
        sts.append(b.add(vst(vOut(qb),vOst,sO,sO0 if qb==0 else sO1,fl),t,cv+prev.get("A",[]),name=f"ST{qb}"+tg)); sts[-1].ins.cost=OPT.get("stc",8); sts[-1].mingap=OPT.get("stg",3)
    e1=b.adds(salu(f"s_add_u32 s{sO0}, s{sO0}, 8192",S(sO0),S(sO0)+[SCC]),t+1,[sts[0]]+list(scc),name="o0+")
    e2=b.adds(salu(f"s_add_u32 s{sO1}, s{sO1}, 8192",S(sO1),S(sO1)+[SCC]),t+2,[sts[1],e1],name="o1+")
    return {"L":[rc,x1,x2],"M":muls,"S":sts,"A":[e2]}

def iter_parts(b, i, par, cur, nxt, pv, ep, dodma, last_bar=True, loopctl=None, baroff=0, Ncustom=None, ctx=None):
    ctx=ctx or {}
    base=len(b.bb)
    def qk(n):
        f,h,kb,qb=chain_info(n)
        return [qkm(vS(n),aK(kb,ds),vQ(qb,ds),ds==0,f"QK{n}.{ds}") for ds in range(4)]
    so=1-par
    def pvo(qb,db): return [mfma(vO(so,qb,db),aV(0,kp,db),vP(2*kp+qb),(vC0 if OC==1 else None) if kp==0 else vO(so,qb,db),name=f"PVo{qb}{db}.{kp}") for kp in range(4)]
    def one(qb): return [mfma(vLacc,vSEL[qb],vP(2*kp+qb),None if (kp==0 and qb==0) else vLacc,afile='v',name=f"ONE{qb}.{kp}") for kp in range(4)]
    sets=[(1,0),(1,1),(2,0),(2,1),(3,0),(3,1)]
    def pvx(s,db):
        j,qb=sets[s]
        return [mfma(vO(so,qb,db),aV(j,kp,db),vRing(s,kp),vO(so,qb,db),name=f"PVx{s}{db}.{kp}") for kp in range(4)]
    N=[("pvo",0,0),("pvo",0,1),("one",0),("pvo",1,0),("pvo",1,1),("one",1)]+[("pvx",s,db) for s in range(6) for db in range(2)]
    if Ncustom: N=[("cus",x) for x in range(18)]
    order=[N[0],N[1]]
    for n in range(16): order+=[("qk",n),N[n+2]]
    if ctx.get("eager"): order[-3],order[-2]=order[-2],order[-3]
    fk=OPT.get("fake",0) if (cur and nxt and pv and ep and not Ncustom) else 0
    if fk:
        order=[]; n=0; x=0
        while x<18 or n<16:
            order+=N[x:x+fk]; x+=fk
            order+=[("qk",m) for m in range(n,min(n+fk,16))]; n+=fk
    G={}; pos={}
    for key in order:
        if key[0]=="qk":
            n=key[1]
            if n>=14 and not nxt and cur and ctx.get("eager"):
                key=("eone",n-14); g=[mfma(vLacc,vSEL[n-14],vP(2*kp+n-14),None if (kp==0 and n==14) else vLacc,afile='v',name=f"eONE{n-14}.{kp}") for kp in range(4)]
            elif not (nxt if n>=14 else cur): continue
            else: g=qk(n)
        elif key[0]=="cus":
            g=Ncustom(key[1])
            if not g: continue
        else:
            if not pv: continue
            g={"pvo":pvo,"one":one,"pvx":pvx}[key[0]](*key[1:])
        if fk and key[0]!="qk" and OPT.get("fakeacc",1):
            d=vO(so,0,0)+4*((N.index(key)//fk)%4)
            for m in g:
                t=m.text.split(", "); t[0]=t[0].split(" ")[0]+f" v[{d}:{d+3}]"; t[3]=f"v[{d}:{d+3}]"; m.text=", ".join(t)
        G[key]=g; pos[key]=b.group(g)
        if key[0]=="cus": ctx["placed"](key[1],pos[key])
    if OPT.get("samea") and cur and nxt and pv and ep and not Ncustom:
        def ilv(g0,g1,fixb):
            t0=[m.text for m in g0]; t1=[m.text for m in g1]
            for x in range(4):
                a=t0[x].split(", "); c=t1[x].split(", "); c[1]=a[1]
                if fixb: c[2]=fixb(c[2])
                t1[x]=", ".join(c)
            seq=[t0[0],t1[0],t0[1],t1[1],t0[2],t1[2],t0[3],t1[3]]
            for m,t in zip(g0+g1,seq): m.text=t
        def otherq(r):
            n=int(r[2:r.index(":")]); n=32+(n-32+16)%32; return f"v[{n}:{n+3}]"
        if "q" in OPT["samea"]:
            for n in range(0,16,2): ilv(G[("qk",n)],G[("qk",n+1)],otherq)
        if "p" in OPT["samea"]:
            def otherr(r):
                n=int(r[2:r.index(":")]); n=(128+(n-128+16)%32) if n>=128 else n^4; return f"v[{n}:{n+3}]"
            for s_ in range(6): ilv(G[("pvx",s_,0)],G[("pvx",s_,1)],otherr)
            for q_ in range(2): ilv(G[("pvo",q_,0)],G[("pvo",q_,1)],otherr)
    nb=len(b.bb)-base
    nom={}; p=0
    for key in order: nom[key]=p; p+=4
    scale=(nb/136.0) if nb else 0
    import bisect
    alias={("qk",14):("eone",0),("qk",15):("eone",1)}
    pts=sorted((nom[k],pos[k if k in pos else alias[k]]) for k in nom if (k in pos or alias.get(k) in pos))
    def P(t):
        j=max(bisect.bisect_right(pts,(t,1<<30))-1,0)
        n0,a0=pts[j]; a1=pts[j+1][1] if j+1<len(pts) else 1<<30
        return min(a0+(t-n0),a1+(t-n0)*1e-3) if t>=n0 else a0+(t-n0)
    def add(ins,prio,deps=(),earliest=0,name=None):
        o=b.add(ins,P(prio),deps,int(P(earliest)) if earliest else base,name); o.nomp=prio; return o
    def adds(ins,prio,deps=(),name=None,earliest=0): return b.adds(ins,P(prio),deps,name,int(P(earliest)) if earliest else base)
    def need(key,k,o): b.need(pos[key]+k,o)
    rel=lambda o:o.nomp
    must_bar=list(ctx.get("must_bar",[]))
    scc=list(ctx.get("scc",[]))
    E={}
    for n in list(range(16))+[-1]:
        if n==15: continue
        if n==-1:
            if not cur: continue
            blk=vS(15); dep=ctx.get("c15",[]); t0=0
        else:
            if ("qk",n) not in G: continue
            blk=vS(n); dep=[G[("qk",n)][3]]; t0=nom[("qk",n)]+6
        for r in range(4):
            E[(n,r)]=add(vexp(blk+r),t0+2*r,dep,name=f"E{n}.{r}")
            if n>=0: E[(n,r)].prio=pos[("qk",n)]+OPT.get("eo",4)+OPT.get("es",2)*r
    if cur:
        for f in range(8):
            qb=f%2; kp=f//2
            war=[G[k][kp] for k in (("pvo",qb,0),("pvo",qb,1),("one",qb)) if k in G]+ctx.get("pwar",{}).get(f,[])
            C=[]
            for h in range(2):
                n=s_block(f,h)
                en = -1 if n==15 else n
                for p2 in range(2):
                    deps=list(war)
                    if f==0 and h==0: t=1+p2; deps+=ctx.get("e14",[])
                    else:
                        deps+=[E[(en,2*p2)],E[(en,2*p2+1)]]; t=rel(E[(en,2*p2+1)])+1
                    c=add(vcvtp(vP(f)+2*h+p2,vS(n)+2*p2,vS(n)+2*p2+1),t,deps,name=f"C{f}.{2*h+p2}")
                    if not (f==0 and h==0): c.prio=E[(en,2*p2+1)].prio+1
                    C.append(c)
                    if ("eone",qb) in G: need(("eone",qb),kp,c)
                    nn=(n+8)%16
                    if ("qk",nn) in G and (n>=14 or n<8): need(("qk",nn),0,c)
            off=PB[par]+f*1024
            if str(f) in str(OPT.get("w32","")).replace("f",""):
                for x in range(4):
                    w=add(dsw32(vPw,vP(f)+x,off+4*x),rel(C[x])+1,[C[x]]+ctx.get("wdep",[]),name=f"W{f}.{x}"); must_bar.append(w)
            elif str(f) in str(OPT.get("w64","")).replace("f",""):
                for x in range(2):
                    w=add(dsw64(vPw,vP(f)+2*x,off+8*x),rel(C[2*x+1])+1,C[2*x:2*x+2]+ctx.get("wdep",[]),name=f"W{f}.{x}"); must_bar.append(w)
            else:
                w=add(dsw128(vPw,vP(f),off),rel(C[3])+1,C+ctx.get("wdep",[]),name=f"W{f}"); must_bar.append(w); w.prio=C[3].prio+1
        for n,ds_ in ctx.get("swar",{}).items():
            for o in ds_: need(("qk",n),0,o)
    if pv:
        for s,(j,qb) in enumerate(sets):
            for k in range(4):
                deps=[G[("pvx",s-2,1)][k]] if s>=2 else []
                t=nom[("pvx",s,0)]-OPT.get("rl",18)+k if s>=2 else s*OPT.get("r0",4)+k
                o=add(dsr128(vRing(s,k),vPr[j],PB[so]+(2*k+qb)*1024),t,deps,name=f"R{s}.{k}")
                need(("pvx",s,0),-1,o); must_bar.append(o)
        lw=add(dsw32(vLw,vLacc,so*512),nom[("one",1)]+8,[G[("one",1)][3]],name="LW"); must_bar.append(lw)
        if ("eone",0) in G:
            need(("eone",0),0,lw)
            must_bar.append(add(dsw32(vLw,vLacc,par*512),0,[G[("eone",1)][3]],name="eLW"))
    if nxt:
        a1=adds(salu(f"s_add_u32 s{sQrs}, s{sQrs}, {QSLOT}",S(sQrs),S(sQrs)+[SCC]),40,scc,name="qr+")
        a2=adds(salu(f"s_cmp_eq_u32 s{sQrs}, {QEND}",S(sQrs),[SCC]),41,[a1],name="qr?")
        a3=adds(salu(f"s_cselect_b32 s{sQrs}, {QBASE}, s{sQrs}",S(sQrs)+[SCC],S(sQrs)),42,[a2],name="qr=")
        scc=[a3]
        upd=add(valu(f"v_add_u32 v{vQrd}, s{sQrs}, v{vQrd0}",S(sQrs)+V(vQrd0),V(vQrd)),80,[a3]+ctx.get("rqprev",[]),name="qupd")
        for qb in range(2):
            lastn=11 if qb==0 else 13
            for ds in range(4):
                deps=[upd]+([G[("qk",lastn)][ds]] if ("qk",lastn) in G else [])+ctx.get("rqdep",[])
                o=add(dsr128(vQ(qb,ds),vQrd,qb*4160+ds*256),nom[("qk",lastn)]+1+ds,deps,name=f"RQ{qb}.{ds}")
                if qb==0: need(("qk",14),-1,o)
    if dodma:
        d1,b4=qdma_ops(b,P(ctx.get("dmaprio",OPT.get("dp",70))),ctx.get("dmadep",[]),scc=scc); scc=[b4]
    if ep:
        e=epilogue_ops(b,lambda qb,db:vO(par,qb,db),par*512,P(-1),P(OPT.get("ept",24)),OPT.get("epdt10",30)/10*scale,[],None,{},scc,sc=scale); scc=e["A"]
    if "late" in ctx: scc=ctx["late"](scc,must_bar)
    if loopctl:
        LP=112 if OPT.get("rot") else 128
        if "rw2" in OPT:
            w1=adds(salu(f"s_cmp_eq_u32 s{sLoop}, {OPT['rw2']}",S(sLoop),[SCC]),124,scc,name="rw?",earliest=124)
            w2=adds(salu(f"s_cbranch_scc1 {loopctl}_rw\n{loopctl}_rwb:",[SCC],[]),125,[w1],name="rwb",earliest=125); scc=[w2]
        c1=adds(salu(f"s_sub_u32 s{sLoop}, s{sLoop}, 1",S(sLoop),S(sLoop)+[SCC]),LP,scc,name="lp-",earliest=LP)
        c2=adds(salu(f"s_cmp_lg_u32 s{sLoop}, 0",S(sLoop),[SCC]),LP+1,[c1],name="lp?",earliest=LP+1)
        b.tail=[I(f"s_cbranch_scc1 {loopctl}","branch",[SCC])]
    b.slots.discard(base+nb-1)
    if last_bar: b.barrier(base+nb-1-baroff,must_bar,keep_dma=2*(D-2),all_ds=1)

def iteration(i, par, cur, nxt, pv, ep, dodma, prefix, log=None, **kw):
    b=Bld(); iter_parts(b,i,par,cur,nxt,pv,ep,dodma,**kw); return b.run(prefix,log)

def drain(i,prefix,log):
    b=Bld(); so=(i-1)%2; par=i%2
    ring=[128,144,64,80,32,48]; last={}
    for qb in range(2):
        for j in range(4):
            s_=qb*3+j-1
            for db in range(2):
                d=vO(so,qb,db)
                g=[mfma(d,aV(j,kp,db),vP(2*kp+qb) if j==0 else ring[s_]+4*kp,(vC0 if OC==1 else None) if (j==0 and kp==0) else d,name=f"PV{qb}{j}{db}.{kp}") for kp in range(4)]
                p=b.group(g); last[(qb,db)]=g[3]
                if j and db==0:
                    for k in range(4): b.need(p-1,b.add(dsr128(ring[s_]+4*k,vPr[j],PB[so]+(2*k+qb)*1024),s_*2+k/2,name=f"R{s_}.{k}"))
    e=epilogue_ops(b,lambda qb,db:vO(par,qb,db),par*512,-1,10,0.7,[],None,{},[],sc=0.5)
    epilogue_ops(b,lambda qb,db:vO(so,qb,db),so*512,20,34,0.7,[],last,e,e["A"],sc=0.3,tg="z")
    return b.run(prefix,log)

vOs=[80,112][:T-LAG-1]+[vO(T%2,0,0)]+[200,216,232][:LAG-1]+[vO(1-T%2,0,0)]
vLs=lambda t:248+t
sKo=64
sVm=72
vKA,vVA,vTB,vTD=255,0,192,15
def kdma_units(c):
    u=[]
    for pr in range(4):
        for n in range(2):
            d=dma(vQdma,sK,45,n*1024); d.tag=f"K{c}"
            u.append(([salu(f"s_add_u32 m0, s54, {(pr//2)*4160+(pr%2)*2080}",S(54),[M0,SCC]), salu(f"s_add_u32 s45, s44, {c*8192+pr*2048}",S(44),S(45)+[SCC])] if n==0 else [])+[d])
    return u
def qdma_units(t):
    d0=dma(vQdma,sQ,46,0); d1=dma(vQdma,sQ,46,1024); d0.tag=d1.tag=f"Q{t}"
    return [[salu(f"s_add_u32 m0, s{sWoff}, {(t%NQ)*QSLOT}",S(sWoff),[M0,SCC]),salu(f"s_mov_b32 s46, {t*8192}",[],S(46)),d0],[d1]]
V3=OPT.get("v3",1) and T<=5
XB=QBASE+5*QSLOT
vbuf=lambda h:([VBASE,VBASE+16384,XB][h%3] if V3 else VBASE+(h%2)*16384)
def vdma_half(h):
    u=[]
    for n in range(4):
        d=dma(vVA,sV,sKo+h,n*1024); d.tag=f"V{h//2}"
        u.append(([salu(f"s_add_u32 m0, s{sVm}, {vbuf(h)}",S(sVm),[M0,SCC])] if n==0 else [])+[d])
    return u
def vdma_units(c): return vdma_half(2*c)+vdma_half(2*c+1)
flat=lambda u:[x for y in u for x in y]
STREAM=kdma_units(0)+qdma_units(0)+qdma_units(1)+qdma_units(2)+vdma_units(0)+flat([qdma_units(t) for t in range(3,T)])+kdma_units(1)+(vdma_half(2) if V3 else [])
def config(t):
    global T,vOs,V3,STREAM,KBASE
    T=t; KBASE=PB[T%2]; V3=OPT.get("v3",1) and T<=5
    vOs=[80,112][:T-LAG-1]+[vO(T%2,0,0)]+[200,216,232][:LAG-1]+[vO(1-T%2,0,0)]
    STREAM=STREAM[:12]+qdma_units(2)+vdma_units(0)+flat([qdma_units(x) for x in range(3,T)])+kdma_units(1)+(vdma_half(2) if V3 else [])
TO=T; TX=OPT.get("TX",T)
NPRO=OPT.get("npro",20)
def kread(c):
    o=[dsr128(aK(2*c+h,ds),vKA,h*4160+ds*256,file='a') for h in range(2) for ds in range(4)]
    for x in o: x.meta["tags"]={f"K{c}"}
    return o
aSC=lambda lo,half:aV(lo,3,half)
vKT=[192,196,vLrd]
def rewarm(lbl): return [raw(f"s_mov_b32 s55, {lbl}-L_pc"), I("buffer_load_dword v253, v254, s[56:59], s55 offen","vld",V(254),V(253))]
def vscale():
    o=[]; t=232; m=[236,237]; u=238
    for db in range(2):
        a=aV(0,0,db)
        o+=[vop(f"v_accvgpr_read_b32 v{t+r}, a{a+r}",A(a+r),V(t+r)) for r in range(4)]
        o+=[vop(f"v_max3_f32 v{m[db]}, |v{t}|, |v{t+1}|, |v{t+2}|",V(t,3),V(m[db])), vop(f"v_max_f32 v{m[db]}, v{m[db]}, |v{t+3}|",V(m[db])+V(t+3),V(m[db]))]
        for w_ in(32,16):
            o+=[vop(f"v_mov_b32 v{u}, v{m[db]}",V(m[db]),V(u)), valu(f"v_permlane{w_}_swap_b32 v{m[db]}, v{u}",V(m[db])+V(u),V(m[db])+V(u),"perm"), v2("v_max_f32",m[db],m[db],u)]
    o.append(v2("v_min_f32",u,m[0],m[1]))
    for r in(8,4,2,1):
        x=vop(f"v_min_f32_dpp v{u}, v{u}, v{u} row_ror:{r} row_mask:0xf bank_mask:0xf",V(u),V(u)); x.meta["dpp"]=1; o.append(x)
    o+=[vop(f"v_min_f32 v{u}, {(127+60)<<23:#x}, v{u}",V(u),V(u)), vop(f"v_and_b32 v{u}, 0x7f800000, v{u}",V(u),V(u))]
    o+=[vop(f"v_add_u32 v{vC0+r}, {(OPT.get('oce',2)<<23)+0x400000:#x}, v{u}",V(u),V(vC0+r)) for r in range(4)]
    return o
def touch_ins(): return I(f"buffer_load_dword v253, v254, s[{sO}:{sO+3}], 0 offen nt","vld",V(254)+S(sO,4),V(253))
def ksops(c,j):
    a=aK(2*c+j//8,(j//2)%4)+2*(j%2); d=vKT[j%3]
    return [vcvt(d,d,d+1),vcvt(d+1,d+2,d+3)]+[vop(f"v_accvgpr_write_b32 a{a+x}, v{d+x}",V(d+x),A(a+x)) for x in range(2)]
def kscale(c,extra=None):
    o=[]
    for j in range(16):
        a=aK(2*c+j//8,(j//2)%4); d=vKT[j%3]; x=ksops(c,j-2) if j>=2 else [nop(2),None,nop(2),None]
        if j%2==0: o.append(waitslot())
        o+=[mfma(d,aSC(0,j%2),a,None,bfile='a',name="KSh")]+(extra(j) if extra else [])+x[:2]+[mfma(d,aSC(1,j%2),a,d,bfile='a',name="KSl")]+x[2:]
    return [i for i in o if i is not None]
def startup(prefix,log,off=0,caps=(0,0),sfx=''):
    b=Bld(); NS=4*T
    Sb=lambda n:64+(n%4)*4
    OWN=OPT.get("own",1) and T-LAG<=2
    Pw=lambda k,qb:96+((k%(4 if OWN else 2))*2+qb)*4
    ownk=lambda k:OWN and k<NS-OPT.get("ownskip",2)
    ent=lambda k,qb:PB[T%2 if (LAG>3 and 3*T<=k<NS-LAG) else 1-T%2]+((k%4)*2+qb)*1024
    assert LAG<=3 or all(k%4 for k in range(3*T,NS-LAG))
    pvstep=lambda k:k+(LAG0 if k<3*T else LAG)
    pvof={pvstep(k):k for k in range(NS)}
    QK={}; PV={}; ONE={}; start={}; end={}; posQ={}; posP={}; posO={}
    def pvg(k,qb,db):
        c,t=divmod(k,T); d=vOs[t]+qb*8+db*4
        return [mfma(d,aV(j,c,db),Pw(k,qb) if (ownk(k) and j==0) else vRing(2*k+qb,j),(vC0 if (OC==1 and t==T-1) else None) if (c==0 and j==0) else d,name=f"PV{k}.{qb}{db}.{j}") for j in range(4)]
    def oneg(k): return [mfma(vLacc,vSEL[0],Pw(k,0),None,afile='v',name=f"ONE{k}.0"),mfma(vLacc,vSEL[1],Pw(k,1),vLacc,afile='v',name=f"ONE{k}.1")]
    for k in range(NS):
        c,t=divmod(k,T)
        start[k]=len(b.bb)
        for ch in range(4):
            kb=2*c+ch%2; qb=ch//2; n=4*k+ch
            QK[(k,ch)]=[qkm(Sb(n),aK(kb,ds),vQ(qb,ds),ds==0,f"QK{k}.{ch}.{ds}") for ds in range(4)]
            posQ[(k,ch)]=b.group(QK[(k,ch)])
            if k in pvof:
                key=(pvof[k],ch//2,ch%2); PV[key]=pvg(*key); posP[key]=b.group(PV[key])
            if ch==2 and k>=1: ONE[k-1]=oneg(k-1); posO[k-1]=b.group(ONE[k-1])
        if k==NS-1:
            for n in(14,15):
                f,h,kb,qb=chain_info(n)
                QK[("pre",n)]=[qkm(vS(n),aK(kb,ds),vQ(qb,ds),ds==0,f"QKp{n}.{ds}") for ds in range(4)]
                posQ[("pre",n)]=b.group(QK[("pre",n)])
        end[k]=len(b.bb)-1
    cus={}
    x=0
    for k in range(NS-LAG,NS):
        for qb in range(2):
            for db in range(2):
                PV[(k,qb,db)]=pvg(k,qb,db); cus[x]=("pv",(k,qb,db)); x+=1
                if x==3: ONE[NS-1]=oneg(NS-1); cus[x]=("one",NS-1); x+=1
    nskip=18-len(cus); hi=OPT.get("skiphi",14)
    skip=set(hi-2*j for j in range(nskip)); slots_=[y for y in range(18) if y not in skip]
    cus={slots_[y]:v for y,v in cus.items()}
    def Ncustom(x):
        if x not in cus: return None
        return PV[cus[x][1]] if cus[x][0]=="pv" else ONE[cus[x][1]]
    def placed(x,p):
        (posP if cus[x][0]=="pv" else posO)[cus[x][1]]=p
    BAR={}; W={}; C={}; LA={}; LW={}; RQ={}; TR={}; E={}
    bdeps={k:[] for k in range(NS)}; btags={k:set() for k in range(NS)}; bneed={k:[] for k in range(NS)}
    for k in range(NS): BAR[k]=b.barrier(end[k]-off,[],tags=btags[k],need=set())
    def bneeds(k,o): BAR[k].deps.append(o); BAR[k].ins.meta["need"].add(id(o.ins))
    for k in range(1,NS): BAR[k].deps.append(BAR[k-1])
    state={"scc":[],"dma":[],"ep":{}}
    def softmax(k):
        c,t=divmod(k,T)
        for ch in range(4):
            n=4*k+ch; qb=ch//2; h=ch%2
            for r in range(4): E[(k,ch,r)]=b.add(vexp(Sb(n)+r),posQ[(k,ch)]+6+2*r,[QK[(k,ch)][3]],name=f"E{k}.{ch}.{r}")
            for p2 in range(2):
                deps=[E[(k,ch,2*p2)],E[(k,ch,2*p2+1)]]
                if OWN:
                    if k>=4: deps+=[ONE[k-4][qb],W[(k-4,qb)],PV[(k-4,qb,0)][0],PV[(k-4,qb,1)][0]]
                elif k>=2: deps+=[ONE[k-2][qb],W[(k-2,qb)]]
                o=b.add(vcvtp(Pw(k,qb)+2*h+p2,Sb(n)+2*p2,Sb(n)+2*p2+1),E[(k,ch,2*p2+1)].prio+1,deps,name=f"C{k}.{ch}.{p2}")
                C[(k,ch,p2)]=o
                if k+1<NS: b.need(posQ[(k+1,ch)],o)
            if h==1:
                W[(k,qb)]=b.add(dsw128(vPw,Pw(k,qb),ent(k,qb)),C[(k,ch,1)].prio+1,[C[(k,cc,pp)] for cc in(ch-1,ch) for pp in range(2)]+([BAR[pvstep(k-4)]] if (k>=4 and pvstep(k-4)<k and ent(k,0)==ent(k-4,0)) else [])+([BAR[k-3]] if k>NS-LAG else []),name=f"W{k}.{qb}")
                if k+1<NS: bneeds(k+1,W[(k,qb)])
    for k in range(NS): softmax(k)
    def one_ops(k):
        c,t=divmod(k,T)
        for cc in range(4):
            for pp in range(2): b.need(posO[k],C[(k,cc,pp)])
        if k>=1: b.need(posO[k],LA[k-1])
        ins=valu(f"v_mov_b32 v{vLs(t)}, v{vLacc}",V(vLacc),V(vLs(t))) if c==0 else v2("v_add_f32",vLs(t),vLs(t),vLacc)
        LA[k]=b.add(ins,posO[k]+6,[ONE[k][1]],name=f"LA{k}")
        if c==3:
            LW[t]=b.add(dsw32(vLw,vLs(t),((T-1)%2)*512 if t==T-1 else 1024+t*512),posO[k]+8,[LA[k]],name=f"LW{t}")
            if k+1<NS: bneeds(k+1,LW[t])
    for k in range(NS-1): one_ops(k)
    def preads(k):
        for qb in range(2):
            for j in range(1 if ownk(k) else 0,4):
                deps=[BAR[k+1]]+([PV[(k-1,qb,1)][j]] if k>=1 else [])
                o=b.add(dsr128(vRing(2*k+qb,j),vPw if j==0 else vPr[j],ent(k,qb)),posP[(k,qb,0)]-OPT.get('rlead',12)+j,deps,name=f"R{k}.{qb}.{j}")
                b.need(posP[(k,qb,0)]-1,o); state.setdefault("R",[]).append(o)
    for k in range(NS-LAG): preads(k)
    for k in range(NS+1):
        t=k%T if k<NS else T%NQ
        for qb in range(2):
            for ds in range(4):
                deps=[QK[(k-1,2*qb+1)][ds]] if k>=1 else []
                if 2<=k<T: deps.append(BAR[k-2]); btags[k-2].add(f"Q{k}")
                if k==NS: deps.append(BAR[NS-2]); btags[NS-2].add(f"Q{T}")
                pr=(posQ[(k-1,2*qb+1)]+1+ds) if k>=1 else 14+4*qb+ds
                o=b.add(dsr128(vQ(qb,ds),vQrd,t*QSLOT+qb*4160+ds*256),pr,deps,name=f"RQ{k}.{qb}.{ds}"); RQ[(k,qb,ds)]=o
                if k<NS: b.need(posQ[(k,2*qb)]-1,o)
                elif qb==0: b.need(posQ[("pre",14)]-1,o)
    btags[NS-1].add(f"Q{T+1}")
    state["chain"]=[]; hard={0,1}
    def issue(units,where,deps,nm):
        for u,(k,fr) in zip(units,where):
            tt=int(start[k]+fr*(end[k]-start[k])); prev=list(deps)+state["chain"]+state["scc"]
            cap=caps[0] if nm=="D" else caps[1]
            if nm=="D":
                state["nd"]=state.get("nd",NPRO)+1
                if state["nd"]>OPT.get("xn",99): cap=OPT.get("xcb",0) if caps[0] else 0
            if cap: u=[wait(vm=cap)]+list(u)
            nd=[x.kind for x in u].index("dma")
            for x,ins in enumerate(u):
                if ins.kind in("salu","wait"): o=b.adds(ins,tt+x-nd-3,prev,name="s"+nm,earliest=tt+x-nd-3 if x<nd else 0)
                else: o=b.add(ins,tt,prev,earliest=tt,name=nm); ins.cost=OPT.get("sdmac",8)
                prev=[o]
            state["chain"]=prev; state["scc"]=prev
            if k in hard: BAR[k].deps.append(prev[0])
    def spread(n,k0,per):
        w=[]; k=k0
        while len(w)<n:
            m=min(per,n-len(w)); w+=[(k,(x+0.5)/per) for x in range(m)]; k+=1
        return w
    kchain=[]
    def extra(j):
        o=flat([([wait(vm=caps[0])] if caps[0] else [])+u for u in STREAM[12+(NPRO-12)*j//16:12+(NPRO-12)*(j+1)//16]])
        if j==9: o+=[waitslot(),bar(tags={"Q0","Q1"},need=set())]
        if 10<=j<14: o+=[RQ[(0,(j-10)//2,2*(j%2)+x)].ins for x in range(2)]
        return o
    for qb in range(2):
        for ds in range(4): o=RQ[(0,qb,ds)]; b.ops.remove(o); o.done=True; o.gap=-1
    ks0=b.add([waitslot()]+kread(0)+kscale(0,extra)+[waitslot()],0,[],name="KS0"); b.need(0,ks0)
    rest=STREAM[NPRO:]
    n0=OPT.get("n0",4); n1=OPT.get("n1",10)
    w=[(0,(x+0.5)/n0) for x in range(n0)]+[(1,OPT.get('f1',30)/100+0.5*x/n1) for x in range(n1)]
    w=w[:len(rest)]; w+=spread(len(rest)-len(w),2,2)
    issue(rest,w,[ks0],"D")
    lastk=w[-1][0]
    for c in range(4):
        s1=pvstep(c*T)-1
        btags[s1-1].add(f"V{c}")
        p0=start[c*T]
        if c==0: ks=ks0
        else:
            kr=[b.add(ins,p0-14+x,kchain,earliest=p0-16,name=f"KR{c}") for x,ins in enumerate(kread(c))]
            if OPT.get("kin",1) and c<3:
                ku=[([wait(vm=caps[1])] if caps[1] else [])+u for u in kdma_units(c+1)]; k0=OPT.get("kin0",0)
                ks=b.add([wait(lg=0)]+kscale(c,lambda j:ku[(j-k0)//OPT.get("kst",2)] if (j>=k0 and (j-k0)%OPT.get("kst",2)==0 and (j-k0)//OPT.get("kst",2)<8) else []),p0,kr+state["TR"]+state["chain"]+state["scc"],name=f"KS{c}")
                state["chain"]=[ks]; state["scc"]=[ks]
            else: ks=b.add(kscale(c),p0,kr+state["TR"],name=f"KS{c}")
            b.need(p0,ks)
        aw=[]
        for j in(14,15):
            x=ksops(c,j); prev=[ks]
            for n,ins in enumerate(x): o=b.add(ins,p0-8+j-14+n*0.1,prev,name="Kx"); prev=[o]; aw.append(o); b.need(posQ[(c*T,1)],o)
        state["KS"]=aw
        if OPT.get("rw1",-1)==c:
            x=rewarm("L_merged"); x[0].kind="salu"
            o0=b.adds(x[0],p0-2,[ks],name="sRW"); state["chain"]=[b.add(x[1],p0,[o0]+state["chain"],name="RW")]
        if OPT.get("touch") and OPT.get("tpos")==c: state["chain"]=[b.add(touch_ins(),p0,[ks]+state["chain"],name="TOUCH")]
        if 1<=c<3 and not OPT.get("kin",1): issue(kdma_units(c+1),spread(8,c*T,OPT.get("kper",6)),[ks],f"KD{c+1}")
        kchain=state["chain"]
        if V3 and OPT.get("vlate",1) and 1<=c<3:
            issue(vdma_half(2*c+2),[(c*T+int(f),f-int(f)) for f in [OPT.get("vl10",8)/10+(x+0.5)/OPT.get("vlper",4) for x in range(4)]],[state["vrel"]],f"VA{c+1}")
        state["TR"]=[]
        for j in range(4):
            r=vPw if j==0 else vPr[j]
            tb=b.add(vop(f"v_add_u32 v{vTB+j}, s{50+j}, v{vTD}",S(50+j)+V(vTD),V(vTB+j)),start[s1-1]+j,state.get("KS",[]),earliest=start[s1-1],name="TB")
            for db in range(2):
                for hf in range(2):
                    a=aV(j,c,db)+2*hf
                    o=b.add(I(f"ds_read_b64_tr_b16 a[{a}:{a+1}], v{vTB+j} offset:{vbuf(2*c+hf)-XB+8*db}","dsr",V(vTB+j),A(a,2)),start[s1]+(j*4+db*2+hf)*OPT.get("trs",10)/10-OPT.get("tro",0),[BAR[s1-1],tb],name=f"TR{c}")
                    b.need(posP[(c*T,0,0)]-1,o); state["TR"].append(o)
                    if not (OPT.get("vbar") and c<3): bneeds(s1,o)
        vrel=BAR[s1]; vk=s1+1; vf=0
        if OPT.get("vbar") and c<3:
            vrel=b.barrier(start[s1]+OPT["vbar"],[BAR[s1-1]]+state["TR"],keep=True,need={id(o.ins) for o in state["TR"]}); BAR[s1].deps.append(vrel)
            vk=s1; vf=(OPT["vbar"]+2)/(end[s1]-start[s1])
        if c==0 and OC==1 and "ocfix" not in OPT:
            assert LAG<=3
            prev=list(state["TR"][:4]); tt=start[s1+1]+2
            for ins in vscale(): o=b.add(ins,tt,prev,name="VS"); prev=[o]; tt+=2
            b.need(posP[(T-1,0,0)],o)
        if c<3:
            per=OPT.get("v1per",6) if c==0 else OPT.get("vper",6)
            k0=max(vk,lastk,OPT.get("v1",0)) if c==0 else vk
            w=[(k0+int(f),f-int(f)) for f in [(vf if k0==vk else 0)+(x+0.5)/per for x in range(8)]]
            if V3:
                issue(vdma_half(2*c+3),w[:4],[vrel],f"VD{c+1}")
                state["vrel"]=vrel
                if c<2 and not OPT.get("vlate",1): issue(vdma_half(2*c+4),[(k0+int(f),f-int(f)) for f in [OPT.get("va10",10)/10+(x+0.5)/per for x in range(4)]],[vrel],f"VD{c+2}")
            else: issue(vdma_units(c+1),w,[vrel],f"VD{c+1}")
        if c==2: state["xfree"]=[BAR[s1]]
    state["ep"]={"L":state["KS"],"S":state["TR"]}
    for x in range(D):
        t=T+x; k=min(max(3*T+1+t-NQ,3*T-1+x*OPT.get("qstep",1)+OPT.get("q0",0)),NS-1)
        issue(qdma_units(t),[(k,0.25),(k,0.6)],[BAR[3*T+t-NQ]] if t>=NQ else state["xfree"],"QD")
    chain=state["chain"]
    def ep(t,t0,tm,dt,scc):
        k=3*T+t
        od={(qb,db):PV[(k,qb,db)][3] for qb in range(2) for db in range(2)}
        e=epilogue_ops(b,lambda qb,db:vOs[t]+qb*8+db*4,1024+t*512,t0,tm,dt,[BAR[k+1]],od,state["ep"],scc,sc=0.5,tg=f"t{t}",OC=0)
        state["ep"]=e; return e
    eps={}; BARX=[]
    for t in range(T-LAG-1+0):
        k=3*T+t+LAG
        eps[t]=ep(t,start[k]+8,start[k]+20,1.3,state["scc"]); state["scc"]=eps[t]["A"]
    if T-LAG>=2:
        for o in eps[0]["M"]+eps[0]["S"]: b.need(posQ[("pre",14)],o)
    e14=[b.add(vexp(vS(14)+r),posQ[("pre",14)]+6+2*r,[QK[("pre",14)][3]],name=f"Ep{r}") for r in range(4)]
    def late(scc,must_bar):
        BAR[NS]=b.barrier(end[NS-1]+1+OPT.get("barx",23)+3-off,[BAR[NS-1]],keep=True,need=set())
        for qb in range(2): bneeds(NS,W[(NS-1,qb)])
        BARX.append(BAR[NS])
        state["R"]=[]
        for k in range(NS-LAG,NS): preads(k)
        must_bar+=state["R"]
        one_ops(NS-1); must_bar.append(LW[T-1])
        for t in range(T-LAG-1,T-1):
            k=3*T+t
            p=posP[(k,0,0)] if k>=NS-LAG else end[NS-1]-8
            p+=OPT.get("epd",0)*(t-(T-LAG-1))
            eps[t]=ep(t,p-6,p+10,OPT.get("epdt0",12)/10,scc); scc=eps[t]["A"]
        return scc
    last=NS-1
    ctx=dict(dmaprio=5,placed=placed,late=late,scc=state["scc"],c15=[QK[("pre",15)][3]],e14=e14,dmadep=chain+[BAR[last]],
             must_bar=[W[(last,0)],W[(last,1)]],wdep=[BAR[last]],rqdep=[BAR[last]],rqprev=[RQ[(NS,qb,ds)] for qb in range(2) for ds in range(4)],
             pwar={f:[ONE[NS-4+f//2][f%2],W[(NS-4+f//2,f%2)]]+([PV[(NS-4+f//2,f%2,0)][0],PV[(NS-4+f//2,f%2,1)][0]] if ownk(NS-4+f//2) else []) for f in range(8)} if OWN else
                  {0:[ONE[last-1][0],W[(last-1,0)]],1:[ONE[last-1][1],W[(last-1,1)]],2:[ONE[last][0],W[(last,0)]],3:[ONE[last][1],W[(last,1)]],
                   **({f:eps[1]["M"]+eps[1]["S"] for f in range(4,8)} if T-LAG>=3 else {})},
             swar={n:[C[(last,n,pp)] for pp in range(2)] for n in range(4)})
    iter_parts(b,T,T%2,1,1,0,0,1,Ncustom=Ncustom,ctx=ctx,baroff=off)
    b.sops[-1].deps.append(BAR[NS])
    for ds in range(4): b.need(end[last]+1+8-1,RQ[(NS,1,ds)])
    res=b.run(prefix,log,overdue=OPT.get("od",3))
    if OPT["stamp"]==2 and not OPT.get("ps") and "lg0" not in OPT:
        p0=OPT.get('p0'); pts=[2,3,6,9,13,16,20,23,27] if p0 is None else list(range(p0,p0+9)); o=[]
        for x in res:
            o.append(x)
            for n,k in enumerate(pts):
                if x is BAR[k].ins: o.append(raw(f"{'s_memtime' if OPT.get('cyc') else 's_memrealtime'} s[{78+2*n}:{79+2*n}]"))
        res=o
        if OPT.get("fine"):
            o=[]; on=False; n=0; x_=0
            for x in res:
                if x.kind=="raw" and x.text.startswith("s_mem"): continue
                o.append(x)
                if x is BAR[NS-1].ins: on=True; o.append(raw("s_memtime s[78:79]")); n=1
                if on and x.kind=="mfma":
                    x_+=1
                    if x_%OPT["fine"]==0 and n<9: o.append(raw(f"s_memtime s[{78+2*n}:{79+2*n}]")); n+=1
            res=o
    n=[n for n,x in enumerate(res) if x is BAR[NS-3].ins][0]
    res=res[:n+1]+[label(f"L_merged{off if off else ''}{sfx}")]+res[n+1:]
    if "spinbar" in OPT:
        n=[n for n,x in enumerate(res) if x is BAR[OPT["spinbar"]].ins][0]
        res=res[:n+1]+stamp(1)+res[n+1:]
    if "spinfrom" in OPT:
        n=[n for n,x in enumerate(res) if x is BAR[OPT["spinfrom"]].ins][0]
        res=res[:n+1]+stamp(0)+res[n+1:]
    if OPT.get("seg"):
        idx=[n for n,x in enumerate(res) if x.kind=="bar"]
        print("step est:",[estimate(res[a:z]) for a,z in zip(idx,idx[1:])],file=sys.stderr)
    return res

class Seq:
    def __init__(s,prefix=()): s.o=list(prefix); s.n0=len(s.o)
    def __call__(s,*ins,slot=True):
        for i in ins:
            if slot and i.kind not in("label","comment","salu","wait","branch","raw","nop"): s.o.append(waitslot())
            k=hazard_need(s.o,i)
            if k>0: s.o.append(nop(k))
            s.o.append(i)
    def out(s): return s.o[s.n0:]

def vop(t,rd,wr): return valu(t,rd,wr)
def prologue():
    q=Seq()
    q(salu("s_cmp_ge_u32 s2, 256",S(2),[SCC]), I("s_cbranch_scc1 L_end","branch",[SCC]))
    if OPT["stamp"]: q(raw("s_memtime s[60:61]"),raw("s_memrealtime s[62:63]"),raw(f"s_load_dwordx2 s[{sDbg}:{sDbg+1}], s[0:1], 32"))
    q(raw("s_load_dwordx4 s[36:39], s[0:1], 0"), raw("s_load_dwordx4 s[40:43], s[0:1], 16"))
    L,Q_,G_,T1,T2,T3=200,201,202,203,204,205
    if OPT.get("warm",2):
        q(raw("s_getpc_b64 s[56:57]"), label("L_pc"), raw("s_and_b32 s57, s57, 0xffff"), raw("s_mov_b32 s58, L_end-L_pc"), raw("s_mov_b32 s59, 0x20000"))
        q(vop(f"v_lshlrev_b32 v{T2}, 7, v0",V(0),V(T2)))
    XV=OPT.get("xc0",3) or OPT.get("xc1",0)
    def warm(ks):
        for k in ks:
            if not XV: q(raw(f"s_mov_b32 s55, {k*32768}"))
            elif k==0: q(raw("s_getreg_b32 s73, hwreg(HW_REG_XCC_ID)"),raw(f"s_bitcmp{OPT.get('xpar',0)}_b32 s73, 0"),raw("s_cselect_b32 s55, L_xs-L_pc, 0"))
            else: q(raw("s_mov_b32 s55, L_xj-L_pc"))
            q(I(f"buffer_load_dword v{232+k}, v{T2}, s[56:59], s55 offen","vld",V(T2),V(232+k)),slot=False)
    nw=OPT.get("warm",2); we=OPT.get("wearly",1)
    warm(range(min(we,nw)))
    if "rw1" in OPT or "rw2" in OPT: q(vop(f"v_mov_b32 v254, v{T2}",V(T2),V(254)))
    q(vop(f"v_and_b32 v{L}, 63, v0",V(0),V(L)), vop(f"v_lshrrev_b32 v{T1}, 6, v0",V(0),V(T1)))
    q(I(f"v_readfirstlane_b32 s{sW}, v{T1}","valu",V(T1),S(sW),meta={"rfl":1}))
    q(vop(f"v_and_b32 v{Q_}, 15, v{L}",V(L),V(Q_)), vop(f"v_lshrrev_b32 v{G_}, 4, v{L}",V(L),V(G_)))
    R_,C_=208,209
    q(vop(f"v_bfe_u32 v{R_}, v{L}, 2, 2",V(L),V(R_)), vop(f"v_and_b32 v{C_}, 3, v{L}",V(L),V(C_)))
    if OPT.get("remap",1):
        q(salu("s_and_b32 s3, s2, 7",S(2),S(3)), salu("s_lshl_b32 s3, s3, 5",S(3),S(3)), salu("s_lshr_b32 s75, s2, 3",S(2),S(75)), salu("s_or_b32 s75, s75, s3",S(75)+S(3),S(75)))
    hd=75 if OPT.get("remap",1) else 2
    q(salu(f"s_mul_i32 s3, s{hd}, {QBYTES}",S(hd),S(3)), salu(f"s_lshl_b32 s31, s{hd}, 17",S(hd),S(31)))
    q(salu(f"s_lshl_b32 s46, s{sW}, 11",S(sW),S(46)), salu(f"s_lshl_b32 s{sKo}, s{sW}, 15",S(sW),S(sKo)))
    q(vop(f"v_lshlrev_b32 v{vQdma}, 8, v{R_}",V(R_),V(vQdma)), vop(f"v_lshl_add_u32 v{vQdma}, v{G_}, 6, v{vQdma}",V(G_)+V(vQdma),V(vQdma)),
      vop(f"v_lshl_add_u32 v{vQdma}, v{C_}, 4, v{vQdma}",V(C_)+V(vQdma),V(vQdma)), vop(f"v_add_u32 v{vQdma}, s46, v{vQdma}",S(46)+V(vQdma),V(vQdma)))
    q(salu(f"s_mul_i32 s47, s{sW}, 2080",S(sW),S(47)), salu(f"s_add_u32 s{sWoff}, s47, {QBASE}",S(47),S(sWoff)))
    q(salu(f"s_sub_u32 s44, s{sKo}, s46",S(sKo)+S(46),S(44)), salu(f"s_mul_i32 s54, s{sW}, {QSLOT}",S(sW),S(54)), *([raw(f"s_bitcmp{OPT.get('xpar',0)}_b32 s73, 0"),salu(f"s_cselect_b32 s45, {PB[TX%2]}, {PB[TO%2]}",[],S(45)),salu("s_add_u32 s54, s54, s45",S(54)+S(45),S(54))] if TX%2!=TO%2 else [salu(f"s_add_u32 s54, s54, {KBASE}",S(54),S(54))]))
    for srd,nb in((sQ,QBYTES),(sK,KBYTES),(sV,KBYTES),(sO,QBYTES)):
        q(salu(f"s_mov_b32 s{srd+2}, {nb}",[],S(srd+2)), salu(f"s_mov_b32 s{srd+3}, 0x20000",[],S(srd+3)))
    q(raw("s_waitcnt lgkmcnt(0)"))
    def base(srd,src,off):
        q(salu(f"s_add_u32 s{srd}, s{src}, s{off}",S(src)+S(off),S(srd)), salu(f"s_addc_u32 s{srd+1}, s{src+1}, 0",S(src+1),S(srd+1)),
          salu(f"s_and_b32 s{srd+1}, s{srd+1}, 0xffff",S(srd+1),S(srd+1)))
    ps=lambda n:[raw(f"s_memrealtime s[{78+2*n}:{79+2*n}]")] if OPT.get("ps") else []
    base(sK,38,31); q(*ps(0),*flat(STREAM[:8]),*ps(1),slot=False)
    base(sQ,36,3); q(*flat(STREAM[8:12]),slot=False)
    warm(range(min(we,nw),nw))
    base(sV,40,31); base(sO,42,3)
    if OPT.get("touch"):
        q(vop(f"v_lshlrev_b32 v{T2}, {OPT.get('tsh',12)}, v0",V(0),V(T2)))
        q(vop(f"v_mov_b32 v254, v{T2}",V(T2),V(254)))
        if not OPT.get("tpos"): q(touch_ins(),slot=False)
    for n in range(1,8): q(salu(f"s_add_u32 s{sKo+n}, s{sKo}, {n*4096}",S(sKo),S(sKo+n)))
    q(salu(f"s_add_u32 s{sT}, s47, {QEND}",S(47),S(sT)))
    q(vop(f"v_lshlrev_b32 v{T1}, 2, v{G_}",V(G_),V(T1)), vop(f"v_xor_b32 v{T1}, v{T1}, v{Q_}",V(T1)+V(Q_),V(T1)),
      vop(f"v_lshlrev_b32 v{T1}, 4, v{T1}",V(T1),V(T1)), vop(f"v_lshl_add_u32 v{vVA}, v{G_}, 8, v{T1}",V(G_)+V(T1),V(vVA)))
    q(salu(f"s_lshl_b32 s{sVm}, s{sW}, 12",S(sW),S(sVm)))
    q(*ps(2))
    q(vop(f"v_lshrrev_b32 v{T1}, 2, v{Q_}",V(Q_),V(T1)), vop(f"v_lshlrev_b32 v{vQrd0}, 10, v{T1}",V(T1),V(vQrd0)),
      vop(f"v_lshrrev_b32 v{T1}, 3, v{Q_}",V(Q_),V(T1)), vop(f"v_lshl_add_u32 v{vQrd0}, v{T1}, 5, v{vQrd0}",V(T1)+V(vQrd0),V(vQrd0)),
      vop(f"v_lshl_add_u32 v{vQrd0}, v{C_}, 6, v{vQrd0}",V(C_)+V(vQrd0),V(vQrd0)), vop(f"v_lshl_add_u32 v{vQrd0}, v{G_}, 4, v{vQrd0}",V(G_)+V(vQrd0),V(vQrd0)))
    q(vop(f"v_add_u32 v{vQrd}, {QBASE}, v{vQrd0}",V(vQrd0),V(vQrd)))
    for j in range(4):
        q(salu(f"s_add_u32 s49, s{sW}, {j}",S(sW),S(49)), salu("s_and_b32 s49, s49, 3",S(49),S(49)), salu(f"s_lshl_b32 s{50+j}, s49, 13",S(49),S(50+j)))
        r=vPw if j==0 else vPr[j]
        q(vop(f"v_lshl_add_u32 v{r}, v{L}, 4, s{50+j}",V(L)+S(50+j),V(r)))
        q(salu(f"s_lshr_b32 s{50+j}, s{50+j}, 1",S(50+j),S(50+j)), salu(f"s_add_u32 s{50+j}, s{50+j}, {XB}",S(50+j),S(50+j)))
    q(salu(f"s_lshl_b32 s49, s{sW}, 6",S(sW),S(49)))
    q(vop(f"v_lshlrev_b32 v{vOst}, 8, v{Q_}",V(Q_),V(vOst)), vop(f"v_lshl_add_u32 v{vOst}, v{G_}, 4, v{vOst}",V(G_)+V(vOst),V(vOst)), vop(f"v_add_u32 v{vOst}, s49, v{vOst}",S(49)+V(vOst),V(vOst)))
    q(vop(f"v_lshrrev_b32 v{T1}, 1, v{G_}",V(G_),V(T1)), vop(f"v_lshl_add_u32 v{T1}, v{T1}, 4, v{Q_}",V(T1)+V(Q_),V(T1)),
      vop(f"v_lshlrev_b32 v{T1}, 4, v{T1}",V(T1),V(T1)), vop(f"v_add_u32 v{vLr}, {LBASE}, v{T1}",V(T1),V(vLr)))
    q(salu(f"s_lshl_b32 s49, s{sW}, 2",S(sW),S(49))); q(vop(f"v_add_u32 v{vLw}, s49, v{vLr}",S(49)+V(vLr),V(vLw)))
    q(vop(f"v_mov_b32 v{vLmax}, 0",[],V(vLmax)), vop(f"v_mov_b32 v{vRmax}, 0",[],V(vRmax)))
    if OC and "ocfix" in OPT:
        for r in range(4): q(vop(f"v_mov_b32 v{vC0+r}, {struct.unpack('<I',struct.pack('<f',OPT['ocfix']/8))[0]:#x}",[],V(vC0+r)))
    if CI not in(0,1,2,4,-1,-2,-4):
        assert max(vOs)+15<vCI or T-LAG<=2 and LAG<=3
        for r in range(4): q(vop(f"v_mov_b32 v{vCI+r}, {struct.unpack('<I',struct.pack('<f',CI))[0]:#x}",[],V(vCI+r)))
    q(vop(f"v_mov_b32 v{T1}, 0x3f803f80",[],V(T1)), vop(f"v_and_b32 v{T2}, {11 if OPT.get('sel2',1) else 8}, v{Q_}",V(Q_),V(T2)))
    for x in range(2):
        q(valu(f"v_cmp_eq_u32 vcc, {8*x}, v{T2}",V(T2),[VCC]))
        for r in range(4): q(valu(f"v_cndmask_b32 v{vSEL[x]+r}, 0, v{T1}, vcc",V(T1)+[VCC],V(vSEL[x]+r)))
    if OPT.get("trunc"): q(salu("s_mov_b32 s74, 0x07060302",[],S(74)))
    q(salu(f"s_mov_b32 s{sO0}, 0",[],S(sO0)), salu(f"s_mov_b32 s{sO1}, 4096",[],S(sO1)))
    q(vop(f"v_lshlrev_b32 v{T1}, 2, v{R_}",V(R_),V(T1)), vop(f"v_add_u32 v{T2}, s49, v{C_}",S(49)+V(C_),V(T2)), vop(f"v_xor_b32 v{T2}, v{T2}, v{T1}",V(T1)+V(T2),V(T2)),
      vop(f"v_lshl_add_u32 v{T3}, v{G_}, 2, v{R_}",V(G_)+V(R_),V(T3)), vop(f"v_lshlrev_b32 v{T3}, 8, v{T3}",V(T3),V(T3)), vop(f"v_lshl_add_u32 v{vTD}, v{T2}, 4, v{T3}",V(T2)+V(T3),V(vTD)))
    q(vop(f"v_add_u32 v{vKA}, s54, v{vQrd0}",S(54)+V(vQrd0),V(vKA)))
    q(vop(f"v_lshrrev_b32 v{T1}, 2, v{Q_}",V(Q_),V(T1)), valu(f"v_cmp_eq_u32 vcc, v{T1}, v{G_}",V(T1)+V(G_),[VCC]),
      vop(f"v_and_b32 v{T1}, 1, v{L}",V(L),V(T1)), vop(f"v_lshlrev_b32 v{T1}, 4, v{T1}",V(T1),V(T1)),
      vop(f"v_and_b32 v{T2}, 2, v{L}",V(L),V(T2)), valu(f"v_cmp_eq_u32 s[48:49], 0, v{T2}",V(T2),S(48,2)))
    for lo,cb in enumerate((CHI,CLO)):
        q(vop(f"v_mov_b32 v{T2}, {cb:#x}",[],V(T2)), v2("v_lshlrev_b32",T2,T1,T2), valu(f"v_cndmask_b32 v{T2}, 0, v{T2}, vcc",V(T2)+[VCC],V(T2)),
          valu(f"v_cndmask_b32 v{T3}, 0, v{T2}, s[48:49]",V(T2)+S(48,2),V(T3)), v2("v_xor_b32",T2,T2,T3))
        for half in range(2):
            a=aSC(lo,half)
            q(vop(f"v_accvgpr_write_b32 a{a+2*half}, v{T3}",V(T3),A(a+2*half)), vop(f"v_accvgpr_write_b32 a{a+2*half+1}, v{T2}",V(T2),A(a+2*half+1)),
              vop(f"v_accvgpr_write_b32 a{a+2-2*half}, 0",[],A(a+2-2*half)), vop(f"v_accvgpr_write_b32 a{a+3-2*half}, 0",[],A(a+3-2*half)))
    q(*ps(3))
    return q.out()

def fallback():
    q=Seq()
    q(label("L_fallback"), wait(vm=0,lg=0), bar())
    q(salu(f"s_mov_b32 s{sQso}, 0",[],S(sQso)), salu(f"s_mov_b32 s{sO0}, 0",[],S(sO0)), salu(f"s_mov_b32 s{sO1}, 4096",[],S(sO1)), salu(f"s_mov_b32 s{sLoop}, {NT}",[],S(sLoop)))
    q(vop(f"v_add_u32 v{vQrd}, {QBASE}, v{vQrd0}",V(vQrd0),V(vQrd)))
    MW,MR,T=216,217,218
    q(vop(f"v_mbcnt_lo_u32_b32 v{T}, -1, 0",[],V(T)), vop(f"v_mbcnt_hi_u32_b32 v{T}, -1, v{T}",V(T),V(T)),
      vop(f"v_and_b32 v{MR}, 15, v{T}",V(T),V(MR)), vop(f"v_lshlrev_b32 v{MR}, 6, v{MR}",V(MR),V(MR)), vop(f"v_add_u32 v{MR}, {MBASE}, v{MR}",V(MR),V(MR)),
      vop(f"v_lshrrev_b32 v{T}, 4, v{T}",V(T),V(T)), vop(f"v_lshl_add_u32 v{MW}, v{T}, 2, v{MR}",V(T)+V(MR),V(MW)))
    q(salu(f"s_lshl_b32 s49, s{sW}, 4",S(sW),S(49))); q(vop(f"v_add_u32 v{MW}, s49, v{MW}",S(49)+V(MW),V(MW)))
    q(label("L_fb_loop"))
    q(salu(f"s_mov_b32 m0, s{sWoff}",S(sWoff),[M0])); q(dma(vQdma,sQ,sQso,0),dma(vQdma,sQ,sQso,1024)); q(wait(vm=0),bar())
    for qb in range(2):
        for ds in range(4): q(dsr128(vQ(qb,ds),vQrd,qb*4160+ds*256))
    Sb=lambda kb,qb:64+(kb*2+qb)*4
    Pf=lambda f:128+f*4
    for kb in range(8):
        for qb in range(2):
            for ds in range(4): q(mfma(Sb(kb,qb),aK(kb,ds),vQ(qb,ds),None if ds==0 else Sb(kb,qb)))
    Mx=[220,221]; RD=224
    for qb in range(2):
        q(v2("v_max_f32",Mx[qb],Sb(0,qb),Sb(0,qb)+1))
        regs=[Sb(kb,qb)+r for kb in range(8) for r in range(4)][2:]
        for x in range(0,30,2): q(vop(f"v_max3_f32 v{Mx[qb]}, v{Mx[qb]}, v{regs[x]}, v{regs[x+1]}",V(Mx[qb])+V(regs[x])+V(regs[x+1]),V(Mx[qb])))
        q(dsw32(MW,Mx[qb],qb*1024))
    q(bar())
    for qb in range(2):
        for x in range(4): q(dsr128(RD+4*x,MR,qb*1024+16*x))
        q(v2("v_max_f32",Mx[qb],RD,RD+1))
        for x in range(2,16,2): q(vop(f"v_max3_f32 v{Mx[qb]}, v{Mx[qb]}, v{RD+x}, v{RD+x+1}",V(Mx[qb])+V(RD+x)+V(RD+x+1),V(Mx[qb])))
    for kb in range(8):
        for qb in range(2):
            for r in range(4): q(v2("v_sub_f32",Sb(kb,qb)+r,Sb(kb,qb)+r,Mx[qb]),slot=False)
            for r in range(4): q(vexp(Sb(kb,qb)+r),slot=False)
            for p2 in range(2): q(vcvt(Pf(2*(kb//2)+qb)+2*(kb%2)+p2,Sb(kb,qb)+2*p2,Sb(kb,qb)+2*p2+1),slot=False)
    for f in range(8): q(dsw128(vPw,Pf(f),f*1024))
    for qb in range(2):
        for kp in range(4): q(mfma(vLacc,vSEL[qb],Pf(2*kp+qb),None if (kp==0 and qb==0) else vLacc,afile='v'))
    q(dsw32(vLw,vLacc,0)); q(bar())
    for qb in range(2):
        for db in range(2):
            for kp in range(4): q(mfma(vO(0,qb,db),aV(0,kp,db),Pf(2*kp+qb),None if kp==0 else vO(0,qb,db)))
    for j in range(1,4):
        for qb in range(2):
            for k in range(4): q(dsr128(RD+4*k,vPr[j],(2*k+qb)*1024))
            for db in range(2):
                for kp in range(4): q(mfma(vO(0,qb,db),aV(j,kp,db),RD+4*kp,vO(0,qb,db)))
    q(dsr128(vLrd,vLr,0)); q(v2("v_add_f32",vLrd,vLrd,vLrd+1),v2("v_add_f32",vLrd+2,vLrd+2,vLrd+3),v2("v_add_f32",vLrd,vLrd,vLrd+2))
    q(valu(f"v_rcp_f32 v{vR0}, v{vLrd}",V(vLrd),V(vR0),"trans"), vop(f"v_mov_b32 v{vR1}, v{vR0}",V(vR0),V(vR1)),
      valu(f"v_permlane32_swap_b32 v{vR0}, v{vR1}",V(vR0)+V(vR1),V(vR0)+V(vR1),"perm"))
    for qb in range(2):
        for db in range(2):
            for p2 in range(2):
                r=vO(0,qb,db)+2*p2; R=vR0 if qb==0 else vR1
                q(v2("v_mul_f32",r,r,R),v2("v_mul_f32",r+1,r+1,R),vcvt(vOut(qb)+2*db+p2,r,r+1))
        q(vst(vOut(qb),vOst,sO,sO0 if qb==0 else sO1))
    q(salu(f"s_add_u32 s{sO0}, s{sO0}, 8192",S(sO0),S(sO0)), salu(f"s_add_u32 s{sO1}, s{sO1}, 8192",S(sO1),S(sO1)), salu(f"s_add_u32 s{sQso}, s{sQso}, 8192",S(sQso),S(sQso)))
    q(wait(vm=0,lg=0),bar())
    q(salu(f"s_sub_u32 s{sLoop}, s{sLoop}, 1",S(sLoop),S(sLoop)), salu(f"s_cmp_lg_u32 s{sLoop}, 0",S(sLoop),[SCC]), I("s_cbranch_scc1 L_fb_loop","branch",[SCC]))
    return q.out()

def stamp(n):
    if OPT["stamp"]==2: return [raw(f"s_memrealtime s[{76+2*n}:{77+2*n}]")] if n in(0,) else ([raw("s_memrealtime s[98:99]")] if n==1 else [])
    return [raw(f"s_memtime s[{76+4*n}:{77+4*n}]"),raw(f"s_memrealtime s[{78+4*n}:{79+4*n}]")] if OPT["stamp"] else []

def build():
    logs={}
    pro=prologue()+stamp(0)
    def it(i,par,cur,nxt,pv,ep,prefix,**kw):
        lg=[]; r=iteration(i,par,cur,nxt,pv,ep,(i+D<NT) or kw.get("force_dma"),prefix,log=lg,**{k:v for k,v in kw.items() if k!="force_dma"}); logs[i]=lg; return [comment(f"---- iteration {i}")]+r
    stag=OPT.get("stag",0); ncopy=OPT.get("ncopy",4) if stag else 1
    XC=(OPT.get("xc0",3),OPT.get("xc1",0))
    def mk0(t,caps,sfx):
        config(t); lg=[]
        h=[salu(f"s_add_u32 s{sQm0}, s{sWoff}, {((T+D)%NQ)*QSLOT}",S(sWoff),S(sQm0)), salu(f"s_mov_b32 s{sQso}, {(T+D)*8192}",[],S(sQso)), salu(f"s_mov_b32 s{sQrs}, {QBASE+(T%NQ)*QSLOT}",[],S(sQrs))]
        r=[comment(f"---- start-up steps (first {T} tiles) + merged iteration")]+h+startup(pro+h,lg,0,caps,sfx); logs[0]=lg
        mid=(T+1)%2
        r+=[salu(f"s_mov_b32 s{sLoop}, {(40-(T+1)+mid)//2}",[],S(sLoop))]+([] if "spinbar" in OPT else stamp(1))
        d=[]
        for cp in range(ncopy-1,0,-1): d+=[salu(f"s_cmp_ge_u32 s{sW}, {cp*(4//ncopy)}",S(sW),[SCC]), I(f"s_cbranch_scc1 L_{'mid' if mid else 'loop'}{cp}","branch",[SCC])]
        return r,d,mid
    var=[mk0(TO,(OPT.get("cap0",0),OPT.get("cap1",0)),"")]+([mk0(TX,XC,"x")] if any(XC) else [])
    i0=var[0][0]
    allb=[]; paths=[]; body_rem=[]
    for cp in range(ncopy):
        ia=it(6,0,1,1,1,1,i0,force_dma=True,baroff=stag*cp)
        ib=it(7,1,1,1,1,1,ia,force_dma=True,loopctl=f"L_loop{cp}",baroff=stag*cp)
        body=ia+ib
        if "lg0" in OPT:
            o=[]; n=0; g=-1
            for x in body:
                o.append(x)
                if x.kind=="mfma":
                    g+=1
                    if g>=OPT["lg0"] and (g-OPT["lg0"])%OPT.get("lgs",8)==0 and n<9: o.append(raw(f"s_memtime s[{78+2*n}:{79+2*n}]")); n+=1
            lay=o
        else: lay=ia+[label(f"L_mid{cp}")]+ib
        if cp==0: i40=stamp(2)+it(40,0,1,0,1,1,ib,ctx={"eager":1})
        for r,d,mid in var: paths.append(r+(ib if mid else [])+body*3+i40)
        allb+=[raw(f".p2align {OPT.get('al',6)}"),label(f"L_loop{cp}")]+lay
        body_rem+=body
        if cp<ncopy-1: allb+=[I("s_branch L_after","branch")]
    allb+=[label("L_after")]
    lg=[]; i41=[comment("---- drain")]+drain(41,i40,lg); logs[41]=lg; i42=[]; i1=[]
    tgt=lambda mid:f"L_{'mid' if mid else 'loop'}0"
    if len(var)>1:
        (r0,d0,m0_),(r1,d1,m1_)=var
        st=[salu(f"s_bitcmp{OPT.get('xpar',0)}_b32 s73, 0",S(73),[SCC]),I("s_cbranch_scc1 L_xs","branch",[SCC])]+r0+d0+[I(f"s_branch {tgt(m0_)}","branch"),label("L_xs")]+r1+d1+([I(f"s_branch {tgt(m1_)}","branch")] if m1_ else [])+[label("L_xj")]
    else:
        r0,d0,m0_=var[0]; st=r0+d0+([I(f"s_branch {tgt(m0_)}","branch")] if m0_ else [])
    main=pro+st+allb+i40+i41
    fin=Seq(i41+i42)
    fin(salu(f"s_mov_b32 s49, {HI:#x}",[],S(49)), salu(f"s_mov_b32 s50, {RHI:#x}",[],S(50)))
    fin(valu(f"v_cmp_lt_u32 vcc, s49, v{vLmax}",S(49)+V(vLmax),[VCC]), valu(f"v_cmp_lt_u32 s[52:53], s50, v{vRmax}",S(50)+V(vRmax),S(52,2)))
    fin(nop(4), salu("s_or_b64 vcc, vcc, s[52:53]",[VCC]+S(52,2),[VCC]), nop(4), I("s_cbranch_vccnz L_fallback","branch",[VCC]))
    if OPT["stamp"]==2 and OPT.get("all"):
        fin(raw("s_waitcnt vmcnt(0)"),raw("s_memrealtime s[100:101]"),raw("s_waitcnt lgkmcnt(0)"),raw(f"s_cmp_lg_u32 s{sW}, 0"),raw("s_cbranch_scc1 L_end"))
        fin(raw(f"s_and_b32 s{sDbg+1}, s{sDbg+1}, 0xffff"),raw(f"s_mov_b32 s{sDbg+2}, 4096"),raw(f"s_mov_b32 s{sDbg+3}, 0x20000"))
        fin(raw("s_getreg_b32 s3, hwreg(HW_REG_XCC_ID)"),raw("s_and_b32 s3, s3, 7"),raw("s_and_b32 s55, s62, 0xffffff"),raw("s_lshl_b32 s3, s3, 24"),raw("s_or_b32 s3, s3, s55"),raw("v_mov_b32 v200, s3"))
        if OPT.get("hwid"): fin(raw("s_getreg_b32 s82, hwreg(HW_REG_HW_ID)"),raw("s_add_u32 s82, s82, s62"))
        for n,r in enumerate((82,98,100)): fin(raw(f"s_sub_u32 s3, s{r}, s62"),raw(f"v_mov_b32 v{201+n}, s3"))
        fin(raw("s_lshl_b32 s3, s2, 4"),raw("v_mov_b32 v220, s3"),raw("s_mov_b64 exec, 1"),raw(f"buffer_store_dwordx4 v[200:203], v220, s[{sDbg}:{sDbg+3}], 0 offen"))
    elif OPT["stamp"]==2:
        fin(raw("s_waitcnt vmcnt(0)"),raw("s_memrealtime s[100:101]"),raw("s_waitcnt lgkmcnt(0)"))
        fin(raw("s_and_b32 s3, s2, 63"),raw("s_cmp_lg_u32 s3, 0"),raw("s_cbranch_scc1 L_end"),raw(f"s_cmp_lg_u32 s{sW}, 0"),raw("s_cbranch_scc1 L_end"))
        fin(raw(f"s_and_b32 s{sDbg+1}, s{sDbg+1}, 0xffff"),raw(f"s_mov_b32 s{sDbg+2}, 256"),raw(f"s_mov_b32 s{sDbg+3}, 0x20000"))
        for n in range(13): fin(raw(f"s_sub_u32 s3, s{76+2*n}, s62"),raw(f"v_mov_b32 v{200+n}, s3"))
        fin(raw("s_lshr_b32 s3, s2, 6"),raw("s_lshl_b32 s3, s3, 6"),raw("v_mov_b32 v220, s3"),raw("s_mov_b64 exec, 1"))
        for n in range(4): fin(raw(f"buffer_store_dwordx4 v[{200+4*n}:{203+4*n}], v220, s[{sDbg}:{sDbg+3}], 0 offen offset:{16*n}"))
    elif OPT["stamp"]:
        fin(*stamp(3)); fin(raw("s_waitcnt vmcnt(0)")); fin(*stamp(4)); fin(raw("s_waitcnt lgkmcnt(0)"))
        sp=OPT.get("spin")
        if sp is not None:
            ex={0:["s_mov_b32 s3, 0"],1:["s_sub_u32 s3, s78, s62","s_lshl_b32 s3, s3, 2"],2:["s_sub_u32 s3, s86, s82"],3:["s_sub_u32 s3, s94, s62"],
                4:["s_sub_u32 s3, s84, s80","s_lshr_b32 s3, s3, 4"],5:["s_sub_u32 s3, s82, s62","s_lshl_b32 s3, s3, 2"],6:["s_sub_u32 s3, s82, s78","s_lshl_b32 s3, s3, 3"],7:["s_sub_u32 s3, s80, s76","s_lshr_b32 s3, s3, 1"],8:["s_sub_u32 s3, s94, s86","s_lshl_b32 s3, s3, 3"]}[sp]
            for e in ex: fin(raw(e))
            fin(raw("s_add_u32 s3, s3, 15000"),label("L_spin"),raw("s_memrealtime s[98:99]"),raw("s_waitcnt lgkmcnt(0)"),raw("s_sub_u32 s98, s98, s62"),raw("s_cmp_lt_u32 s98, s3"),raw("s_cbranch_scc1 L_spin"))
        fin(raw("s_and_b32 s3, s2, 31"),raw("s_cmp_lg_u32 s3, 0"),raw("s_cbranch_scc1 L_end"),raw(f"s_cmp_lg_u32 s{sW}, 0"),raw("s_cbranch_scc1 L_end"))
        fin(raw(f"s_and_b32 s{sDbg+1}, s{sDbg+1}, 0xffff"),raw(f"s_mov_b32 s{sDbg+2}, 256"),raw(f"s_mov_b32 s{sDbg+3}, 0x20000"))
        for n in range(4): fin(raw(f"s_sub_u32 s3, s{76+4*(n+1 if n==3 else n)}, s60"),raw(f"v_mov_b32 v{200+2*n}, s3"),raw(f"s_sub_u32 s3, s{78+4*(n+1 if n==3 else n)}, s62"),raw(f"v_mov_b32 v{201+2*n}, s3"))
        fin(raw("s_lshr_b32 s3, s2, 5"),raw("s_lshl_b32 s3, s3, 5"),raw("v_mov_b32 v208, s3"),raw("s_mov_b64 exec, 1"),
            raw(f"buffer_store_dwordx4 v[200:203], v208, s[{sDbg}:{sDbg+3}], 0 offen"),raw(f"buffer_store_dwordx4 v[204:207], v208, s[{sDbg}:{sDbg+3}], 0 offen offset:16"))
    fin(raw("s_endpgm"))
    fb=fallback()
    ool=[]
    if "rw2" in OPT:
        for cp in range(ncopy): ool+=[label(f"L_loop{cp}_rw")]+rewarm("L_after")+[raw(f"s_branch L_loop{cp}_rwb")]
    static=main+fin.out()+ool+fb+[label("L_end"),raw("s_endpgm")]
    dyns=[pro+p+i41+fin.out() for p in paths]
    for rep in range(2):
        for dyn in dyns: resolve_waits(dyn)
    k=[x for x,y in enumerate(fb) if y.text=="L_fb_loop"][0]
    dynf=fb+fb[k:]
    resolve_waits(dynf)
    for name,d in [("main",d) for d in dyns]+[("fallback",dynf)]:
        bad=check_hazards(d)
        for b in bad: print("HAZARD",name,b,file=sys.stderr)
        assert not bad
        print(name,"max outstanding",max_outstanding(d),file=sys.stderr)
    for nm,sq in(("i0",i0),("i1",i1),("ia",ia),("ib",ib),("i40",i40),("i41",i41),("i42",i42)):
        print(nm,"est cycles",estimate(sq),"nops",sum(1 for x in sq if x.kind=="nop"),"instrs",sum(1 for x in sq if states(x)),file=sys.stderr)
    if "log" in OPT: print("\n".join(logs[OPT["log"]]),file=sys.stderr)
    if OC==2:
        for x in main:
            if x.kind=="mfma" and x.name.startswith("PV") and x.text.endswith(", 0"): x.text=x.text[:-1]+"1.0"
    if "linit" in OPT:
        for x in main:
            if x.kind=="mfma" and "ONE" in x.name and x.text.endswith(", 0"): x.text=x.text[:-1]+f"{float(OPT['linit']):.1f}"
    if "oinit" in OPT:
        for x in main:
            if x.kind=="mfma" and x.name.startswith("PV") and x.text.endswith(", 0"): x.text=x.text[:-1]+f"{float(OPT['oinit'])/2:.1f}"
        static=[x for x in static if x.text!="s_cbranch_vccnz L_fallback"]
    abl=str(OPT.get("abl","")).split("+")
    if abl!=[""]:
        loop=set(map(id,body_rem)) if not OPT.get('abs') else set(map(id,i0[len(i0)//4:]))
        def drop(x):
            if id(x) not in loop: return False
            t=x.text
            return (("st" in abl and x.kind=="vst") or ("dma" in abl and x.kind=="dma") or ("pr" in abl and x.kind=="dsr" and 128<=min(r[1] for r in x.wr)<160)
              or ("qr" in abl and x.kind=="dsr" and 32<=min(r[1] for r in x.wr)<64) or ("pw" in abl and x.kind=="dsw") or ("exp" in abl and t.startswith("v_exp"))
              or ("cvt" in abl and t.startswith("v_cvt")) or ("one" in abl and x.kind=="mfma" and x.name.startswith("ONE")) or ("bar" in abl and x.kind=="bar")
              or ("mul" in abl and t.startswith("v_mul")) or ("valu" in abl and x.kind in VALU_KINDS) or ("qk" in abl and x.kind=="mfma" and x.name.startswith("QK"))
              or ("pv" in abl and x.kind=="mfma" and x.name.startswith("PV")) or ("wait" in abl and x.kind=="wslot") or ("ks" in abl and (t.startswith("v_accvgpr") or t.startswith("v_pk_mul") or t.startswith("v_and") or t.startswith("v_lshlrev"))))
        static=[x for x in static if not drop(x)]
        static=[x for x in static if x.text!="s_cbranch_vccnz L_fallback"]
    if OPT.get("fake") or OPT.get("samea"): static=[x for x in static if x.text!="s_cbranch_vccnz L_fallback"]
    if OPT.get("swap"):
        import re as _re
        for x in body_rem:
            if x.kind=="mfma" and any(x.name.startswith(p) for p in OPT["swap"].split("+")):
                m=_re.match(r"(\S+ [^,]+), ([^,]+), ([^,]+), (.*)",x.text); x.text=f"{m[1]}, {m[3]}, {m[2]}, {m[4]}"
        static=[x for x in static if x.text!="s_cbranch_vccnz L_fallback"]
    hdr=open("standalone__mha_softmax__near_ridge.s.ref").read().split("; Override launch")[0]
    txt=hdr+f"""; One workgroup (4 waves) per head.  K (scaled once by log2(e)/sqrt(D)) and V^T stay in AGPRs: wave w owns keys
; 128w..128w+127 for S^T = K.Q^T and output columns 32w..32w+31 for O^T = V^T.P^T (16x16x32 bf16 MFMA); P and the row sums
; are exchanged through LDS, one barrier per 32-row query tile.  The first tiles are processed key-chunk by key-chunk while
; K and V stream in.  Softmax shift: the fast path shifts every score by the constant 4 (log2 units, through the MFMA
; accumulator init); every row sum l is checked at run time (2^-4 <= l <= 2^48, inf/NaN included) and if any row leaves that
; range the whole head is recomputed with the true row max (L_fallback).  The P.V accumulators start from an offset of a few
; times the wave's smallest column magnitude of V, removed exactly in the normalisation FMA (fewer accumulator sign flips).
; Speed only: the start-up code exists twice; workgroups on an even XCD keep fewer loads in flight (the odd die of each pair
; otherwise loses the memory arbitration and also clocks lower); waves 0,1 and 2,3 run loop copies with shifted barriers.
; @launch grid=(256,1,1) block=(256,1,1) lds={LDS_BYTES}
.amdgcn_target "amdgcn-amd-amdhsa--gfx950"
.text
.globl {NAME}
.p2align 8
.type {NAME},@function
{NAME}:
"""+emit(static)+f""".section .rodata,"a"
.p2align 6
.amdhsa_kernel {NAME}
  .amdhsa_next_free_vgpr 512
  .amdhsa_next_free_sgpr 102
  .amdhsa_accum_offset 256
  .amdhsa_group_segment_fixed_size 0
  .amdhsa_kernarg_size 48
  .amdhsa_user_sgpr_count 2
  .amdhsa_user_sgpr_kernarg_segment_ptr 1
  .amdhsa_system_sgpr_workgroup_id_x 1
.end_amdhsa_kernel
"""
    return txt

if __name__=="__main__":
    open(sys.argv[1],"w").write(build())
```
